```python
import torch

def _softmax(x, axis=-1):
    return torch.softmax(x, dim=axis)
def _gelu(x):
    return torch.nn.functional.gelu(x, approximate="tanh")
def _silu(x):
    return torch.nn.functional.silu(x)
def _sigmoid(x):
    return torch.sigmoid(x)
def _layernorm(x, axis=-1, eps=1e-5):
    m = x.mean(dim=axis, keepdim=True)
    v = x.var(dim=axis, keepdim=True, unbiased=False)
    return (x - m) / torch.sqrt(v + eps)
def _scatter_add(tgt, idx, src, axis=0):
    return tgt.clone().index_add_(axis, idx, src)
def _segment_sum(src, seg, n):
    out = torch.zeros((n,) + src.shape[1:], dtype=src.dtype)
    return out.index_add_(0, seg, src)
def _pad(x, pw):
    flat = tuple(v for pair in reversed(pw) for v in pair)
    return torch.nn.functional.pad(x, flat)

kernel_name = 'sequential_preLN__sliding_block__dense_activation_relu__prompt'

def setup_inputs():

    _w = (lambda a: (lambda t: t.to(torch.bfloat16) if t.is_floating_point() else t)(torch.as_tensor(a)))
    def _A_setup():
        B, S, D = 1, 2048, 1024
        return {
            "x": _w((lambda *s: torch.randn(*s, dtype=torch.bfloat16) * 0.05)(B, S, D)),
            "wqkv": _w((lambda *s: torch.randn(*s, dtype=torch.bfloat16) * 0.05)(D, 3 * D)),
            "wo": _w((lambda *s: torch.randn(*s, dtype=torch.bfloat16) * 0.05)(D, D)),
        }
    _A_in = _A_setup()

    def _B_setup():
        B, S, D, Dff = 1, 2048, 1024, 3584
        return {
            "x": _w((lambda *s: torch.randn(*s, dtype=torch.bfloat16) * 0.05)(B, S, D)),
            "w1": _w((lambda *s: torch.randn(*s, dtype=torch.bfloat16) * 0.05)(D, Dff)),
            "w2": _w((lambda *s: torch.randn(*s, dtype=torch.bfloat16) * 0.05)(Dff, D)),
        }
    _B_in = _B_setup()

    return {
        "A_x": _A_in["x"],
        "A_wqkv": _A_in["wqkv"],
        "A_wo": _A_in["wo"],
        "B_x": _B_in["x"],
        "B_w1": _B_in["w1"],
        "B_w2": _B_in["w2"],
    }

def reference(A_x, A_wqkv, A_wo, B_x, B_w1, B_w2):
    def _A_ref(x, wqkv, wo):
        B, S, D = x.shape
        H = 32; Dh = D // H; W = 256
        qkv = (lambda x, *d: x.permute(*d))((x @ wqkv).reshape(B, S, 3, H, Dh), 2, 0, 3, 1, 4)
        q, k, v = qkv[0], qkv[1], qkv[2]
        scores = torch.einsum("bhqd,bhkd->bhqk", q, k) * (Dh ** -0.5)
        idx = torch.arange(S)
        mask = (idx[:, None] - idx[None, :] >= 0) & (idx[:, None] - idx[None, :] < W)
        scores = torch.where(mask[None, None], scores, -1e9)
        p = _softmax(scores, axis=-1)
        o = torch.einsum("bhqk,bhkd->bhqd", p, v)
        return (lambda x, *d: x.permute(*d))(o, 0, 2, 1, 3).reshape(B, S, D) @ wo

    def _B_ref(x, w1, w2):
        h = torch.einsum("bsd,df->bsf", x, w1)
        zero = torch.zeros_like(h)
        h = torch.maximum(h, zero)
        return torch.einsum("bsf,fd->bsd", h, w2)

    x = A_x
    h = x + _A_ref(_layernorm(x, axis=-1), A_wqkv, A_wo)
    h2 = h + _B_ref(_layernorm(h, axis=-1), B_w1, B_w2)
    return h2
```

```python
class Asm:
    def __init__(self):
        self.L = []
        self.lq = []
    def e(self, s):
        for line in s.split("\n"):
            line = line.strip()
            if line: self.L.append("  " + line if not line.endswith(":") else line)
    def c(self, s):
        self.L.append("  ; " + s)
    def label(self, s):
        self.L.append(s + ":")
    def text(self):
        return "\n".join(self.L) + "\n"
    def lds_rd(self, instr, dst_regs):
        self.e(instr); self.lq.append(set(dst_regs))
    def lds_other(self, instr):
        self.e(instr); self.lq.append(set())
    def need(self, regs):
        regs = set(regs); last = -1
        for i, d in enumerate(self.lq):
            if d & regs: last = i
        if last < 0: return
        n = len(self.lq) - 1 - last
        n = min(n, 15)
        self.e(f"s_waitcnt lgkmcnt({n})")
        self.lq = self.lq[len(self.lq) - n:] if n > 0 else []
    def lds_drain(self, extra=""):
        self.e(f"s_waitcnt lgkmcnt(0) {extra}".strip())
        self.lq = []

def vr(base, n=1):
    return f"v{base}" if n == 1 else f"v[{base}:{base+n-1}]"
def sr(base, n=1):
    return f"s{base}" if n == 1 else f"s[{base}:{base+n-1}]"
def rng(base, n): return range(base, base+n)

class Regs:
    def __init__(self, start, limit, kind="v"):
        self.n = start; self.limit = limit; self.kind = kind; self.names = {}
    def alloc(self, n=1, align=1, name=None):
        self.n = (self.n + align - 1)//align*align
        b = self.n; self.n += n
        assert self.n <= self.limit, f"out of {self.kind} regs ({name})"
        if name: self.names[name] = b
        return b

def kd(name, vgpr=256, accum=256, sgpr=102):
    return f"""
.section .rodata,"a"
.p2align 6
.amdhsa_kernel {name}
  .amdhsa_next_free_vgpr {vgpr}
  .amdhsa_next_free_sgpr {sgpr}
  .amdhsa_accum_offset {accum}
  .amdhsa_group_segment_fixed_size 0
  .amdhsa_kernarg_size 72
  .amdhsa_user_sgpr_count 2
  .amdhsa_user_sgpr_kernarg_segment_ptr 1
  .amdhsa_system_sgpr_workgroup_id_x 1
  .amdhsa_float_denorm_mode_32 3
.end_amdhsa_kernel
.text
"""
def head(name):
    return f".globl {name}\n.p2align 8\n.type {name},@function\n{name}:\n"
```

```python
import sys, os
sys.path.insert(0, os.path.dirname(os.path.abspath(__file__)))
sys.path.insert(0, os.path.join(os.path.dirname(os.path.abspath(__file__)), "..", "gen"))
from emit import *
def gen(name, nst, stflag, ldflag, xi=8, xj=4, perwave_atomic=False):
    import math
    a = Asm()
    a.e(f"s_cmp_ge_u32 s2, 256\ns_cbranch_scc1 L_end_{name}")
    a.e("s_load_dwordx2 s[4:5], s[0:1], 0\ns_load_dwordx2 s[6:7], s[0:1], 8\ns_load_dwordx2 s[8:9], s[0:1], 16")
    gx = 16//xj
    a.e(f"s_and_b32 s31, s2, 7\ns_lshr_b32 s39, s2, 3")
    a.e(f"s_lshr_b32 s28, s31, {int(math.log2(gx))}\ns_and_b32 s29, s31, {gx-1}")
    a.e(f"s_mul_i32 s28, s28, {xi}\ns_mul_i32 s29, s29, {xj}")
    a.e(f"s_lshr_b32 s31, s39, {int(math.log2(xj))}\ns_and_b32 s39, s39, {xj-1}")
    a.e(f"s_add_u32 s28, s28, s31\ns_add_u32 s29, s29, s39")
    a.e("v_and_b32 v1, 63, v0\nv_lshrrev_b32 v2, 6, v0\ns_nop 0\nv_readfirstlane_b32 s30, v2\nv_lshlrev_b32 v3, 4, v1")
    a.e("s_waitcnt lgkmcnt(0)")
    a.e("s_mov_b32 s12, s4\ns_mov_b32 s13, s5\ns_mov_b32 s14, 0x1000000\ns_mov_b32 s15, 0x20000")
    a.e("s_lshl_b32 s32, s28, 20\ns_lshl_b32 s33, s29, 16\ns_add_u32 s33, s33, s32\ns_lshl_b32 s34, s30, 14\ns_add_u32 s33, s33, s34")
    for r in range(8): a.e(f"v_add_u32 v{8+r}, s2, v0")
    a.e("s_barrier\ns_memrealtime s[40:41]")
    for n in range(nst):
        a.e(f"buffer_store_dwordx4 v[8:11], v3, s[12:15], s33 offen {stflag}\ns_add_u32 s33, s33, 1024")
    a.e("s_memrealtime s[42:43]")
    a.e("s_waitcnt vmcnt(0)\ns_memrealtime s[44:45]")
    a.e("s_lshl_b32 s35, s28, 6\nv_mov_b32 v4, s35\nv_mov_b32 v5, 1")
    if not perwave_atomic:
        a.e("s_barrier\ns_cmp_lg_u32 s30, 0\ns_cbranch_scc1 L_noat_" + name)
    a.e("v_cmp_eq_u32 vcc, 0, v1\ns_and_saveexec_b64 s[36:37], vcc")
    a.e("global_atomic_add v4, v5, s[6:7] sc1\ns_mov_b64 exec, s[36:37]")
    a.label("L_noat_" + name)
    target = 64 if perwave_atomic else 16
    a.e("s_mov_b32 s38, 200000")
    a.e("s_cmp_lg_u32 s30, 0\ns_cbranch_scc1 L_nopoll_" + name)
    a.label("L_poll_" + name)
    a.e("global_load_dword v6, v4, s[6:7] sc1\ns_waitcnt vmcnt(0)\nv_readfirstlane_b32 s50, v6")
    a.e(f"s_cmp_ge_u32 s50, {target}\ns_cbranch_scc1 L_nopoll_{name}\ns_sub_u32 s38, s38, 1\ns_cmp_lg_u32 s38, 0\ns_cbranch_scc1 L_poll_{name}")
    a.label("L_nopoll_" + name)
    a.e("s_memrealtime s[46:47]\ns_barrier")
    for n in range(4):
        a.e(f"s_lshl_b32 s34, s30, 2\ns_add_u32 s34, s34, {n}\ns_lshl_b32 s34, s34, 16\ns_add_u32 s34, s34, s32")
        a.e(f"s_lshl_b32 s35, s30, 12\ns_add_u32 m0, s35, {n*1024}\ns_nop 0")
        a.e(f"buffer_load_dwordx4 v3, s[12:15], s34 offen {ldflag} lds")
    a.e("s_waitcnt vmcnt(0)\ns_memrealtime s[48:49]\ns_barrier")
    a.e("s_lshl_b32 s35, s30, 12\nv_add_u32 v7, s35, v3\nds_read_b32 v20, v7\nds_read_b32 v21, v7 offset:1024\nds_read_b32 v22, v7 offset:2048\nds_read_b32 v23, v7 offset:3072\ns_waitcnt lgkmcnt(0)")
    a.e("s_lshl_b32 s3, s2, 10\nv_lshlrev_b32 v24, 4, v0\nv_add_u32 v24, s3, v24\nv_add_u32 v24, v24, v24" if False else "s_nop 0")
    a.e("s_lshl_b32 s3, s2, 12\nv_lshlrev_b32 v24, 4, v0\nv_add_u32 v24, s3, v24\nv_add_u32 v24, 0x100000, v24\nglobal_store_dwordx4 v24, v[20:23], s[8:9]")
    a.e("v_cmp_eq_u32 vcc, 0, v0\ns_and_saveexec_b64 s[36:37], vcc\ns_cbranch_execz L_end_" + name)
    a.e("s_waitcnt lgkmcnt(0)\ns_lshl_b32 s3, s2, 5\nv_mov_b32 v4, s3")
    for i in range(5): a.e(f"v_mov_b32 v{12+i}, s{40+2*i}")
    a.e("v_mov_b32 v17, s38\nv_mov_b32 v18, s28\nv_mov_b32 v19, s29")
    a.e("global_store_dwordx4 v4, v[12:15], s[8:9]\nglobal_store_dwordx4 v4, v[16:19], s[8:9] offset:16")
    a.label(f"L_end_{name}")
    a.e("s_endpgm")
    return head(name) + a.text() + kd(name)
CFG = [("s14_sc1", dict(nst=14, stflag="sc1", ldflag="sc1")),
       ("s14_sc01", dict(nst=14, stflag="sc0 sc1", ldflag="sc0 sc1")),
       ("s14_sc1_pw", dict(nst=14, stflag="sc1", ldflag="sc1", perwave_atomic=True)),
       ("s14_plainld", dict(nst=14, stflag="sc1", ldflag="")),
       ("s4_sc1", dict(nst=4, stflag="sc1", ldflag="sc1", xi=4, xj=8)),
       ("s4_sc1_pw", dict(nst=4, stflag="sc1", ldflag="sc1", xi=4, xj=8, perwave_atomic=True)),
       ("s14_nt", dict(nst=14, stflag="sc1 nt", ldflag="sc1")),
       ("s14_plainst", dict(nst=14, stflag="", ldflag="sc1")),
]
if __name__ == "__main__":
    import hipw
    txt = '.amdgcn_target "amdgcn-amd-amdhsa--gfx950"\n.text\n'
    for n, kw in CFG: txt += gen(n, **kw)
    if len(sys.argv) > 1 and sys.argv[1] == "build":
        hipw.build(txt, "seam.co", nptrs=3); print("built"); sys.exit(0)
    import numpy as np
    m = hipw.Module("seam.co")
    data = hipw.Buf(32 << 20); cnt = hipw.Buf(4096); out = hipw.Buf(4 << 20); busy = hipw.Buf(64 << 20)
    for n, kw in CFG:
        res = []; bad = 0
        for it in range(8):
            busy.memset(it); data.memset(0x55); cnt.memset(0)
            m.launch(n, (256,1,1), (256,1,1), [data.ptr, cnt.ptr, out.ptr], lds=100*1024); hipw.sync()
            r = out.download(np.uint32, 256*8).reshape(256, 8).astype(np.int64)
            t0 = r[:,0].min()
            res.append([np.median(r[:,1]-r[:,0]), np.median(r[:,2]-r[:,0]), np.median(r[:,3]-r[:,0]), np.median(r[:,4]-r[:,0]), (r[:,4].max()-t0), r[:,0].max()-t0, (200000-r[:,5]).max()])
            ii = r[:,6];
            v = out.download(np.uint32, 256*256*4, 0x100000).reshape(256, 4, 64, 4)
            xi = kw.get("xi", 8); xj = kw.get("xj", 4); gx = 16//xj
            def wgid(i, j):
                xr, ir = divmod(i, xi); xc, ic = divmod(j, xj)
                return ((ir*xj + ic) << 3) | (xr*gx + xc)
            for wg in range(256):
                for w in range(4):
                    for nn in range(4):
                        prod = wgid(int(ii[wg]), w*4+nn)
                        exp = prod + np.arange(64)
                        bad += int((v[wg, w, :, nn] != exp).sum())
        md = np.median(np.array(res[2:]), axis=0)/100
        print(f"{n:14s} issue={md[0]:.2f} drained={md[1]:.2f} polled={md[2]:.2f} loaded={md[3]:.2f} (us from first store, median WG) span={md[4]:.2f} startskew={md[5]:.2f} maxpolls={md[6]*100:.0f} bad={bad}")
```

```python
def conflicts_b128(addrs):
    groups = [list(range(0,4))+list(range(12,16))+list(range(20,28)),
              list(range(4,12))+list(range(16,20))+list(range(28,32))]
    groups += [[l+32 for l in g] for g in groups]
    return _conf(addrs, groups, 16)
def conflicts_b64(addrs):
    groups = [list(range(0,32)), list(range(32,64))]
    return _conf(addrs, groups, 8)
def _conf(addrs, groups, nbytes):
    extra = 0
    for g in groups:
        banks = {}
        for l in g:
            for b in range(0, nbytes, 4):
                a = addrs[l] + b
                banks.setdefault((a//4) % 64, set()).add(a//4)
        extra += max(len(s) for s in banks.values()) - 1
    return extra
```

```python
from emit import *
MB = 1 << 20
M, D, DFF, H, DH = 2048, 1024, 3584, 32, 32
A_X, A_WQKV, A_WO, A_BX, A_W1, A_W2, A_OUT, A_DBG, A_WS = 0, 8, 16, 24, 32, 40, 48, 56, 64
WS_Q, WS_K, WS_V = 0, 4*MB, 8*MB
WS_O, WS_H, WS_H1 = 12*MB, 16*MB, 20*MB
WS_ST1 = 36*MB
WS_CSQ = 36*MB + 64*1024
WS_CS1 = 36*MB + 512*1024
WS_ST2 = 37*MB
WS_STAMP = 40*MB
PCS = 4
EPS = 1e-5
import struct
def f2u(x): return struct.unpack("<I", struct.pack("<f", x))[0]
def fhex(x): return "0x%08x" % f2u(x)

def srd(a, d, lo, hi, nbytes, off=0):
    if off:
        a.e(f"s_add_u32 s{d}, s{lo}, {off}\ns_addc_u32 s{d+1}, s{hi}, 0")
    else:
        a.e(f"s_mov_b32 s{d}, s{lo}\ns_mov_b32 s{d+1}, s{hi}")
    a.e(f"s_mov_b32 s{d+2}, {nbytes}\ns_mov_b32 s{d+3}, 0x20000")

def allreduce_add_wave(a, x, t):
    for p in ["quad_perm:[1,0,3,2]", "quad_perm:[2,3,0,1]", "row_half_mirror", "row_mirror"]:
        a.e("s_nop 1")
        a.e(f"v_add_f32_dpp v{x}, v{x}, v{x} {p} row_mask:0xf bank_mask:0xf")
    a.e(f"v_mov_b32 v{t}, v{x}\ns_nop 1\nv_permlane16_swap_b32 v{t}, v{x}\nv_add_f32 v{x}, v{x}, v{t}")
    a.e(f"v_mov_b32 v{t}, v{x}\ns_nop 1\nv_permlane32_swap_b32 v{t}, v{x}\nv_add_f32 v{x}, v{x}, v{t}")

def half_add(a, x, t):
    a.e(f"v_mov_b32 v{t}, v{x}\ns_nop 1\nv_permlane32_swap_b32 v{t}, v{x}\ns_nop 1\nv_add_f32 v{x}, v{x}, v{t}")

DIAG = {"on": False}
S_STAMP = 72
def stamp(a, idx, cyc=False):
    if DIAG["on"]:
        a.e(f"{'s_memtime' if cyc else 's_memrealtime'} s[{S_STAMP+2*idx}:{S_STAMP+2*idx+1}]")
def stamp_flush(a, kidx, n, vt):
    if not DIAG["on"]: return
    stamp(a, n-1)
    a.e("s_mov_b64 exec, -1")
    a.e("s_waitcnt lgkmcnt(0)")
    for i in range(8):
        a.e(f"v_mov_b32 v{vt+i}, s{S_STAMP+2*i}")
    a.e(f"s_add_u32 s92, s2, {kidx*1024}\ns_lshl_b32 s92, s92, 5\ns_add_u32 s92, s92, {WS_STAMP}")
    a.e(f"s_add_u32 s90, s88, s92\ns_addc_u32 s91, s89, 0")
    a.e(f"v_cmp_eq_u32 vcc, 0, v0\ns_and_saveexec_b64 s[94:95], vcc\ns_cbranch_execz L_nostamp_{kidx}")
    a.e(f"v_mov_b32 v{vt+8}, 0")
    a.e(f"global_store_dwordx4 v{vt+8}, v[{vt}:{vt+3}], s[90:91]\nglobal_store_dwordx4 v{vt+8}, v[{vt+4}:{vt+7}], s[90:91] offset:16")
    a.label(f"L_nostamp_{kidx}")
def stamp_init(a):
    if DIAG["on"]:
        a.e("s_load_dwordx2 s[88:89], s[0:1], 64")
        for i in range(8): a.e(f"s_mov_b32 s{S_STAMP+2*i}, 0")
        stamp(a, 0)
```

```python
class E:
    def __init__(self, op, *args): self.op = op; self.args = args
    def _w(x): return x if isinstance(x, E) else E("c", int(x))
    def __add__(s, o): return mk("+", s, o)
    def __radd__(s, o): return mk("+", o, s)
    def __sub__(s, o): return mk("-", s, o)
    def __mul__(s, o): return mk("*", s, o)
    def __rmul__(s, o): return mk("*", o, s)
    def __and__(s, o): return mk("&", s, o)
    def __xor__(s, o): return mk("^", s, o)
    def __or__(s, o): return mk("|", s, o)
    def __rshift__(s, o): return mk(">>", s, o)
    def __lshift__(s, o): return mk("<<", s, o)
    def isv(s):
        if s.op == "v": return True
        if s.op in ("c", "s"): return False
        return any(a.isv() for a in s.args)
    def isc(s): return s.op == "c"
    def ev(s, env):
        if s.op == "c": return s.args[0]
        if s.op in ("v", "s"): return env[s.args[0]]
        x, y = s.args[0].ev(env), s.args[1].ev(env)
        return apply(s.op, x, y)
def apply(op, x, y):
    return {"+": x+y, "-": x-y, "*": x*y, "&": x & y, "^": x ^ y, "|": x | y, ">>": x >> y if op == ">>" else 0, "<<": x << y if op == "<<" else 0}[op] & 0xffffffff
def mk(op, x, y):
    x = E._w(x); y = E._w(y)
    if x.isc() and y.isc(): return E("c", apply(op, x.args[0], y.args[0]))
    if op in ("+", "|", "^") and x.isc() and x.args[0] == 0: return y
    if op in ("+", "-", "|", "^", ">>", "<<") and y.isc() and y.args[0] == 0: return x
    if op == "*":
        if x.isc(): x, y = y, x
        if y.isc():
            k = y.args[0]
            if k == 0: return E("c", 0)
            if k == 1: return x
            if k & (k-1) == 0: return E("<<", x, E("c", k.bit_length()-1))
    return E(op, x, y)
def C(x): return E("c", int(x))
def V(name): return E("v", name)
def S(name): return E("s", name)

class Emitter:
    def __init__(self, a, vregs, sregs, vt, st):
        self.a = a; self.vr = vregs; self.sr = sregs; self.vt = list(vt); self.st = list(st)
    def lit(self, k):
        k &= 0xffffffff
        return str(k) if k <= 64 else hex(k)
    def semit(self, e, dst=None):
        if e.op == "c":
            if dst is None: return self.lit(e.args[0])
            self.a.e(f"s_mov_b32 s{dst}, {self.lit(e.args[0])}"); return f"s{dst}"
        if e.op == "s":
            if dst is None: return f"s{self.sr[e.args[0]]}"
            self.a.e(f"s_mov_b32 s{dst}, s{self.sr[e.args[0]]}"); return f"s{dst}"
        own = []
        def sub(x):
            if x.op in ("c", "s"): return self.semit(x)
            t = self.st.pop(); own.append(t); return self.semit(x, t)
        x = sub(e.args[0]); y = sub(e.args[1])
        if dst is None: raise RuntimeError
        ins = {"+": "s_add_u32", "-": "s_sub_u32", "*": "s_mul_i32", "&": "s_and_b32", "^": "s_xor_b32", "|": "s_or_b32", ">>": "s_lshr_b32", "<<": "s_lshl_b32"}[e.op]
        self.a.e(f"{ins} s{dst}, {x}, {y}")
        for t in own: self.st.append(t)
        return f"s{dst}"
    def vemit(self, e, dst):
        a = self.a
        if not e.isv():
            own = None
            if e.op in ("c", "s"): x = self.semit(e)
            else:
                own = self.st.pop(); x = self.semit(e, own)
            a.e(f"v_mov_b32 v{dst}, {x}")
            if own is not None: self.st.append(own)
            return
        if e.op == "v":
            a.e(f"v_mov_b32 v{dst}, v{self.vr[e.args[0]]}"); return
        x, y = e.args
        ownv = []; owns = []
        def vop(t, prefer=None):
            if t.op == "v": return f"v{self.vr[t.args[0]]}"
            r = prefer if prefer is not None else self.vt.pop()
            if prefer is None: ownv.append(r)
            self.vemit(t, r); return f"v{r}"
        def sop(t):
            if t.op in ("c", "s"): return self.semit(t)
            r = self.st.pop(); owns.append(r); return self.semit(t, r)
        op = e.op
        if op in ("+", "*", "&", "^", "|"):
            if not y.isv(): x, y = y, x
            ins = {"+": "v_add_u32", "*": "v_mul_u32_u24", "&": "v_and_b32", "^": "v_xor_b32", "|": "v_or_b32"}[op]
            if not x.isv():
                s0 = sop(x); s1 = vop(y, dst)
            else:
                s0 = vop(x, dst); s1 = vop(y)
            a.e(f"{ins} v{dst}, {s0}, {s1}")
        elif op == "-":
            if not y.isv():
                s0 = sop(y); s1 = vop(x, dst); a.e(f"v_subrev_u32 v{dst}, {s0}, {s1}")
            elif not x.isv():
                s0 = sop(x); s1 = vop(y, dst); a.e(f"v_sub_u32 v{dst}, {s0}, {s1}")
            else:
                s0 = vop(x, dst); s1 = vop(y); a.e(f"v_sub_u32 v{dst}, {s0}, {s1}")
        else:
            ins = "v_lshrrev_b32" if op == ">>" else "v_lshlrev_b32"
            if not y.isv(): s0 = sop(y); s1 = vop(x, dst)
            else:
                s1 = vop(x, dst); s0 = vop(y)
            a.e(f"{ins} v{dst}, {s0}, {s1}")
        for r in ownv: self.vt.append(r)
        for r in owns: self.st.append(r)
```

```python
from common import *
from expr import *
import banks, math

def magic_div(d, maxv):
    for sh in (16, 17, 18, 20):
        m = (1 << sh)//d + 1
        if m*maxv < (1 << 32) and m < (1 << 24) and all(((c*m) >> sh) == c//d for c in range(maxv)): return m, sh
    raise RuntimeError

S_XSRD, S_WSRD = 4, 8
S_E0, S_E1, S_E2, S_E3 = 12, 16, 20, 24
S_I, S_J, S_WV, S_T = 28, 29, 30, 31
S_XOFF, S_WOFF, S_RD, S_WR, S_CNT, S_XL, S_WL = 32, 33, 34, 35, 36, 37, 38
S_T2, S_T3, S_T4 = 39, 40, 41
S_WM, S_WN = 42, 43
S_PTR = 44
S_EX = 62
S_ET = [64, 65, 66, 67, 68, 69]
S_LW = 70

class Cfg:
    def __init__(self, **kw):
        self.S = 3; self.G = 1; self.BK = 64; self.TM = 128; self.shape = 32
        self.no_mfma = False; self.no_dma = False; self.loaders = False; self.qkvseg = False
        self.__dict__.update(kw)

class G:
    def __init__(self, c, a, v, vLane, vt):
        self.c = c; self.a = a; self.v = v; self.vLane = vLane; self.vt = vt
        c.T = c.shape; c.KS = 16 if c.shape == 32 else 32
        c.NSUB = c.BK//c.KS
        c.nX = c.TM//c.T//c.WM; c.nW = c.TN//c.T//c.WN
        c.AR = 16 if c.shape == 32 else 4
        c.RS = c.TN*2
        c.XB = c.TM*c.BK*2; c.WB = c.BK*c.RS; c.SB = c.XB + c.WB
        c.nXld = c.XB//1024//4; c.nWld = c.WB//1024//4
        assert c.nWld*4096 == c.WB and c.nXld == 4
        c.nld = c.nXld + c.nWld
        c.nsteps = c.K//c.BK
        self.l = V("l"); self.wm = S("wm"); self.wn = S("wn"); self.lw = S("lw")
        self.em = Emitter(a, {"l": vLane}, {"wm": S_WM, "wn": S_WN, "lw": S_LW, "i": S_I, "j": S_J, "kh": 3}, vt, S_ET)
        self.check_banks(); self.plan_reads()
        if not getattr(c, "split", False): self.alloc()
    def wswz(self, row):
        c = self.c; m = c.RS % 256
        if c.shape == 32:
            if m == 128: return ((row >> 1) & 1) << 2
            if m in (64, 192): return C(0)
            return (row & 3) << 2
        if c.korder in ("fn", "fn32"):
            if m == 128: return ((row >> 1) & 3) << 1
            if m in (64, 192): return ((row >> 2) & 1) << 1
            return (row & 7) << 1
        if m == 128: return (((row >> 1) & 1) | (((row >> 3) & 1) << 1)) << 1
        if m in (64, 192): return ((row >> 3) & 1) << 1
        return ((row & 3) | (((row >> 3) & 1) << 2)) << 1
    def wrow(self, ks, j):
        c = self.c; l = self.l
        r = (l >> 2) & 3
        if c.shape == 32:
            h = l >> 5
            return (h*4 + (16*ks + 8*j) if c.korder == "fn" else h*8 + (16*ks + 4*j)) + r
        g = l >> 4
        if c.korder == "fn": return g*4 + (32*ks + 16*j) + r
        if c.korder == "fn32": return (g >> 1)*16 + (g & 1)*4 + (32*ks + 8*j) + r
        return g*8 + (32*ks + 4*j) + r
    def waddr(self, f, ks, j):
        c = self.c; l = self.l
        row = self.wrow(ks, j)
        col = c.fcol(self.wn, f)
        ch = col >> 3
        if c.shape == 32: ch = ch + ((l >> 4) & 1)*2
        ch = ch + ((l >> 1) & 1)
        return row*c.RS + ((ch ^ self.wswz(row)) << 4) + (l & 1)*8 + c.XB
    def xaddr(self, x, ks):
        c = self.c; l = self.l; wm = self.wm
        mt = wm*c.nX + x
        if c.xsrc == "fn":
            return (mt*(4 if c.shape == 32 else 2) + ks)*1024 + l*16
        if c.shape == 32: row = mt*32 + (l & 31); ch = (l >> 5) + 2*ks
        else: row = mt*16 + (l & 15); ch = (l >> 4) + 4*ks
        return row*128 + ((ch ^ ((row >> 1) & 7)) << 4)
    def _tab(self, e):
        c = self.c
        return [e.ev({"l": l, "wm": wm, "wn": wn, "kh": kh}) for kh in range(2) for wm in range(c.WM) for wn in range(c.WN) for l in range(64)]
    def check_banks(self):
        c = self.c
        for x in range(c.nX):
            for ks in range(c.NSUB):
                t = self._tab(self.xaddr(x, ks))
                for w in range(len(t)//64): assert banks.conflicts_b128(t[64*w:64*w+64]) == 0, "X conflict"
        for f in range(c.nW):
            for ks in range(c.NSUB):
                for j in range(2):
                    t = self._tab(self.waddr(f, ks, j))
                    for w in range(len(t)//64): assert banks.conflicts_b64(t[64*w:64*w+64]) == 0, ("W conflict", f, ks, j)
    def plan_reads(self):
        c = self.c
        def plan(keys, fn):
            base = []; cls = {}
            for k in keys:
                t = self._tab(fn(*k)); found = False
                for ci, (bk, bt) in enumerate(base):
                    ds = {p - q for p, q in zip(t, bt)}
                    if len(ds) == 1 and 0 <= min(ds) < 65536: cls[k] = (ci, ds.pop()); found = True; break
                if not found: base.append((k, t)); cls[k] = (len(base)-1, 0)
            return [b[0] for b in base], cls
        self.xbase, self.xcls = plan([(x, ks) for ks in range(c.NSUB) for x in range(c.nX)], self.xaddr)
        self.wbase, self.wcls = plan([(f, ks, j) for ks in range(c.NSUB) for f in range(c.nW) for j in range(2)], self.waddr)
    def alloc(self):
        self.alloc_loader(self.v); self.alloc_compute(self.v)
    def alloc_loader(self, v):
        c = self.c
        self.vXsrc = [v.alloc() for _ in range(4 if c.xsrc == "rm" else 1)]
        self.vWsrc = [v.alloc() for _ in range(c.nWld)]
    def bind(self, a, vLane, vt, tmp2=None):
        self.a = a; self.vLane = vLane; self.vt = vt
        self.em = Emitter(a, {"l": vLane}, {"wm": S_WM, "wn": S_WN, "lw": S_LW, "i": S_I, "j": S_J, "kh": 3}, vt, S_ET)
        if tmp2: self.v_tmp2 = tmp2
    def alloc_compute(self, v):
        c = self.c
        self.vXl = [v.alloc() for _ in self.xbase]; self.vXa = [v.alloc() for _ in self.xbase]
        self.vWl = [v.alloc() for _ in self.wbase]; self.vWa = [v.alloc() for _ in self.wbase]
        self.fX = [[[v.alloc(4, 4) for x in range(c.nX)] for g in range(c.G)] for s in range(2)]
        self.fW = [[[v.alloc(4, 4) for f in range(c.nW)] for g in range(c.G)] for s in range(2)]
        self.frag0 = self.fX[0][0][0]; self.frag_end = v.n
        self.acc = [[v.alloc(c.AR, 4) for f in range(c.nW)] for x in range(c.nX)]
    def setup_dma(self):
        c, a, em = self.c, self.a, self.em
        l, lw = self.l, self.lw
        if c.xsrc == "fn":
            em.vemit(lw*4096 + l*16, self.vXsrc[0])
            a.e(f"s_mul_i32 s{S_XOFF}, s{S_I}, {(c.Kx//64)*16384}")
            if c.xoff0: a.e(f"s_add_u32 s{S_XOFF}, s{S_XOFF}, {c.xoff0}") if isinstance(c.xoff0, int) else c.xoff0(a)
        else:
            for n in range(4):
                row = lw*32 + (l >> 3) + 8*n
                ch = (l & 7) ^ (((l >> 4) + 4*n) & 7)
                em.vemit(row*c.ldx + (ch << 4) - n*1024, self.vXsrc[n])
            a.e(f"s_mul_i32 s{S_XOFF}, s{S_I}, {128*c.ldx}")
        cpr = c.TN//8
        mg, sh = magic_div(cpr, c.nWld*256)
        t = self.vt
        for n in range(c.nWld):
            flat = lw*(c.nWld*64) + l + n*64
            vr_, vp = self.v_tmp2
            em.vemit((flat*mg) >> sh, vr_)
            em.vr["row"] = vr_; row = V("row")
            em.vemit(flat - row*cpr, vp); em.vr["p"] = vp; p = V("p")
            ch = p ^ self.wswz(row)
            if c.qkvseg: colb = ((ch >> 3) << 11) + ((ch & 7) << 4)
            else: colb = ch << 4
            em.vemit(row*c.ldw + colb - (n % 4)*1024, self.vWsrc[n])
        c.woff(a)
        a.e(f"s_lshl_b32 s{S_XL}, s{S_LW}, 12")
        a.e(f"s_mul_i32 s{S_WL}, s{S_LW}, {c.nWld*1024}\ns_add_u32 s{S_WL}, s{S_WL}, {c.XB}")
    def setup_reads(self):
        em = self.em
        for k, r in zip(self.xbase, self.vXl): em.vemit(self.xaddr(*k), r)
        for k, r in zip(self.wbase, self.vWl): em.vemit(self.waddr(*k), r)
    def dma_x(self):
        c = self.c; out = []
        if c.no_dma: return []
        out.append(f"s_add_u32 m0, s{S_WR}, s{S_XL}")
        for n in range(4):
            src = self.vXsrc[n] if c.xsrc == "rm" else self.vXsrc[0]
            out.append(("s_nop 0\n" if n == 0 else "") + f"buffer_load_dwordx4 v{src}, s[{S_XSRD}:{S_XSRD+3}], s{S_XOFF} offen offset:{n*1024} {c.xflag} lds")
        out.append(f"s_add_u32 s{S_XOFF}, s{S_XOFF}, {16384 if c.xsrc == 'fn' else c.BK*2}")
        return out
    def dma_w(self):
        c = self.c; out = []
        if c.no_dma: return []
        for n in range(c.nWld):
            if n % 4 == 0:
                out.append(f"s_add_u32 s{S_T}, s{S_WR}, s{S_WL}\ns_add_u32 m0, s{S_T}, {n*1024}")
            out.append(("s_nop 0\n" if n % 4 == 0 else "") + f"buffer_load_dwordx4 v{self.vWsrc[n]}, s[{S_WSRD}:{S_WSRD+3}], s{S_WOFF} offen offset:{(n % 4)*1024} lds")
        out.append(f"s_add_u32 s{S_WOFF}, s{S_WOFF}, {c.BK*c.ldw}")
        return out
    def dma_list(self): return self.dma_x() + self.dma_w()
    def reads(self, set_, grp):
        c = self.c; out = []
        for g in range(c.G):
            ks = grp*c.G + g
            def xr(x):
                d = self.fX[set_][g][x]; ci, imm = self.xcls[(x, ks)]
                return (f"ds_read_b128 {vr(d,4)}, v{self.vXa[ci]} offset:{imm}", rng(d,4))
            def wr(f):
                d = self.fW[set_][g][f]; o = []
                for j in range(2):
                    ci, imm = self.wcls[(f, ks, j)]
                    o.append((f"ds_read_b64_tr_b16 {vr(d+2*j,2)}, v{self.vWa[ci]} offset:{imm}", rng(d+2*j,2)))
                return o
            order = self.mfma_order()
            seen = set()
            for (x, f) in order:
                if ("x", x) not in seen: seen.add(("x", x)); out.append(xr(x))
                if ("f", f) not in seen: seen.add(("f", f)); out += wr(f)
        return out
    def mfma_order(self):
        c = self.c
        o = []
        for f in range(c.nW):
            xs = range(c.nX) if f % 2 == 0 else reversed(range(c.nX))
            o += [(x, f) for x in xs]
        return o
    def mfmas(self, set_, first=False):
        c = self.c; out = []
        op = "v_mfma_f32_32x32x16_bf16" if c.shape == 32 else "v_mfma_f32_16x16x32_bf16"
        for g in range(c.G):
            for (x, f) in self.mfma_order():
                X = self.fX[set_][g][x]; W = self.fW[set_][g][f]; acc = self.acc[x][f]
                A, B = (W, X) if c.orient(f) == "mn" else (X, W)
                srcc = "0" if (first and g == 0) else vr(acc, c.AR)
                out.append((f"{op} {vr(acc,c.AR)}, {vr(A,4)}, {vr(B,4)}, {srcc}", list(rng(X,4)) + list(rng(W,4))))
        return out
    def group(self, set_, reads, extra, first=False, late=()):
        a = self.a; c = self.c
        ms = self.mfmas(set_, first); n = len(ms)
        reads = list(reads); extra = list(extra); late = list(late)
        nearly = max(1, int(n*c.read_frac))
        nr = len(reads); ne = len(extra); nl = len(late)
        done_r = 0; done_e = 0; done_l = 0
        startn = int(c.extra_start*n); span = max(1, n - 1 - startn)
        for i, (ins, regs) in enumerate(ms):
            a.need(regs)
            if not c.no_mfma: a.e(ins)
            want = min(nr, -(-nr*(i+1)//nearly))
            while done_r < want: a.lds_rd(*reads[done_r]); done_r += 1
            if i >= startn:
                wante = min(ne, -(-ne*(i+1-startn)//span))
                while done_e < wante: a.e(extra[done_e]); done_e += 1
            if done_r == nr and i >= nearly and i < n-1:
                left = n - 1 - i
                cnt = -(-(nl - done_l)//left)
                for _ in range(cnt):
                    if "s_cmp_lg" in late[done_l]:
                        while done_e < ne: a.e(extra[done_e]); done_e += 1
                    a.e(late[done_l]); done_l += 1
        while done_r < nr: a.lds_rd(*reads[done_r]); done_r += 1
        while done_e < ne: a.e(extra[done_e]); done_e += 1
        while done_l < nl: a.e(late[done_l]); done_l += 1
        assert done_e == ne
    def set_read_addrs(self):
        return [f"v_add_u32 v{r}, s{S_RD}, v{l}" for l, r in zip(self.vXl + self.vWl, self.vXa + self.vWa)]
    def adv_slot(self, s):
        c = self.c
        return f"s_add_u32 s{s}, s{s}, {c.SB}\ns_cmp_eq_u32 s{s}, {c.S*c.SB}\ns_cselect_b32 s{s}, 0, s{s}"

    def compute_loop(self, pre_issue=None, post_issue=None):
        c, a = self.c, self.a
        NG = c.NSUB//c.G; S = c.S; ns = c.nsteps
        own = not c.loaders
        nld = c.nld if (own and not c.no_dma) else 0
        if pre_issue: pre_issue()
        if own:
            a.e(f"s_mov_b32 s{S_WR}, 0")
            for s in range(S):
                for ins in self.dma_list(): a.e(ins)
                a.e(f"s_add_u32 s{S_WR}, s{S_WR}, {c.SB}")
        if post_issue: post_issue(S*nld)
        a.e(f"s_mov_b32 s{S_RD}, 0\ns_mov_b32 s{S_WR}, 0")
        for ins in self.set_read_addrs(): a.e(ins)
        a.lds_drain(f"vmcnt({(S-1)*nld})" if own else "")
        a.e("s_barrier")
        stamp(a, 1); stamp(a, 6, cyc=True)
        for r in self.reads(0, 0): a.lds_rd(*r)
        st = 0
        for g in range(NG-1):
            self.group(st, self.reads(st ^ 1, g+1), [], first=(g == 0)); st ^= 1
        def boundary(vm):
            a.lds_drain(f"vmcnt({vm})" if (vm is not None and own) else "")
            a.e("s_barrier")
        a.e(self.adv_slot(S_RD))
        for ins in self.set_read_addrs(): a.e(ins)
        boundary((S-2)*nld)
        par = st
        def body(t_issue, vm, loopctl=False):
            st = par
            dma = self.dma_list() if (t_issue and own) else []
            chunks = [dma[len(dma)*i//NG: len(dma)*(i+1)//NG] for i in range(NG)]
            for g in range(NG):
                extra = list(chunks[g]); late = []
                if g == NG-1:
                    late.append((f"s_mov_b32 s{S_WR}, s{S_RD}\n" if own else "") + self.adv_slot(S_RD))
                    late += self.set_read_addrs()
                    if loopctl: late.append(f"s_sub_u32 s{S_CNT}, s{S_CNT}, 1\ns_cmp_lg_u32 s{S_CNT}, 0")
                self.group(st, self.reads(st ^ 1, g), extra, late=late); st ^= 1
            a.lds_drain(f"vmcnt({vm})" if (vm is not None and own) else "")
        assert NG % 2 == 0
        nb = ns - S
        if nb > 0:
            a.e(f"s_mov_b32 s{S_CNT}, {nb}\ns_branch L_loop_{c.name}")
            a.label(f"L_top_{c.name}")
            a.e("s_barrier")
            a.label(f"L_loop_{c.name}")
            body(True, (S-2)*nld, loopctl=True)
            a.e(f"s_cbranch_scc1 L_top_{c.name}\ns_barrier")
        for t in range(max(nb, 0), ns-1):
            rem = max(0, (ns-1) - (t+2))
            body(False, min(rem, S-2)*nld if t+2 <= ns-1 else None)
            a.e("s_barrier")
        self.group(par, [], [])
        a.e("s_nop 15")
        stamp(a, 2); stamp(a, 7, cyc=True)

    def loader_loop(self):
        c, a = self.c, self.a
        S = c.S; ns = c.nsteps; nld = 0 if c.no_dma else c.nld
        a.e(f"s_mov_b32 s{S_WR}, 0")
        for s in range(S):
            for ins in self.dma_list(): a.e(ins)
            a.e(f"s_add_u32 s{S_WR}, s{S_WR}, {c.SB}")
        a.e(f"s_mov_b32 s{S_WR}, 0")
        a.e(f"s_waitcnt vmcnt({(S-1)*nld})\ns_barrier")
        a.e(f"s_waitcnt vmcnt({(S-2)*nld})\ns_barrier")
        nb = ns - S
        if nb > 0:
            a.e(f"s_mov_b32 s{S_CNT}, {nb}")
            a.label(f"L_lloop_{c.name}")
            for ins in self.dma_list(): a.e(ins)
            a.e(self.adv_slot(S_WR))
            a.e(f"s_waitcnt vmcnt({(S-2)*nld})\ns_barrier")
            a.e(f"s_sub_u32 s{S_CNT}, s{S_CNT}, 1\ns_cmp_lg_u32 s{S_CNT}, 0\ns_cbranch_scc1 L_lloop_{c.name}")
        for t in range(max(nb, 0), ns-1):
            rem = max(0, (ns-1) - (t+2))
            if t+2 <= ns-1: a.e(f"s_waitcnt vmcnt({min(rem, S-2)*nld})")
            a.e("s_barrier")
```

```python
from gemm2 import *
import common

NAME = "sequential_preLN__sliding_block__dense_activation_relu__prompt_kernel"
L_SPARE = 122880
L_SIDE = 159744
SD_MEAN1, SD_RSTD1, SD_CSQ = L_SIDE, L_SIDE+512, L_SIDE+1024
SD_MEAN2, SD_RSTD2, SD_CS1 = L_SIDE+2048, L_SIDE+2560, L_SIDE+3072
LDS_TOTAL = 163840
AT_K = lambda hh: hh*49152
AT_V = lambda hh: hh*49152 + 24576
AT_Q0 = 98304
WS_KV = 4*MB
WS_ST1 = 36*MB; WS_CSQ = 36*MB + 64*1024; WS_CS1 = 36*MB + 512*1024; WS_ST2 = 37*MB
WS_XCH = 44*MB
WS_FLAG = 52*MB
F_O, F_H, F_H1, F_P = WS_FLAG, WS_FLAG + 2048, WS_FLAG + 4096, WS_FLAG + 6144
F_CS1, F_KV = WS_FLAG + 8192, WS_FLAG + 10240
WS_BYTES = 56*MB
S_WS, S_DBG, S_OUT = S_E0, S_E1, S_E2
POLL_MAX = 400000
QSCALE = (DH ** -0.5) * 1.4426950408889634

class VM:
    def __init__(s, a): s.a = a; s.q = []
    def iss(s, tag, n=1): s.q += [tag]*n
    def count_after(s, tag):
        idx = max(i for i, t in enumerate(s.q) if t == tag)
        return len(s.q) - 1 - idx
    def wait(s, tag, extra=""):
        if tag not in s.q: return
        n = min(63, s.count_after(tag))
        s.a.e(f"s_waitcnt vmcnt({n}) {extra}".strip())
        s.q = s.q[len(s.q)-n:] if n else []
    def drain(s): s.a.e("s_waitcnt vmcnt(0)"); s.q = []

class MK:
    def __init__(self, opts=None):
        self.o = dict(diag=False, pf_first=True, pf_weights=True, stop_after=None)
        self.o.update(opts or {})
        self.C = Asm(); self.L = Asm(); self.A = Asm(); self.tail = Asm()
        self.nbar = 0
    def bar(self):
        self.C.e("s_barrier"); self.L.e("s_barrier")
    def stamp(self, a, k):
        if self.o["diag"]:
            a.e(f"s_memrealtime s[88:89]\ns_waitcnt lgkmcnt(0)\nv_writelane_b32 v255, s88, {k}")
            a.lq = []
    def ptr(self, o): return (S_PTR+16, S_PTR+17) if o == A_WS else (S_PTR + o//4, S_PTR + o//4 + 1)
    def poll(self, a, srd_, vaddr, vtmp, label, byte=False):
        a.e(f"s_mov_b32 s{S_CNT}, {POLL_MAX}")
        a.label(f"L_poll_{label}")
        a.e(f"buffer_load_{'ubyte' if byte else 'dword'} v{vtmp}, v{vaddr}, s[{srd_}:{srd_+3}], 0 offen sc1\ns_waitcnt vmcnt(0)")
        a.e(f"v_cmp_ne_u32 vcc, 0, v{vtmp}\ns_nop 4\ns_cmp_eq_u64 vcc, exec\ns_cbranch_scc1 L_polldone_{label}")
        a.e(f"s_sleep 1\ns_sub_u32 s{S_CNT}, s{S_CNT}, 1\ns_cmp_lg_u32 s{S_CNT}, 0\ns_cbranch_scc1 L_poll_{label}")
        a.label(f"L_polldone_{label}")
    def group_addr(self, a, dst, base, grp_sreg):
        a.e(f"s_lshl_b32 s{S_T}, s{grp_sreg}, 7\ns_add_u32 s{S_T}, s{S_T}, {base}\nv_and_b32 v{dst}, 15, v{self.vL}\nv_lshlrev_b32 v{dst}, 2, v{dst}\nv_add_u32 v{dst}, s{S_T}, v{dst}")
    def signal(self, a, base, grp_sreg, idx_sreg, vt0, vt1):
        a.e(f"s_lshl_b32 s{S_T}, s{grp_sreg}, 7\ns_lshl_b32 s{S_T2}, s{idx_sreg}, 2\ns_add_u32 s{S_T}, s{S_T}, s{S_T2}\ns_add_u32 s{S_T}, s{S_T}, {base}\nv_mov_b32 v{vt0}, 1")
        self.lane0(a, f"buffer_store_dword v{vt0}, v{self.vZero}, s[{S_WS}:{S_WS+3}], s{S_T} offen sc1", "sig")
    def lane0(self, a, body, label):
        a.e(f"v_cmp_eq_u32 vcc, 0, v{self.vL}\ns_and_saveexec_b64 s[{S_EX}:{S_EX+1}], vcc")
        a.e(body)
        a.e(f"s_mov_b64 exec, s[{S_EX}:{S_EX+1}]")
    def only_lw0(self, a, label, fn):
        a.e(f"s_cmp_lg_u32 s{S_LW}, 0\ns_cbranch_scc1 L_skip_{label}")
        fn()
        a.label(f"L_skip_{label}")

    def cfgs(self):
        base = dict(shape=16, loaders=True, split=True, xflag="", xoff0=0, read_frac=0.5, extra_start=0.3, WM=2, WN=2)
        q = Cfg(name="q", TN=192, K=1024, Kx=1024, xsrc="rm", ldx=2048, korder="std", ldw=6144, qkvseg=True, S=3,
                fcol=lambda wn, f: wn*32 + (64*(f//2) + 16*(f % 2)), orient=lambda f: "nm" if f >= 4 else "mn",
                woff=lambda a: a.e(f"s_lshl_b32 s{S_WOFF}, s{S_J}, 7"), **base)
        o = Cfg(name="o", TN=64, K=1024, Kx=1024, xsrc="fn", korder="fn32", ldw=2048, S=5,
                fcol=lambda wn, f: wn*32 + 16*f, orient=lambda f: "mn",
                woff=lambda a: a.e(f"s_lshl_b32 s{S_WOFF}, s{S_J}, 7"), **base)
        f1 = Cfg(name="f1", TN=224, K=1024, Kx=1024, xsrc="fn", korder="fn", ldw=7168, S=3,
                 fcol=lambda wn, f: (wn*128 + 16*f) if f < 6 else (wn*16 + 96), orient=lambda f: "mn",
                 woff=lambda a: a.e(f"s_mul_i32 s{S_WOFF}, s{S_J}, 448"), **base)
        def woff2(a):
            a.e(f"s_and_b32 s{S_T}, s{S_J}, 7\ns_lshl_b32 s{S_WOFF}, s{S_T}, 8\ns_lshr_b32 s{S_T}, s{S_J}, 3\ns_mul_i32 s{S_T}, s{S_T}, {1792*2048}\ns_add_u32 s{S_WOFF}, s{S_WOFF}, s{S_T}")
        f2 = Cfg(name="f2", TN=128, K=1792, Kx=3584, xsrc="fn", korder="fn", ldw=2048, S=4,
                 fcol=lambda wn, f: (wn*64 + S("kh")*32 + 16*f) if f < 2 else (wn*64 + (S("kh") ^ 1)*32 + 16*(f-2)), orient=lambda f: "mn", woff=woff2, **base)
        for c in (o, f1, f2): c.xflag = "sc1"
        return q, o, f1, f2

    def xoff_fn(self, a, c, wsbase, khalf=False):
        a.e(f"s_mul_i32 s{S_XOFF}, s{S_I}, {(c.Kx//64)*16384}\ns_add_u32 s{S_XOFF}, s{S_XOFF}, {wsbase}")
        if khalf:
            a.e(f"s_lshr_b32 s{S_T}, s{S_J}, 3\ns_mul_i32 s{S_T}, s{S_T}, {28*16384}\ns_add_u32 s{S_XOFF}, s{S_XOFF}, s{S_T}")

    def build(self):
        C, L = self.C, self.L
        E = Asm()
        q, o, f1, f2 = self.cfgs()
        self.vL = 1; vt = [2, 3, 4, 5, 6, 7]; tmp2 = (8, 9); self.vL16 = 10; self.vZero = 11
        self.vt = vt
        gq, go, g1, g2 = [G(c, C, None, self.vL, vt) for c in (q, o, f1, f2)]
        self.g = (gq, go, g1, g2)
        E.e(f"s_cmp_ge_u32 s2, 256\ns_cbranch_scc1 L_end")
        E.e(f"s_load_dwordx16 s[{S_PTR}:{S_PTR+15}], s[0:1], 0\ns_load_dwordx2 s[{S_PTR+16}:{S_PTR+17}], s[0:1], 64")
        if self.o["diag"]:
            E.e("v_mov_b32 v255, 0"); self.stamp(E, 0)
        E.e(f"s_and_b32 s{S_T}, s2, 7\ns_lshr_b32 s{S_T2}, s2, 3")
        E.e(f"s_lshr_b32 s{S_I}, s{S_T}, 2\ns_and_b32 s{S_J}, s{S_T}, 3\ns_lshl_b32 s{S_I}, s{S_I}, 3\ns_lshl_b32 s{S_J}, s{S_J}, 2")
        E.e(f"s_lshr_b32 s{S_T}, s{S_T2}, 2\ns_and_b32 s{S_T2}, s{S_T2}, 3\ns_add_u32 s{S_I}, s{S_I}, s{S_T}\ns_add_u32 s{S_J}, s{S_J}, s{S_T2}")
        E.e(f"v_and_b32 v{self.vL}, 63, v0\nv_lshrrev_b32 v2, 6, v0\ns_nop 0\nv_readfirstlane_b32 s{S_WV}, v2\nv_lshlrev_b32 v{self.vL16}, 4, v{self.vL}\nv_mov_b32 v{self.vZero}, 0\ns_nop 1")
        E.e(f"s_and_b32 s{S_LW}, s{S_WV}, 3\ns_lshr_b32 s{S_WM}, s{S_LW}, 1\ns_and_b32 s{S_WN}, s{S_LW}, 1")
        E.e(f"s_cmp_ge_u32 s{S_WV}, 4\ns_cbranch_scc1 L_loader")
        lv = Regs(12, 64)
        gq.alloc_loader(lv); go.alloc_loader(lv); g1.alloc_loader(lv); g2.alloc_loader(lv)
        self.lv_end = lv.n
        self.phase_q(gq, g1)
        self.attention()
        stop = self.o["stop_after"]
        self.phase_o(go)
        self.phase_f1(g1)
        self.phase_f2(g2)
        if self.o["diag"]:
            self.stamp(C, 15)
            C.e(f"s_cmp_lg_u32 s{S_WV}, 0\ns_cbranch_scc1 L_end")
            C.e(f"s_lshl_b32 s{S_T}, s2, 6\ns_add_u32 s{S_T}, s{S_T}, {common.WS_STAMP}\nv_lshlrev_b32 v2, 2, v{self.vL}")
            C.e(f"v_cmp_gt_u32 vcc, 16, v{self.vL}\ns_and_saveexec_b64 s[{S_EX}:{S_EX+1}], vcc")
            C.e(f"buffer_store_dword v255, v2, s[{S_WS}:{S_WS+3}], s{S_T} offen")
        C.e("s_branch L_end")
        txt = head(NAME) + E.text() + C.text() + "L_loader:\n" + L.text() + "  s_branch L_end\n" + self.A.text() + self.tail.text() + "L_end:\n  s_endpgm\n" + kd(NAME)
        return txt

    def srds_common(self, a):
        a.e("s_waitcnt lgkmcnt(0)")
        srd(a, S_WS, *self.ptr(A_WS), WS_BYTES)
        srd(a, S_DBG, *self.ptr(A_DBG), 256)

    def phase_q(self, g, g1):
        C, L, c = self.C, self.L, g.c
        vL, vt = self.vL, self.vt
        g.bind(L, vL, vt, (8, 9)); vm = VM(L)
        em = g.em
        L.e("s_waitcnt lgkmcnt(0)")
        srd(L, S_XSRD, *self.ptr(A_X), M*D*2)
        srd(L, S_WSRD, *self.ptr(A_WQKV), D*3*D*2)
        g.setup_dma()
        def issue(t):
            for ins in g.dma_list(): L.e(ins)
            vm.iss(("st", t), c.nld)
        L.e(f"s_mov_b32 s{S_WR}, 0")
        for s in range(c.S):
            issue(s); L.e(f"s_add_u32 s{S_WR}, s{S_WR}, {c.SB}")
        L.e(f"s_mov_b32 s{S_WR}, 0")
        srd(L, S_WS, *self.ptr(A_WS), WS_BYTES); srd(L, S_DBG, *self.ptr(A_DBG), 256)
        sv = Regs(64, 250)
        xr = sv.alloc(16, 4); ones = sv.alloc(4, 4); wf = [sv.alloc(4, 4) for _ in range(8)]; sacc = [sv.alloc(4, 4) for _ in range(4)]
        un = sv.alloc(32, 4); vS = [sv.alloc() for _ in range(8)]; vRA = [sv.alloc() for _ in range(4)]; ldr = sv.alloc(32, 4)
        def slab_dma(gg, srd_w, soff_expr_code, tag):
            cc = gg.c
            L.e(soff_expr_code)
            for n in range(cc.nWld):
                if n % 4 == 0: L.e(f"s_mul_i32 s{S_T}, s{S_LW}, {cc.nWld*1024}\ns_add_u32 m0, s{S_T}, {L_SPARE + n*1024}\ns_nop 0")
                L.e(f"buffer_load_dwordx4 v{gg.vWsrc[n]}, s[{srd_w}:{srd_w+3}], s{S_T2} offen offset:{(n % 4)*1024} lds")
            vm.iss(tag, cc.nWld)
        slab_dma(g, S_WSRD, f"s_mul_i32 s{S_T2}, s{S_I}, {64*6144}\ns_lshl_b32 s{S_T}, s{S_J}, 7\ns_add_u32 s{S_T2}, s{S_T2}, s{S_T}", "slabq")
        L.e(f"s_lshl_b32 s{S_T}, s{S_I}, 7\ns_lshl_b32 s{S_T2}, s{S_J}, 3\ns_add_u32 s{S_T}, s{S_T}, s{S_T2}\ns_lshl_b32 s{S_T2}, s{S_LW}, 1\ns_add_u32 s71, s{S_T}, s{S_T2}\ns_lshl_b32 s{S_T}, s71, 11")
        for r in range(2):
            for p in range(2):
                L.e(f"buffer_load_dwordx4 {vr(xr+8*r+4*p,4)}, v{self.vL16}, s[{S_XSRD}:{S_XSRD+3}], s{S_T} offen offset:{r*2048+p*1024}")
        vm.iss("xrows", 4)
        def zero_flags():
            t0, t1, t2 = vt[0:3]
            L.e(f"s_lshl_b32 s{S_T}, s{S_I}, 7\ns_lshl_b32 s{S_T2}, s{S_J}, 2\ns_add_u32 s{S_T}, s{S_T}, s{S_T2}")
            L.e(f"s_lshl_b32 s{S_T2}, s{S_J}, 7\ns_lshl_b32 s{S_T3}, s{S_I}, 2\ns_add_u32 s{S_T2}, s{S_T2}, s{S_T3}")
            L.e(f"v_mov_b32 v{t0}, s{S_T}\nv_mov_b32 v{t1}, s{S_T2}\nv_cmp_gt_u32 vcc, 4, v{vL}\ns_nop 1\nv_cndmask_b32 v{t0}, v{t1}, v{t0}, vcc")
            L.e(f"v_lshlrev_b32 v{t1}, 11, v{vL}\nv_add_u32 v{t0}, v{t0}, v{t1}\nv_add_u32 v{t0}, {WS_FLAG}, v{t0}")
            L.e(f"v_cmp_gt_u32 vcc, 6, v{vL}\ns_and_saveexec_b64 s[{S_EX}:{S_EX+1}], vcc")
            L.e(f"buffer_store_dword v{self.vZero}, v{t0}, s[{S_WS}:{S_WS+3}], 0 offen sc1\ns_mov_b64 exec, s[{S_EX}:{S_EX+1}]")
        self.only_lw0(L, "zero", zero_flags)
        g1.bind(L, vL, vt, (8, 9))
        self.setup_w_only(g1)
        g.bind(L, vL, vt, (8, 9))
        for k in range(4): L.e(f"v_mov_b32 v{ones+k}, 0x3f803f80")
        def slab_plan(gg, per):
            cc = gg.c; l = gg.l; lw = gg.lw
            def ex(k, ks, j):
                row = gg.wrow(ks, j)
                ch = (lw*per + k)*2 + ((l >> 1) & 1)
                return row*cc.RS + ((ch ^ gg.wswz(row)) << 4) + (l & 1)*8 + L_SPARE
            keys = [(k, ks, j) for k in range(per) for ks in range(2) for j in range(2)]
            base = []; cls = {}
            for key in keys:
                t = [ex(*key).ev({"l": ll, "lw": w}) for w in range(4) for ll in range(64)]
                for ci, (bk, bt) in enumerate(base):
                    ds = {p - q_ for p, q_ in zip(t, bt)}
                    if len(ds) == 1 and 0 <= min(ds) < 65536: cls[key] = (ci, ds.pop()); break
                else:
                    base.append((key, t)); cls[key] = (len(base)-1, 0)
            for w in range(4):
                for key in keys:
                    tt = [ex(*key).ev({"l": ll, "lw": w}) for ll in range(64)]
                    assert banks.conflicts_b64(tt) == 0
            return [ex(*b[0]) for b in base], cls
        def csum_job(gg, per, nt_total, colbase_code):
            cc = gg.c
            bases, cls = slab_plan(gg, per)
            assert len(bases) <= 4
            gg.bind(L, vL, vt, (8, 9))
            for b, r in zip(bases, vRA): gg.em.vemit(b, r)
            for k in range(per):
                for ks in range(2):
                    for j in range(2):
                        ci, imm = cls[(k, ks, j)]; d = wf[2*k+ks] + 2*j
                        L.lds_rd(f"ds_read_b64_tr_b16 {vr(d,2)}, v{vRA[ci]} offset:{imm}", rng(d, 2))
            for k in range(per):
                L.need(rng(wf[2*k], 4)); L.e(f"v_mfma_f32_16x16x32_bf16 {vr(sacc[k],4)}, {vr(ones,4)}, {vr(wf[2*k],4)}, 0")
            for k in range(per):
                L.need(rng(wf[2*k+1], 4)); L.e(f"v_mfma_f32_16x16x32_bf16 {vr(sacc[k],4)}, {vr(ones,4)}, {vr(wf[2*k+1],4)}, {vr(sacc[k],4)}")
            L.e(colbase_code)
            L.e(f"v_lshlrev_b32 v{vS[5]}, 2, v{vL}\nv_cmp_gt_u32 vcc, 16, v{vL}\ns_nop 7\ns_and_saveexec_b64 s[{S_EX}:{S_EX+1}], vcc")
            for k in range(per):
                need_guard = (3*per + k) >= nt_total
                if need_guard: L.e(f"s_cmp_ge_u32 s{S_LW}, 3\ns_cbranch_scc1 L_cst_{cc.name}_{k}")
                L.e(f"buffer_store_dword v{sacc[k]}, v{vS[5]}, s[{S_WS}:{S_WS+3}], s{S_T2} offen offset:{k*64} sc1")
                if need_guard: L.label(f"L_cst_{cc.name}_{k}")
            L.e(f"s_mov_b64 exec, s[{S_EX}:{S_EX+1}]")
            g.bind(L, vL, vt, (8, 9))
        vm.wait(("st", 0)); self.bar_L_only()
        vm.wait(("st", 1)); self.bar_L_only()
        ns, S = c.nsteps, c.S
        def hook(t):
            if t == 0:
                vm.wait("xrows")
                for r in range(2):
                    for d in range(8):
                        L.e(f"v_lshlrev_b32 v{un+16*r+2*d}, 16, v{xr+8*r+d}\nv_and_b32 v{un+16*r+2*d+1}, 0xffff0000, v{xr+8*r+d}")
                for r in range(2):
                    L.e(f"v_add_f32 v{vS[r]}, v{un+16*r}, v{un+16*r+1}")
                    for k in range(2, 16): L.e(f"v_add_f32 v{vS[r]}, v{vS[r]}, v{un+16*r+k}")
            if t == 1:
                code = f"s_lshl_b32 s{S_T}, s{S_I}, 4\ns_add_u32 s{S_T}, s{S_T}, s{S_J}\ns_mul_i32 s{S_T2}, s{S_T}, 768\ns_mul_i32 s{S_T}, s{S_LW}, 192\ns_add_u32 s{S_T2}, s{S_T2}, s{S_T}\ns_add_u32 s{S_T2}, s{S_T2}, {WS_CSQ}"
                csum_job(g, 3, 12, code)
                for r in range(2):
                    allreduce_add_wave(L, vS[r], vS[4]); L.e(f"v_mul_f32 v{vS[r]}, {fhex(1/1024)}, v{vS[r]}")
            if t == 2:
                for r in range(2):
                    L.e(f"v_sub_f32 v{vS[4]}, v{un+16*r}, v{vS[r]}\nv_mul_f32 v{vS[2+r]}, v{vS[4]}, v{vS[4]}")
                    for k in range(1, 16): L.e(f"v_sub_f32 v{vS[4]}, v{un+16*r+k}, v{vS[r]}\nv_fmac_f32 v{vS[2+r]}, v{vS[4]}, v{vS[4]}")
            if t == 3:
                for r in range(2):
                    allreduce_add_wave(L, vS[2+r], vS[4])
                    L.e(f"v_mul_f32 v{vS[2+r]}, {fhex(1/1024)}, v{vS[2+r]}\nv_add_f32 v{vS[2+r]}, {fhex(EPS)}, v{vS[2+r]}\nv_rsq_f32 v{vS[2+r]}, v{vS[2+r]}")
                L.e(f"s_nop 0\nv_mov_b32 v{un}, v{vS[0]}\nv_mov_b32 v{un+1}, v{vS[2]}\nv_mov_b32 v{un+2}, v{vS[1]}\nv_mov_b32 v{un+3}, v{vS[3]}")
                L.e(f"s_lshl_b32 s{S_T}, s71, 3\ns_add_u32 s{S_T}, s{S_T}, {WS_ST1}")
                self.lane0(L, f"buffer_store_dwordx4 {vr(un,4)}, v{self.vZero}, s[{S_WS}:{S_WS+3}], s{S_T} offen sc1", "st1")
            if t == 4:
                srd(L, S_E3, *self.ptr(A_W1), D*DFF*2)
                slab_dma(g1, S_E3, f"s_mul_i32 s{S_T2}, s{S_I}, {64*7168}\ns_mul_i32 s{S_T}, s{S_J}, 448\ns_add_u32 s{S_T2}, s{S_T2}, s{S_T}", "slab1")
            if t == 6:
                def sig():
                    L.e(f"s_lshl_b32 s{S_T}, s{S_I}, 4\ns_add_u32 s{S_T}, s{S_T}, s{S_J}\nv_mov_b32 v{vS[0]}, 1")
                    self.lane0(L, f"buffer_store_byte v{vS[0]}, v{self.vZero}, s[{S_DBG}:{S_DBG+3}], s{S_T} offen sc1", "sigq")
                self.only_lw0(L, "sigq", sig)
            if t == 7:
                code = f"s_lshl_b32 s{S_T}, s{S_I}, 4\ns_add_u32 s{S_T}, s{S_T}, s{S_J}\ns_mul_i32 s{S_T2}, s{S_T}, 896\ns_lshl_b32 s{S_T}, s{S_LW}, 8\ns_add_u32 s{S_T2}, s{S_T2}, s{S_T}\ns_add_u32 s{S_T2}, s{S_T2}, {WS_CS1}"
                csum_job(g1, 4, 14, code)
            if t == 10:
                self.only_lw0(L, "sigcs1", lambda: self.signal(L, F_CS1, S_J, S_I, vS[0], vS[1]))
            if t == 11:
                t0, t1 = vt[0:2]
                L.e(f"v_and_b32 v{t0}, 15, v{vL}\ns_lshl_b32 s{S_T}, s{S_I}, 4\nv_add_u32 v{t1}, s{S_T}, v{t0}\nv_lshlrev_b32 v{t0}, 4, v{t0}\nv_add_u32 v{t0}, s{S_J}, v{t0}")
                L.e(f"v_and_b32 v{vS[1]}, 16, v{vL}\nv_cmp_eq_u32 vcc, 0, v{vS[1]}\ns_nop 1\nv_cndmask_b32 v{vS[1]}, v{t0}, v{t1}, vcc")
                self.poll(L, S_DBG, vS[1], vS[0], "q", byte=True)
                vm.q = []
                L.e(f"s_cmp_eq_u32 s{S_LW}, 3\ns_cbranch_scc1 L_q_st")
                L.e(f"s_mul_i32 s{S_T2}, s{S_J}, 768\ns_lshl_b32 s{S_T}, s{S_LW}, 8\ns_add_u32 s{S_T2}, s{S_T2}, s{S_T}\ns_add_u32 s{S_T2}, s{S_T2}, {WS_CSQ}\nv_lshlrev_b32 v{vS[1]}, 2, v{vL}")
                for p in range(16):
                    L.e(f"buffer_load_dword v{ldr+p}, v{vS[1]}, s[{S_WS}:{S_WS+3}], s{S_T2} offen sc1\ns_add_u32 s{S_T2}, s{S_T2}, {16*768}")
                L.e("s_branch L_q_st_done")
                L.label("L_q_st")
                L.e(f"s_lshl_b32 s{S_T2}, s{S_I}, 10\ns_add_u32 s{S_T2}, s{S_T2}, {WS_ST1}")
                L.e(f"buffer_load_dwordx4 {vr(ldr,4)}, v{self.vL16}, s[{S_WS}:{S_WS+3}], s{S_T2} offen sc1")
                L.label("L_q_st_done")
            if t == 13:
                L.e("s_waitcnt vmcnt(0)"); vm.q = []
                L.e(f"s_cmp_eq_u32 s{S_LW}, 3\ns_cbranch_scc1 L_q_st2")
                for p in range(1, 16): L.e(f"v_add_f32 v{ldr}, v{ldr}, v{ldr+p}")
                L.e(f"s_lshl_b32 s{S_T}, s{S_LW}, 8\ns_add_u32 s{S_T}, s{S_T}, {SD_CSQ}\nv_lshlrev_b32 v{vS[1]}, 2, v{vL}\nv_add_u32 v{vS[1]}, s{S_T}, v{vS[1]}")
                L.e(f"ds_write_b32 v{vS[1]}, v{ldr}\ns_branch L_q_st3")
                L.label("L_q_st2")
                L.e(f"v_mov_b32 v{ldr+4}, v{ldr}\nv_mov_b32 v{ldr+5}, v{ldr+2}\nv_mov_b32 v{ldr+6}, v{ldr+1}\nv_mov_b32 v{ldr+7}, v{ldr+3}")
                L.e(f"v_lshlrev_b32 v{vS[1]}, 3, v{vL}\nv_add_u32 v{vS[1]}, {SD_MEAN1}, v{vS[1]}")
                L.e(f"ds_write_b64 v{vS[1]}, {vr(ldr+4,2)}\nds_write_b64 v{vS[1]}, {vr(ldr+6,2)} offset:512")
                L.label("L_q_st3")
                L.e("s_waitcnt lgkmcnt(0)"); L.lq = []
        for t in range(ns-1):
            pre = (t == 11)
            if pre: hook(t)
            if t + S <= ns-1:
                issue(t+S); L.e(g.adv_slot(S_WR))
            if not pre: hook(t)
            if t+2 <= ns-1 and ("st", t+2) in vm.q: vm.wait(("st", t+2))
            if t == 5: vm.wait("slab1")
            L.lds_drain()
            self.bar_L_only()
        g.bind(C, vL, vt, (8, 9))
        cv = Regs(12, 254); g.alloc_compute(cv)
        g.a = C
        g.setup_reads()
        C.e("s_waitcnt lgkmcnt(0)")
        srd(C, S_WS, *self.ptr(A_WS), WS_BYTES)
        if self.o["pf_first"]: self.prefetch_first(C, cv)
        hooks = None
        self.cloop(g, stamps=(1, 2), midhook=(self.prefetch_weights if self.o["pf_weights"] else None))
        self.epi_q(g, cv)

    def bar_L_only(self): self.L.e("s_barrier")
    def setup_w_only(self, g):
        c, a, em = g.c, g.a, g.em
        l, lw = g.l, g.lw
        cpr = c.TN//8
        mg, sh = magic_div(cpr, c.nWld*256)
        for n in range(c.nWld):
            flat = lw*(c.nWld*64) + l + n*64
            vr_, vp = g.v_tmp2
            em.vemit((flat*mg) >> sh, vr_); em.vr["row"] = vr_; row = V("row")
            em.vemit(flat - row*cpr, vp); em.vr["p"] = vp; p = V("p")
            ch = p ^ g.wswz(row)
            colb = ((ch >> 3) << 11) + ((ch & 7) << 4) if c.qkvseg else ch << 4
            em.vemit(row*c.ldw + colb - (n % 4)*1024, g.vWsrc[n])

    def prefetch_first(self, a, cv):
        vL = self.vL; t0, t1, t2 = self.vt[0:3]; d = cv.alloc(4)
        srd(a, S_XSRD, *self.ptr(A_X), M*D*2); srd(a, S_WSRD, *self.ptr(A_WQKV), D*3*D*2)
        a.e(f"s_lshr_b32 s{S_T}, s2, 3\ns_lshl_b32 s{S_T}, s{S_T}, 2\ns_add_u32 s{S_T}, s{S_T}, s{S_LW}")
        a.e(f"s_mul_i32 s{S_T2}, s{S_T}, 96")
        mg, sh = magic_div(12, 12288); mg3, sh3 = magic_div(3, 12)
        a.e(f"s_lshr_b32 s{S_T3}, s{S_J}, 2\ns_lshl_b32 s{S_T3}, s{S_T3}, 9")
        for n in range(2):
            a.e(f"v_add_u32 v{t0}, s{S_T2}, v{vL}\nv_add_u32 v{t0}, {48*n}, v{t0}")
            a.e(f"v_mul_u32_u24 v{t1}, {mg}, v{t0}\nv_lshrrev_b32 v{t1}, {sh}, v{t1}\nv_mul_u32_u24 v{t2}, 12, v{t1}\nv_sub_u32 v{t0}, v{t0}, v{t2}")
            a.e(f"v_mul_u32_u24 v{t2}, {mg3}, v{t0}\nv_lshrrev_b32 v{t2}, {sh3}, v{t2}")
            a.e(f"v_mul_u32_u24 v{t1}, 6144, v{t1}\nv_lshlrev_b32 v{d+2}, 7, v{t2}\nv_add_u32 v{t1}, v{t1}, v{d+2}")
            a.e(f"v_mul_u32_u24 v{t2}, 3, v{t2}\nv_sub_u32 v{t0}, v{t0}, v{t2}\nv_lshlrev_b32 v{t0}, 11, v{t0}\nv_add_u32 v{t1}, v{t1}, v{t0}")
            a.e(f"v_cmp_gt_u32 vcc, 48, v{vL}\nv_mov_b32 v{t0}, 0x7ffffff0\ns_nop 0\nv_cndmask_b32 v{t1}, v{t0}, v{t1}, vcc")
            a.e(f"buffer_load_dword v254, v{t1}, s[{S_WSRD}:{S_WSRD+3}], s{S_T3} offen")
        a.e(f"s_lshl_b32 s{S_T2}, s{S_T}, 7\ns_lshr_b32 s{S_T3}, s{S_I}, 3\ns_lshl_b32 s{S_T3}, s{S_T3}, 21")
        for n in range(2):
            a.e(f"v_add_u32 v{t0}, s{S_T2}, v{vL}\nv_add_u32 v{t0}, {64*n}, v{t0}\nv_and_b32 v{t1}, 1023, v{t0}\nv_lshlrev_b32 v{t1}, 11, v{t1}\nv_lshrrev_b32 v{t0}, 10, v{t0}\nv_lshlrev_b32 v{t0}, 7, v{t0}\nv_add_u32 v{t1}, v{t1}, v{t0}")
            a.e(f"buffer_load_dword v254, v{t1}, s[{S_XSRD}:{S_XSRD+3}], s{S_T3} offen")
    def prefetch_weights(self, a):
        vL = self.vL; t0, t1 = self.vt[0:2]
        a.e(f"s_lshl_b32 s{S_T}, s2, 2\ns_add_u32 s{S_T}, s{S_T}, s{S_LW}")
        for (arg, nbytes, per, d) in ((A_WO, D*D*2, 16, 2), (A_W1, D*DFF*2, 56, 3)):
            srd(a, S_E3, *self.ptr(arg), nbytes)
            a.e(f"s_mul_i32 s{S_T2}, s{S_T}, {per}\nv_add_u32 v{t0}, s{S_T2}, v{vL}\nv_lshlrev_b32 v{t0}, 7, v{t0}\nv_cmp_gt_u32 vcc, {per}, v{vL}\nv_mov_b32 v{t1}, 0x7ffffff0\ns_nop 0\nv_cndmask_b32 v{t0}, v{t1}, v{t0}, vcc")
            a.e(f"buffer_load_dword v254, v{t0}, s[{S_E3}:{S_E3+3}], 0 offen")
    def prefetch_w2(self, a):
        vL = self.vL; t0, t1 = self.vt[0:2]
        a.e(f"s_lshl_b32 s{S_T}, s2, 2\ns_add_u32 s{S_T}, s{S_T}, s{S_LW}")
        srd(a, S_E3, *self.ptr(A_W2), DFF*D*2)
        a.e(f"s_mul_i32 s{S_T2}, s{S_T}, 56\nv_add_u32 v{t0}, s{S_T2}, v{vL}\nv_lshlrev_b32 v{t0}, 7, v{t0}\nv_cmp_gt_u32 vcc, 56, v{vL}\nv_mov_b32 v{t1}, 0x7ffffff0\ns_nop 0\nv_cndmask_b32 v{t0}, v{t1}, v{t0}, vcc")
        a.e(f"buffer_load_dword v254, v{t0}, s[{S_E3}:{S_E3+3}], 0 offen")

    def cloop(self, g, stamps, midhook=None):
        c, a = g.c, g.a
        NG = c.NSUB//c.G; S = c.S; ns = c.nsteps
        a.e(f"s_mov_b32 s{S_RD}, 0")
        for ins in g.set_read_addrs(): a.e(ins)
        a.lds_drain(); a.e("s_barrier")
        self.stamp(a, stamps[0])
        for r in g.reads(0, 0): a.lds_rd(*r)
        st = 0
        for gi in range(NG-1):
            g.group(st, g.reads(st ^ 1, gi+1), [], first=(gi == 0)); st ^= 1
        a.e(g.adv_slot(S_RD))
        for ins in g.set_read_addrs(): a.e(ins)
        a.lds_drain(); a.e("s_barrier")
        par = st
        def body(loopctl=False):
            st = par
            for gi in range(NG):
                late = []; extra = []
                if gi == 0 and loopctl and midhook:
                    extra.append(f"s_cmp_eq_u32 s{S_CNT}, {ns//2}\ns_cbranch_scc1 L_mid_{c.name}\nL_midback_{c.name}:")
                if gi == NG-1:
                    late.append(g.adv_slot(S_RD)); late += g.set_read_addrs()
                    if loopctl: late.append(f"s_sub_u32 s{S_CNT}, s{S_CNT}, 1\ns_cmp_lg_u32 s{S_CNT}, 0")
                g.group(st, g.reads(st ^ 1, gi), extra, late=late); st ^= 1
            a.lds_drain()
        nb = ns - 2
        a.e(f"s_mov_b32 s{S_CNT}, {nb}\ns_branch L_loop_{c.name}")
        a.label(f"L_top_{c.name}"); a.e("s_barrier"); a.label(f"L_loop_{c.name}")
        body(True)
        a.e(f"s_cbranch_scc1 L_top_{c.name}\ns_barrier")
        body(False); a.e("s_barrier")
        g.group(par, [], [])
        a.e("s_nop 7")
        self.stamp(a, stamps[1])
        if midhook:
            t = self.tail
            t.label(f"L_mid_{c.name}"); midhook(t); t.e(f"s_branch L_midback_{c.name}")

    def epi_q(self, g, cv):
        C, L, c = self.C, self.L, g.c
        a = C; vL = self.vL; t0, t1, t2, t3, t4, t5 = self.vt
        em = g.em; l = g.l; wm, wn = g.wm, g.wn
        fr = g.frag0
        mu = fr; rs = fr+4; cs = fr+8; pk = fr+24; st = fr+32
        va = fr+64; vb = fr+65; vo = fr+66; vk = fr+67; sc = fr+68
        gq = l >> 4
        em.vemit((wm*64 + (l & 15))*4 + SD_MEAN1, va)
        for x in range(4):
            a.lds_rd(f"ds_read_b32 v{mu+x}, v{va} offset:{x*64}", [mu+x])
            a.lds_rd(f"ds_read_b32 v{rs+x}, v{va} offset:{512+x*64}", [rs+x])
        em.vemit((wn*32 + gq*4)*4 + SD_CSQ, vb)
        def cs_off(f): return (64*(f//2) + 16*(f % 2))*4
        for n, f in enumerate((2, 3, 0, 1)):
            a.lds_rd(f"ds_read_b128 {vr(cs+4*n,4)}, v{vb} offset:{cs_off(f)}", rng(cs+4*n, 4))
        csr = {2: cs, 3: cs+4, 0: cs+8, 1: cs+12}
        em.vemit(wn*49152 + l*16, vk)
        a.e(f"s_lshl_b32 s{S_T}, s{S_I}, 4\ns_add_u32 s{S_T}, s{S_T}, s{S_J}\ns_lshl_b32 s{S_T}, s{S_T}, 15\ns_lshl_b32 s{S_T2}, s{S_WN}, 14\ns_add_u32 s{S_T}, s{S_T}, s{S_T2}\ns_add_u32 s71, s{S_T}, {WS_KV}")
        def fold_mn(x, f, scale_reg):
            acc = g.acc[x][f]; c0 = csr[f]
            for p in range(2):
                a.e(f"v_pk_fma_f32 {vr(acc+2*p,2)}, {vr(mu+(x & ~1),2)}, {vr(c0+2*p,2)}, {vr(acc+2*p,2)} op_sel:[{x & 1},0,0] op_sel_hi:[{x & 1},1,1] neg_lo:[1,0,0] neg_hi:[1,0,0]")
            for p in range(2):
                a.e(f"v_pk_mul_f32 {vr(acc+2*p,2)}, {vr(scale_reg+(x & ~1),2)}, {vr(acc+2*p,2)} op_sel:[{x & 1},0] op_sel_hi:[{x & 1},1]")
        def pack2(dst, accA, accB):
            a.e(f"v_cvt_pk_bf16_f32 v{dst}, v{accA}, v{accA+1}\nv_cvt_pk_bf16_f32 v{dst+1}, v{accA+2}, v{accA+3}")
            a.e(f"v_cvt_pk_bf16_f32 v{dst+2}, v{accB}, v{accB+1}\nv_cvt_pk_bf16_f32 v{dst+3}, v{accB+2}, v{accB+3}")
        a.need(list(rng(mu, 8)) + list(rng(cs, 8)))
        a.e(f"s_lshl_b32 s{S_T3}, s{S_WM}, 12")
        a.e(f"v_add_u32 v{vo}, s{S_T3}, v{vk}")
        a.e(f"s_add_u32 s{S_T4}, s71, s{S_T3}")
        for x in range(4):
            fold_mn(x, 2, rs); fold_mn(x, 3, rs)
            p = pk + 4*(x & 1)
            pack2(p, g.acc[x][2], g.acc[x][3])
            a.e(f"buffer_store_dwordx4 {vr(p,4)}, v{self.vL16}, s[{S_WS}:{S_WS+3}], s{S_T4} offen offset:{x*1024} sc1")
            a.lds_other(f"ds_write_b128 v{vo}, {vr(p,4)} offset:{AT_K(0) + 2*8192 + x*1024}")
        em.vemit((wn*32 + (l & 15))*4 + SD_CSQ + 128*4, va)
        a.lds_rd(f"ds_read_b32 v{sc}, v{va}", [sc]); a.lds_rd(f"ds_read_b32 v{sc+1}, v{va} offset:64", [sc+1])
        em.vemit((wm*64 + gq*4)*4 + SD_MEAN1, vb)
        for x in range(4):
            a.lds_rd(f"ds_read_b128 {vr(st+4*x,4)}, v{vb} offset:{x*64}", rng(st+4*x, 4))
            a.lds_rd(f"ds_read_b128 {vr(st+16+4*x,4)}, v{vb} offset:{512+x*64}", rng(st+16+4*x, 4))
        a.e(f"s_lshl_b32 s{S_T3}, s{S_WM}, 12\ns_add_u32 s{S_T4}, s71, s{S_T3}\ns_add_u32 s{S_T4}, s{S_T4}, 8192")
        for xi in range(2):
            a.need(list(rng(st+8*xi, 8)) + list(rng(st+16+8*xi, 8)) + [sc, sc+1])
            for dl in range(2):
                for x in (2*xi, 2*xi+1):
                    acc = g.acc[x][4+dl]
                    for p in range(2):
                        a.e(f"v_pk_fma_f32 {vr(acc+2*p,2)}, {vr(st+4*x+2*p,2)}, {vr(sc,2)}, {vr(acc+2*p,2)} op_sel:[0,{dl},0] op_sel_hi:[1,{dl},1] neg_lo:[1,0,0] neg_hi:[1,0,0]")
                    for p in range(2):
                        a.e(f"v_pk_mul_f32 {vr(acc+2*p,2)}, {vr(st+16+4*x+2*p,2)}, {vr(acc+2*p,2)}")
                p = pk + 4*dl
                pack2(p, g.acc[2*xi][4+dl], g.acc[2*xi+1][4+dl])
                a.e(f"buffer_store_dwordx4 {vr(p,4)}, v{self.vL16}, s[{S_WS}:{S_WS+3}], s{S_T4} offen offset:{(xi*2+dl)*1024} sc1")
                a.lds_other(f"ds_write_b128 v{vo}, {vr(p,4)} offset:{AT_V(0) + 2*8192 + (xi*2+dl)*1024}")
        for x in range(4): a.e(f"v_mul_f32 v{rs+x}, {fhex(QSCALE)}, v{rs+x}")
        em.vemit(wn*8192 + wm*4096 + l*16 + AT_Q0, va)
        a.need(rng(cs+8, 8))
        for x in range(4):
            fold_mn(x, 0, rs); fold_mn(x, 1, rs)
            p = pk + 4*(x & 1)
            a.e("s_nop 0")
            pack2(p, g.acc[x][0], g.acc[x][1])
            a.lds_other(f"ds_write_b128 v{va}, {vr(p,4)} offset:{x*1024}")
        a.e("s_waitcnt vmcnt(0) lgkmcnt(0)"); a.lq = []
        self.bar()
        self.stamp(C, 3)
        t0, t1 = self.vt[0:2]
        self.only_lw0(L, "kvsig", lambda: self.signal(L, F_KV, S_J, S_I, 12+40, 12+41))
        L.e(f"s_sub_i32 s{S_T2}, s{S_I}, 1\ns_max_i32 s{S_T2}, s{S_T2}, 0\ns_sub_i32 s{S_T3}, s{S_I}, 2\ns_max_i32 s{S_T3}, s{S_T3}, 0")
        L.e(f"v_mov_b32 v{t0}, s{S_T2}\nv_mov_b32 v{t1}, s{S_T3}\nv_and_b32 v52, 1, v{vL}\nv_cmp_eq_u32 vcc, 0, v52\ns_nop 1\nv_cndmask_b32 v{t0}, v{t1}, v{t0}, vcc")
        L.e(f"v_lshlrev_b32 v{t0}, 2, v{t0}\ns_lshl_b32 s{S_T}, s{S_J}, 7\ns_add_u32 s{S_T}, s{S_T}, {F_KV}\nv_add_u32 v53, s{S_T}, v{t0}")
        self.poll(L, S_WS, 53, 52, "kv")
        L.e(f"s_lshr_b32 s{S_T}, s{S_LW}, 1\ns_sub_i32 s{S_T2}, s{S_I}, 2\ns_add_i32 s{S_T2}, s{S_T2}, s{S_T}")
        L.e(f"s_lshl_b32 s{S_T3}, s{S_T2}, 4\ns_add_u32 s{S_T3}, s{S_T3}, s{S_J}\ns_lshl_b32 s{S_T3}, s{S_T3}, 15\ns_and_b32 s{S_T4}, s{S_LW}, 1\ns_lshl_b32 s{S_T4}, s{S_T4}, 14\ns_add_u32 s{S_T3}, s{S_T3}, s{S_T4}\ns_add_u32 s{S_T3}, s{S_T3}, {WS_KV}")
        L.e(f"s_cmp_lt_i32 s{S_T2}, 0\ns_cselect_b32 s{S_T3}, 0x7ff00000, s{S_T3}")
        L.e(f"s_and_b32 s{S_T4}, s{S_LW}, 1\ns_mul_i32 s{S_T4}, s{S_T4}, 49152\ns_lshl_b32 s{S_T}, s{S_T}, 13\ns_add_u32 s{S_T4}, s{S_T4}, s{S_T}")
        for part in range(2):
            for q4 in range(2):
                L.e(f"s_add_u32 m0, s{S_T4}, {part*24576 + q4*4096}\ns_add_u32 s{S_T}, s{S_T3}, {part*8192 + q4*4096}")
                for n in range(4):
                    L.e(f"buffer_load_dwordx4 v{self.vL16}, s[{S_WS}:{S_WS+3}], s{S_T} offen offset:{n*1024} sc1 lds")
        L.e("s_waitcnt vmcnt(0)")
        self.bar()
        self.stamp(C, 4)
        C.e("s_branch L_attn"); C.label("L_attn_back_c")
        L.e("s_branch L_attn"); L.label("L_attn_back_l")

    def attention(self):
        a = self.A; vL = self.vL
        a.label("L_attn")
        l = V("l")
        em = Emitter(a, {"l": vL}, {"hh": S_T3, "om": S_T4}, self.vt, S_ET)
        hh, om = S("hh"), S("om")
        QF, KF, SS, NM, NG, OO, VF, PP = 64, 72, 88, 120, 136, 152, 168, 184
        vQ, vK, vV, MX, SUM, SUM2, T0 = 200, 201, 202, 203, 204, 205, 206
        a.e(f"s_and_b32 s{S_T3}, s{S_WV}, 1\ns_lshr_b32 s{S_T4}, s{S_WV}, 1")
        a.e(f"s_lshl_b32 s71, s{S_I}, 2\ns_add_u32 s71, s71, s{S_T4}")
        rho = l & 31; h = l >> 5
        em.vemit(hh*8192 + om*2048 + ((l >> 4) & 1)*1024 + (h*16 + (l & 15))*16 + AT_Q0, vQ)
        em.vemit(hh*49152 + om*2048 + ((l >> 3) & 1)*1024 + (h*16 + (l & 7) + ((l >> 4) & 1)*8)*16, vK)
        em.vemit(hh*49152 + om*2048 + ((l >> 4) & 1)*1024 + (h*16 + (l & 15))*16 + 24576, vV)
        for ex in (((l >> 4) & 1)*1024 + (h*16 + (l & 15))*16, ((l >> 3) & 1)*1024 + (h*16 + (l & 7) + ((l >> 4) & 1)*8)*16):
            assert banks.conflicts_b128([ex.ev({"l": x}) for x in range(64)]) == 0
        a.lds_rd(f"ds_read_b128 {vr(QF,4)}, v{vQ}", rng(QF, 4))
        a.lds_rd(f"ds_read_b128 {vr(QF+4,4)}, v{vQ} offset:512", rng(QF+4, 4))
        def kread(tt):
            b = KF + 8*(tt & 1)
            a.lds_rd(f"ds_read_b128 {vr(b,4)}, v{vK} offset:{tt*2048}", rng(b, 4))
            a.lds_rd(f"ds_read_b128 {vr(b+4,4)}, v{vK} offset:{tt*2048+512}", rng(b+4, 4))
        def vread(tt):
            b = VF + 8*(tt & 1)
            a.lds_rd(f"ds_read_b128 {vr(b,4)}, v{vV} offset:{tt*2048}", rng(b, 4))
            a.lds_rd(f"ds_read_b128 {vr(b+4,4)}, v{vV} offset:{tt*2048+512}", rng(b+4, 4))
        kread(0); kread(1)
        mreg = [72+2*k for k in range(8)] + [90+2*k for k in range(6)] + [4, 6]
        for r in range(16):
            k0 = 16*((r >> 2) & 1) + 8*(r >> 3) + (r & 3)
            lo = (0xffffffff << k0) & 0xffffffff; hi = (0xffffffff << (k0+4)) & 0xffffffff
            a.e(f"s_mov_b32 s{mreg[r]}, {hex(lo)}\ns_mov_b32 s{mreg[r]+1}, {hex(hi)}")
        for r in range(16): a.e(f"v_mov_b32 v{NG+r}, 0xf149f2ca")
        a.e(f"v_mov_b32 v{MX}, 0xf149f2ca\nv_mov_b32 v{SUM}, 0\nv_mov_b32 v{SUM2}, 0")
        def qk(tt, cvalid, tag):
            b = KF + 8*(tt & 1); s_ = SS + 16*(tt & 1)
            a.need(list(rng(b, 4)) + list(rng(QF, 4)))
            if tt < 8:
                a.e(f"s_cmp_ge_u32 s71, {8-tt}\ns_cbranch_scc0 L_inv_{tag}_{tt}")
            a.e(f"v_mfma_f32_32x32x16_bf16 {vr(s_,16)}, {vr(b,4)}, {vr(QF,4)}, {cvalid}")
            if tt < 8:
                a.label(f"L_invb_{tag}_{tt}")
                t = self.tail
                t.label(f"L_inv_{tag}_{tt}")
                t.e(f"v_mfma_f32_32x32x16_bf16 {vr(s_,16)}, {vr(b,4)}, {vr(QF,4)}, {vr(NG,16)}\ns_branch L_invb_{tag}_{tt}")
            a.need(list(rng(b+4, 4)) + list(rng(QF+4, 4)))
            a.e(f"v_mfma_f32_32x32x16_bf16 {vr(s_,16)}, {vr(b+4,4)}, {vr(QF+4,4)}, {vr(s_,16)}")
        def mask(tt):
            s_ = SS + 16*(tt & 1)
            if tt == 8:
                for r in range(16): a.e(f"v_cndmask_b32 v{s_+r}, v{NG}, v{s_+r}, s[{mreg[r]}:{mreg[r]+1}]")
            if tt == 0:
                for r in range(16): a.e(f"v_cndmask_b32 v{s_+r}, v{s_+r}, v{NG}, s[{mreg[r]}:{mreg[r]+1}]")
        qk(0, "0", "a")
        for tt in range(9):
            if tt+1 < 9: qk(tt+1, "0", "a")
            if tt+2 < 9: kread(tt+2)
            else: a.e("s_nop 7\ns_nop 3")
            if tt == 0: a.e("s_nop 7")
            mask(tt)
            s_ = SS + 16*(tt & 1)
            for k in range(8): a.e(f"v_max3_f32 v{MX}, v{MX}, v{s_+2*k}, v{s_+2*k+1}")
        kread(0); kread(1); vread(0)
        a.e(f"v_mov_b32 v{T0}, v{MX}\ns_nop 1\nv_permlane32_swap_b32 v{T0}, v{MX}\ns_nop 1\nv_max_f32 v{MX}, v{MX}, v{T0}")
        for r in range(16): a.e(f"v_sub_f32 v{NM+r}, 0, v{MX}")
        a.e("s_nop 1")
        qk(0, vr(NM, 16), "b")
        for tt in range(9):
            if tt+1 < 9:
                qk(tt+1, vr(NM, 16), "b"); vread(tt+1)
            if tt+2 < 9: kread(tt+2)
            if tt == 0: a.e("s_nop 7\ns_nop 1")
            if tt == 8: a.e("s_nop 7\ns_nop 3")
            mask(tt)
            s_ = SS + 16*(tt & 1); p = PP + 8*(tt & 1)
            for r in range(16): a.e(f"v_exp_f32 v{s_+r}, v{s_+r}")
            for k in range(8): a.e(f"v_cvt_pk_bf16_f32 v{p+k}, v{s_+2*k}, v{s_+2*k+1}")
            for k in range(8): a.e(f"v_add_f32 v{SUM}, v{SUM}, v{s_+2*k}\nv_add_f32 v{SUM2}, v{SUM2}, v{s_+2*k+1}")
            b = VF + 8*(tt & 1)
            a.need(rng(b, 8))
            a.e(f"v_mfma_f32_32x32x16_bf16 {vr(OO,16)}, {vr(b,4)}, {vr(p,4)}, {'0' if tt == 0 else vr(OO,16)}")
            a.e(f"v_mfma_f32_32x32x16_bf16 {vr(OO,16)}, {vr(b+4,4)}, {vr(p+4,4)}, {vr(OO,16)}")
        a.e(f"v_add_f32 v{SUM}, v{SUM}, v{SUM2}\ns_nop 0\nv_mov_b32 v{T0}, v{SUM}\ns_nop 1\nv_permlane32_swap_b32 v{T0}, v{SUM}\ns_nop 1\nv_add_f32 v{SUM}, v{SUM}, v{T0}")
        a.e(f"v_rcp_f32 v{SUM}, v{SUM}")
        srd(a, S_WS, *self.ptr(A_WS), WS_BYTES)
        em.vemit((om*2 + ((l >> 4) & 1))*2048 + hh*1024 + ((l & 15) + h*16)*16, vQ)
        a.e(f"s_lshl_b32 s{S_T}, s{S_I}, 4\ns_add_u32 s{S_T}, s{S_T}, s{S_J}\ns_lshl_b32 s{S_T}, s{S_T}, 14\ns_add_u32 s{S_T}, s{S_T}, {WS_O}")
        a.e("s_nop 7")
        for r in range(16): a.e(f"v_mul_f32 v{OO+r}, v{SUM}, v{OO+r}")
        for s in range(2):
            for k in range(4): a.e(f"v_cvt_pk_bf16_f32 v{PP+4*s+k}, v{OO+8*s+2*k}, v{OO+8*s+2*k+1}")
            a.e(f"buffer_store_dwordx4 {vr(PP+4*s,4)}, v{vQ}, s[{S_WS}:{S_WS+3}], s{S_T} offen offset:{s*512} sc1")
        a.e("s_waitcnt vmcnt(0)")
        a.e(f"s_cmp_ge_u32 s{S_WV}, 4\ns_cbranch_scc1 L_attn_back_l\ns_branch L_attn_back_c")

    def lphase(self, g, warg, wbytes, xbase, flag, label, khalf=False, hooks=None, npeel=0, after_poll=None):
        L = self.L; c = g.c; vm = VM(L); S = c.S; ns = c.nsteps
        hooks = hooks or {}
        g.bind(L, self.vL, self.vt, (8, 9))
        srd(L, S_WSRD, *self.ptr(warg), wbytes)
        srd(L, S_XSRD, *self.ptr(A_WS), WS_BYTES)
        self.setup_w_only(g)
        g.em.vemit(g.lw*4096 + g.l*16, g.vXsrc[0])
        c.woff(L)
        self.xoff_fn(L, c, xbase, khalf)
        L.e(f"s_lshl_b32 s{S_XL}, s{S_LW}, 12")
        L.e(f"s_mul_i32 s{S_WL}, s{S_LW}, {c.nWld*1024}\ns_add_u32 s{S_WL}, s{S_WL}, {c.XB}")
        L.e(f"s_mov_b32 s{S_WR}, 0")
        for s in range(S):
            for ins in g.dma_w(): L.e(ins)
            L.e(f"s_add_u32 s{S_WR}, s{S_WR}, {c.SB}")
        self.group_addr(L, 52, flag, S_I)
        self.poll(L, S_WS, 52, 53, label)
        L.e(f"s_mov_b32 s{S_WR}, 0")
        for s in range(S):
            for ins in g.dma_x(): L.e(ins)
            vm.iss(("st", s), c.nXld)
            L.e(f"s_add_u32 s{S_WR}, s{S_WR}, {c.SB}")
        L.e(f"s_mov_b32 s{S_WR}, 0")
        if after_poll: after_poll(vm)
        vm.wait(("st", 0)); L.e("s_barrier")
        vm.wait(("st", 1)); L.e("s_barrier")
        def issue(t):
            for ins in g.dma_list(): L.e(ins)
            vm.iss(("st", t), c.nld); L.e(g.adv_slot(S_WR))
        npeel = max(npeel, S-2)
        nb = ns - S
        for t in range(npeel):
            issue(t+S)
            if t in hooks: hooks[t](vm)
            if ("st", t+2) in vm.q: vm.wait(("st", t+2))
            L.lds_drain(); L.e("s_barrier")
        if nb - npeel > 0:
            L.e(f"s_mov_b32 s{S_CNT}, {nb - npeel}")
            L.label(f"L_lloop_{label}")
            for ins in g.dma_list(): L.e(ins)
            L.e(g.adv_slot(S_WR))
            L.e(f"s_waitcnt vmcnt({(S-2)*c.nld})\ns_barrier")
            L.e(f"s_sub_u32 s{S_CNT}, s{S_CNT}, 1\ns_cmp_lg_u32 s{S_CNT}, 0\ns_cbranch_scc1 L_lloop_{label}")
        for t in range(nb, ns-1):
            if t+2 <= ns-1: L.e(f"s_waitcnt vmcnt({min(ns-1-(t+2), S-2)*c.nld})")
            L.e("s_barrier")

    def phase_o(self, g):
        C, L, c = self.C, self.L, g.c
        vL = self.vL; t0, t1, t2, t3, t4, t5 = self.vt
        self.bar()
        self.stamp(C, 5)
        self.only_lw0(L, "osig", lambda: self.signal(L, F_O, S_I, S_J, 52, 53))
        self.lphase(g, A_WO, D*D*2, WS_O, F_O, "o")
        a = C; g.bind(C, vL, self.vt, (8, 9)); cv = Regs(12, 254); g.alloc_compute(cv)
        em = g.em; l, wm, wn = g.l, g.wm, g.wn
        g.setup_reads()
        xr = cv.alloc(16, 4); va = cv.alloc(); pk = cv.alloc(8, 4); sm = cv.alloc(8, 4); tm = cv.alloc(8, 4); m2 = cv.alloc(8, 4)
        srd(a, S_XSRD, *self.ptr(A_X), M*D*2)
        em.vemit((l & 15)*2048 + (l >> 4)*8, va)
        a.e(f"s_lshl_b32 s{S_T}, s{S_I}, 1\ns_add_u32 s{S_T}, s{S_T}, s{S_WM}\ns_lshl_b32 s{S_T}, s{S_T}, 17\ns_lshl_b32 s{S_T2}, s{S_J}, 7\ns_add_u32 s{S_T}, s{S_T}, s{S_T2}\ns_lshl_b32 s{S_T2}, s{S_WN}, 6\ns_add_u32 s{S_T}, s{S_T}, s{S_T2}")
        for x in range(4):
            for f in range(2):
                a.e(f"buffer_load_dwordx2 {vr(xr+4*x+2*f,2)}, v{va}, s[{S_XSRD}:{S_XSRD+3}], s{S_T} offen offset:{f*32}")
            if x < 3: a.e(f"s_add_u32 s{S_T}, s{S_T}, {16*2048}")
        if self.o["pf_weights"]: self.prefetch_w2(a)
        self.cloop(g, stamps=(6, 7))
        a.e("s_waitcnt vmcnt(0)")
        for x in range(4):
            for f in range(2):
                acc = g.acc[x][f]
                for d in range(2):
                    src = xr + 4*x + 2*f + d
                    a.e(f"v_lshlrev_b32 v{t0}, 16, v{src}\nv_and_b32 v{t1}, 0xffff0000, v{src}")
                    a.e(f"v_add_f32 v{acc+2*d}, v{acc+2*d}, v{t0}\nv_add_f32 v{acc+2*d+1}, v{acc+2*d+1}, v{t1}")
        a.e(f"s_lshl_b32 s{S_T}, s{S_I}, 4\ns_add_u32 s{S_T}, s{S_T}, s{S_J}\ns_lshl_b32 s{S_T}, s{S_T}, 14\ns_lshl_b32 s{S_T2}, s{S_WM}, 13\ns_add_u32 s{S_T}, s{S_T}, s{S_T2}\ns_lshl_b32 s{S_T2}, s{S_WN}, 10\ns_add_u32 s{S_T}, s{S_T}, s{S_T2}\ns_add_u32 s{S_T}, s{S_T}, {WS_H}")
        for x in range(4):
            p = pk + 4*(x & 1); A, B = g.acc[x][0], g.acc[x][1]
            a.e(f"v_cvt_pk_bf16_f32 v{p}, v{A}, v{A+1}\nv_cvt_pk_bf16_f32 v{p+1}, v{A+2}, v{A+3}\nv_cvt_pk_bf16_f32 v{p+2}, v{B}, v{B+1}\nv_cvt_pk_bf16_f32 v{p+3}, v{B+2}, v{B+3}")
            if x == 2: a.e(f"s_add_u32 s{S_T}, s{S_T}, 4096")
            a.e(f"buffer_store_dwordx4 {vr(p,4)}, v{self.vL16}, s[{S_WS}:{S_WS+3}], s{S_T} offen offset:{(x & 1)*2048} sc1")
        def xlane(regs):
            for sw in ("v_permlane16_swap_b32", "v_permlane32_swap_b32"):
                for k, r in enumerate(regs): a.e(f"v_mov_b32 v{tm+k}, v{r}")
                a.e("s_nop 1")
                for k, r in enumerate(regs): a.e(f"{sw} v{tm+k}, v{r}")
                a.e("s_nop 1")
                for k, r in enumerate(regs): a.e(f"v_add_f32 v{r}, v{r}, v{tm+k}")
        for x in range(4):
            A, B = g.acc[x][0], g.acc[x][1]
            a.e(f"v_add_f32 v{sm+2*x}, v{A}, v{A+1}")
            for r in [A+2, A+3, B, B+1, B+2, B+3]: a.e(f"v_add_f32 v{sm+2*x}, v{sm+2*x}, v{r}")
        xlane([sm+2*x for x in range(4)])
        for x in range(4):
            A, B = g.acc[x][0], g.acc[x][1]
            a.e(f"v_mul_f32 v{t0}, {fhex(1/32)}, v{sm+2*x}")
            a.e(f"v_sub_f32 v{t1}, v{A}, v{t0}\nv_mul_f32 v{sm+2*x+1}, v{t1}, v{t1}")
            for r in [A+1, A+2, A+3, B, B+1, B+2, B+3]: a.e(f"v_sub_f32 v{t1}, v{r}, v{t0}\nv_fmac_f32 v{sm+2*x+1}, v{t1}, v{t1}")
        xlane([sm+2*x+1 for x in range(4)])
        a.e(f"s_lshl_b32 s{S_T}, s{S_J}, 1\ns_add_u32 s{S_T}, s{S_T}, s{S_WN}\ns_lshl_b32 s{S_T}, s{S_T}, 11\ns_lshl_b32 s{S_T2}, s{S_I}, 7\ns_add_u32 s{S_T}, s{S_T}, s{S_T2}\ns_lshl_b32 s{S_T2}, s{S_WM}, 6\ns_add_u32 s{S_T}, s{S_T}, s{S_T2}\ns_lshl_b32 s{S_T}, s{S_T}, 3\ns_add_u32 s{S_T}, s{S_T}, {WS_ST2}")
        a.e(f"v_lshlrev_b32 v{t0}, 3, v{vL}\nv_cmp_gt_u32 vcc, 16, v{vL}\ns_and_saveexec_b64 s[{S_EX}:{S_EX+1}], vcc")
        for x in range(4):
            a.e(f"buffer_store_dwordx2 {vr(sm+2*x,2)}, v{t0}, s[{S_WS}:{S_WS+3}], s{S_T} offen offset:{x*128} sc1")
        a.e(f"s_mov_b64 exec, s[{S_EX}:{S_EX+1}]\ns_waitcnt vmcnt(0)")
        self.bar()
        self.stamp(C, 8)

    def phase_f1(self, g):
        C, L, c = self.C, self.L, g.c
        vL = self.vL; t0, t1, t2, t3, t4, t5 = self.vt
        self.only_lw0(L, "hsig", lambda: self.signal(L, F_H, S_I, S_J, 52, 53))
        ps = 64; cp = 96; mu, m2 = 112, 113
        def after_poll(vm):
            L.e(f"v_and_b32 v{t0}, 31, v{vL}\nv_lshrrev_b32 v{t1}, 5, v{vL}\nv_lshlrev_b32 v{t1}, 15, v{t1}\nv_add_u32 v{t0}, v{t0}, v{t1}\nv_lshlrev_b32 v54, 3, v{t0}")
            L.e(f"s_lshl_b32 s{S_T2}, s{S_I}, 7\ns_lshl_b32 s{S_T3}, s{S_LW}, 5\ns_add_u32 s{S_T2}, s{S_T2}, s{S_T3}\ns_lshl_b32 s{S_T2}, s{S_T2}, 3\ns_add_u32 s{S_T2}, s{S_T2}, {WS_ST2}")
            for p in range(16):
                L.e(f"buffer_load_dwordx2 {vr(ps+2*p,2)}, v54, s[{S_WS}:{S_WS+3}], s{S_T2} offen sc1\ns_add_u32 s{S_T2}, s{S_T2}, {2048*8}")
            vm.iss("ps", 16)
        def h0(vm):
            vm.wait("ps")
            L.e(f"v_add_f32 v{mu}, v{ps}, v{ps+2}")
            for p in range(2, 16): L.e(f"v_add_f32 v{mu}, v{mu}, v{ps+2*p}")
            half_add(L, mu, t0)
            L.e(f"v_mul_f32 v{mu}, {fhex(1/1024)}, v{mu}\nv_mov_b32 v{m2}, 0")
        def h1(vm):
            for p in range(16):
                L.e(f"v_fma_f32 v{t1}, v{ps+2*p}, v115, -v{mu}\nv_mul_f32 v{t1}, v{t1}, v{t1}\nv_fma_f32 v{t1}, v{t1}, v116, v{ps+2*p+1}\nv_add_f32 v{m2}, v{m2}, v{t1}")
            half_add(L, m2, t0)
            L.e(f"v_mul_f32 v{m2}, {fhex(1/1024)}, v{m2}\nv_add_f32 v{m2}, {fhex(EPS)}, v{m2}\nv_rsq_f32 v{m2}, v{m2}")
            L.e(f"v_and_b32 v{t0}, 31, v{vL}\ns_lshl_b32 s{S_T}, s{S_LW}, 5\nv_add_u32 v{t0}, s{S_T}, v{t0}\nv_lshlrev_b32 v{t0}, 2, v{t0}\nv_add_u32 v{t0}, {SD_MEAN2}, v{t0}")
            L.e(f"ds_write_b32 v{t0}, v{mu}\nds_write_b32 v{t0}, v{m2} offset:512")
        def h0b(vm):
            h0(vm); L.e(f"v_mov_b32 v115, {fhex(1/32)}\nv_mov_b32 v116, {fhex(32.0)}")
        def h2(vm):
            self.group_addr(L, 52, F_CS1, S_J)
            self.poll(L, S_WS, 52, 53, "cs1"); vm.q = []
            L.e(f"s_mul_i32 s{S_T2}, s{S_J}, 896\ns_mul_i32 s{S_T}, s{S_LW}, 224\ns_add_u32 s{S_T2}, s{S_T2}, s{S_T}\ns_add_u32 s{S_T2}, s{S_T2}, {WS_CS1}")
            L.e(f"v_lshlrev_b32 v54, 2, v{vL}\nv_cmp_gt_u32 vcc, 56, v{vL}\nv_mov_b32 v{t1}, 0x7ffffff0\ns_nop 0\nv_cndmask_b32 v54, v{t1}, v54, vcc")
            for p in range(16):
                L.e(f"buffer_load_dword v{cp+p}, v54, s[{S_WS}:{S_WS+3}], s{S_T2} offen sc1\ns_add_u32 s{S_T2}, s{S_T2}, {16*896}")
            vm.iss("cp", 16)
        def h4(vm):
            vm.wait("cp")
            for p in range(1, 16): L.e(f"v_add_f32 v{cp}, v{cp}, v{cp+p}")
            L.e(f"s_mul_i32 s{S_T}, s{S_LW}, 224\ns_add_u32 s{S_T}, s{S_T}, {SD_CS1}\nv_lshlrev_b32 v{t0}, 2, v{vL}\nv_add_u32 v{t0}, s{S_T}, v{t0}")
            L.e(f"v_cmp_gt_u32 vcc, 56, v{vL}\ns_and_saveexec_b64 s[{S_EX}:{S_EX+1}], vcc\nds_write_b32 v{t0}, v{cp}\ns_mov_b64 exec, s[{S_EX}:{S_EX+1}]")
        self.lphase(g, A_W1, D*DFF*2, WS_H, F_H, "f1", hooks={1: h0b, 2: h1, 3: h2, 5: h4}, npeel=6, after_poll=after_poll)
        a = C; g.bind(C, vL, self.vt, (8, 9)); cv = Regs(12, 254); g.alloc_compute(cv)
        em = g.em; l, wm, wn = g.l, g.wm, g.wn
        g.setup_reads()
        self.cloop(g, stamps=(9, 10))
        fr = g.frag0
        mu = fr; cs = fr+4; pk = fr+32; va = fr+44; vb = va+1; vc = va+2; vo = va+3
        em.vemit((wm*64 + (l & 15))*4 + SD_MEAN2, va)
        for x in range(4): a.lds_rd(f"ds_read_b32 v{mu+x}, v{va} offset:{x*64}", [mu+x])
        em.vemit(wn*512 + (l >> 4)*16 + SD_CS1, vb)
        em.vemit(wn*64 + (l >> 4)*16 + SD_CS1 + 384, vc)
        for f in range(6): a.lds_rd(f"ds_read_b128 {vr(cs+4*f,4)}, v{vb} offset:{f*64}", rng(cs+4*f, 4))
        a.lds_rd(f"ds_read_b128 {vr(cs+24,4)}, v{vc}", rng(cs+24, 4))
        a.e(f"s_mul_i32 s71, s{S_I}, {56*16384}\ns_lshl_b32 s{S_T}, s{S_WM}, 13\ns_add_u32 s71, s71, s{S_T}\ns_add_u32 s71, s71, {WS_H1}\ns_mul_i32 s{S_T4}, s{S_J}, 7")
        def fold(x, f):
            acc = g.acc[x][f]; c0 = cs + 4*f
            for p in range(2):
                a.e(f"v_pk_fma_f32 {vr(acc+2*p,2)}, {vr(mu+(x & ~1),2)}, {vr(c0+2*p,2)}, {vr(acc+2*p,2)} op_sel:[{x & 1},0,0] op_sel_hi:[{x & 1},1,1] neg_lo:[1,0,0] neg_hi:[1,0,0]")
        def kappa(phi_code):
            a.e(phi_code)
            a.e(f"s_lshr_b32 s{S_T2}, s{S_T}, 1\ns_lshl_b32 s{S_T2}, s{S_T2}, 14\ns_and_b32 s{S_T}, s{S_T}, 1\ns_lshl_b32 s{S_T}, s{S_T}, 10\ns_add_u32 s{S_T}, s{S_T}, s{S_T2}\ns_add_u32 s{S_T}, s{S_T}, s71")
        n = 0
        for pr in range(3):
            a.need(list(rng(mu, 4)) + list(rng(cs+8*pr, 8)))
            kappa(f"s_lshl_b32 s{S_T}, s{S_WN}, 2\ns_add_u32 s{S_T}, s{S_T}, s{S_T4}\ns_add_u32 s{S_T}, s{S_T}, {pr}")
            for x in range(4):
                fold(x, 2*pr); fold(x, 2*pr+1)
                A, B = g.acc[x][2*pr], g.acc[x][2*pr+1]; p = pk + 4*(n & 1); n += 1
                a.e(f"v_cvt_pk_bf16_f32 v{p}, v{A}, v{A+1}\nv_cvt_pk_bf16_f32 v{p+1}, v{A+2}, v{A+3}\nv_cvt_pk_bf16_f32 v{p+2}, v{B}, v{B+1}\nv_cvt_pk_bf16_f32 v{p+3}, v{B+2}, v{B+3}")
                for k in range(4): a.e(f"v_pk_max_i16 v{p+k}, v{p+k}, 0")
                if x == 2: a.e(f"s_add_u32 s{S_T}, s{S_T}, 4096")
                a.e(f"buffer_store_dwordx4 {vr(p,4)}, v{self.vL16}, s[{S_WS}:{S_WS+3}], s{S_T} offen offset:{(x & 1)*2048} sc1")
        a.need(rng(cs+24, 4))
        kappa(f"s_add_u32 s{S_T}, s{S_T4}, 3")
        em.vemit(l*16 + wn*8, vo)
        for x in range(4):
            fold(x, 6)
            A = g.acc[x][6]; p = pk + 4*(n & 1); n += 1
            a.e(f"v_cvt_pk_bf16_f32 v{p}, v{A}, v{A+1}\nv_cvt_pk_bf16_f32 v{p+1}, v{A+2}, v{A+3}\nv_pk_max_i16 v{p}, v{p}, 0\nv_pk_max_i16 v{p+1}, v{p+1}, 0")
            if x == 2: a.e(f"s_add_u32 s{S_T}, s{S_T}, 4096")
            a.e(f"buffer_store_dwordx2 {vr(p,2)}, v{vo}, s[{S_WS}:{S_WS+3}], s{S_T} offen offset:{(x & 1)*2048} sc1")
        a.e("s_waitcnt vmcnt(0)")
        self.bar()
        self.stamp(C, 11)

    def phase_f2(self, g):
        C, L, c = self.C, self.L, g.c
        vL = self.vL; t0, t1, t2, t3, t4, t5 = self.vt
        self.only_lw0(L, "h1sig", lambda: self.signal(L, F_H1, S_I, S_J, 52, 53))
        self.lphase(g, A_W2, DFF*D*2, WS_H1, F_H1, "f2", khalf=True)
        a = C; g.bind(C, vL, self.vt, (8, 9)); cv = Regs(12, 254)
        a.e(f"s_lshr_b32 s3, s{S_J}, 3")
        g.alloc_compute(cv)
        em = g.em; l, wm, wn = g.l, g.wm, g.wn
        g.setup_reads()
        hr = cv.alloc(16, 4); pt = cv.alloc(32, 4); rs = cv.alloc(4, 4); pk = cv.alloc(8, 4); va = cv.alloc(); vo = cv.alloc()
        a.e(f"s_and_b32 s{S_T}, s{S_J}, 7\ns_lshl_b32 s{S_T}, s{S_T}, 1\ns_add_u32 s{S_T}, s{S_T}, s{S_WN}\ns_lshl_b32 s{S_T2}, s{S_I}, 4\ns_add_u32 s{S_T}, s{S_T}, s{S_T2}\ns_lshl_b32 s{S_T}, s{S_T}, 14")
        a.e(f"s_lshl_b32 s{S_T2}, s{S_WM}, 13\ns_add_u32 s{S_T}, s{S_T}, s{S_T2}\ns_lshl_b32 s{S_T2}, s3, 10\ns_add_u32 s{S_T}, s{S_T}, s{S_T2}\ns_add_u32 s{S_T}, s{S_T}, {WS_H}")
        for x in range(4):
            if x == 2: a.e(f"s_add_u32 s{S_T}, s{S_T}, 4096")
            a.e(f"buffer_load_dwordx4 {vr(hr+4*x,4)}, v{self.vL16}, s[{S_WS}:{S_WS+3}], s{S_T} offen offset:{(x & 1)*2048} sc1")
        self.cloop(g, stamps=(12, 13))
        a.e(f"s_lshl_b32 s{S_T}, s{S_I}, 4\ns_add_u32 s{S_T}, s{S_T}, s{S_J}\ns_lshl_b32 s{S_T}, s{S_T}, 15\ns_lshl_b32 s{S_T2}, s{S_LW}, 13\ns_add_u32 s{S_T}, s{S_T}, s{S_T2}\ns_add_u32 s{S_T}, s{S_T}, {WS_XCH}")
        for x in range(4):
            if x == 2: a.e(f"s_add_u32 s{S_T}, s{S_T}, 4096")
            for f in range(2):
                a.e(f"buffer_store_dwordx4 {vr(g.acc[x][2+f],4)}, v{self.vL16}, s[{S_WS}:{S_WS+3}], s{S_T} offen offset:{((x & 1)*2+f)*1024} sc1")
        em.vemit((wm*64 + (l & 15))*4 + SD_RSTD2, va)
        for x in range(4): a.lds_rd(f"ds_read_b32 v{rs+x}, v{va} offset:{x*64}", [rs+x])
        srd(a, S_OUT, *self.ptr(A_OUT), M*D*2)
        em.vemit((l & 15)*2048 + ((l >> 4) & 1)*32 + (l >> 5)*16, vo)
        a.e("s_waitcnt vmcnt(0)")
        self.bar()
        self.only_lw0(L, "psig", lambda: self.signal(L, F_P, S_I, S_J, 52, 53))
        L.e(f"s_xor_b32 s{S_T2}, s{S_J}, 8\ns_lshl_b32 s{S_T2}, s{S_T2}, 2\ns_lshl_b32 s{S_T}, s{S_I}, 7\ns_add_u32 s{S_T}, s{S_T}, s{S_T2}\ns_add_u32 s{S_T}, s{S_T}, {F_P}\nv_mov_b32 v52, s{S_T}")
        def pp(): self.poll(L, S_WS, 52, 53, "p")
        self.only_lw0(L, "ppoll", pp)
        self.bar()
        a.e(f"s_xor_b32 s{S_T}, s{S_J}, 8\ns_lshl_b32 s{S_T2}, s{S_I}, 4\ns_add_u32 s{S_T}, s{S_T}, s{S_T2}\ns_lshl_b32 s{S_T}, s{S_T}, 15\ns_lshl_b32 s{S_T2}, s{S_LW}, 13\ns_add_u32 s{S_T}, s{S_T}, s{S_T2}\ns_add_u32 s{S_T}, s{S_T}, {WS_XCH}")
        for x in range(4):
            if x == 2: a.e(f"s_add_u32 s{S_T}, s{S_T}, 4096")
            for f in range(2):
                a.e(f"buffer_load_dwordx4 {vr(pt+8*x+4*f,4)}, v{self.vL16}, s[{S_WS}:{S_WS+3}], s{S_T} offen offset:{((x & 1)*2+f)*1024} sc1")
        a.e(f"s_lshl_b32 s{S_T}, s{S_I}, 1\ns_add_u32 s{S_T}, s{S_T}, s{S_WM}\ns_lshl_b32 s{S_T}, s{S_T}, 17\ns_and_b32 s{S_T2}, s{S_J}, 7\ns_lshl_b32 s{S_T2}, s{S_T2}, 8\ns_add_u32 s{S_T}, s{S_T}, s{S_T2}")
        a.e(f"s_lshl_b32 s{S_T2}, s{S_WN}, 7\ns_add_u32 s{S_T}, s{S_T}, s{S_T2}\ns_lshl_b32 s{S_T2}, s3, 6\ns_add_u32 s{S_T}, s{S_T}, s{S_T2}")
        a.need(rng(rs, 4))
        for x in range(4):
            a.e(f"s_waitcnt vmcnt({6-2*x + x})" if False else f"s_waitcnt vmcnt({(3-x)*2 + x})")
            p = pk + 4*(x & 1)
            for f in range(2):
                acc = g.acc[x][f]; q_ = pt + 8*x + 4*f
                for pp_ in range(2):
                    a.e(f"v_pk_add_f32 {vr(acc+2*pp_,2)}, {vr(acc+2*pp_,2)}, {vr(q_+2*pp_,2)}")
                for d in range(2):
                    src = hr + 4*x + 2*f + d
                    a.e(f"v_lshlrev_b32 v{t0}, 16, v{src}\nv_and_b32 v{t1}, 0xffff0000, v{src}")
                    a.e(f"v_fma_f32 v{t0}, v{acc+2*d}, v{rs+x}, v{t0}\nv_fma_f32 v{t1}, v{acc+2*d+1}, v{rs+x}, v{t1}")
                    a.e(f"v_cvt_pk_bf16_f32 v{p+2*f+d}, v{t0}, v{t1}")
            a.e("s_nop 1")
            a.e(f"v_permlane16_swap_b32 v{p}, v{p+2}\nv_permlane16_swap_b32 v{p+1}, v{p+3}")
            a.e(f"buffer_store_dwordx4 {vr(p,4)}, v{vo}, s[{S_OUT}:{S_OUT+3}], s{S_T} offen")
            if x < 3: a.e(f"s_add_u32 s{S_T}, s{S_T}, {16*2048}")
        self.stamp(C, 14)

if __name__ == "__main__":
    import sys
    diag = "--diag" in sys.argv
    args = [x for x in sys.argv[1:] if not x.startswith("--")]
    out = args[0] if args else "mk.s"
    mk = MK(dict(diag=diag))
    body = mk.build()
    hdr = f"""; Single persistent launch: 256 workgroups (one per CU) x 8 waves (4 MFMA waves + 4 loader/helper waves).
; @launch grid=(256,1,1) block=(512,1,1) lds={LDS_TOTAL}
.amdgcn_target "amdgcn-amd-amdhsa--gfx950"
.text
"""
    open(out, "w").write(hdr + body)
    print("wrote", out, len((hdr+body).splitlines()), "lines")
```

```python
from common import *
from expr import *
import banks, math

def magic_div(d, maxv):
    for sh in (16, 17, 18, 20):
        m = (1 << sh)//d + 1
        if m*maxv < (1 << 32) and m < (1 << 24) and all(((c*m) >> sh) == c//d for c in range(maxv)): return m, sh
    raise RuntimeError

S_XSRD, S_WSRD = 4, 8
S_E0, S_E1, S_E2, S_E3 = 12, 16, 20, 24
S_I, S_J, S_WV, S_T = 28, 29, 30, 31
S_XOFF, S_WOFF, S_RD, S_WR, S_CNT, S_XL, S_WL = 32, 33, 34, 35, 36, 37, 38
S_T2, S_T3, S_T4 = 39, 40, 41
S_WM, S_WN = 42, 43
S_PTR = 44
S_EX = 62
S_ET = [64, 65, 66, 67, 68, 69]
S_LW = 70
S_XB0, S_WB0, S_N, S_K = 72, 73, 74, 75

class Cfg:
    def __init__(self, **kw):
        self.S = 3; self.G = 1; self.BK = 64; self.TM = 128; self.shape = 32
        self.no_mfma = False; self.no_dma = False; self.loaders = False; self.qkvseg = False
        self.__dict__.update(kw)

class G:
    def __init__(self, c, a, v, vLane, vt):
        self.c = c; self.a = a; self.v = v; self.vLane = vLane; self.vt = vt
        c.T = c.shape; c.KS = 16 if c.shape == 32 else 32
        c.NSUB = c.BK//c.KS
        c.nX = c.TM//c.T//c.WM; c.nW = c.TN//c.T//c.WN
        c.AR = 16 if c.shape == 32 else 4
        c.RS = c.TN*2
        c.XB = c.TM*c.BK*2; c.WB = c.BK*c.RS; c.SB = c.XB + c.WB
        c.nXld = c.XB//1024//4; c.nWld = c.WB//1024//4
        assert c.nWld*4096 == c.WB and c.nXld == 4
        c.nld = c.nXld + c.nWld
        c.nsteps = c.K//c.BK
        self.l = V("l"); self.wm = S("wm"); self.wn = S("wn"); self.lw = S("lw")
        self.em = Emitter(a, {"l": vLane}, {"wm": S_WM, "wn": S_WN, "lw": S_LW, "i": S_I, "j": S_J, "kh": 3}, vt, S_ET)
        self.check_banks(); self.plan_reads()
        if not getattr(c, "split", False): self.alloc()
    def wswz(self, row):
        c = self.c; m = c.RS % 256
        if c.shape == 32:
            if m == 128: return ((row >> 1) & 1) << 2
            if m in (64, 192): return C(0)
            return (row & 3) << 2
        if c.korder in ("fn", "fn32"):
            if m == 128: return ((row >> 1) & 3) << 1
            if m in (64, 192): return ((row >> 2) & 1) << 1
            return (row & 7) << 1
        if m == 128: return (((row >> 1) & 1) | (((row >> 3) & 1) << 1)) << 1
        if m in (64, 192): return ((row >> 3) & 1) << 1
        return ((row & 3) | (((row >> 3) & 1) << 2)) << 1
    def wrow(self, ks, j):
        c = self.c; l = self.l
        r = (l >> 2) & 3
        if c.shape == 32:
            h = l >> 5
            return (h*4 + (16*ks + 8*j) if c.korder == "fn" else h*8 + (16*ks + 4*j)) + r
        g = l >> 4
        if c.korder == "fn": return g*4 + (32*ks + 16*j) + r
        if c.korder == "fn32": return (g >> 1)*16 + (g & 1)*4 + (32*ks + 8*j) + r
        return g*8 + (32*ks + 4*j) + r
    def waddr(self, f, ks, j):
        c = self.c; l = self.l
        row = self.wrow(ks, j)
        col = c.fcol(self.wn, f)
        ch = col >> 3
        if c.shape == 32: ch = ch + ((l >> 4) & 1)*2
        ch = ch + ((l >> 1) & 1)
        return row*c.RS + ((ch ^ self.wswz(row)) << 4) + (l & 1)*8 + c.XB
    def xaddr(self, x, ks):
        c = self.c; l = self.l; wm = self.wm
        mt = wm*c.nX + x
        if c.xsrc == "fn":
            return (mt*(4 if c.shape == 32 else 2) + ks)*1024 + l*16
        if c.shape == 32: row = mt*32 + (l & 31); ch = (l >> 5) + 2*ks
        else: row = mt*16 + (l & 15); ch = (l >> 4) + 4*ks
        return row*128 + ((ch ^ ((row >> 1) & 7)) << 4)
    def _tab(self, e):
        c = self.c
        return [e.ev({"l": l, "wm": wm, "wn": wn, "kh": kh}) for kh in range(2) for wm in range(c.WM) for wn in range(c.WN) for l in range(64)]
    def check_banks(self):
        c = self.c
        for x in range(c.nX):
            for ks in range(c.NSUB):
                t = self._tab(self.xaddr(x, ks))
                for w in range(len(t)//64): assert banks.conflicts_b128(t[64*w:64*w+64]) == 0, "X conflict"
        for f in range(c.nW):
            for ks in range(c.NSUB):
                for j in range(2):
                    t = self._tab(self.waddr(f, ks, j))
                    for w in range(len(t)//64): assert banks.conflicts_b64(t[64*w:64*w+64]) == 0, ("W conflict", f, ks, j)
    def plan_reads(self):
        c = self.c
        def plan(keys, fn):
            base = []; cls = {}
            for k in keys:
                t = self._tab(fn(*k)); found = False
                for ci, (bk, bt) in enumerate(base):
                    ds = {p - q for p, q in zip(t, bt)}
                    if len(ds) == 1 and 0 <= min(ds) < 65536: cls[k] = (ci, ds.pop()); found = True; break
                if not found: base.append((k, t)); cls[k] = (len(base)-1, 0)
            return [b[0] for b in base], cls
        self.xbase, self.xcls = plan([(x, ks) for ks in range(c.NSUB) for x in range(c.nX)], self.xaddr)
        self.wbase, self.wcls = plan([(f, ks, j) for ks in range(c.NSUB) for f in range(c.nW) for j in range(2)], self.waddr)
    def alloc(self):
        self.alloc_loader(self.v); self.alloc_compute(self.v)
    def alloc_loader(self, v):
        c = self.c
        self.vXsrc = [v.alloc() for _ in range(4 if c.xsrc == "rm" else 1)]
        self.vWsrc = [v.alloc() for _ in range(c.nWld)]
    def bind(self, a, vLane, vt, tmp2=None):
        self.a = a; self.vLane = vLane; self.vt = vt
        self.em = Emitter(a, {"l": vLane}, {"wm": S_WM, "wn": S_WN, "lw": S_LW, "i": S_I, "j": S_J, "kh": 3}, vt, S_ET)
        if tmp2: self.v_tmp2 = tmp2
    def alloc_compute(self, v):
        c = self.c
        self.vXl = [v.alloc() for _ in self.xbase]; self.vXa = [v.alloc() for _ in self.xbase]
        self.vWl = [v.alloc() for _ in self.wbase]; self.vWa = [v.alloc() for _ in self.wbase]
        self.fX = [[[v.alloc(4, 4) for x in range(c.nX)] for g in range(c.G)] for s in range(2)]
        self.fW = [[[v.alloc(4, 4) for f in range(c.nW)] for g in range(c.G)] for s in range(2)]
        self.frag0 = self.fX[0][0][0]; self.frag_end = v.n
        self.acc = [[v.alloc(c.AR, 4) for f in range(c.nW)] for x in range(c.nX)]
    def setup_dma(self):
        c, a, em = self.c, self.a, self.em
        l, lw = self.l, self.lw
        if c.xsrc == "fn":
            em.vemit(lw*4096 + l*16, self.vXsrc[0])
            a.e(f"s_mul_i32 s{S_XOFF}, s{S_I}, {(c.Kx//64)*16384}")
            if c.xoff0: a.e(f"s_add_u32 s{S_XOFF}, s{S_XOFF}, {c.xoff0}") if isinstance(c.xoff0, int) else c.xoff0(a)
        else:
            for n in range(4):
                row = lw*32 + (l >> 3) + 8*n
                ch = (l & 7) ^ (((l >> 4) + 4*n) & 7)
                em.vemit(row*c.ldx + (ch << 4) - n*1024, self.vXsrc[n])
            a.e(f"s_mul_i32 s{S_XOFF}, s{S_I}, {128*c.ldx}")
        cpr = c.TN//8
        mg, sh = magic_div(cpr, c.nWld*256)
        t = self.vt
        for n in range(c.nWld):
            flat = lw*(c.nWld*64) + l + n*64
            vr_, vp = self.v_tmp2
            em.vemit((flat*mg) >> sh, vr_)
            em.vr["row"] = vr_; row = V("row")
            em.vemit(flat - row*cpr, vp); em.vr["p"] = vp; p = V("p")
            ch = p ^ self.wswz(row)
            if c.qkvseg: colb = ((ch >> 3) << 11) + ((ch & 7) << 4)
            else: colb = ch << 4
            em.vemit(row*c.ldw + colb - (n % 4)*1024, self.vWsrc[n])
        c.woff(a)
        a.e(f"s_lshl_b32 s{S_XL}, s{S_LW}, 12")
        a.e(f"s_mul_i32 s{S_WL}, s{S_LW}, {c.nWld*1024}\ns_add_u32 s{S_WL}, s{S_WL}, {c.XB}")
    def setup_reads(self):
        em = self.em
        for k, r in zip(self.xbase, self.vXl): em.vemit(self.xaddr(*k), r)
        for k, r in zip(self.wbase, self.vWl): em.vemit(self.waddr(*k), r)
    def dma_x(self):
        c = self.c; out = []
        if c.no_dma: return []
        out.append(f"s_add_u32 m0, s{S_WR}, s{S_XL}")
        for n in range(4):
            src = self.vXsrc[n] if c.xsrc == "rm" else self.vXsrc[0]
            out.append(("s_nop 0\n" if n == 0 else "") + f"buffer_load_dwordx4 v{src}, s[{S_XSRD}:{S_XSRD+3}], s{S_XOFF} offen offset:{n*1024} {c.xflag} lds")
        if not getattr(c, "rot", False): out.append(f"s_add_u32 s{S_XOFF}, s{S_XOFF}, {16384 if c.xsrc == 'fn' else c.BK*2}")
        return out
    def dma_w(self):
        c = self.c; out = []
        if c.no_dma: return []
        for n in range(c.nWld):
            if n % 4 == 0:
                out.append(f"s_add_u32 s{S_T}, s{S_WR}, s{S_WL}\ns_add_u32 m0, s{S_T}, {n*1024}")
            out.append(("s_nop 0\n" if n % 4 == 0 else "") + f"buffer_load_dwordx4 v{self.vWsrc[n]}, s[{S_WSRD}:{S_WSRD+3}], s{S_WOFF} offen offset:{(n % 4)*1024} lds")
        if not getattr(c, "rot", False): out.append(f"s_add_u32 s{S_WOFF}, s{S_WOFF}, {c.BK*c.ldw}")
        return out
    def rot_init(self):
        return [f"s_mov_b32 s{S_XB0}, s{S_XOFF}\ns_mov_b32 s{S_WB0}, s{S_WOFF}"] if getattr(self.c, "rot", False) else []
    def stage_off(self, n=None):
        c = self.c
        if not getattr(c, "rot", False): return []
        xd = 16384 if c.xsrc == "fn" else c.BK*2; wd = c.BK*c.ldw
        if n == 0: k = f"s_mov_b32 s{S_K}, s{S_I}"
        elif n is not None: k = f"s_mov_b32 s{S_K}, {n-1}\ns_cmp_ge_u32 s{S_K}, s{S_I}\ns_addc_u32 s{S_K}, s{S_K}, 0"
        else: k = f"s_cmp_ge_u32 s{S_N}, s{S_I}\ns_addc_u32 s{S_K}, s{S_N}, 0\ns_add_u32 s{S_N}, s{S_N}, 1"
        return [k + f"\ns_mul_i32 s{S_XOFF}, s{S_K}, {xd}\ns_add_u32 s{S_XOFF}, s{S_XOFF}, s{S_XB0}\ns_mul_i32 s{S_WOFF}, s{S_K}, {wd}\ns_add_u32 s{S_WOFF}, s{S_WOFF}, s{S_WB0}"]
    def dma_list(self, n=None): return self.stage_off(n) + self.dma_x() + self.dma_w()
    def reads(self, set_, grp):
        c = self.c; out = []
        for g in range(c.G):
            ks = grp*c.G + g
            def xr(x):
                d = self.fX[set_][g][x]; ci, imm = self.xcls[(x, ks)]
                return (f"ds_read_b128 {vr(d,4)}, v{self.vXa[ci]} offset:{imm}", rng(d,4))
            def wr(f):
                d = self.fW[set_][g][f]; o = []
                for j in range(2):
                    ci, imm = self.wcls[(f, ks, j)]
                    o.append((f"ds_read_b64_tr_b16 {vr(d+2*j,2)}, v{self.vWa[ci]} offset:{imm}", rng(d+2*j,2)))
                return o
            order = self.mfma_order()
            seen = set()
            for (x, f) in order:
                if ("x", x) not in seen: seen.add(("x", x)); out.append(xr(x))
                if ("f", f) not in seen: seen.add(("f", f)); out += wr(f)
        return out
    def mfma_order(self):
        c = self.c
        o = []
        for f in range(c.nW):
            xs = range(c.nX) if f % 2 == 0 else reversed(range(c.nX))
            o += [(x, f) for x in xs]
        return o
    def mfmas(self, set_, first=False):
        c = self.c; out = []
        op = "v_mfma_f32_32x32x16_bf16" if c.shape == 32 else "v_mfma_f32_16x16x32_bf16"
        for g in range(c.G):
            for (x, f) in self.mfma_order():
                X = self.fX[set_][g][x]; W = self.fW[set_][g][f]; acc = self.acc[x][f]
                A, B = (W, X) if c.orient(f) == "mn" else (X, W)
                srcc = "0" if (first and g == 0) else vr(acc, c.AR)
                out.append((f"{op} {vr(acc,c.AR)}, {vr(A,4)}, {vr(B,4)}, {srcc}", list(rng(X,4)) + list(rng(W,4))))
        return out
    def group(self, set_, reads, extra, first=False, late=()):
        a = self.a; c = self.c
        ms = self.mfmas(set_, first); n = len(ms)
        reads = list(reads); extra = list(extra); late = list(late)
        nearly = max(1, int(n*c.read_frac))
        nr = len(reads); ne = len(extra); nl = len(late)
        done_r = 0; done_e = 0; done_l = 0
        startn = int(c.extra_start*n); span = max(1, n - 1 - startn)
        for i, (ins, regs) in enumerate(ms):
            a.need(regs)
            if not c.no_mfma: a.e(ins)
            want = min(nr, -(-nr*(i+1)//nearly))
            while done_r < want: a.lds_rd(*reads[done_r]); done_r += 1
            if i >= startn:
                wante = min(ne, -(-ne*(i+1-startn)//span))
                while done_e < wante: a.e(extra[done_e]); done_e += 1
            if done_r == nr and i >= nearly and i < n-1:
                left = n - 1 - i
                cnt = -(-(nl - done_l)//left)
                for _ in range(cnt):
                    if "s_cmp_lg" in late[done_l]:
                        while done_e < ne: a.e(extra[done_e]); done_e += 1
                    a.e(late[done_l]); done_l += 1
        while done_r < nr: a.lds_rd(*reads[done_r]); done_r += 1
        while done_e < ne: a.e(extra[done_e]); done_e += 1
        while done_l < nl: a.e(late[done_l]); done_l += 1
        assert done_e == ne
    def set_read_addrs(self):
        return [f"v_add_u32 v{r}, s{S_RD}, v{l}" for l, r in zip(self.vXl + self.vWl, self.vXa + self.vWa)]
    def adv_slot(self, s):
        c = self.c
        return f"s_add_u32 s{s}, s{s}, {c.SB}\ns_cmp_eq_u32 s{s}, {c.S*c.SB}\ns_cselect_b32 s{s}, 0, s{s}"

    def compute_loop(self, pre_issue=None, post_issue=None):
        c, a = self.c, self.a
        NG = c.NSUB//c.G; S = c.S; ns = c.nsteps
        own = not c.loaders
        nld = c.nld if (own and not c.no_dma) else 0
        if pre_issue: pre_issue()
        if own:
            a.e(f"s_mov_b32 s{S_WR}, 0")
            for s in range(S):
                for ins in self.dma_list(): a.e(ins)
                a.e(f"s_add_u32 s{S_WR}, s{S_WR}, {c.SB}")
        if post_issue: post_issue(S*nld)
        a.e(f"s_mov_b32 s{S_RD}, 0\ns_mov_b32 s{S_WR}, 0")
        for ins in self.set_read_addrs(): a.e(ins)
        a.lds_drain(f"vmcnt({(S-1)*nld})" if own else "")
        a.e("s_barrier")
        stamp(a, 1); stamp(a, 6, cyc=True)
        for r in self.reads(0, 0): a.lds_rd(*r)
        st = 0
        for g in range(NG-1):
            self.group(st, self.reads(st ^ 1, g+1), [], first=(g == 0)); st ^= 1
        def boundary(vm):
            a.lds_drain(f"vmcnt({vm})" if (vm is not None and own) else "")
            a.e("s_barrier")
        a.e(self.adv_slot(S_RD))
        for ins in self.set_read_addrs(): a.e(ins)
        boundary((S-2)*nld)
        par = st
        def body(t_issue, vm, loopctl=False):
            st = par
            dma = self.dma_list() if (t_issue and own) else []
            chunks = [dma[len(dma)*i//NG: len(dma)*(i+1)//NG] for i in range(NG)]
            for g in range(NG):
                extra = list(chunks[g]); late = []
                if g == NG-1:
                    late.append((f"s_mov_b32 s{S_WR}, s{S_RD}\n" if own else "") + self.adv_slot(S_RD))
                    late += self.set_read_addrs()
                    if loopctl: late.append(f"s_sub_u32 s{S_CNT}, s{S_CNT}, 1\ns_cmp_lg_u32 s{S_CNT}, 0")
                self.group(st, self.reads(st ^ 1, g), extra, late=late); st ^= 1
            a.lds_drain(f"vmcnt({vm})" if (vm is not None and own) else "")
        assert NG % 2 == 0
        nb = ns - S
        if nb > 0:
            a.e(f"s_mov_b32 s{S_CNT}, {nb}\ns_branch L_loop_{c.name}")
            a.label(f"L_top_{c.name}")
            a.e("s_barrier")
            a.label(f"L_loop_{c.name}")
            body(True, (S-2)*nld, loopctl=True)
            a.e(f"s_cbranch_scc1 L_top_{c.name}\ns_barrier")
        for t in range(max(nb, 0), ns-1):
            rem = max(0, (ns-1) - (t+2))
            body(False, min(rem, S-2)*nld if t+2 <= ns-1 else None)
            a.e("s_barrier")
        self.group(par, [], [])
        a.e("s_nop 15")
        stamp(a, 2); stamp(a, 7, cyc=True)

    def loader_loop(self):
        c, a = self.c, self.a
        S = c.S; ns = c.nsteps; nld = 0 if c.no_dma else c.nld
        a.e(f"s_mov_b32 s{S_WR}, 0")
        for s in range(S):
            for ins in self.dma_list(): a.e(ins)
            a.e(f"s_add_u32 s{S_WR}, s{S_WR}, {c.SB}")
        a.e(f"s_mov_b32 s{S_WR}, 0")
        a.e(f"s_waitcnt vmcnt({(S-1)*nld})\ns_barrier")
        a.e(f"s_waitcnt vmcnt({(S-2)*nld})\ns_barrier")
        nb = ns - S
        if nb > 0:
            a.e(f"s_mov_b32 s{S_CNT}, {nb}")
            a.label(f"L_lloop_{c.name}")
            for ins in self.dma_list(): a.e(ins)
            a.e(self.adv_slot(S_WR))
            a.e(f"s_waitcnt vmcnt({(S-2)*nld})\ns_barrier")
            a.e(f"s_sub_u32 s{S_CNT}, s{S_CNT}, 1\ns_cmp_lg_u32 s{S_CNT}, 0\ns_cbranch_scc1 L_lloop_{c.name}")
        for t in range(max(nb, 0), ns-1):
            rem = max(0, (ns-1) - (t+2))
            if t+2 <= ns-1: a.e(f"s_waitcnt vmcnt({min(rem, S-2)*nld})")
            a.e("s_barrier")
```

```python
from gemm2 import *
import common

NAME = "sequential_preLN__sliding_block__dense_activation_relu__prompt_kernel"
L_SPARE = 122880
L_SIDE = 159744
SD_MEAN1, SD_RSTD1, SD_CSQ = L_SIDE, L_SIDE+512, L_SIDE+1024
SD_MEAN2, SD_RSTD2, SD_CS1 = L_SIDE+2048, L_SIDE+2560, L_SIDE+3072
SD_CNT = L_SIDE + 3968
SD_TOK = SD_CNT + 32
LDS_TOTAL = 163840
AT_K = lambda hh: hh*49152
AT_V = lambda hh: hh*49152 + 24576
AT_Q0 = 98304
WS_KV = 4*MB
WS_ST1 = 36*MB; WS_CSQ = 36*MB + 64*1024; WS_CS1 = 36*MB + 512*1024; WS_ST2 = 37*MB
WS_XCH = 44*MB
WS_FLAG = 52*MB
F_H, F_H1, F_O = WS_FLAG, WS_FLAG + 2048, WS_FLAG + 4096
F_KV, F_CS1 = WS_FLAG + 6144, WS_FLAG + 8192
F_P = WS_FLAG + 12288
F_S2 = WS_FLAG + 16384
F_Q = WS_FLAG + 10240
OOB = 0x7ffffff0
WS_BYTES = 56*MB
S_WS, S_DBG, S_OUT = S_E0, S_E1, S_E2
POLL_MAX = 400000
QSCALE = (DH ** -0.5) * 1.4426950408889634

class VM:
    def __init__(s, a): s.a = a; s.q = []
    def iss(s, tag, n=1): s.q += [tag]*n
    def count_after(s, tag):
        idx = max(i for i, t in enumerate(s.q) if t == tag)
        return len(s.q) - 1 - idx
    def wait(s, tag, extra=""):
        if tag not in s.q: return
        n = min(63, s.count_after(tag))
        s.a.e(f"s_waitcnt vmcnt({n}) {extra}".strip())
        s.q = s.q[len(s.q)-n:] if n else []
    def drain(s): s.a.e("s_waitcnt vmcnt(0)"); s.q = []

class MK:
    def __init__(self, opts=None):
        self.o = dict(diag=False, pf_first=False, pf_weights=True, stop_after=None, tlb=False, codepf=True)
        self.o.update(opts or {})
        self.C = Asm(); self.L = Asm(); self.A = Asm(); self.tail = Asm()
        self.nbar = 0; self.nl = 0; self.lnames = []
    def bar(self):
        self.C.e("s_barrier"); self.L.e("s_barrier")
    def stamp(self, a, k):
        if self.o["diag"]:
            a.e(f"s_memrealtime s[88:89]\ns_waitcnt lgkmcnt(0)\nv_writelane_b32 v255, s88, {k}")
            a.lq = []
    def ptr(self, o): return (S_PTR+16, S_PTR+17) if o == A_WS else (S_PTR + o//4, S_PTR + o//4 + 1)
    def poll_test(self, a, vtmp, x2=False, token=True):
        if token: a.e(f"v_cmp_eq_u32 vcc, s1, v{vtmp}\ns_nop 4\ns_cmp_eq_u64 vcc, exec")
        else: a.e(f"v_cmp_ne_u32 vcc, 0, v{vtmp}\ns_nop 4\ns_cmp_eq_u64 vcc, exec")
    def poll(self, a, srd_, vaddr, vtmp, label, byte=False, x2=False, token=True):
        a.e(f"s_mov_b32 s{S_CNT}, {POLL_MAX}")
        a.label(f"L_poll_{label}")
        ld = f"buffer_load_dwordx2 {vr(vtmp,2)}" if x2 else f"buffer_load_{'ubyte' if byte else 'dword'} v{vtmp}"
        a.e(f"{ld}, v{vaddr}, s[{srd_}:{srd_+3}], 0 offen sc1\ns_waitcnt vmcnt(0)")
        self.poll_test(a, vtmp, x2, token)
        a.e(f"s_cbranch_scc1 L_polldone_{label}")
        a.e(f"s_sleep {self.o.get('sleep', 1)}\ns_sub_u32 s{S_CNT}, s{S_CNT}, 1\ns_cmp_lg_u32 s{S_CNT}, 0\ns_cbranch_scc1 L_poll_{label}")
        a.label(f"L_polldone_{label}")
    def one_lane_addr(self, a, dst, soff_reg, only_lw0):
        if only_lw0:
            a.e(f"s_cmp_eq_u32 s{S_LW}, 0\ns_cselect_b32 s{soff_reg}, s{soff_reg}, {hex(OOB)}")
        a.e(f"v_mov_b32 v{dst}, {hex(OOB)}\nv_writelane_b32 v{dst}, s{soff_reg}, 0")
    def signal(self, a, soff_code, vt0, vt1, only_lw0=False, srd_=None, byte=False):
        srd_ = S_WS if srd_ is None else srd_
        a.e(soff_code)
        self.one_lane_addr(a, vt1, S_T, only_lw0)
        a.e(f"v_mov_b32 v{vt0}, s1\nbuffer_store_dword v{vt0}, v{vt1}, s[{srd_}:{srd_+3}], 0 offen sc1")
    def off_ijw(self, base, wreg):
        return f"s_lshl_b32 s{S_T}, s{S_I}, 6\ns_lshl_b32 s{S_T2}, s{S_J}, 2\ns_add_u32 s{S_T}, s{S_T}, s{S_T2}\ns_add_u32 s{S_T}, s{S_T}, s{wreg}\ns_lshl_b32 s{S_T}, s{S_T}, 2\ns_add_u32 s{S_T}, s{S_T}, {base}"
    def off_ij(self, base):
        return f"s_lshl_b32 s{S_T}, s{S_I}, 5\ns_add_u32 s{S_T}, s{S_T}, s{S_J}\ns_lshl_b32 s{S_T}, s{S_T}, 2\ns_add_u32 s{S_T}, s{S_T}, {base}"
    def off_ji(self, base):
        return f"s_lshl_b32 s{S_T}, s{S_J}, 5\ns_add_u32 s{S_T}, s{S_T}, s{S_I}\ns_lshl_b32 s{S_T}, s{S_T}, 2\ns_add_u32 s{S_T}, s{S_T}, {base}"
    def signal_last(self, a, k, nwaves, soff_code, vt0, vt1, label):
        a.e(f"v_mov_b32 v{vt0}, {SD_CNT + 4*k}\nv_mov_b32 v{vt1}, 1\ns_mov_b64 exec, 1")
        a.e(f"ds_add_rtn_u32 v{vt0}, v{vt0}, v{vt1}")
        a.e(soff_code)
        a.e(f"s_waitcnt lgkmcnt(0)\nv_readfirstlane_b32 s{S_T2}, v{vt0}\nv_mov_b32 v{vt0}, 0\nv_mov_b32 v{vt1}, s1\ns_nop 1\ns_cmp_eq_u32 s{S_T2}, {nwaves-1}\ns_cbranch_scc0 L_notlast_{label}")
        a.e(f"buffer_store_dword v{vt1}, v{vt0}, s[{S_WS}:{S_WS+3}], s{S_T} offen sc1")
        a.label(f"L_notlast_{label}")
        a.e("s_mov_b64 exec, -1"); a.lq = []
    def group_words(self, a, dst, base, grp_sreg):
        a.e(f"s_lshl_b32 s{S_T}, s{grp_sreg}, 7\ns_add_u32 s{S_T}, s{S_T}, {base}\nv_and_b32 v{dst}, 15, v{self.vL}\nv_lshlrev_b32 v{dst}, 2, v{dst}\nv_add_u32 v{dst}, s{S_T}, v{dst}")
    def row_words(self, a, dst, base, stride_shift, lane_shift):
        a.e(f"s_lshl_b32 s{S_T}, s{S_I}, {stride_shift}\ns_add_u32 s{S_T}, s{S_T}, {base}\nv_lshlrev_b32 v{dst}, {lane_shift}, v{self.vL}\nv_add_u32 v{dst}, s{S_T}, v{dst}")
    def lane0(self, a, body, label):
        a.e(f"v_cmp_eq_u32 vcc, 0, v{self.vL}\ns_and_saveexec_b64 s[{S_EX}:{S_EX+1}], vcc")
        a.e(body)
        a.e(f"s_mov_b64 exec, s[{S_EX}:{S_EX+1}]")
    def only_lw0(self, a, label, fn):
        a.e(f"s_cmp_lg_u32 s{S_LW}, 0\ns_cbranch_scc1 L_skip_{label}")
        fn()
        a.label(f"L_skip_{label}")

    def cfgs(self):
        base = dict(shape=16, loaders=True, split=True, xflag="", xoff0=0, read_frac=0.5, extra_start=0.3, WM=2, WN=2)
        q = Cfg(name="q", TN=192, K=1024, Kx=1024, xsrc="rm", ldx=2048, korder="std", ldw=6144, qkvseg=True, S=3,
                fcol=lambda wn, f: wn*32 + (64*(f//2) + 16*(f % 2)), orient=lambda f: "nm" if f >= 4 else "mn",
                woff=lambda a: a.e(f"s_lshl_b32 s{S_WOFF}, s{S_J}, 7"), **base)
        o = Cfg(name="o", TN=64, K=1024, Kx=1024, xsrc="fn", korder="fn32", ldw=2048, S=5,
                fcol=lambda wn, f: wn*32 + 16*f, orient=lambda f: "mn",
                woff=lambda a: a.e(f"s_lshl_b32 s{S_WOFF}, s{S_J}, 7"), **base)
        f1 = Cfg(name="f1", TN=224, K=1024, Kx=1024, xsrc="fn", korder="fn", ldw=7168, S=3,
                 fcol=lambda wn, f: (wn*128 + 16*f) if f < 6 else (wn*16 + 96), orient=lambda f: "mn",
                 woff=lambda a: a.e(f"s_mul_i32 s{S_WOFF}, s{S_J}, 448"), **base)
        def woff2(a):
            a.e(f"s_and_b32 s{S_T}, s{S_J}, 7\ns_lshl_b32 s{S_WOFF}, s{S_T}, 8\ns_lshr_b32 s{S_T}, s{S_J}, 3\ns_mul_i32 s{S_T}, s{S_T}, {1792*2048}\ns_add_u32 s{S_WOFF}, s{S_WOFF}, s{S_T}")
        f2 = Cfg(name="f2", TN=128, K=1792, Kx=3584, xsrc="fn", korder="fn", ldw=2048, S=4,
                 fcol=lambda wn, f: (wn*64 + S("kh")*32 + 16*f) if f < 2 else (wn*64 + (S("kh") ^ 1)*32 + 16*(f-2)), orient=lambda f: "mn", woff=woff2, **base)
        for c in (o, f1, f2): c.xflag = "sc1"
        q.rot = True; f1.rot = True
        return q, o, f1, f2

    def xoff_fn(self, a, c, wsbase, khalf=False):
        a.e(f"s_mul_i32 s{S_XOFF}, s{S_I}, {(c.Kx//64)*16384}\ns_add_u32 s{S_XOFF}, s{S_XOFF}, {wsbase}")
        if khalf:
            a.e(f"s_lshr_b32 s{S_T}, s{S_J}, 3\ns_mul_i32 s{S_T}, s{S_T}, {28*16384}\ns_add_u32 s{S_XOFF}, s{S_XOFF}, s{S_T}")

    def build(self):
        C, L = self.C, self.L
        E = Asm()
        q, o, f1, f2 = self.cfgs()
        self.vL = 1; vt = [2, 3, 4, 5, 6, 7]; tmp2 = (8, 9); self.vL16 = 10; self.vZero = 11
        self.vt = vt
        gq, go, g1, g2 = [G(c, C, None, self.vL, vt) for c in (q, o, f1, f2)]
        self.g = (gq, go, g1, g2)
        E.e(f"s_cmp_ge_u32 s2, 256\ns_cbranch_scc1 L_end")
        if self.o.get("codepf", True):
            E.e("s_getpc_b64 s[96:97]")
            E.label("L_pc")
            E.e("v_lshlrev_b32 v2, 7, v0\ns_mov_b32 s3, L_end-L_pc\nv_min_u32 v2, s3, v2\nglobal_load_dword v254, v2, s[96:97]")
        E.e(f"s_load_dwordx16 s[{S_PTR}:{S_PTR+15}], s[0:1], 0\ns_load_dwordx2 s[{S_PTR+16}:{S_PTR+17}], s[0:1], 64")
        if self.o["diag"]:
            E.e("v_mov_b32 v255, 0\nv_mov_b32 v253, 0"); self.stamp(E, 0)
        E.e(f"s_and_b32 s{S_T}, s2, 7\ns_lshr_b32 s{S_T2}, s2, 3")
        E.e(f"s_lshr_b32 s{S_I}, s{S_T}, 2\ns_and_b32 s{S_J}, s{S_T}, 3\ns_lshl_b32 s{S_I}, s{S_I}, 3\ns_lshl_b32 s{S_J}, s{S_J}, 2")
        E.e(f"s_lshr_b32 s{S_T}, s{S_T2}, 2\ns_and_b32 s{S_T2}, s{S_T2}, 3\ns_add_u32 s{S_I}, s{S_I}, s{S_T}\ns_add_u32 s{S_J}, s{S_J}, s{S_T2}")
        E.e(f"v_and_b32 v{self.vL}, 63, v0\nv_lshrrev_b32 v2, 6, v0\ns_nop 0\nv_readfirstlane_b32 s{S_WV}, v2\nv_lshlrev_b32 v{self.vL16}, 4, v{self.vL}\nv_mov_b32 v{self.vZero}, 0\ns_nop 1")
        E.e(f"s_and_b32 s{S_LW}, s{S_WV}, 3\ns_lshr_b32 s{S_WM}, s{S_LW}, 1\ns_and_b32 s{S_WN}, s{S_LW}, 1")
        E.e(f"s_cmp_ge_u32 s{S_WV}, 4\ns_cbranch_scc1 L_loader")
        lv = Regs(12, 64)
        gq.alloc_loader(lv); go.alloc_loader(lv); g1.alloc_loader(lv); g2.alloc_loader(lv)
        self.lv_end = lv.n
        self.phase_q(gq, g1)
        self.attention()
        stop = self.o["stop_after"]
        self.phase_o(go)
        self.phase_f1(g1)
        self.phase_f2(g2)
        if self.o["diag"]:
            self.stamp(C, 15)
            C.e(f"s_cmp_lg_u32 s{S_WV}, 0\ns_cbranch_scc1 L_end")
            C.e(f"s_lshl_b32 s{S_T}, s2, 7\ns_add_u32 s{S_T}, s{S_T}, {common.WS_STAMP}\nv_lshlrev_b32 v2, 2, v{self.vL}")
            C.e(f"v_cmp_gt_u32 vcc, 32, v{self.vL}\ns_and_saveexec_b64 s[{S_EX}:{S_EX+1}], vcc")
            C.e(f"buffer_store_dword v255, v2, s[{S_WS}:{S_WS+3}], s{S_T} offen")
        C.e("s_branch L_end")
        if self.o["diag"]:
            L.e(f"s_cmp_lg_u32 s{S_WV}, 4\ns_cbranch_scc1 L_end")
            L.e(f"s_lshl_b32 s{S_T}, s2, 9\ns_add_u32 s{S_T}, s{S_T}, {common.WS_STAMP + 131072}\nv_lshlrev_b32 v2, 2, v{self.vL}")
            L.e(f"buffer_store_dword v255, v2, s[{S_WS}:{S_WS+3}], s{S_T} offen\nbuffer_store_dword v253, v2, s[{S_WS}:{S_WS+3}], s{S_T} offen offset:256")
        txt = head(NAME) + E.text() + C.text() + "L_loader:\n" + L.text() + "  s_branch L_end\n" + self.A.text() + self.tail.text() + "L_end:\n  s_endpgm\n" + kd(NAME)
        return txt

    def srds_common(self, a):
        a.e("s_waitcnt lgkmcnt(0)")
        srd(a, S_WS, *self.ptr(A_WS), WS_BYTES)
        srd(a, S_DBG, *self.ptr(A_DBG), 256)

    def phase_q(self, g, g1):
        C, L, c = self.C, self.L, g.c
        vL, vt = self.vL, self.vt
        g.bind(L, vL, vt, (8, 9)); vm = VM(L)
        em = g.em
        L.e("s_setprio 1")
        g.setup_dma()
        if self.o.get("lpro"): self.lstamp("setup")
        L.e("s_waitcnt lgkmcnt(0)")
        srd(L, S_XSRD, *self.ptr(A_X), M*D*2)
        srd(L, S_WSRD, *self.ptr(A_WQKV), D*3*D*2)
        def issue(t):
            for ins in g.dma_list(t): L.e(ins)
            vm.iss(("st", t), c.nld)
        for ins in g.rot_init(): L.e(ins)
        L.e(f"s_mov_b32 s{S_WR}, 0")
        for s in range(2):
            issue(s); L.e(f"s_add_u32 s{S_WR}, s{S_WR}, {c.SB}")
            if self.o.get("lpro"): self.lstamp("iss")
        srd(L, S_WS, *self.ptr(A_WS), WS_BYTES); srd(L, S_DBG, *self.ptr(A_DBG), 256)
        sv = Regs(64, 250)
        ones = sv.alloc(4, 4); wf = [sv.alloc(4, 4) for _ in range(8)]; sacc = [sv.alloc(4, 4) for _ in range(4)]
        vS = [sv.alloc() for _ in range(8)]; ldr = sv.alloc(32, 4)
        t0, t1, t2 = vt[0:3]
        L.e(f"v_lshlrev_b32 v{t0}, 2, v{vL}\nv_add_u32 v{t0}, {SD_CNT}, v{t0}\nv_cmp_gt_u32 vcc, 8, v{vL}\ns_and_saveexec_b64 s[{S_EX}:{S_EX+1}], vcc")
        L.lds_other(f"ds_write_b32 v{t0}, v{self.vZero}"); L.e(f"s_mov_b64 exec, s[{S_EX}:{S_EX+1}]")
        for k in range(4): L.e(f"v_mov_b32 v{ones+k}, 0x3f803f80")
        vL4 = sv.alloc(); rq = [sv.alloc() for _ in range(4)]
        L.e(f"v_lshlrev_b32 v{vL4}, 2, v{vL}")
        cls_q = self.csum_setup(g, 3, rq)
        csq_code = f"s_lshl_b32 s{S_T}, s{S_I}, 4\ns_add_u32 s{S_T}, s{S_T}, s{S_J}\ns_mul_i32 s{S_T2}, s{S_T}, 768\ns_mul_i32 s{S_T}, s{S_LW}, 192\ns_add_u32 s{S_T2}, s{S_T2}, s{S_T}\ns_add_u32 s{S_T2}, s{S_T2}, {WS_CSQ}"
        if self.o.get("lpro"): self.lstamp("pre")
        vm.wait(("st", 0))
        if self.o.get("lpro"): self.lstamp("land")
        L.lds_drain(); self.bar_L_only()
        issue(2); L.e(f"s_mov_b32 s{S_WR}, 0")
        self.csum_reads(3, cls_q, rq, wf)
        vm.wait(("st", 1)); L.lds_drain(); self.bar_L_only()
        ns, S = c.nsteps, c.S
        def hook(t):
            if t == 0: self.csum_finish(vm, 3, 12, ones, wf, sacc, vL4, csq_code)
            if t == 1:
                L.e(f"v_mov_b32 v{vS[2]}, {SD_TOK}\nds_read_b32 v{vS[2]}, v{vS[2]}\ns_waitcnt lgkmcnt(0)\nv_readfirstlane_b32 s1, v{vS[2]}")
            if t == 10:
                t0, t1 = vt[0:2]
                L.e(f"v_and_b32 v{t0}, 15, v{vL}\ns_lshl_b32 s{S_T}, s{S_I}, 5\nv_add_u32 v{t1}, s{S_T}, v{t0}\nv_lshlrev_b32 v{t0}, 5, v{t0}\nv_add_u32 v{t0}, s{S_J}, v{t0}")
                L.e(f"v_and_b32 v{vS[7]}, 16, v{vL}\nv_cmp_eq_u32 vcc, 0, v{vS[7]}\ns_nop 1\nv_cndmask_b32 v{vS[7]}, v{t0}, v{t1}, vcc\nv_lshlrev_b32 v{vS[7]}, 2, v{vS[7]}\nv_add_u32 v{vS[7]}, {F_Q}, v{vS[7]}")
                L.e(f"buffer_load_dword v{vS[6]}, v{vS[7]}, s[{S_WS}:{S_WS+3}], 0 offen sc1"); vm.iss("pollq")
            if t == 11:
                vm.wait("pollq")
                self.poll_test(L, vS[6])
                L.e("s_cbranch_scc1 L_qready")
                self.poll(L, S_WS, vS[7], vS[6], "q")
                L.label("L_qready")
                L.e(f"s_mul_i32 s{S_T2}, s{S_J}, 768\ns_mul_i32 s{S_T}, s{S_LW}, 192\ns_add_u32 s{S_T2}, s{S_T2}, s{S_T}\ns_add_u32 s{S_T2}, s{S_T2}, {WS_CSQ}")
                L.e(f"v_lshlrev_b32 v{vS[1]}, 2, v{vL}\nv_mov_b32 v{vS[2]}, {hex(OOB)}\nv_cmp_gt_u32 vcc, 48, v{vL}\ns_nop 1\nv_cndmask_b32 v{vS[1]}, v{vS[2]}, v{vS[1]}, vcc")
                for p in range(16):
                    L.e(f"buffer_load_dword v{ldr+p}, v{vS[1]}, s[{S_WS}:{S_WS+3}], s{S_T2} offen sc1\ns_add_u32 s{S_T2}, s{S_T2}, {16*768}")
                L.e(f"s_lshl_b32 s{S_T2}, s{S_I}, 7\ns_lshl_b32 s{S_T}, s{S_LW}, 5\ns_add_u32 s{S_T2}, s{S_T2}, s{S_T}\ns_lshl_b32 s{S_T2}, s{S_T2}, 3\ns_add_u32 s{S_T2}, s{S_T2}, {WS_ST1}")
                L.e(f"v_and_b32 v{vS[3]}, 31, v{vL}\nv_lshlrev_b32 v{vS[3]}, 3, v{vS[3]}\nbuffer_load_dwordx2 {vr(ldr+16,2)}, v{vS[3]}, s[{S_WS}:{S_WS+3}], s{S_T2} offen sc1")
                vm.iss("qld", 17)
            if t == 13:
                vm.wait("qld")
                for p in range(1, 16): L.e(f"v_add_f32 v{ldr}, v{ldr}, v{ldr+p}")
                L.e(f"s_mul_i32 s{S_T}, s{S_LW}, 192\ns_add_u32 s{S_T}, s{S_T}, {SD_CSQ}\nv_lshlrev_b32 v{vS[1]}, 2, v{vL}\nv_add_u32 v{vS[1]}, s{S_T}, v{vS[1]}")
                L.e(f"v_cmp_gt_u32 vcc, 48, v{vL}\ns_and_saveexec_b64 s[{S_EX}:{S_EX+1}], vcc\nds_write_b32 v{vS[1]}, v{ldr}\ns_mov_b64 exec, s[{S_EX}:{S_EX+1}]")
                L.e(f"v_and_b32 v{vS[3]}, 31, v{vL}\ns_lshl_b32 s{S_T}, s{S_LW}, 5\nv_add_u32 v{vS[3]}, s{S_T}, v{vS[3]}\nv_lshlrev_b32 v{vS[3]}, 2, v{vS[3]}\nv_add_u32 v{vS[3]}, {SD_MEAN1}, v{vS[3]}")
                L.e(f"ds_write_b32 v{vS[3]}, v{ldr+16}\nds_write_b32 v{vS[3]}, v{ldr+17} offset:512")
                L.e("s_waitcnt lgkmcnt(0)"); L.lq = []
        for t in range(ns-1):
            if t + S <= ns-1:
                issue(t+S); L.e(g.adv_slot(S_WR))
            hook(t)
            if t+2 <= ns-1 and ("st", t+2) in vm.q: vm.wait(("st", t+2))
            L.lds_drain()
            self.bar_L_only()
        g.bind(C, vL, vt, (8, 9))
        cv = Regs(12, 254); g.alloc_compute(cv)
        g.a = C
        C.e("s_setprio 3")
        a0 = g.acc[0][0]; xr = a0; un = a0 + 16; vS = [a0 + 48 + k for k in range(6)]
        C.e("s_waitcnt lgkmcnt(0)")
        self.stamp(C, 16)
        srd(C, S_XSRD, *self.ptr(A_X), M*D*2)
        srd(C, S_DBG, *self.ptr(A_DBG), 256)
        C.e(f"s_or_b32 s{S_T}, s2, s{S_LW}\ns_cmp_lg_u32 s{S_T}, 0\ns_cbranch_scc1 L_notok")
        C.e(f"s_memrealtime s[88:89]\ns_waitcnt lgkmcnt(0)\ns_or_b32 s88, s88, 1\nv_mov_b32 v{vt[0]}, s88")
        self.lane0(C, f"buffer_store_dword v{vt[0]}, v{self.vZero}, s[{S_DBG}:{S_DBG+3}], 0 offen sc1", "tok")
        C.label("L_notok")
        C.e(f"s_lshl_b32 s{S_T}, s{S_I}, 7\ns_lshl_b32 s{S_T2}, s{S_J}, 3\ns_add_u32 s{S_T}, s{S_T}, s{S_T2}\ns_lshl_b32 s{S_T2}, s{S_LW}, 1\ns_add_u32 s71, s{S_T}, s{S_T2}\ns_lshl_b32 s{S_T}, s71, 11")
        for r in range(2):
            for p in range(2):
                C.e(f"buffer_load_dwordx4 {vr(xr+8*r+4*p,4)}, v{self.vL16}, s[{S_XSRD}:{S_XSRD+3}], s{S_T} offen offset:{r*2048+p*1024}")
        srd(C, S_WS, *self.ptr(A_WS), WS_BYTES)
        g.setup_reads()
        C.e(f"s_lshl_b32 s{S_T}, s2, 2\ns_add_u32 s{S_T}, s{S_T}, s{S_LW}\ns_mul_i32 s{S_T2}, s{S_T}, 43691\ns_lshr_b32 s{S_T2}, s{S_T2}, 19\ns_mul_i32 s{S_T2}, s{S_T2}, 12\ns_sub_u32 s{S_T}, s{S_T}, s{S_T2}\ns_add_u32 s70, s{S_T}, 1" if False else "s_nop 0")
        self.stamp(C, 17)
        C.e("s_waitcnt vmcnt(0)")
        self.stamp(C, 18)
        vtok = cv.alloc()
        C.e(f"buffer_load_dword v{vtok}, v{self.vZero}, s[{S_DBG}:{S_DBG+3}], 0 offen sc1")
        for r in range(2):
            for d in range(8):
                C.e(f"v_lshlrev_b32 v{un+16*r+2*d}, 16, v{xr+8*r+d}\nv_and_b32 v{un+16*r+2*d+1}, 0xffff0000, v{xr+8*r+d}")
        def tree(dst, src):
            pass
        for r in range(2): C.e(f"v_add_f32 v{vS[r]}, v{un+16*r}, v{un+16*r+1}\nv_add_f32 v{vS[2+r]}, v{un+16*r+2}, v{un+16*r+3}")
        for k in range(4, 16, 2):
            for r in range(2): C.e(f"v_add_f32 v{vS[r]}, v{vS[r]}, v{un+16*r+k}\nv_add_f32 v{vS[2+r]}, v{vS[2+r]}, v{un+16*r+k+1}")
        for r in range(2): C.e(f"v_add_f32 v{vS[r]}, v{vS[r]}, v{vS[2+r]}")
        def allred2(x0, x1, ta, tb):
            for p in ["quad_perm:[1,0,3,2]", "quad_perm:[2,3,0,1]", "row_half_mirror", "row_mirror"]:
                C.e("s_nop 0")
                for x in (x0, x1): C.e(f"v_add_f32_dpp v{x}, v{x}, v{x} {p} row_mask:0xf bank_mask:0xf")
            for sw in ("v_permlane16_swap_b32", "v_permlane32_swap_b32"):
                C.e(f"v_mov_b32 v{ta}, v{x0}\nv_mov_b32 v{tb}, v{x1}\ns_nop 0\n{sw} v{ta}, v{x0}\n{sw} v{tb}, v{x1}\ns_nop 0\nv_add_f32 v{x0}, v{x0}, v{ta}\nv_add_f32 v{x1}, v{x1}, v{tb}")
        C.e("s_nop 0")
        allred2(vS[0], vS[1], vS[4], vS[5])
        for r in range(2): C.e(f"v_mul_f32 v{vS[r]}, {fhex(1/1024)}, v{vS[r]}")
        for k in range(16):
            for r in range(2): C.e(f"v_sub_f32 v{un+16*r+k}, v{un+16*r+k}, v{vS[r]}")
        for r in range(2): C.e(f"v_mul_f32 v{vS[2+r]}, v{un+16*r}, v{un+16*r}")
        for k in range(1, 16):
            for r in range(2): C.e(f"v_fmac_f32 v{vS[2+r]}, v{un+16*r+k}, v{un+16*r+k}")
        C.e("s_nop 0")
        allred2(vS[2], vS[3], vS[4], vS[5])
        for r in range(2): C.e(f"v_mul_f32 v{vS[2+r]}, {fhex(1/1024)}, v{vS[2+r]}\nv_add_f32 v{vS[2+r]}, {fhex(EPS)}, v{vS[2+r]}")
        for r in range(2): C.e(f"v_rsq_f32 v{vS[2+r]}, v{vS[2+r]}")
        C.e(f"v_mov_b32 v{un}, v{vS[0]}\nv_mov_b32 v{un+2}, v{vS[1]}\nv_mov_b32 v{un+1}, v{vS[2]}\nv_mov_b32 v{un+3}, v{vS[3]}")
        C.e(f"s_lshl_b32 s{S_T}, s71, 3\ns_add_u32 s{S_T}, s{S_T}, {WS_ST1}")
        self.lane0(C, f"buffer_store_dwordx4 {vr(un,4)}, v{self.vZero}, s[{S_WS}:{S_WS+3}], s{S_T} offen sc1", "st1")
        self.stamp(C, 19)
        nextra = 0
        t0, t1 = vt[0:2]
        if self.o.get("tlb", True):
            C.e(f"v_lshlrev_b32 v{t0}, 21, v{vL}")
            for arg, size in ((A_WQKV, D*3*D*2), (A_X, M*D*2), (A_WS, 54*MB), (A_WO, D*D*2), (A_W1, D*DFF*2), (A_W2, DFF*D*2), (A_OUT, M*D*2)):
                p = self.ptr(arg)[0]
                C.e(f"v_min_u32 v{t1}, {hex(size - 4)}, v{t0}\nglobal_load_dword v254, v{t1}, s[{p}:{p+1}]"); nextra += 1
        pfo = cv.alloc(); pf1 = cv.alloc()
        C.e(f"s_lshl_b32 s{S_T}, s2, 2\ns_add_u32 s{S_T}, s{S_T}, s{S_LW}")
        C.e(f"s_lshl_b32 s{S_T2}, s{S_T}, 4\nv_and_b32 v{pfo}, 15, v{vL}\nv_add_u32 v{pfo}, s{S_T2}, v{pfo}\nv_lshlrev_b32 v{pfo}, 7, v{pfo}")
        C.e(f"s_mul_i32 s{S_T2}, s{S_T}, 56\nv_min_u32 v{pf1}, 55, v{vL}\nv_add_u32 v{pf1}, s{S_T2}, v{pf1}\nv_lshlrev_b32 v{pf1}, 7, v{pf1}")
        def hookB(a):
            p = self.ptr(A_WO)[0]; a.e(f"global_load_dword v254, v{pfo}, s[{p}:{p+1}]")
            if self.o.get("pf_w1", False):
                p = self.ptr(A_W1)[0]; a.e(f"global_load_dword v254, v{pf1}, s[{p}:{p+1}]")
        C.e(f"s_and_b32 s{S_T}, s2, 56\ns_lshr_b32 s{S_T}, s{S_T}, 3\ns_add_u32 s71, s{S_T}, 3")
        def hookS(a):
            a.e(f"s_cmp_lg_u32 s{S_LW}, 0\ns_cbranch_scc1 L_nosigq")
            self.signal(a, self.off_ij(F_Q), vt[0], vt[1])
            a.label("L_nosigq")
        hk = {c.nsteps - 3 - 2: hookS}
        if self.o["pf_weights"]: hk["s71"] = hookB
        def peel_end():
            C.e(f"s_waitcnt vmcnt({nextra})")
            self.poll_test(C, vtok, token=False)
            C.e("s_cbranch_scc1 L_tokready")
            self.poll(C, S_DBG, self.vZero, vtok, "tok", token=False)
            C.label("L_tokready")
            C.e(f"v_readfirstlane_b32 s1, v{vtok}\nv_mov_b32 v{vt[0]}, {SD_TOK}\nds_write_b32 v{vt[0]}, v{vtok}\ns_waitcnt lgkmcnt(0)")
        self.cloop(g, stamps=(1, 2), hooks=hk, peel_first=peel_end)
        self.epi_q(g, cv)

    def bar_L_only(self):
        self.L.e("s_barrier"); self.lstamp()
    def lstamp(self, tag=''):
        if self.o["diag"] and self.o.get("lst") and self.nl < 128:
            self.L.e(f"s_memrealtime s[88:89]\ns_waitcnt lgkmcnt(0)\nv_writelane_b32 v{255 - 2*(self.nl//64)}, s88, {self.nl % 64}"); self.nl += 1; self.L.lq = []
            self.lnames.append(tag)
    def setup_w_only(self, g):
        c, a, em = g.c, g.a, g.em
        l, lw = g.l, g.lw
        cpr = c.TN//8
        mg, sh = magic_div(cpr, c.nWld*256)
        for n in range(c.nWld):
            flat = lw*(c.nWld*64) + l + n*64
            vr_, vp = g.v_tmp2
            em.vemit((flat*mg) >> sh, vr_); em.vr["row"] = vr_; row = V("row")
            em.vemit(flat - row*cpr, vp); em.vr["p"] = vp; p = V("p")
            ch = p ^ g.wswz(row)
            colb = ((ch >> 3) << 11) + ((ch & 7) << 4) if c.qkvseg else ch << 4
            em.vemit(row*c.ldw + colb - (n % 4)*1024, g.vWsrc[n])

    def slab_plan(self, gg, per):
        cc = gg.c; l = gg.l; lw = gg.lw
        def ex(k, ks, j):
            row = gg.wrow(ks, j)
            ch = (lw*per + k)*2 + ((l >> 1) & 1)
            return row*cc.RS + ((ch ^ gg.wswz(row)) << 4) + (l & 1)*8 + cc.XB
        keys = [(k, ks, j) for k in range(per) for ks in range(2) for j in range(2)]
        base = []; cls = {}
        for key in keys:
            t = [ex(*key).ev({"l": ll, "lw": w}) for w in range(4) for ll in range(64)]
            for ci, (bk, bt) in enumerate(base):
                ds = {p - q_ for p, q_ in zip(t, bt)}
                if len(ds) == 1 and 0 <= min(ds) < 65536: cls[key] = (ci, ds.pop()); break
            else:
                base.append((key, t)); cls[key] = (len(base)-1, 0)
        for w in range(4):
            for key in keys:
                assert banks.conflicts_b64([ex(*key).ev({"l": ll, "lw": w}) for ll in range(64)]) == 0
        return [ex(*b[0]) for b in base], cls
    def csum_setup(self, gg, per, regs):
        bases, cls = self.slab_plan(gg, per)
        assert len(bases) <= len(regs)
        gg.bind(self.L, self.vL, self.vt, (8, 9))
        for b, r in zip(bases, regs): gg.em.vemit(b, r)
        return cls
    def csum_reads(self, per, cls, regs, wf):
        L = self.L
        for k in range(per):
            for ks in range(2):
                for j in range(2):
                    ci, imm = cls[(k, ks, j)]; d = wf[2*k+ks] + 2*j
                    L.lds_rd(f"ds_read_b64_tr_b16 {vr(d,2)}, v{regs[ci]} offset:{imm}", rng(d, 2))
    def csum_finish(self, vm, per, nt_total, ones, wf, sacc, vL4, colbase_code):
        L = self.L
        for k in range(4): L.e(f"v_mov_b32 v{ones+k}, 0x3f803f80")
        L.e(colbase_code)
        for k in range(per): L.e(f"v_mfma_f32_16x16x32_bf16 {vr(sacc[k],4)}, {vr(ones,4)}, {vr(wf[2*k],4)}, 0")
        for k in range(per): L.e(f"v_mfma_f32_16x16x32_bf16 {vr(sacc[k],4)}, {vr(ones,4)}, {vr(wf[2*k+1],4)}, {vr(sacc[k],4)}")
        L.e(f"v_cmp_gt_u32 vcc, 16, v{self.vL}\ns_nop 7\ns_and_saveexec_b64 s[{S_EX}:{S_EX+1}], vcc")
        for k in range(per):
            if (3*per + k) == nt_total:
                L.e(f"s_cmp_eq_u32 s{S_LW}, 3\ns_cselect_b32 s{S_T2}, {hex(OOB - 4096)}, s{S_T2}")
            L.e(f"buffer_store_dword v{sacc[k]}, v{vL4}, s[{S_WS}:{S_WS+3}], s{S_T2} offen offset:{k*64} sc1"); vm.iss("cst")
        L.e(f"s_mov_b64 exec, s[{S_EX}:{S_EX+1}]")

    def prefetch_first(self, a, cv):
        vL = self.vL; t0, t1, t2 = self.vt[0:3]; d = cv.alloc(4)
        srd(a, S_XSRD, *self.ptr(A_X), M*D*2); srd(a, S_WSRD, *self.ptr(A_WQKV), D*3*D*2)
        a.e(f"s_lshr_b32 s{S_T}, s2, 3\ns_lshl_b32 s{S_T}, s{S_T}, 2\ns_add_u32 s{S_T}, s{S_T}, s{S_LW}")
        a.e(f"s_mul_i32 s{S_T2}, s{S_T}, 96")
        mg, sh = magic_div(12, 12288); mg3, sh3 = magic_div(3, 12)
        a.e(f"s_lshr_b32 s{S_T3}, s{S_J}, 2\ns_lshl_b32 s{S_T3}, s{S_T3}, 9")
        for n in range(2):
            a.e(f"v_add_u32 v{t0}, s{S_T2}, v{vL}\nv_add_u32 v{t0}, {48*n}, v{t0}")
            a.e(f"v_mul_u32_u24 v{t1}, {mg}, v{t0}\nv_lshrrev_b32 v{t1}, {sh}, v{t1}\nv_mul_u32_u24 v{t2}, 12, v{t1}\nv_sub_u32 v{t0}, v{t0}, v{t2}")
            a.e(f"v_mul_u32_u24 v{t2}, {mg3}, v{t0}\nv_lshrrev_b32 v{t2}, {sh3}, v{t2}")
            a.e(f"v_mul_u32_u24 v{t1}, 6144, v{t1}\nv_lshlrev_b32 v{d+2}, 7, v{t2}\nv_add_u32 v{t1}, v{t1}, v{d+2}")
            a.e(f"v_mul_u32_u24 v{t2}, 3, v{t2}\nv_sub_u32 v{t0}, v{t0}, v{t2}\nv_lshlrev_b32 v{t0}, 11, v{t0}\nv_add_u32 v{t1}, v{t1}, v{t0}")
            a.e(f"v_cmp_gt_u32 vcc, 48, v{vL}\nv_mov_b32 v{t0}, 0x7ffffff0\ns_nop 0\nv_cndmask_b32 v{t1}, v{t0}, v{t1}, vcc")
            a.e(f"buffer_load_dword v254, v{t1}, s[{S_WSRD}:{S_WSRD+3}], s{S_T3} offen")
        a.e(f"s_lshl_b32 s{S_T2}, s{S_T}, 7\ns_lshr_b32 s{S_T3}, s{S_I}, 3\ns_lshl_b32 s{S_T3}, s{S_T3}, 21")
        for n in range(2):
            a.e(f"v_add_u32 v{t0}, s{S_T2}, v{vL}\nv_add_u32 v{t0}, {64*n}, v{t0}\nv_and_b32 v{t1}, 1023, v{t0}\nv_lshlrev_b32 v{t1}, 11, v{t1}\nv_lshrrev_b32 v{t0}, 10, v{t0}\nv_lshlrev_b32 v{t0}, 7, v{t0}\nv_add_u32 v{t1}, v{t1}, v{t0}")
            a.e(f"buffer_load_dword v254, v{t1}, s[{S_XSRD}:{S_XSRD+3}], s{S_T3} offen")
    def prefetch_weights(self, a):
        vL = self.vL; t0, t1 = self.vt[0:2]
        a.e(f"s_lshl_b32 s{S_T}, s2, 2\ns_add_u32 s{S_T}, s{S_T}, s{S_LW}")
        for (arg, nbytes, per, d) in ((A_WO, D*D*2, 16, 2), (A_W1, D*DFF*2, 56, 3)) if self.o.get("pf_w1", True) else ((A_WO, D*D*2, 16, 2),):
            srd(a, S_E3, *self.ptr(arg), nbytes)
            a.e(f"s_mul_i32 s{S_T2}, s{S_T}, {per}\nv_add_u32 v{t0}, s{S_T2}, v{vL}\nv_lshlrev_b32 v{t0}, 7, v{t0}\nv_cmp_gt_u32 vcc, {per}, v{vL}\nv_mov_b32 v{t1}, 0x7ffffff0\ns_nop 0\nv_cndmask_b32 v{t0}, v{t1}, v{t0}, vcc")
            a.e(f"buffer_load_dword v254, v{t0}, s[{S_E3}:{S_E3+3}], 0 offen")
    def prefetch_w2(self, a):
        vL = self.vL; t0, t1 = self.vt[0:2]
        a.e(f"s_lshl_b32 s{S_T}, s2, 2\ns_add_u32 s{S_T}, s{S_T}, s{S_LW}")
        srd(a, S_E3, *self.ptr(A_W2), DFF*D*2)
        a.e(f"s_mul_i32 s{S_T2}, s{S_T}, 56\nv_add_u32 v{t0}, s{S_T2}, v{vL}\nv_lshlrev_b32 v{t0}, 7, v{t0}\nv_cmp_gt_u32 vcc, 56, v{vL}\nv_mov_b32 v{t1}, 0x7ffffff0\ns_nop 0\nv_cndmask_b32 v{t0}, v{t1}, v{t0}, vcc")
        a.e(f"buffer_load_dword v254, v{t0}, s[{S_E3}:{S_E3+3}], 0 offen")

    def cloop(self, g, stamps, hooks=None, peel_first=None):
        c, a = g.c, g.a
        NG = c.NSUB//c.G; S = c.S; ns = c.nsteps
        a.e(f"s_mov_b32 s{S_RD}, 0")
        for ins in g.set_read_addrs(): a.e(ins)
        a.lds_drain(); a.e("s_setprio 0\ns_barrier")
        self.stamp(a, stamps[0])
        for r in g.reads(0, 0): a.lds_rd(*r)
        st = 0
        for gi in range(NG-1):
            g.group(st, g.reads(st ^ 1, gi+1), [], first=(gi == 0)); st ^= 1
        a.e(g.adv_slot(S_RD))
        for ins in g.set_read_addrs(): a.e(ins)
        a.lds_drain(); a.e("s_barrier")
        par = st
        def body(loopctl=False):
            st = par
            for gi in range(NG):
                late = []; extra = []
                if gi == 0 and loopctl and hooks:
                    for cnt in hooks: extra.append(f"s_cmp_eq_u32 s{S_CNT}, {cnt}\ns_cbranch_scc1 L_hk_{c.name}_{cnt}\nL_hkb_{c.name}_{cnt}:")
                if gi == NG-1:
                    late.append(g.adv_slot(S_RD)); late += g.set_read_addrs()
                    if loopctl: late.append(f"s_sub_u32 s{S_CNT}, s{S_CNT}, 1\ns_cmp_lg_u32 s{S_CNT}, 0")
                g.group(st, g.reads(st ^ 1, gi), extra, late=late); st ^= 1
            a.lds_drain()
        nb = ns - 2
        if peel_first:
            body(False); peel_first(); a.e("s_barrier"); nb -= 1
        a.e(f"s_mov_b32 s{S_CNT}, {nb}\ns_branch L_loop_{c.name}")
        a.label(f"L_top_{c.name}"); a.e("s_barrier"); a.label(f"L_loop_{c.name}")
        body(True)
        a.e(f"s_cbranch_scc1 L_top_{c.name}\ns_barrier")
        body(False); a.e("s_barrier")
        g.group(par, [], [])
        a.e("s_setprio 3\ns_nop 6")
        self.stamp(a, stamps[1])
        for cnt, fn in (hooks or {}).items():
            t = self.tail
            t.label(f"L_hk_{c.name}_{cnt}"); fn(t); t.e(f"s_branch L_hkb_{c.name}_{cnt}")

    def epi_q(self, g, cv):
        C, L, c = self.C, self.L, g.c
        a = C; vL = self.vL; t0, t1, t2, t3, t4, t5 = self.vt
        em = g.em; l = g.l; wm, wn = g.wm, g.wn
        fr = g.frag0
        mu = fr; rs = fr+4; cs = fr+8; pk = fr+24; st = fr+32
        va = fr+64; vb = fr+65; vo = fr+66; vk = fr+67; sc = fr+68
        gq = l >> 4
        em.vemit((wm*64 + (l & 15))*4 + SD_MEAN1, va)
        for x in range(4):
            a.lds_rd(f"ds_read_b32 v{mu+x}, v{va} offset:{x*64}", [mu+x])
            a.lds_rd(f"ds_read_b32 v{rs+x}, v{va} offset:{512+x*64}", [rs+x])
        em.vemit((wn*32 + gq*4)*4 + SD_CSQ, vb)
        def cs_off(f): return (64*(f//2) + 16*(f % 2))*4
        for n, f in enumerate((2, 3, 0, 1)):
            a.lds_rd(f"ds_read_b128 {vr(cs+4*n,4)}, v{vb} offset:{cs_off(f)}", rng(cs+4*n, 4))
        csr = {2: cs, 3: cs+4, 0: cs+8, 1: cs+12}
        em.vemit(wn*49152 + l*16, vk)
        a.e(f"s_lshl_b32 s{S_T}, s{S_I}, 4\ns_add_u32 s{S_T}, s{S_T}, s{S_J}\ns_lshl_b32 s{S_T}, s{S_T}, 15\ns_lshl_b32 s{S_T2}, s{S_WN}, 14\ns_add_u32 s{S_T}, s{S_T}, s{S_T2}\ns_add_u32 s71, s{S_T}, {WS_KV}")
        def fold_mn(x, f, scale_reg):
            acc = g.acc[x][f]; c0 = csr[f]
            for p in range(2):
                a.e(f"v_pk_fma_f32 {vr(acc+2*p,2)}, {vr(mu+(x & ~1),2)}, {vr(c0+2*p,2)}, {vr(acc+2*p,2)} op_sel:[{x & 1},0,0] op_sel_hi:[{x & 1},1,1] neg_lo:[1,0,0] neg_hi:[1,0,0]")
            for p in range(2):
                a.e(f"v_pk_mul_f32 {vr(acc+2*p,2)}, {vr(scale_reg+(x & ~1),2)}, {vr(acc+2*p,2)} op_sel:[{x & 1},0] op_sel_hi:[{x & 1},1]")
        def pack2(dst, accA, accB):
            a.e(f"v_cvt_pk_bf16_f32 v{dst}, v{accA}, v{accA+1}\nv_cvt_pk_bf16_f32 v{dst+1}, v{accA+2}, v{accA+3}")
            a.e(f"v_cvt_pk_bf16_f32 v{dst+2}, v{accB}, v{accB+1}\nv_cvt_pk_bf16_f32 v{dst+3}, v{accB+2}, v{accB+3}")
        a.need(list(rng(mu, 8)) + list(rng(cs, 8)))
        a.e(f"s_lshl_b32 s{S_T3}, s{S_WM}, 12")
        a.e(f"v_add_u32 v{vo}, s{S_T3}, v{vk}")
        a.e(f"s_add_u32 s{S_T4}, s71, s{S_T3}")
        for x in range(4):
            fold_mn(x, 2, rs); fold_mn(x, 3, rs)
            p = pk + 4*(x & 1)
            pack2(p, g.acc[x][2], g.acc[x][3])
            a.e(f"buffer_store_dwordx4 {vr(p,4)}, v{self.vL16}, s[{S_WS}:{S_WS+3}], s{S_T4} offen offset:{x*1024} sc1")
            a.lds_other(f"ds_write_b128 v{vo}, {vr(p,4)} offset:{AT_K(0) + 2*8192 + x*1024}")
        em.vemit((wn*32 + (l & 15))*4 + SD_CSQ + 128*4, va)
        a.lds_rd(f"ds_read_b32 v{sc}, v{va}", [sc]); a.lds_rd(f"ds_read_b32 v{sc+1}, v{va} offset:64", [sc+1])
        em.vemit((wm*64 + gq*4)*4 + SD_MEAN1, vb)
        for x in range(4):
            a.lds_rd(f"ds_read_b128 {vr(st+4*x,4)}, v{vb} offset:{x*64}", rng(st+4*x, 4))
            a.lds_rd(f"ds_read_b128 {vr(st+16+4*x,4)}, v{vb} offset:{512+x*64}", rng(st+16+4*x, 4))
        a.e(f"s_lshl_b32 s{S_T3}, s{S_WM}, 12\ns_add_u32 s{S_T4}, s71, s{S_T3}\ns_add_u32 s{S_T4}, s{S_T4}, 8192")
        for xi in range(2):
            a.need(list(rng(st+8*xi, 8)) + list(rng(st+16+8*xi, 8)) + [sc, sc+1])
            for dl in range(2):
                for x in (2*xi, 2*xi+1):
                    acc = g.acc[x][4+dl]
                    for p in range(2):
                        a.e(f"v_pk_fma_f32 {vr(acc+2*p,2)}, {vr(st+4*x+2*p,2)}, {vr(sc,2)}, {vr(acc+2*p,2)} op_sel:[0,{dl},0] op_sel_hi:[1,{dl},1] neg_lo:[1,0,0] neg_hi:[1,0,0]")
                    for p in range(2):
                        a.e(f"v_pk_mul_f32 {vr(acc+2*p,2)}, {vr(st+16+4*x+2*p,2)}, {vr(acc+2*p,2)}")
                p = pk + 4*dl
                pack2(p, g.acc[2*xi][4+dl], g.acc[2*xi+1][4+dl])
                a.e(f"buffer_store_dwordx4 {vr(p,4)}, v{self.vL16}, s[{S_WS}:{S_WS+3}], s{S_T4} offen offset:{(xi*2+dl)*1024} sc1")
                a.lds_other(f"ds_write_b128 v{vo}, {vr(p,4)} offset:{AT_V(0) + 2*8192 + (xi*2+dl)*1024}")
        for x in range(4): a.e(f"v_mul_f32 v{rs+x}, {fhex(QSCALE)}, v{rs+x}")
        em.vemit(wn*8192 + wm*4096 + l*16 + AT_Q0, va)
        a.need(rng(cs+8, 8))
        for x in range(4):
            fold_mn(x, 0, rs); fold_mn(x, 1, rs)
            p = pk + 4*(x & 1)
            a.e("s_nop 0")
            pack2(p, g.acc[x][0], g.acc[x][1])
            a.lds_other(f"ds_write_b128 v{va}, {vr(p,4)} offset:{x*1024}")
        a.e("s_waitcnt vmcnt(0)")
        self.signal_last(a, 0, 4, self.off_ji(F_KV), t0, t1, "kv")
        self.stamp(C, 3)
        a.e("s_waitcnt lgkmcnt(0)"); a.lq = []
        self.lsetup(self.g[1], A_WO, D*D*2, WS_O)
        def kvpoll():
            L.e(f"s_sub_i32 s{S_T2}, s{S_I}, 1\ns_max_i32 s{S_T2}, s{S_T2}, 0\ns_sub_i32 s{S_T3}, s{S_I}, 2\ns_max_i32 s{S_T3}, s{S_T3}, 0")
            L.e(f"v_mov_b32 v{t0}, s{S_T2}\nv_mov_b32 v{t1}, s{S_T3}\nv_and_b32 v52, 1, v{vL}\nv_cmp_eq_u32 vcc, 0, v52\ns_nop 1\nv_cndmask_b32 v{t0}, v{t1}, v{t0}, vcc")
            L.e(f"v_lshlrev_b32 v{t0}, 2, v{t0}\ns_lshl_b32 s{S_T}, s{S_J}, 7\ns_add_u32 s{S_T}, s{S_T}, {F_KV}\nv_add_u32 v53, s{S_T}, v{t0}")
            self.poll(L, S_WS, 53, 52, "kv")
        self.lstamp(); kvpoll(); self.lstamp()
        L.e(f"s_lshr_b32 s{S_T}, s{S_LW}, 1\ns_sub_i32 s{S_T2}, s{S_I}, 2\ns_add_i32 s{S_T2}, s{S_T2}, s{S_T}")
        L.e(f"s_lshl_b32 s{S_T3}, s{S_T2}, 4\ns_add_u32 s{S_T3}, s{S_T3}, s{S_J}\ns_lshl_b32 s{S_T3}, s{S_T3}, 15\ns_and_b32 s{S_T4}, s{S_LW}, 1\ns_lshl_b32 s{S_T4}, s{S_T4}, 14\ns_add_u32 s{S_T3}, s{S_T3}, s{S_T4}\ns_add_u32 s{S_T3}, s{S_T3}, {WS_KV}")
        L.e(f"s_cmp_lt_i32 s{S_T2}, 0\ns_cselect_b32 s{S_T3}, 0x7ff00000, s{S_T3}")
        L.e(f"s_and_b32 s{S_T4}, s{S_LW}, 1\ns_mul_i32 s{S_T4}, s{S_T4}, 49152\ns_lshl_b32 s{S_T}, s{S_T}, 13\ns_add_u32 s{S_T4}, s{S_T4}, s{S_T}")
        for part in range(2):
            for q4 in range(2):
                L.e(f"s_add_u32 m0, s{S_T4}, {part*24576 + q4*4096}\ns_add_u32 s{S_T}, s{S_T3}, {part*8192 + q4*4096}")
                for n in range(4):
                    L.e(f"buffer_load_dwordx4 v{self.vL16}, s[{S_WS}:{S_WS+3}], s{S_T} offen offset:{n*1024} sc1 lds")
        L.e("s_waitcnt vmcnt(0)")
        self.bar()
        self.stamp(C, 4)
        C.e("s_mov_b32 s0, 0\ns_branch L_attn"); C.label("L_attn_back_c"); C.e("s_setprio 3")
        L.e("s_mov_b32 s0, 1\ns_branch L_attn"); L.label("L_attn_back_l"); L.e("s_setprio 1")

    def attention(self):
        a = self.A; vL = self.vL
        a.label("L_attn")
        a.e("s_setprio 0")
        l = V("l")
        em = Emitter(a, {"l": vL}, {"hh": S_T3, "om": S_T4}, self.vt, S_ET)
        hh, om = S("hh"), S("om")
        QF, KF, SS, NM, NG, OO, VF, PP = 64, 72, 88, 120, 136, 152, 168, 184
        vQ, vK, vV, MX, SUM, SUM2, T0 = 200, 201, 202, 203, 204, 205, 206
        a.e(f"s_and_b32 s{S_T3}, s{S_WV}, 1\ns_lshr_b32 s{S_T4}, s{S_WV}, 1")
        a.e(f"s_lshl_b32 s71, s{S_I}, 2\ns_add_u32 s71, s71, s{S_T4}")
        rho = l & 31; h = l >> 5
        em.vemit(hh*8192 + om*2048 + ((l >> 4) & 1)*1024 + (h*16 + (l & 15))*16 + AT_Q0, vQ)
        em.vemit(hh*49152 + om*2048 + ((l >> 3) & 1)*1024 + (h*16 + (l & 7) + ((l >> 4) & 1)*8)*16, vK)
        em.vemit(hh*49152 + om*2048 + ((l >> 4) & 1)*1024 + (h*16 + (l & 15))*16 + 24576, vV)
        for ex in (((l >> 4) & 1)*1024 + (h*16 + (l & 15))*16, ((l >> 3) & 1)*1024 + (h*16 + (l & 7) + ((l >> 4) & 1)*8)*16):
            assert banks.conflicts_b128([ex.ev({"l": x}) for x in range(64)]) == 0
        if self.o["pf_weights"]:
            t0_, t1_ = self.vt[0:2]
            a.e(f"s_lshl_b32 s{S_T}, s2, 3\ns_add_u32 s{S_T}, s{S_T}, s{S_WV}\ns_mul_i32 s{S_T}, s{S_T}, 28\nv_min_u32 v{t0_}, 27, v{vL}\nv_add_u32 v{t0_}, s{S_T}, v{t0_}\nv_lshlrev_b32 v{t0_}, 7, v{t0_}")
            for arg in (A_W1, A_W2):
                p = self.ptr(arg)[0]; a.e(f"global_load_dword v254, v{t0_}, s[{p}:{p+1}]")
        a.lds_rd(f"ds_read_b128 {vr(QF,4)}, v{vQ}", rng(QF, 4))
        a.lds_rd(f"ds_read_b128 {vr(QF+4,4)}, v{vQ} offset:512", rng(QF+4, 4))
        def kread(tt):
            b = KF + 8*(tt & 1)
            a.lds_rd(f"ds_read_b128 {vr(b,4)}, v{vK} offset:{tt*2048}", rng(b, 4))
            a.lds_rd(f"ds_read_b128 {vr(b+4,4)}, v{vK} offset:{tt*2048+512}", rng(b+4, 4))
        def vread(tt):
            b = VF + 8*(tt & 1)
            a.lds_rd(f"ds_read_b128 {vr(b,4)}, v{vV} offset:{tt*2048}", rng(b, 4))
            a.lds_rd(f"ds_read_b128 {vr(b+4,4)}, v{vV} offset:{tt*2048+512}", rng(b+4, 4))
        kread(0); kread(1)
        mreg = [72+2*k for k in range(8)] + [90+2*k for k in range(6)] + [4, 6]
        for r in range(16):
            k0 = 16*((r >> 2) & 1) + 8*(r >> 3) + (r & 3)
            lo = (0xffffffff << k0) & 0xffffffff; hi = (0xffffffff << (k0+4)) & 0xffffffff
            a.e(f"s_mov_b32 s{mreg[r]}, {hex(lo)}\ns_mov_b32 s{mreg[r]+1}, {hex(hi)}")
        for r in range(16): a.e(f"v_mov_b32 v{NG+r}, 0xf149f2ca")
        a.e(f"v_mov_b32 v{MX}, 0xf149f2ca\nv_mov_b32 v{SUM}, 0\nv_mov_b32 v{SUM2}, 0")
        def qk(tt, cvalid, tag):
            b = KF + 8*(tt & 1); s_ = SS + 16*(tt & 1)
            a.need(list(rng(b, 4)) + list(rng(QF, 4)))
            if tt < 8:
                a.e(f"s_cmp_ge_u32 s71, {8-tt}\ns_cbranch_scc0 L_inv_{tag}_{tt}")
            a.e(f"v_mfma_f32_32x32x16_bf16 {vr(s_,16)}, {vr(b,4)}, {vr(QF,4)}, {cvalid}")
            if tt < 8:
                a.label(f"L_invb_{tag}_{tt}")
                t = self.tail
                t.label(f"L_inv_{tag}_{tt}")
                t.e(f"v_mfma_f32_32x32x16_bf16 {vr(s_,16)}, {vr(b,4)}, {vr(QF,4)}, {vr(NG,16)}\ns_branch L_invb_{tag}_{tt}")
            a.need(list(rng(b+4, 4)) + list(rng(QF+4, 4)))
            a.e(f"v_mfma_f32_32x32x16_bf16 {vr(s_,16)}, {vr(b+4,4)}, {vr(QF+4,4)}, {vr(s_,16)}")
        def mask(tt):
            s_ = SS + 16*(tt & 1)
            if tt == 8:
                for r in range(16): a.e(f"v_cndmask_b32 v{s_+r}, v{NG}, v{s_+r}, s[{mreg[r]}:{mreg[r]+1}]")
            if tt == 0:
                for r in range(16): a.e(f"v_cndmask_b32 v{s_+r}, v{s_+r}, v{NG}, s[{mreg[r]}:{mreg[r]+1}]")
        qk(0, "0", "a")
        for tt in range(9):
            if tt+1 < 9: qk(tt+1, "0", "a")
            if tt+2 < 9: kread(tt+2)
            else: a.e("s_nop 7\ns_nop 3")
            if tt == 0: a.e("s_nop 7")
            mask(tt)
            s_ = SS + 16*(tt & 1)
            for k in range(8): a.e(f"v_max3_f32 v{MX}, v{MX}, v{s_+2*k}, v{s_+2*k+1}")
        kread(0); kread(1); vread(0)
        a.e(f"v_mov_b32 v{T0}, v{MX}\ns_nop 1\nv_permlane32_swap_b32 v{T0}, v{MX}\ns_nop 1\nv_max_f32 v{MX}, v{MX}, v{T0}")
        for r in range(16): a.e(f"v_sub_f32 v{NM+r}, 0, v{MX}")
        a.e("s_nop 1")
        qk(0, vr(NM, 16), "b")
        for tt in range(9):
            if tt+1 < 9:
                qk(tt+1, vr(NM, 16), "b"); vread(tt+1)
            if tt+2 < 9: kread(tt+2)
            if tt == 0: a.e("s_nop 7\ns_nop 1")
            if tt == 8: a.e("s_nop 7\ns_nop 3")
            mask(tt)
            s_ = SS + 16*(tt & 1); p = PP + 8*(tt & 1)
            for r in range(16): a.e(f"v_exp_f32 v{s_+r}, v{s_+r}")
            for k in range(8): a.e(f"v_cvt_pk_bf16_f32 v{p+k}, v{s_+2*k}, v{s_+2*k+1}")
            for k in range(8): a.e(f"v_add_f32 v{SUM}, v{SUM}, v{s_+2*k}\nv_add_f32 v{SUM2}, v{SUM2}, v{s_+2*k+1}")
            b = VF + 8*(tt & 1)
            a.need(rng(b, 8))
            a.e(f"v_mfma_f32_32x32x16_bf16 {vr(OO,16)}, {vr(b,4)}, {vr(p,4)}, {'0' if tt == 0 else vr(OO,16)}")
            a.e(f"v_mfma_f32_32x32x16_bf16 {vr(OO,16)}, {vr(b+4,4)}, {vr(p+4,4)}, {vr(OO,16)}")
        a.e(f"v_add_f32 v{SUM}, v{SUM}, v{SUM2}\ns_nop 0\nv_mov_b32 v{T0}, v{SUM}\ns_nop 1\nv_permlane32_swap_b32 v{T0}, v{SUM}\ns_nop 1\nv_add_f32 v{SUM}, v{SUM}, v{T0}")
        a.e(f"v_rcp_f32 v{SUM}, v{SUM}")
        srd(a, S_WS, *self.ptr(A_WS), WS_BYTES)
        em.vemit((om*2 + ((l >> 4) & 1))*2048 + hh*1024 + ((l & 15) + h*16)*16, vQ)
        a.e(f"s_lshl_b32 s{S_T}, s{S_I}, 4\ns_add_u32 s{S_T}, s{S_T}, s{S_J}\ns_lshl_b32 s{S_T}, s{S_T}, 14\ns_add_u32 s{S_T}, s{S_T}, {WS_O}")
        a.e("s_nop 7")
        for r in range(16): a.e(f"v_mul_f32 v{OO+r}, v{SUM}, v{OO+r}")
        for s in range(2):
            for k in range(4): a.e(f"v_cvt_pk_bf16_f32 v{PP+4*s+k}, v{OO+8*s+2*k}, v{OO+8*s+2*k+1}")
            a.e(f"buffer_store_dwordx4 {vr(PP+4*s,4)}, v{vQ}, s[{S_WS}:{S_WS+3}], s{S_T} offen offset:{s*512} sc1")
        a.e("s_waitcnt vmcnt(0)")
        self.signal_last(a, 1, 8, self.off_ij(F_O), 200, 201, "o")
        a.e("s_cmp_eq_u32 s0, 1\ns_cbranch_scc1 L_attn_back_l\ns_branch L_attn_back_c")

    def lsetup(self, g, warg, wbytes, xbase, khalf=False):
        L = self.L; c = g.c
        g.bind(L, self.vL, self.vt, (8, 9))
        srd(L, S_WSRD, *self.ptr(warg), wbytes)
        self.setup_w_only(g)
        g.em.vemit(g.lw*4096 + g.l*16, g.vXsrc[0])
        c.woff(L)
        self.xoff_fn(L, c, xbase, khalf)
        L.e(f"s_lshl_b32 s{S_XL}, s{S_LW}, 12")
        L.e(f"s_mul_i32 s{S_WL}, s{S_LW}, {c.nWld*1024}\ns_add_u32 s{S_WL}, s{S_WL}, {c.XB}")
    def lweights(self, g):
        L = self.L; c = g.c
        for ins in g.rot_init(): L.e(ins)
        L.e(f"s_mov_b32 s{S_WR}, 0")
        for s in range(c.S):
            for ins in g.stage_off(s) + g.dma_w(): L.e(ins)
            L.e(f"s_add_u32 s{S_WR}, s{S_WR}, {c.SB}")
    def cpoll(self, flag, label, skip_own=False):
        C = self.C; t0, t1, t2 = self.vt[0:3]
        C.e(f"s_cmp_lg_u32 s{S_LW}, 0\ns_cbranch_scc1 L_nocpoll_{label}")
        self.group_words(C, t2, flag, S_I)
        if skip_own:
            C.e(f"s_xor_b32 s{S_T2}, s{S_J}, 1\ns_lshl_b32 s{S_T2}, s{S_T2}, 2\ns_add_u32 s{S_T2}, s{S_T2}, s{S_T}\nv_and_b32 v{t0}, 15, v{self.vL}\nv_mov_b32 v{t1}, s{S_T2}\nv_cmp_eq_u32 vcc, s{S_J}, v{t0}\ns_nop 1\nv_cndmask_b32 v{t2}, v{t2}, v{t1}, vcc")
        self.poll(C, S_WS, t2, t0, label)
        C.label(f"L_nocpoll_{label}")
        C.e("s_barrier")
    def lphase(self, g, flag, label, hooks=None, npeel=0, after_poll=None, first_hooks=None):
        L = self.L; c = g.c; vm = VM(L); S = c.S; ns = c.nsteps
        hooks = hooks or {}
        g.bind(L, self.vL, self.vt, (8, 9))
        srd(L, S_XSRD, *self.ptr(A_WS), WS_BYTES)
        self.lstamp()
        L.e("s_barrier")
        self.lstamp()
        L.e(f"s_mov_b32 s{S_WR}, 0")
        for s in range(S):
            for ins in g.stage_off(s) + g.dma_x(): L.e(ins)
            vm.iss(("st", s), c.nXld)
            L.e(f"s_add_u32 s{S_WR}, s{S_WR}, {c.SB}")
        L.e(f"s_mov_b32 s{S_WR}, 0")
        if after_poll: after_poll(vm)
        vm.wait(("st", 0)); L.lds_drain(); L.e("s_barrier"); self.lstamp()
        if first_hooks: first_hooks[0](vm)
        vm.wait(("st", 1)); L.lds_drain(); L.e("s_barrier")
        def issue(t):
            for ins in g.dma_list(t): L.e(ins)
            vm.iss(("st", t), c.nld); L.e(g.adv_slot(S_WR))
        npeel = max(npeel, S-2)
        nb = ns - S
        if self.o.get("lsteps"): npeel = nb
        for t in range(npeel):
            issue(t+S)
            if t in hooks: hooks[t](vm)
            if ("st", t+2) in vm.q: vm.wait(("st", t+2))
            L.lds_drain(); L.e("s_barrier")
            if self.o.get("lsteps"): self.lstamp(label + str(t))
        if nb - npeel > 0:
            if getattr(c, "rot", False): L.e(f"s_mov_b32 s{S_N}, {npeel + S - 1}")
            L.e(f"s_mov_b32 s{S_CNT}, {nb - npeel}")
            L.label(f"L_lloop_{label}")
            for ins in g.dma_list(): L.e(ins)
            L.e(g.adv_slot(S_WR))
            L.e(f"s_waitcnt vmcnt({(S-2)*c.nld})\ns_barrier")
            L.e(f"s_sub_u32 s{S_CNT}, s{S_CNT}, 1\ns_cmp_lg_u32 s{S_CNT}, 0\ns_cbranch_scc1 L_lloop_{label}")
        for t in range(nb, ns-1):
            if t+2 <= ns-1: L.e(f"s_waitcnt vmcnt({min(ns-1-(t+2), S-2)*c.nld})")
            L.e("s_barrier")
            if self.o.get("lsteps"): self.lstamp(label + str(t))

    def phase_o(self, g):
        C, L, c = self.C, self.L, g.c
        vL = self.vL; t0, t1, t2, t3, t4, t5 = self.vt
        self.stamp(C, 5)
        self.bar()
        self.lweights(g)
        a = C; g.bind(C, vL, self.vt, (8, 9)); cv = Regs(12, 254); g.alloc_compute(cv)
        em = g.em; l, wm, wn = g.l, g.wm, g.wn
        g.setup_reads()
        xr = cv.alloc(16, 4); va = cv.alloc(); pk = cv.alloc(8, 4); sm = cv.alloc(8, 4); tm = cv.alloc(8, 4); m2 = cv.alloc(8, 4)
        srd(a, S_XSRD, *self.ptr(A_X), M*D*2)
        em.vemit((l & 15)*2048 + (l >> 4)*8, va)
        def resid(a):
            a.e(f"s_lshl_b32 s{S_T}, s{S_I}, 1\ns_add_u32 s{S_T}, s{S_T}, s{S_WM}\ns_lshl_b32 s{S_T}, s{S_T}, 17\ns_lshl_b32 s{S_T2}, s{S_J}, 7\ns_add_u32 s{S_T}, s{S_T}, s{S_T2}\ns_lshl_b32 s{S_T2}, s{S_WN}, 6\ns_add_u32 s{S_T}, s{S_T}, s{S_T2}")
            for x in range(4):
                for f in range(2):
                    a.e(f"buffer_load_dwordx2 {vr(xr+4*x+2*f,2)}, v{va}, s[{S_XSRD}:{S_XSRD+3}], s{S_T} offen offset:{f*32}")
                if x < 3: a.e(f"s_add_u32 s{S_T}, s{S_T}, {16*2048}")
        a.e(f"s_cmp_eq_u32 s{S_LW}, 0\ns_cbranch_scc1 L_ores0"); resid(a); a.label("L_ores0")
        def hookO(a):
            a.e(f"s_cmp_lg_u32 s{S_LW}, 0\ns_cbranch_scc1 L_ores1"); resid(a); a.label("L_ores1")
        self.cpoll(F_O, "o", skip_own=True)
        self.lphase(g, F_O, "o")
        g1 = self.g[2]
        self.lsetup(g1, A_W1, D*DFF*2, WS_H)
        g.bind(C, vL, self.vt, (8, 9)); g.a = C
        self.cloop(g, stamps=(6, 7), hooks={c.nsteps - 3: hookO})
        a.e("s_waitcnt vmcnt(0)")
        for x in range(4):
            for f in range(2):
                acc = g.acc[x][f]
                for d in range(2):
                    src = xr + 4*x + 2*f + d
                    a.e(f"v_lshlrev_b32 v{t0}, 16, v{src}\nv_and_b32 v{t1}, 0xffff0000, v{src}")
                    a.e(f"v_add_f32 v{acc+2*d}, v{acc+2*d}, v{t0}\nv_add_f32 v{acc+2*d+1}, v{acc+2*d+1}, v{t1}")
        a.e(f"s_lshl_b32 s{S_T}, s{S_I}, 4\ns_add_u32 s{S_T}, s{S_T}, s{S_J}\ns_lshl_b32 s{S_T}, s{S_T}, 14\ns_lshl_b32 s{S_T2}, s{S_WM}, 13\ns_add_u32 s{S_T}, s{S_T}, s{S_T2}\ns_lshl_b32 s{S_T2}, s{S_WN}, 10\ns_add_u32 s{S_T}, s{S_T}, s{S_T2}\ns_add_u32 s{S_T}, s{S_T}, {WS_H}")
        for x in range(4):
            p = pk + 4*(x & 1); A, B = g.acc[x][0], g.acc[x][1]
            a.e(f"v_cvt_pk_bf16_f32 v{p}, v{A}, v{A+1}\nv_cvt_pk_bf16_f32 v{p+1}, v{A+2}, v{A+3}\nv_cvt_pk_bf16_f32 v{p+2}, v{B}, v{B+1}\nv_cvt_pk_bf16_f32 v{p+3}, v{B+2}, v{B+3}")
            if x == 2: a.e(f"s_add_u32 s{S_T}, s{S_T}, 4096")
            a.e(f"buffer_store_dwordx4 {vr(p,4)}, v{self.vL16}, s[{S_WS}:{S_WS+3}], s{S_T} offen offset:{(x & 1)*2048} sc1")
        self.bar()
        self.lweights(self.g[2])
        a.e("s_waitcnt vmcnt(0)")
        self.signal_last(a, 2, 4, self.off_ij(F_H), t0, t1, "h")
        self.stamp(C, 8)
        def xlane(regs):
            for sw in ("v_permlane16_swap_b32", "v_permlane32_swap_b32"):
                for k, r in enumerate(regs): a.e(f"v_mov_b32 v{tm+k}, v{r}")
                a.e("s_nop 1")
                for k, r in enumerate(regs): a.e(f"{sw} v{tm+k}, v{r}")
                a.e("s_nop 1")
                for k, r in enumerate(regs): a.e(f"v_add_f32 v{r}, v{r}, v{tm+k}")
        for x in range(4):
            A, B = g.acc[x][0], g.acc[x][1]
            a.e(f"v_add_f32 v{sm+2*x}, v{A}, v{A+1}")
            for r in [A+2, A+3, B, B+1, B+2, B+3]: a.e(f"v_add_f32 v{sm+2*x}, v{sm+2*x}, v{r}")
        xlane([sm+2*x for x in range(4)])
        for x in range(4):
            A, B = g.acc[x][0], g.acc[x][1]
            a.e(f"v_mul_f32 v{t0}, {fhex(1/32)}, v{sm+2*x}")
            a.e(f"v_sub_f32 v{t1}, v{A}, v{t0}\nv_mul_f32 v{sm+2*x+1}, v{t1}, v{t1}")
            for r in [A+1, A+2, A+3, B, B+1, B+2, B+3]: a.e(f"v_sub_f32 v{t1}, v{r}, v{t0}\nv_fmac_f32 v{sm+2*x+1}, v{t1}, v{t1}")
        xlane([sm+2*x+1 for x in range(4)])
        a.e(f"s_lshl_b32 s{S_T}, s{S_J}, 1\ns_add_u32 s{S_T}, s{S_T}, s{S_WN}\ns_lshl_b32 s{S_T}, s{S_T}, 11\ns_lshl_b32 s{S_T2}, s{S_I}, 7\ns_add_u32 s{S_T}, s{S_T}, s{S_T2}\ns_lshl_b32 s{S_T2}, s{S_WM}, 6\ns_add_u32 s{S_T}, s{S_T}, s{S_T2}\ns_lshl_b32 s{S_T}, s{S_T}, 3\ns_add_u32 s{S_T}, s{S_T}, {WS_ST2}")
        a.e(f"v_lshlrev_b32 v{t0}, 3, v{vL}\nv_cmp_gt_u32 vcc, 16, v{vL}\ns_and_saveexec_b64 s[{S_EX}:{S_EX+1}], vcc")
        for x in range(4):
            a.e(f"buffer_store_dwordx2 {vr(sm+2*x,2)}, v{t0}, s[{S_WS}:{S_WS+3}], s{S_T} offen offset:{x*128} sc1")
        a.e(f"s_mov_b64 exec, s[{S_EX}:{S_EX+1}]\ns_waitcnt vmcnt(0)")
        self.signal_last(a, 4, 4, self.off_ij(F_S2), t0, t1, "s2")

    def phase_f1(self, g):
        C, L, c = self.C, self.L, g.c
        vL = self.vL; t0, t1, t2, t3, t4, t5 = self.vt
        ps = 64; cp = 96; mu, m2 = 112, 113
        def s2a(vm):
            self.group_words(L, 56, F_S2, S_I)
            L.e(f"buffer_load_dword v57, v56, s[{S_WS}:{S_WS+3}], 0 offen sc1"); vm.iss("ps2")
        def s2b(vm):
            vm.wait("ps2")
            self.poll_test(L, 57)
            L.e("s_cbranch_scc1 L_s2ready")
            self.poll(L, S_WS, 56, 57, "s2")
            L.label("L_s2ready")
            L.e(f"v_and_b32 v{t0}, 31, v{vL}\nv_lshrrev_b32 v{t1}, 5, v{vL}\nv_lshlrev_b32 v{t1}, 15, v{t1}\nv_add_u32 v{t0}, v{t0}, v{t1}\nv_lshlrev_b32 v54, 3, v{t0}")
            L.e(f"s_lshl_b32 s{S_T2}, s{S_I}, 7\ns_lshl_b32 s{S_T3}, s{S_LW}, 5\ns_add_u32 s{S_T2}, s{S_T2}, s{S_T3}\ns_lshl_b32 s{S_T2}, s{S_T2}, 3\ns_add_u32 s{S_T2}, s{S_T2}, {WS_ST2}")
            for p in range(16):
                L.e(f"buffer_load_dwordx2 {vr(ps+2*p,2)}, v54, s[{S_WS}:{S_WS+3}], s{S_T2} offen sc1\ns_add_u32 s{S_T2}, s{S_T2}, {2048*8}")
            vm.iss("ps", 16)
        def h0(vm):
            vm.wait("ps")
            L.e(f"v_add_f32 v{mu}, v{ps}, v{ps+2}")
            for p in range(2, 16): L.e(f"v_add_f32 v{mu}, v{mu}, v{ps+2*p}")
            half_add(L, mu, t0)
            L.e(f"v_mul_f32 v{mu}, {fhex(1/1024)}, v{mu}\nv_mov_b32 v{m2}, 0")
        def h1(vm):
            for p in range(16):
                L.e(f"v_fma_f32 v{t1}, v{ps+2*p}, v115, -v{mu}\nv_mul_f32 v{t1}, v{t1}, v{t1}\nv_fma_f32 v{t1}, v{t1}, v116, v{ps+2*p+1}\nv_add_f32 v{m2}, v{m2}, v{t1}")
            half_add(L, m2, t0)
            L.e(f"v_mul_f32 v{m2}, {fhex(1/1024)}, v{m2}\nv_add_f32 v{m2}, {fhex(EPS)}, v{m2}\nv_rsq_f32 v{m2}, v{m2}")
            L.e(f"v_and_b32 v{t0}, 31, v{vL}\ns_lshl_b32 s{S_T}, s{S_LW}, 5\nv_add_u32 v{t0}, s{S_T}, v{t0}\nv_lshlrev_b32 v{t0}, 2, v{t0}\nv_add_u32 v{t0}, {SD_MEAN2}, v{t0}")
            L.e(f"ds_write_b32 v{t0}, v{mu}\nds_write_b32 v{t0}, v{m2} offset:512")
        def h0b(vm):
            h0(vm); L.e(f"v_mov_b32 v115, {fhex(1/32)}\nv_mov_b32 v116, {fhex(32.0)}")
        ones, wf, sacc, r1, vL4 = 120, [124 + 4*k for k in range(8)], [156 + 4*k for k in range(4)], [172, 173, 174, 175], 176
        box = {}
        def pre_cs1():
            L.e(f"v_lshlrev_b32 v{vL4}, 2, v{vL}")
            box["cls"] = self.csum_setup(g, 4, r1)
        cs1_code = f"s_lshl_b32 s{S_T}, s{S_I}, 4\ns_add_u32 s{S_T}, s{S_T}, s{S_J}\ns_mul_i32 s{S_T2}, s{S_T}, 896\ns_lshl_b32 s{S_T}, s{S_LW}, 8\ns_add_u32 s{S_T2}, s{S_T2}, s{S_T}\ns_add_u32 s{S_T2}, s{S_T2}, {WS_CS1}"
        fh = (lambda vm: self.csum_reads(4, box["cls"], r1, wf), lambda vm: self.csum_finish(vm, 4, 14, ones, wf, sacc, vL4, cs1_code))
        def hsig(vm):
            self.signal(L, self.off_ji(F_CS1), 52, 53, only_lw0=True); vm.iss("sig")
        def h2a(vm):
            L.e(f"s_lshl_b32 s{S_T}, s{S_J}, 7\ns_add_u32 s{S_T}, s{S_T}, {F_CS1}\nv_and_b32 v52, 15, v{vL}\nv_lshlrev_b32 v52, 2, v52\nv_add_u32 v52, s{S_T}, v52")
            L.e(f"buffer_load_dword v53, v52, s[{S_WS}:{S_WS+3}], 0 offen sc1"); vm.iss("pc")
        def h2(vm):
            vm.wait("pc")
            self.poll_test(L, 53, False)
            L.e("s_cbranch_scc1 L_cs1ready")
            self.poll(L, S_WS, 52, 53, "cs1")
            L.label("L_cs1ready")
            L.e(f"s_mul_i32 s{S_T2}, s{S_J}, 896\ns_mul_i32 s{S_T}, s{S_LW}, 224\ns_add_u32 s{S_T2}, s{S_T2}, s{S_T}\ns_add_u32 s{S_T2}, s{S_T2}, {WS_CS1}")
            L.e(f"v_lshlrev_b32 v55, 2, v{vL}\nv_cmp_gt_u32 vcc, 56, v{vL}\nv_mov_b32 v{t1}, 0x7ffffff0\ns_nop 0\nv_cndmask_b32 v55, v{t1}, v55, vcc")
            for p in range(16):
                L.e(f"buffer_load_dword v{cp+p}, v55, s[{S_WS}:{S_WS+3}], s{S_T2} offen sc1\ns_add_u32 s{S_T2}, s{S_T2}, {16*896}")
            vm.iss("cp", 16)
        def h4(vm):
            vm.wait("cp")
            for p in range(1, 16): L.e(f"v_add_f32 v{cp}, v{cp}, v{cp+p}")
            L.e(f"s_mul_i32 s{S_T}, s{S_LW}, 224\ns_add_u32 s{S_T}, s{S_T}, {SD_CS1}\nv_lshlrev_b32 v{t0}, 2, v{vL}\nv_add_u32 v{t0}, s{S_T}, v{t0}")
            L.e(f"v_cmp_gt_u32 vcc, 56, v{vL}\ns_and_saveexec_b64 s[{S_EX}:{S_EX+1}], vcc\nds_write_b32 v{t0}, v{cp}\ns_mov_b64 exec, s[{S_EX}:{S_EX+1}]")
        F1HOOKS = {0: fh[1], 2: s2a, 3: lambda vm: (hsig(vm), s2b(vm)), 5: h0b, 6: h1, 8: h2a, 9: h2, 11: h4}; F1PEEL = 12
        a = C; g.bind(C, vL, self.vt, (8, 9)); cv = Regs(12, 254); g.alloc_compute(cv)
        g.setup_reads()
        self.cpoll(F_H, "f1")
        self.lphase(g, F_H, "f1", hooks=F1HOOKS, npeel=F1PEEL, after_poll=lambda vm: pre_cs1(), first_hooks=fh)
        g2 = self.g[3]
        self.lsetup(g2, A_W2, DFF*D*2, WS_H1, khalf=True)
        g.bind(C, vL, self.vt, (8, 9)); g.a = C
        em = g.em; l, wm, wn = g.l, g.wm, g.wn
        self.cloop(g, stamps=(9, 10))
        fr = g.frag0
        mu = fr; cs = fr+4; pk = fr+32; va = fr+44; vb = va+1; vc = va+2; vo = va+3
        em.vemit((wm*64 + (l & 15))*4 + SD_MEAN2, va)
        for x in range(4): a.lds_rd(f"ds_read_b32 v{mu+x}, v{va} offset:{x*64}", [mu+x])
        em.vemit(wn*512 + (l >> 4)*16 + SD_CS1, vb)
        em.vemit(wn*64 + (l >> 4)*16 + SD_CS1 + 384, vc)
        for f in range(6): a.lds_rd(f"ds_read_b128 {vr(cs+4*f,4)}, v{vb} offset:{f*64}", rng(cs+4*f, 4))
        a.lds_rd(f"ds_read_b128 {vr(cs+24,4)}, v{vc}", rng(cs+24, 4))
        a.e(f"s_mul_i32 s71, s{S_I}, {56*16384}\ns_lshl_b32 s{S_T}, s{S_WM}, 13\ns_add_u32 s71, s71, s{S_T}\ns_add_u32 s71, s71, {WS_H1}\ns_mul_i32 s{S_T4}, s{S_J}, 7")
        def fold(x, f):
            acc = g.acc[x][f]; c0 = cs + 4*f
            for p in range(2):
                a.e(f"v_pk_fma_f32 {vr(acc+2*p,2)}, {vr(mu+(x & ~1),2)}, {vr(c0+2*p,2)}, {vr(acc+2*p,2)} op_sel:[{x & 1},0,0] op_sel_hi:[{x & 1},1,1] neg_lo:[1,0,0] neg_hi:[1,0,0]")
        def kappa(phi_code):
            a.e(phi_code)
            a.e(f"s_lshr_b32 s{S_T2}, s{S_T}, 1\ns_lshl_b32 s{S_T2}, s{S_T2}, 14\ns_and_b32 s{S_T}, s{S_T}, 1\ns_lshl_b32 s{S_T}, s{S_T}, 10\ns_add_u32 s{S_T}, s{S_T}, s{S_T2}\ns_add_u32 s{S_T}, s{S_T}, s71")
        n = 0
        for pr in range(3):
            a.need(list(rng(mu, 4)) + list(rng(cs+8*pr, 8)))
            kappa(f"s_lshl_b32 s{S_T}, s{S_WN}, 2\ns_add_u32 s{S_T}, s{S_T}, s{S_T4}\ns_add_u32 s{S_T}, s{S_T}, {pr}")
            for x in range(4):
                fold(x, 2*pr); fold(x, 2*pr+1)
                A, B = g.acc[x][2*pr], g.acc[x][2*pr+1]; p = pk + 4*(n & 1); n += 1
                a.e(f"v_cvt_pk_bf16_f32 v{p}, v{A}, v{A+1}\nv_cvt_pk_bf16_f32 v{p+1}, v{A+2}, v{A+3}\nv_cvt_pk_bf16_f32 v{p+2}, v{B}, v{B+1}\nv_cvt_pk_bf16_f32 v{p+3}, v{B+2}, v{B+3}")
                for k in range(4): a.e(f"v_pk_max_i16 v{p+k}, v{p+k}, 0")
                if x == 2: a.e(f"s_add_u32 s{S_T}, s{S_T}, 4096")
                a.e(f"buffer_store_dwordx4 {vr(p,4)}, v{self.vL16}, s[{S_WS}:{S_WS+3}], s{S_T} offen offset:{(x & 1)*2048} sc1")
        a.need(rng(cs+24, 4))
        kappa(f"s_add_u32 s{S_T}, s{S_T4}, 3")
        em.vemit(l*16 + wn*8, vo)
        for x in range(4):
            fold(x, 6)
            A = g.acc[x][6]; p = pk + 4*(n & 1); n += 1
            a.e(f"v_cvt_pk_bf16_f32 v{p}, v{A}, v{A+1}\nv_cvt_pk_bf16_f32 v{p+1}, v{A+2}, v{A+3}\nv_pk_max_i16 v{p}, v{p}, 0\nv_pk_max_i16 v{p+1}, v{p+1}, 0")
            if x == 2: a.e(f"s_add_u32 s{S_T}, s{S_T}, 4096")
            a.e(f"buffer_store_dwordx2 {vr(p,2)}, v{vo}, s[{S_WS}:{S_WS+3}], s{S_T} offen offset:{(x & 1)*2048} sc1")
        self.bar()
        self.lweights(self.g[3])
        a.e("s_waitcnt vmcnt(0)")
        self.signal_last(a, 3, 4, self.off_ij(F_H1), t0, t1, "h1")
        self.stamp(C, 11)

    def phase_f2(self, g):
        C, L, c = self.C, self.L, g.c
        vL = self.vL; t0, t1, t2, t3, t4, t5 = self.vt
        a = C; g.bind(C, vL, self.vt, (8, 9)); cv = Regs(12, 254)
        a.e(f"s_lshr_b32 s3, s{S_J}, 3")
        g.alloc_compute(cv)
        em = g.em; l, wm, wn = g.l, g.wm, g.wn
        g.setup_reads()
        hr = cv.alloc(16, 4); pt = cv.alloc(32, 4); rs = cv.alloc(4, 4); pk = cv.alloc(8, 4); va = cv.alloc(); vo = cv.alloc()
        self.cpoll(F_H1, "f2")
        def hookF2(a):
            a.e(f"s_and_b32 s{S_T}, s{S_J}, 7\ns_lshl_b32 s{S_T}, s{S_T}, 1\ns_add_u32 s{S_T}, s{S_T}, s{S_WN}\ns_lshl_b32 s{S_T2}, s{S_I}, 4\ns_add_u32 s{S_T}, s{S_T}, s{S_T2}\ns_lshl_b32 s{S_T}, s{S_T}, 14")
            a.e(f"s_lshl_b32 s{S_T2}, s{S_WM}, 13\ns_add_u32 s{S_T}, s{S_T}, s{S_T2}\ns_lshl_b32 s{S_T2}, s3, 10\ns_add_u32 s{S_T}, s{S_T}, s{S_T2}\ns_add_u32 s{S_T}, s{S_T}, {WS_H}")
            for x in range(4):
                if x == 2: a.e(f"s_add_u32 s{S_T}, s{S_T}, 4096")
                a.e(f"buffer_load_dwordx4 {vr(hr+4*x,4)}, v{self.vL16}, s[{S_WS}:{S_WS+3}], s{S_T} offen offset:{(x & 1)*2048} sc1")
        self.lphase(g, F_H1, "f2")
        g.bind(C, vL, self.vt, (8, 9)); g.a = C; em = g.em
        self.cloop(g, stamps=(12, 13), hooks={c.nsteps - 5: hookF2})
        a.e(f"s_lshl_b32 s{S_T}, s{S_I}, 4\ns_add_u32 s{S_T}, s{S_T}, s{S_J}\ns_lshl_b32 s{S_T}, s{S_T}, 15\ns_lshl_b32 s{S_T2}, s{S_LW}, 13\ns_add_u32 s{S_T}, s{S_T}, s{S_T2}\ns_add_u32 s{S_T}, s{S_T}, {WS_XCH}")
        for x in range(4):
            if x == 2: a.e(f"s_add_u32 s{S_T}, s{S_T}, 4096")
            for f in range(2):
                a.e(f"buffer_store_dwordx4 {vr(g.acc[x][2+f],4)}, v{self.vL16}, s[{S_WS}:{S_WS+3}], s{S_T} offen offset:{((x & 1)*2+f)*1024} sc1")
        em.vemit((wm*64 + (l & 15))*4 + SD_RSTD2, va)
        for x in range(4): a.lds_rd(f"ds_read_b32 v{rs+x}, v{va} offset:{x*64}", [rs+x])
        srd(a, S_OUT, *self.ptr(A_OUT), M*D*2)
        em.vemit((l & 15)*2048 + ((l >> 4) & 1)*32 + (l >> 5)*16, vo)
        a.e("s_waitcnt vmcnt(0)")
        self.signal(a, self.off_ijw(F_P, S_LW), t0, t1)
        a.e(f"s_xor_b32 s{S_T2}, s{S_J}, 8\ns_lshl_b32 s{S_T2}, s{S_T2}, 2\ns_lshl_b32 s{S_T}, s{S_I}, 6\ns_add_u32 s{S_T}, s{S_T}, s{S_T2}\ns_add_u32 s{S_T}, s{S_T}, s{S_LW}\ns_lshl_b32 s{S_T}, s{S_T}, 2\ns_add_u32 s{S_T}, s{S_T}, {F_P}\nv_mov_b32 v{t2}, s{S_T}")
        self.poll(a, S_WS, t2, t3, "p")
        a.e(f"s_xor_b32 s{S_T}, s{S_J}, 8\ns_lshl_b32 s{S_T2}, s{S_I}, 4\ns_add_u32 s{S_T}, s{S_T}, s{S_T2}\ns_lshl_b32 s{S_T}, s{S_T}, 15\ns_lshl_b32 s{S_T2}, s{S_LW}, 13\ns_add_u32 s{S_T}, s{S_T}, s{S_T2}\ns_add_u32 s{S_T}, s{S_T}, {WS_XCH}")
        for x in range(4):
            if x == 2: a.e(f"s_add_u32 s{S_T}, s{S_T}, 4096")
            for f in range(2):
                a.e(f"buffer_load_dwordx4 {vr(pt+8*x+4*f,4)}, v{self.vL16}, s[{S_WS}:{S_WS+3}], s{S_T} offen offset:{((x & 1)*2+f)*1024} sc1")
        a.e(f"s_lshl_b32 s{S_T}, s{S_I}, 1\ns_add_u32 s{S_T}, s{S_T}, s{S_WM}\ns_lshl_b32 s{S_T}, s{S_T}, 17\ns_and_b32 s{S_T2}, s{S_J}, 7\ns_lshl_b32 s{S_T2}, s{S_T2}, 8\ns_add_u32 s{S_T}, s{S_T}, s{S_T2}")
        a.e(f"s_lshl_b32 s{S_T2}, s{S_WN}, 7\ns_add_u32 s{S_T}, s{S_T}, s{S_T2}\ns_lshl_b32 s{S_T2}, s3, 6\ns_add_u32 s{S_T}, s{S_T}, s{S_T2}")
        a.need(rng(rs, 4))
        for x in range(4):
            a.e(f"s_waitcnt vmcnt({6-2*x + x})" if False else f"s_waitcnt vmcnt({(3-x)*2 + x})")
            p = pk + 4*(x & 1)
            for f in range(2):
                acc = g.acc[x][f]; q_ = pt + 8*x + 4*f
                for pp_ in range(2):
                    a.e(f"v_pk_add_f32 {vr(acc+2*pp_,2)}, {vr(acc+2*pp_,2)}, {vr(q_+2*pp_,2)}")
                for d in range(2):
                    src = hr + 4*x + 2*f + d
                    a.e(f"v_lshlrev_b32 v{t0}, 16, v{src}\nv_and_b32 v{t1}, 0xffff0000, v{src}")
                    a.e(f"v_fma_f32 v{t0}, v{acc+2*d}, v{rs+x}, v{t0}\nv_fma_f32 v{t1}, v{acc+2*d+1}, v{rs+x}, v{t1}")
                    a.e(f"v_cvt_pk_bf16_f32 v{p+2*f+d}, v{t0}, v{t1}")
            a.e("s_nop 1")
            a.e(f"v_permlane16_swap_b32 v{p}, v{p+2}\nv_permlane16_swap_b32 v{p+1}, v{p+3}")
            a.e(f"buffer_store_dwordx4 {vr(p,4)}, v{vo}, s[{S_OUT}:{S_OUT+3}], s{S_T} offen")
            if x < 3: a.e(f"s_add_u32 s{S_T}, s{S_T}, {16*2048}")
        self.stamp(C, 14)

if __name__ == "__main__":
    import sys
    diag = "--diag" in sys.argv
    args = [x for x in sys.argv[1:] if not x.startswith("--")]
    out = args[0] if args else "mk.s"
    mk = MK(dict(diag=diag))
    body = mk.build()
    hdr = f"""; Single persistent launch: 256 workgroups (one per CU) x 8 waves (4 MFMA waves + 4 loader/helper waves).
; @launch grid=(256,1,1) block=(512,1,1) lds={LDS_TOTAL}
.amdgcn_target "amdgcn-amd-amdhsa--gfx950"
.text
"""
    open(out, "w").write(hdr + body)
    print("wrote", out, len((hdr+body).splitlines()), "lines")
```

```python
import sys
from mk import *
def w(name, **o):
    o.setdefault("diag", True)
    mk = MK(o); body = mk.build()
    hdr = f"; @launch grid=(256,1,1) block=(512,1,1) lds={LDS_TOTAL}\n.amdgcn_target \"amdgcn-amd-amdhsa--gfx950\"\n.text\n"
    hdr = "; lnames " + " ".join(n or "-" for n in mk.lnames) + "\n" + hdr
    open(f"exp/{name}.s", "w").write(hdr + body)
if __name__ == "__main__":
    for spec in sys.argv[1:]:
        name, _, opts = spec.partition(":")
        o = {}
        for kv in filter(None, opts.split(",")):
            k, _, v = kv.partition("="); o[k] = eval(v)
        w(name, **o); print("wrote", name, o)
```

```python
from common import *
from expr import *
import banks, math

def magic_div(d, maxv):
    for sh in (16, 17, 18, 20):
        m = (1 << sh)//d + 1
        if m*maxv < (1 << 32) and m < (1 << 24) and all(((c*m) >> sh) == c//d for c in range(maxv)): return m, sh
    raise RuntimeError

S_XSRD, S_WSRD = 4, 8
S_E0, S_E1, S_E2, S_E3 = 12, 16, 20, 24
S_I, S_J, S_WV, S_T = 28, 29, 30, 31
S_XOFF, S_WOFF, S_RD, S_WR, S_CNT, S_XL, S_WL = 32, 33, 34, 35, 36, 37, 38
S_T2, S_T3, S_T4 = 39, 40, 41
S_WM, S_WN = 42, 43
S_PTR = 44
S_EX = 62
S_ET = [64, 65, 66, 67, 68, 69]
S_LW = 70
S_XB0, S_WB0, S_N, S_K = 72, 73, 74, 75

class Cfg:
    def __init__(self, **kw):
        self.S = 3; self.G = 1; self.BK = 64; self.TM = 128; self.shape = 32
        self.no_mfma = False; self.no_dma = False; self.loaders = False; self.qkvseg = False
        self.__dict__.update(kw)

class G:
    def __init__(self, c, a, v, vLane, vt):
        self.c = c; self.a = a; self.v = v; self.vLane = vLane; self.vt = vt
        c.T = c.shape; c.KS = 16 if c.shape == 32 else 32
        c.NSUB = c.BK//c.KS
        c.nX = c.TM//c.T//c.WM; c.nW = c.TN//c.T//c.WN
        c.AR = 16 if c.shape == 32 else 4
        c.RS = c.TN*2
        c.XB = c.TM*c.BK*2; c.WB = c.BK*c.RS; c.SB = c.XB + c.WB
        c.nXld = c.XB//1024//4; c.nWld = c.WB//1024//4
        assert c.nWld*4096 == c.WB and c.nXld == 4
        c.nld = c.nXld + c.nWld
        c.nsteps = c.K//c.BK
        self.l = V("l"); self.wm = S("wm"); self.wn = S("wn"); self.lw = S("lw")
        self.em = Emitter(a, {"l": vLane}, {"wm": S_WM, "wn": S_WN, "lw": S_LW, "i": S_I, "j": S_J, "kh": 3}, vt, S_ET)
        self.check_banks(); self.plan_reads()
        if not getattr(c, "split", False): self.alloc()
    def wswz(self, row):
        c = self.c; m = c.RS % 256
        if c.shape == 32:
            if m == 128: return ((row >> 1) & 1) << 2
            if m in (64, 192): return C(0)
            return (row & 3) << 2
        if c.korder in ("fn", "fn32"):
            if m == 128: return ((row >> 1) & 3) << 1
            if m in (64, 192): return ((row >> 2) & 1) << 1
            return (row & 7) << 1
        if m == 128: return (((row >> 1) & 1) | (((row >> 3) & 1) << 1)) << 1
        if m in (64, 192): return ((row >> 3) & 1) << 1
        return ((row & 3) | (((row >> 3) & 1) << 2)) << 1
    def wrow(self, ks, j):
        c = self.c; l = self.l
        r = (l >> 2) & 3
        if c.shape == 32:
            h = l >> 5
            return (h*4 + (16*ks + 8*j) if c.korder == "fn" else h*8 + (16*ks + 4*j)) + r
        g = l >> 4
        if c.korder == "fn": return g*4 + (32*ks + 16*j) + r
        if c.korder == "fn32": return (g >> 1)*16 + (g & 1)*4 + (32*ks + 8*j) + r
        return g*8 + (32*ks + 4*j) + r
    def waddr(self, f, ks, j):
        c = self.c; l = self.l
        row = self.wrow(ks, j)
        col = c.fcol(self.wn, f)
        ch = col >> 3
        if c.shape == 32: ch = ch + ((l >> 4) & 1)*2
        ch = ch + ((l >> 1) & 1)
        return row*c.RS + ((ch ^ self.wswz(row)) << 4) + (l & 1)*8 + c.XB
    def xaddr(self, x, ks):
        c = self.c; l = self.l; wm = self.wm
        mt = wm*c.nX + x
        if c.xsrc == "fn":
            return (mt*(4 if c.shape == 32 else 2) + ks)*1024 + l*16
        if c.shape == 32: row = mt*32 + (l & 31); ch = (l >> 5) + 2*ks
        else: row = mt*16 + (l & 15); ch = (l >> 4) + 4*ks
        return row*128 + ((ch ^ ((row >> 1) & 7)) << 4)
    def _tab(self, e):
        c = self.c
        return [e.ev({"l": l, "wm": wm, "wn": wn, "kh": kh}) for kh in range(2) for wm in range(c.WM) for wn in range(c.WN) for l in range(64)]
    def check_banks(self):
        c = self.c
        for x in range(c.nX):
            for ks in range(c.NSUB):
                t = self._tab(self.xaddr(x, ks))
                for w in range(len(t)//64): assert banks.conflicts_b128(t[64*w:64*w+64]) == 0, "X conflict"
        for f in range(c.nW):
            for ks in range(c.NSUB):
                for j in range(2):
                    t = self._tab(self.waddr(f, ks, j))
                    for w in range(len(t)//64): assert banks.conflicts_b64(t[64*w:64*w+64]) == 0, ("W conflict", f, ks, j)
    def plan_reads(self):
        c = self.c
        def plan(keys, fn):
            base = []; cls = {}
            for k in keys:
                t = self._tab(fn(*k)); found = False
                for ci, (bk, bt) in enumerate(base):
                    ds = {p - q for p, q in zip(t, bt)}
                    if len(ds) == 1 and 0 <= min(ds) < 65536: cls[k] = (ci, ds.pop()); found = True; break
                if not found: base.append((k, t)); cls[k] = (len(base)-1, 0)
            return [b[0] for b in base], cls
        self.xbase, self.xcls = plan([(x, ks) for ks in range(c.NSUB) for x in range(c.nX)], self.xaddr)
        self.wbase, self.wcls = plan([(f, ks, j) for ks in range(c.NSUB) for f in range(c.nW) for j in range(2)], self.waddr)
    def alloc(self):
        self.alloc_loader(self.v); self.alloc_compute(self.v)
    def alloc_loader(self, v):
        c = self.c
        self.vXsrc = [v.alloc() for _ in range(4 if c.xsrc == "rm" else 1)]
        self.vWsrc = [v.alloc() for _ in range(c.nWld)]
    def bind(self, a, vLane, vt, tmp2=None):
        self.a = a; self.vLane = vLane; self.vt = vt
        self.em = Emitter(a, {"l": vLane}, {"wm": S_WM, "wn": S_WN, "lw": S_LW, "i": S_I, "j": S_J, "kh": 3}, vt, S_ET)
        if tmp2: self.v_tmp2 = tmp2
    def alloc_compute(self, v):
        c = self.c
        self.vXl = [v.alloc() for _ in self.xbase]; self.vXa = [v.alloc() for _ in self.xbase]
        self.vWl = [v.alloc() for _ in self.wbase]; self.vWa = [v.alloc() for _ in self.wbase]
        self.fX = [[[v.alloc(4, 4) for x in range(c.nX)] for g in range(c.G)] for s in range(2)]
        self.fW = [[[v.alloc(4, 4) for f in range(c.nW)] for g in range(c.G)] for s in range(2)]
        self.frag0 = self.fX[0][0][0]; self.frag_end = v.n
        self.acc = [[v.alloc(c.AR, 4) for f in range(c.nW)] for x in range(c.nX)]
    def setup_dma(self):
        c, a, em = self.c, self.a, self.em
        l, lw = self.l, self.lw
        if c.xsrc == "fn":
            em.vemit(lw*4096 + l*16, self.vXsrc[0])
            a.e(f"s_mul_i32 s{S_XOFF}, s{S_I}, {(c.Kx//64)*16384}")
            if c.xoff0: a.e(f"s_add_u32 s{S_XOFF}, s{S_XOFF}, {c.xoff0}") if isinstance(c.xoff0, int) else c.xoff0(a)
        else:
            for n in range(4):
                row = lw*32 + (l >> 3) + 8*n
                ch = (l & 7) ^ (((l >> 4) + 4*n) & 7)
                em.vemit(row*c.ldx + (ch << 4) - n*1024, self.vXsrc[n])
            a.e(f"s_mul_i32 s{S_XOFF}, s{S_I}, {128*c.ldx}")
        cpr = c.TN//8
        mg, sh = magic_div(cpr, c.nWld*256)
        t = self.vt
        for n in range(c.nWld):
            flat = lw*(c.nWld*64) + l + n*64
            vr_, vp = self.v_tmp2
            em.vemit((flat*mg) >> sh, vr_)
            em.vr["row"] = vr_; row = V("row")
            em.vemit(flat - row*cpr, vp); em.vr["p"] = vp; p = V("p")
            ch = p ^ self.wswz(row)
            if c.qkvseg: colb = ((ch >> 3) << 11) + ((ch & 7) << 4)
            else: colb = ch << 4
            em.vemit(row*c.ldw + colb - (n % 4)*1024, self.vWsrc[n])
        c.woff(a)
        a.e(f"s_lshl_b32 s{S_XL}, s{S_LW}, 12")
        a.e(f"s_mul_i32 s{S_WL}, s{S_LW}, {c.nWld*1024}\ns_add_u32 s{S_WL}, s{S_WL}, {c.XB}")
    def setup_reads(self):
        em = self.em
        for k, r in zip(self.xbase, self.vXl): em.vemit(self.xaddr(*k), r)
        for k, r in zip(self.wbase, self.vWl): em.vemit(self.waddr(*k), r)
    def dma_x(self):
        c = self.c; out = []
        if c.no_dma: return []
        out.append(f"s_add_u32 m0, s{S_WR}, s{S_XL}")
        for n in range(4):
            src = self.vXsrc[n] if c.xsrc == "rm" else self.vXsrc[0]
            out.append(("s_nop 0\n" if n == 0 else "") + f"buffer_load_dwordx4 v{src}, s[{S_XSRD}:{S_XSRD+3}], s{S_XOFF} offen offset:{n*1024} {c.xflag} lds")
        if not getattr(c, "rot", False): out.append(f"s_add_u32 s{S_XOFF}, s{S_XOFF}, {16384 if c.xsrc == 'fn' else c.BK*2}")
        return out
    def dma_w(self):
        c = self.c; out = []
        if c.no_dma: return []
        for n in range(c.nWld):
            if n % 4 == 0:
                out.append(f"s_add_u32 s{S_T}, s{S_WR}, s{S_WL}\ns_add_u32 m0, s{S_T}, {n*1024}")
            out.append(("s_nop 0\n" if n % 4 == 0 else "") + f"buffer_load_dwordx4 v{self.vWsrc[n]}, s[{S_WSRD}:{S_WSRD+3}], s{S_WOFF} offen offset:{(n % 4)*1024} lds")
        if not getattr(c, "rot", False): out.append(f"s_add_u32 s{S_WOFF}, s{S_WOFF}, {c.BK*c.ldw}")
        return out
    def rot_init(self):
        return [f"s_mov_b32 s{S_XB0}, s{S_XOFF}\ns_mov_b32 s{S_WB0}, s{S_WOFF}"] if getattr(self.c, "rot", False) else []
    def stage_off(self, n=None):
        c = self.c
        if not getattr(c, "rot", False): return []
        rp = getattr(c, "rotpos", 0)
        xd = 16384 if c.xsrc == "fn" else c.BK*2; wd = c.BK*c.ldw
        if n == rp: k = f"s_mov_b32 s{S_K}, s{S_I}"
        elif n is not None:
            m = n if n < rp else n-1
            k = f"s_mov_b32 s{S_K}, {m}\ns_cmp_ge_u32 s{S_K}, s{S_I}\ns_addc_u32 s{S_K}, s{S_K}, 0"
        else: k = f"s_cmp_ge_u32 s{S_N}, s{S_I}\ns_addc_u32 s{S_K}, s{S_N}, 0\ns_add_u32 s{S_N}, s{S_N}, 1"
        return [k + f"\ns_mul_i32 s{S_XOFF}, s{S_K}, {xd}\ns_add_u32 s{S_XOFF}, s{S_XOFF}, s{S_XB0}\ns_mul_i32 s{S_WOFF}, s{S_K}, {wd}\ns_add_u32 s{S_WOFF}, s{S_WOFF}, s{S_WB0}"]
    def dma_list(self, n=None): return self.stage_off(n) + self.dma_x() + self.dma_w()
    def reads(self, set_, grp):
        c = self.c; out = []
        for g in range(c.G):
            ks = grp*c.G + g
            def xr(x):
                d = self.fX[set_][g][x]; ci, imm = self.xcls[(x, ks)]
                return (f"ds_read_b128 {vr(d,4)}, v{self.vXa[ci]} offset:{imm}", rng(d,4))
            def wr(f):
                d = self.fW[set_][g][f]; o = []
                for j in range(2):
                    ci, imm = self.wcls[(f, ks, j)]
                    o.append((f"ds_read_b64_tr_b16 {vr(d+2*j,2)}, v{self.vWa[ci]} offset:{imm}", rng(d+2*j,2)))
                return o
            order = self.mfma_order()
            seen = set()
            for (x, f) in order:
                if ("x", x) not in seen: seen.add(("x", x)); out.append(xr(x))
                if ("f", f) not in seen: seen.add(("f", f)); out += wr(f)
        return out
    def mfma_order(self):
        c = self.c
        o = []
        for f in range(c.nW):
            xs = range(c.nX) if f % 2 == 0 else reversed(range(c.nX))
            o += [(x, f) for x in xs]
        return o
    def mfmas(self, set_, first=False):
        c = self.c; out = []
        op = "v_mfma_f32_32x32x16_bf16" if c.shape == 32 else "v_mfma_f32_16x16x32_bf16"
        for g in range(c.G):
            for (x, f) in self.mfma_order():
                X = self.fX[set_][g][x]; W = self.fW[set_][g][f]; acc = self.acc[x][f]
                A, B = (W, X) if c.orient(f) == "mn" else (X, W)
                srcc = "0" if (first and g == 0) else vr(acc, c.AR)
                out.append((f"{op} {vr(acc,c.AR)}, {vr(A,4)}, {vr(B,4)}, {srcc}", list(rng(X,4)) + list(rng(W,4))))
        return out
    def group(self, set_, reads, extra, first=False, late=()):
        a = self.a; c = self.c
        ms = self.mfmas(set_, first); n = len(ms)
        reads = list(reads); extra = list(extra); late = list(late)
        nearly = max(1, int(n*c.read_frac))
        nr = len(reads); ne = len(extra); nl = len(late)
        done_r = 0; done_e = 0; done_l = 0
        startn = int(c.extra_start*n); span = max(1, n - 1 - startn)
        for i, (ins, regs) in enumerate(ms):
            a.need(regs)
            if not c.no_mfma: a.e(ins)
            want = min(nr, -(-nr*(i+1)//nearly))
            while done_r < want: a.lds_rd(*reads[done_r]); done_r += 1
            if i >= startn:
                wante = min(ne, -(-ne*(i+1-startn)//span))
                while done_e < wante: a.e(extra[done_e]); done_e += 1
            if done_r == nr and i >= nearly and i < n-1:
                left = n - 1 - i
                cnt = -(-(nl - done_l)//left)
                for _ in range(cnt):
                    if "s_cmp_lg" in late[done_l]:
                        while done_e < ne: a.e(extra[done_e]); done_e += 1
                    a.e(late[done_l]); done_l += 1
        while done_r < nr: a.lds_rd(*reads[done_r]); done_r += 1
        while done_e < ne: a.e(extra[done_e]); done_e += 1
        while done_l < nl: a.e(late[done_l]); done_l += 1
        assert done_e == ne
    def set_read_addrs(self):
        return [f"v_add_u32 v{r}, s{S_RD}, v{l}" for l, r in zip(self.vXl + self.vWl, self.vXa + self.vWa)]
    def adv_slot(self, s):
        c = self.c
        return f"s_add_u32 s{s}, s{s}, {c.SB}\ns_cmp_eq_u32 s{s}, {c.S*c.SB}\ns_cselect_b32 s{s}, 0, s{s}"

    def compute_loop(self, pre_issue=None, post_issue=None):
        c, a = self.c, self.a
        NG = c.NSUB//c.G; S = c.S; ns = c.nsteps
        own = not c.loaders
        nld = c.nld if (own and not c.no_dma) else 0
        if pre_issue: pre_issue()
        if own:
            a.e(f"s_mov_b32 s{S_WR}, 0")
            for s in range(S):
                for ins in self.dma_list(): a.e(ins)
                a.e(f"s_add_u32 s{S_WR}, s{S_WR}, {c.SB}")
        if post_issue: post_issue(S*nld)
        a.e(f"s_mov_b32 s{S_RD}, 0\ns_mov_b32 s{S_WR}, 0")
        for ins in self.set_read_addrs(): a.e(ins)
        a.lds_drain(f"vmcnt({(S-1)*nld})" if own else "")
        a.e("s_barrier")
        stamp(a, 1); stamp(a, 6, cyc=True)
        for r in self.reads(0, 0): a.lds_rd(*r)
        st = 0
        for g in range(NG-1):
            self.group(st, self.reads(st ^ 1, g+1), [], first=(g == 0)); st ^= 1
        def boundary(vm):
            a.lds_drain(f"vmcnt({vm})" if (vm is not None and own) else "")
            a.e("s_barrier")
        a.e(self.adv_slot(S_RD))
        for ins in self.set_read_addrs(): a.e(ins)
        boundary((S-2)*nld)
        par = st
        def body(t_issue, vm, loopctl=False):
            st = par
            dma = self.dma_list() if (t_issue and own) else []
            chunks = [dma[len(dma)*i//NG: len(dma)*(i+1)//NG] for i in range(NG)]
            for g in range(NG):
                extra = list(chunks[g]); late = []
                if g == NG-1:
                    late.append((f"s_mov_b32 s{S_WR}, s{S_RD}\n" if own else "") + self.adv_slot(S_RD))
                    late += self.set_read_addrs()
                    if loopctl: late.append(f"s_sub_u32 s{S_CNT}, s{S_CNT}, 1\ns_cmp_lg_u32 s{S_CNT}, 0")
                self.group(st, self.reads(st ^ 1, g), extra, late=late); st ^= 1
            a.lds_drain(f"vmcnt({vm})" if (vm is not None and own) else "")
        assert NG % 2 == 0
        nb = ns - S
        if nb > 0:
            a.e(f"s_mov_b32 s{S_CNT}, {nb}\ns_branch L_loop_{c.name}")
            a.label(f"L_top_{c.name}")
            a.e("s_barrier")
            a.label(f"L_loop_{c.name}")
            body(True, (S-2)*nld, loopctl=True)
            a.e(f"s_cbranch_scc1 L_top_{c.name}\ns_barrier")
        for t in range(max(nb, 0), ns-1):
            rem = max(0, (ns-1) - (t+2))
            body(False, min(rem, S-2)*nld if t+2 <= ns-1 else None)
            a.e("s_barrier")
        self.group(par, [], [])
        a.e("s_nop 15")
        stamp(a, 2); stamp(a, 7, cyc=True)

    def loader_loop(self):
        c, a = self.c, self.a
        S = c.S; ns = c.nsteps; nld = 0 if c.no_dma else c.nld
        a.e(f"s_mov_b32 s{S_WR}, 0")
        for s in range(S):
            for ins in self.dma_list(): a.e(ins)
            a.e(f"s_add_u32 s{S_WR}, s{S_WR}, {c.SB}")
        a.e(f"s_mov_b32 s{S_WR}, 0")
        a.e(f"s_waitcnt vmcnt({(S-1)*nld})\ns_barrier")
        a.e(f"s_waitcnt vmcnt({(S-2)*nld})\ns_barrier")
        nb = ns - S
        if nb > 0:
            a.e(f"s_mov_b32 s{S_CNT}, {nb}")
            a.label(f"L_lloop_{c.name}")
            for ins in self.dma_list(): a.e(ins)
            a.e(self.adv_slot(S_WR))
            a.e(f"s_waitcnt vmcnt({(S-2)*nld})\ns_barrier")
            a.e(f"s_sub_u32 s{S_CNT}, s{S_CNT}, 1\ns_cmp_lg_u32 s{S_CNT}, 0\ns_cbranch_scc1 L_lloop_{c.name}")
        for t in range(max(nb, 0), ns-1):
            rem = max(0, (ns-1) - (t+2))
            if t+2 <= ns-1: a.e(f"s_waitcnt vmcnt({min(rem, S-2)*nld})")
            a.e("s_barrier")
```

```python
from emit import *
class HZ:
    def __init__(self, a):
        self.a = a; self.h = []
    def _dist(self, idx): return sum(e["n"] for e in self.h[idx+1:])
    def need(self, kind, r, w, c):
        need = 0
        rw = r | w | c
        for idx in range(len(self.h)-1, max(-1, len(self.h)-40), -1):
            e = self.h[idx]; d = self._dist(idx)
            if d >= 20: break
            req = 0
            if e["kind"] in ("mfma32", "mfma16"):
                big = e["kind"] == "mfma32"
                if kind in ("mfma32", "mfma16"):
                    if e["w"] & r: req = max(req, 12 if big else 8)
                    if e["w"] & c and not (c == e["w"] and kind == e["kind"]): req = max(req, 10 if big else 6)
                elif kind in ("valu", "trans", "perm", "vmem", "lds", "dpp"):
                    if e["w"] & rw: req = max(req, 12 if big else 8)
                    if kind in ("valu", "trans", "perm", "dpp") and e["c"] & w: req = max(req, 7 if big else 3)
            if e["kind"] in ("valu", "trans", "perm", "dpp"):
                if kind in ("mfma32", "mfma16") and e["w"] & (r | c): req = max(req, 2)
                if kind in ("perm", "dpp") and e["w"] & (r | w): req = max(req, 2)
            if e["kind"] == "trans" and kind in ("valu", "perm", "dpp", "mfma32", "mfma16") and e["w"] & (r | c): req = max(req, 1 if kind != "mfma32" and kind != "mfma16" else 2)
            need = max(need, req - d)
        return need
    def emit(self, text, kind, r=(), w=(), c=()):
        r, w, c = set(r), set(w), set(c)
        n = self.need(kind, r, w, c)
        while n > 0:
            k = min(n, 8); self.a.e(f"s_nop {k-1}"); self.h.append(dict(kind="nop", r=set(), w=set(), c=set(), n=k)); n -= k
        self.a.e(text); self.h.append(dict(kind=kind, r=r, w=w, c=c, n=len([x for x in text.split("\n") if x.strip() and not x.strip().endswith(":")])))
    def other(self, text):
        self.emit(text, "salu")
    def lds_rd(self, text, dst, addr):
        n = self.need("lds", set(addr), set(dst), set())
        while n > 0:
            k = min(n, 8); self.a.e(f"s_nop {k-1}"); self.h.append(dict(kind="nop", r=set(), w=set(), c=set(), n=k)); n -= k
        self.a.lds_rd(text, dst); self.h.append(dict(kind="lds", r=set(addr), w=set(), c=set(), n=1))
    def lneed(self, regs):
        before = len(self.a.L); self.a.need(regs)
        if len(self.a.L) > before: self.h.append(dict(kind="salu", r=set(), w=set(), c=set(), n=1))
```

```python
from gemm2 import *
from hz import HZ
import common

NAME = "sequential_preLN__sliding_block__dense_activation_relu__prompt_kernel"
L_SPARE = 122880
L_SIDE = 159744
SD_MEAN1, SD_RSTD1, SD_CSQ = L_SIDE, L_SIDE+512, L_SIDE+1024
SD_MEAN2, SD_RSTD2, SD_CS1 = L_SIDE+2048, L_SIDE+2560, L_SIDE+3072
SD_CNT = L_SIDE + 3968
SD_TOK = SD_CNT + 32
LDS_TOTAL = 163840
AT_K = lambda hh: hh*49152
AT_V = lambda hh: hh*49152 + 24576
AT_Q0 = 98304
WS_KV = 4*MB
WS_ST1 = 36*MB; WS_CSQ = 36*MB + 64*1024; WS_CS1 = 36*MB + 512*1024; WS_ST2 = 37*MB
WS_XCH = 44*MB
WS_FLAG = 52*MB
F_H, F_H1, F_O = WS_FLAG, WS_FLAG + 2048, WS_FLAG + 4096
F_KV, F_CS1 = WS_FLAG + 6144, WS_FLAG + 8192
F_P = WS_FLAG + 12288
F_S2 = WS_FLAG + 16384
F_Q = WS_FLAG + 10240
OOB = 0x7ffffff0
WS_BYTES = 56*MB
S_WS, S_DBG, S_OUT = S_E0, S_E1, S_E2
POLL_MAX = 400000
QSCALE = (DH ** -0.5) * 1.4426950408889634

class VM:
    def __init__(s, a): s.a = a; s.q = []
    def iss(s, tag, n=1): s.q += [tag]*n
    def count_after(s, tag):
        idx = max(i for i, t in enumerate(s.q) if t == tag)
        return len(s.q) - 1 - idx
    def wait(s, tag, extra=""):
        if tag not in s.q: return
        n = min(63, s.count_after(tag))
        s.a.e(f"s_waitcnt vmcnt({n}) {extra}".strip())
        s.q = s.q[len(s.q)-n:] if n else []
    def drain(s): s.a.e("s_waitcnt vmcnt(0)"); s.q = []

class MK:
    def __init__(self, opts=None):
        self.o = dict(diag=False, pf_first=False, pf_weights=True, stop_after=None, tlb=False, codepf=True)
        self.o.update(opts or {})
        self.C = Asm(); self.L = Asm(); self.A = Asm(); self.tail = Asm()
        self.nbar = 0; self.nl = 0; self.lnames = []
    def bar(self):
        self.C.e("s_barrier"); self.L.e("s_barrier")
    def stamp(self, a, k):
        if self.o["diag"]:
            a.e(f"s_memrealtime s[88:89]\ns_waitcnt lgkmcnt(0)\nv_writelane_b32 v255, s88, {k}")
            a.lq = []
    def ptr(self, o): return (S_PTR+16, S_PTR+17) if o == A_WS else (S_PTR + o//4, S_PTR + o//4 + 1)
    def poll_test(self, a, vtmp, x2=False, token=True):
        if token: a.e(f"v_cmp_eq_u32 vcc, s1, v{vtmp}\ns_nop 4\ns_cmp_eq_u64 vcc, exec")
        else: a.e(f"v_cmp_ne_u32 vcc, 0, v{vtmp}\ns_nop 4\ns_cmp_eq_u64 vcc, exec")
    def poll(self, a, srd_, vaddr, vtmp, label, byte=False, x2=False, token=True):
        a.e(f"s_mov_b32 s{S_CNT}, {POLL_MAX}")
        a.label(f"L_poll_{label}")
        ld = f"buffer_load_dwordx2 {vr(vtmp,2)}" if x2 else f"buffer_load_{'ubyte' if byte else 'dword'} v{vtmp}"
        a.e(f"{ld}, v{vaddr}, s[{srd_}:{srd_+3}], 0 offen sc1\ns_waitcnt vmcnt(0)")
        self.poll_test(a, vtmp, x2, token)
        a.e(f"s_cbranch_scc1 L_polldone_{label}")
        a.e(f"s_sleep {self.o.get('sleep', 1)}\ns_sub_u32 s{S_CNT}, s{S_CNT}, 1\ns_cmp_lg_u32 s{S_CNT}, 0\ns_cbranch_scc1 L_poll_{label}")
        a.label(f"L_polldone_{label}")
    def one_lane_addr(self, a, dst, soff_reg, only_lw0):
        if only_lw0:
            a.e(f"s_cmp_eq_u32 s{S_LW}, 0\ns_cselect_b32 s{soff_reg}, s{soff_reg}, {hex(OOB)}")
        a.e(f"v_mov_b32 v{dst}, {hex(OOB)}\nv_writelane_b32 v{dst}, s{soff_reg}, 0")
    def signal(self, a, soff_code, vt0, vt1, only_lw0=False, srd_=None, byte=False):
        srd_ = S_WS if srd_ is None else srd_
        a.e(soff_code)
        self.one_lane_addr(a, vt1, S_T, only_lw0)
        a.e(f"v_mov_b32 v{vt0}, s1\nbuffer_store_dword v{vt0}, v{vt1}, s[{srd_}:{srd_+3}], 0 offen sc1")
    def off_ijw(self, base, wreg):
        return f"s_lshl_b32 s{S_T}, s{S_I}, 6\ns_lshl_b32 s{S_T2}, s{S_J}, 2\ns_add_u32 s{S_T}, s{S_T}, s{S_T2}\ns_add_u32 s{S_T}, s{S_T}, s{wreg}\ns_lshl_b32 s{S_T}, s{S_T}, 2\ns_add_u32 s{S_T}, s{S_T}, {base}"
    def off_ij(self, base):
        return f"s_lshl_b32 s{S_T}, s{S_I}, 5\ns_add_u32 s{S_T}, s{S_T}, s{S_J}\ns_lshl_b32 s{S_T}, s{S_T}, 2\ns_add_u32 s{S_T}, s{S_T}, {base}"
    def off_ji(self, base):
        return f"s_lshl_b32 s{S_T}, s{S_J}, 5\ns_add_u32 s{S_T}, s{S_T}, s{S_I}\ns_lshl_b32 s{S_T}, s{S_T}, 2\ns_add_u32 s{S_T}, s{S_T}, {base}"
    def signal_last(self, a, k, nwaves, soff_code, vt0, vt1, label):
        a.e(f"v_mov_b32 v{vt0}, {SD_CNT + 4*k}\nv_mov_b32 v{vt1}, 1\ns_mov_b64 exec, 1")
        a.e(f"ds_add_rtn_u32 v{vt0}, v{vt0}, v{vt1}")
        a.e(soff_code)
        a.e(f"s_waitcnt lgkmcnt(0)\nv_readfirstlane_b32 s{S_T2}, v{vt0}\nv_mov_b32 v{vt0}, 0\nv_mov_b32 v{vt1}, s1\ns_nop 1\ns_cmp_eq_u32 s{S_T2}, {nwaves-1}\ns_cbranch_scc0 L_notlast_{label}")
        a.e(f"buffer_store_dword v{vt1}, v{vt0}, s[{S_WS}:{S_WS+3}], s{S_T} offen sc1")
        a.label(f"L_notlast_{label}")
        a.e("s_mov_b64 exec, -1"); a.lq = []
    def group_words(self, a, dst, base, grp_sreg):
        a.e(f"s_lshl_b32 s{S_T}, s{grp_sreg}, 7\ns_add_u32 s{S_T}, s{S_T}, {base}\nv_and_b32 v{dst}, 15, v{self.vL}\nv_lshlrev_b32 v{dst}, 2, v{dst}\nv_add_u32 v{dst}, s{S_T}, v{dst}")
    def row_words(self, a, dst, base, stride_shift, lane_shift):
        a.e(f"s_lshl_b32 s{S_T}, s{S_I}, {stride_shift}\ns_add_u32 s{S_T}, s{S_T}, {base}\nv_lshlrev_b32 v{dst}, {lane_shift}, v{self.vL}\nv_add_u32 v{dst}, s{S_T}, v{dst}")
    def lane0(self, a, body, label):
        a.e(f"v_cmp_eq_u32 vcc, 0, v{self.vL}\ns_and_saveexec_b64 s[{S_EX}:{S_EX+1}], vcc")
        a.e(body)
        a.e(f"s_mov_b64 exec, s[{S_EX}:{S_EX+1}]")
    def only_lw0(self, a, label, fn):
        a.e(f"s_cmp_lg_u32 s{S_LW}, 0\ns_cbranch_scc1 L_skip_{label}")
        fn()
        a.label(f"L_skip_{label}")

    def cfgs(self):
        base = dict(shape=16, loaders=True, split=True, xflag="", xoff0=0, read_frac=0.5, extra_start=0.3, WM=2, WN=2)
        q = Cfg(name="q", TN=192, K=1024, Kx=1024, xsrc="rm", ldx=2048, korder="std", ldw=6144, qkvseg=True, S=3,
                fcol=lambda wn, f: wn*32 + (64*(f//2) + 16*(f % 2)), orient=lambda f: "nm" if f >= 4 else "mn",
                woff=lambda a: a.e(f"s_lshl_b32 s{S_WOFF}, s{S_J}, 7"), **base)
        o = Cfg(name="o", TN=64, K=1024, Kx=1024, xsrc="fn", korder="fn32", ldw=2048, S=5,
                fcol=lambda wn, f: wn*32 + 16*f, orient=lambda f: "mn",
                woff=lambda a: a.e(f"s_lshl_b32 s{S_WOFF}, s{S_J}, 7"), **base)
        f1 = Cfg(name="f1", TN=224, K=1024, Kx=1024, xsrc="fn", korder="fn", ldw=7168, S=3,
                 fcol=lambda wn, f: (wn*128 + 16*f) if f < 6 else (wn*16 + 96), orient=lambda f: "mn",
                 woff=lambda a: a.e(f"s_mul_i32 s{S_WOFF}, s{S_J}, 448"), **base)
        def woff2(a):
            a.e(f"s_and_b32 s{S_T}, s{S_J}, 7\ns_lshl_b32 s{S_WOFF}, s{S_T}, 8\ns_lshr_b32 s{S_T}, s{S_J}, 3\ns_mul_i32 s{S_T}, s{S_T}, {1792*2048}\ns_add_u32 s{S_WOFF}, s{S_WOFF}, s{S_T}")
        f2 = Cfg(name="f2", TN=128, K=1792, Kx=3584, xsrc="fn", korder="fn", ldw=2048, S=4,
                 fcol=lambda wn, f: (wn*64 + S("kh")*32 + 16*f) if f < 2 else (wn*64 + (S("kh") ^ 1)*32 + 16*(f-2)), orient=lambda f: "mn", woff=woff2, **base)
        for c in (o, f1, f2): c.xflag = "sc1"
        q.rot = True; f1.rot = True; q.rotpos = self.o.get("qrot", 2); f1.rotpos = 0
        return q, o, f1, f2

    def xoff_fn(self, a, c, wsbase, khalf=False):
        a.e(f"s_mul_i32 s{S_XOFF}, s{S_I}, {(c.Kx//64)*16384}\ns_add_u32 s{S_XOFF}, s{S_XOFF}, {wsbase}")
        if khalf:
            a.e(f"s_lshr_b32 s{S_T}, s{S_J}, 3\ns_mul_i32 s{S_T}, s{S_T}, {28*16384}\ns_add_u32 s{S_XOFF}, s{S_XOFF}, s{S_T}")

    def build(self):
        C, L = self.C, self.L
        E = Asm()
        q, o, f1, f2 = self.cfgs()
        self.vL = 1; vt = [2, 3, 4, 5, 6, 7]; tmp2 = (8, 9); self.vL16 = 10; self.vZero = 11
        self.vt = vt
        gq, go, g1, g2 = [G(c, C, None, self.vL, vt) for c in (q, o, f1, f2)]
        self.g = (gq, go, g1, g2)
        E.e(f"s_cmp_ge_u32 s2, 256\ns_cbranch_scc1 L_end")
        if self.o.get("codepf", True):
            E.e("s_getpc_b64 s[96:97]")
            E.label("L_pc")
            E.e("v_lshlrev_b32 v2, 7, v0\ns_mov_b32 s3, L_end-L_pc\nv_min_u32 v2, s3, v2\nglobal_load_dword v254, v2, s[96:97]")
        E.e(f"s_load_dwordx16 s[{S_PTR}:{S_PTR+15}], s[0:1], 0\ns_load_dwordx2 s[{S_PTR+16}:{S_PTR+17}], s[0:1], 64")
        if self.o["diag"]:
            E.e("v_mov_b32 v255, 0\nv_mov_b32 v253, 0"); self.stamp(E, 0)
        E.e(f"s_and_b32 s{S_T}, s2, 7\ns_lshr_b32 s{S_T2}, s2, 3")
        E.e(f"s_lshr_b32 s{S_I}, s{S_T}, 2\ns_and_b32 s{S_J}, s{S_T}, 3\ns_lshl_b32 s{S_I}, s{S_I}, 3\ns_lshl_b32 s{S_J}, s{S_J}, 2")
        E.e(f"s_lshr_b32 s{S_T}, s{S_T2}, 2\ns_and_b32 s{S_T2}, s{S_T2}, 3\ns_add_u32 s{S_I}, s{S_I}, s{S_T}\ns_add_u32 s{S_J}, s{S_J}, s{S_T2}")
        E.e(f"v_and_b32 v{self.vL}, 63, v0\nv_lshrrev_b32 v2, 6, v0\ns_nop 0\nv_readfirstlane_b32 s{S_WV}, v2\nv_lshlrev_b32 v{self.vL16}, 4, v{self.vL}\nv_mov_b32 v{self.vZero}, 0\ns_nop 1")
        E.e(f"s_and_b32 s{S_LW}, s{S_WV}, 3\ns_lshr_b32 s{S_WM}, s{S_LW}, 1\ns_and_b32 s{S_WN}, s{S_LW}, 1")
        E.e(f"s_cmp_ge_u32 s{S_WV}, 4\ns_cbranch_scc1 L_loader")
        lv = Regs(12, 64)
        gq.alloc_loader(lv); go.alloc_loader(lv); g1.alloc_loader(lv); g2.alloc_loader(lv)
        self.lv_end = lv.n
        self.phase_q(gq, g1)
        self.attention()
        stop = self.o["stop_after"]
        self.phase_o(go)
        self.phase_f1(g1)
        self.phase_f2(g2)
        if self.o["diag"]:
            self.stamp(C, 15)
            C.e(f"s_cmp_lg_u32 s{S_WV}, 0\ns_cbranch_scc1 L_end")
            C.e(f"s_lshl_b32 s{S_T}, s2, 7\ns_add_u32 s{S_T}, s{S_T}, {common.WS_STAMP}\nv_lshlrev_b32 v2, 2, v{self.vL}")
            C.e(f"v_cmp_gt_u32 vcc, 32, v{self.vL}\ns_and_saveexec_b64 s[{S_EX}:{S_EX+1}], vcc")
            C.e(f"buffer_store_dword v255, v2, s[{S_WS}:{S_WS+3}], s{S_T} offen")
            if self.o.get("dbgout") is not None:
                C.e(f"s_cmp_lg_u32 s2, {self.o['dbgout']}\ns_cbranch_scc1 L_end")
                srd(C, S_DBG, *self.ptr(A_DBG), 256)
                C.e(f"v_readlane_b32 s{S_T}, v255, 0\ns_nop 3\nv_subrev_u32 v255, s{S_T}, v255\nv_cmp_gt_u32 vcc, 16, v{self.vL}\ns_nop 1\ns_and_b64 exec, exec, vcc\nv_cmp_lt_u32 vcc, 0, v{self.vL}\ns_nop 1\ns_and_b64 exec, exec, vcc")
                C.e(f"buffer_store_dword v255, v2, s[{S_DBG}:{S_DBG+3}], 0 offen")
        C.e("s_branch L_end")
        if self.o["diag"]:
            L.e(f"s_cmp_lg_u32 s{S_WV}, 4\ns_cbranch_scc1 L_end")
            L.e(f"s_lshl_b32 s{S_T}, s2, 9\ns_add_u32 s{S_T}, s{S_T}, {common.WS_STAMP + 131072}\nv_lshlrev_b32 v2, 2, v{self.vL}")
            L.e(f"buffer_store_dword v255, v2, s[{S_WS}:{S_WS+3}], s{S_T} offen\nbuffer_store_dword v253, v2, s[{S_WS}:{S_WS+3}], s{S_T} offen offset:256")
        txt = head(NAME) + E.text() + C.text() + "L_loader:\n" + L.text() + "  s_branch L_end\n" + self.A.text() + self.tail.text() + "L_end:\n  s_endpgm\n" + kd(NAME)
        return txt

    def srds_common(self, a):
        a.e("s_waitcnt lgkmcnt(0)")
        srd(a, S_WS, *self.ptr(A_WS), WS_BYTES)
        srd(a, S_DBG, *self.ptr(A_DBG), 256)

    def phase_q(self, g, g1):
        C, L, c = self.C, self.L, g.c
        vL, vt = self.vL, self.vt
        g.bind(L, vL, vt, (8, 9)); vm = VM(L)
        em = g.em
        L.e("s_setprio 1")
        g.setup_dma()
        if self.o.get("lpro"): self.lstamp("setup")
        L.e("s_waitcnt lgkmcnt(0)")
        srd(L, S_XSRD, *self.ptr(A_X), M*D*2)
        srd(L, S_WSRD, *self.ptr(A_WQKV), D*3*D*2)
        def issue(t):
            for ins in g.dma_list(t): L.e(ins)
            vm.iss(("st", t), c.nld)
        for ins in g.rot_init(): L.e(ins)
        L.e(f"s_mov_b32 s{S_WR}, 0")
        for s in range(2):
            issue(s); L.e(f"s_add_u32 s{S_WR}, s{S_WR}, {c.SB}")
            if self.o.get("lpro"): self.lstamp("iss")
        srd(L, S_WS, *self.ptr(A_WS), WS_BYTES); srd(L, S_DBG, *self.ptr(A_DBG), 256)
        sv = Regs(64, 250)
        ones = sv.alloc(4, 4); wf = [sv.alloc(4, 4) for _ in range(8)]; sacc = [sv.alloc(4, 4) for _ in range(4)]
        vS = [sv.alloc() for _ in range(8)]; ldr = sv.alloc(32, 4)
        t0, t1, t2 = vt[0:3]
        L.e(f"v_lshlrev_b32 v{t0}, 2, v{vL}\nv_add_u32 v{t0}, {SD_CNT}, v{t0}\nv_cmp_gt_u32 vcc, 8, v{vL}\ns_and_saveexec_b64 s[{S_EX}:{S_EX+1}], vcc")
        L.lds_other(f"ds_write_b32 v{t0}, v{self.vZero}"); L.e(f"s_mov_b64 exec, s[{S_EX}:{S_EX+1}]")
        for k in range(4): L.e(f"v_mov_b32 v{ones+k}, 0x3f803f80")
        vL4 = sv.alloc(); rq = [sv.alloc() for _ in range(4)]
        L.e(f"v_lshlrev_b32 v{vL4}, 2, v{vL}")
        cls_q = self.csum_setup(g, 3, rq)
        csq_code = f"s_lshl_b32 s{S_T}, s{S_I}, 4\ns_add_u32 s{S_T}, s{S_T}, s{S_J}\ns_mul_i32 s{S_T2}, s{S_T}, 768\ns_mul_i32 s{S_T}, s{S_LW}, 192\ns_add_u32 s{S_T2}, s{S_T2}, s{S_T}\ns_add_u32 s{S_T2}, s{S_T2}, {WS_CSQ}"
        if self.o.get("lpro"): self.lstamp("pre")
        vm.wait(("st", 0))
        if self.o.get("lpro"): self.lstamp("land")
        L.lds_drain(); self.bar_L_only()
        issue(2); L.e(f"s_mov_b32 s{S_WR}, 0")
        RP = c.rotpos
        if RP == 0: self.csum_reads(3, cls_q, rq, wf)
        vm.wait(("st", 1)); L.lds_drain(); self.bar_L_only()
        ns, S = c.nsteps, c.S
        def hook(t):
            if RP > 0 and t == RP - 1: self.csum_reads(3, cls_q, rq, wf)
            if t == RP: self.csum_finish(vm, 3, 12, ones, wf, sacc, vL4, csq_code)
            if t == 1:
                L.e(f"v_mov_b32 v{vS[2]}, {SD_TOK}\nds_read_b32 v{vS[2]}, v{vS[2]}\ns_waitcnt lgkmcnt(0)\nv_readfirstlane_b32 s1, v{vS[2]}")
            if t == 10:
                t0, t1 = vt[0:2]
                L.e(f"v_and_b32 v{t0}, 15, v{vL}\ns_lshl_b32 s{S_T}, s{S_I}, 5\nv_add_u32 v{t1}, s{S_T}, v{t0}\nv_lshlrev_b32 v{t0}, 5, v{t0}\nv_add_u32 v{t0}, s{S_J}, v{t0}")
                L.e(f"v_and_b32 v{vS[7]}, 16, v{vL}\nv_cmp_eq_u32 vcc, 0, v{vS[7]}\ns_nop 1\nv_cndmask_b32 v{vS[7]}, v{t0}, v{t1}, vcc\nv_lshlrev_b32 v{vS[7]}, 2, v{vS[7]}\nv_add_u32 v{vS[7]}, {F_Q}, v{vS[7]}")
                L.e(f"buffer_load_dword v{vS[6]}, v{vS[7]}, s[{S_WS}:{S_WS+3}], 0 offen sc1"); vm.iss("pollq")
            if t == 11:
                vm.wait("pollq")
                self.poll_test(L, vS[6])
                L.e("s_cbranch_scc1 L_qready")
                self.poll(L, S_WS, vS[7], vS[6], "q")
                L.label("L_qready")
                L.e(f"s_mul_i32 s{S_T2}, s{S_J}, 768\ns_mul_i32 s{S_T}, s{S_LW}, 192\ns_add_u32 s{S_T2}, s{S_T2}, s{S_T}\ns_add_u32 s{S_T2}, s{S_T2}, {WS_CSQ}")
                L.e(f"v_lshlrev_b32 v{vS[1]}, 2, v{vL}\nv_mov_b32 v{vS[2]}, {hex(OOB)}\nv_cmp_gt_u32 vcc, 48, v{vL}\ns_nop 1\nv_cndmask_b32 v{vS[1]}, v{vS[2]}, v{vS[1]}, vcc")
                for p in range(16):
                    L.e(f"buffer_load_dword v{ldr+p}, v{vS[1]}, s[{S_WS}:{S_WS+3}], s{S_T2} offen sc1\ns_add_u32 s{S_T2}, s{S_T2}, {16*768}")
                L.e(f"s_lshl_b32 s{S_T2}, s{S_I}, 7\ns_lshl_b32 s{S_T}, s{S_LW}, 5\ns_add_u32 s{S_T2}, s{S_T2}, s{S_T}\ns_lshl_b32 s{S_T2}, s{S_T2}, 3\ns_add_u32 s{S_T2}, s{S_T2}, {WS_ST1}")
                L.e(f"v_and_b32 v{vS[3]}, 31, v{vL}\nv_lshlrev_b32 v{vS[3]}, 3, v{vS[3]}\nbuffer_load_dwordx2 {vr(ldr+16,2)}, v{vS[3]}, s[{S_WS}:{S_WS+3}], s{S_T2} offen sc1")
                vm.iss("qld", 17)
            if t == 13:
                vm.wait("qld")
                for p in range(1, 16): L.e(f"v_add_f32 v{ldr}, v{ldr}, v{ldr+p}")
                L.e(f"s_mul_i32 s{S_T}, s{S_LW}, 192\ns_add_u32 s{S_T}, s{S_T}, {SD_CSQ}\nv_lshlrev_b32 v{vS[1]}, 2, v{vL}\nv_add_u32 v{vS[1]}, s{S_T}, v{vS[1]}")
                L.e(f"v_cmp_gt_u32 vcc, 48, v{vL}\ns_and_saveexec_b64 s[{S_EX}:{S_EX+1}], vcc\nds_write_b32 v{vS[1]}, v{ldr}\ns_mov_b64 exec, s[{S_EX}:{S_EX+1}]")
                L.e(f"v_and_b32 v{vS[3]}, 31, v{vL}\ns_lshl_b32 s{S_T}, s{S_LW}, 5\nv_add_u32 v{vS[3]}, s{S_T}, v{vS[3]}\nv_lshlrev_b32 v{vS[3]}, 2, v{vS[3]}\nv_add_u32 v{vS[3]}, {SD_MEAN1}, v{vS[3]}")
                L.e(f"ds_write_b32 v{vS[3]}, v{ldr+16}\nds_write_b32 v{vS[3]}, v{ldr+17} offset:512")
                L.e("s_waitcnt lgkmcnt(0)"); L.lq = []
        for t in range(ns-1):
            if t + S <= ns-1:
                issue(t+S); L.e(g.adv_slot(S_WR))
            hook(t)
            if t+2 <= ns-1 and ("st", t+2) in vm.q: vm.wait(("st", t+2))
            L.lds_drain()
            self.bar_L_only()
        g.bind(C, vL, vt, (8, 9))
        cv = Regs(12, 254); g.alloc_compute(cv)
        g.a = C
        C.e("s_setprio 3")
        a0 = g.acc[0][0]; xr = a0; un = a0 + 16; vS = [a0 + 48 + k for k in range(6)]
        C.e("s_waitcnt lgkmcnt(0)")
        self.stamp(C, 16)
        srd(C, S_XSRD, *self.ptr(A_X), M*D*2)
        srd(C, S_DBG, *self.ptr(A_DBG), 256)
        C.e(f"s_or_b32 s{S_T}, s2, s{S_LW}\ns_cmp_lg_u32 s{S_T}, 0\ns_cbranch_scc1 L_notok")
        C.e(f"s_memrealtime s[88:89]\ns_waitcnt lgkmcnt(0)\ns_or_b32 s88, s88, 1\nv_mov_b32 v{vt[0]}, s88")
        self.lane0(C, f"buffer_store_dword v{vt[0]}, v{self.vZero}, s[{S_DBG}:{S_DBG+3}], 0 offen sc1", "tok")
        C.label("L_notok")
        C.e(f"s_lshl_b32 s{S_T}, s{S_I}, 7\ns_lshl_b32 s{S_T2}, s{S_J}, 3\ns_add_u32 s{S_T}, s{S_T}, s{S_T2}\ns_lshl_b32 s{S_T2}, s{S_LW}, 1\ns_add_u32 s71, s{S_T}, s{S_T2}\ns_lshl_b32 s{S_T}, s71, 11")
        for r in range(2):
            for p in range(2):
                C.e(f"buffer_load_dwordx4 {vr(xr+8*r+4*p,4)}, v{self.vL16}, s[{S_XSRD}:{S_XSRD+3}], s{S_T} offen offset:{r*2048+p*1024}")
        srd(C, S_WS, *self.ptr(A_WS), WS_BYTES)
        g.setup_reads()
        C.e(f"s_lshl_b32 s{S_T}, s2, 2\ns_add_u32 s{S_T}, s{S_T}, s{S_LW}\ns_mul_i32 s{S_T2}, s{S_T}, 43691\ns_lshr_b32 s{S_T2}, s{S_T2}, 19\ns_mul_i32 s{S_T2}, s{S_T2}, 12\ns_sub_u32 s{S_T}, s{S_T}, s{S_T2}\ns_add_u32 s70, s{S_T}, 1" if False else "s_nop 0")
        self.stamp(C, 17)
        C.e("s_waitcnt vmcnt(0)")
        self.stamp(C, 18)
        vtok = cv.alloc()
        C.e(f"buffer_load_dword v{vtok}, v{self.vZero}, s[{S_DBG}:{S_DBG+3}], 0 offen sc1")
        for r in range(2):
            for d in range(8):
                C.e(f"v_lshlrev_b32 v{un+16*r+2*d}, 16, v{xr+8*r+d}\nv_and_b32 v{un+16*r+2*d+1}, 0xffff0000, v{xr+8*r+d}")
        def tree(dst, src):
            pass
        for r in range(2): C.e(f"v_add_f32 v{vS[r]}, v{un+16*r}, v{un+16*r+1}\nv_add_f32 v{vS[2+r]}, v{un+16*r+2}, v{un+16*r+3}")
        for k in range(4, 16, 2):
            for r in range(2): C.e(f"v_add_f32 v{vS[r]}, v{vS[r]}, v{un+16*r+k}\nv_add_f32 v{vS[2+r]}, v{vS[2+r]}, v{un+16*r+k+1}")
        for r in range(2): C.e(f"v_add_f32 v{vS[r]}, v{vS[r]}, v{vS[2+r]}")
        def allred2(x0, x1, ta, tb):
            for p in ["quad_perm:[1,0,3,2]", "quad_perm:[2,3,0,1]", "row_half_mirror", "row_mirror"]:
                C.e("s_nop 0")
                for x in (x0, x1): C.e(f"v_add_f32_dpp v{x}, v{x}, v{x} {p} row_mask:0xf bank_mask:0xf")
            for sw in ("v_permlane16_swap_b32", "v_permlane32_swap_b32"):
                C.e(f"v_mov_b32 v{ta}, v{x0}\nv_mov_b32 v{tb}, v{x1}\ns_nop 0\n{sw} v{ta}, v{x0}\n{sw} v{tb}, v{x1}\ns_nop 0\nv_add_f32 v{x0}, v{x0}, v{ta}\nv_add_f32 v{x1}, v{x1}, v{tb}")
        C.e("s_nop 0")
        allred2(vS[0], vS[1], vS[4], vS[5])
        for r in range(2): C.e(f"v_mul_f32 v{vS[r]}, {fhex(1/1024)}, v{vS[r]}")
        for k in range(16):
            for r in range(2): C.e(f"v_sub_f32 v{un+16*r+k}, v{un+16*r+k}, v{vS[r]}")
        for r in range(2): C.e(f"v_mul_f32 v{vS[2+r]}, v{un+16*r}, v{un+16*r}")
        for k in range(1, 16):
            for r in range(2): C.e(f"v_fmac_f32 v{vS[2+r]}, v{un+16*r+k}, v{un+16*r+k}")
        C.e("s_nop 0")
        allred2(vS[2], vS[3], vS[4], vS[5])
        for r in range(2): C.e(f"v_mul_f32 v{vS[2+r]}, {fhex(1/1024)}, v{vS[2+r]}\nv_add_f32 v{vS[2+r]}, {fhex(EPS)}, v{vS[2+r]}")
        for r in range(2): C.e(f"v_rsq_f32 v{vS[2+r]}, v{vS[2+r]}")
        C.e(f"v_mov_b32 v{un}, v{vS[0]}\nv_mov_b32 v{un+2}, v{vS[1]}\nv_mov_b32 v{un+1}, v{vS[2]}\nv_mov_b32 v{un+3}, v{vS[3]}")
        C.e(f"s_lshl_b32 s{S_T}, s71, 3\ns_add_u32 s{S_T}, s{S_T}, {WS_ST1}")
        self.lane0(C, f"buffer_store_dwordx4 {vr(un,4)}, v{self.vZero}, s[{S_WS}:{S_WS+3}], s{S_T} offen sc1", "st1")
        self.stamp(C, 19)
        nextra = 0
        t0, t1 = vt[0:2]
        if self.o.get("tlb", True):
            C.e(f"v_lshlrev_b32 v{t0}, 21, v{vL}")
            for arg, size in ((A_WQKV, D*3*D*2), (A_X, M*D*2), (A_WS, 54*MB), (A_WO, D*D*2), (A_W1, D*DFF*2), (A_W2, DFF*D*2), (A_OUT, M*D*2)):
                p = self.ptr(arg)[0]
                C.e(f"v_min_u32 v{t1}, {hex(size - 4)}, v{t0}\nglobal_load_dword v254, v{t1}, s[{p}:{p+1}]"); nextra += 1
        pfo = cv.alloc(); pf1 = cv.alloc()
        C.e(f"s_lshl_b32 s{S_T}, s2, 2\ns_add_u32 s{S_T}, s{S_T}, s{S_LW}")
        C.e(f"s_lshl_b32 s{S_T2}, s{S_T}, 4\nv_and_b32 v{pfo}, 15, v{vL}\nv_add_u32 v{pfo}, s{S_T2}, v{pfo}\nv_lshlrev_b32 v{pfo}, 7, v{pfo}")
        C.e(f"s_mul_i32 s{S_T2}, s{S_T}, 56\nv_min_u32 v{pf1}, 55, v{vL}\nv_add_u32 v{pf1}, s{S_T2}, v{pf1}\nv_lshlrev_b32 v{pf1}, 7, v{pf1}")
        def hookB(a):
            p = self.ptr(A_WO)[0]; a.e(f"global_load_dword v254, v{pfo}, s[{p}:{p+1}]")
            if self.o.get("pf_w1", False):
                p = self.ptr(A_W1)[0]; a.e(f"global_load_dword v254, v{pf1}, s[{p}:{p+1}]")
        C.e(f"s_and_b32 s{S_T}, s2, 56\ns_lshr_b32 s{S_T}, s{S_T}, 3\ns_add_u32 s71, s{S_T}, 3")
        def hookS(a):
            a.e(f"s_cmp_lg_u32 s{S_LW}, 0\ns_cbranch_scc1 L_nosigq")
            self.signal(a, self.off_ij(F_Q), vt[0], vt[1])
            a.label("L_nosigq")
        hk = {14 - (3 + c.rotpos): hookS}
        if self.o["pf_weights"]: hk["s71"] = hookB
        def peel_end():
            C.e(f"s_waitcnt vmcnt({nextra})")
            self.poll_test(C, vtok, token=False)
            C.e("s_cbranch_scc1 L_tokready")
            self.poll(C, S_DBG, self.vZero, vtok, "tok", token=False)
            C.label("L_tokready")
            C.e(f"v_readfirstlane_b32 s1, v{vtok}\nv_mov_b32 v{vt[0]}, {SD_TOK}\nds_write_b32 v{vt[0]}, v{vtok}\ns_waitcnt lgkmcnt(0)")
        self.cloop(g, stamps=(1, 2), hooks=hk, peel_first=peel_end)
        self.epi_q(g, cv)

    def bar_L_only(self):
        self.L.e("s_barrier"); self.lstamp()
    def lstamp(self, tag=''):
        if self.o["diag"] and self.o.get("lst") and self.nl < 128:
            self.L.e(f"s_memrealtime s[88:89]\ns_waitcnt lgkmcnt(0)\nv_writelane_b32 v{255 - 2*(self.nl//64)}, s88, {self.nl % 64}"); self.nl += 1; self.L.lq = []
            self.lnames.append(tag)
    def setup_w_only(self, g):
        c, a, em = g.c, g.a, g.em
        l, lw = g.l, g.lw
        cpr = c.TN//8
        mg, sh = magic_div(cpr, c.nWld*256)
        for n in range(c.nWld):
            flat = lw*(c.nWld*64) + l + n*64
            vr_, vp = g.v_tmp2
            em.vemit((flat*mg) >> sh, vr_); em.vr["row"] = vr_; row = V("row")
            em.vemit(flat - row*cpr, vp); em.vr["p"] = vp; p = V("p")
            ch = p ^ g.wswz(row)
            colb = ((ch >> 3) << 11) + ((ch & 7) << 4) if c.qkvseg else ch << 4
            em.vemit(row*c.ldw + colb - (n % 4)*1024, g.vWsrc[n])

    def slab_plan(self, gg, per):
        cc = gg.c; l = gg.l; lw = gg.lw
        def ex(k, ks, j):
            row = gg.wrow(ks, j)
            ch = (lw*per + k)*2 + ((l >> 1) & 1)
            return row*cc.RS + ((ch ^ gg.wswz(row)) << 4) + (l & 1)*8 + cc.XB + cc.rotpos*cc.SB
        keys = [(k, ks, j) for k in range(per) for ks in range(2) for j in range(2)]
        base = []; cls = {}
        for key in keys:
            t = [ex(*key).ev({"l": ll, "lw": w}) for w in range(4) for ll in range(64)]
            for ci, (bk, bt) in enumerate(base):
                ds = {p - q_ for p, q_ in zip(t, bt)}
                if len(ds) == 1 and 0 <= min(ds) < 65536: cls[key] = (ci, ds.pop()); break
            else:
                base.append((key, t)); cls[key] = (len(base)-1, 0)
        for w in range(4):
            for key in keys:
                assert banks.conflicts_b64([ex(*key).ev({"l": ll, "lw": w}) for ll in range(64)]) == 0
        return [ex(*b[0]) for b in base], cls
    def csum_setup(self, gg, per, regs):
        bases, cls = self.slab_plan(gg, per)
        assert len(bases) <= len(regs)
        gg.bind(self.L, self.vL, self.vt, (8, 9))
        for b, r in zip(bases, regs): gg.em.vemit(b, r)
        return cls
    def csum_reads(self, per, cls, regs, wf):
        L = self.L
        for k in range(per):
            for ks in range(2):
                for j in range(2):
                    ci, imm = cls[(k, ks, j)]; d = wf[2*k+ks] + 2*j
                    L.lds_rd(f"ds_read_b64_tr_b16 {vr(d,2)}, v{regs[ci]} offset:{imm}", rng(d, 2))
    def csum_finish(self, vm, per, nt_total, ones, wf, sacc, vL4, colbase_code):
        L = self.L
        for k in range(4): L.e(f"v_mov_b32 v{ones+k}, 0x3f803f80")
        L.e(colbase_code)
        for k in range(per): L.e(f"v_mfma_f32_16x16x32_bf16 {vr(sacc[k],4)}, {vr(ones,4)}, {vr(wf[2*k],4)}, 0")
        for k in range(per): L.e(f"v_mfma_f32_16x16x32_bf16 {vr(sacc[k],4)}, {vr(ones,4)}, {vr(wf[2*k+1],4)}, {vr(sacc[k],4)}")
        L.e(f"v_cmp_gt_u32 vcc, 16, v{self.vL}\ns_nop 7\ns_and_saveexec_b64 s[{S_EX}:{S_EX+1}], vcc")
        for k in range(per):
            if (3*per + k) == nt_total:
                L.e(f"s_cmp_eq_u32 s{S_LW}, 3\ns_cselect_b32 s{S_T2}, {hex(OOB - 4096)}, s{S_T2}")
            L.e(f"buffer_store_dword v{sacc[k]}, v{vL4}, s[{S_WS}:{S_WS+3}], s{S_T2} offen offset:{k*64} sc1"); vm.iss("cst")
        L.e(f"s_mov_b64 exec, s[{S_EX}:{S_EX+1}]")

    def prefetch_first(self, a, cv):
        vL = self.vL; t0, t1, t2 = self.vt[0:3]; d = cv.alloc(4)
        srd(a, S_XSRD, *self.ptr(A_X), M*D*2); srd(a, S_WSRD, *self.ptr(A_WQKV), D*3*D*2)
        a.e(f"s_lshr_b32 s{S_T}, s2, 3\ns_lshl_b32 s{S_T}, s{S_T}, 2\ns_add_u32 s{S_T}, s{S_T}, s{S_LW}")
        a.e(f"s_mul_i32 s{S_T2}, s{S_T}, 96")
        mg, sh = magic_div(12, 12288); mg3, sh3 = magic_div(3, 12)
        a.e(f"s_lshr_b32 s{S_T3}, s{S_J}, 2\ns_lshl_b32 s{S_T3}, s{S_T3}, 9")
        for n in range(2):
            a.e(f"v_add_u32 v{t0}, s{S_T2}, v{vL}\nv_add_u32 v{t0}, {48*n}, v{t0}")
            a.e(f"v_mul_u32_u24 v{t1}, {mg}, v{t0}\nv_lshrrev_b32 v{t1}, {sh}, v{t1}\nv_mul_u32_u24 v{t2}, 12, v{t1}\nv_sub_u32 v{t0}, v{t0}, v{t2}")
            a.e(f"v_mul_u32_u24 v{t2}, {mg3}, v{t0}\nv_lshrrev_b32 v{t2}, {sh3}, v{t2}")
            a.e(f"v_mul_u32_u24 v{t1}, 6144, v{t1}\nv_lshlrev_b32 v{d+2}, 7, v{t2}\nv_add_u32 v{t1}, v{t1}, v{d+2}")
            a.e(f"v_mul_u32_u24 v{t2}, 3, v{t2}\nv_sub_u32 v{t0}, v{t0}, v{t2}\nv_lshlrev_b32 v{t0}, 11, v{t0}\nv_add_u32 v{t1}, v{t1}, v{t0}")
            a.e(f"v_cmp_gt_u32 vcc, 48, v{vL}\nv_mov_b32 v{t0}, 0x7ffffff0\ns_nop 0\nv_cndmask_b32 v{t1}, v{t0}, v{t1}, vcc")
            a.e(f"buffer_load_dword v254, v{t1}, s[{S_WSRD}:{S_WSRD+3}], s{S_T3} offen")
        a.e(f"s_lshl_b32 s{S_T2}, s{S_T}, 7\ns_lshr_b32 s{S_T3}, s{S_I}, 3\ns_lshl_b32 s{S_T3}, s{S_T3}, 21")
        for n in range(2):
            a.e(f"v_add_u32 v{t0}, s{S_T2}, v{vL}\nv_add_u32 v{t0}, {64*n}, v{t0}\nv_and_b32 v{t1}, 1023, v{t0}\nv_lshlrev_b32 v{t1}, 11, v{t1}\nv_lshrrev_b32 v{t0}, 10, v{t0}\nv_lshlrev_b32 v{t0}, 7, v{t0}\nv_add_u32 v{t1}, v{t1}, v{t0}")
            a.e(f"buffer_load_dword v254, v{t1}, s[{S_XSRD}:{S_XSRD+3}], s{S_T3} offen")
    def prefetch_weights(self, a):
        vL = self.vL; t0, t1 = self.vt[0:2]
        a.e(f"s_lshl_b32 s{S_T}, s2, 2\ns_add_u32 s{S_T}, s{S_T}, s{S_LW}")
        for (arg, nbytes, per, d) in ((A_WO, D*D*2, 16, 2), (A_W1, D*DFF*2, 56, 3)) if self.o.get("pf_w1", True) else ((A_WO, D*D*2, 16, 2),):
            srd(a, S_E3, *self.ptr(arg), nbytes)
            a.e(f"s_mul_i32 s{S_T2}, s{S_T}, {per}\nv_add_u32 v{t0}, s{S_T2}, v{vL}\nv_lshlrev_b32 v{t0}, 7, v{t0}\nv_cmp_gt_u32 vcc, {per}, v{vL}\nv_mov_b32 v{t1}, 0x7ffffff0\ns_nop 0\nv_cndmask_b32 v{t0}, v{t1}, v{t0}, vcc")
            a.e(f"buffer_load_dword v254, v{t0}, s[{S_E3}:{S_E3+3}], 0 offen")
    def prefetch_w2(self, a):
        vL = self.vL; t0, t1 = self.vt[0:2]
        a.e(f"s_lshl_b32 s{S_T}, s2, 2\ns_add_u32 s{S_T}, s{S_T}, s{S_LW}")
        srd(a, S_E3, *self.ptr(A_W2), DFF*D*2)
        a.e(f"s_mul_i32 s{S_T2}, s{S_T}, 56\nv_add_u32 v{t0}, s{S_T2}, v{vL}\nv_lshlrev_b32 v{t0}, 7, v{t0}\nv_cmp_gt_u32 vcc, 56, v{vL}\nv_mov_b32 v{t1}, 0x7ffffff0\ns_nop 0\nv_cndmask_b32 v{t0}, v{t1}, v{t0}, vcc")
        a.e(f"buffer_load_dword v254, v{t0}, s[{S_E3}:{S_E3+3}], 0 offen")

    def cloop(self, g, stamps, hooks=None, peel_first=None):
        c, a = g.c, g.a
        NG = c.NSUB//c.G; S = c.S; ns = c.nsteps
        a.e(f"s_mov_b32 s{S_RD}, 0")
        for ins in g.set_read_addrs(): a.e(ins)
        a.lds_drain(); a.e("s_setprio 0\ns_barrier")
        self.stamp(a, stamps[0])
        for r in g.reads(0, 0): a.lds_rd(*r)
        st = 0
        for gi in range(NG-1):
            g.group(st, g.reads(st ^ 1, gi+1), [], first=(gi == 0)); st ^= 1
        a.e(g.adv_slot(S_RD))
        for ins in g.set_read_addrs(): a.e(ins)
        a.lds_drain(); a.e("s_barrier")
        par = st
        def body(loopctl=False):
            st = par
            for gi in range(NG):
                late = []; extra = []
                if gi == 0 and loopctl and hooks:
                    for cnt in hooks: extra.append(f"s_cmp_eq_u32 s{S_CNT}, {cnt}\ns_cbranch_scc1 L_hk_{c.name}_{cnt}\nL_hkb_{c.name}_{cnt}:")
                if gi == NG-1:
                    late.append(g.adv_slot(S_RD)); late += g.set_read_addrs()
                    if loopctl: late.append(f"s_sub_u32 s{S_CNT}, s{S_CNT}, 1\ns_cmp_lg_u32 s{S_CNT}, 0")
                g.group(st, g.reads(st ^ 1, gi), extra, late=late); st ^= 1
            a.lds_drain()
        nb = ns - 2
        if peel_first:
            body(False); peel_first(); a.e("s_barrier"); nb -= 1
        a.e(f"s_mov_b32 s{S_CNT}, {nb}\ns_branch L_loop_{c.name}")
        a.label(f"L_top_{c.name}"); a.e("s_barrier"); a.label(f"L_loop_{c.name}")
        body(True)
        a.e(f"s_cbranch_scc1 L_top_{c.name}\ns_barrier")
        body(False); a.e("s_barrier")
        g.group(par, [], [])
        a.e("s_setprio 3\ns_nop 6")
        self.stamp(a, stamps[1])
        for cnt, fn in (hooks or {}).items():
            t = self.tail
            t.label(f"L_hk_{c.name}_{cnt}"); fn(t); t.e(f"s_branch L_hkb_{c.name}_{cnt}")

    def epi_q(self, g, cv):
        C, L, c = self.C, self.L, g.c
        a = C; vL = self.vL; t0, t1, t2, t3, t4, t5 = self.vt
        em = g.em; l = g.l; wm, wn = g.wm, g.wn
        fr = g.frag0
        mu = fr; rs = fr+4; cs = fr+8; pk = fr+24; st = fr+32
        va = fr+64; vb = fr+65; vo = fr+66; vk = fr+67; sc = fr+68
        gq = l >> 4
        em.vemit((wm*64 + (l & 15))*4 + SD_MEAN1, va)
        for x in range(4):
            a.lds_rd(f"ds_read_b32 v{mu+x}, v{va} offset:{x*64}", [mu+x])
            a.lds_rd(f"ds_read_b32 v{rs+x}, v{va} offset:{512+x*64}", [rs+x])
        em.vemit((wn*32 + gq*4)*4 + SD_CSQ, vb)
        def cs_off(f): return (64*(f//2) + 16*(f % 2))*4
        for n, f in enumerate((2, 3, 0, 1)):
            a.lds_rd(f"ds_read_b128 {vr(cs+4*n,4)}, v{vb} offset:{cs_off(f)}", rng(cs+4*n, 4))
        csr = {2: cs, 3: cs+4, 0: cs+8, 1: cs+12}
        em.vemit(wn*49152 + l*16, vk)
        a.e(f"s_lshl_b32 s{S_T}, s{S_I}, 4\ns_add_u32 s{S_T}, s{S_T}, s{S_J}\ns_lshl_b32 s{S_T}, s{S_T}, 15\ns_lshl_b32 s{S_T2}, s{S_WN}, 14\ns_add_u32 s{S_T}, s{S_T}, s{S_T2}\ns_add_u32 s71, s{S_T}, {WS_KV}")
        def fold_mn(x, f, scale_reg):
            acc = g.acc[x][f]; c0 = csr[f]
            for p in range(2):
                a.e(f"v_pk_fma_f32 {vr(acc+2*p,2)}, {vr(mu+(x & ~1),2)}, {vr(c0+2*p,2)}, {vr(acc+2*p,2)} op_sel:[{x & 1},0,0] op_sel_hi:[{x & 1},1,1] neg_lo:[1,0,0] neg_hi:[1,0,0]")
            for p in range(2):
                a.e(f"v_pk_mul_f32 {vr(acc+2*p,2)}, {vr(scale_reg+(x & ~1),2)}, {vr(acc+2*p,2)} op_sel:[{x & 1},0] op_sel_hi:[{x & 1},1]")
        def pack2(dst, accA, accB):
            a.e(f"v_cvt_pk_bf16_f32 v{dst}, v{accA}, v{accA+1}\nv_cvt_pk_bf16_f32 v{dst+1}, v{accA+2}, v{accA+3}")
            a.e(f"v_cvt_pk_bf16_f32 v{dst+2}, v{accB}, v{accB+1}\nv_cvt_pk_bf16_f32 v{dst+3}, v{accB+2}, v{accB+3}")
        a.need(list(rng(mu, 8)) + list(rng(cs, 8)))
        a.e(f"s_lshl_b32 s{S_T3}, s{S_WM}, 12")
        a.e(f"v_add_u32 v{vo}, s{S_T3}, v{vk}")
        a.e(f"s_add_u32 s{S_T4}, s71, s{S_T3}")
        for x in range(4):
            fold_mn(x, 2, rs); fold_mn(x, 3, rs)
            p = pk + 4*(x & 1)
            pack2(p, g.acc[x][2], g.acc[x][3])
            a.e(f"buffer_store_dwordx4 {vr(p,4)}, v{self.vL16}, s[{S_WS}:{S_WS+3}], s{S_T4} offen offset:{x*1024} sc1")
            a.lds_other(f"ds_write_b128 v{vo}, {vr(p,4)} offset:{AT_K(0) + 2*8192 + x*1024}")
        em.vemit((wn*32 + (l & 15))*4 + SD_CSQ + 128*4, va)
        a.lds_rd(f"ds_read_b32 v{sc}, v{va}", [sc]); a.lds_rd(f"ds_read_b32 v{sc+1}, v{va} offset:64", [sc+1])
        em.vemit((wm*64 + gq*4)*4 + SD_MEAN1, vb)
        for x in range(4):
            a.lds_rd(f"ds_read_b128 {vr(st+4*x,4)}, v{vb} offset:{x*64}", rng(st+4*x, 4))
            a.lds_rd(f"ds_read_b128 {vr(st+16+4*x,4)}, v{vb} offset:{512+x*64}", rng(st+16+4*x, 4))
        a.e(f"s_lshl_b32 s{S_T3}, s{S_WM}, 12\ns_add_u32 s{S_T4}, s71, s{S_T3}\ns_add_u32 s{S_T4}, s{S_T4}, 8192")
        for xi in range(2):
            a.need(list(rng(st+8*xi, 8)) + list(rng(st+16+8*xi, 8)) + [sc, sc+1])
            for dl in range(2):
                for x in (2*xi, 2*xi+1):
                    acc = g.acc[x][4+dl]
                    for p in range(2):
                        a.e(f"v_pk_fma_f32 {vr(acc+2*p,2)}, {vr(st+4*x+2*p,2)}, {vr(sc,2)}, {vr(acc+2*p,2)} op_sel:[0,{dl},0] op_sel_hi:[1,{dl},1] neg_lo:[1,0,0] neg_hi:[1,0,0]")
                    for p in range(2):
                        a.e(f"v_pk_mul_f32 {vr(acc+2*p,2)}, {vr(st+16+4*x+2*p,2)}, {vr(acc+2*p,2)}")
                p = pk + 4*dl
                pack2(p, g.acc[2*xi][4+dl], g.acc[2*xi+1][4+dl])
                a.e(f"buffer_store_dwordx4 {vr(p,4)}, v{self.vL16}, s[{S_WS}:{S_WS+3}], s{S_T4} offen offset:{(xi*2+dl)*1024} sc1")
                a.lds_other(f"ds_write_b128 v{vo}, {vr(p,4)} offset:{AT_V(0) + 2*8192 + (xi*2+dl)*1024}")
        for x in range(4): a.e(f"v_mul_f32 v{rs+x}, {fhex(QSCALE)}, v{rs+x}")
        em.vemit(wn*8192 + wm*4096 + l*16 + AT_Q0, va)
        a.need(rng(cs+8, 8))
        for x in range(4):
            fold_mn(x, 0, rs); fold_mn(x, 1, rs)
            p = pk + 4*(x & 1)
            a.e("s_nop 0")
            pack2(p, g.acc[x][0], g.acc[x][1])
            a.lds_other(f"ds_write_b128 v{va}, {vr(p,4)} offset:{x*1024}")
        a.e("s_waitcnt vmcnt(0)")
        self.signal_last(a, 0, 4, self.off_ji(F_KV), t0, t1, "kv")
        self.stamp(C, 3)
        a.e("s_waitcnt lgkmcnt(0)"); a.lq = []
        self.lsetup(self.g[1], A_WO, D*D*2, WS_O)
        def kvpoll():
            L.e(f"s_sub_i32 s{S_T2}, s{S_I}, 1\ns_max_i32 s{S_T2}, s{S_T2}, 0\ns_sub_i32 s{S_XB0}, s{S_I}, 2\ns_max_i32 s{S_XB0}, s{S_XB0}, 0")
            L.e(f"v_mov_b32 v{t0}, s{S_T2}\nv_mov_b32 v{t1}, s{S_XB0}\nv_and_b32 v52, 1, v{vL}\nv_cmp_eq_u32 vcc, 0, v52\ns_nop 1\nv_cndmask_b32 v{t0}, v{t1}, v{t0}, vcc")
            L.e(f"v_lshlrev_b32 v{t0}, 2, v{t0}\ns_lshl_b32 s{S_T}, s{S_J}, 7\ns_add_u32 s{S_T}, s{S_T}, {F_KV}\nv_add_u32 v53, s{S_T}, v{t0}")
            self.poll(L, S_WS, 53, 52, "kv")
        L.e("s_mov_b32 s0, 1\ns_branch L_attn")
        L.label("L_kvstage")
        self.lstamp(); kvpoll(); self.lstamp()
        L.e(f"s_lshr_b32 s{S_T}, s{S_LW}, 1\ns_sub_i32 s{S_T2}, s{S_I}, 2\ns_add_i32 s{S_T2}, s{S_T2}, s{S_T}")
        L.e(f"s_lshl_b32 s{S_XB0}, s{S_T2}, 4\ns_add_u32 s{S_XB0}, s{S_XB0}, s{S_J}\ns_lshl_b32 s{S_XB0}, s{S_XB0}, 15\ns_and_b32 s{S_WB0}, s{S_LW}, 1\ns_lshl_b32 s{S_WB0}, s{S_WB0}, 14\ns_add_u32 s{S_XB0}, s{S_XB0}, s{S_WB0}\ns_add_u32 s{S_XB0}, s{S_XB0}, {WS_KV}")
        L.e(f"s_cmp_lt_i32 s{S_T2}, 0\ns_cselect_b32 s{S_XB0}, 0x7ff00000, s{S_XB0}")
        L.e(f"s_and_b32 s{S_WB0}, s{S_LW}, 1\ns_mul_i32 s{S_WB0}, s{S_WB0}, 49152\ns_lshl_b32 s{S_T}, s{S_T}, 13\ns_add_u32 s{S_WB0}, s{S_WB0}, s{S_T}")
        for part in range(2):
            for q4 in range(2):
                L.e(f"s_add_u32 m0, s{S_WB0}, {part*24576 + q4*4096}\ns_add_u32 s{S_T}, s{S_XB0}, {part*8192 + q4*4096}")
                for n in range(4):
                    L.e(f"buffer_load_dwordx4 v{self.vL16}, s[{S_WS}:{S_WS+3}], s{S_T} offen offset:{n*1024} sc1 lds")
        L.e("s_waitcnt vmcnt(8)" if self.o.get("kfirst", True) else "s_waitcnt vmcnt(0)")
        L.e("s_branch L_attn_go")
        C.e("s_mov_b32 s0, 0\ns_branch L_attn"); C.label("L_attn_back_c"); C.e("s_setprio 3")
        L.label("L_attn_back_l"); L.e("s_setprio 1")

    def attention(self):
        a = self.A; vL = self.vL; z = HZ(a)
        a.label("L_attn")
        a.e("s_setprio 3")
        l = V("l")
        em = Emitter(a, {"l": vL}, {"hh": S_T3, "om": S_T4}, self.vt, S_ET)
        hh, om = S("hh"), S("om")
        R = Regs(64, 253)
        QF = R.alloc(8, 4); KF = [R.alloc(8, 4) for _ in range(2)]; SS = [R.alloc(16, 4) for _ in range(3)]
        NM = R.alloc(16, 4); NG = R.alloc(16, 4); OO = R.alloc(16, 4); LL = R.alloc(16, 4)
        VF = [R.alloc(8, 4) for _ in range(2)]; PP = [R.alloc(8, 4) for _ in range(2)]; ONE = R.alloc(4, 4)
        vQ, vK, vV, MX, T0 = [R.alloc() for _ in range(5)]
        a.e(f"s_and_b32 s{S_T3}, s{S_WV}, 1\ns_lshr_b32 s{S_T4}, s{S_WV}, 1")
        a.e(f"s_lshl_b32 s71, s{S_I}, 2\ns_add_u32 s71, s71, s{S_T4}")
        h = l >> 5
        em.vemit(hh*8192 + om*2048 + ((l >> 4) & 1)*1024 + (h*16 + (l & 15))*16 + AT_Q0, vQ)
        em.vemit(hh*49152 + om*2048 + ((l >> 3) & 1)*1024 + (h*16 + (l & 7) + ((l >> 4) & 1)*8)*16, vK)
        for ex in (((l >> 4) & 1)*1024 + (h*16 + (l & 15))*16, ((l >> 3) & 1)*1024 + (h*16 + (l & 7) + ((l >> 4) & 1)*8)*16):
            assert banks.conflicts_b128([ex.ev({"l": x}) for x in range(64)]) == 0
        def rd(dst, addr, off): z.lds_rd(f"ds_read_b128 {vr(dst,4)}, v{addr} offset:{off}", rng(dst, 4), [addr])
        def kread(tt, b): rd(KF[b], vK, tt*2048); rd(KF[b]+4, vK, tt*2048 + 512)
        def vread(tt, b): rd(VF[b], vV, tt*2048); rd(VF[b]+4, vV, tt*2048 + 512)
        em.vemit(hh*49152 + om*2048 + ((l >> 4) & 1)*1024 + (h*16 + (l & 15))*16 + 24576, vV)
        t0_ = self.vt[0]; vPF = R.alloc()
        if self.o["pf_weights"]:
            a.e(f"s_lshl_b32 s{S_T}, s2, 3\ns_add_u32 s{S_T}, s{S_T}, s{S_WV}\ns_mul_i32 s{S_T}, s{S_T}, 28\nv_min_u32 v{vPF}, 27, v{vL}\nv_add_u32 v{vPF}, s{S_T}, v{vPF}\nv_lshlrev_b32 v{vPF}, 7, v{vPF}")
        mreg = [76+2*k for k in range(6)] + [90+2*k for k in range(6)] + [4, 6, 24, 26]
        for r in range(16):
            k0 = 16*((r >> 2) & 1) + 8*(r >> 3) + (r & 3)
            lo = (0xffffffff << k0) & 0xffffffff; hi = (0xffffffff << (k0+4)) & 0xffffffff
            a.e(f"s_mov_b32 s{mreg[r]}, {hex(lo)}\ns_mov_b32 s{mreg[r]+1}, {hex(hi)}")
        for r in range(16): z.emit(f"v_mov_b32 v{NG+r}, 0xf149f2ca", "valu", w=[NG+r])
        z.emit(f"v_mov_b32 v{MX}, 0xf149f2ca", "valu", w=[MX])
        for k in range(4): z.emit(f"v_mov_b32 v{ONE+k}, 0x3f803f80", "valu", w=[ONE+k])
        MF = "v_mfma_f32_32x32x16_bf16"
        def qk(tt, kb, sb, cval, tag):
            b = KF[kb]; s_ = SS[sb]
            z.lneed(list(rng(b, 4)) + list(rng(QF, 4)))
            ctxt = "0" if cval is None else vr(cval, 16); creg = [] if cval is None else list(rng(cval, 16))
            if tt < 8:
                z.other(f"s_cmp_ge_u32 s71, {8-tt}\ns_cbranch_scc0 L_inv_{tag}_{tt}")
            z.emit(f"{MF} {vr(s_,16)}, {vr(b,4)}, {vr(QF,4)}, {ctxt}", "mfma32", r=list(rng(b,4))+list(rng(QF,4)), w=rng(s_,16), c=creg + list(rng(NG,16)) if tt < 8 else creg)
            if tt < 8:
                a.label(f"L_invb_{tag}_{tt}")
                t = self.tail
                t.label(f"L_inv_{tag}_{tt}")
                t.e(f"{MF} {vr(s_,16)}, {vr(b,4)}, {vr(QF,4)}, {vr(NG,16)}\ns_branch L_invb_{tag}_{tt}")
            z.lneed(list(rng(b+4, 4)) + list(rng(QF+4, 4)))
            z.emit(f"{MF} {vr(s_,16)}, {vr(b+4,4)}, {vr(QF+4,4)}, {vr(s_,16)}", "mfma32", r=list(rng(b+4,4))+list(rng(QF+4,4)), w=rng(s_,16), c=rng(s_,16))
        def merge(sa, sb):
            for r in range(16):
                z.emit(f"v_cndmask_b32 v{SS[sa]+r}, v{SS[sa]+r}, v{SS[sb]+r}, s[{mreg[r]}:{mreg[r]+1}]", "valu", r=[SS[sa]+r, SS[sb]+r], w=[SS[sa]+r])
        def vmax(sb):
            for k in range(8): z.emit(f"v_max3_f32 v{MX}, v{MX}, v{SS[sb]+2*k}, v{SS[sb]+2*k+1}", "valu", r=[MX, SS[sb]+2*k, SS[sb]+2*k+1], w=[MX])
        a.e("s_cmp_eq_u32 s0, 1\ns_cbranch_scc1 L_kvstage")
        a.label("L_attn_go")
        a.e("s_barrier")
        self.stamp(a, 4)
        rd(QF, vQ, 0); rd(QF+4, vQ, 512); kread(0, 0); kread(8, 1)
        self.nyoung = 0
        if self.o["pf_weights"] and not self.o.get("pfmid", False):
            for arg in (A_W1, A_W2):
                p = self.ptr(arg)[0]; a.e(f"global_load_dword v254, v{vPF}, s[{p}:{p+1}]"); self.nyoung += 1
        self.stamp(a, 20)
        qk(0, 0, 0, None, "a"); kread(1, 0)
        qk(8, 1, 1, None, "a"); kread(2, 1)
        qk(1, 0, 2, None, "a"); kread(3, 0)
        merge(0, 1); vmax(0)
        sb_of = {1: 2}
        free = [0, 1]
        for tt in range(2, 8):
            sb = free.pop(0); sb_of[tt] = sb
            qk(tt, tt & 1 ^ 1 if False else (tt % 2 == 0 and 1 or 0), sb, None, "a")
            if tt+2 < 8: kread(tt+2, (tt % 2 == 0 and 1 or 0))
            vmax(sb_of[tt-1]); free.append(sb_of[tt-1])
        kread(0, 0)
        vmax(sb_of[7])
        self.stamp(a, 21)
        self.attn_mid(a, z)
        self.stamp(a, 22)
        nyoung = 0
        if self.o["pf_weights"] and self.o.get("pfmid", False):
            for arg in (A_W1, A_W2):
                p = self.ptr(arg)[0]; a.e(f"global_load_dword v254, v{vPF}, s[{p}:{p+1}]"); nyoung += 1
        kread(8, 1); vread(8, 0); vread(0, 1)
        z.emit(f"v_mov_b32 v{T0}, v{MX}", "valu", r=[MX], w=[T0])
        z.emit(f"v_permlane32_swap_b32 v{T0}, v{MX}", "perm", r=[T0, MX], w=[T0, MX])
        z.emit(f"v_max_f32 v{MX}, v{MX}, v{T0}", "valu", r=[MX, T0], w=[MX])
        for r in range(16): z.emit(f"v_sub_f32 v{NM+r}, 0, v{MX}", "valu", r=[MX], w=[NM+r])
        z.other("s_setprio 2")
        def vexp(sb):
            for r in range(16): z.emit(f"v_exp_f32 v{SS[sb]+r}, v{SS[sb]+r}", "trans", r=[SS[sb]+r], w=[SS[sb]+r])
        def cvt(sb, pb):
            for k in range(8): z.emit(f"v_cvt_pk_bf16_f32 v{PP[pb]+k}, v{SS[sb]+2*k}, v{SS[sb]+2*k+1}", "valu", r=[SS[sb]+2*k, SS[sb]+2*k+1], w=[PP[pb]+k])
        first = [True]
        def pv(vb, pb):
            b = VF[vb]; p = PP[pb]
            z.lneed(rng(b, 8))
            f = first[0]; first[0] = False
            z.emit(f"{MF} {vr(OO,16)}, {vr(b,4)}, {vr(p,4)}, {'0' if f else vr(OO,16)}", "mfma32", r=list(rng(b,4))+list(rng(p,4)), w=rng(OO,16), c=[] if f else rng(OO,16))
            z.emit(f"{MF} {vr(LL,16)}, {vr(ONE,4)}, {vr(p,4)}, {'0' if f else vr(LL,16)}", "mfma32", r=list(rng(ONE,4))+list(rng(p,4)), w=rng(LL,16), c=[] if f else rng(LL,16))
            z.emit(f"{MF} {vr(OO,16)}, {vr(b+4,4)}, {vr(p+4,4)}, {vr(OO,16)}", "mfma32", r=list(rng(b+4,4))+list(rng(p+4,4)), w=rng(OO,16), c=rng(OO,16))
            z.emit(f"{MF} {vr(LL,16)}, {vr(ONE,4)}, {vr(p+4,4)}, {vr(LL,16)}", "mfma32", r=list(rng(ONE,4))+list(rng(p+4,4)), w=rng(LL,16), c=rng(LL,16))
        qk(0, 0, 0, NM, "b"); kread(1, 0)
        qk(8, 1, 1, NM, "b"); kread(2, 1)
        qk(1, 0, 2, NM, "b"); kread(3, 0)
        merge(0, 1); vexp(0)
        for r in range(16): z.emit(f"v_cndmask_b32 v{SS[1]+r}, 0, v{SS[0]+r}, s[{mreg[r]}:{mreg[r]+1}]", "valu", r=[SS[0]+r], w=[SS[1]+r])
        for r in range(16): z.emit(f"v_sub_f32 v{SS[0]+r}, v{SS[0]+r}, v{SS[1]+r}", "valu", r=[SS[0]+r, SS[1]+r], w=[SS[0]+r])
        cvt(1, 0); cvt(0, 1)
        pv(0, 0); vread(1, 0)
        pv(1, 1); vread(2, 1)
        sb_of = {1: 2}; free = [0, 1]
        for tt in range(1, 8):
            if tt+1 < 8:
                sb = free.pop(0); sb_of[tt+1] = sb; kb = 1 if (tt+1) % 2 == 0 else 0
                qk(tt+1, kb, sb, NM, "b")
                if tt+3 < 8: kread(tt+3, kb)
            if tt in (3, 6): z.other(f"s_setprio {1 if tt == 3 else 0}")
            cur = sb_of[tt]
            vexp(cur); cvt(cur, tt & 1); free.append(cur)
            vb = 0 if tt % 2 == 1 else 1
            pv(vb, tt & 1)
            if tt+2 < 8: vread(tt+2, vb)
        self.stamp(a, 23)
        srd(a, S_WS, *self.ptr(A_WS), WS_BYTES)
        em.vemit((om*2 + ((l >> 4) & 1))*2048 + hh*1024 + ((l & 15) + h*16)*16, vQ)
        a.e(f"s_lshl_b32 s{S_T}, s{S_I}, 4\ns_add_u32 s{S_T}, s{S_T}, s{S_J}\ns_lshl_b32 s{S_T}, s{S_T}, 14\ns_add_u32 s{S_T}, s{S_T}, {WS_O}")
        z.emit(f"v_rcp_f32 v{T0}, v{LL}", "trans", r=[LL], w=[T0])
        for r in range(16): z.emit(f"v_mul_f32 v{OO+r}, v{T0}, v{OO+r}", "valu", r=[T0, OO+r], w=[OO+r])
        for s in range(2):
            for k in range(4): z.emit(f"v_cvt_pk_bf16_f32 v{PP[s]+k}, v{OO+8*s+2*k}, v{OO+8*s+2*k+1}", "valu", r=[OO+8*s+2*k, OO+8*s+2*k+1], w=[PP[s]+k])
            a.e(f"buffer_store_dwordx4 {vr(PP[s],4)}, v{vQ}, s[{S_WS}:{S_WS+3}], s{S_T} offen offset:{s*512} sc1")
        self.stamp(a, 24)
        a.e("s_waitcnt vmcnt(0)")
        self.stamp(a, 25)
        self.signal_last(a, 1, 8, self.off_ij(F_O), vK, vV, "o")
        a.e("s_cmp_eq_u32 s0, 1\ns_cbranch_scc1 L_attn_back_l\ns_branch L_attn_back_c")
    def attn_mid(self, a, z):
        if self.o.get("kfirst", True):
            z.other(f"s_cmp_eq_u32 s0, 1\ns_cbranch_scc0 L_att_nov\ns_waitcnt vmcnt({self.nyoung})\nL_att_nov:")
            a.lds_drain(); z.other("s_barrier")

    def lsetup(self, g, warg, wbytes, xbase, khalf=False):
        L = self.L; c = g.c
        g.bind(L, self.vL, self.vt, (8, 9))
        srd(L, S_WSRD, *self.ptr(warg), wbytes)
        self.setup_w_only(g)
        g.em.vemit(g.lw*4096 + g.l*16, g.vXsrc[0])
        c.woff(L)
        self.xoff_fn(L, c, xbase, khalf)
        L.e(f"s_lshl_b32 s{S_XL}, s{S_LW}, 12")
        L.e(f"s_mul_i32 s{S_WL}, s{S_LW}, {c.nWld*1024}\ns_add_u32 s{S_WL}, s{S_WL}, {c.XB}")
    def lweights(self, g):
        L = self.L; c = g.c
        for ins in g.rot_init(): L.e(ins)
        L.e(f"s_mov_b32 s{S_WR}, 0")
        for s in range(c.S):
            for ins in g.stage_off(s) + g.dma_w(): L.e(ins)
            L.e(f"s_add_u32 s{S_WR}, s{S_WR}, {c.SB}")
    def cpoll(self, flag, label, skip_own=False):
        C = self.C; t0, t1, t2 = self.vt[0:3]
        C.e(f"s_cmp_lg_u32 s{S_LW}, 0\ns_cbranch_scc1 L_nocpoll_{label}")
        self.group_words(C, t2, flag, S_I)
        if skip_own:
            C.e(f"s_xor_b32 s{S_T2}, s{S_J}, 1\ns_lshl_b32 s{S_T2}, s{S_T2}, 2\ns_add_u32 s{S_T2}, s{S_T2}, s{S_T}\nv_and_b32 v{t0}, 15, v{self.vL}\nv_mov_b32 v{t1}, s{S_T2}\nv_cmp_eq_u32 vcc, s{S_J}, v{t0}\ns_nop 1\nv_cndmask_b32 v{t2}, v{t2}, v{t1}, vcc")
        self.poll(C, S_WS, t2, t0, label)
        C.label(f"L_nocpoll_{label}")
        C.e("s_barrier")
    def lphase(self, g, flag, label, hooks=None, npeel=0, after_poll=None, first_hooks=None):
        L = self.L; c = g.c; vm = VM(L); S = c.S; ns = c.nsteps
        hooks = hooks or {}
        g.bind(L, self.vL, self.vt, (8, 9))
        srd(L, S_XSRD, *self.ptr(A_WS), WS_BYTES)
        self.lstamp()
        L.e("s_barrier")
        self.lstamp()
        L.e(f"s_mov_b32 s{S_WR}, 0")
        for s in range(S):
            for ins in g.stage_off(s) + g.dma_x(): L.e(ins)
            vm.iss(("st", s), c.nXld)
            L.e(f"s_add_u32 s{S_WR}, s{S_WR}, {c.SB}")
        L.e(f"s_mov_b32 s{S_WR}, 0")
        if after_poll: after_poll(vm)
        vm.wait(("st", 0)); L.lds_drain(); L.e("s_barrier"); self.lstamp()
        if first_hooks: first_hooks[0](vm)
        vm.wait(("st", 1)); L.lds_drain(); L.e("s_barrier")
        def issue(t):
            for ins in g.dma_list(t): L.e(ins)
            vm.iss(("st", t), c.nld); L.e(g.adv_slot(S_WR))
        npeel = max(npeel, S-2)
        nb = ns - S
        if self.o.get("lsteps"): npeel = nb
        for t in range(npeel):
            issue(t+S)
            if t in hooks: hooks[t](vm)
            if ("st", t+2) in vm.q: vm.wait(("st", t+2))
            L.lds_drain(); L.e("s_barrier")
            if self.o.get("lsteps"): self.lstamp(label + str(t))
        if nb - npeel > 0:
            if getattr(c, "rot", False): L.e(f"s_mov_b32 s{S_N}, {npeel + S - 1}")
            L.e(f"s_mov_b32 s{S_CNT}, {nb - npeel}")
            L.label(f"L_lloop_{label}")
            for ins in g.dma_list(): L.e(ins)
            L.e(g.adv_slot(S_WR))
            L.e(f"s_waitcnt vmcnt({(S-2)*c.nld})\ns_barrier")
            L.e(f"s_sub_u32 s{S_CNT}, s{S_CNT}, 1\ns_cmp_lg_u32 s{S_CNT}, 0\ns_cbranch_scc1 L_lloop_{label}")
        for t in range(nb, ns-1):
            if t+2 <= ns-1: L.e(f"s_waitcnt vmcnt({min(ns-1-(t+2), S-2)*c.nld})")
            L.e("s_barrier")
            if self.o.get("lsteps"): self.lstamp(label + str(t))

    def phase_o(self, g):
        C, L, c = self.C, self.L, g.c
        vL = self.vL; t0, t1, t2, t3, t4, t5 = self.vt
        self.stamp(C, 5)
        self.bar()
        self.lweights(g)
        a = C; g.bind(C, vL, self.vt, (8, 9)); cv = Regs(12, 254); g.alloc_compute(cv)
        em = g.em; l, wm, wn = g.l, g.wm, g.wn
        g.setup_reads()
        xr = cv.alloc(16, 4); va = cv.alloc(); pk = cv.alloc(8, 4); sm = cv.alloc(8, 4); tm = cv.alloc(8, 4); m2 = cv.alloc(8, 4)
        srd(a, S_XSRD, *self.ptr(A_X), M*D*2)
        em.vemit((l & 15)*2048 + (l >> 4)*8, va)
        def resid(a):
            a.e(f"s_lshl_b32 s{S_T}, s{S_I}, 1\ns_add_u32 s{S_T}, s{S_T}, s{S_WM}\ns_lshl_b32 s{S_T}, s{S_T}, 17\ns_lshl_b32 s{S_T2}, s{S_J}, 7\ns_add_u32 s{S_T}, s{S_T}, s{S_T2}\ns_lshl_b32 s{S_T2}, s{S_WN}, 6\ns_add_u32 s{S_T}, s{S_T}, s{S_T2}")
            for x in range(4):
                for f in range(2):
                    a.e(f"buffer_load_dwordx2 {vr(xr+4*x+2*f,2)}, v{va}, s[{S_XSRD}:{S_XSRD+3}], s{S_T} offen offset:{f*32}")
                if x < 3: a.e(f"s_add_u32 s{S_T}, s{S_T}, {16*2048}")
        a.e(f"s_cmp_eq_u32 s{S_LW}, 0\ns_cbranch_scc1 L_ores0"); resid(a); a.label("L_ores0")
        def hookO(a):
            a.e(f"s_cmp_lg_u32 s{S_LW}, 0\ns_cbranch_scc1 L_ores1"); resid(a); a.label("L_ores1")
        self.cpoll(F_O, "o", skip_own=True)
        self.lphase(g, F_O, "o")
        g1 = self.g[2]
        self.lsetup(g1, A_W1, D*DFF*2, WS_H)
        g.bind(C, vL, self.vt, (8, 9)); g.a = C
        self.cloop(g, stamps=(6, 7), hooks={c.nsteps - 3: hookO})
        a.e("s_waitcnt vmcnt(0)")
        for x in range(4):
            for f in range(2):
                acc = g.acc[x][f]
                for d in range(2):
                    src = xr + 4*x + 2*f + d
                    a.e(f"v_lshlrev_b32 v{t0}, 16, v{src}\nv_and_b32 v{t1}, 0xffff0000, v{src}")
                    a.e(f"v_add_f32 v{acc+2*d}, v{acc+2*d}, v{t0}\nv_add_f32 v{acc+2*d+1}, v{acc+2*d+1}, v{t1}")
        a.e(f"s_lshl_b32 s{S_T}, s{S_I}, 4\ns_add_u32 s{S_T}, s{S_T}, s{S_J}\ns_lshl_b32 s{S_T}, s{S_T}, 14\ns_lshl_b32 s{S_T2}, s{S_WM}, 13\ns_add_u32 s{S_T}, s{S_T}, s{S_T2}\ns_lshl_b32 s{S_T2}, s{S_WN}, 10\ns_add_u32 s{S_T}, s{S_T}, s{S_T2}\ns_add_u32 s{S_T}, s{S_T}, {WS_H}")
        for x in range(4):
            p = pk + 4*(x & 1); A, B = g.acc[x][0], g.acc[x][1]
            a.e(f"v_cvt_pk_bf16_f32 v{p}, v{A}, v{A+1}\nv_cvt_pk_bf16_f32 v{p+1}, v{A+2}, v{A+3}\nv_cvt_pk_bf16_f32 v{p+2}, v{B}, v{B+1}\nv_cvt_pk_bf16_f32 v{p+3}, v{B+2}, v{B+3}")
            if x == 2: a.e(f"s_add_u32 s{S_T}, s{S_T}, 4096")
            a.e(f"buffer_store_dwordx4 {vr(p,4)}, v{self.vL16}, s[{S_WS}:{S_WS+3}], s{S_T} offen offset:{(x & 1)*2048} sc1")
        self.bar()
        self.lweights(self.g[2])
        a.e("s_waitcnt vmcnt(0)")
        self.signal_last(a, 2, 4, self.off_ij(F_H), t0, t1, "h")
        self.stamp(C, 8)
        def xlane(regs):
            for sw in ("v_permlane16_swap_b32", "v_permlane32_swap_b32"):
                for k, r in enumerate(regs): a.e(f"v_mov_b32 v{tm+k}, v{r}")
                a.e("s_nop 1")
                for k, r in enumerate(regs): a.e(f"{sw} v{tm+k}, v{r}")
                a.e("s_nop 1")
                for k, r in enumerate(regs): a.e(f"v_add_f32 v{r}, v{r}, v{tm+k}")
        for x in range(4):
            A, B = g.acc[x][0], g.acc[x][1]
            a.e(f"v_add_f32 v{sm+2*x}, v{A}, v{A+1}")
            for r in [A+2, A+3, B, B+1, B+2, B+3]: a.e(f"v_add_f32 v{sm+2*x}, v{sm+2*x}, v{r}")
        xlane([sm+2*x for x in range(4)])
        for x in range(4):
            A, B = g.acc[x][0], g.acc[x][1]
            a.e(f"v_mul_f32 v{t0}, {fhex(1/32)}, v{sm+2*x}")
            a.e(f"v_sub_f32 v{t1}, v{A}, v{t0}\nv_mul_f32 v{sm+2*x+1}, v{t1}, v{t1}")
            for r in [A+1, A+2, A+3, B, B+1, B+2, B+3]: a.e(f"v_sub_f32 v{t1}, v{r}, v{t0}\nv_fmac_f32 v{sm+2*x+1}, v{t1}, v{t1}")
        xlane([sm+2*x+1 for x in range(4)])
        a.e(f"s_lshl_b32 s{S_T}, s{S_J}, 1\ns_add_u32 s{S_T}, s{S_T}, s{S_WN}\ns_lshl_b32 s{S_T}, s{S_T}, 11\ns_lshl_b32 s{S_T2}, s{S_I}, 7\ns_add_u32 s{S_T}, s{S_T}, s{S_T2}\ns_lshl_b32 s{S_T2}, s{S_WM}, 6\ns_add_u32 s{S_T}, s{S_T}, s{S_T2}\ns_lshl_b32 s{S_T}, s{S_T}, 3\ns_add_u32 s{S_T}, s{S_T}, {WS_ST2}")
        a.e(f"v_lshlrev_b32 v{t0}, 3, v{vL}\nv_cmp_gt_u32 vcc, 16, v{vL}\ns_and_saveexec_b64 s[{S_EX}:{S_EX+1}], vcc")
        for x in range(4):
            a.e(f"buffer_store_dwordx2 {vr(sm+2*x,2)}, v{t0}, s[{S_WS}:{S_WS+3}], s{S_T} offen offset:{x*128} sc1")
        a.e(f"s_mov_b64 exec, s[{S_EX}:{S_EX+1}]\ns_waitcnt vmcnt(0)")
        self.signal_last(a, 4, 4, self.off_ij(F_S2), t0, t1, "s2")

    def phase_f1(self, g):
        C, L, c = self.C, self.L, g.c
        vL = self.vL; t0, t1, t2, t3, t4, t5 = self.vt
        ps = 64; cp = 96; mu, m2 = 112, 113
        def s2a(vm):
            self.group_words(L, 56, F_S2, S_I)
            L.e(f"buffer_load_dword v57, v56, s[{S_WS}:{S_WS+3}], 0 offen sc1"); vm.iss("ps2")
        def s2b(vm):
            vm.wait("ps2")
            self.poll_test(L, 57)
            L.e("s_cbranch_scc1 L_s2ready")
            self.poll(L, S_WS, 56, 57, "s2")
            L.label("L_s2ready")
            L.e(f"v_and_b32 v{t0}, 31, v{vL}\nv_lshrrev_b32 v{t1}, 5, v{vL}\nv_lshlrev_b32 v{t1}, 15, v{t1}\nv_add_u32 v{t0}, v{t0}, v{t1}\nv_lshlrev_b32 v54, 3, v{t0}")
            L.e(f"s_lshl_b32 s{S_T2}, s{S_I}, 7\ns_lshl_b32 s{S_T3}, s{S_LW}, 5\ns_add_u32 s{S_T2}, s{S_T2}, s{S_T3}\ns_lshl_b32 s{S_T2}, s{S_T2}, 3\ns_add_u32 s{S_T2}, s{S_T2}, {WS_ST2}")
            for p in range(16):
                L.e(f"buffer_load_dwordx2 {vr(ps+2*p,2)}, v54, s[{S_WS}:{S_WS+3}], s{S_T2} offen sc1\ns_add_u32 s{S_T2}, s{S_T2}, {2048*8}")
            vm.iss("ps", 16)
        def h0(vm):
            vm.wait("ps")
            L.e(f"v_add_f32 v{mu}, v{ps}, v{ps+2}")
            for p in range(2, 16): L.e(f"v_add_f32 v{mu}, v{mu}, v{ps+2*p}")
            half_add(L, mu, t0)
            L.e(f"v_mul_f32 v{mu}, {fhex(1/1024)}, v{mu}\nv_mov_b32 v{m2}, 0")
        def h1(vm):
            for p in range(16):
                L.e(f"v_fma_f32 v{t1}, v{ps+2*p}, v115, -v{mu}\nv_mul_f32 v{t1}, v{t1}, v{t1}\nv_fma_f32 v{t1}, v{t1}, v116, v{ps+2*p+1}\nv_add_f32 v{m2}, v{m2}, v{t1}")
            half_add(L, m2, t0)
            L.e(f"v_mul_f32 v{m2}, {fhex(1/1024)}, v{m2}\nv_add_f32 v{m2}, {fhex(EPS)}, v{m2}\nv_rsq_f32 v{m2}, v{m2}")
            L.e(f"v_and_b32 v{t0}, 31, v{vL}\ns_lshl_b32 s{S_T}, s{S_LW}, 5\nv_add_u32 v{t0}, s{S_T}, v{t0}\nv_lshlrev_b32 v{t0}, 2, v{t0}\nv_add_u32 v{t0}, {SD_MEAN2}, v{t0}")
            L.e(f"ds_write_b32 v{t0}, v{mu}\nds_write_b32 v{t0}, v{m2} offset:512")
        def h0b(vm):
            h0(vm); L.e(f"v_mov_b32 v115, {fhex(1/32)}\nv_mov_b32 v116, {fhex(32.0)}")
        ones, wf, sacc, r1, vL4 = 120, [124 + 4*k for k in range(8)], [156 + 4*k for k in range(4)], [172, 173, 174, 175], 176
        box = {}
        def pre_cs1():
            L.e(f"v_lshlrev_b32 v{vL4}, 2, v{vL}")
            box["cls"] = self.csum_setup(g, 4, r1)
        cs1_code = f"s_lshl_b32 s{S_T}, s{S_I}, 4\ns_add_u32 s{S_T}, s{S_T}, s{S_J}\ns_mul_i32 s{S_T2}, s{S_T}, 896\ns_lshl_b32 s{S_T}, s{S_LW}, 8\ns_add_u32 s{S_T2}, s{S_T2}, s{S_T}\ns_add_u32 s{S_T2}, s{S_T2}, {WS_CS1}"
        fh = (lambda vm: self.csum_reads(4, box["cls"], r1, wf), lambda vm: self.csum_finish(vm, 4, 14, ones, wf, sacc, vL4, cs1_code))
        def hsig(vm):
            self.signal(L, self.off_ji(F_CS1), 52, 53, only_lw0=True); vm.iss("sig")
        def h2a(vm):
            L.e(f"s_lshl_b32 s{S_T}, s{S_J}, 7\ns_add_u32 s{S_T}, s{S_T}, {F_CS1}\nv_and_b32 v52, 15, v{vL}\nv_lshlrev_b32 v52, 2, v52\nv_add_u32 v52, s{S_T}, v52")
            L.e(f"buffer_load_dword v53, v52, s[{S_WS}:{S_WS+3}], 0 offen sc1"); vm.iss("pc")
        def h2(vm):
            vm.wait("pc")
            self.poll_test(L, 53, False)
            L.e("s_cbranch_scc1 L_cs1ready")
            self.poll(L, S_WS, 52, 53, "cs1")
            L.label("L_cs1ready")
            L.e(f"s_mul_i32 s{S_T2}, s{S_J}, 896\ns_mul_i32 s{S_T}, s{S_LW}, 224\ns_add_u32 s{S_T2}, s{S_T2}, s{S_T}\ns_add_u32 s{S_T2}, s{S_T2}, {WS_CS1}")
            L.e(f"v_lshlrev_b32 v55, 2, v{vL}\nv_cmp_gt_u32 vcc, 56, v{vL}\nv_mov_b32 v{t1}, 0x7ffffff0\ns_nop 0\nv_cndmask_b32 v55, v{t1}, v55, vcc")
            for p in range(16):
                L.e(f"buffer_load_dword v{cp+p}, v55, s[{S_WS}:{S_WS+3}], s{S_T2} offen sc1\ns_add_u32 s{S_T2}, s{S_T2}, {16*896}")
            vm.iss("cp", 16)
        def h4(vm):
            vm.wait("cp")
            for p in range(1, 16): L.e(f"v_add_f32 v{cp}, v{cp}, v{cp+p}")
            L.e(f"s_mul_i32 s{S_T}, s{S_LW}, 224\ns_add_u32 s{S_T}, s{S_T}, {SD_CS1}\nv_lshlrev_b32 v{t0}, 2, v{vL}\nv_add_u32 v{t0}, s{S_T}, v{t0}")
            L.e(f"v_cmp_gt_u32 vcc, 56, v{vL}\ns_and_saveexec_b64 s[{S_EX}:{S_EX+1}], vcc\nds_write_b32 v{t0}, v{cp}\ns_mov_b64 exec, s[{S_EX}:{S_EX+1}]")
        def mark(n):
            def fn(vm):
                if n == 0:
                    for k in range(4): L.e(f"v_mov_b32 v{180+k}, -1")
                    L.e(f"s_lshl_b32 s{S_T}, s{S_I}, 4\ns_add_u32 s{S_T}, s{S_T}, s{S_J}\ns_lshl_b32 s{S_T}, s{S_T}, 15\ns_lshl_b32 s{S_T2}, s{S_LW}, 13\ns_add_u32 s{S_T}, s{S_T}, s{S_T2}\ns_add_u32 s71, s{S_T}, {WS_XCH}")
                L.e(f"s_add_u32 s{S_T}, s71, {n*1024}\nbuffer_store_dwordx4 v[180:183], v{self.vL16}, s[{S_WS}:{S_WS+3}], s{S_T} offen sc1"); vm.iss("mark")
            return fn
        F1HOOKS = {0: fh[1], 2: s2a, 3: lambda vm: (hsig(vm), s2b(vm)), 5: h0b, 6: h1, 8: h2a, 9: h2, 11: h4}; F1PEEL = 12
        if self.o.get("sentinel", True):
            for n in range(8):
                prev = F1HOOKS.get(n); mk_ = mark(n)
                F1HOOKS[n] = (lambda vm, p=prev, m=mk_: (m(vm), p(vm) if p else None))
        a = C; g.bind(C, vL, self.vt, (8, 9)); cv = Regs(12, 254); g.alloc_compute(cv)
        g.setup_reads()
        self.cpoll(F_H, "f1")
        self.lphase(g, F_H, "f1", hooks=F1HOOKS, npeel=F1PEEL, after_poll=lambda vm: pre_cs1(), first_hooks=fh)
        g2 = self.g[3]
        self.lsetup(g2, A_W2, DFF*D*2, WS_H1, khalf=True)
        g.bind(C, vL, self.vt, (8, 9)); g.a = C
        em = g.em; l, wm, wn = g.l, g.wm, g.wn
        f1hooks = None
        self.cloop(g, stamps=(9, 10), hooks=f1hooks)
        fr = g.frag0
        mu = fr; cs = fr+4; pk = fr+32; va = fr+44; vb = va+1; vc = va+2; vo = va+3
        em.vemit((wm*64 + (l & 15))*4 + SD_MEAN2, va)
        for x in range(4): a.lds_rd(f"ds_read_b32 v{mu+x}, v{va} offset:{x*64}", [mu+x])
        em.vemit(wn*512 + (l >> 4)*16 + SD_CS1, vb)
        em.vemit(wn*64 + (l >> 4)*16 + SD_CS1 + 384, vc)
        for f in range(6): a.lds_rd(f"ds_read_b128 {vr(cs+4*f,4)}, v{vb} offset:{f*64}", rng(cs+4*f, 4))
        a.lds_rd(f"ds_read_b128 {vr(cs+24,4)}, v{vc}", rng(cs+24, 4))
        a.e(f"s_mul_i32 s71, s{S_I}, {56*16384}\ns_lshl_b32 s{S_T}, s{S_WM}, 13\ns_add_u32 s71, s71, s{S_T}\ns_add_u32 s71, s71, {WS_H1}\ns_mul_i32 s{S_T4}, s{S_J}, 7")
        def fold(x, f):
            acc = g.acc[x][f]; c0 = cs + 4*f
            for p in range(2):
                a.e(f"v_pk_fma_f32 {vr(acc+2*p,2)}, {vr(mu+(x & ~1),2)}, {vr(c0+2*p,2)}, {vr(acc+2*p,2)} op_sel:[{x & 1},0,0] op_sel_hi:[{x & 1},1,1] neg_lo:[1,0,0] neg_hi:[1,0,0]")
        def kappa(phi_code):
            a.e(phi_code)
            a.e(f"s_lshr_b32 s{S_T2}, s{S_T}, 1\ns_lshl_b32 s{S_T2}, s{S_T2}, 14\ns_and_b32 s{S_T}, s{S_T}, 1\ns_lshl_b32 s{S_T}, s{S_T}, 10\ns_add_u32 s{S_T}, s{S_T}, s{S_T2}\ns_add_u32 s{S_T}, s{S_T}, s71")
        n = 0
        for pr in range(3):
            a.need(list(rng(mu, 4)) + list(rng(cs+8*pr, 8)))
            kappa(f"s_lshl_b32 s{S_T}, s{S_WN}, 2\ns_add_u32 s{S_T}, s{S_T}, s{S_T4}\ns_add_u32 s{S_T}, s{S_T}, {pr}")
            for x in range(4):
                fold(x, 2*pr); fold(x, 2*pr+1)
                A, B = g.acc[x][2*pr], g.acc[x][2*pr+1]; p = pk + 4*(n & 1); n += 1
                a.e(f"v_cvt_pk_bf16_f32 v{p}, v{A}, v{A+1}\nv_cvt_pk_bf16_f32 v{p+1}, v{A+2}, v{A+3}\nv_cvt_pk_bf16_f32 v{p+2}, v{B}, v{B+1}\nv_cvt_pk_bf16_f32 v{p+3}, v{B+2}, v{B+3}")
                for k in range(4): a.e(f"v_pk_max_i16 v{p+k}, v{p+k}, 0")
                if x == 2: a.e(f"s_add_u32 s{S_T}, s{S_T}, 4096")
                a.e(f"buffer_store_dwordx4 {vr(p,4)}, v{self.vL16}, s[{S_WS}:{S_WS+3}], s{S_T} offen offset:{(x & 1)*2048} sc1")
        a.need(rng(cs+24, 4))
        kappa(f"s_add_u32 s{S_T}, s{S_T4}, 3")
        em.vemit(l*16 + wn*8, vo)
        for x in range(4):
            fold(x, 6)
            A = g.acc[x][6]; p = pk + 4*(n & 1); n += 1
            a.e(f"v_cvt_pk_bf16_f32 v{p}, v{A}, v{A+1}\nv_cvt_pk_bf16_f32 v{p+1}, v{A+2}, v{A+3}\nv_pk_max_i16 v{p}, v{p}, 0\nv_pk_max_i16 v{p+1}, v{p+1}, 0")
            if x == 2: a.e(f"s_add_u32 s{S_T}, s{S_T}, 4096")
            a.e(f"buffer_store_dwordx2 {vr(p,2)}, v{vo}, s[{S_WS}:{S_WS+3}], s{S_T} offen offset:{(x & 1)*2048} sc1")
        self.bar()
        self.lweights(self.g[3])
        a.e("s_waitcnt vmcnt(0)")
        self.signal_last(a, 3, 4, self.off_ij(F_H1), t0, t1, "h1")
        self.stamp(C, 11)

    def phase_f2(self, g):
        C, L, c = self.C, self.L, g.c
        vL = self.vL; t0, t1, t2, t3, t4, t5 = self.vt
        a = C; g.bind(C, vL, self.vt, (8, 9)); cv = Regs(12, 254)
        a.e(f"s_lshr_b32 s3, s{S_J}, 3")
        g.alloc_compute(cv)
        em = g.em; l, wm, wn = g.l, g.wm, g.wn
        g.setup_reads()
        hr = cv.alloc(16, 4); pt = cv.alloc(32, 4); rs = cv.alloc(4, 4); pk = cv.alloc(8, 4); va = cv.alloc(); vo = cv.alloc()
        self.cpoll(F_H1, "f2")
        def hookF2(a):
            a.e(f"s_and_b32 s{S_T}, s{S_J}, 7\ns_lshl_b32 s{S_T}, s{S_T}, 1\ns_add_u32 s{S_T}, s{S_T}, s{S_WN}\ns_lshl_b32 s{S_T2}, s{S_I}, 4\ns_add_u32 s{S_T}, s{S_T}, s{S_T2}\ns_lshl_b32 s{S_T}, s{S_T}, 14")
            a.e(f"s_lshl_b32 s{S_T2}, s{S_WM}, 13\ns_add_u32 s{S_T}, s{S_T}, s{S_T2}\ns_lshl_b32 s{S_T2}, s3, 10\ns_add_u32 s{S_T}, s{S_T}, s{S_T2}\ns_add_u32 s{S_T}, s{S_T}, {WS_H}")
            for x in range(4):
                if x == 2: a.e(f"s_add_u32 s{S_T}, s{S_T}, 4096")
                a.e(f"buffer_load_dwordx4 {vr(hr+4*x,4)}, v{self.vL16}, s[{S_WS}:{S_WS+3}], s{S_T} offen offset:{(x & 1)*2048} sc1")
        self.lphase(g, F_H1, "f2")
        g.bind(C, vL, self.vt, (8, 9)); g.a = C; em = g.em
        self.cloop(g, stamps=(12, 13), hooks={c.nsteps - 5: hookF2})
        a.e(f"s_lshl_b32 s{S_T}, s{S_I}, 4\ns_add_u32 s{S_T}, s{S_T}, s{S_J}\ns_lshl_b32 s{S_T}, s{S_T}, 15\ns_lshl_b32 s{S_T2}, s{S_LW}, 13\ns_add_u32 s{S_T}, s{S_T}, s{S_T2}\ns_add_u32 s{S_T}, s{S_T}, {WS_XCH}")
        for x in range(4):
            if x == 2: a.e(f"s_add_u32 s{S_T}, s{S_T}, 4096")
            for f in range(2):
                a.e(f"buffer_store_dwordx4 {vr(g.acc[x][2+f],4)}, v{self.vL16}, s[{S_WS}:{S_WS+3}], s{S_T} offen offset:{((x & 1)*2+f)*1024} sc1")
        em.vemit((wm*64 + (l & 15))*4 + SD_RSTD2, va)
        for x in range(4): a.lds_rd(f"ds_read_b32 v{rs+x}, v{va} offset:{x*64}", [rs+x])
        srd(a, S_OUT, *self.ptr(A_OUT), M*D*2)
        em.vemit((l & 15)*2048 + ((l >> 4) & 1)*32 + (l >> 5)*16, vo)
        if not self.o.get("sentinel", True):
            a.e("s_waitcnt vmcnt(0)")
            self.signal(a, self.off_ijw(F_P, S_LW), t0, t1)
            a.e(f"s_xor_b32 s{S_T2}, s{S_J}, 8\ns_lshl_b32 s{S_T2}, s{S_T2}, 2\ns_lshl_b32 s{S_T}, s{S_I}, 6\ns_add_u32 s{S_T}, s{S_T}, s{S_T2}\ns_add_u32 s{S_T}, s{S_T}, s{S_LW}\ns_lshl_b32 s{S_T}, s{S_T}, 2\ns_add_u32 s{S_T}, s{S_T}, {F_P}\nv_mov_b32 v{t2}, s{S_T}")
            self.poll(a, S_WS, t2, t3, "p")
        a.e(f"s_xor_b32 s{S_T}, s{S_J}, 8\ns_lshl_b32 s{S_T2}, s{S_I}, 4\ns_add_u32 s{S_T}, s{S_T}, s{S_T2}\ns_lshl_b32 s{S_T}, s{S_T}, 15\ns_lshl_b32 s{S_T2}, s{S_LW}, 13\ns_add_u32 s{S_T}, s{S_T}, s{S_T2}\ns_add_u32 s{S_T3}, s{S_T}, {WS_XCH}\ns_add_u32 s{S_T4}, s{S_T3}, 4096")
        if self.o.get("sentinel", True):
            a.e(f"s_mov_b32 s{S_CNT}, {POLL_MAX}")
            a.label("L_xch")
        for x in range(4):
            for f in range(2):
                a.e(f"buffer_load_dwordx4 {vr(pt+8*x+4*f,4)}, v{self.vL16}, s[{S_WS}:{S_WS+3}], s{S_T3 if x < 2 else S_T4} offen offset:{((x & 1)*2+f)*1024} sc1")
        if self.o.get("sentinel", True):
            a.e("s_waitcnt vmcnt(0)")
            a.e(f"v_max3_u32 v{t0}, v{pt}, v{pt+1}, v{pt+2}")
            for k in range(3, 31, 2): a.e(f"v_max3_u32 v{t0}, v{t0}, v{pt+k}, v{pt+k+1}")
            a.e(f"v_max_u32 v{t0}, v{t0}, v{pt+31}\nv_cmp_ne_u32 vcc, -1, v{t0}\ns_nop 4\ns_cmp_eq_u64 vcc, exec\ns_cbranch_scc1 L_xch_done")
            a.e(f"s_sub_u32 s{S_CNT}, s{S_CNT}, 1\ns_cmp_lg_u32 s{S_CNT}, 0\ns_cbranch_scc1 L_xch")
            a.label("L_xch_done")
        a.e(f"s_lshl_b32 s{S_T}, s{S_I}, 1\ns_add_u32 s{S_T}, s{S_T}, s{S_WM}\ns_lshl_b32 s{S_T}, s{S_T}, 17\ns_and_b32 s{S_T2}, s{S_J}, 7\ns_lshl_b32 s{S_T2}, s{S_T2}, 8\ns_add_u32 s{S_T}, s{S_T}, s{S_T2}")
        a.e(f"s_lshl_b32 s{S_T2}, s{S_WN}, 7\ns_add_u32 s{S_T}, s{S_T}, s{S_T2}\ns_lshl_b32 s{S_T2}, s3, 6\ns_add_u32 s{S_T}, s{S_T}, s{S_T2}")
        a.need(rng(rs, 4))
        for x in range(4):
            if not self.o.get("sentinel", True): a.e(f"s_waitcnt vmcnt({(3-x)*2 + x})")
            p = pk + 4*(x & 1)
            for f in range(2):
                acc = g.acc[x][f]; q_ = pt + 8*x + 4*f
                for pp_ in range(2):
                    a.e(f"v_pk_add_f32 {vr(acc+2*pp_,2)}, {vr(acc+2*pp_,2)}, {vr(q_+2*pp_,2)}")
                for d in range(2):
                    src = hr + 4*x + 2*f + d
                    a.e(f"v_lshlrev_b32 v{t0}, 16, v{src}\nv_and_b32 v{t1}, 0xffff0000, v{src}")
                    a.e(f"v_fma_f32 v{t0}, v{acc+2*d}, v{rs+x}, v{t0}\nv_fma_f32 v{t1}, v{acc+2*d+1}, v{rs+x}, v{t1}")
                    a.e(f"v_cvt_pk_bf16_f32 v{p+2*f+d}, v{t0}, v{t1}")
            a.e("s_nop 1")
            a.e(f"v_permlane16_swap_b32 v{p}, v{p+2}\nv_permlane16_swap_b32 v{p+1}, v{p+3}")
            a.e(f"buffer_store_dwordx4 {vr(p,4)}, v{vo}, s[{S_OUT}:{S_OUT+3}], s{S_T} offen sc1")
            if x < 3: a.e(f"s_add_u32 s{S_T}, s{S_T}, {16*2048}")
        self.stamp(C, 14)

if __name__ == "__main__":
    import sys
    diag = "--diag" in sys.argv
    args = [x for x in sys.argv[1:] if not x.startswith("--")]
    out = args[0] if args else "mk.s"
    mk = MK(dict(diag=diag))
    body = mk.build()
    hdr = f"""; Single persistent launch: 256 workgroups (one per CU) x 8 waves (4 MFMA waves + 4 loader/helper waves).
; @launch grid=(256,1,1) block=(512,1,1) lds={LDS_TOTAL}
.amdgcn_target "amdgcn-amd-amdhsa--gfx950"
.text
"""
    open(out, "w").write(hdr + body)
    print("wrote", out, len((hdr+body).splitlines()), "lines")
```

```python
from common import *
from expr import *
import banks, math

def magic_div(d, maxv):
    for sh in (16, 17, 18, 20):
        m = (1 << sh)//d + 1
        if m*maxv < (1 << 32) and m < (1 << 24) and all(((c*m) >> sh) == c//d for c in range(maxv)): return m, sh
    raise RuntimeError

S_XSRD, S_WSRD = 4, 8
S_E0, S_E1, S_E2, S_E3 = 12, 16, 20, 24
S_I, S_J, S_WV, S_T = 28, 29, 30, 31
S_XOFF, S_WOFF, S_RD, S_WR, S_CNT, S_XL, S_WL = 32, 33, 34, 35, 36, 37, 38
S_T2, S_T3, S_T4 = 39, 40, 41
S_WM, S_WN = 42, 43
S_PTR = 44
S_EX = 62
S_ET = [64, 65, 66, 67, 68, 69]
S_LW = 70
S_XB0, S_WB0, S_N, S_K, S_A = 72, 73, 74, 75, 76

class Cfg:
    def __init__(self, **kw):
        self.S = 3; self.G = 1; self.BK = 64; self.TM = 128; self.shape = 32
        self.no_mfma = False; self.no_dma = False; self.loaders = False; self.qkvseg = False
        self.__dict__.update(kw)

class G:
    def __init__(self, c, a, v, vLane, vt):
        self.c = c; self.a = a; self.v = v; self.vLane = vLane; self.vt = vt
        c.T = c.shape; c.KS = 16 if c.shape == 32 else 32
        c.NSUB = c.BK//c.KS
        c.nX = c.TM//c.T//c.WM; c.nW = c.TN//c.T//c.WN
        c.AR = 16 if c.shape == 32 else 4
        c.RS = c.TN*2
        c.XB = c.TM*c.BK*2; c.WB = c.BK*c.RS; c.SB = c.XB + c.WB
        c.nXld = c.XB//1024//4; c.nWld = c.WB//1024//4
        assert c.nWld*4096 == c.WB and c.nXld == 4
        c.nld = c.nXld + c.nWld
        c.nsteps = c.K//c.BK
        self.l = V("l"); self.wm = S("wm"); self.wn = S("wn"); self.lw = S("lw")
        self.em = Emitter(a, {"l": vLane}, {"wm": S_WM, "wn": S_WN, "lw": S_LW, "i": S_I, "j": S_J, "kh": 3}, vt, S_ET)
        self.check_banks(); self.plan_reads()
        if not getattr(c, "split", False): self.alloc()
    def wswz(self, row):
        c = self.c; m = c.RS % 256
        if c.shape == 32:
            if m == 128: return ((row >> 1) & 1) << 2
            if m in (64, 192): return C(0)
            return (row & 3) << 2
        if c.korder in ("fn", "fn32"):
            if m == 128: return ((row >> 1) & 3) << 1
            if m in (64, 192): return ((row >> 2) & 1) << 1
            return (row & 7) << 1
        if m == 128: return (((row >> 1) & 1) | (((row >> 3) & 1) << 1)) << 1
        if m in (64, 192): return ((row >> 3) & 1) << 1
        return ((row & 3) | (((row >> 3) & 1) << 2)) << 1
    def wrow(self, ks, j):
        c = self.c; l = self.l
        r = (l >> 2) & 3
        if c.shape == 32:
            h = l >> 5
            return (h*4 + (16*ks + 8*j) if c.korder == "fn" else h*8 + (16*ks + 4*j)) + r
        g = l >> 4
        if c.korder == "fn": return g*4 + (32*ks + 16*j) + r
        if c.korder == "fn32": return (g >> 1)*16 + (g & 1)*4 + (32*ks + 8*j) + r
        return g*8 + (32*ks + 4*j) + r
    def waddr(self, f, ks, j):
        c = self.c; l = self.l
        row = self.wrow(ks, j)
        col = c.fcol(self.wn, f)
        ch = col >> 3
        if c.shape == 32: ch = ch + ((l >> 4) & 1)*2
        ch = ch + ((l >> 1) & 1)
        return row*c.RS + ((ch ^ self.wswz(row)) << 4) + (l & 1)*8 + c.XB
    def xaddr(self, x, ks):
        c = self.c; l = self.l; wm = self.wm
        mt = wm*c.nX + x
        if c.xsrc == "fn":
            return (mt*(4 if c.shape == 32 else 2) + ks)*1024 + l*16
        if c.shape == 32: row = mt*32 + (l & 31); ch = (l >> 5) + 2*ks
        else: row = mt*16 + (l & 15); ch = (l >> 4) + 4*ks
        return row*128 + ((ch ^ ((row >> 1) & 7)) << 4)
    def _tab(self, e):
        c = self.c
        return [e.ev({"l": l, "wm": wm, "wn": wn, "kh": kh}) for kh in range(2) for wm in range(c.WM) for wn in range(c.WN) for l in range(64)]
    def check_banks(self):
        c = self.c
        for x in range(c.nX):
            for ks in range(c.NSUB):
                t = self._tab(self.xaddr(x, ks))
                for w in range(len(t)//64): assert banks.conflicts_b128(t[64*w:64*w+64]) == 0, "X conflict"
        for f in range(c.nW):
            for ks in range(c.NSUB):
                for j in range(2):
                    t = self._tab(self.waddr(f, ks, j))
                    for w in range(len(t)//64): assert banks.conflicts_b64(t[64*w:64*w+64]) == 0, ("W conflict", f, ks, j)
    def plan_reads(self):
        c = self.c
        def plan(keys, fn):
            base = []; cls = {}
            for k in keys:
                t = self._tab(fn(*k)); found = False
                for ci, (bk, bt) in enumerate(base):
                    ds = {p - q for p, q in zip(t, bt)}
                    if len(ds) == 1 and 0 <= min(ds) < 65536: cls[k] = (ci, ds.pop()); found = True; break
                if not found: base.append((k, t)); cls[k] = (len(base)-1, 0)
            return [b[0] for b in base], cls
        self.xbase, self.xcls = plan([(x, ks) for ks in range(c.NSUB) for x in range(c.nX)], self.xaddr)
        self.wbase, self.wcls = plan([(f, ks, j) for ks in range(c.NSUB) for f in range(c.nW) for j in range(2)], self.waddr)
    def alloc(self):
        self.alloc_loader(self.v); self.alloc_compute(self.v)
    def alloc_loader(self, v):
        c = self.c
        self.vXsrc = [v.alloc() for _ in range(4 if c.xsrc == "rm" else 1)]
        self.vWsrc = [v.alloc() for _ in range(c.nWld)]
    def bind(self, a, vLane, vt, tmp2=None):
        self.a = a; self.vLane = vLane; self.vt = vt
        self.em = Emitter(a, {"l": vLane}, {"wm": S_WM, "wn": S_WN, "lw": S_LW, "i": S_I, "j": S_J, "kh": 3}, vt, S_ET)
        if tmp2: self.v_tmp2 = tmp2
    def alloc_compute(self, v):
        c = self.c
        self.vXl = [v.alloc() for _ in self.xbase]; self.vXa = [v.alloc() for _ in self.xbase]
        self.vWl = [v.alloc() for _ in self.wbase]; self.vWa = [v.alloc() for _ in self.wbase]
        self.fX = [[[v.alloc(4, 4) for x in range(c.nX)] for g in range(c.G)] for s in range(2)]
        self.fW = [[[v.alloc(4, 4) for f in range(c.nW)] for g in range(c.G)] for s in range(2)]
        self.frag0 = self.fX[0][0][0]; self.frag_end = v.n
        self.acc = [[v.alloc(c.AR, 4) for f in range(c.nW)] for x in range(c.nX)]
    def setup_dma(self):
        c, a, em = self.c, self.a, self.em
        l, lw = self.l, self.lw
        if c.xsrc == "fn":
            em.vemit(lw*4096 + l*16, self.vXsrc[0])
            a.e(f"s_mul_i32 s{S_XOFF}, s{S_I}, {(c.Kx//64)*16384}")
            if c.xoff0: a.e(f"s_add_u32 s{S_XOFF}, s{S_XOFF}, {c.xoff0}") if isinstance(c.xoff0, int) else c.xoff0(a)
        else:
            for n in range(4):
                row = lw*32 + (l >> 3) + 8*n
                ch = (l & 7) ^ (((l >> 4) + 4*n) & 7)
                em.vemit(row*c.ldx + (ch << 4) - n*1024, self.vXsrc[n])
            a.e(f"s_mul_i32 s{S_XOFF}, s{S_I}, {128*c.ldx}")
        cpr = c.TN//8
        mg, sh = magic_div(cpr, c.nWld*256)
        t = self.vt
        for n in range(c.nWld):
            flat = lw*(c.nWld*64) + l + n*64
            vr_, vp = self.v_tmp2
            em.vemit((flat*mg) >> sh, vr_)
            em.vr["row"] = vr_; row = V("row")
            em.vemit(flat - row*cpr, vp); em.vr["p"] = vp; p = V("p")
            ch = p ^ self.wswz(row)
            if c.qkvseg: colb = ((ch >> 3) << 11) + ((ch & 7) << 4)
            else: colb = ch << 4
            em.vemit(row*c.ldw + colb - (n % 4)*1024, self.vWsrc[n])
        c.woff(a)
        a.e(f"s_lshl_b32 s{S_XL}, s{S_LW}, 12")
        a.e(f"s_mul_i32 s{S_WL}, s{S_LW}, {c.nWld*1024}\ns_add_u32 s{S_WL}, s{S_WL}, {c.XB}")
    def setup_reads(self):
        em = self.em
        for k, r in zip(self.xbase, self.vXl): em.vemit(self.xaddr(*k), r)
        for k, r in zip(self.wbase, self.vWl): em.vemit(self.waddr(*k), r)
    def dma_x(self):
        c = self.c; out = []
        if c.no_dma: return []
        out.append(f"s_add_u32 m0, s{S_WR}, s{S_XL}")
        for n in range(4):
            src = self.vXsrc[n] if c.xsrc == "rm" else self.vXsrc[0]
            out.append(("s_nop 0\n" if n == 0 else "") + f"buffer_load_dwordx4 v{src}, s[{S_XSRD}:{S_XSRD+3}], s{S_XOFF} offen offset:{n*1024} {c.xflag} lds")
        if not getattr(c, "rot", False): out.append(f"s_add_u32 s{S_XOFF}, s{S_XOFF}, {16384 if c.xsrc == 'fn' else c.BK*2}")
        return out
    def dma_w(self):
        c = self.c; out = []
        if c.no_dma: return []
        for n in range(c.nWld):
            if n % 4 == 0:
                out.append(f"s_add_u32 s{S_T}, s{S_WR}, s{S_WL}\ns_add_u32 m0, s{S_T}, {n*1024}")
            out.append(("s_nop 0\n" if n % 4 == 0 else "") + f"buffer_load_dwordx4 v{self.vWsrc[n]}, s[{S_WSRD}:{S_WSRD+3}], s{S_WOFF} offen offset:{(n % 4)*1024} lds")
        if not getattr(c, "rot", False): out.append(f"s_add_u32 s{S_WOFF}, s{S_WOFF}, {c.BK*c.ldw}")
        return out
    def rot_init(self):
        return [f"s_mov_b32 s{S_XB0}, s{S_XOFF}\ns_mov_b32 s{S_WB0}, s{S_WOFF}"] if getattr(self.c, "rot", False) else []
    def stage_off(self, n=None):
        c = self.c
        if not getattr(c, "rot", False): return []
        rp = getattr(c, "rotpos", 0)
        xd = 16384 if c.xsrc == "fn" else c.BK*2; wd = c.BK*c.ldw
        if getattr(c, "gap", 0):
            if n is not None: k = f"s_mov_b32 s{S_K}, {n}\ns_cmp_ge_u32 s{S_K}, s{S_A}\ns_cselect_b32 s{S_XOFF}, {c.gap}, 0\ns_add_u32 s{S_K}, s{S_K}, s{S_XOFF}"
            else: k = f"s_add_u32 s{S_N}, s{S_N}, 1\ns_cmp_ge_u32 s{S_N}, s{S_A}\ns_cselect_b32 s{S_XOFF}, {c.gap}, 0\ns_add_u32 s{S_K}, s{S_N}, s{S_XOFF}"
            return [k + f"\ns_mul_i32 s{S_XOFF}, s{S_K}, {xd}\ns_add_u32 s{S_XOFF}, s{S_XOFF}, s{S_XB0}\ns_mul_i32 s{S_WOFF}, s{S_K}, {wd}\ns_add_u32 s{S_WOFF}, s{S_WOFF}, s{S_WB0}"]
        if n == rp: k = f"s_mov_b32 s{S_K}, s{S_I}"
        elif n is not None:
            m = n if n < rp else n-1
            k = f"s_mov_b32 s{S_K}, {m}\ns_cmp_ge_u32 s{S_K}, s{S_I}\ns_addc_u32 s{S_K}, s{S_K}, 0"
        else: k = f"s_cmp_ge_u32 s{S_N}, s{S_I}\ns_addc_u32 s{S_K}, s{S_N}, 0\ns_add_u32 s{S_N}, s{S_N}, 1"
        return [k + f"\ns_mul_i32 s{S_XOFF}, s{S_K}, {xd}\ns_add_u32 s{S_XOFF}, s{S_XOFF}, s{S_XB0}\ns_mul_i32 s{S_WOFF}, s{S_K}, {wd}\ns_add_u32 s{S_WOFF}, s{S_WOFF}, s{S_WB0}"]
    def dma_list(self, n=None): return self.stage_off(n) + self.dma_x() + self.dma_w()
    def reads(self, set_, grp):
        c = self.c; out = []
        for g in range(c.G):
            ks = grp*c.G + g
            def xr(x):
                d = self.fX[set_][g][x]; ci, imm = self.xcls[(x, ks)]
                return (f"ds_read_b128 {vr(d,4)}, v{self.vXa[ci]} offset:{imm}", rng(d,4))
            def wr(f):
                d = self.fW[set_][g][f]; o = []
                for j in range(2):
                    ci, imm = self.wcls[(f, ks, j)]
                    o.append((f"ds_read_b64_tr_b16 {vr(d+2*j,2)}, v{self.vWa[ci]} offset:{imm}", rng(d+2*j,2)))
                return o
            order = self.mfma_order()
            seen = set()
            for (x, f) in order:
                if ("x", x) not in seen: seen.add(("x", x)); out.append(xr(x))
                if ("f", f) not in seen: seen.add(("f", f)); out += wr(f)
        return out
    def mfma_order(self):
        c = self.c
        o = []
        for f in range(c.nW):
            xs = range(c.nX) if f % 2 == 0 else reversed(range(c.nX))
            o += [(x, f) for x in xs]
        return o
    def mfmas(self, set_, first=False):
        c = self.c; out = []
        op = "v_mfma_f32_32x32x16_bf16" if c.shape == 32 else "v_mfma_f32_16x16x32_bf16"
        for g in range(c.G):
            for (x, f) in self.mfma_order():
                X = self.fX[set_][g][x]; W = self.fW[set_][g][f]; acc = self.acc[x][f]
                A, B = (W, X) if c.orient(f) == "mn" else (X, W)
                srcc = "0" if (first and g == 0) else vr(acc, c.AR)
                out.append((f"{op} {vr(acc,c.AR)}, {vr(A,4)}, {vr(B,4)}, {srcc}", list(rng(X,4)) + list(rng(W,4))))
        return out
    def group(self, set_, reads, extra, first=False, late=(), tail=()):
        a = self.a; c = self.c
        ms = self.mfmas(set_, first); n = len(ms)
        reads = list(reads); extra = list(extra); late = list(late); tail = list(tail)
        nearly = max(1, int(n*c.read_frac))
        nr = len(reads); ne = len(extra); nl = len(late); nt = len(tail)
        done_r = 0; done_e = 0; done_l = 0; done_t = 0; drained = False
        startn = int(c.extra_start*n); span = max(1, n - 1 - startn)
        i0 = max(nearly + 1, n - 1 - max(nt, int(0.3*n))) if nt else n
        def flush_scc():
            nonlocal done_e, done_l
            while done_e < ne: a.e(extra[done_e]); done_e += 1
            while done_l < nl - (0 if nt else 1) and nt: a.e(late[done_l]); done_l += 1
        for i, (ins, regs) in enumerate(ms):
            a.need(regs)
            if not c.no_mfma: a.e(ins)
            want = min(nr, -(-nr*(i+1)//nearly))
            while done_r < want: a.lds_rd(*reads[done_r]); done_r += 1
            if i >= startn:
                wante = min(ne, -(-ne*(i+1-startn)//span))
                while done_e < wante: a.e(extra[done_e]); done_e += 1
            if done_r == nr and i >= nearly and i < n-1 and done_l < nl:
                left = (min(i0, n-1) if nt else n - 1) - i
                cnt = -(-(nl - done_l)//max(left, 1))
                for _ in range(min(cnt, nl - done_l)):
                    if "s_cmp_lg" in late[done_l]:
                        while done_e < ne: a.e(extra[done_e]); done_e += 1
                    a.e(late[done_l]); done_l += 1
            if nt and i >= i0 and i < n-1:
                if not drained:
                    assert done_r == nr
                    a.lds_drain(); drained = True
                left = n - 1 - i
                cnt = -(-(nt - done_t)//left)
                for _ in range(cnt):
                    op = tail[done_t]
                    if "s_cmp_lg" in op: flush_scc()
                    if isinstance(op, tuple): a.lds_other(op[0])
                    else: a.e(op)
                    done_t += 1
        while done_r < nr: a.lds_rd(*reads[done_r]); done_r += 1
        while done_e < ne: a.e(extra[done_e]); done_e += 1
        while done_l < nl: a.e(late[done_l]); done_l += 1
        assert done_t == nt, (done_t, nt)
        assert done_e == ne
    def set_read_addrs(self):
        return [f"v_add_u32 v{r}, s{S_RD}, v{l}" for l, r in zip(self.vXl + self.vWl, self.vXa + self.vWa)]
    def adv_slot(self, s):
        c = self.c
        return f"s_add_u32 s{s}, s{s}, {c.SB}\ns_cmp_eq_u32 s{s}, {c.S*c.SB}\ns_cselect_b32 s{s}, 0, s{s}"

    def compute_loop(self, pre_issue=None, post_issue=None):
        c, a = self.c, self.a
        NG = c.NSUB//c.G; S = c.S; ns = c.nsteps
        own = not c.loaders
        nld = c.nld if (own and not c.no_dma) else 0
        if pre_issue: pre_issue()
        if own:
            a.e(f"s_mov_b32 s{S_WR}, 0")
            for s in range(S):
                for ins in self.dma_list(): a.e(ins)
                a.e(f"s_add_u32 s{S_WR}, s{S_WR}, {c.SB}")
        if post_issue: post_issue(S*nld)
        a.e(f"s_mov_b32 s{S_RD}, 0\ns_mov_b32 s{S_WR}, 0")
        for ins in self.set_read_addrs(): a.e(ins)
        a.lds_drain(f"vmcnt({(S-1)*nld})" if own else "")
        a.e("s_barrier")
        stamp(a, 1); stamp(a, 6, cyc=True)
        for r in self.reads(0, 0): a.lds_rd(*r)
        st = 0
        for g in range(NG-1):
            self.group(st, self.reads(st ^ 1, g+1), [], first=(g == 0)); st ^= 1
        def boundary(vm):
            a.lds_drain(f"vmcnt({vm})" if (vm is not None and own) else "")
            a.e("s_barrier")
        a.e(self.adv_slot(S_RD))
        for ins in self.set_read_addrs(): a.e(ins)
        boundary((S-2)*nld)
        par = st
        def body(t_issue, vm, loopctl=False):
            st = par
            dma = self.dma_list() if (t_issue and own) else []
            chunks = [dma[len(dma)*i//NG: len(dma)*(i+1)//NG] for i in range(NG)]
            for g in range(NG):
                extra = list(chunks[g]); late = []
                if g == NG-1:
                    late.append((f"s_mov_b32 s{S_WR}, s{S_RD}\n" if own else "") + self.adv_slot(S_RD))
                    late += self.set_read_addrs()
                    if loopctl: late.append(f"s_sub_u32 s{S_CNT}, s{S_CNT}, 1\ns_cmp_lg_u32 s{S_CNT}, 0")
                self.group(st, self.reads(st ^ 1, g), extra, late=late); st ^= 1
            a.lds_drain(f"vmcnt({vm})" if (vm is not None and own) else "")
        assert NG % 2 == 0
        nb = ns - S
        if nb > 0:
            a.e(f"s_mov_b32 s{S_CNT}, {nb}\ns_branch L_loop_{c.name}")
            a.label(f"L_top_{c.name}")
            a.e("s_barrier")
            a.label(f"L_loop_{c.name}")
            body(True, (S-2)*nld, loopctl=True)
            a.e(f"s_cbranch_scc1 L_top_{c.name}\ns_barrier")
        for t in range(max(nb, 0), ns-1):
            rem = max(0, (ns-1) - (t+2))
            body(False, min(rem, S-2)*nld if t+2 <= ns-1 else None)
            a.e("s_barrier")
        self.group(par, [], [])
        a.e("s_nop 15")
        stamp(a, 2); stamp(a, 7, cyc=True)

    def loader_loop(self):
        c, a = self.c, self.a
        S = c.S; ns = c.nsteps; nld = 0 if c.no_dma else c.nld
        a.e(f"s_mov_b32 s{S_WR}, 0")
        for s in range(S):
            for ins in self.dma_list(): a.e(ins)
            a.e(f"s_add_u32 s{S_WR}, s{S_WR}, {c.SB}")
        a.e(f"s_mov_b32 s{S_WR}, 0")
        a.e(f"s_waitcnt vmcnt({(S-1)*nld})\ns_barrier")
        a.e(f"s_waitcnt vmcnt({(S-2)*nld})\ns_barrier")
        nb = ns - S
        if nb > 0:
            a.e(f"s_mov_b32 s{S_CNT}, {nb}")
            a.label(f"L_lloop_{c.name}")
            for ins in self.dma_list(): a.e(ins)
            a.e(self.adv_slot(S_WR))
            a.e(f"s_waitcnt vmcnt({(S-2)*nld})\ns_barrier")
            a.e(f"s_sub_u32 s{S_CNT}, s{S_CNT}, 1\ns_cmp_lg_u32 s{S_CNT}, 0\ns_cbranch_scc1 L_lloop_{c.name}")
        for t in range(max(nb, 0), ns-1):
            rem = max(0, (ns-1) - (t+2))
            if t+2 <= ns-1: a.e(f"s_waitcnt vmcnt({min(rem, S-2)*nld})")
            a.e("s_barrier")
```

```python
from gemm2 import *
from hz import HZ
import common

NAME = "sequential_preLN__sliding_block__dense_activation_relu__prompt_kernel"
L_SPARE = 122880
L_SIDE = 159744
SD_MEAN1, SD_RSTD1, SD_CSQ = L_SIDE, L_SIDE+512, L_SIDE+1024
SD_MEAN2, SD_RSTD2, SD_CS1 = L_SIDE+2048, L_SIDE+2560, L_SIDE+3072
SD_CNT = L_SIDE + 3968
SD_TOK = SD_CNT + 32
SD_FULL, SD_FREE = L_SIDE + 4016, L_SIDE + 4032
S_TG = 77
LDS_TOTAL = 163840
AT_K = lambda hh: hh*49152
AT_V = lambda hh: hh*49152 + 24576
AT_Q0 = 98304
WS_KV = 4*MB
WS_ST1 = 36*MB; WS_CSQ = 36*MB + 64*1024; WS_CS1 = 36*MB + 512*1024; WS_ST2 = 37*MB
WS_XCH = 44*MB
WS_FLAG = 52*MB
FSTR = 32768
F_H, F_H1, F_O, F_S2, F_Q = [WS_FLAG + k*FSTR for k in range(5)]
F_KV, F_CS1 = WS_FLAG + 5*FSTR, WS_FLAG + 6*FSTR
F_P = WS_FLAG + 7*FSTR
OOB = 0x7ffffff0
WS_BYTES = 56*MB
S_WS, S_DBG, S_OUT = S_E0, S_E1, S_E2
POLL_MAX = 400000
QSCALE = (DH ** -0.5) * 1.4426950408889634

class VM:
    def __init__(s, a): s.a = a; s.q = []
    def iss(s, tag, n=1): s.q += [tag]*n
    def count_after(s, tag):
        idx = max(i for i, t in enumerate(s.q) if t == tag)
        return len(s.q) - 1 - idx
    def wait(s, tag, extra=""):
        if tag not in s.q: return
        n = min(63, s.count_after(tag))
        s.a.e(f"s_waitcnt vmcnt({n}) {extra}".strip())
        s.q = s.q[len(s.q)-n:] if n else []
    def drain(s): s.a.e("s_waitcnt vmcnt(0)"); s.q = []

class MK:
    def __init__(self, opts=None):
        self.o = dict(diag=False, pf_first=False, pf_weights=True, stop_after=None, tlb=False, codepf=True)
        self.o.update(opts or {})
        self.C = Asm(); self.L = Asm(); self.A = Asm(); self.tail = Asm()
        self.nbar = 0; self.nl = 0; self.lnames = []
    def bar(self):
        self.C.e("s_barrier"); self.L.e("s_barrier")
    def stamp(self, a, k):
        if self.o["diag"]:
            a.e(f"s_memrealtime s[88:89]\ns_waitcnt lgkmcnt(0)\nv_writelane_b32 v255, s88, {k}")
            a.lq = []
    def ptr(self, o): return (S_PTR+16, S_PTR+17) if o == A_WS else (S_PTR + o//4, S_PTR + o//4 + 1)
    def poll_test(self, a, vtmp, x2=False, token=True):
        if token: a.e(f"v_cmp_eq_u32 vcc, s1, v{vtmp}\ns_nop 4\ns_cmp_eq_u64 vcc, exec")
        else: a.e(f"v_cmp_ne_u32 vcc, 0, v{vtmp}\ns_nop 4\ns_cmp_eq_u64 vcc, exec")
    def poll(self, a, srd_, vaddr, vtmp, label, byte=False, x2=False, token=True):
        a.e(f"s_mov_b32 s{S_CNT}, {POLL_MAX}")
        a.label(f"L_poll_{label}")
        ld = f"buffer_load_dwordx2 {vr(vtmp,2)}" if x2 else f"buffer_load_{'ubyte' if byte else 'dword'} v{vtmp}"
        a.e(f"{ld}, v{vaddr}, s[{srd_}:{srd_+3}], 0 offen sc1\ns_waitcnt vmcnt(0)")
        self.poll_test(a, vtmp, x2, token)
        a.e(f"s_cbranch_scc1 L_polldone_{label}")
        a.e(f"s_sleep {self.o.get('sleep', 4)}\ns_sub_u32 s{S_CNT}, s{S_CNT}, 1\ns_cmp_lg_u32 s{S_CNT}, 0\ns_cbranch_scc1 L_poll_{label}")
        a.label(f"L_polldone_{label}")
    def one_lane_addr(self, a, dst, soff_reg, only_lw0):
        if only_lw0:
            a.e(f"s_cmp_eq_u32 s{S_LW}, 0\ns_cselect_b32 s{soff_reg}, s{soff_reg}, {hex(OOB)}")
        a.e(f"v_mov_b32 v{dst}, {hex(OOB)}\nv_writelane_b32 v{dst}, s{soff_reg}, 0")
    def signal(self, a, soff_code, vt0, vt1, only_lw0=False, srd_=None, byte=False):
        srd_ = S_WS if srd_ is None else srd_
        a.e(soff_code)
        self.one_lane_addr(a, vt1, S_T, only_lw0)
        a.e(f"v_mov_b32 v{vt0}, s1\nbuffer_store_dword v{vt0}, v{vt1}, s[{srd_}:{srd_+3}], 0 offen sc1")
    def off_ijw(self, base, wreg):
        return f"s_lshl_b32 s{S_T}, s{S_I}, 6\ns_lshl_b32 s{S_T2}, s{S_J}, 2\ns_add_u32 s{S_T}, s{S_T}, s{S_T2}\ns_add_u32 s{S_T}, s{S_T}, s{wreg}\ns_lshl_b32 s{S_T}, s{S_T}, 2\ns_add_u32 s{S_T}, s{S_T}, {base}"
    def off_ij(self, base):
        return f"s_lshl_b32 s{S_T}, s{S_I}, 4\ns_add_u32 s{S_T}, s{S_T}, s{S_J}\ns_lshl_b32 s{S_T}, s{S_T}, 7\ns_add_u32 s{S_T}, s{S_T}, {base}"
    def off_ji(self, base):
        return f"s_lshl_b32 s{S_T}, s{S_J}, 4\ns_add_u32 s{S_T}, s{S_T}, s{S_I}\ns_lshl_b32 s{S_T}, s{S_T}, 7\ns_add_u32 s{S_T}, s{S_T}, {base}"
    def signal_last(self, a, k, nwaves, soff_code, vt0, vt1, label):
        a.e(f"v_mov_b32 v{vt0}, {SD_CNT + 4*k}\nv_mov_b32 v{vt1}, 1\ns_mov_b64 exec, 1")
        a.e(f"ds_add_rtn_u32 v{vt0}, v{vt0}, v{vt1}")
        a.e(soff_code)
        a.e(f"s_waitcnt lgkmcnt(0)\nv_readfirstlane_b32 s{S_T2}, v{vt0}\nv_mov_b32 v{vt0}, 0\nv_mov_b32 v{vt1}, s1\ns_nop 1\ns_cmp_eq_u32 s{S_T2}, {nwaves-1}\ns_cbranch_scc0 L_notlast_{label}")
        a.e(f"buffer_store_dword v{vt1}, v{vt0}, s[{S_WS}:{S_WS+3}], s{S_T} offen sc1")
        a.label(f"L_notlast_{label}")
        a.e("s_mov_b64 exec, -1"); a.lq = []
    def group_words(self, a, dst, base, grp_sreg):
        a.e(f"s_lshl_b32 s{S_T}, s{grp_sreg}, 11\ns_add_u32 s{S_T}, s{S_T}, {base}\nv_and_b32 v{dst}, 15, v{self.vL}\nv_lshlrev_b32 v{dst}, 7, v{dst}\nv_add_u32 v{dst}, s{S_T}, v{dst}")
    def row_words(self, a, dst, base, stride_shift, lane_shift):
        a.e(f"s_lshl_b32 s{S_T}, s{S_I}, {stride_shift}\ns_add_u32 s{S_T}, s{S_T}, {base}\nv_lshlrev_b32 v{dst}, {lane_shift}, v{self.vL}\nv_add_u32 v{dst}, s{S_T}, v{dst}")
    def lane0(self, a, body, label):
        a.e(f"v_cmp_eq_u32 vcc, 0, v{self.vL}\ns_and_saveexec_b64 s[{S_EX}:{S_EX+1}], vcc")
        a.e(body)
        a.e(f"s_mov_b64 exec, s[{S_EX}:{S_EX+1}]")
    def only_lw0(self, a, label, fn):
        a.e(f"s_cmp_lg_u32 s{S_LW}, 0\ns_cbranch_scc1 L_skip_{label}")
        fn()
        a.label(f"L_skip_{label}")

    def cfgs(self):
        base = dict(shape=16, loaders=True, split=True, xflag="", xoff0=0, read_frac=0.5, extra_start=0.3, WM=2, WN=2)
        q = Cfg(name="q", TN=192, K=1024, Kx=1024, xsrc="rm", ldx=2048, korder="std", ldw=6144, qkvseg=True, S=3,
                fcol=lambda wn, f: wn*32 + (64*(f//2) + 16*(f % 2)), orient=lambda f: "nm" if f >= 4 else "mn",
                woff=lambda a: a.e(f"s_lshl_b32 s{S_WOFF}, s{S_J}, 7"), **base)
        o = Cfg(name="o", TN=64, K=1024, Kx=1024, xsrc="fn", korder="fn32", ldw=2048, S=self.o.get("So", 6),
                fcol=lambda wn, f: wn*32 + 16*f, orient=lambda f: "mn",
                woff=lambda a: a.e(f"s_lshl_b32 s{S_WOFF}, s{S_J}, 7"), **base)
        f1 = Cfg(name="f1", TN=224, K=1024, Kx=1024, xsrc="fn", korder="fn", ldw=7168, S=3,
                 fcol=lambda wn, f: (wn*128 + 16*f) if f < 6 else (wn*16 + 96), orient=lambda f: "mn",
                 woff=lambda a: a.e(f"s_mul_i32 s{S_WOFF}, s{S_J}, 448"), **base)
        def woff2(a):
            a.e(f"s_and_b32 s{S_T}, s{S_J}, 7\ns_lshl_b32 s{S_WOFF}, s{S_T}, 8\ns_lshr_b32 s{S_T}, s{S_J}, 3\ns_mul_i32 s{S_T}, s{S_T}, {1792*2048}\ns_add_u32 s{S_WOFF}, s{S_WOFF}, s{S_T}")
        f2 = Cfg(name="f2", TN=128, K=1792, Kx=3584, xsrc="fn", korder="fn", ldw=2048, S=4,
                 fcol=lambda wn, f: (wn*64 + S("kh")*32 + 16*f) if f < 2 else (wn*64 + (S("kh") ^ 1)*32 + 16*(f-2)), orient=lambda f: "mn", woff=woff2, **base)
        for c in (o, f1, f2): c.xflag = "sc1"
        if self.o.get("own2", True): f2.rot = True; f2.gap = 3
        q.rot = True; f1.rot = True; q.rotpos = self.o.get("qrot", 2); f1.rotpos = 0
        return q, o, f1, f2

    def xoff_fn(self, a, c, wsbase, khalf=False):
        a.e(f"s_mul_i32 s{S_XOFF}, s{S_I}, {(c.Kx//64)*16384}\ns_add_u32 s{S_XOFF}, s{S_XOFF}, {wsbase}")
        if khalf:
            a.e(f"s_lshr_b32 s{S_T}, s{S_J}, 3\ns_mul_i32 s{S_T}, s{S_T}, {28*16384}\ns_add_u32 s{S_XOFF}, s{S_XOFF}, s{S_T}")

    def build(self):
        C, L = self.C, self.L
        E = Asm()
        q, o, f1, f2 = self.cfgs()
        self.vL = 1; vt = [2, 3, 4, 5, 6, 7]; tmp2 = (8, 9); self.vL16 = 10; self.vZero = 11
        self.vt = vt
        gq, go, g1, g2 = [G(c, C, None, self.vL, vt) for c in (q, o, f1, f2)]
        self.g = (gq, go, g1, g2)
        E.e(f"s_cmp_ge_u32 s2, 256\ns_cbranch_scc1 L_end")
        if self.o.get("codepf", True):
            E.e("s_getpc_b64 s[96:97]")
            E.label("L_pc")
            E.e("v_lshlrev_b32 v2, 7, v0\ns_mov_b32 s3, L_end-L_pc\nv_min_u32 v2, s3, v2\nglobal_load_dword v254, v2, s[96:97]")
        E.e(f"s_load_dwordx16 s[{S_PTR}:{S_PTR+15}], s[0:1], 0\ns_load_dwordx2 s[{S_PTR+16}:{S_PTR+17}], s[0:1], 64")
        if self.o["diag"]:
            E.e("v_mov_b32 v255, 0\nv_mov_b32 v253, 0"); self.stamp(E, 0)
        E.e(f"s_and_b32 s{S_T}, s2, 7\ns_lshr_b32 s{S_T2}, s2, 3")
        E.e(f"s_lshr_b32 s{S_I}, s{S_T}, 2\ns_and_b32 s{S_J}, s{S_T}, 3\ns_lshl_b32 s{S_I}, s{S_I}, 3\ns_lshl_b32 s{S_J}, s{S_J}, 2")
        E.e(f"s_lshr_b32 s{S_T}, s{S_T2}, 2\ns_and_b32 s{S_T2}, s{S_T2}, 3\ns_add_u32 s{S_I}, s{S_I}, s{S_T}\ns_add_u32 s{S_J}, s{S_J}, s{S_T2}")
        E.e(f"v_and_b32 v{self.vL}, 63, v0\nv_lshrrev_b32 v2, 6, v0\ns_nop 0\nv_readfirstlane_b32 s{S_WV}, v2\nv_lshlrev_b32 v{self.vL16}, 4, v{self.vL}\nv_mov_b32 v{self.vZero}, 0\ns_nop 1")
        E.e(f"s_and_b32 s{S_LW}, s{S_WV}, 3\ns_lshr_b32 s{S_WM}, s{S_LW}, 1\ns_and_b32 s{S_WN}, s{S_LW}, 1")
        E.e(f"s_cmp_ge_u32 s{S_WV}, 4\ns_cbranch_scc1 L_loader")
        lv = Regs(12, 64)
        gq.alloc_loader(lv); go.alloc_loader(lv); g1.alloc_loader(lv); g2.alloc_loader(lv)
        self.lv_end = lv.n
        self.phase_q(gq, g1)
        self.attention()
        stop = self.o["stop_after"]
        self.phase_o(go)
        self.phase_f1(g1)
        self.phase_f2(g2)
        if self.o["diag"]:
            self.stamp(C, 15)
            C.e(f"s_cmp_lg_u32 s{S_WV}, 0\ns_cbranch_scc1 L_end")
            C.e(f"s_lshl_b32 s{S_T}, s2, 7\ns_add_u32 s{S_T}, s{S_T}, {common.WS_STAMP}\nv_lshlrev_b32 v2, 2, v{self.vL}")
            C.e(f"v_cmp_gt_u32 vcc, 32, v{self.vL}\ns_and_saveexec_b64 s[{S_EX}:{S_EX+1}], vcc")
            C.e(f"buffer_store_dword v255, v2, s[{S_WS}:{S_WS+3}], s{S_T} offen")
            if self.o.get("dbgout") is not None:
                C.e(f"s_cmp_lg_u32 s2, {self.o['dbgout']}\ns_cbranch_scc1 L_end")
                srd(C, S_DBG, *self.ptr(A_DBG), 256)
                C.e(f"v_readlane_b32 s{S_T}, v255, 0\ns_nop 3\nv_subrev_u32 v255, s{S_T}, v255\nv_cmp_gt_u32 vcc, 16, v{self.vL}\ns_nop 1\ns_and_b64 exec, exec, vcc\nv_cmp_lt_u32 vcc, 0, v{self.vL}\ns_nop 1\ns_and_b64 exec, exec, vcc")
                C.e(f"buffer_store_dword v255, v2, s[{S_DBG}:{S_DBG+3}], 0 offen")
        C.e("s_branch L_end")
        if self.o["diag"]:
            L.e(f"s_cmp_lg_u32 s{S_WV}, 4\ns_cbranch_scc1 L_end")
            L.e(f"s_lshl_b32 s{S_T}, s2, 9\ns_add_u32 s{S_T}, s{S_T}, {common.WS_STAMP + 131072}\nv_lshlrev_b32 v2, 2, v{self.vL}")
            L.e(f"buffer_store_dword v255, v2, s[{S_WS}:{S_WS+3}], s{S_T} offen\nbuffer_store_dword v253, v2, s[{S_WS}:{S_WS+3}], s{S_T} offen offset:256")
        txt = head(NAME) + E.text() + C.text() + "L_loader:\n" + L.text() + "  s_branch L_end\n" + self.A.text() + self.tail.text() + "L_end:\n  s_endpgm\n" + kd(NAME)
        return txt

    def srds_common(self, a):
        a.e("s_waitcnt lgkmcnt(0)")
        srd(a, S_WS, *self.ptr(A_WS), WS_BYTES)
        srd(a, S_DBG, *self.ptr(A_DBG), 256)

    def phase_q(self, g, g1):
        C, L, c = self.C, self.L, g.c
        vL, vt = self.vL, self.vt
        g.bind(L, vL, vt, (8, 9)); vm = VM(L)
        em = g.em
        L.e("s_setprio 1")
        g.setup_dma()
        if self.o.get("lpro"): self.lstamp("setup")
        L.e("s_waitcnt lgkmcnt(0)")
        srd(L, S_XSRD, *self.ptr(A_X), M*D*2)
        srd(L, S_WSRD, *self.ptr(A_WQKV), D*3*D*2)
        def issue(t):
            for ins in g.dma_list(t): L.e(ins)
            vm.iss(("st", t), c.nld)
        for ins in g.rot_init(): L.e(ins)
        L.e(f"s_mov_b32 s{S_WR}, 0")
        for s in range(2):
            issue(s); L.e(f"s_add_u32 s{S_WR}, s{S_WR}, {c.SB}")
            if self.o.get("lpro"): self.lstamp("iss")
        srd(L, S_WS, *self.ptr(A_WS), WS_BYTES); srd(L, S_DBG, *self.ptr(A_DBG), 256)
        sv = Regs(64, 250)
        ones = sv.alloc(4, 4); wf = [sv.alloc(4, 4) for _ in range(8)]; sacc = [sv.alloc(4, 4) for _ in range(4)]
        vS = [sv.alloc() for _ in range(8)]; ldr = sv.alloc(32, 4)
        t0, t1, t2 = vt[0:3]
        L.e(f"v_lshlrev_b32 v{t0}, 2, v{vL}\nv_add_u32 v{t0}, {SD_CNT}, v{t0}\nv_cmp_gt_u32 vcc, 8, v{vL}\ns_and_saveexec_b64 s[{S_EX}:{S_EX+1}], vcc")
        L.lds_other(f"ds_write_b32 v{t0}, v{self.vZero}"); L.e(f"s_mov_b64 exec, s[{S_EX}:{S_EX+1}]")
        for k in range(4): L.e(f"v_mov_b32 v{ones+k}, 0x3f803f80")
        vL4 = sv.alloc(); rq = [sv.alloc() for _ in range(4)]
        L.e(f"v_lshlrev_b32 v{vL4}, 2, v{vL}")
        cls_q = self.csum_setup(g, 3, rq)
        csq_code = f"s_lshl_b32 s{S_T}, s{S_I}, 4\ns_add_u32 s{S_T}, s{S_T}, s{S_J}\ns_mul_i32 s{S_T2}, s{S_T}, 768\ns_mul_i32 s{S_T}, s{S_LW}, 192\ns_add_u32 s{S_T2}, s{S_T2}, s{S_T}\ns_add_u32 s{S_T2}, s{S_T2}, {WS_CSQ}"
        FLQ = 2 if self.o.get("flagsq", False) else 0
        if FLQ: self.lflag_init()
        if self.o.get("lpro"): self.lstamp("pre")
        vm.wait(("st", 0))
        if self.o.get("lpro"): self.lstamp("land")
        L.lds_drain(); self.bar_L_only()
        issue(2); L.e(f"s_mov_b32 s{S_WR}, 0")
        RP = c.rotpos
        if RP == 0: self.csum_reads(3, cls_q, rq, wf)
        vm.wait(("st", 1)); L.lds_drain(); self.bar_L_only()
        ns, S = c.nsteps, c.S
        def hook(t):
            if RP > 0 and t == RP - 1: self.csum_reads(3, cls_q, rq, wf)
            if t == RP: self.csum_finish(vm, 3, 12, ones, wf, sacc, vL4, csq_code)
            if t == RP + 3 and self.o.get("qsigL", True):
                if FLQ:
                    L.e(f"v_mov_b32 v{vS[3]}, {SD_FULL}"); self.lwait(vS[3], RP + 5, "qsig")
                self.signal(L, self.off_ij(F_Q), vS[0], vS[1], only_lw0=True); vm.iss("sig")
            if t == 1:
                L.e(f"v_mov_b32 v{vS[2]}, {SD_TOK}\nds_read_b32 v{vS[2]}, v{vS[2]}\ns_waitcnt lgkmcnt(0)\nv_readfirstlane_b32 s1, v{vS[2]}")
            if t == 10:
                t0, t1 = vt[0:2]
                L.e(f"v_and_b32 v{t0}, 15, v{vL}\ns_lshl_b32 s{S_T}, s{S_I}, 4\nv_add_u32 v{t1}, s{S_T}, v{t0}\nv_lshlrev_b32 v{t0}, 4, v{t0}\nv_add_u32 v{t0}, s{S_J}, v{t0}")
                L.e(f"v_and_b32 v{vS[7]}, 16, v{vL}\nv_cmp_eq_u32 vcc, 0, v{vS[7]}\ns_nop 1\nv_cndmask_b32 v{vS[7]}, v{t0}, v{t1}, vcc\nv_lshlrev_b32 v{vS[7]}, 7, v{vS[7]}\nv_add_u32 v{vS[7]}, {F_Q}, v{vS[7]}")
                L.e(f"buffer_load_dword v{vS[6]}, v{vS[7]}, s[{S_WS}:{S_WS+3}], 0 offen sc1"); vm.iss("pollq")
            if t == 11:
                vm.wait("pollq")
                self.poll_test(L, vS[6])
                L.e("s_cbranch_scc1 L_qready")
                self.poll(L, S_WS, vS[7], vS[6], "q")
                L.label("L_qready")
                L.e(f"s_mul_i32 s{S_T2}, s{S_J}, 768\ns_mul_i32 s{S_T}, s{S_LW}, 192\ns_add_u32 s{S_T2}, s{S_T2}, s{S_T}\ns_add_u32 s{S_T2}, s{S_T2}, {WS_CSQ}")
                L.e(f"v_lshlrev_b32 v{vS[1]}, 2, v{vL}\nv_mov_b32 v{vS[2]}, {hex(OOB)}\nv_cmp_gt_u32 vcc, 48, v{vL}\ns_nop 1\nv_cndmask_b32 v{vS[1]}, v{vS[2]}, v{vS[1]}, vcc")
                for p in range(16):
                    L.e(f"buffer_load_dword v{ldr+p}, v{vS[1]}, s[{S_WS}:{S_WS+3}], s{S_T2} offen sc1\ns_add_u32 s{S_T2}, s{S_T2}, {16*768}")
                L.e(f"s_lshl_b32 s{S_T2}, s{S_I}, 7\ns_lshl_b32 s{S_T}, s{S_LW}, 5\ns_add_u32 s{S_T2}, s{S_T2}, s{S_T}\ns_lshl_b32 s{S_T2}, s{S_T2}, 3\ns_add_u32 s{S_T2}, s{S_T2}, {WS_ST1}")
                L.e(f"v_and_b32 v{vS[3]}, 31, v{vL}\nv_lshlrev_b32 v{vS[3]}, 3, v{vS[3]}\nbuffer_load_dwordx2 {vr(ldr+16,2)}, v{vS[3]}, s[{S_WS}:{S_WS+3}], s{S_T2} offen sc1")
                vm.iss("qld", 17)
            if t == 13:
                vm.wait("qld")
                for p in range(1, 16): L.e(f"v_add_f32 v{ldr}, v{ldr}, v{ldr+p}")
                L.e(f"s_mul_i32 s{S_T}, s{S_LW}, 192\ns_add_u32 s{S_T}, s{S_T}, {SD_CSQ}\nv_lshlrev_b32 v{vS[1]}, 2, v{vL}\nv_add_u32 v{vS[1]}, s{S_T}, v{vS[1]}")
                L.e(f"v_cmp_gt_u32 vcc, 48, v{vL}\ns_and_saveexec_b64 s[{S_EX}:{S_EX+1}], vcc\nds_write_b32 v{vS[1]}, v{ldr}\ns_mov_b64 exec, s[{S_EX}:{S_EX+1}]")
                L.e(f"v_and_b32 v{vS[3]}, 31, v{vL}\ns_lshl_b32 s{S_T}, s{S_LW}, 5\nv_add_u32 v{vS[3]}, s{S_T}, v{vS[3]}\nv_lshlrev_b32 v{vS[3]}, 2, v{vS[3]}\nv_add_u32 v{vS[3]}, {SD_MEAN1}, v{vS[3]}")
                L.e(f"ds_write_b32 v{vS[3]}, v{ldr+16}\nds_write_b32 v{vS[3]}, v{ldr+17} offset:512")
                L.e("s_waitcnt lgkmcnt(0)"); L.lq = []
        for t in range(ns-1):
            if t + S <= ns-1:
                if FLQ and t > FLQ: self.lwait(46, t + 2, f"q{t}")
                issue(t+S); L.e(g.adv_slot(S_WR))
            hook(t)
            if t+2 <= ns-1 and ("st", t+2) in vm.q: vm.wait(("st", t+2))
            L.lds_drain()
            if FLQ and FLQ - 1 <= t <= ns-3: self.lfull(t + 3)
            if not FLQ or t < FLQ or t == ns-2:
                L.lds_drain(); self.bar_L_only()
            else: self.lstamp()
        g.bind(C, vL, vt, (8, 9))
        cv = Regs(12, 254); g.alloc_compute(cv)
        g.a = C
        C.e("s_setprio 3")
        a0 = g.acc[0][0]; xr = a0; un = a0 + 16; vS = [a0 + 48 + k for k in range(6)]
        C.e("s_waitcnt lgkmcnt(0)")
        self.stamp(C, 16)
        srd(C, S_XSRD, *self.ptr(A_X), M*D*2)
        srd(C, S_DBG, *self.ptr(A_DBG), 256)
        C.e(f"s_or_b32 s{S_T}, s2, s{S_LW}\ns_cmp_lg_u32 s{S_T}, 0\ns_cbranch_scc1 L_notok")
        C.e(f"s_memrealtime s[88:89]\ns_waitcnt lgkmcnt(0)\ns_or_b32 s88, s88, 1\nv_mov_b32 v{vt[0]}, s88")
        self.lane0(C, f"buffer_store_dword v{vt[0]}, v{self.vZero}, s[{S_DBG}:{S_DBG+3}], 0 offen sc1", "tok")
        C.label("L_notok")
        C.e(f"s_lshl_b32 s{S_T}, s{S_I}, 7\ns_lshl_b32 s{S_T2}, s{S_J}, 3\ns_add_u32 s{S_T}, s{S_T}, s{S_T2}\ns_lshl_b32 s{S_T2}, s{S_LW}, 1\ns_add_u32 s71, s{S_T}, s{S_T2}\ns_lshl_b32 s{S_T}, s71, 11")
        for r in range(2):
            for p in range(2):
                C.e(f"buffer_load_dwordx4 {vr(xr+8*r+4*p,4)}, v{self.vL16}, s[{S_XSRD}:{S_XSRD+3}], s{S_T} offen offset:{r*2048+p*1024}")
        srd(C, S_WS, *self.ptr(A_WS), WS_BYTES)
        g.setup_reads()
        C.e(f"s_lshl_b32 s{S_T}, s2, 2\ns_add_u32 s{S_T}, s{S_T}, s{S_LW}\ns_mul_i32 s{S_T2}, s{S_T}, 43691\ns_lshr_b32 s{S_T2}, s{S_T2}, 19\ns_mul_i32 s{S_T2}, s{S_T2}, 12\ns_sub_u32 s{S_T}, s{S_T}, s{S_T2}\ns_add_u32 s70, s{S_T}, 1" if False else "s_nop 0")
        self.stamp(C, 17)
        C.e("s_waitcnt vmcnt(0)")
        self.stamp(C, 18)
        vtok = cv.alloc()
        C.e(f"buffer_load_dword v{vtok}, v{self.vZero}, s[{S_DBG}:{S_DBG+3}], 0 offen sc1")
        for r in range(2):
            for d in range(8):
                C.e(f"v_lshlrev_b32 v{un+16*r+2*d}, 16, v{xr+8*r+d}\nv_and_b32 v{un+16*r+2*d+1}, 0xffff0000, v{xr+8*r+d}")
        def tree(dst, src):
            pass
        for r in range(2): C.e(f"v_add_f32 v{vS[r]}, v{un+16*r}, v{un+16*r+1}\nv_add_f32 v{vS[2+r]}, v{un+16*r+2}, v{un+16*r+3}")
        for k in range(4, 16, 2):
            for r in range(2): C.e(f"v_add_f32 v{vS[r]}, v{vS[r]}, v{un+16*r+k}\nv_add_f32 v{vS[2+r]}, v{vS[2+r]}, v{un+16*r+k+1}")
        for r in range(2): C.e(f"v_add_f32 v{vS[r]}, v{vS[r]}, v{vS[2+r]}")
        def allred2(x0, x1, ta, tb):
            for p in ["quad_perm:[1,0,3,2]", "quad_perm:[2,3,0,1]", "row_half_mirror", "row_mirror"]:
                C.e("s_nop 0")
                for x in (x0, x1): C.e(f"v_add_f32_dpp v{x}, v{x}, v{x} {p} row_mask:0xf bank_mask:0xf")
            for sw in ("v_permlane16_swap_b32", "v_permlane32_swap_b32"):
                C.e(f"v_mov_b32 v{ta}, v{x0}\nv_mov_b32 v{tb}, v{x1}\ns_nop 0\n{sw} v{ta}, v{x0}\n{sw} v{tb}, v{x1}\ns_nop 0\nv_add_f32 v{x0}, v{x0}, v{ta}\nv_add_f32 v{x1}, v{x1}, v{tb}")
        C.e("s_nop 0")
        allred2(vS[0], vS[1], vS[4], vS[5])
        for r in range(2): C.e(f"v_mul_f32 v{vS[r]}, {fhex(1/1024)}, v{vS[r]}")
        for k in range(16):
            for r in range(2): C.e(f"v_sub_f32 v{un+16*r+k}, v{un+16*r+k}, v{vS[r]}")
        for r in range(2): C.e(f"v_mul_f32 v{vS[2+r]}, v{un+16*r}, v{un+16*r}")
        for k in range(1, 16):
            for r in range(2): C.e(f"v_fmac_f32 v{vS[2+r]}, v{un+16*r+k}, v{un+16*r+k}")
        C.e("s_nop 0")
        allred2(vS[2], vS[3], vS[4], vS[5])
        for r in range(2): C.e(f"v_mul_f32 v{vS[2+r]}, {fhex(1/1024)}, v{vS[2+r]}\nv_add_f32 v{vS[2+r]}, {fhex(EPS)}, v{vS[2+r]}")
        for r in range(2): C.e(f"v_rsq_f32 v{vS[2+r]}, v{vS[2+r]}")
        C.e(f"v_mov_b32 v{un}, v{vS[0]}\nv_mov_b32 v{un+2}, v{vS[1]}\nv_mov_b32 v{un+1}, v{vS[2]}\nv_mov_b32 v{un+3}, v{vS[3]}")
        C.e(f"s_lshl_b32 s{S_T}, s71, 3\ns_add_u32 s{S_T}, s{S_T}, {WS_ST1}")
        self.lane0(C, f"buffer_store_dwordx4 {vr(un,4)}, v{self.vZero}, s[{S_WS}:{S_WS+3}], s{S_T} offen sc1", "st1")
        self.stamp(C, 19)
        nextra = 0
        t0, t1 = vt[0:2]
        if self.o.get("sentinel", True) and self.o.get("markat", "o") == "q":
            mk4 = a0 + 60
            for k in range(4): C.e(f"v_mov_b32 v{mk4+k}, -1")
            C.e(f"s_lshl_b32 s{S_T}, s{S_I}, 4\ns_add_u32 s{S_T}, s{S_T}, s{S_J}\ns_lshl_b32 s{S_T}, s{S_T}, 15\ns_lshl_b32 s{S_T2}, s{S_LW}, 13\ns_add_u32 s{S_T}, s{S_T}, s{S_T2}\ns_add_u32 s{S_T}, s{S_T}, {WS_XCH}")
            for n in range(8):
                if n == 4: C.e(f"s_add_u32 s{S_T}, s{S_T}, 4096")
                C.e(f"buffer_store_dwordx4 {vr(mk4,4)}, v{self.vL16}, s[{S_WS}:{S_WS+3}], s{S_T} offen offset:{(n & 3)*1024} sc1"); nextra += 1
        if self.o.get("tlb", True):
            C.e(f"v_lshlrev_b32 v{t0}, 21, v{vL}")
            for arg, size in ((A_WQKV, D*3*D*2), (A_X, M*D*2), (A_WS, 54*MB), (A_WO, D*D*2), (A_W1, D*DFF*2), (A_W2, DFF*D*2), (A_OUT, M*D*2)):
                p = self.ptr(arg)[0]
                C.e(f"v_min_u32 v{t1}, {hex(size - 4)}, v{t0}\nglobal_load_dword v254, v{t1}, s[{p}:{p+1}]"); nextra += 1
        pfo = cv.alloc(); pf1 = cv.alloc()
        C.e(f"s_lshl_b32 s{S_T}, s2, 2\ns_add_u32 s{S_T}, s{S_T}, s{S_LW}")
        C.e(f"s_lshl_b32 s{S_T2}, s{S_T}, 4\nv_and_b32 v{pfo}, 15, v{vL}\nv_add_u32 v{pfo}, s{S_T2}, v{pfo}\nv_lshlrev_b32 v{pfo}, 7, v{pfo}")
        C.e(f"s_mul_i32 s{S_T2}, s{S_T}, 56\nv_min_u32 v{pf1}, 55, v{vL}\nv_add_u32 v{pf1}, s{S_T2}, v{pf1}\nv_lshlrev_b32 v{pf1}, 7, v{pf1}")
        def hookB(a):
            p = self.ptr(A_WO)[0]; a.e(f"global_load_dword v254, v{pfo}, s[{p}:{p+1}]")
            if self.o.get("pf_w1", False):
                p = self.ptr(A_W1)[0]; a.e(f"global_load_dword v254, v{pf1}, s[{p}:{p+1}]")
        C.e(f"s_and_b32 s{S_T}, s2, 56\ns_lshr_b32 s{S_T}, s{S_T}, 3\ns_add_u32 s71, s{S_T}, 3")
        def hookS(a):
            a.e(f"s_cmp_lg_u32 s{S_LW}, 0\ns_cbranch_scc1 L_nosigq")
            self.signal(a, self.off_ij(F_Q), vt[0], vt[1])
            a.label("L_nosigq")
        hk = {} if self.o.get("qsigL", True) else {14 - (3 + c.rotpos): hookS}
        if self.o["pf_weights"]: hk["s71"] = hookB
        def peel_end():
            C.e(f"s_waitcnt vmcnt({nextra})")
            self.poll_test(C, vtok, token=False)
            C.e("s_cbranch_scc1 L_tokready")
            self.poll(C, S_DBG, self.vZero, vtok, "tok", token=False)
            C.label("L_tokready")
            C.e(f"v_readfirstlane_b32 s1, v{vtok}\nv_mov_b32 v{vt[0]}, {SD_TOK}\nds_write_b32 v{vt[0]}, v{vtok}\ns_waitcnt lgkmcnt(0)")
        self.cloop(g, stamps=(1, 2), hooks=hk, peel_first=peel_end, flags=(2 if self.o.get("flagsq", False) else 0), cv=cv)
        self.epi_q(g, cv)

    def bar_L_only(self):
        self.L.e("s_barrier"); self.lstamp()
    def lstamp(self, tag=''):
        if self.o["diag"] and self.o.get("lst") and self.nl < 128:
            self.L.e(f"s_memrealtime s[88:89]\ns_waitcnt lgkmcnt(0)\nv_writelane_b32 v{255 - 2*(self.nl//64)}, s88, {self.nl % 64}"); self.nl += 1; self.L.lq = []
            self.lnames.append(tag)
    def setup_w_only(self, g):
        c, a, em = g.c, g.a, g.em
        l, lw = g.l, g.lw
        cpr = c.TN//8
        mg, sh = magic_div(cpr, c.nWld*256)
        for n in range(c.nWld):
            flat = lw*(c.nWld*64) + l + n*64
            vr_, vp = g.v_tmp2
            em.vemit((flat*mg) >> sh, vr_); em.vr["row"] = vr_; row = V("row")
            em.vemit(flat - row*cpr, vp); em.vr["p"] = vp; p = V("p")
            ch = p ^ g.wswz(row)
            colb = ((ch >> 3) << 11) + ((ch & 7) << 4) if c.qkvseg else ch << 4
            em.vemit(row*c.ldw + colb - (n % 4)*1024, g.vWsrc[n])

    def slab_plan(self, gg, per):
        cc = gg.c; l = gg.l; lw = gg.lw
        def ex(k, ks, j):
            row = gg.wrow(ks, j)
            ch = (lw*per + k)*2 + ((l >> 1) & 1)
            return row*cc.RS + ((ch ^ gg.wswz(row)) << 4) + (l & 1)*8 + cc.XB + cc.rotpos*cc.SB
        keys = [(k, ks, j) for k in range(per) for ks in range(2) for j in range(2)]
        base = []; cls = {}
        for key in keys:
            t = [ex(*key).ev({"l": ll, "lw": w}) for w in range(4) for ll in range(64)]
            for ci, (bk, bt) in enumerate(base):
                ds = {p - q_ for p, q_ in zip(t, bt)}
                if len(ds) == 1 and 0 <= min(ds) < 65536: cls[key] = (ci, ds.pop()); break
            else:
                base.append((key, t)); cls[key] = (len(base)-1, 0)
        for w in range(4):
            for key in keys:
                assert banks.conflicts_b64([ex(*key).ev({"l": ll, "lw": w}) for ll in range(64)]) == 0
        return [ex(*b[0]) for b in base], cls
    def csum_setup(self, gg, per, regs):
        bases, cls = self.slab_plan(gg, per)
        assert len(bases) <= len(regs)
        gg.bind(self.L, self.vL, self.vt, (8, 9))
        for b, r in zip(bases, regs): gg.em.vemit(b, r)
        return cls
    def csum_reads(self, per, cls, regs, wf):
        L = self.L
        for k in range(per):
            for ks in range(2):
                for j in range(2):
                    ci, imm = cls[(k, ks, j)]; d = wf[2*k+ks] + 2*j
                    L.lds_rd(f"ds_read_b64_tr_b16 {vr(d,2)}, v{regs[ci]} offset:{imm}", rng(d, 2))
    def csum_finish(self, vm, per, nt_total, ones, wf, sacc, vL4, colbase_code):
        L = self.L
        for k in range(4): L.e(f"v_mov_b32 v{ones+k}, 0x3f803f80")
        L.e(colbase_code)
        for k in range(per): L.e(f"v_mfma_f32_16x16x32_bf16 {vr(sacc[k],4)}, {vr(ones,4)}, {vr(wf[2*k],4)}, 0")
        for k in range(per): L.e(f"v_mfma_f32_16x16x32_bf16 {vr(sacc[k],4)}, {vr(ones,4)}, {vr(wf[2*k+1],4)}, {vr(sacc[k],4)}")
        L.e(f"v_cmp_gt_u32 vcc, 16, v{self.vL}\ns_nop 7\ns_and_saveexec_b64 s[{S_EX}:{S_EX+1}], vcc")
        for k in range(per):
            if (3*per + k) == nt_total:
                L.e(f"s_cmp_eq_u32 s{S_LW}, 3\ns_cselect_b32 s{S_T2}, {hex(OOB - 4096)}, s{S_T2}")
            L.e(f"buffer_store_dword v{sacc[k]}, v{vL4}, s[{S_WS}:{S_WS+3}], s{S_T2} offen offset:{k*64} sc1"); vm.iss("cst")
        L.e(f"s_mov_b64 exec, s[{S_EX}:{S_EX+1}]")

    def prefetch_first(self, a, cv):
        vL = self.vL; t0, t1, t2 = self.vt[0:3]; d = cv.alloc(4)
        srd(a, S_XSRD, *self.ptr(A_X), M*D*2); srd(a, S_WSRD, *self.ptr(A_WQKV), D*3*D*2)
        a.e(f"s_lshr_b32 s{S_T}, s2, 3\ns_lshl_b32 s{S_T}, s{S_T}, 2\ns_add_u32 s{S_T}, s{S_T}, s{S_LW}")
        a.e(f"s_mul_i32 s{S_T2}, s{S_T}, 96")
        mg, sh = magic_div(12, 12288); mg3, sh3 = magic_div(3, 12)
        a.e(f"s_lshr_b32 s{S_T3}, s{S_J}, 2\ns_lshl_b32 s{S_T3}, s{S_T3}, 9")
        for n in range(2):
            a.e(f"v_add_u32 v{t0}, s{S_T2}, v{vL}\nv_add_u32 v{t0}, {48*n}, v{t0}")
            a.e(f"v_mul_u32_u24 v{t1}, {mg}, v{t0}\nv_lshrrev_b32 v{t1}, {sh}, v{t1}\nv_mul_u32_u24 v{t2}, 12, v{t1}\nv_sub_u32 v{t0}, v{t0}, v{t2}")
            a.e(f"v_mul_u32_u24 v{t2}, {mg3}, v{t0}\nv_lshrrev_b32 v{t2}, {sh3}, v{t2}")
            a.e(f"v_mul_u32_u24 v{t1}, 6144, v{t1}\nv_lshlrev_b32 v{d+2}, 7, v{t2}\nv_add_u32 v{t1}, v{t1}, v{d+2}")
            a.e(f"v_mul_u32_u24 v{t2}, 3, v{t2}\nv_sub_u32 v{t0}, v{t0}, v{t2}\nv_lshlrev_b32 v{t0}, 11, v{t0}\nv_add_u32 v{t1}, v{t1}, v{t0}")
            a.e(f"v_cmp_gt_u32 vcc, 48, v{vL}\nv_mov_b32 v{t0}, 0x7ffffff0\ns_nop 0\nv_cndmask_b32 v{t1}, v{t0}, v{t1}, vcc")
            a.e(f"buffer_load_dword v254, v{t1}, s[{S_WSRD}:{S_WSRD+3}], s{S_T3} offen")
        a.e(f"s_lshl_b32 s{S_T2}, s{S_T}, 7\ns_lshr_b32 s{S_T3}, s{S_I}, 3\ns_lshl_b32 s{S_T3}, s{S_T3}, 21")
        for n in range(2):
            a.e(f"v_add_u32 v{t0}, s{S_T2}, v{vL}\nv_add_u32 v{t0}, {64*n}, v{t0}\nv_and_b32 v{t1}, 1023, v{t0}\nv_lshlrev_b32 v{t1}, 11, v{t1}\nv_lshrrev_b32 v{t0}, 10, v{t0}\nv_lshlrev_b32 v{t0}, 7, v{t0}\nv_add_u32 v{t1}, v{t1}, v{t0}")
            a.e(f"buffer_load_dword v254, v{t1}, s[{S_XSRD}:{S_XSRD+3}], s{S_T3} offen")
    def prefetch_weights(self, a):
        vL = self.vL; t0, t1 = self.vt[0:2]
        a.e(f"s_lshl_b32 s{S_T}, s2, 2\ns_add_u32 s{S_T}, s{S_T}, s{S_LW}")
        for (arg, nbytes, per, d) in ((A_WO, D*D*2, 16, 2), (A_W1, D*DFF*2, 56, 3)) if self.o.get("pf_w1", True) else ((A_WO, D*D*2, 16, 2),):
            srd(a, S_E3, *self.ptr(arg), nbytes)
            a.e(f"s_mul_i32 s{S_T2}, s{S_T}, {per}\nv_add_u32 v{t0}, s{S_T2}, v{vL}\nv_lshlrev_b32 v{t0}, 7, v{t0}\nv_cmp_gt_u32 vcc, {per}, v{vL}\nv_mov_b32 v{t1}, 0x7ffffff0\ns_nop 0\nv_cndmask_b32 v{t0}, v{t1}, v{t0}, vcc")
            a.e(f"buffer_load_dword v254, v{t0}, s[{S_E3}:{S_E3+3}], 0 offen")
    def prefetch_w2(self, a):
        vL = self.vL; t0, t1 = self.vt[0:2]
        a.e(f"s_lshl_b32 s{S_T}, s2, 2\ns_add_u32 s{S_T}, s{S_T}, s{S_LW}")
        srd(a, S_E3, *self.ptr(A_W2), DFF*D*2)
        a.e(f"s_mul_i32 s{S_T2}, s{S_T}, 56\nv_add_u32 v{t0}, s{S_T2}, v{vL}\nv_lshlrev_b32 v{t0}, 7, v{t0}\nv_cmp_gt_u32 vcc, 56, v{vL}\nv_mov_b32 v{t1}, 0x7ffffff0\ns_nop 0\nv_cndmask_b32 v{t0}, v{t1}, v{t0}, vcc")
        a.e(f"buffer_load_dword v254, v{t0}, s[{S_E3}:{S_E3+3}], 0 offen")

    def cloop(self, g, stamps, hooks=None, peel_first=None, ns=None, first=True, sfx="", flags=0, cv=None):
        c, a = g.c, g.a
        NG = c.NSUB//c.G; S = c.S; ns = ns or c.nsteps; nm = c.name + sfx
        if flags:
            vF = cv.alloc(4, 4); vM = cv.alloc(); vP = cv.alloc(); vFA = cv.alloc(); vFR = cv.alloc()
            a.e(f"v_mov_b32 v{vFA}, {SD_FULL}\ns_lshl_b32 s{S_T}, s{S_LW}, 2\ns_add_u32 s{S_T}, s{S_T}, {SD_FREE}\nv_mov_b32 v{vFR}, s{S_T}\nv_mov_b32 v{vP}, 0")
            a.lds_other(f"ds_write_b32 v{vFR}, v{vP}")
        a.e(f"s_mov_b32 s{S_RD}, 0")
        for ins in g.set_read_addrs(): a.e(ins)
        a.lds_drain(); a.e("s_setprio 0\ns_barrier")
        if stamps[0] is not None: self.stamp(a, stamps[0])
        for r in g.reads(0, 0): a.lds_rd(*r)
        st = 0
        for gi in range(NG-1):
            g.group(st, g.reads(st ^ 1, gi+1), [], first=(first and gi == 0)); st ^= 1
        a.e(g.adv_slot(S_RD))
        for ins in g.set_read_addrs(): a.e(ins)
        a.lds_drain(); a.e("s_barrier")
        par = st
        def body(loopctl=False):
            st = par
            for gi in range(NG):
                late = []; extra = []; tail = []; reads = g.reads(st ^ 1, gi)
                if gi == 0 and loopctl and hooks:
                    for cnt in hooks: extra.append(f"s_cmp_eq_u32 s{S_CNT}, {cnt}\ns_cbranch_scc1 L_hk_{nm}_{cnt}\nL_hkb_{nm}_{cnt}:")
                if gi == NG-1:
                    late.append(g.adv_slot(S_RD)); late += g.set_read_addrs()
                    ctl = f"s_sub_u32 s{S_CNT}, s{S_CNT}, 1\ns_cmp_lg_u32 s{S_CNT}, 0"
                    if loopctl and flags:
                        reads = reads + [(f"ds_read_b128 {vr(vF,4)}, v{vFA}", rng(vF, 4))]
                        tail = [f"v_min3_u32 v{vM}, v{vF}, v{vF+1}, v{vF+2}\nv_mov_b32 v{vP}, s{S_TG}",
                                f"v_min_u32 v{vM}, v{vM}, v{vF+3}",
                                (f"ds_write_b32 v{vFR}, v{vP}",),
                                f"v_readfirstlane_b32 s{S_T4}, v{vM}",
                                f"s_nop 0\ns_cmp_ge_u32 s{S_T4}, s{S_TG}\ns_cbranch_scc0 L_slow_{nm}\nL_slowb_{nm}:",
                                f"s_add_u32 s{S_TG}, s{S_TG}, 1\n" + ctl]
                    elif loopctl: late.append(ctl)
                g.group(st, reads, extra, late=late, tail=tail); st ^= 1
            if not (loopctl and flags): a.lds_drain()
        nb = ns - 2
        npeel = flags if flags else (1 if peel_first else 0)
        for p in range(npeel):
            body(False)
            if p == 0 and peel_first: peel_first()
            a.e("s_barrier"); nb -= 1
        if nb > 0 and flags:
            a.e(f"s_mov_b32 s{S_CNT}, {nb}\ns_mov_b32 s{S_TG}, {npeel + 3}")
            a.label(f"L_loop_{nm}")
            lq0 = list(a.lq)
            body(True)
            a.e(f"s_cbranch_scc1 L_loop_{nm}")
            t = self.tail
            t.label(f"L_slow_{nm}")
            t.e(f"s_mov_b32 s{S_T3}, {POLL_MAX}")
            t.label(f"L_slowl_{nm}")
            t.e(f"ds_read_b128 {vr(vF,4)}, v{vFA}\ns_waitcnt lgkmcnt(0)\nv_min3_u32 v{vM}, v{vF}, v{vF+1}, v{vF+2}\nv_min_u32 v{vM}, v{vM}, v{vF+3}\ns_nop 0\nv_readfirstlane_b32 s{S_T4}, v{vM}\ns_nop 2")
            t.e(f"s_cmp_ge_u32 s{S_T4}, s{S_TG}\ns_cbranch_scc1 L_slowb_{nm}\ns_sub_u32 s{S_T3}, s{S_T3}, 1\ns_cmp_lg_u32 s{S_T3}, 0\ns_cbranch_scc1 L_slowl_{nm}\ns_branch L_slowb_{nm}")
        elif nb > 0:
            a.e(f"s_mov_b32 s{S_CNT}, {nb}\ns_branch L_loop_{nm}")
            a.label(f"L_top_{nm}"); a.e("s_barrier"); a.label(f"L_loop_{nm}")
            body(True)
            a.e(f"s_cbranch_scc1 L_top_{nm}\ns_barrier")
        body(False); a.e("s_barrier")
        g.group(par, [], [])
        a.e("s_setprio 3\ns_nop 6")
        if stamps[1] is not None: self.stamp(a, stamps[1])
        for cnt, fn in (hooks or {}).items():
            t = self.tail
            t.label(f"L_hk_{nm}_{cnt}"); fn(t); t.e(f"s_branch L_hkb_{nm}_{cnt}")

    def lflag_init(self):
        L = self.L
        L.e(f"s_lshl_b32 s{S_T}, s{S_LW}, 2\ns_add_u32 s{S_T}, s{S_T}, {SD_FULL}\nv_mov_b32 v45, s{S_T}\nv_mov_b32 v46, {SD_FREE}\nv_mov_b32 v47, 0")
        L.lds_other("ds_write_b32 v45, v47")
    def lfull(self, val):
        L = self.L
        L.e(f"v_mov_b32 v47, {val}"); L.lds_other("ds_write_b32 v45, v47")
    def lwait(self, addr_reg, target, label):
        L = self.L
        L.e(f"s_setprio {self.o.get('lspinprio', 0)}\ns_mov_b32 s{S_T3}, {POLL_MAX}")
        L.label(f"L_lw_{label}")
        L.e(f"ds_read_b128 v[40:43], v{addr_reg}\ns_waitcnt lgkmcnt(0)\nv_min3_u32 v44, v40, v41, v42\nv_min_u32 v44, v44, v43\ns_nop 0\nv_readfirstlane_b32 s{S_T4}, v44\ns_nop 2")
        L.e(f"s_cmp_ge_u32 s{S_T4}, {target}\ns_cbranch_scc1 L_lwd_{label}\ns_sleep {self.o.get('lsleep', 1)}\ns_sub_u32 s{S_T3}, s{S_T3}, 1\ns_cmp_lg_u32 s{S_T3}, 0\ns_cbranch_scc1 L_lw_{label}")
        L.label(f"L_lwd_{label}"); L.lq = []; L.e("s_setprio 1")

    def epi_q(self, g, cv):
        C, L, c = self.C, self.L, g.c
        a = C; vL = self.vL; t0, t1, t2, t3, t4, t5 = self.vt
        em = g.em; l = g.l; wm, wn = g.wm, g.wn
        fr = g.frag0
        mu = fr; rs = fr+4; cs = fr+8; pk = fr+24; st = fr+32
        va = fr+64; vb = fr+65; vo = fr+66; vk = fr+67; sc = fr+68
        gq = l >> 4
        em.vemit((wm*64 + (l & 15))*4 + SD_MEAN1, va)
        for x in range(4):
            a.lds_rd(f"ds_read_b32 v{mu+x}, v{va} offset:{x*64}", [mu+x])
            a.lds_rd(f"ds_read_b32 v{rs+x}, v{va} offset:{512+x*64}", [rs+x])
        em.vemit((wn*32 + gq*4)*4 + SD_CSQ, vb)
        def cs_off(f): return (64*(f//2) + 16*(f % 2))*4
        for n, f in enumerate((2, 3, 0, 1)):
            a.lds_rd(f"ds_read_b128 {vr(cs+4*n,4)}, v{vb} offset:{cs_off(f)}", rng(cs+4*n, 4))
        csr = {2: cs, 3: cs+4, 0: cs+8, 1: cs+12}
        em.vemit(wn*49152 + l*16, vk)
        a.e(f"s_lshl_b32 s{S_T}, s{S_I}, 4\ns_add_u32 s{S_T}, s{S_T}, s{S_J}\ns_lshl_b32 s{S_T}, s{S_T}, 15\ns_lshl_b32 s{S_T2}, s{S_WN}, 14\ns_add_u32 s{S_T}, s{S_T}, s{S_T2}\ns_add_u32 s71, s{S_T}, {WS_KV}")
        def fold_mn(x, f, scale_reg):
            acc = g.acc[x][f]; c0 = csr[f]
            for p in range(2):
                a.e(f"v_pk_fma_f32 {vr(acc+2*p,2)}, {vr(mu+(x & ~1),2)}, {vr(c0+2*p,2)}, {vr(acc+2*p,2)} op_sel:[{x & 1},0,0] op_sel_hi:[{x & 1},1,1] neg_lo:[1,0,0] neg_hi:[1,0,0]")
            for p in range(2):
                a.e(f"v_pk_mul_f32 {vr(acc+2*p,2)}, {vr(scale_reg+(x & ~1),2)}, {vr(acc+2*p,2)} op_sel:[{x & 1},0] op_sel_hi:[{x & 1},1]")
        def pack2(dst, accA, accB):
            a.e(f"v_cvt_pk_bf16_f32 v{dst}, v{accA}, v{accA+1}\nv_cvt_pk_bf16_f32 v{dst+1}, v{accA+2}, v{accA+3}")
            a.e(f"v_cvt_pk_bf16_f32 v{dst+2}, v{accB}, v{accB+1}\nv_cvt_pk_bf16_f32 v{dst+3}, v{accB+2}, v{accB+3}")
        a.need(list(rng(mu, 8)) + list(rng(cs, 8)))
        a.e(f"s_lshl_b32 s{S_T3}, s{S_WM}, 12")
        a.e(f"v_add_u32 v{vo}, s{S_T3}, v{vk}")
        a.e(f"s_add_u32 s{S_T4}, s71, s{S_T3}")
        for x in range(4):
            fold_mn(x, 2, rs); fold_mn(x, 3, rs)
            p = pk + 4*(x & 1)
            pack2(p, g.acc[x][2], g.acc[x][3])
            a.e(f"buffer_store_dwordx4 {vr(p,4)}, v{self.vL16}, s[{S_WS}:{S_WS+3}], s{S_T4} offen offset:{x*1024} sc1")
            a.lds_other(f"ds_write_b128 v{vo}, {vr(p,4)} offset:{AT_K(0) + 2*8192 + x*1024}")
        em.vemit((wn*32 + (l & 15))*4 + SD_CSQ + 128*4, va)
        a.lds_rd(f"ds_read_b32 v{sc}, v{va}", [sc]); a.lds_rd(f"ds_read_b32 v{sc+1}, v{va} offset:64", [sc+1])
        em.vemit((wm*64 + gq*4)*4 + SD_MEAN1, vb)
        for x in range(4):
            a.lds_rd(f"ds_read_b128 {vr(st+4*x,4)}, v{vb} offset:{x*64}", rng(st+4*x, 4))
            a.lds_rd(f"ds_read_b128 {vr(st+16+4*x,4)}, v{vb} offset:{512+x*64}", rng(st+16+4*x, 4))
        a.e(f"s_lshl_b32 s{S_T3}, s{S_WM}, 12\ns_add_u32 s{S_T4}, s71, s{S_T3}\ns_add_u32 s{S_T4}, s{S_T4}, 8192")
        for xi in range(2):
            a.need(list(rng(st+8*xi, 8)) + list(rng(st+16+8*xi, 8)) + [sc, sc+1])
            for dl in range(2):
                for x in (2*xi, 2*xi+1):
                    acc = g.acc[x][4+dl]
                    for p in range(2):
                        a.e(f"v_pk_fma_f32 {vr(acc+2*p,2)}, {vr(st+4*x+2*p,2)}, {vr(sc,2)}, {vr(acc+2*p,2)} op_sel:[0,{dl},0] op_sel_hi:[1,{dl},1] neg_lo:[1,0,0] neg_hi:[1,0,0]")
                    for p in range(2):
                        a.e(f"v_pk_mul_f32 {vr(acc+2*p,2)}, {vr(st+16+4*x+2*p,2)}, {vr(acc+2*p,2)}")
                p = pk + 4*dl
                pack2(p, g.acc[2*xi][4+dl], g.acc[2*xi+1][4+dl])
                a.e(f"buffer_store_dwordx4 {vr(p,4)}, v{self.vL16}, s[{S_WS}:{S_WS+3}], s{S_T4} offen offset:{(xi*2+dl)*1024} sc1")
                a.lds_other(f"ds_write_b128 v{vo}, {vr(p,4)} offset:{AT_V(0) + 2*8192 + (xi*2+dl)*1024}")
        for x in range(4): a.e(f"v_mul_f32 v{rs+x}, {fhex(QSCALE)}, v{rs+x}")
        em.vemit(wn*8192 + wm*4096 + l*16 + AT_Q0, va)
        a.need(rng(cs+8, 8))
        for x in range(4):
            fold_mn(x, 0, rs); fold_mn(x, 1, rs)
            p = pk + 4*(x & 1)
            a.e("s_nop 0")
            pack2(p, g.acc[x][0], g.acc[x][1])
            a.lds_other(f"ds_write_b128 v{va}, {vr(p,4)} offset:{x*1024}")
        a.e("s_waitcnt vmcnt(0)")
        self.signal_last(a, 0, 4, self.off_ji(F_KV), t0, t1, "kv")
        self.stamp(C, 3)
        a.e("s_waitcnt lgkmcnt(0)"); a.lq = []
        self.lsetup(self.g[1], A_WO, D*D*2, WS_O)
        def kvpoll():
            L.e(f"s_sub_i32 s{S_T2}, s{S_I}, 1\ns_max_i32 s{S_T2}, s{S_T2}, 0\ns_sub_i32 s{S_XB0}, s{S_I}, 2\ns_max_i32 s{S_XB0}, s{S_XB0}, 0")
            L.e(f"v_mov_b32 v{t0}, s{S_T2}\nv_mov_b32 v{t1}, s{S_XB0}\nv_and_b32 v52, 1, v{vL}\nv_cmp_eq_u32 vcc, 0, v52\ns_nop 1\nv_cndmask_b32 v{t0}, v{t1}, v{t0}, vcc")
            L.e(f"v_lshlrev_b32 v{t0}, 7, v{t0}\ns_lshl_b32 s{S_T}, s{S_J}, 11\ns_add_u32 s{S_T}, s{S_T}, {F_KV}\nv_add_u32 v53, s{S_T}, v{t0}")
            self.poll(L, S_WS, 53, 52, "kv")
        L.e("s_mov_b32 s0, 1\ns_branch L_attn")
        L.label("L_kvstage")
        self.lstamp()
        if self.o.get("kvpoll1", True):
            L.e(f"v_mov_b32 v54, {SD_CNT + 20}\ns_cmp_lg_u32 s{S_LW}, 0\ns_cbranch_scc1 L_kvwait")
            kvpoll()
            L.e("v_mov_b32 v55, 1\nds_write_b32 v54, v55\ns_branch L_kvgo")
            L.label("L_kvwait")
            L.e(f"s_mov_b32 s{S_CNT}, {POLL_MAX*8}")
            L.label("L_kvspin")
            L.e(f"ds_read_b32 v55, v54\ns_waitcnt lgkmcnt(0)\nv_readfirstlane_b32 s{S_T}, v55\ns_nop 2\ns_cmp_lg_u32 s{S_T}, 0\ns_cbranch_scc1 L_kvgo\ns_sleep 1\ns_sub_u32 s{S_CNT}, s{S_CNT}, 1\ns_cmp_lg_u32 s{S_CNT}, 0\ns_cbranch_scc1 L_kvspin")
            L.label("L_kvgo")
        else: kvpoll()
        self.lstamp()
        L.e(f"s_lshr_b32 s{S_T}, s{S_LW}, 1\ns_sub_i32 s{S_T2}, s{S_I}, 2\ns_add_i32 s{S_T2}, s{S_T2}, s{S_T}")
        L.e(f"s_lshl_b32 s{S_XB0}, s{S_T2}, 4\ns_add_u32 s{S_XB0}, s{S_XB0}, s{S_J}\ns_lshl_b32 s{S_XB0}, s{S_XB0}, 15\ns_and_b32 s{S_WB0}, s{S_LW}, 1\ns_lshl_b32 s{S_WB0}, s{S_WB0}, 14\ns_add_u32 s{S_XB0}, s{S_XB0}, s{S_WB0}\ns_add_u32 s{S_XB0}, s{S_XB0}, {WS_KV}")
        L.e(f"s_cmp_lt_i32 s{S_T2}, 0\ns_cselect_b32 s{S_XB0}, 0x7ff00000, s{S_XB0}")
        L.e(f"s_and_b32 s{S_WB0}, s{S_LW}, 1\ns_mul_i32 s{S_WB0}, s{S_WB0}, 49152\ns_lshl_b32 s{S_T}, s{S_T}, 13\ns_add_u32 s{S_WB0}, s{S_WB0}, s{S_T}")
        for part in range(2):
            for q4 in range(2):
                L.e(f"s_add_u32 m0, s{S_WB0}, {part*24576 + q4*4096}\ns_add_u32 s{S_T}, s{S_XB0}, {part*8192 + q4*4096}")
                for n in range(4):
                    L.e(f"buffer_load_dwordx4 v{self.vL16}, s[{S_WS}:{S_WS+3}], s{S_T} offen offset:{n*1024} sc1 lds")
        L.e("s_waitcnt vmcnt(8)" if self.o.get("kfirst", True) else "s_waitcnt vmcnt(0)")
        L.e("s_branch L_attn_go")
        C.e("s_mov_b32 s0, 0\ns_branch L_attn"); C.label("L_attn_back_c"); C.e("s_setprio 3")
        L.label("L_attn_back_l"); L.e("s_setprio 1")

    def attention(self):
        a = self.A; vL = self.vL; z = HZ(a)
        a.label("L_attn")
        a.e("s_setprio 3")
        l = V("l")
        em = Emitter(a, {"l": vL}, {"hh": S_T3, "om": S_T4}, self.vt, S_ET)
        hh, om = S("hh"), S("om")
        R = Regs(64, 253)
        QF = R.alloc(8, 4); KF = [R.alloc(8, 4) for _ in range(2)]; SS = [R.alloc(16, 4) for _ in range(3)]
        NM = R.alloc(16, 4); NG = R.alloc(16, 4); OO = R.alloc(16, 4); LL = R.alloc(16, 4)
        VF = [R.alloc(8, 4) for _ in range(2)]; PP = [R.alloc(8, 4) for _ in range(2)]; ONE = R.alloc(4, 4)
        vQ, vK, vV, MX, T0 = [R.alloc() for _ in range(5)]
        a.e(f"s_and_b32 s{S_T3}, s{S_WV}, 1\ns_lshr_b32 s{S_T4}, s{S_WV}, 1")
        a.e(f"s_lshl_b32 s71, s{S_I}, 2\ns_add_u32 s71, s71, s{S_T4}")
        h = l >> 5
        em.vemit(hh*8192 + om*2048 + ((l >> 4) & 1)*1024 + (h*16 + (l & 15))*16 + AT_Q0, vQ)
        em.vemit(hh*49152 + om*2048 + ((l >> 3) & 1)*1024 + (h*16 + (l & 7) + ((l >> 4) & 1)*8)*16, vK)
        for ex in (((l >> 4) & 1)*1024 + (h*16 + (l & 15))*16, ((l >> 3) & 1)*1024 + (h*16 + (l & 7) + ((l >> 4) & 1)*8)*16):
            assert banks.conflicts_b128([ex.ev({"l": x}) for x in range(64)]) == 0
        def rd(dst, addr, off): z.lds_rd(f"ds_read_b128 {vr(dst,4)}, v{addr} offset:{off}", rng(dst, 4), [addr])
        def kread(tt, b): rd(KF[b], vK, tt*2048); rd(KF[b]+4, vK, tt*2048 + 512)
        def vread(tt, b): rd(VF[b], vV, tt*2048); rd(VF[b]+4, vV, tt*2048 + 512)
        em.vemit(hh*49152 + om*2048 + ((l >> 4) & 1)*1024 + (h*16 + (l & 15))*16 + 24576, vV)
        t0_ = self.vt[0]; vPF = R.alloc()
        if self.o["pf_weights"]:
            a.e(f"s_lshl_b32 s{S_T}, s2, 3\ns_add_u32 s{S_T}, s{S_T}, s{S_WV}\ns_mul_i32 s{S_T}, s{S_T}, 28\nv_min_u32 v{vPF}, 27, v{vL}\nv_add_u32 v{vPF}, s{S_T}, v{vPF}\nv_lshlrev_b32 v{vPF}, 7, v{vPF}")
        mreg = [76+2*k for k in range(6)] + [90+2*k for k in range(6)] + [4, 6, 24, 26]
        for r in range(16):
            k0 = 16*((r >> 2) & 1) + 8*(r >> 3) + (r & 3)
            lo = (0xffffffff << k0) & 0xffffffff; hi = (0xffffffff << (k0+4)) & 0xffffffff
            a.e(f"s_mov_b32 s{mreg[r]}, {hex(lo)}\ns_mov_b32 s{mreg[r]+1}, {hex(hi)}")
        for r in range(16): z.emit(f"v_mov_b32 v{NG+r}, 0xf149f2ca", "valu", w=[NG+r])
        z.emit(f"v_mov_b32 v{MX}, 0xf149f2ca", "valu", w=[MX])
        for k in range(4): z.emit(f"v_mov_b32 v{ONE+k}, 0x3f803f80", "valu", w=[ONE+k])
        MF = "v_mfma_f32_32x32x16_bf16"
        def qk(tt, kb, sb, cval, tag):
            b = KF[kb]; s_ = SS[sb]
            z.lneed(list(rng(b, 4)) + list(rng(QF, 4)))
            ctxt = "0" if cval is None else vr(cval, 16); creg = [] if cval is None else list(rng(cval, 16))
            if tt < 8:
                z.other(f"s_cmp_ge_u32 s71, {8-tt}\ns_cbranch_scc0 L_inv_{tag}_{tt}")
            z.emit(f"{MF} {vr(s_,16)}, {vr(b,4)}, {vr(QF,4)}, {ctxt}", "mfma32", r=list(rng(b,4))+list(rng(QF,4)), w=rng(s_,16), c=creg + list(rng(NG,16)) if tt < 8 else creg)
            if tt < 8:
                a.label(f"L_invb_{tag}_{tt}")
                t = self.tail
                t.label(f"L_inv_{tag}_{tt}")
                t.e(f"{MF} {vr(s_,16)}, {vr(b,4)}, {vr(QF,4)}, {vr(NG,16)}\ns_branch L_invb_{tag}_{tt}")
            z.lneed(list(rng(b+4, 4)) + list(rng(QF+4, 4)))
            z.emit(f"{MF} {vr(s_,16)}, {vr(b+4,4)}, {vr(QF+4,4)}, {vr(s_,16)}", "mfma32", r=list(rng(b+4,4))+list(rng(QF+4,4)), w=rng(s_,16), c=rng(s_,16))
        def merge(sa, sb):
            for r in range(16):
                z.emit(f"v_cndmask_b32 v{SS[sa]+r}, v{SS[sa]+r}, v{SS[sb]+r}, s[{mreg[r]}:{mreg[r]+1}]", "valu", r=[SS[sa]+r, SS[sb]+r], w=[SS[sa]+r])
        def vmax(sb):
            for k in range(8): z.emit(f"v_max3_f32 v{MX}, v{MX}, v{SS[sb]+2*k}, v{SS[sb]+2*k+1}", "valu", r=[MX, SS[sb]+2*k, SS[sb]+2*k+1], w=[MX])
        a.e("s_cmp_eq_u32 s0, 1\ns_cbranch_scc1 L_kvstage")
        a.label("L_attn_go")
        a.e("s_barrier")
        self.stamp(a, 4)
        rd(QF, vQ, 0); rd(QF+4, vQ, 512); kread(0, 0); kread(8, 1)
        self.nyoung = 0
        if self.o["pf_weights"] and not self.o.get("pfmid", False):
            for arg in (A_W1, A_W2):
                p = self.ptr(arg)[0]; a.e(f"global_load_dword v254, v{vPF}, s[{p}:{p+1}]"); self.nyoung += 1
        self.stamp(a, 20)
        qk(0, 0, 0, None, "a"); kread(1, 0)
        qk(8, 1, 1, None, "a"); kread(2, 1)
        qk(1, 0, 2, None, "a"); kread(3, 0)
        merge(0, 1); vmax(0)
        sb_of = {1: 2}
        free = [0, 1]
        for tt in range(2, 8):
            sb = free.pop(0); sb_of[tt] = sb
            qk(tt, tt & 1 ^ 1 if False else (tt % 2 == 0 and 1 or 0), sb, None, "a")
            if tt+2 < 8: kread(tt+2, (tt % 2 == 0 and 1 or 0))
            vmax(sb_of[tt-1]); free.append(sb_of[tt-1])
        kread(0, 0)
        vmax(sb_of[7])
        self.stamp(a, 21)
        self.attn_mid(a, z)
        self.stamp(a, 22)
        nyoung = 0
        if self.o["pf_weights"] and self.o.get("pfmid", False):
            for arg in (A_W1, A_W2):
                p = self.ptr(arg)[0]; a.e(f"global_load_dword v254, v{vPF}, s[{p}:{p+1}]"); nyoung += 1
        kread(8, 1); vread(8, 0); vread(0, 1)
        z.emit(f"v_mov_b32 v{T0}, v{MX}", "valu", r=[MX], w=[T0])
        z.emit(f"v_permlane32_swap_b32 v{T0}, v{MX}", "perm", r=[T0, MX], w=[T0, MX])
        z.emit(f"v_max_f32 v{MX}, v{MX}, v{T0}", "valu", r=[MX, T0], w=[MX])
        for r in range(16): z.emit(f"v_sub_f32 v{NM+r}, 0, v{MX}", "valu", r=[MX], w=[NM+r])
        z.other("s_setprio 2")
        def vexp(sb):
            for r in range(16): z.emit(f"v_exp_f32 v{SS[sb]+r}, v{SS[sb]+r}", "trans", r=[SS[sb]+r], w=[SS[sb]+r])
        def cvt(sb, pb):
            for k in range(8): z.emit(f"v_cvt_pk_bf16_f32 v{PP[pb]+k}, v{SS[sb]+2*k}, v{SS[sb]+2*k+1}", "valu", r=[SS[sb]+2*k, SS[sb]+2*k+1], w=[PP[pb]+k])
        first = [True]
        def pv(vb, pb):
            b = VF[vb]; p = PP[pb]
            z.lneed(rng(b, 8))
            f = first[0]; first[0] = False
            z.emit(f"{MF} {vr(OO,16)}, {vr(b,4)}, {vr(p,4)}, {'0' if f else vr(OO,16)}", "mfma32", r=list(rng(b,4))+list(rng(p,4)), w=rng(OO,16), c=[] if f else rng(OO,16))
            z.emit(f"{MF} {vr(LL,16)}, {vr(ONE,4)}, {vr(p,4)}, {'0' if f else vr(LL,16)}", "mfma32", r=list(rng(ONE,4))+list(rng(p,4)), w=rng(LL,16), c=[] if f else rng(LL,16))
            z.emit(f"{MF} {vr(OO,16)}, {vr(b+4,4)}, {vr(p+4,4)}, {vr(OO,16)}", "mfma32", r=list(rng(b+4,4))+list(rng(p+4,4)), w=rng(OO,16), c=rng(OO,16))
            z.emit(f"{MF} {vr(LL,16)}, {vr(ONE,4)}, {vr(p+4,4)}, {vr(LL,16)}", "mfma32", r=list(rng(ONE,4))+list(rng(p+4,4)), w=rng(LL,16), c=rng(LL,16))
        qk(0, 0, 0, NM, "b"); kread(1, 0)
        qk(8, 1, 1, NM, "b"); kread(2, 1)
        qk(1, 0, 2, NM, "b"); kread(3, 0)
        merge(0, 1); vexp(0)
        for r in range(16): z.emit(f"v_cndmask_b32 v{SS[1]+r}, 0, v{SS[0]+r}, s[{mreg[r]}:{mreg[r]+1}]", "valu", r=[SS[0]+r], w=[SS[1]+r])
        for r in range(16): z.emit(f"v_sub_f32 v{SS[0]+r}, v{SS[0]+r}, v{SS[1]+r}", "valu", r=[SS[0]+r, SS[1]+r], w=[SS[0]+r])
        cvt(1, 0); cvt(0, 1)
        pv(0, 0); vread(1, 0)
        pv(1, 1); vread(2, 1)
        sb_of = {1: 2}; free = [0, 1]
        for tt in range(1, 8):
            if tt+1 < 8:
                sb = free.pop(0); sb_of[tt+1] = sb; kb = 1 if (tt+1) % 2 == 0 else 0
                qk(tt+1, kb, sb, NM, "b")
                if tt+3 < 8: kread(tt+3, kb)
            if tt in (3, 6): z.other(f"s_setprio {1 if tt == 3 else 0}")
            cur = sb_of[tt]
            vexp(cur); cvt(cur, tt & 1); free.append(cur)
            vb = 0 if tt % 2 == 1 else 1
            pv(vb, tt & 1)
            if tt+2 < 8: vread(tt+2, vb)
        self.stamp(a, 23)
        srd(a, S_WS, *self.ptr(A_WS), WS_BYTES)
        em.vemit((om*2 + ((l >> 4) & 1))*2048 + hh*1024 + ((l & 15) + h*16)*16, vQ)
        a.e(f"s_lshl_b32 s{S_T}, s{S_I}, 4\ns_add_u32 s{S_T}, s{S_T}, s{S_J}\ns_lshl_b32 s{S_T}, s{S_T}, 14\ns_add_u32 s{S_T}, s{S_T}, {WS_O}")
        z.emit(f"v_rcp_f32 v{T0}, v{LL}", "trans", r=[LL], w=[T0])
        for r in range(16): z.emit(f"v_mul_f32 v{OO+r}, v{T0}, v{OO+r}", "valu", r=[T0, OO+r], w=[OO+r])
        for s in range(2):
            for k in range(4): z.emit(f"v_cvt_pk_bf16_f32 v{PP[s]+k}, v{OO+8*s+2*k}, v{OO+8*s+2*k+1}", "valu", r=[OO+8*s+2*k, OO+8*s+2*k+1], w=[PP[s]+k])
            a.e(f"buffer_store_dwordx4 {vr(PP[s],4)}, v{vQ}, s[{S_WS}:{S_WS+3}], s{S_T} offen offset:{s*512} sc1")
        self.stamp(a, 24)
        a.e("s_waitcnt vmcnt(0)")
        self.stamp(a, 25)
        self.signal_last(a, 1, 8, self.off_ij(F_O), vK, vV, "o")
        a.e("s_cmp_eq_u32 s0, 1\ns_cbranch_scc1 L_attn_back_l\ns_branch L_attn_back_c")
    def attn_mid(self, a, z):
        if self.o.get("kfirst", True):
            z.other(f"s_cmp_eq_u32 s0, 1\ns_cbranch_scc0 L_att_nov\ns_waitcnt vmcnt({self.nyoung})\nL_att_nov:")
            a.lds_drain(); z.other("s_barrier")

    def lsetup(self, g, warg, wbytes, xbase, khalf=False):
        L = self.L; c = g.c
        g.bind(L, self.vL, self.vt, (8, 9))
        srd(L, S_WSRD, *self.ptr(warg), wbytes)
        self.setup_w_only(g)
        g.em.vemit(g.lw*4096 + g.l*16, g.vXsrc[0])
        c.woff(L)
        self.xoff_fn(L, c, xbase, khalf)
        L.e(f"s_lshl_b32 s{S_XL}, s{S_LW}, 12")
        L.e(f"s_mul_i32 s{S_WL}, s{S_LW}, {c.nWld*1024}\ns_add_u32 s{S_WL}, s{S_WL}, {c.XB}")
    def lweights(self, g, init=True):
        L = self.L; c = g.c
        if init:
            for ins in g.rot_init(): L.e(ins)
        L.e(f"s_mov_b32 s{S_WR}, 0")
        for s in range(c.S):
            for ins in g.stage_off(s) + g.dma_w(): L.e(ins)
            L.e(f"s_add_u32 s{S_WR}, s{S_WR}, {c.SB}")
    def cpoll(self, flag, label, skip_own=False):
        C = self.C; t0, t1, t2 = self.vt[0:3]
        C.e(f"s_cmp_lg_u32 s{S_LW}, 0\ns_cbranch_scc1 L_nocpoll_{label}")
        self.group_words(C, t2, flag, S_I)
        if skip_own:
            C.e(f"s_xor_b32 s{S_T2}, s{S_J}, 1\ns_lshl_b32 s{S_T2}, s{S_T2}, 7\ns_add_u32 s{S_T2}, s{S_T2}, s{S_T}\nv_and_b32 v{t0}, 15, v{self.vL}\nv_mov_b32 v{t1}, s{S_T2}\nv_cmp_eq_u32 vcc, s{S_J}, v{t0}\ns_nop 1\nv_cndmask_b32 v{t2}, v{t2}, v{t1}, vcc")
        self.poll(C, S_WS, t2, t0, label)
        C.label(f"L_nocpoll_{label}")
        C.e("s_barrier")
    def lphase(self, g, flag, label, hooks=None, npeel=0, after_poll=None, first_hooks=None, ns=None, flags=0):
        L = self.L; c = g.c; vm = VM(L); S = c.S; ns = ns or c.nsteps
        hooks = hooks or {}
        g.bind(L, self.vL, self.vt, (8, 9))
        srd(L, S_XSRD, *self.ptr(A_WS), WS_BYTES)
        self.lstamp()
        L.e("s_barrier")
        self.lstamp()
        L.e(f"s_mov_b32 s{S_WR}, 0")
        for s in range(S):
            for ins in g.stage_off(s) + g.dma_x(): L.e(ins)
            vm.iss(("st", s), c.nXld)
            L.e(f"s_add_u32 s{S_WR}, s{S_WR}, {c.SB}")
        L.e(f"s_mov_b32 s{S_WR}, 0")
        if after_poll: after_poll(vm)
        if flags: self.lflag_init()
        vm.wait(("st", 0)); L.lds_drain(); L.e("s_barrier"); self.lstamp()
        if first_hooks: first_hooks[0](vm)
        vm.wait(("st", 1)); L.lds_drain(); L.e("s_barrier")
        def issue(t):
            for ins in g.dma_list(t): L.e(ins)
            vm.iss(("st", t), c.nld); L.e(g.adv_slot(S_WR))
        npeel = max(npeel, S-2)
        nb = ns - S
        if self.o.get("lsteps"): npeel = nb
        def end_body(t):
            L.lds_drain()
            if flags and flags - 1 <= t <= ns-3: self.lfull(t + 3)
            if not flags or t < flags or t == ns-2:
                L.lds_drain(); L.e("s_barrier")
            if self.o.get("lsteps"): self.lstamp(label + str(t))
        if flags: npeel = max(npeel, flags + 1)
        for t in range(npeel):
            if flags and t > flags: self.lwait(46, t + 2, f"{label}{t}")
            issue(t+S)
            if t in hooks: hooks[t](vm)
            if ("st", t+2) in vm.q: vm.wait(("st", t+2))
            end_body(t)
        if nb - npeel > 0:
            if getattr(c, "rot", False): L.e(f"s_mov_b32 s{S_N}, {npeel + S - 1}")
            L.e(f"s_mov_b32 s{S_CNT}, {nb - npeel}")
            if flags: L.e(f"s_mov_b32 s{S_TG}, {npeel + 2}")
            L.label(f"L_lloop_{label}")
            early = flags and S >= 4
            if early:
                L.e(f"s_add_u32 s{S_T2}, s{S_TG}, 1\nv_mov_b32 v47, s{S_T2}\ns_waitcnt vmcnt({(S-3)*c.nld})\nds_write_b32 v45, v47")
            if flags: self.lwait(46, f"s{S_TG}", f"{label}_loop")
            for ins in g.dma_list(): L.e(ins)
            L.e(g.adv_slot(S_WR))
            if early:
                L.e(f"s_add_u32 s{S_TG}, s{S_TG}, 1")
            elif flags:
                L.e(f"s_add_u32 s{S_TG}, s{S_TG}, 1\nv_mov_b32 v47, s{S_TG}\ns_waitcnt vmcnt({(S-2)*c.nld})\nds_write_b32 v45, v47")
            else:
                L.e(f"s_waitcnt vmcnt({(S-2)*c.nld})\ns_barrier")
            L.e(f"s_sub_u32 s{S_CNT}, s{S_CNT}, 1\ns_cmp_lg_u32 s{S_CNT}, 0\ns_cbranch_scc1 L_lloop_{label}")
        for t in range(nb, ns-1):
            if t+2 <= ns-1: L.e(f"s_waitcnt vmcnt({min(ns-1-(t+2), S-2)*c.nld})")
            end_body(t)

    def phase_o(self, g):
        C, L, c = self.C, self.L, g.c
        vL = self.vL; t0, t1, t2, t3, t4, t5 = self.vt
        self.stamp(C, 5)
        self.bar()
        self.lweights(g)
        if self.o.get("sentinel", True) and self.o.get("markat", "o") == "o":
            for k in range(4): L.e(f"v_mov_b32 v{180+k}, -1")
            L.e(f"s_lshl_b32 s{S_T}, s{S_I}, 4\ns_add_u32 s{S_T}, s{S_T}, s{S_J}\ns_lshl_b32 s{S_T}, s{S_T}, 15\ns_lshl_b32 s{S_T2}, s{S_LW}, 13\ns_add_u32 s{S_T}, s{S_T}, s{S_T2}\ns_add_u32 s{S_T}, s{S_T}, {WS_XCH}")
            for n in range(8):
                if n == 4: L.e(f"s_add_u32 s{S_T}, s{S_T}, 4096")
                L.e(f"buffer_store_dwordx4 v[180:183], v{self.vL16}, s[{S_WS}:{S_WS+3}], s{S_T} offen offset:{(n & 3)*1024} sc1")
        a = C; g.bind(C, vL, self.vt, (8, 9)); cv = Regs(12, 254); g.alloc_compute(cv)
        em = g.em; l, wm, wn = g.l, g.wm, g.wn
        g.setup_reads()
        xr = cv.alloc(16, 4); va = cv.alloc(); pk = cv.alloc(8, 4); sm = cv.alloc(8, 4); tm = cv.alloc(8, 4); m2 = cv.alloc(8, 4)
        srd(a, S_XSRD, *self.ptr(A_X), M*D*2)
        em.vemit((l & 15)*2048 + (l >> 4)*8, va)
        def resid(a):
            a.e(f"s_lshl_b32 s{S_T}, s{S_I}, 1\ns_add_u32 s{S_T}, s{S_T}, s{S_WM}\ns_lshl_b32 s{S_T}, s{S_T}, 17\ns_lshl_b32 s{S_T2}, s{S_J}, 7\ns_add_u32 s{S_T}, s{S_T}, s{S_T2}\ns_lshl_b32 s{S_T2}, s{S_WN}, 6\ns_add_u32 s{S_T}, s{S_T}, s{S_T2}")
            for x in range(4):
                for f in range(2):
                    a.e(f"buffer_load_dwordx2 {vr(xr+4*x+2*f,2)}, v{va}, s[{S_XSRD}:{S_XSRD+3}], s{S_T} offen offset:{f*32}")
                if x < 3: a.e(f"s_add_u32 s{S_T}, s{S_T}, {16*2048}")
        a.e(f"s_cmp_eq_u32 s{S_LW}, 0\ns_cbranch_scc1 L_ores0"); resid(a); a.label("L_ores0")
        def hookO(a):
            a.e(f"s_cmp_lg_u32 s{S_LW}, 0\ns_cbranch_scc1 L_ores1"); resid(a); a.label("L_ores1")
        self.cpoll(F_O, "o", skip_own=True)
        self.lphase(g, F_O, "o")
        g1 = self.g[2]
        self.lsetup(g1, A_W1, D*DFF*2, WS_H)
        g.bind(C, vL, self.vt, (8, 9)); g.a = C
        self.cloop(g, stamps=(6, 7), hooks={c.nsteps - 3: hookO})
        a.e("s_waitcnt vmcnt(0)")
        for x in range(4):
            for f in range(2):
                acc = g.acc[x][f]
                for d in range(2):
                    src = xr + 4*x + 2*f + d
                    a.e(f"v_lshlrev_b32 v{t0}, 16, v{src}\nv_and_b32 v{t1}, 0xffff0000, v{src}")
                    a.e(f"v_add_f32 v{acc+2*d}, v{acc+2*d}, v{t0}\nv_add_f32 v{acc+2*d+1}, v{acc+2*d+1}, v{t1}")
        a.e(f"s_lshl_b32 s{S_T}, s{S_I}, 4\ns_add_u32 s{S_T}, s{S_T}, s{S_J}\ns_lshl_b32 s{S_T}, s{S_T}, 14\ns_lshl_b32 s{S_T2}, s{S_WM}, 13\ns_add_u32 s{S_T}, s{S_T}, s{S_T2}\ns_lshl_b32 s{S_T2}, s{S_WN}, 10\ns_add_u32 s{S_T}, s{S_T}, s{S_T2}\ns_add_u32 s{S_T}, s{S_T}, {WS_H}")
        for x in range(4):
            p = pk + 4*(x & 1); A, B = g.acc[x][0], g.acc[x][1]
            a.e(f"v_cvt_pk_bf16_f32 v{p}, v{A}, v{A+1}\nv_cvt_pk_bf16_f32 v{p+1}, v{A+2}, v{A+3}\nv_cvt_pk_bf16_f32 v{p+2}, v{B}, v{B+1}\nv_cvt_pk_bf16_f32 v{p+3}, v{B+2}, v{B+3}")
            if x == 2: a.e(f"s_add_u32 s{S_T}, s{S_T}, 4096")
            a.e(f"buffer_store_dwordx4 {vr(p,4)}, v{self.vL16}, s[{S_WS}:{S_WS+3}], s{S_T} offen offset:{(x & 1)*2048} sc1")
        self.bar()
        self.lweights(self.g[2])
        a.e("s_waitcnt vmcnt(0)")
        self.signal_last(a, 2, 4, self.off_ij(F_H), t0, t1, "h")
        self.stamp(C, 8)
        def xlane(regs):
            for sw in ("v_permlane16_swap_b32", "v_permlane32_swap_b32"):
                for k, r in enumerate(regs): a.e(f"v_mov_b32 v{tm+k}, v{r}")
                a.e("s_nop 1")
                for k, r in enumerate(regs): a.e(f"{sw} v{tm+k}, v{r}")
                a.e("s_nop 1")
                for k, r in enumerate(regs): a.e(f"v_add_f32 v{r}, v{r}, v{tm+k}")
        for x in range(4):
            A, B = g.acc[x][0], g.acc[x][1]
            a.e(f"v_add_f32 v{sm+2*x}, v{A}, v{A+1}")
            for r in [A+2, A+3, B, B+1, B+2, B+3]: a.e(f"v_add_f32 v{sm+2*x}, v{sm+2*x}, v{r}")
        xlane([sm+2*x for x in range(4)])
        for x in range(4):
            A, B = g.acc[x][0], g.acc[x][1]
            a.e(f"v_mul_f32 v{t0}, {fhex(1/32)}, v{sm+2*x}")
            a.e(f"v_sub_f32 v{t1}, v{A}, v{t0}\nv_mul_f32 v{sm+2*x+1}, v{t1}, v{t1}")
            for r in [A+1, A+2, A+3, B, B+1, B+2, B+3]: a.e(f"v_sub_f32 v{t1}, v{r}, v{t0}\nv_fmac_f32 v{sm+2*x+1}, v{t1}, v{t1}")
        xlane([sm+2*x+1 for x in range(4)])
        a.e(f"s_lshl_b32 s{S_T}, s{S_J}, 1\ns_add_u32 s{S_T}, s{S_T}, s{S_WN}\ns_lshl_b32 s{S_T}, s{S_T}, 11\ns_lshl_b32 s{S_T2}, s{S_I}, 7\ns_add_u32 s{S_T}, s{S_T}, s{S_T2}\ns_lshl_b32 s{S_T2}, s{S_WM}, 6\ns_add_u32 s{S_T}, s{S_T}, s{S_T2}\ns_lshl_b32 s{S_T}, s{S_T}, 3\ns_add_u32 s{S_T}, s{S_T}, {WS_ST2}")
        a.e(f"v_lshlrev_b32 v{t0}, 3, v{vL}\nv_cmp_gt_u32 vcc, 16, v{vL}\ns_and_saveexec_b64 s[{S_EX}:{S_EX+1}], vcc")
        for x in range(4):
            a.e(f"buffer_store_dwordx2 {vr(sm+2*x,2)}, v{t0}, s[{S_WS}:{S_WS+3}], s{S_T} offen offset:{x*128} sc1")
        a.e(f"s_mov_b64 exec, s[{S_EX}:{S_EX+1}]\ns_waitcnt vmcnt(0)")
        self.signal_last(a, 4, 4, self.off_ij(F_S2), t0, t1, "s2")

    def phase_f1(self, g):
        C, L, c = self.C, self.L, g.c
        vL = self.vL; t0, t1, t2, t3, t4, t5 = self.vt
        FL1 = 1 if self.o.get("flags1", False) else 0
        ps = 64; cp = 96; mu, m2 = 112, 113
        def s2a(vm):
            self.group_words(L, 56, F_S2, S_I)
            L.e(f"buffer_load_dword v57, v56, s[{S_WS}:{S_WS+3}], 0 offen sc1"); vm.iss("ps2")
        def s2b(vm):
            vm.wait("ps2")
            self.poll_test(L, 57)
            L.e("s_cbranch_scc1 L_s2ready")
            self.poll(L, S_WS, 56, 57, "s2")
            L.label("L_s2ready")
            L.e(f"v_and_b32 v{t0}, 31, v{vL}\nv_lshrrev_b32 v{t1}, 5, v{vL}\nv_lshlrev_b32 v{t1}, 15, v{t1}\nv_add_u32 v{t0}, v{t0}, v{t1}\nv_lshlrev_b32 v54, 3, v{t0}")
            L.e(f"s_lshl_b32 s{S_T2}, s{S_I}, 7\ns_lshl_b32 s{S_T3}, s{S_LW}, 5\ns_add_u32 s{S_T2}, s{S_T2}, s{S_T3}\ns_lshl_b32 s{S_T2}, s{S_T2}, 3\ns_add_u32 s{S_T2}, s{S_T2}, {WS_ST2}")
            for p in range(16):
                L.e(f"buffer_load_dwordx2 {vr(ps+2*p,2)}, v54, s[{S_WS}:{S_WS+3}], s{S_T2} offen sc1\ns_add_u32 s{S_T2}, s{S_T2}, {2048*8}")
            vm.iss("ps", 16)
        def h0(vm):
            vm.wait("ps")
            L.e(f"v_add_f32 v{mu}, v{ps}, v{ps+2}")
            for p in range(2, 16): L.e(f"v_add_f32 v{mu}, v{mu}, v{ps+2*p}")
            half_add(L, mu, t0)
            L.e(f"v_mul_f32 v{mu}, {fhex(1/1024)}, v{mu}\nv_mov_b32 v{m2}, 0")
        def h1(vm):
            for p in range(16):
                L.e(f"v_fma_f32 v{t1}, v{ps+2*p}, v115, -v{mu}\nv_mul_f32 v{t1}, v{t1}, v{t1}\nv_fma_f32 v{t1}, v{t1}, v116, v{ps+2*p+1}\nv_add_f32 v{m2}, v{m2}, v{t1}")
            half_add(L, m2, t0)
            L.e(f"v_mul_f32 v{m2}, {fhex(1/1024)}, v{m2}\nv_add_f32 v{m2}, {fhex(EPS)}, v{m2}\nv_rsq_f32 v{m2}, v{m2}")
            L.e(f"v_and_b32 v{t0}, 31, v{vL}\ns_lshl_b32 s{S_T}, s{S_LW}, 5\nv_add_u32 v{t0}, s{S_T}, v{t0}\nv_lshlrev_b32 v{t0}, 2, v{t0}\nv_add_u32 v{t0}, {SD_MEAN2}, v{t0}")
            L.e(f"ds_write_b32 v{t0}, v{mu}\nds_write_b32 v{t0}, v{m2} offset:512")
        def h0b(vm):
            h0(vm); L.e(f"v_mov_b32 v115, {fhex(1/32)}\nv_mov_b32 v116, {fhex(32.0)}")
        ones, wf, sacc, r1, vL4 = 120, [124 + 4*k for k in range(8)], [156 + 4*k for k in range(4)], [172, 173, 174, 175], 176
        box = {}
        def pre_cs1():
            L.e(f"v_lshlrev_b32 v{vL4}, 2, v{vL}")
            box["cls"] = self.csum_setup(g, 4, r1)
        cs1_code = f"s_lshl_b32 s{S_T}, s{S_I}, 4\ns_add_u32 s{S_T}, s{S_T}, s{S_J}\ns_mul_i32 s{S_T2}, s{S_T}, 896\ns_lshl_b32 s{S_T}, s{S_LW}, 8\ns_add_u32 s{S_T2}, s{S_T2}, s{S_T}\ns_add_u32 s{S_T2}, s{S_T2}, {WS_CS1}"
        fh = (lambda vm: self.csum_reads(4, box["cls"], r1, wf), lambda vm: self.csum_finish(vm, 4, 14, ones, wf, sacc, vL4, cs1_code))
        def hsig(vm):
            if FL1:
                L.e(f"v_mov_b32 v58, {SD_FULL}"); self.lwait(58, 5, "cs1sig")
            self.signal(L, self.off_ji(F_CS1), 52, 53, only_lw0=True); vm.iss("sig")
        def h2a(vm):
            self.group_words(L, 52, F_CS1, S_J)
            L.e(f"buffer_load_dword v53, v52, s[{S_WS}:{S_WS+3}], 0 offen sc1"); vm.iss("pc")
        def h2(vm):
            vm.wait("pc")
            self.poll_test(L, 53, False)
            L.e("s_cbranch_scc1 L_cs1ready")
            self.poll(L, S_WS, 52, 53, "cs1")
            L.label("L_cs1ready")
            L.e(f"s_mul_i32 s{S_T2}, s{S_J}, 896\ns_mul_i32 s{S_T}, s{S_LW}, 224\ns_add_u32 s{S_T2}, s{S_T2}, s{S_T}\ns_add_u32 s{S_T2}, s{S_T2}, {WS_CS1}")
            L.e(f"v_lshlrev_b32 v55, 2, v{vL}\nv_cmp_gt_u32 vcc, 56, v{vL}\nv_mov_b32 v{t1}, 0x7ffffff0\ns_nop 0\nv_cndmask_b32 v55, v{t1}, v55, vcc")
            for p in range(16):
                L.e(f"buffer_load_dword v{cp+p}, v55, s[{S_WS}:{S_WS+3}], s{S_T2} offen sc1\ns_add_u32 s{S_T2}, s{S_T2}, {16*896}")
            vm.iss("cp", 16)
        def h4(vm):
            vm.wait("cp")
            for p in range(1, 16): L.e(f"v_add_f32 v{cp}, v{cp}, v{cp+p}")
            L.e(f"s_mul_i32 s{S_T}, s{S_LW}, 224\ns_add_u32 s{S_T}, s{S_T}, {SD_CS1}\nv_lshlrev_b32 v{t0}, 2, v{vL}\nv_add_u32 v{t0}, s{S_T}, v{t0}")
            L.e(f"v_cmp_gt_u32 vcc, 56, v{vL}\ns_and_saveexec_b64 s[{S_EX}:{S_EX+1}], vcc\nds_write_b32 v{t0}, v{cp}\ns_mov_b64 exec, s[{S_EX}:{S_EX+1}]")
        def mark(n):
            def fn(vm):
                if n == 0:
                    for k in range(4): L.e(f"v_mov_b32 v{180+k}, -1")
                    L.e(f"s_lshl_b32 s{S_T}, s{S_I}, 4\ns_add_u32 s{S_T}, s{S_T}, s{S_J}\ns_lshl_b32 s{S_T}, s{S_T}, 15\ns_lshl_b32 s{S_T2}, s{S_LW}, 13\ns_add_u32 s{S_T}, s{S_T}, s{S_T2}\ns_add_u32 s71, s{S_T}, {WS_XCH}")
                L.e(f"s_add_u32 s{S_T}, s71, {n*1024}\nbuffer_store_dwordx4 v[180:183], v{self.vL16}, s[{S_WS}:{S_WS+3}], s{S_T} offen sc1"); vm.iss("mark")
            return fn
        F1HOOKS = {0: fh[1], 2: s2a, 3: lambda vm: (hsig(vm), s2b(vm)), 5: h0b, 6: h1, 8: h2a, 9: h2, 11: h4}; F1PEEL = 12
        if self.o.get("sentinel", True) and self.o.get("markat", "o") == "f1":
            for n in range(8):
                prev = F1HOOKS.get(n); mk_ = mark(n)
                F1HOOKS[n] = (lambda vm, p=prev, m=mk_: (m(vm), p(vm) if p else None))
        a = C; g.bind(C, vL, self.vt, (8, 9)); cv = Regs(12, 254); g.alloc_compute(cv)
        g.setup_reads()
        self.cpoll(F_H, "f1")
        self.lphase(g, F_H, "f1", hooks=F1HOOKS, npeel=F1PEEL, after_poll=lambda vm: pre_cs1(), first_hooks=fh, flags=FL1)
        g2 = self.g[3]
        self.lsetup(g2, A_W2, DFF*D*2, WS_H1, khalf=True)
        own2 = self.o.get("own2", True)
        if own2:
            L.e(f"s_mul_i32 s{S_A}, s{S_J}, 7\ns_add_u32 s{S_A}, s{S_A}, 1\ns_lshr_b32 s{S_A}, s{S_A}, 1\ns_lshr_b32 s{S_T}, s{S_J}, 3\ns_mul_i32 s{S_T}, s{S_T}, 28\ns_sub_u32 s{S_A}, s{S_A}, s{S_T}")
            for ins in g2.rot_init(): L.e(ins)
            vmA = VM(L)
            L.e(f"s_mul_i32 s{S_WOFF}, s{S_A}, {64*2048}\ns_add_u32 s{S_WOFF}, s{S_WOFF}, s{S_WB0}\ns_mov_b32 s{S_WR}, 0")
            for n in range(3):
                for ins in g2.dma_w(): L.e(ins)
                vmA.iss(("w", n), g2.c.nWld)
                L.e(f"s_add_u32 s{S_WOFF}, s{S_WOFF}, {64*2048}\ns_add_u32 s{S_WR}, s{S_WR}, {g2.c.SB}")
            vmA.wait(("w", 0)); L.e("s_barrier")
            vmA.wait(("w", 1)); L.e("s_barrier")
            vmA.wait(("w", 2)); L.e("s_barrier")
            L.e("s_barrier")
        g.bind(C, vL, self.vt, (8, 9)); g.a = C
        em = g.em; l, wm, wn = g.l, g.wm, g.wn
        f1hooks = None
        self.cloop(g, stamps=(9, 10), hooks=f1hooks, flags=FL1, cv=cv)
        fr = g.frag0
        mu = fr; cs = fr+4; pk = fr+32; va = fr+44; vb = va+1; vc = va+2; vo = va+3
        em.vemit((wm*64 + (l & 15))*4 + SD_MEAN2, va)
        for x in range(4): a.lds_rd(f"ds_read_b32 v{mu+x}, v{va} offset:{x*64}", [mu+x])
        em.vemit(wn*512 + (l >> 4)*16 + SD_CS1, vb)
        em.vemit(wn*64 + (l >> 4)*16 + SD_CS1 + 384, vc)
        for f in range(6): a.lds_rd(f"ds_read_b128 {vr(cs+4*f,4)}, v{vb} offset:{f*64}", rng(cs+4*f, 4))
        a.lds_rd(f"ds_read_b128 {vr(cs+24,4)}, v{vc}", rng(cs+24, 4))
        a.e(f"s_mul_i32 s71, s{S_I}, {56*16384}\ns_lshl_b32 s{S_T}, s{S_WM}, 13\ns_add_u32 s71, s71, s{S_T}\ns_add_u32 s71, s71, {WS_H1}\ns_mul_i32 s{S_T4}, s{S_J}, 7")
        def fold(x, f):
            acc = g.acc[x][f]; c0 = cs + 4*f
            for p in range(2):
                a.e(f"v_pk_fma_f32 {vr(acc+2*p,2)}, {vr(mu+(x & ~1),2)}, {vr(c0+2*p,2)}, {vr(acc+2*p,2)} op_sel:[{x & 1},0,0] op_sel_hi:[{x & 1},1,1] neg_lo:[1,0,0] neg_hi:[1,0,0]")
        def kappa(phi_code):
            a.e(phi_code)
            a.e(f"s_lshr_b32 s{S_T2}, s{S_T}, 1\ns_lshl_b32 s{S_T2}, s{S_T2}, 14\ns_and_b32 s{S_T}, s{S_T}, 1\ns_lshl_b32 s{S_T}, s{S_T}, 10\ns_add_u32 s{S_T}, s{S_T}, s{S_T2}\ns_add_u32 s{S_T}, s{S_T}, s71")
        vlw = fr+48
        def lds_own(phi_code):
            if not own2: return
            a.e(phi_code)
            a.e(f"s_and_b32 s{S_T3}, s{S_J}, 1\ns_sub_i32 s{S_T2}, s{S_T2}, s{S_T3}\ns_and_b32 s{S_T3}, s{S_T2}, 1\ns_lshl_b32 s{S_T3}, s{S_T3}, 10\ns_ashr_i32 s{S_T2}, s{S_T2}, 1\ns_and_b32 s{S_T2}, s{S_T2}, 3\ns_lshl_b32 s{S_T2}, s{S_T2}, 15")
            a.e(f"s_add_u32 s{S_T2}, s{S_T2}, s{S_T3}\ns_lshl_b32 s{S_T3}, s{S_WM}, 13\ns_add_u32 s{S_T2}, s{S_T2}, s{S_T3}\nv_add_u32 v{vlw}, s{S_T2}, v{self.vL16}")
        n = 0
        for pr in range(3):
            a.need(list(rng(mu, 4)) + list(rng(cs+8*pr, 8)))
            lds_own(f"s_lshl_b32 s{S_T2}, s{S_WN}, 2\ns_add_u32 s{S_T2}, s{S_T2}, {pr}")
            kappa(f"s_lshl_b32 s{S_T}, s{S_WN}, 2\ns_add_u32 s{S_T}, s{S_T}, s{S_T4}\ns_add_u32 s{S_T}, s{S_T}, {pr}")
            for x in range(4):
                fold(x, 2*pr); fold(x, 2*pr+1)
                A, B = g.acc[x][2*pr], g.acc[x][2*pr+1]; p = pk + 4*(n & 1); n += 1
                a.e(f"v_cvt_pk_bf16_f32 v{p}, v{A}, v{A+1}\nv_cvt_pk_bf16_f32 v{p+1}, v{A+2}, v{A+3}\nv_cvt_pk_bf16_f32 v{p+2}, v{B}, v{B+1}\nv_cvt_pk_bf16_f32 v{p+3}, v{B+2}, v{B+3}")
                for k in range(4): a.e(f"v_pk_max_i16 v{p+k}, v{p+k}, 0")
                if x == 2: a.e(f"s_add_u32 s{S_T}, s{S_T}, 4096")
                a.e(f"buffer_store_dwordx4 {vr(p,4)}, v{self.vL16}, s[{S_WS}:{S_WS+3}], s{S_T} offen offset:{(x & 1)*2048} sc1")
                if own2: a.lds_other(f"ds_write_b128 v{vlw}, {vr(p,4)} offset:{x*2048}")
        a.need(rng(cs+24, 4))
        kappa(f"s_add_u32 s{S_T}, s{S_T4}, 3")
        em.vemit(l*16 + wn*8, vo)
        lds_own(f"s_mov_b32 s{S_T2}, 3")
        if own2: a.e(f"s_lshl_b32 s{S_T3}, s{S_WN}, 3\nv_add_u32 v{vlw}, s{S_T3}, v{vlw}")
        for x in range(4):
            fold(x, 6)
            A = g.acc[x][6]; p = pk + 4*(n & 1); n += 1
            a.e(f"v_cvt_pk_bf16_f32 v{p}, v{A}, v{A+1}\nv_cvt_pk_bf16_f32 v{p+1}, v{A+2}, v{A+3}\nv_pk_max_i16 v{p}, v{p}, 0\nv_pk_max_i16 v{p+1}, v{p+1}, 0")
            if x == 2: a.e(f"s_add_u32 s{S_T}, s{S_T}, 4096")
            a.e(f"buffer_store_dwordx2 {vr(p,2)}, v{vo}, s[{S_WS}:{S_WS+3}], s{S_T} offen offset:{(x & 1)*2048} sc1")
            if own2: a.lds_other(f"ds_write_b64 v{vlw}, {vr(p,2)} offset:{x*2048}")
        if not own2:
            self.bar()
            self.lweights(self.g[3])
            a.e("s_waitcnt vmcnt(0)")
            self.signal_last(a, 3, 4, self.off_ij(F_H1), t0, t1, "h1")
            self.stamp(C, 11)

    def phase_f2(self, g):
        C, L, c = self.C, self.L, g.c
        vL = self.vL; t0, t1, t2, t3, t4, t5 = self.vt
        own2 = self.o.get("own2", True)
        a = C; g.bind(C, vL, self.vt, (8, 9)); cv = Regs(12, 254)
        a.e(f"s_lshr_b32 s3, s{S_J}, 3")
        g.alloc_compute(cv)
        em = g.em; l, wm, wn = g.l, g.wm, g.wn
        hr = cv.alloc(16, 4); pt = cv.alloc(32, 4); rs = cv.alloc(4, 4); pk = cv.alloc(8, 4); va = cv.alloc(); vo = cv.alloc()
        g.setup_reads()
        nsB = c.nsteps
        if own2:
            g.a = C
            def pub():
                a.e("s_setprio 3\ns_waitcnt vmcnt(0)")
                self.signal_last(a, 3, 4, self.off_ij(F_H1), t0, t1, "h1")
                self.stamp(C, 11)
                a.e("s_setprio 0")
            if self.o.get("pubmid", True):
                self.cloop(g, stamps=(None, None), ns=3, first=True, sfx="a", peel_first=pub)
            else:
                self.cloop(g, stamps=(None, None), ns=3, first=True, sfx="a")
                pub()
            nsB = c.nsteps - 3
            self.lweights(g, init=False)
        self.cpoll(F_H1, "f2")
        def hookF2(a):
            a.e(f"s_and_b32 s{S_T}, s{S_J}, 7\ns_lshl_b32 s{S_T}, s{S_T}, 1\ns_add_u32 s{S_T}, s{S_T}, s{S_WN}\ns_lshl_b32 s{S_T2}, s{S_I}, 4\ns_add_u32 s{S_T}, s{S_T}, s{S_T2}\ns_lshl_b32 s{S_T}, s{S_T}, 14")
            a.e(f"s_lshl_b32 s{S_T2}, s{S_WM}, 13\ns_add_u32 s{S_T}, s{S_T}, s{S_T2}\ns_lshl_b32 s{S_T2}, s3, 10\ns_add_u32 s{S_T}, s{S_T}, s{S_T2}\ns_add_u32 s{S_T}, s{S_T}, {WS_H}")
            for x in range(4):
                if x == 2: a.e(f"s_add_u32 s{S_T}, s{S_T}, 4096")
                a.e(f"buffer_load_dwordx4 {vr(hr+4*x,4)}, v{self.vL16}, s[{S_WS}:{S_WS+3}], s{S_T} offen offset:{(x & 1)*2048} sc1")
        FL2 = 1 if self.o.get("flags2", False) else 0
        self.lphase(g, F_H1, "f2", ns=nsB, flags=FL2)
        g.bind(C, vL, self.vt, (8, 9)); g.a = C; em = g.em
        self.cloop(g, stamps=(12, 13), hooks={nsB - 5: hookF2}, ns=nsB, first=not own2, flags=FL2, cv=cv)
        a.e(f"s_lshl_b32 s{S_T}, s{S_I}, 4\ns_add_u32 s{S_T}, s{S_T}, s{S_J}\ns_lshl_b32 s{S_T}, s{S_T}, 15\ns_lshl_b32 s{S_T2}, s{S_LW}, 13\ns_add_u32 s{S_T}, s{S_T}, s{S_T2}\ns_add_u32 s{S_T}, s{S_T}, {WS_XCH}")
        for x in range(4):
            if x == 2: a.e(f"s_add_u32 s{S_T}, s{S_T}, 4096")
            for f in range(2):
                a.e(f"buffer_store_dwordx4 {vr(g.acc[x][2+f],4)}, v{self.vL16}, s[{S_WS}:{S_WS+3}], s{S_T} offen offset:{((x & 1)*2+f)*1024} sc1")
        em.vemit((wm*64 + (l & 15))*4 + SD_RSTD2, va)
        for x in range(4): a.lds_rd(f"ds_read_b32 v{rs+x}, v{va} offset:{x*64}", [rs+x])
        srd(a, S_OUT, *self.ptr(A_OUT), M*D*2)
        em.vemit((l & 15)*2048 + ((l >> 4) & 1)*32 + (l >> 5)*16, vo)
        if not self.o.get("sentinel", True):
            a.e("s_waitcnt vmcnt(0)")
            self.signal(a, self.off_ijw(F_P, S_LW), t0, t1)
            a.e(f"s_xor_b32 s{S_T2}, s{S_J}, 8\ns_lshl_b32 s{S_T2}, s{S_T2}, 2\ns_lshl_b32 s{S_T}, s{S_I}, 6\ns_add_u32 s{S_T}, s{S_T}, s{S_T2}\ns_add_u32 s{S_T}, s{S_T}, s{S_LW}\ns_lshl_b32 s{S_T}, s{S_T}, 2\ns_add_u32 s{S_T}, s{S_T}, {F_P}\nv_mov_b32 v{t2}, s{S_T}")
            self.poll(a, S_WS, t2, t3, "p")
        a.e(f"s_xor_b32 s{S_T}, s{S_J}, 8\ns_lshl_b32 s{S_T2}, s{S_I}, 4\ns_add_u32 s{S_T}, s{S_T}, s{S_T2}\ns_lshl_b32 s{S_T}, s{S_T}, 15\ns_lshl_b32 s{S_T2}, s{S_LW}, 13\ns_add_u32 s{S_T}, s{S_T}, s{S_T2}\ns_add_u32 s{S_T3}, s{S_T}, {WS_XCH}\ns_add_u32 s{S_T4}, s{S_T3}, 4096")
        if self.o.get("sentinel", True):
            a.e(f"s_mov_b32 s{S_CNT}, {POLL_MAX}")
            a.label("L_xch")
        for x in range(4):
            for f in range(2):
                a.e(f"buffer_load_dwordx4 {vr(pt+8*x+4*f,4)}, v{self.vL16}, s[{S_WS}:{S_WS+3}], s{S_T3 if x < 2 else S_T4} offen offset:{((x & 1)*2+f)*1024} sc1")
        if self.o.get("sentinel", True):
            a.e("s_waitcnt vmcnt(0)")
            a.e(f"v_max3_u32 v{t0}, v{pt}, v{pt+1}, v{pt+2}")
            for k in range(3, 31, 2): a.e(f"v_max3_u32 v{t0}, v{t0}, v{pt+k}, v{pt+k+1}")
            a.e(f"v_max_u32 v{t0}, v{t0}, v{pt+31}\nv_cmp_ne_u32 vcc, -1, v{t0}\ns_nop 4\ns_cmp_eq_u64 vcc, exec\ns_cbranch_scc1 L_xch_done")
            a.e(f"s_sub_u32 s{S_CNT}, s{S_CNT}, 1\ns_cmp_lg_u32 s{S_CNT}, 0\ns_cbranch_scc1 L_xch")
            a.label("L_xch_done")
        a.e(f"s_lshl_b32 s{S_T}, s{S_I}, 1\ns_add_u32 s{S_T}, s{S_T}, s{S_WM}\ns_lshl_b32 s{S_T}, s{S_T}, 17\ns_and_b32 s{S_T2}, s{S_J}, 7\ns_lshl_b32 s{S_T2}, s{S_T2}, 8\ns_add_u32 s{S_T}, s{S_T}, s{S_T2}")
        a.e(f"s_lshl_b32 s{S_T2}, s{S_WN}, 7\ns_add_u32 s{S_T}, s{S_T}, s{S_T2}\ns_lshl_b32 s{S_T2}, s3, 6\ns_add_u32 s{S_T}, s{S_T}, s{S_T2}")
        a.need(rng(rs, 4))
        for x in range(4):
            if not self.o.get("sentinel", True): a.e(f"s_waitcnt vmcnt({(3-x)*2 + x})")
            p = pk + 4*(x & 1)
            for f in range(2):
                acc = g.acc[x][f]; q_ = pt + 8*x + 4*f
                for pp_ in range(2):
                    a.e(f"v_pk_add_f32 {vr(acc+2*pp_,2)}, {vr(acc+2*pp_,2)}, {vr(q_+2*pp_,2)}")
                for d in range(2):
                    src = hr + 4*x + 2*f + d
                    a.e(f"v_lshlrev_b32 v{t0}, 16, v{src}\nv_and_b32 v{t1}, 0xffff0000, v{src}")
                    a.e(f"v_fma_f32 v{t0}, v{acc+2*d}, v{rs+x}, v{t0}\nv_fma_f32 v{t1}, v{acc+2*d+1}, v{rs+x}, v{t1}")
                    a.e(f"v_cvt_pk_bf16_f32 v{p+2*f+d}, v{t0}, v{t1}")
            a.e("s_nop 1")
            a.e(f"v_permlane16_swap_b32 v{p}, v{p+2}\nv_permlane16_swap_b32 v{p+1}, v{p+3}")
            a.e(f"buffer_store_dwordx4 {vr(p,4)}, v{vo}, s[{S_OUT}:{S_OUT+3}], s{S_T} offen sc1")
            if x < 3: a.e(f"s_add_u32 s{S_T}, s{S_T}, {16*2048}")
        self.stamp(C, 14)

if __name__ == "__main__":
    import sys
    diag = "--diag" in sys.argv
    args = [x for x in sys.argv[1:] if not x.startswith("--")]
    out = args[0] if args else "mk.s"
    mk = MK(dict(diag=diag))
    body = mk.build()
    hdr = f"""; Single persistent launch: 256 workgroups (one per CU) x 8 waves (4 MFMA waves + 4 loader/helper waves).
; @launch grid=(256,1,1) block=(512,1,1) lds={LDS_TOTAL}
.amdgcn_target "amdgcn-amd-amdhsa--gfx950"
.text
"""
    open(out, "w").write(hdr + body)
    print("wrote", out, len((hdr+body).splitlines()), "lines")
```

```python
from gemm2 import *
from hz import HZ
import common

NAME = "sequential_preLN__sliding_block__dense_activation_relu__prompt_kernel"
L_SPARE = 122880
L_SIDE = 159744
SD_MEAN1, SD_RSTD1, SD_CSQ = L_SIDE, L_SIDE+512, L_SIDE+1024
SD_MEAN2, SD_RSTD2, SD_CS1 = L_SIDE+2048, L_SIDE+2560, L_SIDE+3072
SD_CNT = L_SIDE + 3968
SD_TOK = SD_CNT + 32
SD_FULL, SD_FREE = L_SIDE + 4016, L_SIDE + 4032
S_TG = 77
LDS_TOTAL = 163840
AT_K = lambda hh: hh*49152
AT_V = lambda hh: hh*49152 + 24576
AT_Q0 = 98304
WS_KV = 4*MB
WS_ST1 = 36*MB; WS_CSQ = 36*MB + 64*1024; WS_CS1 = 36*MB + 512*1024; WS_ST2 = 37*MB
WS_XCH = 44*MB
WS_FLAG = 52*MB
FSTR = 32768
F_H, F_H1, F_O, F_S2, F_Q = [WS_FLAG + k*FSTR for k in range(5)]
F_KV, F_CS1 = WS_FLAG + 5*FSTR, WS_FLAG + 6*FSTR
F_P = WS_FLAG + 7*FSTR
OOB = 0x7ffffff0
WS_BYTES = 56*MB
S_WS, S_DBG, S_OUT = S_E0, S_E1, S_E2
POLL_MAX = 400000
QSCALE = (DH ** -0.5) * 1.4426950408889634

class VM:
    def __init__(s, a): s.a = a; s.q = []
    def iss(s, tag, n=1): s.q += [tag]*n
    def count_after(s, tag):
        idx = max(i for i, t in enumerate(s.q) if t == tag)
        return len(s.q) - 1 - idx
    def wait(s, tag, extra=""):
        if tag not in s.q: return
        n = min(63, s.count_after(tag))
        s.a.e(f"s_waitcnt vmcnt({n}) {extra}".strip())
        s.q = s.q[len(s.q)-n:] if n else []
    def drain(s): s.a.e("s_waitcnt vmcnt(0)"); s.q = []

class MK:
    def __init__(self, opts=None):
        self.o = dict(diag=False, pf_first=False, pf_weights=True, stop_after=None, tlb=False, codepf=True)
        self.o.update(opts or {})
        self.C = Asm(); self.L = Asm(); self.A = Asm(); self.tail = Asm()
        self.nbar = 0; self.nl = 0; self.lnames = []
    def bar(self):
        self.C.e("s_barrier"); self.L.e("s_barrier")
    def stamp(self, a, k):
        if self.o["diag"]:
            a.e(f"s_memrealtime s[88:89]\ns_waitcnt lgkmcnt(0)\nv_writelane_b32 v255, s88, {k}")
            a.lq = []
    def ptr(self, o): return (S_PTR+16, S_PTR+17) if o == A_WS else (S_PTR + o//4, S_PTR + o//4 + 1)
    def poll_test(self, a, vtmp, x2=False, token=True):
        if token: a.e(f"v_cmp_eq_u32 vcc, s1, v{vtmp}\ns_nop 4\ns_cmp_eq_u64 vcc, exec")
        else: a.e(f"v_cmp_ne_u32 vcc, 0, v{vtmp}\ns_nop 4\ns_cmp_eq_u64 vcc, exec")
    def poll(self, a, srd_, vaddr, vtmp, label, byte=False, x2=False, token=True):
        a.e(f"s_mov_b32 s{S_CNT}, {POLL_MAX}")
        a.label(f"L_poll_{label}")
        ld = f"buffer_load_dwordx2 {vr(vtmp,2)}" if x2 else f"buffer_load_{'ubyte' if byte else 'dword'} v{vtmp}"
        a.e(f"{ld}, v{vaddr}, s[{srd_}:{srd_+3}], 0 offen sc1\ns_waitcnt vmcnt(0)")
        self.poll_test(a, vtmp, x2, token)
        a.e(f"s_cbranch_scc1 L_polldone_{label}")
        a.e(f"s_sleep {self.o.get('sleep', 4)}\ns_sub_u32 s{S_CNT}, s{S_CNT}, 1\ns_cmp_lg_u32 s{S_CNT}, 0\ns_cbranch_scc1 L_poll_{label}")
        a.label(f"L_polldone_{label}")
    def one_lane_addr(self, a, dst, soff_reg, only_lw0):
        if only_lw0:
            a.e(f"s_cmp_eq_u32 s{S_LW}, 0\ns_cselect_b32 s{soff_reg}, s{soff_reg}, {hex(OOB)}")
        a.e(f"v_mov_b32 v{dst}, {hex(OOB)}\nv_writelane_b32 v{dst}, s{soff_reg}, 0")
    def signal(self, a, soff_code, vt0, vt1, only_lw0=False, srd_=None, byte=False):
        srd_ = S_WS if srd_ is None else srd_
        a.e(soff_code)
        self.one_lane_addr(a, vt1, S_T, only_lw0)
        a.e(f"v_mov_b32 v{vt0}, s1\nbuffer_store_dword v{vt0}, v{vt1}, s[{srd_}:{srd_+3}], 0 offen sc1")
    def off_ijw(self, base, wreg):
        return f"s_lshl_b32 s{S_T}, s{S_I}, 6\ns_lshl_b32 s{S_T2}, s{S_J}, 2\ns_add_u32 s{S_T}, s{S_T}, s{S_T2}\ns_add_u32 s{S_T}, s{S_T}, s{wreg}\ns_lshl_b32 s{S_T}, s{S_T}, 2\ns_add_u32 s{S_T}, s{S_T}, {base}"
    def off_ij(self, base):
        return f"s_lshl_b32 s{S_T}, s{S_I}, 4\ns_add_u32 s{S_T}, s{S_T}, s{S_J}\ns_lshl_b32 s{S_T}, s{S_T}, 7\ns_add_u32 s{S_T}, s{S_T}, {base}"
    def off_ji(self, base):
        return f"s_lshl_b32 s{S_T}, s{S_J}, 4\ns_add_u32 s{S_T}, s{S_T}, s{S_I}\ns_lshl_b32 s{S_T}, s{S_T}, 7\ns_add_u32 s{S_T}, s{S_T}, {base}"
    def signal_last(self, a, k, nwaves, soff_code, vt0, vt1, label):
        a.e(f"v_mov_b32 v{vt0}, {SD_CNT + 4*k}\nv_mov_b32 v{vt1}, 1\ns_mov_b64 exec, 1")
        a.e(f"ds_add_rtn_u32 v{vt0}, v{vt0}, v{vt1}")
        a.e(soff_code)
        a.e(f"s_waitcnt lgkmcnt(0)\nv_readfirstlane_b32 s{S_T2}, v{vt0}\nv_mov_b32 v{vt0}, 0\nv_mov_b32 v{vt1}, s1\ns_nop 1\ns_cmp_eq_u32 s{S_T2}, {nwaves-1}\ns_cbranch_scc0 L_notlast_{label}")
        a.e(f"buffer_store_dword v{vt1}, v{vt0}, s[{S_WS}:{S_WS+3}], s{S_T} offen sc1")
        a.label(f"L_notlast_{label}")
        a.e("s_mov_b64 exec, -1"); a.lq = []
    def group_words(self, a, dst, base, grp_sreg):
        a.e(f"s_lshl_b32 s{S_T}, s{grp_sreg}, 11\ns_add_u32 s{S_T}, s{S_T}, {base}\nv_and_b32 v{dst}, 15, v{self.vL}\nv_lshlrev_b32 v{dst}, 7, v{dst}\nv_add_u32 v{dst}, s{S_T}, v{dst}")
    def row_words(self, a, dst, base, stride_shift, lane_shift):
        a.e(f"s_lshl_b32 s{S_T}, s{S_I}, {stride_shift}\ns_add_u32 s{S_T}, s{S_T}, {base}\nv_lshlrev_b32 v{dst}, {lane_shift}, v{self.vL}\nv_add_u32 v{dst}, s{S_T}, v{dst}")
    def lane0(self, a, body, label):
        a.e(f"v_cmp_eq_u32 vcc, 0, v{self.vL}\ns_and_saveexec_b64 s[{S_EX}:{S_EX+1}], vcc")
        a.e(body)
        a.e(f"s_mov_b64 exec, s[{S_EX}:{S_EX+1}]")
    def only_lw0(self, a, label, fn):
        a.e(f"s_cmp_lg_u32 s{S_LW}, 0\ns_cbranch_scc1 L_skip_{label}")
        fn()
        a.label(f"L_skip_{label}")

    def cfgs(self):
        base = dict(shape=16, loaders=True, split=True, xflag="", xoff0=0, read_frac=0.5, extra_start=0.3, WM=2, WN=2)
        q = Cfg(name="q", TN=192, K=1024, Kx=1024, xsrc="rm", ldx=2048, korder="std", ldw=6144, qkvseg=True, S=3,
                fcol=lambda wn, f: wn*32 + (64*(f//2) + 16*(f % 2)), orient=lambda f: "nm" if f >= 4 else "mn",
                woff=lambda a: a.e(f"s_lshl_b32 s{S_WOFF}, s{S_J}, 7"), **base)
        o = Cfg(name="o", TN=64, K=1024, Kx=1024, xsrc="fn", korder="fn32", ldw=2048, S=self.o.get("So", 6),
                fcol=lambda wn, f: wn*32 + 16*f, orient=lambda f: "mn",
                woff=lambda a: a.e(f"s_lshl_b32 s{S_WOFF}, s{S_J}, 7"), **base)
        f1 = Cfg(name="f1", TN=224, K=1024, Kx=1024, xsrc="fn", korder="fn", ldw=7168, S=3,
                 fcol=lambda wn, f: (wn*128 + 16*f) if f < 6 else (wn*16 + 96), orient=lambda f: "mn",
                 woff=lambda a: a.e(f"s_mul_i32 s{S_WOFF}, s{S_J}, 448"), **base)
        def woff2(a):
            a.e(f"s_and_b32 s{S_T}, s{S_J}, 7\ns_lshl_b32 s{S_WOFF}, s{S_T}, 8\ns_lshr_b32 s{S_T}, s{S_J}, 3\ns_mul_i32 s{S_T}, s{S_T}, {1792*2048}\ns_add_u32 s{S_WOFF}, s{S_WOFF}, s{S_T}")
        f2 = Cfg(name="f2", TN=128, K=1792, Kx=3584, xsrc="fn", korder="fn", ldw=2048, S=4,
                 fcol=lambda wn, f: (wn*64 + S("kh")*32 + 16*f) if f < 2 else (wn*64 + (S("kh") ^ 1)*32 + 16*(f-2)), orient=lambda f: "mn", woff=woff2, **base)
        for c in (o, f1, f2): c.xflag = "sc1"
        if self.o.get("own2", True): f2.rot = True; f2.gap = 3
        q.rot = True; f1.rot = True; q.rotpos = self.o.get("qrot", 2); f1.rotpos = 0
        return q, o, f1, f2

    def xoff_fn(self, a, c, wsbase, khalf=False):
        a.e(f"s_mul_i32 s{S_XOFF}, s{S_I}, {(c.Kx//64)*16384}\ns_add_u32 s{S_XOFF}, s{S_XOFF}, {wsbase}")
        if khalf:
            a.e(f"s_lshr_b32 s{S_T}, s{S_J}, 3\ns_mul_i32 s{S_T}, s{S_T}, {28*16384}\ns_add_u32 s{S_XOFF}, s{S_XOFF}, s{S_T}")

    def build(self):
        C, L = self.C, self.L
        E = Asm()
        q, o, f1, f2 = self.cfgs()
        self.vL = 1; vt = [2, 3, 4, 5, 6, 7]; tmp2 = (8, 9); self.vL16 = 10; self.vZero = 11
        self.vt = vt
        gq, go, g1, g2 = [G(c, C, None, self.vL, vt) for c in (q, o, f1, f2)]
        self.g = (gq, go, g1, g2)
        E.e(f"s_cmp_ge_u32 s2, 256\ns_cbranch_scc1 L_end")
        if self.o.get("codepf", True):
            E.e("s_getpc_b64 s[96:97]")
            E.label("L_pc")
            E.e("v_lshlrev_b32 v2, 7, v0\ns_mov_b32 s3, L_end-L_pc\nv_min_u32 v2, s3, v2\nglobal_load_dword v254, v2, s[96:97]")
        E.e(f"s_load_dwordx16 s[{S_PTR}:{S_PTR+15}], s[0:1], 0\ns_load_dwordx2 s[{S_PTR+16}:{S_PTR+17}], s[0:1], 64")
        if self.o["diag"]:
            E.e("v_mov_b32 v255, 0\nv_mov_b32 v253, 0"); self.stamp(E, 0)
        E.e(f"s_and_b32 s{S_T}, s2, 7\ns_lshr_b32 s{S_T2}, s2, 3")
        E.e(f"s_lshr_b32 s{S_I}, s{S_T}, 2\ns_and_b32 s{S_J}, s{S_T}, 3\ns_lshl_b32 s{S_I}, s{S_I}, 3\ns_lshl_b32 s{S_J}, s{S_J}, 2")
        E.e(f"s_lshr_b32 s{S_T}, s{S_T2}, 2\ns_and_b32 s{S_T2}, s{S_T2}, 3\ns_add_u32 s{S_I}, s{S_I}, s{S_T}\ns_add_u32 s{S_J}, s{S_J}, s{S_T2}")
        E.e(f"v_and_b32 v{self.vL}, 63, v0\nv_lshrrev_b32 v2, 6, v0\ns_nop 0\nv_readfirstlane_b32 s{S_WV}, v2\nv_lshlrev_b32 v{self.vL16}, 4, v{self.vL}\nv_mov_b32 v{self.vZero}, 0\ns_nop 1")
        E.e(f"s_and_b32 s{S_LW}, s{S_WV}, 3\ns_lshr_b32 s{S_WM}, s{S_LW}, 1\ns_and_b32 s{S_WN}, s{S_LW}, 1")
        E.e(f"s_cmp_ge_u32 s{S_WV}, 4\ns_cbranch_scc1 L_loader")
        lv = Regs(12, 64)
        gq.alloc_loader(lv); go.alloc_loader(lv); g1.alloc_loader(lv); g2.alloc_loader(lv)
        self.lv_end = lv.n
        self.phase_q(gq, g1)
        self.attention()
        stop = self.o["stop_after"]
        self.phase_o(go)
        self.phase_f1(g1)
        self.phase_f2(g2)
        if self.o["diag"]:
            self.stamp(C, 15)
            C.e(f"s_cmp_lg_u32 s{S_WV}, 0\ns_cbranch_scc1 L_end")
            C.e(f"s_lshl_b32 s{S_T}, s2, 7\ns_add_u32 s{S_T}, s{S_T}, {common.WS_STAMP}\nv_lshlrev_b32 v2, 2, v{self.vL}")
            C.e(f"v_cmp_gt_u32 vcc, 32, v{self.vL}\ns_and_saveexec_b64 s[{S_EX}:{S_EX+1}], vcc")
            C.e(f"buffer_store_dword v255, v2, s[{S_WS}:{S_WS+3}], s{S_T} offen")
            if self.o.get("dbgout") is not None:
                C.e(f"s_cmp_lg_u32 s2, {self.o['dbgout']}\ns_cbranch_scc1 L_end")
                srd(C, S_DBG, *self.ptr(A_DBG), 256)
                C.e(f"v_readlane_b32 s{S_T}, v255, 0\ns_nop 3\nv_subrev_u32 v255, s{S_T}, v255\nv_cmp_gt_u32 vcc, 16, v{self.vL}\ns_nop 1\ns_and_b64 exec, exec, vcc\nv_cmp_lt_u32 vcc, 0, v{self.vL}\ns_nop 1\ns_and_b64 exec, exec, vcc")
                C.e(f"buffer_store_dword v255, v2, s[{S_DBG}:{S_DBG+3}], 0 offen")
        C.e("s_branch L_end")
        if self.o["diag"]:
            L.e(f"s_cmp_lg_u32 s{S_WV}, 4\ns_cbranch_scc1 L_end")
            L.e(f"s_lshl_b32 s{S_T}, s2, 9\ns_add_u32 s{S_T}, s{S_T}, {common.WS_STAMP + 131072}\nv_lshlrev_b32 v2, 2, v{self.vL}")
            L.e(f"buffer_store_dword v255, v2, s[{S_WS}:{S_WS+3}], s{S_T} offen\nbuffer_store_dword v253, v2, s[{S_WS}:{S_WS+3}], s{S_T} offen offset:256")
        txt = head(NAME) + E.text() + C.text() + "L_loader:\n" + L.text() + "  s_branch L_end\n" + self.A.text() + self.tail.text() + "L_end:\n  s_endpgm\n" + kd(NAME)
        return txt

    def srds_common(self, a):
        a.e("s_waitcnt lgkmcnt(0)")
        srd(a, S_WS, *self.ptr(A_WS), WS_BYTES, self.o.get('wsoff', 0))
        srd(a, S_DBG, *self.ptr(A_DBG), 256)

    def phase_q(self, g, g1):
        C, L, c = self.C, self.L, g.c
        vL, vt = self.vL, self.vt
        g.bind(L, vL, vt, (8, 9)); vm = VM(L)
        em = g.em
        L.e("s_setprio 1")
        g.setup_dma()
        if self.o.get("lpro"): self.lstamp("setup")
        L.e("s_waitcnt lgkmcnt(0)")
        srd(L, S_XSRD, *self.ptr(A_X), M*D*2)
        srd(L, S_WSRD, *self.ptr(A_WQKV), D*3*D*2)
        def issue(t):
            for ins in g.dma_list(t): L.e(ins)
            vm.iss(("st", t), c.nld)
        for ins in g.rot_init(): L.e(ins)
        L.e(f"s_mov_b32 s{S_WR}, 0")
        for s in range(2):
            issue(s); L.e(f"s_add_u32 s{S_WR}, s{S_WR}, {c.SB}")
            if self.o.get("lpro"): self.lstamp("iss")
        srd(L, S_WS, *self.ptr(A_WS), WS_BYTES, self.o.get('wsoff', 0)); srd(L, S_DBG, *self.ptr(A_DBG), 256)
        sv = Regs(64, 250)
        ones = sv.alloc(4, 4); wf = [sv.alloc(4, 4) for _ in range(8)]; sacc = [sv.alloc(4, 4) for _ in range(4)]
        vS = [sv.alloc() for _ in range(8)]; ldr = sv.alloc(32, 4)
        t0, t1, t2 = vt[0:3]
        L.e(f"v_lshlrev_b32 v{t0}, 2, v{vL}\nv_add_u32 v{t0}, {SD_CNT}, v{t0}\nv_cmp_gt_u32 vcc, 8, v{vL}\ns_and_saveexec_b64 s[{S_EX}:{S_EX+1}], vcc")
        L.lds_other(f"ds_write_b32 v{t0}, v{self.vZero}"); L.e(f"s_mov_b64 exec, s[{S_EX}:{S_EX+1}]")
        for k in range(4): L.e(f"v_mov_b32 v{ones+k}, 0x3f803f80")
        vL4 = sv.alloc(); rq = [sv.alloc() for _ in range(4)]
        L.e(f"v_lshlrev_b32 v{vL4}, 2, v{vL}")
        cls_q = self.csum_setup(g, 3, rq)
        csq_code = f"s_lshl_b32 s{S_T}, s{S_I}, 4\ns_add_u32 s{S_T}, s{S_T}, s{S_J}\ns_mul_i32 s{S_T2}, s{S_T}, 768\ns_mul_i32 s{S_T}, s{S_LW}, 192\ns_add_u32 s{S_T2}, s{S_T2}, s{S_T}\ns_add_u32 s{S_T2}, s{S_T2}, {WS_CSQ}"
        FLQ = 2 if self.o.get("flagsq", False) else 0
        if FLQ: self.lflag_init()
        if self.o.get("lpro"): self.lstamp("pre")
        vm.wait(("st", 0))
        if self.o.get("lpro"): self.lstamp("land")
        L.lds_drain(); self.bar_L_only()
        issue(2); L.e(f"s_mov_b32 s{S_WR}, 0")
        RP = c.rotpos
        if RP == 0: self.csum_reads(3, cls_q, rq, wf)
        vm.wait(("st", 1)); L.lds_drain(); self.bar_L_only()
        ns, S = c.nsteps, c.S
        def hook(t):
            if RP > 0 and t == RP - 1: self.csum_reads(3, cls_q, rq, wf)
            if t == RP: self.csum_finish(vm, 3, 12, ones, wf, sacc, vL4, csq_code)
            if t == RP + 3 and self.o.get("qsigL", True):
                if FLQ:
                    L.e(f"v_mov_b32 v{vS[3]}, {SD_FULL}"); self.lwait(vS[3], RP + 5, "qsig")
                self.signal(L, self.off_ij(F_Q), vS[0], vS[1], only_lw0=True); vm.iss("sig")
            if t == 1:
                L.e(f"v_mov_b32 v{vS[2]}, {SD_TOK}\nds_read_b32 v{vS[2]}, v{vS[2]}\ns_waitcnt lgkmcnt(0)\nv_readfirstlane_b32 s1, v{vS[2]}")
            if t == 10:
                t0, t1 = vt[0:2]
                L.e(f"v_and_b32 v{t0}, 15, v{vL}\ns_lshl_b32 s{S_T}, s{S_I}, 4\nv_add_u32 v{t1}, s{S_T}, v{t0}\nv_lshlrev_b32 v{t0}, 4, v{t0}\nv_add_u32 v{t0}, s{S_J}, v{t0}")
                L.e(f"v_and_b32 v{vS[7]}, 16, v{vL}\nv_cmp_eq_u32 vcc, 0, v{vS[7]}\ns_nop 1\nv_cndmask_b32 v{vS[7]}, v{t0}, v{t1}, vcc\nv_lshlrev_b32 v{vS[7]}, 7, v{vS[7]}\nv_add_u32 v{vS[7]}, {F_Q}, v{vS[7]}")
                L.e(f"buffer_load_dword v{vS[6]}, v{vS[7]}, s[{S_WS}:{S_WS+3}], 0 offen sc1"); vm.iss("pollq")
            if t == 11:
                vm.wait("pollq")
                self.poll_test(L, vS[6])
                L.e("s_cbranch_scc1 L_qready")
                self.poll(L, S_WS, vS[7], vS[6], "q")
                L.label("L_qready")
                self.colsum_loads(L, vm, "qld", ldr, vS[1], vS[2], 12, 768, f"s_mul_i32 s{S_T2}, s{S_J}, 768\ns_mul_i32 s{S_T}, s{S_LW}, 192\ns_add_u32 s{S_T2}, s{S_T2}, s{S_T}\ns_add_u32 s{S_T2}, s{S_T2}, {WS_CSQ}")
                L.e(f"s_lshl_b32 s{S_T2}, s{S_I}, 7\ns_lshl_b32 s{S_T}, s{S_LW}, 5\ns_add_u32 s{S_T2}, s{S_T2}, s{S_T}\ns_lshl_b32 s{S_T2}, s{S_T2}, 3\ns_add_u32 s{S_T2}, s{S_T2}, {WS_ST1}")
                L.e(f"v_and_b32 v{vS[3]}, 31, v{vL}\nv_lshlrev_b32 v{vS[3]}, 3, v{vS[3]}\nbuffer_load_dwordx2 {vr(ldr+16,2)}, v{vS[3]}, s[{S_WS}:{S_WS+3}], s{S_T2} offen sc1")
                vm.iss("qld", 1)
            if t == 13:
                vm.wait("qld")
                if self.o.get("lowhooks", True): L.e("s_setprio 0")
                self.colsum_reduce(L, ldr, ldr+20, vS[1], 12, SD_CSQ, 192)
                if self.o.get("lowhooks", True): L.e("s_setprio 1")
                L.e(f"v_and_b32 v{vS[3]}, 31, v{vL}\ns_lshl_b32 s{S_T}, s{S_LW}, 5\nv_add_u32 v{vS[3]}, s{S_T}, v{vS[3]}\nv_lshlrev_b32 v{vS[3]}, 2, v{vS[3]}\nv_add_u32 v{vS[3]}, {SD_MEAN1}, v{vS[3]}")
                L.e(f"ds_write_b32 v{vS[3]}, v{ldr+16}\nds_write_b32 v{vS[3]}, v{ldr+17} offset:512")
                L.e("s_waitcnt lgkmcnt(0)"); L.lq = []
        for t in range(ns-1):
            if t + S <= ns-1:
                if FLQ and t > FLQ: self.lwait(46, t + 2, f"q{t}")
                issue(t+S); L.e(g.adv_slot(S_WR))
            hook(t)
            if t+2 <= ns-1 and ("st", t+2) in vm.q: vm.wait(("st", t+2))
            L.lds_drain()
            if FLQ and FLQ - 1 <= t <= ns-3: self.lfull(t + 3)
            if not FLQ or t < FLQ or t == ns-2:
                L.lds_drain(); self.bar_L_only()
            else: self.lstamp()
        g.bind(C, vL, vt, (8, 9))
        cv = Regs(12, 254); g.alloc_compute(cv)
        g.a = C
        C.e("s_setprio 3")
        a0 = g.acc[0][0]; xr = a0; un = a0 + 16; vS = [a0 + 48 + k for k in range(6)]
        C.e("s_waitcnt lgkmcnt(0)")
        self.stamp(C, 16)
        srd(C, S_XSRD, *self.ptr(A_X), M*D*2)
        srd(C, S_DBG, *self.ptr(A_DBG), 256)
        C.e(f"s_or_b32 s{S_T}, s2, s{S_LW}\ns_cmp_lg_u32 s{S_T}, 0\ns_cbranch_scc1 L_notok")
        C.e(f"s_memrealtime s[88:89]\ns_waitcnt lgkmcnt(0)\ns_or_b32 s88, s88, 1\nv_mov_b32 v{vt[0]}, s88")
        self.lane0(C, f"buffer_store_dword v{vt[0]}, v{self.vZero}, s[{S_DBG}:{S_DBG+3}], 0 offen sc1", "tok")
        C.label("L_notok")
        C.e(f"s_lshl_b32 s{S_T}, s{S_I}, 7\ns_lshl_b32 s{S_T2}, s{S_J}, 3\ns_add_u32 s{S_T}, s{S_T}, s{S_T2}\ns_lshl_b32 s{S_T2}, s{S_LW}, 1\ns_add_u32 s71, s{S_T}, s{S_T2}\ns_lshl_b32 s{S_T}, s71, 11")
        for r in range(2):
            for p in range(2):
                C.e(f"buffer_load_dwordx4 {vr(xr+8*r+4*p,4)}, v{self.vL16}, s[{S_XSRD}:{S_XSRD+3}], s{S_T} offen offset:{r*2048+p*1024}")
        slabpf = self.o.get("slabpf", False)
        if slabpf:
            t0, t1, t2 = vt[0:3]
            mg3, sh3 = magic_div(3, 256)
            srd(C, S_E3, *self.ptr(A_WQKV), D*3*D*2)
            C.e(f"s_mul_i32 s{S_T}, s{S_LW}, 48\nv_min_u32 v{t0}, 47, v{vL}\nv_add_u32 v{t0}, s{S_T}, v{t0}\nv_mul_u32_u24 v{t1}, {mg3}, v{t0}\nv_lshrrev_b32 v{t1}, {sh3}, v{t1}")
            C.e(f"v_mul_u32_u24 v{t2}, 3, v{t1}\nv_sub_u32 v{t0}, v{t0}, v{t2}\nv_lshlrev_b32 v{t0}, 11, v{t0}\nv_mul_u32_u24 v{t1}, 6144, v{t1}\nv_add_u32 v{t0}, v{t0}, v{t1}")
            C.e(f"s_mul_i32 s{S_T}, s{S_I}, {64*6144}\ns_lshl_b32 s{S_T2}, s{S_J}, 7\ns_add_u32 s{S_T}, s{S_T}, s{S_T2}\nbuffer_load_dword v254, v{t0}, s[{S_E3}:{S_E3+3}], s{S_T} offen")
        srd(C, S_WS, *self.ptr(A_WS), WS_BYTES, self.o.get('wsoff', 0))
        g.setup_reads()
        C.e(f"s_lshl_b32 s{S_T}, s2, 2\ns_add_u32 s{S_T}, s{S_T}, s{S_LW}\ns_mul_i32 s{S_T2}, s{S_T}, 43691\ns_lshr_b32 s{S_T2}, s{S_T2}, 19\ns_mul_i32 s{S_T2}, s{S_T2}, 12\ns_sub_u32 s{S_T}, s{S_T}, s{S_T2}\ns_add_u32 s70, s{S_T}, 1" if False else "s_nop 0")
        self.stamp(C, 17)
        C.e(f"s_waitcnt vmcnt({1 if slabpf else 0})")
        self.stamp(C, 18)
        vtok = cv.alloc()
        C.e(f"buffer_load_dword v{vtok}, v{self.vZero}, s[{S_DBG}:{S_DBG+3}], 0 offen sc1")
        for r in range(2):
            for d in range(8):
                C.e(f"v_lshlrev_b32 v{un+16*r+2*d}, 16, v{xr+8*r+d}\nv_and_b32 v{un+16*r+2*d+1}, 0xffff0000, v{xr+8*r+d}")
        def tree(dst, src):
            pass
        for r in range(2): C.e(f"v_add_f32 v{vS[r]}, v{un+16*r}, v{un+16*r+1}\nv_add_f32 v{vS[2+r]}, v{un+16*r+2}, v{un+16*r+3}")
        for k in range(4, 16, 2):
            for r in range(2): C.e(f"v_add_f32 v{vS[r]}, v{vS[r]}, v{un+16*r+k}\nv_add_f32 v{vS[2+r]}, v{vS[2+r]}, v{un+16*r+k+1}")
        for r in range(2): C.e(f"v_add_f32 v{vS[r]}, v{vS[r]}, v{vS[2+r]}")
        def allred2(x0, x1, ta, tb):
            for p in ["quad_perm:[1,0,3,2]", "quad_perm:[2,3,0,1]", "row_half_mirror", "row_mirror"]:
                C.e("s_nop 0")
                for x in (x0, x1): C.e(f"v_add_f32_dpp v{x}, v{x}, v{x} {p} row_mask:0xf bank_mask:0xf")
            for sw in ("v_permlane16_swap_b32", "v_permlane32_swap_b32"):
                C.e(f"v_mov_b32 v{ta}, v{x0}\nv_mov_b32 v{tb}, v{x1}\ns_nop 0\n{sw} v{ta}, v{x0}\n{sw} v{tb}, v{x1}\ns_nop 0\nv_add_f32 v{x0}, v{x0}, v{ta}\nv_add_f32 v{x1}, v{x1}, v{tb}")
        C.e("s_nop 0")
        allred2(vS[0], vS[1], vS[4], vS[5])
        for r in range(2): C.e(f"v_mul_f32 v{vS[r]}, {fhex(1/1024)}, v{vS[r]}")
        for k in range(16):
            for r in range(2): C.e(f"v_sub_f32 v{un+16*r+k}, v{un+16*r+k}, v{vS[r]}")
        for r in range(2): C.e(f"v_mul_f32 v{vS[2+r]}, v{un+16*r}, v{un+16*r}")
        for k in range(1, 16):
            for r in range(2): C.e(f"v_fmac_f32 v{vS[2+r]}, v{un+16*r+k}, v{un+16*r+k}")
        C.e("s_nop 0")
        allred2(vS[2], vS[3], vS[4], vS[5])
        for r in range(2): C.e(f"v_mul_f32 v{vS[2+r]}, {fhex(1/1024)}, v{vS[2+r]}\nv_add_f32 v{vS[2+r]}, {fhex(EPS)}, v{vS[2+r]}")
        for r in range(2): C.e(f"v_rsq_f32 v{vS[2+r]}, v{vS[2+r]}")
        C.e(f"v_mov_b32 v{un}, v{vS[0]}\nv_mov_b32 v{un+2}, v{vS[1]}\nv_mov_b32 v{un+1}, v{vS[2]}\nv_mov_b32 v{un+3}, v{vS[3]}")
        C.e(f"s_lshl_b32 s{S_T}, s71, 3\ns_add_u32 s{S_T}, s{S_T}, {WS_ST1}")
        self.lane0(C, f"buffer_store_dwordx4 {vr(un,4)}, v{self.vZero}, s[{S_WS}:{S_WS+3}], s{S_T} offen sc1", "st1")
        self.stamp(C, 19)
        nextra = 0
        t0, t1 = vt[0:2]
        if self.o.get("sentinel", True) and self.o.get("markat", "o") == "q":
            mk4 = a0 + 60
            for k in range(4): C.e(f"v_mov_b32 v{mk4+k}, -1")
            C.e(f"s_lshl_b32 s{S_T}, s{S_I}, 4\ns_add_u32 s{S_T}, s{S_T}, s{S_J}\ns_lshl_b32 s{S_T}, s{S_T}, 15\ns_lshl_b32 s{S_T2}, s{S_LW}, 13\ns_add_u32 s{S_T}, s{S_T}, s{S_T2}\ns_add_u32 s{S_T}, s{S_T}, {WS_XCH}")
            for n in range(8):
                if n == 4: C.e(f"s_add_u32 s{S_T}, s{S_T}, 4096")
                C.e(f"buffer_store_dwordx4 {vr(mk4,4)}, v{self.vL16}, s[{S_WS}:{S_WS+3}], s{S_T} offen offset:{(n & 3)*1024} sc1"); nextra += 1
        if self.o.get("tlb", True):
            C.e(f"v_lshlrev_b32 v{t0}, 21, v{vL}")
            for arg, size in ((A_WQKV, D*3*D*2), (A_X, M*D*2), (A_WS, 54*MB), (A_WO, D*D*2), (A_W1, D*DFF*2), (A_W2, DFF*D*2), (A_OUT, M*D*2)):
                p = self.ptr(arg)[0]
                C.e(f"v_min_u32 v{t1}, {hex(size - 4)}, v{t0}\nglobal_load_dword v254, v{t1}, s[{p}:{p+1}]"); nextra += 1
        pfo = cv.alloc(); pf1 = cv.alloc()
        C.e(f"s_lshl_b32 s{S_T}, s2, 2\ns_add_u32 s{S_T}, s{S_T}, s{S_LW}")
        C.e(f"s_lshl_b32 s{S_T2}, s{S_T}, 4\nv_and_b32 v{pfo}, 15, v{vL}\nv_add_u32 v{pfo}, s{S_T2}, v{pfo}\nv_lshlrev_b32 v{pfo}, 7, v{pfo}")
        C.e(f"s_mul_i32 s{S_T2}, s{S_T}, 56\nv_min_u32 v{pf1}, 55, v{vL}\nv_add_u32 v{pf1}, s{S_T2}, v{pf1}\nv_lshlrev_b32 v{pf1}, 7, v{pf1}")
        def hookB(a):
            p = self.ptr(A_WO)[0]; a.e(f"global_load_dword v254, v{pfo}, s[{p}:{p+1}]")
            if self.o.get("pf_w1", False):
                p = self.ptr(A_W1)[0]; a.e(f"global_load_dword v254, v{pf1}, s[{p}:{p+1}]")
        C.e(f"s_and_b32 s{S_T}, s2, 56\ns_lshr_b32 s{S_T}, s{S_T}, 3\ns_add_u32 s71, s{S_T}, 3")
        def hookS(a):
            a.e(f"s_cmp_lg_u32 s{S_LW}, 0\ns_cbranch_scc1 L_nosigq")
            self.signal(a, self.off_ij(F_Q), vt[0], vt[1])
            a.label("L_nosigq")
        hk = {} if self.o.get("qsigL", True) else {14 - (3 + c.rotpos): hookS}
        if self.o["pf_weights"]: hk["s71"] = hookB
        def peel_end():
            C.e(f"s_waitcnt vmcnt({nextra})")
            self.poll_test(C, vtok, token=False)
            C.e("s_cbranch_scc1 L_tokready")
            self.poll(C, S_DBG, self.vZero, vtok, "tok", token=False)
            C.label("L_tokready")
            C.e(f"v_readfirstlane_b32 s1, v{vtok}\nv_mov_b32 v{vt[0]}, {SD_TOK}\nds_write_b32 v{vt[0]}, v{vtok}\ns_waitcnt lgkmcnt(0)")
        self.cloop(g, stamps=(1, 2), hooks=hk, peel_first=peel_end, flags=(2 if self.o.get("flagsq", False) else 0), cv=cv)
        self.epi_q(g, cv)

    def bar_L_only(self):
        self.L.e("s_barrier"); self.lstamp()
    def lstamp(self, tag=''):
        if self.o["diag"] and self.o.get("lst") and self.nl < 128:
            self.L.e(f"s_memrealtime s[88:89]\ns_waitcnt lgkmcnt(0)\nv_writelane_b32 v{255 - 2*(self.nl//64)}, s88, {self.nl % 64}"); self.nl += 1; self.L.lq = []
            self.lnames.append(tag)
    def setup_w_only(self, g):
        c, a, em = g.c, g.a, g.em
        l, lw = g.l, g.lw
        cpr = c.TN//8
        mg, sh = magic_div(cpr, c.nWld*256)
        for n in range(c.nWld):
            flat = lw*(c.nWld*64) + l + n*64
            vr_, vp = g.v_tmp2
            em.vemit((flat*mg) >> sh, vr_); em.vr["row"] = vr_; row = V("row")
            em.vemit(flat - row*cpr, vp); em.vr["p"] = vp; p = V("p")
            ch = p ^ g.wswz(row)
            colb = ((ch >> 3) << 11) + ((ch & 7) << 4) if c.qkvseg else ch << 4
            em.vemit(row*c.ldw + colb - (n % 4)*1024, g.vWsrc[n])

    def xgroups(self, a, regs, tmp):
        for sw in ("v_permlane16_swap_b32", "v_permlane32_swap_b32"):
            for k, r in enumerate(regs): a.e(f"v_mov_b32 v{tmp+k}, v{r}")
            a.e("s_nop 1")
            for k, r in enumerate(regs): a.e(f"{sw} v{tmp+k}, v{r}")
            a.e("s_nop 1")
            for k, r in enumerate(regs): a.e(f"v_add_f32 v{r}, v{r}, v{tmp+k}")
    def colsum_loads(self, a, vm, tag, dst, vaddr, vtmp, nlanes, rowbytes, base_code):
        vL = self.vL
        a.e(base_code)
        a.e(f"v_lshrrev_b32 v{vaddr}, 4, v{vL}\nv_mul_u32_u24 v{vaddr}, {16*rowbytes}, v{vaddr}\nv_and_b32 v{vtmp}, 15, v{vL}\nv_cmp_gt_u32 vcc, {nlanes}, v{vtmp}\nv_lshlrev_b32 v{vtmp}, 4, v{vtmp}\nv_add_u32 v{vaddr}, v{vaddr}, v{vtmp}\nv_mov_b32 v{vtmp}, {hex(OOB)}\nv_cndmask_b32 v{vaddr}, v{vtmp}, v{vaddr}, vcc")
        for n in range(4):
            a.e(f"buffer_load_dwordx4 {vr(dst+4*n,4)}, v{vaddr}, s[{S_WS}:{S_WS+3}], s{S_T2} offen sc1\ns_add_u32 s{S_T2}, s{S_T2}, {4*16*rowbytes}")
        vm.iss(tag, 4)
    def colsum_reduce(self, a, src, tmp, vaddr, nlanes, lds_base, wave_bytes):
        vL = self.vL
        for k in range(4):
            a.e(f"v_add_f32 v{src+k}, v{src+k}, v{src+4+k}\nv_add_f32 v{src+8+k}, v{src+8+k}, v{src+12+k}")
        for k in range(4): a.e(f"v_add_f32 v{src+k}, v{src+k}, v{src+8+k}")
        self.xgroups(a, [src+k for k in range(4)], tmp)
        a.e(f"s_mul_i32 s{S_T}, s{S_LW}, {wave_bytes}\ns_add_u32 s{S_T}, s{S_T}, {lds_base}\nv_lshlrev_b32 v{vaddr}, 4, v{vL}\nv_add_u32 v{vaddr}, s{S_T}, v{vaddr}")
        a.e(f"v_cmp_gt_u32 vcc, {nlanes}, v{vL}\ns_and_saveexec_b64 s[{S_EX}:{S_EX+1}], vcc\nds_write_b128 v{vaddr}, {vr(src,4)}\ns_mov_b64 exec, s[{S_EX}:{S_EX+1}]")
    def slab_plan(self, gg, per):
        cc = gg.c; l = gg.l; lw = gg.lw
        def ex(k, ks, j):
            row = gg.wrow(ks, j)
            ch = (lw*per + k)*2 + ((l >> 1) & 1)
            return row*cc.RS + ((ch ^ gg.wswz(row)) << 4) + (l & 1)*8 + cc.XB + cc.rotpos*cc.SB
        keys = [(k, ks, j) for k in range(per) for ks in range(2) for j in range(2)]
        base = []; cls = {}
        for key in keys:
            t = [ex(*key).ev({"l": ll, "lw": w}) for w in range(4) for ll in range(64)]
            for ci, (bk, bt) in enumerate(base):
                ds = {p - q_ for p, q_ in zip(t, bt)}
                if len(ds) == 1 and 0 <= min(ds) < 65536: cls[key] = (ci, ds.pop()); break
            else:
                base.append((key, t)); cls[key] = (len(base)-1, 0)
        for w in range(4):
            for key in keys:
                assert banks.conflicts_b64([ex(*key).ev({"l": ll, "lw": w}) for ll in range(64)]) == 0
        return [ex(*b[0]) for b in base], cls
    def csum_setup(self, gg, per, regs):
        bases, cls = self.slab_plan(gg, per)
        assert len(bases) <= len(regs)
        gg.bind(self.L, self.vL, self.vt, (8, 9))
        for b, r in zip(bases, regs): gg.em.vemit(b, r)
        return cls
    def csum_reads(self, per, cls, regs, wf):
        L = self.L
        for k in range(per):
            for ks in range(2):
                for j in range(2):
                    ci, imm = cls[(k, ks, j)]; d = wf[2*k+ks] + 2*j
                    L.lds_rd(f"ds_read_b64_tr_b16 {vr(d,2)}, v{regs[ci]} offset:{imm}", rng(d, 2))
    def csum_finish(self, vm, per, nt_total, ones, wf, sacc, vL4, colbase_code):
        L = self.L
        for k in range(4): L.e(f"v_mov_b32 v{ones+k}, 0x3f803f80")
        L.e(colbase_code)
        for k in range(per): L.e(f"v_mfma_f32_16x16x32_bf16 {vr(sacc[k],4)}, {vr(ones,4)}, {vr(wf[2*k],4)}, 0")
        for k in range(per): L.e(f"v_mfma_f32_16x16x32_bf16 {vr(sacc[k],4)}, {vr(ones,4)}, {vr(wf[2*k+1],4)}, {vr(sacc[k],4)}")
        L.e(f"v_cmp_gt_u32 vcc, 16, v{self.vL}\ns_nop 7\ns_and_saveexec_b64 s[{S_EX}:{S_EX+1}], vcc")
        for k in range(per):
            if (3*per + k) == nt_total:
                L.e(f"s_cmp_eq_u32 s{S_LW}, 3\ns_cselect_b32 s{S_T2}, {hex(OOB - 4096)}, s{S_T2}")
            L.e(f"buffer_store_dword v{sacc[k]}, v{vL4}, s[{S_WS}:{S_WS+3}], s{S_T2} offen offset:{k*64} sc1"); vm.iss("cst")
        L.e(f"s_mov_b64 exec, s[{S_EX}:{S_EX+1}]")

    def prefetch_first(self, a, cv):
        vL = self.vL; t0, t1, t2 = self.vt[0:3]; d = cv.alloc(4)
        srd(a, S_XSRD, *self.ptr(A_X), M*D*2); srd(a, S_WSRD, *self.ptr(A_WQKV), D*3*D*2)
        a.e(f"s_lshr_b32 s{S_T}, s2, 3\ns_lshl_b32 s{S_T}, s{S_T}, 2\ns_add_u32 s{S_T}, s{S_T}, s{S_LW}")
        a.e(f"s_mul_i32 s{S_T2}, s{S_T}, 96")
        mg, sh = magic_div(12, 12288); mg3, sh3 = magic_div(3, 12)
        a.e(f"s_lshr_b32 s{S_T3}, s{S_J}, 2\ns_lshl_b32 s{S_T3}, s{S_T3}, 9")
        for n in range(2):
            a.e(f"v_add_u32 v{t0}, s{S_T2}, v{vL}\nv_add_u32 v{t0}, {48*n}, v{t0}")
            a.e(f"v_mul_u32_u24 v{t1}, {mg}, v{t0}\nv_lshrrev_b32 v{t1}, {sh}, v{t1}\nv_mul_u32_u24 v{t2}, 12, v{t1}\nv_sub_u32 v{t0}, v{t0}, v{t2}")
            a.e(f"v_mul_u32_u24 v{t2}, {mg3}, v{t0}\nv_lshrrev_b32 v{t2}, {sh3}, v{t2}")
            a.e(f"v_mul_u32_u24 v{t1}, 6144, v{t1}\nv_lshlrev_b32 v{d+2}, 7, v{t2}\nv_add_u32 v{t1}, v{t1}, v{d+2}")
            a.e(f"v_mul_u32_u24 v{t2}, 3, v{t2}\nv_sub_u32 v{t0}, v{t0}, v{t2}\nv_lshlrev_b32 v{t0}, 11, v{t0}\nv_add_u32 v{t1}, v{t1}, v{t0}")
            a.e(f"v_cmp_gt_u32 vcc, 48, v{vL}\nv_mov_b32 v{t0}, 0x7ffffff0\ns_nop 0\nv_cndmask_b32 v{t1}, v{t0}, v{t1}, vcc")
            a.e(f"buffer_load_dword v254, v{t1}, s[{S_WSRD}:{S_WSRD+3}], s{S_T3} offen")
        a.e(f"s_lshl_b32 s{S_T2}, s{S_T}, 7\ns_lshr_b32 s{S_T3}, s{S_I}, 3\ns_lshl_b32 s{S_T3}, s{S_T3}, 21")
        for n in range(2):
            a.e(f"v_add_u32 v{t0}, s{S_T2}, v{vL}\nv_add_u32 v{t0}, {64*n}, v{t0}\nv_and_b32 v{t1}, 1023, v{t0}\nv_lshlrev_b32 v{t1}, 11, v{t1}\nv_lshrrev_b32 v{t0}, 10, v{t0}\nv_lshlrev_b32 v{t0}, 7, v{t0}\nv_add_u32 v{t1}, v{t1}, v{t0}")
            a.e(f"buffer_load_dword v254, v{t1}, s[{S_XSRD}:{S_XSRD+3}], s{S_T3} offen")
    def prefetch_weights(self, a):
        vL = self.vL; t0, t1 = self.vt[0:2]
        a.e(f"s_lshl_b32 s{S_T}, s2, 2\ns_add_u32 s{S_T}, s{S_T}, s{S_LW}")
        for (arg, nbytes, per, d) in ((A_WO, D*D*2, 16, 2), (A_W1, D*DFF*2, 56, 3)) if self.o.get("pf_w1", True) else ((A_WO, D*D*2, 16, 2),):
            srd(a, S_E3, *self.ptr(arg), nbytes)
            a.e(f"s_mul_i32 s{S_T2}, s{S_T}, {per}\nv_add_u32 v{t0}, s{S_T2}, v{vL}\nv_lshlrev_b32 v{t0}, 7, v{t0}\nv_cmp_gt_u32 vcc, {per}, v{vL}\nv_mov_b32 v{t1}, 0x7ffffff0\ns_nop 0\nv_cndmask_b32 v{t0}, v{t1}, v{t0}, vcc")
            a.e(f"buffer_load_dword v254, v{t0}, s[{S_E3}:{S_E3+3}], 0 offen")
    def prefetch_w2(self, a):
        vL = self.vL; t0, t1 = self.vt[0:2]
        a.e(f"s_lshl_b32 s{S_T}, s2, 2\ns_add_u32 s{S_T}, s{S_T}, s{S_LW}")
        srd(a, S_E3, *self.ptr(A_W2), DFF*D*2)
        a.e(f"s_mul_i32 s{S_T2}, s{S_T}, 56\nv_add_u32 v{t0}, s{S_T2}, v{vL}\nv_lshlrev_b32 v{t0}, 7, v{t0}\nv_cmp_gt_u32 vcc, 56, v{vL}\nv_mov_b32 v{t1}, 0x7ffffff0\ns_nop 0\nv_cndmask_b32 v{t0}, v{t1}, v{t0}, vcc")
        a.e(f"buffer_load_dword v254, v{t0}, s[{S_E3}:{S_E3+3}], 0 offen")

    def cloop(self, g, stamps, hooks=None, peel_first=None, ns=None, first=True, sfx="", flags=0, cv=None):
        c, a = g.c, g.a
        NG = c.NSUB//c.G; S = c.S; ns = ns or c.nsteps; nm = c.name + sfx
        if flags:
            vF = cv.alloc(4, 4); vM = cv.alloc(); vP = cv.alloc(); vFA = cv.alloc(); vFR = cv.alloc()
            a.e(f"v_mov_b32 v{vFA}, {SD_FULL}\ns_lshl_b32 s{S_T}, s{S_LW}, 2\ns_add_u32 s{S_T}, s{S_T}, {SD_FREE}\nv_mov_b32 v{vFR}, s{S_T}\nv_mov_b32 v{vP}, 0")
            a.lds_other(f"ds_write_b32 v{vFR}, v{vP}")
        a.e(f"s_mov_b32 s{S_RD}, 0")
        for ins in g.set_read_addrs(): a.e(ins)
        a.lds_drain(); a.e("s_setprio 0\ns_barrier")
        if stamps[0] is not None: self.stamp(a, stamps[0])
        for r in g.reads(0, 0): a.lds_rd(*r)
        st = 0
        for gi in range(NG-1):
            g.group(st, g.reads(st ^ 1, gi+1), [], first=(first and gi == 0)); st ^= 1
        a.e(g.adv_slot(S_RD))
        for ins in g.set_read_addrs(): a.e(ins)
        a.lds_drain(); a.e("s_barrier")
        par = st
        def body(loopctl=False):
            st = par
            for gi in range(NG):
                late = []; extra = []; tail = []; reads = g.reads(st ^ 1, gi)
                if gi == 0 and loopctl and hooks:
                    for cnt in hooks: extra.append(f"s_cmp_eq_u32 s{S_CNT}, {cnt}\ns_cbranch_scc1 L_hk_{nm}_{cnt}\nL_hkb_{nm}_{cnt}:")
                if gi == NG-1:
                    late.append(g.adv_slot(S_RD)); late += g.set_read_addrs()
                    ctl = f"s_sub_u32 s{S_CNT}, s{S_CNT}, 1\ns_cmp_lg_u32 s{S_CNT}, 0"
                    if loopctl and flags:
                        reads = reads + [(f"ds_read_b128 {vr(vF,4)}, v{vFA}", rng(vF, 4))]
                        tail = [f"v_min3_u32 v{vM}, v{vF}, v{vF+1}, v{vF+2}\nv_mov_b32 v{vP}, s{S_TG}",
                                f"v_min_u32 v{vM}, v{vM}, v{vF+3}",
                                (f"ds_write_b32 v{vFR}, v{vP}",),
                                f"v_readfirstlane_b32 s{S_T4}, v{vM}",
                                f"s_nop 0\ns_cmp_ge_u32 s{S_T4}, s{S_TG}\ns_cbranch_scc0 L_slow_{nm}\nL_slowb_{nm}:",
                                f"s_add_u32 s{S_TG}, s{S_TG}, 1\n" + ctl]
                    elif loopctl: late.append(ctl)
                g.group(st, reads, extra, late=late, tail=tail); st ^= 1
            if not (loopctl and flags): a.lds_drain()
        nb = ns - 2
        npeel = flags if flags else (1 if peel_first else 0)
        for p in range(npeel):
            body(False)
            if p == 0 and peel_first: peel_first()
            a.e("s_barrier"); nb -= 1
        if nb > 0 and flags:
            a.e(f"s_mov_b32 s{S_CNT}, {nb}\ns_mov_b32 s{S_TG}, {npeel + 3}")
            a.label(f"L_loop_{nm}")
            lq0 = list(a.lq)
            body(True)
            a.e(f"s_cbranch_scc1 L_loop_{nm}")
            t = self.tail
            t.label(f"L_slow_{nm}")
            t.e(f"s_mov_b32 s{S_T3}, {POLL_MAX}")
            t.label(f"L_slowl_{nm}")
            t.e(f"ds_read_b128 {vr(vF,4)}, v{vFA}\ns_waitcnt lgkmcnt(0)\nv_min3_u32 v{vM}, v{vF}, v{vF+1}, v{vF+2}\nv_min_u32 v{vM}, v{vM}, v{vF+3}\ns_nop 0\nv_readfirstlane_b32 s{S_T4}, v{vM}\ns_nop 2")
            t.e(f"s_cmp_ge_u32 s{S_T4}, s{S_TG}\ns_cbranch_scc1 L_slowb_{nm}\ns_sub_u32 s{S_T3}, s{S_T3}, 1\ns_cmp_lg_u32 s{S_T3}, 0\ns_cbranch_scc1 L_slowl_{nm}\ns_branch L_slowb_{nm}")
        elif nb > 0:
            a.e(f"s_mov_b32 s{S_CNT}, {nb}\ns_branch L_loop_{nm}")
            a.label(f"L_top_{nm}"); a.e("s_barrier"); a.label(f"L_loop_{nm}")
            body(True)
            a.e(f"s_cbranch_scc1 L_top_{nm}\ns_barrier")
        body(False); a.e("s_barrier")
        g.group(par, [], [])
        a.e("s_setprio 3\ns_nop 6")
        if stamps[1] is not None: self.stamp(a, stamps[1])
        for cnt, fn in (hooks or {}).items():
            t = self.tail
            t.label(f"L_hk_{nm}_{cnt}"); fn(t); t.e(f"s_branch L_hkb_{nm}_{cnt}")

    def lflag_init(self):
        L = self.L
        L.e(f"s_lshl_b32 s{S_T}, s{S_LW}, 2\ns_add_u32 s{S_T}, s{S_T}, {SD_FULL}\nv_mov_b32 v45, s{S_T}\nv_mov_b32 v46, {SD_FREE}\nv_mov_b32 v47, 0")
        L.lds_other("ds_write_b32 v45, v47")
    def lfull(self, val):
        L = self.L
        L.e(f"v_mov_b32 v47, {val}"); L.lds_other("ds_write_b32 v45, v47")
    def lwait(self, addr_reg, target, label):
        L = self.L
        L.e(f"s_setprio {self.o.get('lspinprio', 0)}\ns_mov_b32 s{S_T3}, {POLL_MAX}")
        L.label(f"L_lw_{label}")
        L.e(f"ds_read_b128 v[40:43], v{addr_reg}\ns_waitcnt lgkmcnt(0)\nv_min3_u32 v44, v40, v41, v42\nv_min_u32 v44, v44, v43\ns_nop 0\nv_readfirstlane_b32 s{S_T4}, v44\ns_nop 2")
        L.e(f"s_cmp_ge_u32 s{S_T4}, {target}\ns_cbranch_scc1 L_lwd_{label}\ns_sleep {self.o.get('lsleep', 1)}\ns_sub_u32 s{S_T3}, s{S_T3}, 1\ns_cmp_lg_u32 s{S_T3}, 0\ns_cbranch_scc1 L_lw_{label}")
        L.label(f"L_lwd_{label}"); L.lq = []; L.e("s_setprio 1")

    def epi_q(self, g, cv):
        C, L, c = self.C, self.L, g.c
        a = C; vL = self.vL; t0, t1, t2, t3, t4, t5 = self.vt
        em = g.em; l = g.l; wm, wn = g.wm, g.wn
        fr = g.frag0
        mu = fr; rs = fr+4; cs = fr+8; pk = fr+24; st = fr+32
        va = fr+64; vb = fr+65; vo = fr+66; vk = fr+67; sc = fr+68
        gq = l >> 4
        em.vemit((wm*64 + (l & 15))*4 + SD_MEAN1, va)
        for x in range(4):
            a.lds_rd(f"ds_read_b32 v{mu+x}, v{va} offset:{x*64}", [mu+x])
            a.lds_rd(f"ds_read_b32 v{rs+x}, v{va} offset:{512+x*64}", [rs+x])
        em.vemit((wn*32 + gq*4)*4 + SD_CSQ, vb)
        def cs_off(f): return (64*(f//2) + 16*(f % 2))*4
        for n, f in enumerate((2, 3, 0, 1)):
            a.lds_rd(f"ds_read_b128 {vr(cs+4*n,4)}, v{vb} offset:{cs_off(f)}", rng(cs+4*n, 4))
        csr = {2: cs, 3: cs+4, 0: cs+8, 1: cs+12}
        em.vemit(wn*49152 + l*16, vk)
        a.e(f"s_lshl_b32 s{S_T}, s{S_I}, 4\ns_add_u32 s{S_T}, s{S_T}, s{S_J}\ns_lshl_b32 s{S_T}, s{S_T}, 15\ns_lshl_b32 s{S_T2}, s{S_WN}, 14\ns_add_u32 s{S_T}, s{S_T}, s{S_T2}\ns_add_u32 s71, s{S_T}, {WS_KV}")
        def fold_mn(x, f, scale_reg):
            acc = g.acc[x][f]; c0 = csr[f]
            for p in range(2):
                a.e(f"v_pk_fma_f32 {vr(acc+2*p,2)}, {vr(mu+(x & ~1),2)}, {vr(c0+2*p,2)}, {vr(acc+2*p,2)} op_sel:[{x & 1},0,0] op_sel_hi:[{x & 1},1,1] neg_lo:[1,0,0] neg_hi:[1,0,0]")
            for p in range(2):
                a.e(f"v_pk_mul_f32 {vr(acc+2*p,2)}, {vr(scale_reg+(x & ~1),2)}, {vr(acc+2*p,2)} op_sel:[{x & 1},0] op_sel_hi:[{x & 1},1]")
        def pack2(dst, accA, accB):
            a.e(f"v_cvt_pk_bf16_f32 v{dst}, v{accA}, v{accA+1}\nv_cvt_pk_bf16_f32 v{dst+1}, v{accA+2}, v{accA+3}")
            a.e(f"v_cvt_pk_bf16_f32 v{dst+2}, v{accB}, v{accB+1}\nv_cvt_pk_bf16_f32 v{dst+3}, v{accB+2}, v{accB+3}")
        a.need(list(rng(mu, 8)) + list(rng(cs, 8)))
        a.e(f"s_lshl_b32 s{S_T3}, s{S_WM}, 12")
        a.e(f"v_add_u32 v{vo}, s{S_T3}, v{vk}")
        a.e(f"s_add_u32 s{S_T4}, s71, s{S_T3}")
        for x in range(4):
            fold_mn(x, 2, rs); fold_mn(x, 3, rs)
            p = pk + 4*(x & 1)
            pack2(p, g.acc[x][2], g.acc[x][3])
            a.e(f"buffer_store_dwordx4 {vr(p,4)}, v{self.vL16}, s[{S_WS}:{S_WS+3}], s{S_T4} offen offset:{x*1024} sc1")
            a.lds_other(f"ds_write_b128 v{vo}, {vr(p,4)} offset:{AT_K(0) + 2*8192 + x*1024}")
        em.vemit((wn*32 + (l & 15))*4 + SD_CSQ + 128*4, va)
        a.lds_rd(f"ds_read_b32 v{sc}, v{va}", [sc]); a.lds_rd(f"ds_read_b32 v{sc+1}, v{va} offset:64", [sc+1])
        em.vemit((wm*64 + gq*4)*4 + SD_MEAN1, vb)
        for x in range(4):
            a.lds_rd(f"ds_read_b128 {vr(st+4*x,4)}, v{vb} offset:{x*64}", rng(st+4*x, 4))
            a.lds_rd(f"ds_read_b128 {vr(st+16+4*x,4)}, v{vb} offset:{512+x*64}", rng(st+16+4*x, 4))
        a.e(f"s_lshl_b32 s{S_T3}, s{S_WM}, 12\ns_add_u32 s{S_T4}, s71, s{S_T3}\ns_add_u32 s{S_T4}, s{S_T4}, 8192")
        for xi in range(2):
            a.need(list(rng(st+8*xi, 8)) + list(rng(st+16+8*xi, 8)) + [sc, sc+1])
            for dl in range(2):
                for x in (2*xi, 2*xi+1):
                    acc = g.acc[x][4+dl]
                    for p in range(2):
                        a.e(f"v_pk_fma_f32 {vr(acc+2*p,2)}, {vr(st+4*x+2*p,2)}, {vr(sc,2)}, {vr(acc+2*p,2)} op_sel:[0,{dl},0] op_sel_hi:[1,{dl},1] neg_lo:[1,0,0] neg_hi:[1,0,0]")
                    for p in range(2):
                        a.e(f"v_pk_mul_f32 {vr(acc+2*p,2)}, {vr(st+16+4*x+2*p,2)}, {vr(acc+2*p,2)}")
                p = pk + 4*dl
                pack2(p, g.acc[2*xi][4+dl], g.acc[2*xi+1][4+dl])
                a.e(f"buffer_store_dwordx4 {vr(p,4)}, v{self.vL16}, s[{S_WS}:{S_WS+3}], s{S_T4} offen offset:{(xi*2+dl)*1024} sc1")
                a.lds_other(f"ds_write_b128 v{vo}, {vr(p,4)} offset:{AT_V(0) + 2*8192 + (xi*2+dl)*1024}")
        for x in range(4): a.e(f"v_mul_f32 v{rs+x}, {fhex(QSCALE)}, v{rs+x}")
        em.vemit(wn*8192 + wm*4096 + l*16 + AT_Q0, va)
        a.need(rng(cs+8, 8))
        for x in range(4):
            fold_mn(x, 0, rs); fold_mn(x, 1, rs)
            p = pk + 4*(x & 1)
            a.e("s_nop 0")
            pack2(p, g.acc[x][0], g.acc[x][1])
            a.lds_other(f"ds_write_b128 v{va}, {vr(p,4)} offset:{x*1024}")
        a.e("s_waitcnt vmcnt(0)")
        self.signal_last(a, 0, 4, self.off_ji(F_KV), t0, t1, "kv")
        self.stamp(C, 3)
        a.e("s_waitcnt lgkmcnt(0)"); a.lq = []
        self.lsetup(self.g[1], A_WO, D*D*2, WS_O)
        def kvpoll():
            L.e(f"s_sub_i32 s{S_T2}, s{S_I}, 1\ns_max_i32 s{S_T2}, s{S_T2}, 0\ns_sub_i32 s{S_XB0}, s{S_I}, 2\ns_max_i32 s{S_XB0}, s{S_XB0}, 0")
            L.e(f"v_mov_b32 v{t0}, s{S_T2}\nv_mov_b32 v{t1}, s{S_XB0}\nv_and_b32 v52, 1, v{vL}\nv_cmp_eq_u32 vcc, 0, v52\ns_nop 1\nv_cndmask_b32 v{t0}, v{t1}, v{t0}, vcc")
            L.e(f"v_lshlrev_b32 v{t0}, 7, v{t0}\ns_lshl_b32 s{S_T}, s{S_J}, 11\ns_add_u32 s{S_T}, s{S_T}, {F_KV}\nv_add_u32 v53, s{S_T}, v{t0}")
            self.poll(L, S_WS, 53, 52, "kv")
        L.e("s_mov_b32 s0, 1\ns_branch L_attn")
        L.label("L_kvstage")
        self.lstamp("kvpre")
        if self.o.get("kvpoll1", True):
            L.e(f"v_mov_b32 v54, {SD_CNT + 20}\ns_cmp_lg_u32 s{S_LW}, 0\ns_cbranch_scc1 L_kvwait")
            kvpoll()
            L.e("v_mov_b32 v55, 1\nds_write_b32 v54, v55\ns_branch L_kvgo")
            L.label("L_kvwait")
            L.e(f"s_mov_b32 s{S_CNT}, {POLL_MAX*8}")
            L.label("L_kvspin")
            L.e(f"ds_read_b32 v55, v54\ns_waitcnt lgkmcnt(0)\nv_readfirstlane_b32 s{S_T}, v55\ns_nop 2\ns_cmp_lg_u32 s{S_T}, 0\ns_cbranch_scc1 L_kvgo\ns_sleep 1\ns_sub_u32 s{S_CNT}, s{S_CNT}, 1\ns_cmp_lg_u32 s{S_CNT}, 0\ns_cbranch_scc1 L_kvspin")
            L.label("L_kvgo")
        else: kvpoll()
        self.lstamp("kvseen")
        L.e(f"s_lshr_b32 s{S_T}, s{S_LW}, 1\ns_sub_i32 s{S_T2}, s{S_I}, 2\ns_add_i32 s{S_T2}, s{S_T2}, s{S_T}")
        L.e(f"s_lshl_b32 s{S_XB0}, s{S_T2}, 4\ns_add_u32 s{S_XB0}, s{S_XB0}, s{S_J}\ns_lshl_b32 s{S_XB0}, s{S_XB0}, 15\ns_and_b32 s{S_WB0}, s{S_LW}, 1\ns_lshl_b32 s{S_WB0}, s{S_WB0}, 14\ns_add_u32 s{S_XB0}, s{S_XB0}, s{S_WB0}\ns_add_u32 s{S_XB0}, s{S_XB0}, {WS_KV}")
        L.e(f"s_cmp_lt_i32 s{S_T2}, 0\ns_cselect_b32 s{S_XB0}, 0x7ff00000, s{S_XB0}")
        L.e(f"s_and_b32 s{S_WB0}, s{S_LW}, 1\ns_mul_i32 s{S_WB0}, s{S_WB0}, 49152\ns_lshl_b32 s{S_T}, s{S_T}, 13\ns_add_u32 s{S_WB0}, s{S_WB0}, s{S_T}")
        for part in range(2):
            for q4 in range(2):
                L.e(f"s_add_u32 m0, s{S_WB0}, {part*24576 + q4*4096}\ns_add_u32 s{S_T}, s{S_XB0}, {part*8192 + q4*4096}")
                for n in range(4):
                    L.e(f"buffer_load_dwordx4 v{self.vL16}, s[{S_WS}:{S_WS+3}], s{S_T} offen offset:{n*1024} sc1 lds")
        L.e("s_waitcnt vmcnt(8)" if self.o.get("kfirst", True) else "s_waitcnt vmcnt(0)")
        L.e("s_branch L_attn_go")
        C.e("s_mov_b32 s0, 0\ns_branch L_attn"); C.label("L_attn_back_c"); C.e("s_setprio 3")
        L.label("L_attn_back_l"); L.e("s_setprio 1")

    def attention(self):
        a = self.A; vL = self.vL; z = HZ(a)
        a.label("L_attn")
        a.e("s_setprio 3")
        l = V("l")
        em = Emitter(a, {"l": vL}, {"hh": S_T3, "om": S_T4}, self.vt, S_ET)
        hh, om = S("hh"), S("om")
        R = Regs(64, 253)
        QF = R.alloc(8, 4); KF = [R.alloc(8, 4) for _ in range(2)]; SS = [R.alloc(16, 4) for _ in range(3)]
        NM = R.alloc(16, 4); NG = R.alloc(16, 4); OO = R.alloc(16, 4); LL = R.alloc(16, 4)
        VF = [R.alloc(8, 4) for _ in range(2)]; PP = [R.alloc(8, 4) for _ in range(2)]; ONE = R.alloc(4, 4)
        vQ, vK, vV, MX, T0 = [R.alloc() for _ in range(5)]
        a.e(f"s_and_b32 s{S_T3}, s{S_WV}, 1\ns_lshr_b32 s{S_T4}, s{S_WV}, 1")
        a.e(f"s_lshl_b32 s71, s{S_I}, 2\ns_add_u32 s71, s71, s{S_T4}")
        h = l >> 5
        em.vemit(hh*8192 + om*2048 + ((l >> 4) & 1)*1024 + (h*16 + (l & 15))*16 + AT_Q0, vQ)
        em.vemit(hh*49152 + om*2048 + ((l >> 3) & 1)*1024 + (h*16 + (l & 7) + ((l >> 4) & 1)*8)*16, vK)
        for ex in (((l >> 4) & 1)*1024 + (h*16 + (l & 15))*16, ((l >> 3) & 1)*1024 + (h*16 + (l & 7) + ((l >> 4) & 1)*8)*16):
            assert banks.conflicts_b128([ex.ev({"l": x}) for x in range(64)]) == 0
        def rd(dst, addr, off): z.lds_rd(f"ds_read_b128 {vr(dst,4)}, v{addr} offset:{off}", rng(dst, 4), [addr])
        def kread(tt, b): rd(KF[b], vK, tt*2048); rd(KF[b]+4, vK, tt*2048 + 512)
        def vread(tt, b): rd(VF[b], vV, tt*2048); rd(VF[b]+4, vV, tt*2048 + 512)
        em.vemit(hh*49152 + om*2048 + ((l >> 4) & 1)*1024 + (h*16 + (l & 15))*16 + 24576, vV)
        t0_ = self.vt[0]; vPF = R.alloc()
        if self.o["pf_weights"]:
            a.e(f"s_lshl_b32 s{S_T}, s2, 3\ns_add_u32 s{S_T}, s{S_T}, s{S_WV}\ns_mul_i32 s{S_T}, s{S_T}, 28\nv_min_u32 v{vPF}, 27, v{vL}\nv_add_u32 v{vPF}, s{S_T}, v{vPF}\nv_lshlrev_b32 v{vPF}, 7, v{vPF}")
        mreg = [76+2*k for k in range(6)] + [90+2*k for k in range(6)] + [4, 6, 24, 26]
        for r in range(16):
            k0 = 16*((r >> 2) & 1) + 8*(r >> 3) + (r & 3)
            lo = (0xffffffff << k0) & 0xffffffff; hi = (0xffffffff << (k0+4)) & 0xffffffff
            a.e(f"s_mov_b32 s{mreg[r]}, {hex(lo)}\ns_mov_b32 s{mreg[r]+1}, {hex(hi)}")
        for r in range(16): z.emit(f"v_mov_b32 v{NG+r}, 0xf149f2ca", "valu", w=[NG+r])
        z.emit(f"v_mov_b32 v{MX}, 0xf149f2ca", "valu", w=[MX])
        for k in range(4): z.emit(f"v_mov_b32 v{ONE+k}, 0x3f803f80", "valu", w=[ONE+k])
        MF = "v_mfma_f32_32x32x16_bf16"
        def qk(tt, kb, sb, cval, tag):
            b = KF[kb]; s_ = SS[sb]
            z.lneed(list(rng(b, 4)) + list(rng(QF, 4)))
            ctxt = "0" if cval is None else vr(cval, 16); creg = [] if cval is None else list(rng(cval, 16))
            if tt < 8:
                z.other(f"s_cmp_ge_u32 s71, {8-tt}\ns_cbranch_scc0 L_inv_{tag}_{tt}")
            z.emit(f"{MF} {vr(s_,16)}, {vr(b,4)}, {vr(QF,4)}, {ctxt}", "mfma32", r=list(rng(b,4))+list(rng(QF,4)), w=rng(s_,16), c=creg + list(rng(NG,16)) if tt < 8 else creg)
            if tt < 8:
                a.label(f"L_invb_{tag}_{tt}")
                t = self.tail
                t.label(f"L_inv_{tag}_{tt}")
                t.e(f"{MF} {vr(s_,16)}, {vr(b,4)}, {vr(QF,4)}, {vr(NG,16)}\ns_branch L_invb_{tag}_{tt}")
            z.lneed(list(rng(b+4, 4)) + list(rng(QF+4, 4)))
            z.emit(f"{MF} {vr(s_,16)}, {vr(b+4,4)}, {vr(QF+4,4)}, {vr(s_,16)}", "mfma32", r=list(rng(b+4,4))+list(rng(QF+4,4)), w=rng(s_,16), c=rng(s_,16))
        def merge(sa, sb):
            for r in range(16):
                z.emit(f"v_cndmask_b32 v{SS[sa]+r}, v{SS[sa]+r}, v{SS[sb]+r}, s[{mreg[r]}:{mreg[r]+1}]", "valu", r=[SS[sa]+r, SS[sb]+r], w=[SS[sa]+r])
        def vmax(sb):
            for k in range(8): z.emit(f"v_max3_f32 v{MX}, v{MX}, v{SS[sb]+2*k}, v{SS[sb]+2*k+1}", "valu", r=[MX, SS[sb]+2*k, SS[sb]+2*k+1], w=[MX])
        a.e("s_cmp_eq_u32 s0, 1\ns_cbranch_scc1 L_kvstage")
        a.label("L_attn_go")
        a.e("s_barrier")
        self.stamp(a, 4)
        rd(QF, vQ, 0); rd(QF+4, vQ, 512); kread(0, 0); kread(8, 1)
        self.nyoung = 0
        if self.o["pf_weights"] and not self.o.get("pfmid", False):
            for arg in (A_W1, A_W2):
                p = self.ptr(arg)[0]; a.e(f"global_load_dword v254, v{vPF}, s[{p}:{p+1}]"); self.nyoung += 1
        self.stamp(a, 20)
        qk(0, 0, 0, None, "a"); kread(1, 0)
        qk(8, 1, 1, None, "a"); kread(2, 1)
        qk(1, 0, 2, None, "a"); kread(3, 0)
        merge(0, 1); vmax(0)
        sb_of = {1: 2}
        free = [0, 1]
        for tt in range(2, 8):
            sb = free.pop(0); sb_of[tt] = sb
            qk(tt, tt & 1 ^ 1 if False else (tt % 2 == 0 and 1 or 0), sb, None, "a")
            if tt+2 < 8: kread(tt+2, (tt % 2 == 0 and 1 or 0))
            vmax(sb_of[tt-1]); free.append(sb_of[tt-1])
        kread(0, 0)
        vmax(sb_of[7])
        self.stamp(a, 21)
        self.attn_mid(a, z)
        self.stamp(a, 22)
        nyoung = 0
        if self.o["pf_weights"] and self.o.get("pfmid", False):
            for arg in (A_W1, A_W2):
                p = self.ptr(arg)[0]; a.e(f"global_load_dword v254, v{vPF}, s[{p}:{p+1}]"); nyoung += 1
        kread(8, 1); vread(8, 0); vread(0, 1)
        z.emit(f"v_mov_b32 v{T0}, v{MX}", "valu", r=[MX], w=[T0])
        z.emit(f"v_permlane32_swap_b32 v{T0}, v{MX}", "perm", r=[T0, MX], w=[T0, MX])
        z.emit(f"v_max_f32 v{MX}, v{MX}, v{T0}", "valu", r=[MX, T0], w=[MX])
        for r in range(16): z.emit(f"v_sub_f32 v{NM+r}, 0, v{MX}", "valu", r=[MX], w=[NM+r])
        z.other("s_setprio 2")
        def vexp(sb):
            for r in range(16): z.emit(f"v_exp_f32 v{SS[sb]+r}, v{SS[sb]+r}", "trans", r=[SS[sb]+r], w=[SS[sb]+r])
        def cvt(sb, pb):
            for k in range(8): z.emit(f"v_cvt_pk_bf16_f32 v{PP[pb]+k}, v{SS[sb]+2*k}, v{SS[sb]+2*k+1}", "valu", r=[SS[sb]+2*k, SS[sb]+2*k+1], w=[PP[pb]+k])
        first = [True]
        def pv(vb, pb):
            b = VF[vb]; p = PP[pb]
            z.lneed(rng(b, 8))
            f = first[0]; first[0] = False
            z.emit(f"{MF} {vr(OO,16)}, {vr(b,4)}, {vr(p,4)}, {'0' if f else vr(OO,16)}", "mfma32", r=list(rng(b,4))+list(rng(p,4)), w=rng(OO,16), c=[] if f else rng(OO,16))
            z.emit(f"{MF} {vr(LL,16)}, {vr(ONE,4)}, {vr(p,4)}, {'0' if f else vr(LL,16)}", "mfma32", r=list(rng(ONE,4))+list(rng(p,4)), w=rng(LL,16), c=[] if f else rng(LL,16))
            z.emit(f"{MF} {vr(OO,16)}, {vr(b+4,4)}, {vr(p+4,4)}, {vr(OO,16)}", "mfma32", r=list(rng(b+4,4))+list(rng(p+4,4)), w=rng(OO,16), c=rng(OO,16))
            z.emit(f"{MF} {vr(LL,16)}, {vr(ONE,4)}, {vr(p+4,4)}, {vr(LL,16)}", "mfma32", r=list(rng(ONE,4))+list(rng(p+4,4)), w=rng(LL,16), c=rng(LL,16))
        qk(0, 0, 0, NM, "b"); kread(1, 0)
        qk(8, 1, 1, NM, "b"); kread(2, 1)
        qk(1, 0, 2, NM, "b"); kread(3, 0)
        merge(0, 1); vexp(0)
        for r in range(16): z.emit(f"v_cndmask_b32 v{SS[1]+r}, 0, v{SS[0]+r}, s[{mreg[r]}:{mreg[r]+1}]", "valu", r=[SS[0]+r], w=[SS[1]+r])
        for r in range(16): z.emit(f"v_sub_f32 v{SS[0]+r}, v{SS[0]+r}, v{SS[1]+r}", "valu", r=[SS[0]+r, SS[1]+r], w=[SS[0]+r])
        cvt(1, 0); cvt(0, 1)
        pv(0, 0); vread(1, 0)
        pv(1, 1); vread(2, 1)
        sb_of = {1: 2}; free = [0, 1]
        for tt in range(1, 8):
            if tt+1 < 8:
                sb = free.pop(0); sb_of[tt+1] = sb; kb = 1 if (tt+1) % 2 == 0 else 0
                qk(tt+1, kb, sb, NM, "b")
                if tt+3 < 8: kread(tt+3, kb)
            if tt in (3, 6): z.other(f"s_setprio {1 if tt == 3 else 0}")
            cur = sb_of[tt]
            vexp(cur); cvt(cur, tt & 1); free.append(cur)
            vb = 0 if tt % 2 == 1 else 1
            pv(vb, tt & 1)
            if tt+2 < 8: vread(tt+2, vb)
        self.stamp(a, 23)
        srd(a, S_WS, *self.ptr(A_WS), WS_BYTES, self.o.get('wsoff', 0))
        em.vemit((om*2 + ((l >> 4) & 1))*2048 + hh*1024 + ((l & 15) + h*16)*16, vQ)
        a.e(f"s_lshl_b32 s{S_T}, s{S_I}, 4\ns_add_u32 s{S_T}, s{S_T}, s{S_J}\ns_lshl_b32 s{S_T}, s{S_T}, 14\ns_add_u32 s{S_T}, s{S_T}, {WS_O}")
        z.emit(f"v_rcp_f32 v{T0}, v{LL}", "trans", r=[LL], w=[T0])
        for r in range(16): z.emit(f"v_mul_f32 v{OO+r}, v{T0}, v{OO+r}", "valu", r=[T0, OO+r], w=[OO+r])
        for s in range(2):
            for k in range(4): z.emit(f"v_cvt_pk_bf16_f32 v{PP[s]+k}, v{OO+8*s+2*k}, v{OO+8*s+2*k+1}", "valu", r=[OO+8*s+2*k, OO+8*s+2*k+1], w=[PP[s]+k])
            a.e(f"buffer_store_dwordx4 {vr(PP[s],4)}, v{vQ}, s[{S_WS}:{S_WS+3}], s{S_T} offen offset:{s*512} sc1")
        self.stamp(a, 24)
        a.e("s_waitcnt vmcnt(0)")
        self.stamp(a, 25)
        self.signal_last(a, 1, 8, self.off_ij(F_O), vK, vV, "o")
        a.e("s_cmp_eq_u32 s0, 1\ns_cbranch_scc1 L_attn_back_l\ns_branch L_attn_back_c")
    def attn_mid(self, a, z):
        if self.o.get("kfirst", True):
            z.other(f"s_cmp_eq_u32 s0, 1\ns_cbranch_scc0 L_att_nov\ns_waitcnt vmcnt({self.nyoung})\nL_att_nov:")
            a.lds_drain(); z.other("s_barrier")

    def lsetup(self, g, warg, wbytes, xbase, khalf=False):
        L = self.L; c = g.c
        g.bind(L, self.vL, self.vt, (8, 9))
        srd(L, S_WSRD, *self.ptr(warg), wbytes)
        self.setup_w_only(g)
        g.em.vemit(g.lw*4096 + g.l*16, g.vXsrc[0])
        c.woff(L)
        self.xoff_fn(L, c, xbase, khalf)
        L.e(f"s_lshl_b32 s{S_XL}, s{S_LW}, 12")
        L.e(f"s_mul_i32 s{S_WL}, s{S_LW}, {c.nWld*1024}\ns_add_u32 s{S_WL}, s{S_WL}, {c.XB}")
    def lweights(self, g, init=True):
        L = self.L; c = g.c
        if init:
            for ins in g.rot_init(): L.e(ins)
        L.e(f"s_mov_b32 s{S_WR}, 0")
        for s in range(c.S):
            for ins in g.stage_off(s) + g.dma_w(): L.e(ins)
            L.e(f"s_add_u32 s{S_WR}, s{S_WR}, {c.SB}")
    def cpoll(self, flag, label, skip_own=False):
        C = self.C; t0, t1, t2 = self.vt[0:3]
        C.e(f"s_cmp_lg_u32 s{S_LW}, 0\ns_cbranch_scc1 L_nocpoll_{label}")
        self.group_words(C, t2, flag, S_I)
        if skip_own:
            C.e(f"s_xor_b32 s{S_T2}, s{S_J}, 1\ns_lshl_b32 s{S_T2}, s{S_T2}, 7\ns_add_u32 s{S_T2}, s{S_T2}, s{S_T}\nv_and_b32 v{t0}, 15, v{self.vL}\nv_mov_b32 v{t1}, s{S_T2}\nv_cmp_eq_u32 vcc, s{S_J}, v{t0}\ns_nop 1\nv_cndmask_b32 v{t2}, v{t2}, v{t1}, vcc")
        self.poll(C, S_WS, t2, t0, label)
        C.label(f"L_nocpoll_{label}")
        C.e("s_barrier")
    def lphase(self, g, flag, label, hooks=None, npeel=0, after_poll=None, first_hooks=None, ns=None, flags=0):
        L = self.L; c = g.c; vm = VM(L); S = c.S; ns = ns or c.nsteps
        hooks = hooks or {}
        g.bind(L, self.vL, self.vt, (8, 9))
        srd(L, S_XSRD, *self.ptr(A_WS), WS_BYTES, self.o.get('wsoff', 0))
        self.lstamp(label + "pre")
        L.e("s_barrier")
        self.lstamp(label + "seen")
        L.e(f"s_mov_b32 s{S_WR}, 0")
        for s in range(S):
            for ins in g.stage_off(s) + g.dma_x(): L.e(ins)
            vm.iss(("st", s), c.nXld)
            L.e(f"s_add_u32 s{S_WR}, s{S_WR}, {c.SB}")
        L.e(f"s_mov_b32 s{S_WR}, 0")
        if after_poll: after_poll(vm)
        if flags: self.lflag_init()
        vm.wait(("st", 0)); L.lds_drain(); L.e("s_barrier"); self.lstamp(label + "land")
        if first_hooks: first_hooks[0](vm)
        vm.wait(("st", 1)); L.lds_drain(); L.e("s_barrier")
        def issue(t):
            for ins in g.dma_list(t): L.e(ins)
            vm.iss(("st", t), c.nld); L.e(g.adv_slot(S_WR))
        npeel = max(npeel, S-2)
        nb = ns - S
        if self.o.get("lsteps"): npeel = nb
        def end_body(t):
            L.lds_drain()
            if flags and flags - 1 <= t <= ns-3: self.lfull(t + 3)
            if not flags or t < flags or t == ns-2:
                L.lds_drain(); L.e("s_barrier")
            if self.o.get("lsteps"): self.lstamp(label + str(t))
        if flags: npeel = max(npeel, flags + 1)
        for t in range(npeel):
            if flags and t > flags: self.lwait(46, t + 2, f"{label}{t}")
            issue(t+S)
            if t in hooks: hooks[t](vm)
            if ("st", t+2) in vm.q: vm.wait(("st", t+2))
            end_body(t)
        if nb - npeel > 0:
            if getattr(c, "rot", False): L.e(f"s_mov_b32 s{S_N}, {npeel + S - 1}")
            L.e(f"s_mov_b32 s{S_CNT}, {nb - npeel}")
            if flags: L.e(f"s_mov_b32 s{S_TG}, {npeel + 2}")
            L.label(f"L_lloop_{label}")
            early = flags and S >= 4
            if early:
                L.e(f"s_add_u32 s{S_T2}, s{S_TG}, 1\nv_mov_b32 v47, s{S_T2}\ns_waitcnt vmcnt({(S-3)*c.nld})\nds_write_b32 v45, v47")
            if flags: self.lwait(46, f"s{S_TG}", f"{label}_loop")
            for ins in g.dma_list(): L.e(ins)
            L.e(g.adv_slot(S_WR))
            if early:
                L.e(f"s_add_u32 s{S_TG}, s{S_TG}, 1")
            elif flags:
                L.e(f"s_add_u32 s{S_TG}, s{S_TG}, 1\nv_mov_b32 v47, s{S_TG}\ns_waitcnt vmcnt({(S-2)*c.nld})\nds_write_b32 v45, v47")
            else:
                L.e(f"s_waitcnt vmcnt({(S-2)*c.nld})\ns_barrier")
            L.e(f"s_sub_u32 s{S_CNT}, s{S_CNT}, 1\ns_cmp_lg_u32 s{S_CNT}, 0\ns_cbranch_scc1 L_lloop_{label}")
        for t in range(nb, ns-1):
            if t+2 <= ns-1: L.e(f"s_waitcnt vmcnt({min(ns-1-(t+2), S-2)*c.nld})")
            end_body(t)

    def phase_o(self, g):
        C, L, c = self.C, self.L, g.c
        vL = self.vL; t0, t1, t2, t3, t4, t5 = self.vt
        self.stamp(C, 5)
        self.lstamp("attnend")
        self.bar()
        self.lstamp("attnbar")
        self.lweights(g)
        if self.o.get("sentinel", True) and self.o.get("markat", "o") == "o":
            for k in range(4): L.e(f"v_mov_b32 v{180+k}, -1")
            L.e(f"s_lshl_b32 s{S_T}, s{S_I}, 4\ns_add_u32 s{S_T}, s{S_T}, s{S_J}\ns_lshl_b32 s{S_T}, s{S_T}, 15\ns_lshl_b32 s{S_T2}, s{S_LW}, 13\ns_add_u32 s{S_T}, s{S_T}, s{S_T2}\ns_add_u32 s{S_T}, s{S_T}, {WS_XCH}")
            for n in range(8):
                if n == 4: L.e(f"s_add_u32 s{S_T}, s{S_T}, 4096")
                L.e(f"buffer_store_dwordx4 v[180:183], v{self.vL16}, s[{S_WS}:{S_WS+3}], s{S_T} offen offset:{(n & 3)*1024} sc1")
        a = C; g.bind(C, vL, self.vt, (8, 9)); cv = Regs(12, 254); g.alloc_compute(cv)
        em = g.em; l, wm, wn = g.l, g.wm, g.wn
        g.setup_reads()
        xr = cv.alloc(16, 4); va = cv.alloc(); pk = cv.alloc(8, 4); sm = cv.alloc(8, 4); tm = cv.alloc(8, 4); m2 = cv.alloc(8, 4)
        srd(a, S_XSRD, *self.ptr(A_X), M*D*2)
        em.vemit((l & 15)*2048 + (l >> 4)*8, va)
        def resid(a):
            a.e(f"s_lshl_b32 s{S_T}, s{S_I}, 1\ns_add_u32 s{S_T}, s{S_T}, s{S_WM}\ns_lshl_b32 s{S_T}, s{S_T}, 17\ns_lshl_b32 s{S_T2}, s{S_J}, 7\ns_add_u32 s{S_T}, s{S_T}, s{S_T2}\ns_lshl_b32 s{S_T2}, s{S_WN}, 6\ns_add_u32 s{S_T}, s{S_T}, s{S_T2}")
            for x in range(4):
                for f in range(2):
                    a.e(f"buffer_load_dwordx2 {vr(xr+4*x+2*f,2)}, v{va}, s[{S_XSRD}:{S_XSRD+3}], s{S_T} offen offset:{f*32}")
                if x < 3: a.e(f"s_add_u32 s{S_T}, s{S_T}, {16*2048}")
        a.e(f"s_cmp_eq_u32 s{S_LW}, 0\ns_cbranch_scc1 L_ores0"); resid(a); a.label("L_ores0")
        def hookO(a):
            a.e(f"s_cmp_lg_u32 s{S_LW}, 0\ns_cbranch_scc1 L_ores1"); resid(a); a.label("L_ores1")
        self.cpoll(F_O, "o", skip_own=True)
        self.lphase(g, F_O, "o")
        g1 = self.g[2]
        self.lsetup(g1, A_W1, D*DFF*2, WS_H)
        g.bind(C, vL, self.vt, (8, 9)); g.a = C
        self.cloop(g, stamps=(6, 7), hooks={c.nsteps - 3: hookO})
        a.e("s_waitcnt vmcnt(0)")
        for x in range(4):
            for f in range(2):
                acc = g.acc[x][f]
                for d in range(2):
                    src = xr + 4*x + 2*f + d
                    a.e(f"v_lshlrev_b32 v{t0}, 16, v{src}\nv_and_b32 v{t1}, 0xffff0000, v{src}")
                    a.e(f"v_add_f32 v{acc+2*d}, v{acc+2*d}, v{t0}\nv_add_f32 v{acc+2*d+1}, v{acc+2*d+1}, v{t1}")
        a.e(f"s_lshl_b32 s{S_T}, s{S_I}, 4\ns_add_u32 s{S_T}, s{S_T}, s{S_J}\ns_lshl_b32 s{S_T}, s{S_T}, 14\ns_lshl_b32 s{S_T2}, s{S_WM}, 13\ns_add_u32 s{S_T}, s{S_T}, s{S_T2}\ns_lshl_b32 s{S_T2}, s{S_WN}, 10\ns_add_u32 s{S_T}, s{S_T}, s{S_T2}\ns_add_u32 s{S_T}, s{S_T}, {WS_H}")
        for x in range(4):
            p = pk + 4*(x & 1); A, B = g.acc[x][0], g.acc[x][1]
            a.e(f"v_cvt_pk_bf16_f32 v{p}, v{A}, v{A+1}\nv_cvt_pk_bf16_f32 v{p+1}, v{A+2}, v{A+3}\nv_cvt_pk_bf16_f32 v{p+2}, v{B}, v{B+1}\nv_cvt_pk_bf16_f32 v{p+3}, v{B+2}, v{B+3}")
            if x == 2: a.e(f"s_add_u32 s{S_T}, s{S_T}, 4096")
            a.e(f"buffer_store_dwordx4 {vr(p,4)}, v{self.vL16}, s[{S_WS}:{S_WS+3}], s{S_T} offen offset:{(x & 1)*2048} sc1")
        self.bar()
        self.lweights(self.g[2])
        a.e("s_waitcnt vmcnt(0)")
        self.signal_last(a, 2, 4, self.off_ij(F_H), t0, t1, "h")
        self.stamp(C, 8)
        def xlane(regs):
            for sw in ("v_permlane16_swap_b32", "v_permlane32_swap_b32"):
                for k, r in enumerate(regs): a.e(f"v_mov_b32 v{tm+k}, v{r}")
                a.e("s_nop 1")
                for k, r in enumerate(regs): a.e(f"{sw} v{tm+k}, v{r}")
                a.e("s_nop 1")
                for k, r in enumerate(regs): a.e(f"v_add_f32 v{r}, v{r}, v{tm+k}")
        for x in range(4):
            A, B = g.acc[x][0], g.acc[x][1]
            a.e(f"v_add_f32 v{sm+2*x}, v{A}, v{A+1}")
            for r in [A+2, A+3, B, B+1, B+2, B+3]: a.e(f"v_add_f32 v{sm+2*x}, v{sm+2*x}, v{r}")
        xlane([sm+2*x for x in range(4)])
        for x in range(4):
            A, B = g.acc[x][0], g.acc[x][1]
            a.e(f"v_mul_f32 v{t0}, {fhex(1/32)}, v{sm+2*x}")
            a.e(f"v_sub_f32 v{t1}, v{A}, v{t0}\nv_mul_f32 v{sm+2*x+1}, v{t1}, v{t1}")
            for r in [A+1, A+2, A+3, B, B+1, B+2, B+3]: a.e(f"v_sub_f32 v{t1}, v{r}, v{t0}\nv_fmac_f32 v{sm+2*x+1}, v{t1}, v{t1}")
        xlane([sm+2*x+1 for x in range(4)])
        a.e(f"s_lshl_b32 s{S_T}, s{S_J}, 1\ns_add_u32 s{S_T}, s{S_T}, s{S_WN}\ns_lshl_b32 s{S_T}, s{S_T}, 11\ns_lshl_b32 s{S_T2}, s{S_I}, 7\ns_add_u32 s{S_T}, s{S_T}, s{S_T2}\ns_lshl_b32 s{S_T2}, s{S_WM}, 6\ns_add_u32 s{S_T}, s{S_T}, s{S_T2}\ns_lshl_b32 s{S_T}, s{S_T}, 3\ns_add_u32 s{S_T}, s{S_T}, {WS_ST2}")
        a.e(f"v_lshlrev_b32 v{t0}, 3, v{vL}\nv_cmp_gt_u32 vcc, 16, v{vL}\ns_and_saveexec_b64 s[{S_EX}:{S_EX+1}], vcc")
        for x in range(4):
            a.e(f"buffer_store_dwordx2 {vr(sm+2*x,2)}, v{t0}, s[{S_WS}:{S_WS+3}], s{S_T} offen offset:{x*128} sc1")
        a.e(f"s_mov_b64 exec, s[{S_EX}:{S_EX+1}]\ns_waitcnt vmcnt(0)")
        self.signal_last(a, 4, 4, self.off_ij(F_S2), t0, t1, "s2")

    def phase_f1(self, g):
        C, L, c = self.C, self.L, g.c
        vL = self.vL; t0, t1, t2, t3, t4, t5 = self.vt
        FL1 = 1 if self.o.get("flags1", False) else 0
        ps = 64; cp = 96; mu, m2 = 112, 113
        def s2a(vm):
            self.group_words(L, 56, F_S2, S_I)
            L.e(f"buffer_load_dword v57, v56, s[{S_WS}:{S_WS+3}], 0 offen sc1"); vm.iss("ps2")
        def s2b(vm):
            vm.wait("ps2")
            self.poll_test(L, 57)
            L.e("s_cbranch_scc1 L_s2ready")
            self.poll(L, S_WS, 56, 57, "s2")
            L.label("L_s2ready")
            L.e(f"v_and_b32 v{t0}, 15, v{vL}\nv_lshlrev_b32 v{t0}, 4, v{t0}\nv_lshrrev_b32 v{t1}, 4, v{vL}\nv_lshlrev_b32 v{t1}, 14, v{t1}\nv_add_u32 v54, v{t0}, v{t1}")
            L.e(f"s_lshl_b32 s{S_T2}, s{S_I}, 7\ns_lshl_b32 s{S_T3}, s{S_LW}, 5\ns_add_u32 s{S_T2}, s{S_T2}, s{S_T3}\ns_lshl_b32 s{S_T2}, s{S_T2}, 3\ns_add_u32 s{S_T2}, s{S_T2}, {WS_ST2}")
            for n in range(8):
                L.e(f"buffer_load_dwordx4 {vr(ps+4*n,4)}, v54, s[{S_WS}:{S_WS+3}], s{S_T2} offen sc1\ns_add_u32 s{S_T2}, s{S_T2}, {4*2048*8}")
            vm.iss("ps", 8)
        mua, m2a = 112, 114
        def h0b(vm):
            vm.wait("ps")
            for r in range(2): L.e(f"v_add_f32 v{mua+r}, v{ps+2*r}, v{ps+4+2*r}")
            for n in range(2, 8):
                for r in range(2): L.e(f"v_add_f32 v{mua+r}, v{mua+r}, v{ps+4*n+2*r}")
            self.xgroups(L, [mua, mua+1], 118)
            for r in range(2): L.e(f"v_mul_f32 v{mua+r}, {fhex(1/1024)}, v{mua+r}\nv_mov_b32 v{m2a+r}, 0")
            L.e(f"v_mov_b32 v116, {fhex(1/32)}\nv_mov_b32 v117, {fhex(32.0)}")
        def h1(vm, part=None):
            for n in (range(8) if part is None else range(4*part, 4*part+4) if part < 2 else ()):
                for r in range(2):
                    tt = t1 if r == 0 else t2
                    L.e(f"v_fma_f32 v{tt}, v{ps+4*n+2*r}, v116, -v{mua+r}")
                for r in range(2):
                    tt = t1 if r == 0 else t2
                    L.e(f"v_mul_f32 v{tt}, v{tt}, v{tt}")
                for r in range(2):
                    tt = t1 if r == 0 else t2
                    L.e(f"v_fma_f32 v{tt}, v{tt}, v117, v{ps+4*n+2*r+1}")
                for r in range(2):
                    tt = t1 if r == 0 else t2
                    L.e(f"v_add_f32 v{m2a+r}, v{m2a+r}, v{tt}")
            if part is not None and part < 2: return
            self.xgroups(L, [m2a, m2a+1], 118)
            for r in range(2): L.e(f"v_mul_f32 v{m2a+r}, {fhex(1/1024)}, v{m2a+r}\nv_add_f32 v{m2a+r}, {fhex(EPS)}, v{m2a+r}")
            for r in range(2): L.e(f"v_rsq_f32 v{m2a+r}, v{m2a+r}")
            L.e(f"v_and_b32 v{t0}, 15, v{vL}\nv_lshlrev_b32 v{t0}, 3, v{t0}\ns_lshl_b32 s{S_T}, s{S_LW}, 7\ns_add_u32 s{S_T}, s{S_T}, {SD_MEAN2}\nv_add_u32 v{t0}, s{S_T}, v{t0}")
            L.e(f"v_cmp_gt_u32 vcc, 16, v{vL}\ns_and_saveexec_b64 s[{S_EX}:{S_EX+1}], vcc\nds_write_b64 v{t0}, {vr(mua,2)}\nds_write_b64 v{t0}, {vr(m2a,2)} offset:512\ns_mov_b64 exec, s[{S_EX}:{S_EX+1}]")
        ones, wf, sacc, r1, vL4 = 120, [124 + 4*k for k in range(8)], [156 + 4*k for k in range(4)], [172, 173, 174, 175], 176
        box = {}
        def pre_cs1():
            L.e(f"v_lshlrev_b32 v{vL4}, 2, v{vL}")
            box["cls"] = self.csum_setup(g, 4, r1)
        cs1_code = f"s_lshl_b32 s{S_T}, s{S_I}, 4\ns_add_u32 s{S_T}, s{S_T}, s{S_J}\ns_mul_i32 s{S_T2}, s{S_T}, 896\ns_lshl_b32 s{S_T}, s{S_LW}, 8\ns_add_u32 s{S_T2}, s{S_T2}, s{S_T}\ns_add_u32 s{S_T2}, s{S_T2}, {WS_CS1}"
        fh = (lambda vm: self.csum_reads(4, box["cls"], r1, wf), lambda vm: self.csum_finish(vm, 4, 14, ones, wf, sacc, vL4, cs1_code))
        def hsig(vm):
            if FL1:
                L.e(f"v_mov_b32 v58, {SD_FULL}"); self.lwait(58, 5, "cs1sig")
            self.signal(L, self.off_ji(F_CS1), 52, 53, only_lw0=True); vm.iss("sig")
        def h2a(vm):
            self.group_words(L, 52, F_CS1, S_J)
            L.e(f"buffer_load_dword v53, v52, s[{S_WS}:{S_WS+3}], 0 offen sc1"); vm.iss("pc")
        def h2(vm):
            vm.wait("pc")
            self.poll_test(L, 53, False)
            L.e("s_cbranch_scc1 L_cs1ready")
            self.poll(L, S_WS, 52, 53, "cs1")
            L.label("L_cs1ready")
            self.colsum_loads(L, vm, "cp", cp, 55, t1, 14, 896, f"s_mul_i32 s{S_T2}, s{S_J}, 896\ns_mul_i32 s{S_T}, s{S_LW}, 224\ns_add_u32 s{S_T2}, s{S_T2}, s{S_T}\ns_add_u32 s{S_T2}, s{S_T2}, {WS_CS1}")
        def h4(vm):
            vm.wait("cp")
            self.colsum_reduce(L, cp, 118, t0, 14, SD_CS1, 224)
        def mark(n):
            def fn(vm):
                if n == 0:
                    for k in range(4): L.e(f"v_mov_b32 v{180+k}, -1")
                    L.e(f"s_lshl_b32 s{S_T}, s{S_I}, 4\ns_add_u32 s{S_T}, s{S_T}, s{S_J}\ns_lshl_b32 s{S_T}, s{S_T}, 15\ns_lshl_b32 s{S_T2}, s{S_LW}, 13\ns_add_u32 s{S_T}, s{S_T}, s{S_T2}\ns_add_u32 s71, s{S_T}, {WS_XCH}")
                L.e(f"s_add_u32 s{S_T}, s71, {n*1024}\nbuffer_store_dwordx4 v[180:183], v{self.vL16}, s[{S_WS}:{S_WS+3}], s{S_T} offen sc1"); vm.iss("mark")
            return fn
        F1HOOKS = {0: fh[1], 2: s2a, 3: lambda vm: (hsig(vm), s2b(vm)), 5: h0b, 6: h1, 8: h2a, 9: h2, 11: h4}; F1PEEL = 12
        if self.o.get("lowhooks", True):
            def low(fn):
                def w(vm):
                    L.e("s_setprio 0"); fn(vm); L.e("s_setprio 1")
                return w
            F1HOOKS = {0: fh[1], 2: s2a, 3: lambda vm: (hsig(vm), s2b(vm)), 5: low(h0b), 6: low(lambda vm: h1(vm, 0)), 7: low(lambda vm: h1(vm, 1)),
                       8: lambda vm: (h2a(vm), low(lambda v: h1(v, 2))(vm)), 9: h2, 11: low(h4)}
        if self.o.get("sentinel", True) and self.o.get("markat", "o") == "f1":
            for n in range(8):
                prev = F1HOOKS.get(n); mk_ = mark(n)
                F1HOOKS[n] = (lambda vm, p=prev, m=mk_: (m(vm), p(vm) if p else None))
        a = C; g.bind(C, vL, self.vt, (8, 9)); cv = Regs(12, 254); g.alloc_compute(cv)
        g.setup_reads()
        self.cpoll(F_H, "f1")
        self.lphase(g, F_H, "f1", hooks=F1HOOKS, npeel=F1PEEL, after_poll=lambda vm: pre_cs1(), first_hooks=fh, flags=FL1)
        g2 = self.g[3]
        self.lsetup(g2, A_W2, DFF*D*2, WS_H1, khalf=True)
        own2 = self.o.get("own2", True)
        if own2:
            L.e(f"s_mul_i32 s{S_A}, s{S_J}, 7\ns_add_u32 s{S_A}, s{S_A}, 1\ns_lshr_b32 s{S_A}, s{S_A}, 1\ns_lshr_b32 s{S_T}, s{S_J}, 3\ns_mul_i32 s{S_T}, s{S_T}, 28\ns_sub_u32 s{S_A}, s{S_A}, s{S_T}")
            for ins in g2.rot_init(): L.e(ins)
            vmA = VM(L)
            L.e(f"s_mul_i32 s{S_WOFF}, s{S_A}, {64*2048}\ns_add_u32 s{S_WOFF}, s{S_WOFF}, s{S_WB0}\ns_mov_b32 s{S_WR}, 0")
            for n in range(3):
                for ins in g2.dma_w(): L.e(ins)
                vmA.iss(("w", n), g2.c.nWld)
                L.e(f"s_add_u32 s{S_WOFF}, s{S_WOFF}, {64*2048}\ns_add_u32 s{S_WR}, s{S_WR}, {g2.c.SB}")
            vmA.wait(("w", 0)); L.e("s_barrier")
            vmA.wait(("w", 1)); L.e("s_barrier")
            vmA.wait(("w", 2)); L.e("s_barrier")
            L.e("s_barrier")
        g.bind(C, vL, self.vt, (8, 9)); g.a = C
        em = g.em; l, wm, wn = g.l, g.wm, g.wn
        f1hooks = None
        self.cloop(g, stamps=(9, 10), hooks=f1hooks, flags=FL1, cv=cv)
        fr = g.frag0
        mu = fr; cs = fr+4; pk = fr+32; va = fr+44; vb = va+1; vc = va+2; vo = va+3
        em.vemit((wm*64 + (l & 15))*4 + SD_MEAN2, va)
        for x in range(4): a.lds_rd(f"ds_read_b32 v{mu+x}, v{va} offset:{x*64}", [mu+x])
        em.vemit(wn*512 + (l >> 4)*16 + SD_CS1, vb)
        em.vemit(wn*64 + (l >> 4)*16 + SD_CS1 + 384, vc)
        for f in range(6): a.lds_rd(f"ds_read_b128 {vr(cs+4*f,4)}, v{vb} offset:{f*64}", rng(cs+4*f, 4))
        a.lds_rd(f"ds_read_b128 {vr(cs+24,4)}, v{vc}", rng(cs+24, 4))
        a.e(f"s_mul_i32 s71, s{S_I}, {56*16384}\ns_lshl_b32 s{S_T}, s{S_WM}, 13\ns_add_u32 s71, s71, s{S_T}\ns_add_u32 s71, s71, {WS_H1}\ns_mul_i32 s{S_T4}, s{S_J}, 7")
        def fold(x, f):
            acc = g.acc[x][f]; c0 = cs + 4*f
            for p in range(2):
                a.e(f"v_pk_fma_f32 {vr(acc+2*p,2)}, {vr(mu+(x & ~1),2)}, {vr(c0+2*p,2)}, {vr(acc+2*p,2)} op_sel:[{x & 1},0,0] op_sel_hi:[{x & 1},1,1] neg_lo:[1,0,0] neg_hi:[1,0,0]")
        def kappa(phi_code):
            a.e(phi_code)
            a.e(f"s_lshr_b32 s{S_T2}, s{S_T}, 1\ns_lshl_b32 s{S_T2}, s{S_T2}, 14\ns_and_b32 s{S_T}, s{S_T}, 1\ns_lshl_b32 s{S_T}, s{S_T}, 10\ns_add_u32 s{S_T}, s{S_T}, s{S_T2}\ns_add_u32 s{S_T}, s{S_T}, s71")
        vlw = fr+48
        def lds_own(phi_code):
            if not own2: return
            a.e(phi_code)
            a.e(f"s_and_b32 s{S_T3}, s{S_J}, 1\ns_sub_i32 s{S_T2}, s{S_T2}, s{S_T3}\ns_and_b32 s{S_T3}, s{S_T2}, 1\ns_lshl_b32 s{S_T3}, s{S_T3}, 10\ns_ashr_i32 s{S_T2}, s{S_T2}, 1\ns_and_b32 s{S_T2}, s{S_T2}, 3\ns_lshl_b32 s{S_T2}, s{S_T2}, 15")
            a.e(f"s_add_u32 s{S_T2}, s{S_T2}, s{S_T3}\ns_lshl_b32 s{S_T3}, s{S_WM}, 13\ns_add_u32 s{S_T2}, s{S_T2}, s{S_T3}\nv_add_u32 v{vlw}, s{S_T2}, v{self.vL16}")
        n = 0
        for pr in range(3):
            a.need(list(rng(mu, 4)) + list(rng(cs+8*pr, 8)))
            lds_own(f"s_lshl_b32 s{S_T2}, s{S_WN}, 2\ns_add_u32 s{S_T2}, s{S_T2}, {pr}")
            kappa(f"s_lshl_b32 s{S_T}, s{S_WN}, 2\ns_add_u32 s{S_T}, s{S_T}, s{S_T4}\ns_add_u32 s{S_T}, s{S_T}, {pr}")
            for x in range(4):
                fold(x, 2*pr); fold(x, 2*pr+1)
                A, B = g.acc[x][2*pr], g.acc[x][2*pr+1]; p = pk + 4*(n & 1); n += 1
                a.e(f"v_cvt_pk_bf16_f32 v{p}, v{A}, v{A+1}\nv_cvt_pk_bf16_f32 v{p+1}, v{A+2}, v{A+3}\nv_cvt_pk_bf16_f32 v{p+2}, v{B}, v{B+1}\nv_cvt_pk_bf16_f32 v{p+3}, v{B+2}, v{B+3}")
                for k in range(4): a.e(f"v_pk_max_i16 v{p+k}, v{p+k}, 0")
                if x == 2: a.e(f"s_add_u32 s{S_T}, s{S_T}, 4096")
                a.e(f"buffer_store_dwordx4 {vr(p,4)}, v{self.vL16}, s[{S_WS}:{S_WS+3}], s{S_T} offen offset:{(x & 1)*2048} sc1")
                if own2: a.lds_other(f"ds_write_b128 v{vlw}, {vr(p,4)} offset:{x*2048}")
        a.need(rng(cs+24, 4))
        kappa(f"s_add_u32 s{S_T}, s{S_T4}, 3")
        em.vemit(l*16 + wn*8, vo)
        lds_own(f"s_mov_b32 s{S_T2}, 3")
        if own2: a.e(f"s_lshl_b32 s{S_T3}, s{S_WN}, 3\nv_add_u32 v{vlw}, s{S_T3}, v{vlw}")
        for x in range(4):
            fold(x, 6)
            A = g.acc[x][6]; p = pk + 4*(n & 1); n += 1
            a.e(f"v_cvt_pk_bf16_f32 v{p}, v{A}, v{A+1}\nv_cvt_pk_bf16_f32 v{p+1}, v{A+2}, v{A+3}\nv_pk_max_i16 v{p}, v{p}, 0\nv_pk_max_i16 v{p+1}, v{p+1}, 0")
            if x == 2: a.e(f"s_add_u32 s{S_T}, s{S_T}, 4096")
            a.e(f"buffer_store_dwordx2 {vr(p,2)}, v{vo}, s[{S_WS}:{S_WS+3}], s{S_T} offen offset:{(x & 1)*2048} sc1")
            if own2: a.lds_other(f"ds_write_b64 v{vlw}, {vr(p,2)} offset:{x*2048}")
        if not own2:
            self.bar()
            self.lweights(self.g[3])
            a.e("s_waitcnt vmcnt(0)")
            self.signal_last(a, 3, 4, self.off_ij(F_H1), t0, t1, "h1")
            self.stamp(C, 11)

    def phase_f2(self, g):
        C, L, c = self.C, self.L, g.c
        vL = self.vL; t0, t1, t2, t3, t4, t5 = self.vt
        own2 = self.o.get("own2", True)
        a = C; g.bind(C, vL, self.vt, (8, 9)); cv = Regs(12, 254)
        a.e(f"s_lshr_b32 s3, s{S_J}, 3")
        g.alloc_compute(cv)
        em = g.em; l, wm, wn = g.l, g.wm, g.wn
        hr = cv.alloc(16, 4); pt = cv.alloc(32, 4); rs = cv.alloc(4, 4); pk = cv.alloc(8, 4); va = cv.alloc(); vo = cv.alloc()
        g.setup_reads()
        nsB = c.nsteps
        if own2:
            g.a = C
            def pub():
                a.e("s_setprio 3\ns_waitcnt vmcnt(0)")
                self.signal_last(a, 3, 4, self.off_ij(F_H1), t0, t1, "h1")
                self.stamp(C, 11)
                a.e("s_setprio 0")
            if self.o.get("pubmid", True):
                self.cloop(g, stamps=(None, None), ns=3, first=True, sfx="a", peel_first=pub)
            else:
                self.cloop(g, stamps=(None, None), ns=3, first=True, sfx="a")
                pub()
            nsB = c.nsteps - 3
            self.lweights(g, init=False)
        def hookF2(a):
            a.e(f"s_and_b32 s{S_T}, s{S_J}, 7\ns_lshl_b32 s{S_T}, s{S_T}, 1\ns_add_u32 s{S_T}, s{S_T}, s{S_WN}\ns_lshl_b32 s{S_T2}, s{S_I}, 4\ns_add_u32 s{S_T}, s{S_T}, s{S_T2}\ns_lshl_b32 s{S_T}, s{S_T}, 14")
            a.e(f"s_lshl_b32 s{S_T2}, s{S_WM}, 13\ns_add_u32 s{S_T}, s{S_T}, s{S_T2}\ns_lshl_b32 s{S_T2}, s3, 10\ns_add_u32 s{S_T}, s{S_T}, s{S_T2}\ns_add_u32 s{S_T}, s{S_T}, {WS_H}")
            for x in range(4):
                if x == 2: a.e(f"s_add_u32 s{S_T}, s{S_T}, 4096")
                a.e(f"buffer_load_dwordx4 {vr(hr+4*x,4)}, v{self.vL16}, s[{S_WS}:{S_WS+3}], s{S_T} offen offset:{(x & 1)*2048} sc1")
        if self.o.get("res2out", True):
            a.e(f"s_cmp_eq_u32 s{S_LW}, 0\ns_cbranch_scc1 L_res2a"); hookF2(a); a.label("L_res2a")
        self.cpoll(F_H1, "f2")
        if self.o.get("res2out", True):
            a.e(f"s_cmp_lg_u32 s{S_LW}, 0\ns_cbranch_scc1 L_res2b"); hookF2(a); a.label("L_res2b")
        FL2 = 1 if self.o.get("flags2", False) else 0
        self.lphase(g, F_H1, "f2", ns=nsB, flags=FL2)
        g.bind(C, vL, self.vt, (8, 9)); g.a = C; em = g.em
        self.cloop(g, stamps=(12, 13), hooks=(None if self.o.get("res2out", True) else {nsB - 5: hookF2}), ns=nsB, first=not own2, flags=FL2, cv=cv)
        a.e(f"s_lshl_b32 s{S_T}, s{S_I}, 4\ns_add_u32 s{S_T}, s{S_T}, s{S_J}\ns_lshl_b32 s{S_T}, s{S_T}, 15\ns_lshl_b32 s{S_T2}, s{S_LW}, 13\ns_add_u32 s{S_T}, s{S_T}, s{S_T2}\ns_add_u32 s{S_T}, s{S_T}, {WS_XCH}")
        for x in range(4):
            if x == 2: a.e(f"s_add_u32 s{S_T}, s{S_T}, 4096")
            for f in range(2):
                a.e(f"buffer_store_dwordx4 {vr(g.acc[x][2+f],4)}, v{self.vL16}, s[{S_WS}:{S_WS+3}], s{S_T} offen offset:{((x & 1)*2+f)*1024} sc1")
        em.vemit((wm*64 + (l & 15))*4 + SD_RSTD2, va)
        for x in range(4): a.lds_rd(f"ds_read_b32 v{rs+x}, v{va} offset:{x*64}", [rs+x])
        srd(a, S_OUT, *self.ptr(A_OUT), M*D*2)
        em.vemit((l & 15)*2048 + ((l >> 4) & 1)*32 + (l >> 5)*16, vo)
        if not self.o.get("sentinel", True):
            a.e("s_waitcnt vmcnt(0)")
            self.signal(a, self.off_ijw(F_P, S_LW), t0, t1)
            a.e(f"s_xor_b32 s{S_T2}, s{S_J}, 8\ns_lshl_b32 s{S_T2}, s{S_T2}, 2\ns_lshl_b32 s{S_T}, s{S_I}, 6\ns_add_u32 s{S_T}, s{S_T}, s{S_T2}\ns_add_u32 s{S_T}, s{S_T}, s{S_LW}\ns_lshl_b32 s{S_T}, s{S_T}, 2\ns_add_u32 s{S_T}, s{S_T}, {F_P}\nv_mov_b32 v{t2}, s{S_T}")
            self.poll(a, S_WS, t2, t3, "p")
        a.e(f"s_xor_b32 s{S_T}, s{S_J}, 8\ns_lshl_b32 s{S_T2}, s{S_I}, 4\ns_add_u32 s{S_T}, s{S_T}, s{S_T2}\ns_lshl_b32 s{S_T}, s{S_T}, 15\ns_lshl_b32 s{S_T2}, s{S_LW}, 13\ns_add_u32 s{S_T}, s{S_T}, s{S_T2}\ns_add_u32 s{S_T3}, s{S_T}, {WS_XCH}\ns_add_u32 s{S_T4}, s{S_T3}, 4096")
        if self.o.get("sentinel", True):
            a.e(f"s_mov_b32 s{S_CNT}, {POLL_MAX}")
            a.label("L_xch")
        for x in range(4):
            for f in range(2):
                a.e(f"buffer_load_dwordx4 {vr(pt+8*x+4*f,4)}, v{self.vL16}, s[{S_WS}:{S_WS+3}], s{S_T3 if x < 2 else S_T4} offen offset:{((x & 1)*2+f)*1024} sc1")
        if self.o.get("sentinel", True):
            a.e("s_waitcnt vmcnt(0)")
            a.e(f"v_max3_u32 v{t0}, v{pt}, v{pt+1}, v{pt+2}")
            for k in range(3, 31, 2): a.e(f"v_max3_u32 v{t0}, v{t0}, v{pt+k}, v{pt+k+1}")
            a.e(f"v_max_u32 v{t0}, v{t0}, v{pt+31}\nv_cmp_ne_u32 vcc, -1, v{t0}\ns_nop 4\ns_cmp_eq_u64 vcc, exec\ns_cbranch_scc1 L_xch_done")
            a.e(f"s_sub_u32 s{S_CNT}, s{S_CNT}, 1\ns_cmp_lg_u32 s{S_CNT}, 0\ns_cbranch_scc1 L_xch")
            a.label("L_xch_done")
        a.e(f"s_lshl_b32 s{S_T}, s{S_I}, 1\ns_add_u32 s{S_T}, s{S_T}, s{S_WM}\ns_lshl_b32 s{S_T}, s{S_T}, 17\ns_and_b32 s{S_T2}, s{S_J}, 7\ns_lshl_b32 s{S_T2}, s{S_T2}, 8\ns_add_u32 s{S_T}, s{S_T}, s{S_T2}")
        a.e(f"s_lshl_b32 s{S_T2}, s{S_WN}, 7\ns_add_u32 s{S_T}, s{S_T}, s{S_T2}\ns_lshl_b32 s{S_T2}, s3, 6\ns_add_u32 s{S_T}, s{S_T}, s{S_T2}")
        a.need(rng(rs, 4))
        for x in range(4):
            if not self.o.get("sentinel", True): a.e(f"s_waitcnt vmcnt({(3-x)*2 + x})")
            p = pk + 4*(x & 1)
            for f in range(2):
                acc = g.acc[x][f]; q_ = pt + 8*x + 4*f
                for pp_ in range(2):
                    a.e(f"v_pk_add_f32 {vr(acc+2*pp_,2)}, {vr(acc+2*pp_,2)}, {vr(q_+2*pp_,2)}")
                for d in range(2):
                    src = hr + 4*x + 2*f + d
                    a.e(f"v_lshlrev_b32 v{t0}, 16, v{src}\nv_and_b32 v{t1}, 0xffff0000, v{src}")
                    a.e(f"v_fma_f32 v{t0}, v{acc+2*d}, v{rs+x}, v{t0}\nv_fma_f32 v{t1}, v{acc+2*d+1}, v{rs+x}, v{t1}")
                    a.e(f"v_cvt_pk_bf16_f32 v{p+2*f+d}, v{t0}, v{t1}")
            a.e("s_nop 1")
            a.e(f"v_permlane16_swap_b32 v{p}, v{p+2}\nv_permlane16_swap_b32 v{p+1}, v{p+3}")
            a.e(f"buffer_store_dwordx4 {vr(p,4)}, v{vo}, s[{S_OUT}:{S_OUT+3}], s{S_T} offen sc1")
            if x < 3: a.e(f"s_add_u32 s{S_T}, s{S_T}, {16*2048}")
        self.stamp(C, 14)

if __name__ == "__main__":
    import sys
    diag = "--diag" in sys.argv
    args = [x for x in sys.argv[1:] if not x.startswith("--")]
    out = args[0] if args else "mk.s"
    mk = MK(dict(diag=diag))
    body = mk.build()
    hdr = f"""; Single persistent launch: 256 workgroups (one per CU) x 8 waves (4 MFMA waves + 4 loader/helper waves).
; @launch grid=(256,1,1) block=(512,1,1) lds={LDS_TOTAL}
.amdgcn_target "amdgcn-amd-amdhsa--gfx950"
.text
"""
    open(out, "w").write(hdr + body)
    print("wrote", out, len((hdr+body).splitlines()), "lines")
```

```python
from common import *
from expr import *
import banks, math

def magic_div(d, maxv):
    for sh in (16, 17, 18, 20):
        m = (1 << sh)//d + 1
        if m*maxv < (1 << 32) and m < (1 << 24) and all(((c*m) >> sh) == c//d for c in range(maxv)): return m, sh
    raise RuntimeError

S_XSRD, S_WSRD = 4, 8
S_E0, S_E1, S_E2, S_E3 = 12, 16, 20, 24
S_I, S_J, S_WV, S_T = 28, 29, 30, 31
S_XOFF, S_WOFF, S_RD, S_WR, S_CNT, S_XL, S_WL = 32, 33, 34, 35, 36, 37, 38
S_T2, S_T3, S_T4 = 39, 40, 41
S_WM, S_WN = 42, 43
S_PTR = 44
S_EX = 62
S_ET = [64, 65, 66, 67, 68, 69]
S_LW = 70
S_XB0, S_WB0, S_N, S_K, S_A = 72, 73, 74, 75, 76

class Cfg:
    def __init__(self, **kw):
        self.S = 3; self.G = 1; self.BK = 64; self.TM = 128; self.shape = 32
        self.no_mfma = False; self.no_dma = False; self.loaders = False; self.qkvseg = False
        self.__dict__.update(kw)

class G:
    def __init__(self, c, a, v, vLane, vt):
        self.c = c; self.a = a; self.v = v; self.vLane = vLane; self.vt = vt
        c.T = c.shape; c.KS = 16 if c.shape == 32 else 32
        c.NSUB = c.BK//c.KS
        c.nX = c.TM//c.T//c.WM; c.nW = c.TN//c.T//c.WN
        c.AR = 16 if c.shape == 32 else 4
        c.RS = c.TN*2
        c.XB = c.TM*c.BK*2; c.WB = c.BK*c.RS; c.SB = c.XB + c.WB
        c.nXld = c.XB//1024//4; c.nWld = c.WB//1024//4
        assert c.nWld*4096 == c.WB and c.nXld == 4
        c.nld = c.nXld + c.nWld
        c.nsteps = c.K//c.BK
        self.l = V("l"); self.wm = S("wm"); self.wn = S("wn"); self.lw = S("lw")
        self.em = Emitter(a, {"l": vLane}, {"wm": S_WM, "wn": S_WN, "lw": S_LW, "i": S_I, "j": S_J, "kh": 3}, vt, S_ET)
        self.check_banks(); self.plan_reads()
        if not getattr(c, "split", False): self.alloc()
    def wswz(self, row):
        c = self.c; m = c.RS % 256
        if c.shape == 32:
            if m == 128: return ((row >> 1) & 1) << 2
            if m in (64, 192): return C(0)
            return (row & 3) << 2
        if c.korder in ("fn", "fn32"):
            if m == 128: return ((row >> 1) & 3) << 1
            if m in (64, 192): return ((row >> 2) & 1) << 1
            return (row & 7) << 1
        if m == 128: return (((row >> 1) & 1) | (((row >> 3) & 1) << 1)) << 1
        if m in (64, 192): return ((row >> 3) & 1) << 1
        return ((row & 3) | (((row >> 3) & 1) << 2)) << 1
    def wrow(self, ks, j):
        c = self.c; l = self.l
        r = (l >> 2) & 3
        if c.shape == 32:
            h = l >> 5
            return (h*4 + (16*ks + 8*j) if c.korder == "fn" else h*8 + (16*ks + 4*j)) + r
        g = l >> 4
        if c.korder == "fn": return g*4 + (32*ks + 16*j) + r
        if c.korder == "fn32": return (g >> 1)*16 + (g & 1)*4 + (32*ks + 8*j) + r
        return g*8 + (32*ks + 4*j) + r
    def waddr(self, f, ks, j):
        c = self.c; l = self.l
        row = self.wrow(ks, j)
        col = c.fcol(self.wn, f)
        ch = col >> 3
        if c.shape == 32: ch = ch + ((l >> 4) & 1)*2
        ch = ch + ((l >> 1) & 1)
        return row*c.RS + ((ch ^ self.wswz(row)) << 4) + (l & 1)*8 + c.XB
    def xaddr(self, x, ks):
        c = self.c; l = self.l; wm = self.wm
        mt = wm*c.nX + x
        if c.xsrc == "fn":
            return (mt*(4 if c.shape == 32 else 2) + ks)*1024 + l*16
        if c.shape == 32: row = mt*32 + (l & 31); ch = (l >> 5) + 2*ks
        else: row = mt*16 + (l & 15); ch = (l >> 4) + 4*ks
        return row*128 + ((ch ^ ((row >> 1) & 7)) << 4)
    def _tab(self, e):
        c = self.c
        return [e.ev({"l": l, "wm": wm, "wn": wn, "kh": kh}) for kh in range(2) for wm in range(c.WM) for wn in range(c.WN) for l in range(64)]
    def check_banks(self):
        c = self.c
        for x in range(c.nX):
            for ks in range(c.NSUB):
                t = self._tab(self.xaddr(x, ks))
                for w in range(len(t)//64): assert banks.conflicts_b128(t[64*w:64*w+64]) == 0, "X conflict"
        for f in range(c.nW):
            for ks in range(c.NSUB):
                for j in range(2):
                    t = self._tab(self.waddr(f, ks, j))
                    for w in range(len(t)//64): assert banks.conflicts_b64(t[64*w:64*w+64]) == 0, ("W conflict", f, ks, j)
    def plan_reads(self):
        c = self.c
        def plan(keys, fn):
            base = []; cls = {}
            for k in keys:
                t = self._tab(fn(*k)); found = False
                for ci, (bk, bt) in enumerate(base):
                    ds = {p - q for p, q in zip(t, bt)}
                    if len(ds) == 1 and 0 <= min(ds) < 65536: cls[k] = (ci, ds.pop()); found = True; break
                if not found: base.append((k, t)); cls[k] = (len(base)-1, 0)
            return [b[0] for b in base], cls
        self.xbase, self.xcls = plan([(x, ks) for ks in range(c.NSUB) for x in range(c.nX)], self.xaddr)
        self.wbase, self.wcls = plan([(f, ks, j) for ks in range(c.NSUB) for f in range(c.nW) for j in range(2)], self.waddr)
    def alloc(self):
        self.alloc_loader(self.v); self.alloc_compute(self.v)
    def alloc_loader(self, v):
        c = self.c
        self.vXsrc = [v.alloc() for _ in range(4 if c.xsrc == "rm" else 1)]
        self.vWsrc = [v.alloc() for _ in range(c.nWld)]
    def bind(self, a, vLane, vt, tmp2=None):
        self.a = a; self.vLane = vLane; self.vt = vt
        self.em = Emitter(a, {"l": vLane}, {"wm": S_WM, "wn": S_WN, "lw": S_LW, "i": S_I, "j": S_J, "kh": 3}, vt, S_ET)
        if tmp2: self.v_tmp2 = tmp2
    def alloc_compute(self, v):
        c = self.c
        self.vXl = [v.alloc() for _ in self.xbase]; self.vXa = [v.alloc() for _ in self.xbase]
        self.vWl = [v.alloc() for _ in self.wbase]; self.vWa = [v.alloc() for _ in self.wbase]
        self.fX = [[[v.alloc(4, 4) for x in range(c.nX)] for g in range(c.G)] for s in range(2)]
        self.fW = [[[v.alloc(4, 4) for f in range(c.nW)] for g in range(c.G)] for s in range(2)]
        self.frag0 = self.fX[0][0][0]; self.frag_end = v.n
        self.acc = [[v.alloc(c.AR, 4) for f in range(c.nW)] for x in range(c.nX)]
    def setup_dma(self):
        c, a, em = self.c, self.a, self.em
        l, lw = self.l, self.lw
        if c.xsrc == "fn":
            em.vemit(lw*4096 + l*16, self.vXsrc[0])
            a.e(f"s_mul_i32 s{S_XOFF}, s{S_I}, {(c.Kx//64)*16384}")
            if c.xoff0: a.e(f"s_add_u32 s{S_XOFF}, s{S_XOFF}, {c.xoff0}") if isinstance(c.xoff0, int) else c.xoff0(a)
        else:
            for n in range(4):
                row = lw*32 + (l >> 3) + 8*n
                ch = (l & 7) ^ (((l >> 4) + 4*n) & 7)
                em.vemit(row*c.ldx + (ch << 4) - n*1024, self.vXsrc[n])
            a.e(f"s_mul_i32 s{S_XOFF}, s{S_I}, {128*c.ldx}")
        cpr = c.TN//8
        mg, sh = magic_div(cpr, c.nWld*256)
        t = self.vt
        for n in range(c.nWld):
            flat = lw*(c.nWld*64) + l + n*64
            vr_, vp = self.v_tmp2
            em.vemit((flat*mg) >> sh, vr_)
            em.vr["row"] = vr_; row = V("row")
            em.vemit(flat - row*cpr, vp); em.vr["p"] = vp; p = V("p")
            ch = p ^ self.wswz(row)
            if c.qkvseg: colb = ((ch >> 3) << 11) + ((ch & 7) << 4)
            else: colb = ch << 4
            em.vemit(row*c.ldw + colb - (n % 4)*1024, self.vWsrc[n])
        c.woff(a)
        a.e(f"s_lshl_b32 s{S_XL}, s{S_LW}, 12")
        a.e(f"s_mul_i32 s{S_WL}, s{S_LW}, {c.nWld*1024}\ns_add_u32 s{S_WL}, s{S_WL}, {c.XB}")
    def setup_reads(self):
        em = self.em
        for k, r in zip(self.xbase, self.vXl): em.vemit(self.xaddr(*k), r)
        for k, r in zip(self.wbase, self.vWl): em.vemit(self.waddr(*k), r)
    def dma_x(self):
        c = self.c; out = []
        if c.no_dma: return []
        out.append(f"s_add_u32 m0, s{S_WR}, s{S_XL}")
        for n in range(4):
            src = self.vXsrc[n] if c.xsrc == "rm" else self.vXsrc[0]
            out.append(("s_nop 0\n" if n == 0 else "") + f"buffer_load_dwordx4 v{src}, s[{S_XSRD}:{S_XSRD+3}], s{S_XOFF} offen offset:{n*1024} {c.xflag} lds")
        if not getattr(c, "rot", False): out.append(f"s_add_u32 s{S_XOFF}, s{S_XOFF}, {16384 if c.xsrc == 'fn' else c.BK*2}")
        return out
    def dma_w(self):
        c = self.c; out = []
        if c.no_dma: return []
        for n in range(c.nWld):
            if n % 4 == 0:
                out.append(f"s_add_u32 s{S_T}, s{S_WR}, s{S_WL}\ns_add_u32 m0, s{S_T}, {n*1024}")
            out.append(("s_nop 0\n" if n % 4 == 0 else "") + f"buffer_load_dwordx4 v{self.vWsrc[n]}, s[{S_WSRD}:{S_WSRD+3}], s{S_WOFF} offen offset:{(n % 4)*1024} lds")
        if not getattr(c, "rot", False): out.append(f"s_add_u32 s{S_WOFF}, s{S_WOFF}, {c.BK*c.ldw}")
        return out
    def rot_init(self):
        return [f"s_mov_b32 s{S_XB0}, s{S_XOFF}\ns_mov_b32 s{S_WB0}, s{S_WOFF}"] if getattr(self.c, "rot", False) else []
    def stage_off(self, n=None):
        c = self.c
        if not getattr(c, "rot", False): return []
        rp = getattr(c, "rotpos", 0)
        xd = 16384 if c.xsrc == "fn" else c.BK*2; wd = c.BK*c.ldw
        if getattr(c, "gap", 0):
            if n is not None: k = f"s_mov_b32 s{S_K}, {n}\ns_cmp_ge_u32 s{S_K}, s{S_A}\ns_cselect_b32 s{S_XOFF}, {c.gap}, 0\ns_add_u32 s{S_K}, s{S_K}, s{S_XOFF}"
            else: k = f"s_add_u32 s{S_N}, s{S_N}, 1\ns_cmp_ge_u32 s{S_N}, s{S_A}\ns_cselect_b32 s{S_XOFF}, {c.gap}, 0\ns_add_u32 s{S_K}, s{S_N}, s{S_XOFF}"
            return [k + f"\ns_mul_i32 s{S_XOFF}, s{S_K}, {xd}\ns_add_u32 s{S_XOFF}, s{S_XOFF}, s{S_XB0}\ns_mul_i32 s{S_WOFF}, s{S_K}, {wd}\ns_add_u32 s{S_WOFF}, s{S_WOFF}, s{S_WB0}"]
        if n == rp: k = f"s_mov_b32 s{S_K}, s{S_I}"
        elif n is not None:
            m = n if n < rp else n-1
            k = f"s_mov_b32 s{S_K}, {m}\ns_cmp_ge_u32 s{S_K}, s{S_I}\ns_addc_u32 s{S_K}, s{S_K}, 0"
        else: k = f"s_cmp_ge_u32 s{S_N}, s{S_I}\ns_addc_u32 s{S_K}, s{S_N}, 0\ns_add_u32 s{S_N}, s{S_N}, 1"
        return [k + f"\ns_mul_i32 s{S_XOFF}, s{S_K}, {xd}\ns_add_u32 s{S_XOFF}, s{S_XOFF}, s{S_XB0}\ns_mul_i32 s{S_WOFF}, s{S_K}, {wd}\ns_add_u32 s{S_WOFF}, s{S_WOFF}, s{S_WB0}"]
    def dma_list(self, n=None): return self.stage_off(n) + self.dma_x() + self.dma_w()
    def reads(self, set_, grp):
        c = self.c; out = []
        for g in range(c.G):
            ks = grp*c.G + g
            def xr(x):
                d = self.fX[set_][g][x]; ci, imm = self.xcls[(x, ks)]
                return (f"ds_read_b128 {vr(d,4)}, v{self.vXa[ci]} offset:{imm}", rng(d,4))
            def wr(f):
                d = self.fW[set_][g][f]; o = []
                for j in range(2):
                    ci, imm = self.wcls[(f, ks, j)]
                    o.append((f"ds_read_b64_tr_b16 {vr(d+2*j,2)}, v{self.vWa[ci]} offset:{imm}", rng(d+2*j,2)))
                return o
            order = self.mfma_order()
            seen = set()
            for (x, f) in order:
                if ("x", x) not in seen: seen.add(("x", x)); out.append(xr(x))
                if ("f", f) not in seen: seen.add(("f", f)); out += wr(f)
        return out
    def mfma_order(self):
        c = self.c
        o = []
        mode = getattr(c, "order", "fx")
        if mode == "fx":
            for f in range(c.nW):
                xs = range(c.nX) if f % 2 == 0 else reversed(range(c.nX))
                o += [(x, f) for x in xs]
        else:
            for x in range(c.nX):
                fs = range(c.nW) if x % 2 == 0 else reversed(range(c.nW))
                o += [(x, f) for f in fs]
        return o
    def mfmas(self, set_, first=False):
        c = self.c; out = []
        op = "v_mfma_f32_32x32x16_bf16" if c.shape == 32 else "v_mfma_f32_16x16x32_bf16"
        for g in range(c.G):
            for (x, f) in self.mfma_order():
                X = self.fX[set_][g][x]; W = self.fW[set_][g][f]; acc = self.acc[x][f]
                A, B = (W, X) if c.orient(f) == "mn" else (X, W)
                srcc = "0" if (first and g == 0) else vr(acc, c.AR)
                out.append((f"{op} {vr(acc,c.AR)}, {vr(A,4)}, {vr(B,4)}, {srcc}", list(rng(X,4)) + list(rng(W,4))))
        return out
    def group(self, set_, reads, extra, first=False, late=(), tail=()):
        a = self.a; c = self.c
        ms = self.mfmas(set_, first); n = len(ms)
        reads = list(reads); extra = list(extra); late = list(late); tail = list(tail)
        nearly = max(1, int(n*c.read_frac))
        nr = len(reads); ne = len(extra); nl = len(late); nt = len(tail)
        done_r = 0; done_e = 0; done_l = 0; done_t = 0; drained = False
        startn = int(c.extra_start*n); span = max(1, n - 1 - startn)
        i0 = max(nearly + 1, n - 1 - max(nt, int(0.3*n))) if nt else n
        def flush_scc():
            nonlocal done_e, done_l
            while done_e < ne: a.e(extra[done_e]); done_e += 1
            while done_l < nl - (0 if nt else 1) and nt: a.e(late[done_l]); done_l += 1
        for i, (ins, regs) in enumerate(ms):
            a.need(regs)
            if not c.no_mfma: a.e(ins)
            want = min(nr, -(-nr*(i+1)//nearly))
            while done_r < want: a.lds_rd(*reads[done_r]); done_r += 1
            if i >= startn:
                wante = min(ne, -(-ne*(i+1-startn)//span))
                while done_e < wante: a.e(extra[done_e]); done_e += 1
            if done_r == nr and i >= nearly and i < n-1 and done_l < nl:
                left = (min(i0, n-1) if nt else n - 1) - i
                cnt = -(-(nl - done_l)//max(left, 1))
                for _ in range(min(cnt, nl - done_l)):
                    if "s_cmp_lg" in late[done_l]:
                        while done_e < ne: a.e(extra[done_e]); done_e += 1
                    a.e(late[done_l]); done_l += 1
            if nt and i >= i0 and i < n-1:
                if not drained:
                    assert done_r == nr
                    a.lds_drain(); drained = True
                left = n - 1 - i
                cnt = -(-(nt - done_t)//left)
                for _ in range(cnt):
                    op = tail[done_t]
                    if "s_cmp_lg" in op: flush_scc()
                    if isinstance(op, tuple): a.lds_other(op[0])
                    else: a.e(op)
                    done_t += 1
        while done_r < nr: a.lds_rd(*reads[done_r]); done_r += 1
        while done_e < ne: a.e(extra[done_e]); done_e += 1
        while done_l < nl: a.e(late[done_l]); done_l += 1
        assert done_t == nt, (done_t, nt)
        assert done_e == ne
    def set_read_addrs(self):
        return [f"v_add_u32 v{r}, s{S_RD}, v{l}" for l, r in zip(self.vXl + self.vWl, self.vXa + self.vWa)]
    def adv_slot(self, s):
        c = self.c
        return f"s_add_u32 s{s}, s{s}, {c.SB}\ns_cmp_eq_u32 s{s}, {c.S*c.SB}\ns_cselect_b32 s{s}, 0, s{s}"

    def compute_loop(self, pre_issue=None, post_issue=None):
        c, a = self.c, self.a
        NG = c.NSUB//c.G; S = c.S; ns = c.nsteps
        own = not c.loaders
        nld = c.nld if (own and not c.no_dma) else 0
        if pre_issue: pre_issue()
        if own:
            a.e(f"s_mov_b32 s{S_WR}, 0")
            for s in range(S):
                for ins in self.dma_list(): a.e(ins)
                a.e(f"s_add_u32 s{S_WR}, s{S_WR}, {c.SB}")
        if post_issue: post_issue(S*nld)
        a.e(f"s_mov_b32 s{S_RD}, 0\ns_mov_b32 s{S_WR}, 0")
        for ins in self.set_read_addrs(): a.e(ins)
        a.lds_drain(f"vmcnt({(S-1)*nld})" if own else "")
        a.e("s_barrier")
        stamp(a, 1); stamp(a, 6, cyc=True)
        for r in self.reads(0, 0): a.lds_rd(*r)
        st = 0
        for g in range(NG-1):
            self.group(st, self.reads(st ^ 1, g+1), [], first=(g == 0)); st ^= 1
        def boundary(vm):
            a.lds_drain(f"vmcnt({vm})" if (vm is not None and own) else "")
            a.e("s_barrier")
        a.e(self.adv_slot(S_RD))
        for ins in self.set_read_addrs(): a.e(ins)
        boundary((S-2)*nld)
        par = st
        def body(t_issue, vm, loopctl=False):
            st = par
            dma = self.dma_list() if (t_issue and own) else []
            chunks = [dma[len(dma)*i//NG: len(dma)*(i+1)//NG] for i in range(NG)]
            for g in range(NG):
                extra = list(chunks[g]); late = []
                if g == NG-1:
                    late.append((f"s_mov_b32 s{S_WR}, s{S_RD}\n" if own else "") + self.adv_slot(S_RD))
                    late += self.set_read_addrs()
                    if loopctl: late.append(f"s_sub_u32 s{S_CNT}, s{S_CNT}, 1\ns_cmp_lg_u32 s{S_CNT}, 0")
                self.group(st, self.reads(st ^ 1, g), extra, late=late); st ^= 1
            a.lds_drain(f"vmcnt({vm})" if (vm is not None and own) else "")
        assert NG % 2 == 0
        nb = ns - S
        if nb > 0:
            a.e(f"s_mov_b32 s{S_CNT}, {nb}\ns_branch L_loop_{c.name}")
            a.label(f"L_top_{c.name}")
            a.e("s_barrier")
            a.label(f"L_loop_{c.name}")
            body(True, (S-2)*nld, loopctl=True)
            a.e(f"s_cbranch_scc1 L_top_{c.name}\ns_barrier")
        for t in range(max(nb, 0), ns-1):
            rem = max(0, (ns-1) - (t+2))
            body(False, min(rem, S-2)*nld if t+2 <= ns-1 else None)
            a.e("s_barrier")
        self.group(par, [], [])
        a.e("s_nop 15")
        stamp(a, 2); stamp(a, 7, cyc=True)

    def loader_loop(self):
        c, a = self.c, self.a
        S = c.S; ns = c.nsteps; nld = 0 if c.no_dma else c.nld
        a.e(f"s_mov_b32 s{S_WR}, 0")
        for s in range(S):
            for ins in self.dma_list(): a.e(ins)
            a.e(f"s_add_u32 s{S_WR}, s{S_WR}, {c.SB}")
        a.e(f"s_mov_b32 s{S_WR}, 0")
        a.e(f"s_waitcnt vmcnt({(S-1)*nld})\ns_barrier")
        a.e(f"s_waitcnt vmcnt({(S-2)*nld})\ns_barrier")
        nb = ns - S
        if nb > 0:
            a.e(f"s_mov_b32 s{S_CNT}, {nb}")
            a.label(f"L_lloop_{c.name}")
            for ins in self.dma_list(): a.e(ins)
            a.e(self.adv_slot(S_WR))
            a.e(f"s_waitcnt vmcnt({(S-2)*nld})\ns_barrier")
            a.e(f"s_sub_u32 s{S_CNT}, s{S_CNT}, 1\ns_cmp_lg_u32 s{S_CNT}, 0\ns_cbranch_scc1 L_lloop_{c.name}")
        for t in range(max(nb, 0), ns-1):
            rem = max(0, (ns-1) - (t+2))
            if t+2 <= ns-1: a.e(f"s_waitcnt vmcnt({min(rem, S-2)*nld})")
            a.e("s_barrier")
```

```python
from gemm2 import *
from hz import HZ
import common

NAME = "sequential_preLN__sliding_block__dense_activation_relu__prompt_kernel"
L_SPARE = 122880
L_SIDE = 159744
SD_MEAN1, SD_RSTD1, SD_CSQ = L_SIDE, L_SIDE+512, L_SIDE+1024
SD_MEAN2, SD_RSTD2, SD_CS1 = L_SIDE+2048, L_SIDE+2560, L_SIDE+3072
SD_CNT = L_SIDE + 3968
SD_TOK = SD_CNT + 32
SD_FULL, SD_FREE = L_SIDE + 4016, L_SIDE + 4032
S_TG = 77
LDS_TOTAL = 163840
AT_K = lambda hh: hh*49152
AT_V = lambda hh: hh*49152 + 24576
AT_Q0 = 98304
WS_KV = 4*MB
WS_ST1 = 36*MB; WS_CSQ = 36*MB + 64*1024; WS_CS1 = 36*MB + 512*1024; WS_ST2 = 37*MB
WS_XCH = 44*MB
WS_FLAG = 52*MB
FSTR = 32768
F_H, F_H1, F_O, F_S2, F_Q = [WS_FLAG + k*FSTR for k in range(5)]
F_KV, F_CS1 = WS_FLAG + 5*FSTR, WS_FLAG + 6*FSTR
F_P = WS_FLAG + 7*FSTR
OOB = 0x7ffffff0
WS_BYTES = 56*MB
S_WS, S_DBG, S_OUT = S_E0, S_E1, S_E2
POLL_MAX = 400000
QSCALE = (DH ** -0.5) * 1.4426950408889634

class VM:
    def __init__(s, a): s.a = a; s.q = []
    def iss(s, tag, n=1): s.q += [tag]*n
    def count_after(s, tag):
        idx = max(i for i, t in enumerate(s.q) if t == tag)
        return len(s.q) - 1 - idx
    def wait(s, tag, extra=""):
        if tag not in s.q: return
        n = min(63, s.count_after(tag))
        s.a.e(f"s_waitcnt vmcnt({n}) {extra}".strip())
        s.q = s.q[len(s.q)-n:] if n else []
    def drain(s): s.a.e("s_waitcnt vmcnt(0)"); s.q = []

class MK:
    def __init__(self, opts=None):
        self.o = dict(diag=False, pf_first=False, pf_weights=True, stop_after=None, tlb=False, codepf=True)
        self.o.update(opts or {})
        self.C = Asm(); self.L = Asm(); self.A = Asm(); self.tail = Asm()
        self.nbar = 0; self.nl = 0; self.lnames = []
    def bar(self):
        self.C.e("s_barrier"); self.L.e("s_barrier")
    def stamp(self, a, k):
        if self.o["diag"]:
            a.e(f"s_memrealtime s[88:89]\ns_waitcnt lgkmcnt(0)\nv_writelane_b32 v255, s88, {k}")
            a.lq = []
    def ptr(self, o): return (S_PTR+16, S_PTR+17) if o == A_WS else (S_PTR + o//4, S_PTR + o//4 + 1)
    def poll_test(self, a, vtmp, x2=False, token=True):
        if token: a.e(f"v_cmp_eq_u32 vcc, s1, v{vtmp}\ns_nop 4\ns_cmp_eq_u64 vcc, exec")
        else: a.e(f"v_cmp_ne_u32 vcc, 0, v{vtmp}\ns_nop 4\ns_cmp_eq_u64 vcc, exec")
    def poll(self, a, srd_, vaddr, vtmp, label, byte=False, x2=False, token=True):
        a.e(f"s_mov_b32 s{S_CNT}, {POLL_MAX}")
        a.label(f"L_poll_{label}")
        ld = f"buffer_load_dwordx2 {vr(vtmp,2)}" if x2 else f"buffer_load_{'ubyte' if byte else 'dword'} v{vtmp}"
        a.e(f"{ld}, v{vaddr}, s[{srd_}:{srd_+3}], 0 offen sc1\ns_waitcnt vmcnt(0)")
        self.poll_test(a, vtmp, x2, token)
        a.e(f"s_cbranch_scc1 L_polldone_{label}")
        a.e(f"s_sleep {self.o.get('sleep', 4)}\ns_sub_u32 s{S_CNT}, s{S_CNT}, 1\ns_cmp_lg_u32 s{S_CNT}, 0\ns_cbranch_scc1 L_poll_{label}")
        a.label(f"L_polldone_{label}")
    def one_lane_addr(self, a, dst, soff_reg, only_lw0):
        if only_lw0:
            a.e(f"s_cmp_eq_u32 s{S_LW}, 0\ns_cselect_b32 s{soff_reg}, s{soff_reg}, {hex(OOB)}")
        a.e(f"v_mov_b32 v{dst}, {hex(OOB)}\nv_writelane_b32 v{dst}, s{soff_reg}, 0")
    def signal(self, a, soff_code, vt0, vt1, only_lw0=False, srd_=None, byte=False):
        srd_ = S_WS if srd_ is None else srd_
        a.e(soff_code)
        self.one_lane_addr(a, vt1, S_T, only_lw0)
        a.e(f"v_mov_b32 v{vt0}, s1\nbuffer_store_dword v{vt0}, v{vt1}, s[{srd_}:{srd_+3}], 0 offen sc1")
    def off_ijw(self, base, wreg):
        return f"s_lshl_b32 s{S_T}, s{S_I}, 6\ns_lshl_b32 s{S_T2}, s{S_J}, 2\ns_add_u32 s{S_T}, s{S_T}, s{S_T2}\ns_add_u32 s{S_T}, s{S_T}, s{wreg}\ns_lshl_b32 s{S_T}, s{S_T}, 2\ns_add_u32 s{S_T}, s{S_T}, {base}"
    def off_ij(self, base):
        return f"s_lshl_b32 s{S_T}, s{S_I}, 4\ns_add_u32 s{S_T}, s{S_T}, s{S_J}\ns_lshl_b32 s{S_T}, s{S_T}, 7\ns_add_u32 s{S_T}, s{S_T}, {base}"
    def off_ji(self, base):
        return f"s_lshl_b32 s{S_T}, s{S_J}, 4\ns_add_u32 s{S_T}, s{S_T}, s{S_I}\ns_lshl_b32 s{S_T}, s{S_T}, 7\ns_add_u32 s{S_T}, s{S_T}, {base}"
    def signal_last(self, a, k, nwaves, soff_code, vt0, vt1, label):
        a.e(f"v_mov_b32 v{vt0}, {SD_CNT + 4*k}\nv_mov_b32 v{vt1}, 1\ns_mov_b64 exec, 1")
        a.e(f"ds_add_rtn_u32 v{vt0}, v{vt0}, v{vt1}")
        a.e(soff_code)
        a.e(f"s_waitcnt lgkmcnt(0)\nv_readfirstlane_b32 s{S_T2}, v{vt0}\nv_mov_b32 v{vt0}, 0\nv_mov_b32 v{vt1}, s1\ns_nop 1\ns_cmp_eq_u32 s{S_T2}, {nwaves-1}\ns_cbranch_scc0 L_notlast_{label}")
        a.e(f"buffer_store_dword v{vt1}, v{vt0}, s[{S_WS}:{S_WS+3}], s{S_T} offen sc1")
        a.label(f"L_notlast_{label}")
        a.e("s_mov_b64 exec, -1"); a.lq = []
    def group_words(self, a, dst, base, grp_sreg):
        a.e(f"s_lshl_b32 s{S_T}, s{grp_sreg}, 11\ns_add_u32 s{S_T}, s{S_T}, {base}\nv_and_b32 v{dst}, 15, v{self.vL}\nv_lshlrev_b32 v{dst}, 7, v{dst}\nv_add_u32 v{dst}, s{S_T}, v{dst}")
    def row_words(self, a, dst, base, stride_shift, lane_shift):
        a.e(f"s_lshl_b32 s{S_T}, s{S_I}, {stride_shift}\ns_add_u32 s{S_T}, s{S_T}, {base}\nv_lshlrev_b32 v{dst}, {lane_shift}, v{self.vL}\nv_add_u32 v{dst}, s{S_T}, v{dst}")
    def lane0(self, a, body, label):
        a.e(f"v_cmp_eq_u32 vcc, 0, v{self.vL}\ns_and_saveexec_b64 s[{S_EX}:{S_EX+1}], vcc")
        a.e(body)
        a.e(f"s_mov_b64 exec, s[{S_EX}:{S_EX+1}]")
    def only_lw0(self, a, label, fn):
        a.e(f"s_cmp_lg_u32 s{S_LW}, 0\ns_cbranch_scc1 L_skip_{label}")
        fn()
        a.label(f"L_skip_{label}")

    def cfgs(self):
        base = dict(shape=16, loaders=True, split=True, xflag="", xoff0=0, read_frac=0.5, extra_start=0.3, WM=2, WN=2)
        q = Cfg(name="q", TN=192, K=1024, Kx=1024, xsrc="rm", ldx=2048, korder="std", ldw=6144, qkvseg=True, S=3,
                fcol=lambda wn, f: wn*32 + (64*(f//2) + 16*(f % 2)), orient=lambda f: "nm" if f >= 4 else "mn",
                woff=lambda a: a.e(f"s_lshl_b32 s{S_WOFF}, s{S_J}, 7"), **base)
        o = Cfg(name="o", TN=64, K=1024, Kx=1024, xsrc="fn", korder="fn32", ldw=2048, S=self.o.get("So", 6),
                fcol=lambda wn, f: wn*32 + 16*f, orient=lambda f: "mn",
                woff=lambda a: a.e(f"s_lshl_b32 s{S_WOFF}, s{S_J}, 7"), **base)
        f1 = Cfg(name="f1", TN=224, K=1024, Kx=1024, xsrc="fn", korder="fn", ldw=7168, S=3,
                 fcol=lambda wn, f: (wn*128 + 16*f) if f < 6 else (wn*16 + 96), orient=lambda f: "mn",
                 woff=lambda a: a.e(f"s_mul_i32 s{S_WOFF}, s{S_J}, 448"), **base)
        def woff2(a):
            a.e(f"s_and_b32 s{S_T}, s{S_J}, 7\ns_lshl_b32 s{S_WOFF}, s{S_T}, 8\ns_lshr_b32 s{S_T}, s{S_J}, 3\ns_mul_i32 s{S_T}, s{S_T}, {1792*2048}\ns_add_u32 s{S_WOFF}, s{S_WOFF}, s{S_T}")
        f2 = Cfg(name="f2", TN=128, K=1792, Kx=3584, xsrc="fn", korder="fn", ldw=2048, S=4,
                 fcol=lambda wn, f: (wn*64 + S("kh")*32 + 16*f) if f < 2 else (wn*64 + (S("kh") ^ 1)*32 + 16*(f-2)), orient=lambda f: "mn", woff=woff2, **base)
        for c in (o, f1, f2): c.xflag = "sc1"
        q.read_frac = self.o.get("rfq", 0.75); o.read_frac = self.o.get("rfo", 0.5); f1.read_frac = self.o.get("rf1", 0.9); f2.read_frac = self.o.get("rf2", 0.8)
        if self.o.get("own2", True): f2.rot = True; f2.gap = 3
        q.rot = True; f1.rot = True; q.rotpos = self.o.get("qrot", 2); f1.rotpos = 0
        return q, o, f1, f2

    def xoff_fn(self, a, c, wsbase, khalf=False):
        a.e(f"s_mul_i32 s{S_XOFF}, s{S_I}, {(c.Kx//64)*16384}\ns_add_u32 s{S_XOFF}, s{S_XOFF}, {wsbase}")
        if khalf:
            a.e(f"s_lshr_b32 s{S_T}, s{S_J}, 3\ns_mul_i32 s{S_T}, s{S_T}, {28*16384}\ns_add_u32 s{S_XOFF}, s{S_XOFF}, s{S_T}")

    def build(self):
        C, L = self.C, self.L
        E = Asm()
        q, o, f1, f2 = self.cfgs()
        self.vL = 1; vt = [2, 3, 4, 5, 6, 7]; tmp2 = (8, 9); self.vL16 = 10; self.vZero = 11
        self.vt = vt
        gq, go, g1, g2 = [G(c, C, None, self.vL, vt) for c in (q, o, f1, f2)]
        self.g = (gq, go, g1, g2)
        E.e(f"s_cmp_ge_u32 s2, 256\ns_cbranch_scc1 L_end")
        if self.o.get("codepf", True):
            E.e("s_getpc_b64 s[96:97]")
            E.label("L_pc")
            E.e("v_lshlrev_b32 v2, 7, v0\ns_mov_b32 s3, L_end-L_pc\nv_min_u32 v2, s3, v2\nglobal_load_dword v254, v2, s[96:97]")
        E.e(f"s_load_dwordx16 s[{S_PTR}:{S_PTR+15}], s[0:1], 0\ns_load_dwordx2 s[{S_PTR+16}:{S_PTR+17}], s[0:1], 64")
        if self.o["diag"]:
            E.e("v_mov_b32 v255, 0\nv_mov_b32 v253, 0"); self.stamp(E, 0)
        E.e(f"s_and_b32 s{S_T}, s2, 7\ns_lshr_b32 s{S_T2}, s2, 3")
        if self.o.get("xmap", 1):
            E.e(f"s_and_b32 s{S_I}, s{S_T}, 1\ns_lshr_b32 s{S_J}, s{S_T}, 1\ns_lshl_b32 s{S_I}, s{S_I}, 3\ns_lshl_b32 s{S_J}, s{S_J}, 2")
        else:
            E.e(f"s_lshr_b32 s{S_I}, s{S_T}, 2\ns_and_b32 s{S_J}, s{S_T}, 3\ns_lshl_b32 s{S_I}, s{S_I}, 3\ns_lshl_b32 s{S_J}, s{S_J}, 2")
        E.e(f"s_lshr_b32 s{S_T}, s{S_T2}, 2\ns_and_b32 s{S_T2}, s{S_T2}, 3\ns_add_u32 s{S_I}, s{S_I}, s{S_T}\ns_add_u32 s{S_J}, s{S_J}, s{S_T2}")
        E.e(f"v_and_b32 v{self.vL}, 63, v0\nv_lshrrev_b32 v2, 6, v0\ns_nop 0\nv_readfirstlane_b32 s{S_WV}, v2\nv_lshlrev_b32 v{self.vL16}, 4, v{self.vL}\nv_mov_b32 v{self.vZero}, 0\ns_nop 1")
        E.e(f"s_and_b32 s{S_LW}, s{S_WV}, 3\ns_lshr_b32 s{S_WM}, s{S_LW}, 1\ns_and_b32 s{S_WN}, s{S_LW}, 1")
        E.e(f"s_cmp_ge_u32 s{S_WV}, 4\ns_cbranch_scc1 L_loader")
        lv = Regs(12, 64)
        gq.alloc_loader(lv); go.alloc_loader(lv); g1.alloc_loader(lv); g2.alloc_loader(lv)
        self.lv_end = lv.n
        self.phase_q(gq, g1)
        self.attention()
        stop = self.o["stop_after"]
        self.phase_o(go)
        self.phase_f1(g1)
        self.phase_f2(g2)
        if self.o["diag"]:
            self.stamp(C, 15)
            C.e(f"s_cmp_lg_u32 s{S_WV}, 0\ns_cbranch_scc1 L_end")
            C.e(f"s_lshl_b32 s{S_T}, s2, 7\ns_add_u32 s{S_T}, s{S_T}, {common.WS_STAMP}\nv_lshlrev_b32 v2, 2, v{self.vL}")
            C.e(f"v_cmp_gt_u32 vcc, 32, v{self.vL}\ns_and_saveexec_b64 s[{S_EX}:{S_EX+1}], vcc")
            C.e(f"buffer_store_dword v255, v2, s[{S_WS}:{S_WS+3}], s{S_T} offen")
            if self.o.get("dbgout") is not None:
                C.e(f"s_cmp_lg_u32 s2, {self.o['dbgout']}\ns_cbranch_scc1 L_end")
                srd(C, S_DBG, *self.ptr(A_DBG), 256)
                C.e(f"v_readlane_b32 s{S_T}, v255, 0\ns_nop 3\nv_subrev_u32 v255, s{S_T}, v255\nv_cmp_gt_u32 vcc, 16, v{self.vL}\ns_nop 1\ns_and_b64 exec, exec, vcc\nv_cmp_lt_u32 vcc, 0, v{self.vL}\ns_nop 1\ns_and_b64 exec, exec, vcc")
                C.e(f"buffer_store_dword v255, v2, s[{S_DBG}:{S_DBG+3}], 0 offen")
        C.e("s_branch L_end")
        if self.o["diag"]:
            L.e(f"s_cmp_lg_u32 s{S_WV}, 4\ns_cbranch_scc1 L_end")
            L.e(f"s_lshl_b32 s{S_T}, s2, 9\ns_add_u32 s{S_T}, s{S_T}, {common.WS_STAMP + 131072}\nv_lshlrev_b32 v2, 2, v{self.vL}")
            L.e(f"buffer_store_dword v255, v2, s[{S_WS}:{S_WS+3}], s{S_T} offen\nbuffer_store_dword v253, v2, s[{S_WS}:{S_WS+3}], s{S_T} offen offset:256")
        txt = head(NAME) + E.text() + C.text() + "L_loader:\n" + L.text() + "  s_branch L_end\n" + self.A.text() + self.tail.text() + "L_end:\n  s_endpgm\n" + kd(NAME)
        return txt

    def srds_common(self, a):
        a.e("s_waitcnt lgkmcnt(0)")
        srd(a, S_WS, *self.ptr(A_WS), WS_BYTES, self.o.get('wsoff', 0))
        srd(a, S_DBG, *self.ptr(A_DBG), 256)

    def phase_q(self, g, g1):
        C, L, c = self.C, self.L, g.c
        vL, vt = self.vL, self.vt
        g.bind(L, vL, vt, (8, 9)); vm = VM(L)
        em = g.em
        L.e("s_setprio 1")
        g.setup_dma()
        if self.o.get("lpro"): self.lstamp("setup")
        L.e("s_waitcnt lgkmcnt(0)")
        srd(L, S_XSRD, *self.ptr(A_X), M*D*2)
        srd(L, S_WSRD, *self.ptr(A_WQKV), D*3*D*2)
        def issue(t):
            for ins in g.dma_list(t): L.e(ins)
            vm.iss(("st", t), c.nld)
        for ins in g.rot_init(): L.e(ins)
        L.e(f"s_mov_b32 s{S_WR}, 0")
        for s in range(2):
            issue(s); L.e(f"s_add_u32 s{S_WR}, s{S_WR}, {c.SB}")
            if self.o.get("lpro"): self.lstamp("iss")
        srd(L, S_WS, *self.ptr(A_WS), WS_BYTES, self.o.get('wsoff', 0)); srd(L, S_DBG, *self.ptr(A_DBG), 256)
        sv = Regs(64, 250)
        ones = sv.alloc(4, 4); wf = [sv.alloc(4, 4) for _ in range(8)]; sacc = [sv.alloc(4, 4) for _ in range(4)]
        vS = [sv.alloc() for _ in range(8)]; ldr = sv.alloc(32, 4)
        t0, t1, t2 = vt[0:3]
        L.e(f"v_lshlrev_b32 v{t0}, 2, v{vL}\nv_add_u32 v{t0}, {SD_CNT}, v{t0}\nv_cmp_gt_u32 vcc, 8, v{vL}\ns_and_saveexec_b64 s[{S_EX}:{S_EX+1}], vcc")
        L.lds_other(f"ds_write_b32 v{t0}, v{self.vZero}"); L.e(f"s_mov_b64 exec, s[{S_EX}:{S_EX+1}]")
        for k in range(4): L.e(f"v_mov_b32 v{ones+k}, 0x3f803f80")
        vL4 = sv.alloc(); rq = [sv.alloc() for _ in range(4)]
        L.e(f"v_lshlrev_b32 v{vL4}, 2, v{vL}")
        cls_q = self.csum_setup(g, 3, rq)
        csq_code = f"s_lshl_b32 s{S_T}, s{S_I}, 4\ns_add_u32 s{S_T}, s{S_T}, s{S_J}\ns_mul_i32 s{S_T2}, s{S_T}, 768\ns_mul_i32 s{S_T}, s{S_LW}, 192\ns_add_u32 s{S_T2}, s{S_T2}, s{S_T}\ns_add_u32 s{S_T2}, s{S_T2}, {WS_CSQ}"
        FLQ = 2 if self.o.get("flagsq", False) else 0
        if FLQ: self.lflag_init()
        if self.o.get("lpro"): self.lstamp("pre")
        vm.wait(("st", 0))
        if self.o.get("lpro"): self.lstamp("land")
        L.lds_drain(); self.bar_L_only()
        issue(2); L.e(f"s_mov_b32 s{S_WR}, 0")
        RP = c.rotpos
        if RP == 0: self.csum_reads(3, cls_q, rq, wf)
        vm.wait(("st", 1)); L.lds_drain(); self.bar_L_only()
        ns, S = c.nsteps, c.S
        def hook(t):
            if RP > 0 and t == RP - 1: self.csum_reads(3, cls_q, rq, wf)
            if t == RP: self.csum_finish(vm, 3, 12, ones, wf, sacc, vL4, csq_code)
            if t == RP + 3 and self.o.get("qsigL", True):
                if FLQ:
                    L.e(f"v_mov_b32 v{vS[3]}, {SD_FULL}"); self.lwait(vS[3], RP + 5, "qsig")
                self.signal(L, self.off_ij(F_Q), vS[0], vS[1], only_lw0=True); vm.iss("sig")
            if t == 1:
                L.e(f"v_mov_b32 v{vS[2]}, {SD_TOK}\nds_read_b32 v{vS[2]}, v{vS[2]}\ns_waitcnt lgkmcnt(0)\nv_readfirstlane_b32 s1, v{vS[2]}")
            if t == self.o.get("qpoll", 9):
                t0, t1 = vt[0:2]
                L.e(f"v_and_b32 v{t0}, 15, v{vL}\ns_lshl_b32 s{S_T}, s{S_I}, 4\nv_add_u32 v{t1}, s{S_T}, v{t0}\nv_lshlrev_b32 v{t0}, 4, v{t0}\nv_add_u32 v{t0}, s{S_J}, v{t0}")
                L.e(f"v_and_b32 v{vS[7]}, 16, v{vL}\nv_cmp_eq_u32 vcc, 0, v{vS[7]}\ns_nop 1\nv_cndmask_b32 v{vS[7]}, v{t0}, v{t1}, vcc\nv_lshlrev_b32 v{vS[7]}, 7, v{vS[7]}\nv_add_u32 v{vS[7]}, {F_Q}, v{vS[7]}")
                L.e(f"buffer_load_dword v{vS[6]}, v{vS[7]}, s[{S_WS}:{S_WS+3}], 0 offen sc1"); vm.iss("pollq")
            if t == 11:
                vm.wait("pollq")
                self.poll_test(L, vS[6])
                L.e("s_cbranch_scc1 L_qready")
                self.poll(L, S_WS, vS[7], vS[6], "q")
                L.label("L_qready")
                self.colsum_loads(L, vm, "qld", ldr, vS[1], vS[2], 12, 768, f"s_mul_i32 s{S_T2}, s{S_J}, 768\ns_mul_i32 s{S_T}, s{S_LW}, 192\ns_add_u32 s{S_T2}, s{S_T2}, s{S_T}\ns_add_u32 s{S_T2}, s{S_T2}, {WS_CSQ}")
                L.e(f"s_lshl_b32 s{S_T2}, s{S_I}, 7\ns_lshl_b32 s{S_T}, s{S_LW}, 5\ns_add_u32 s{S_T2}, s{S_T2}, s{S_T}\ns_lshl_b32 s{S_T2}, s{S_T2}, 3\ns_add_u32 s{S_T2}, s{S_T2}, {WS_ST1}")
                L.e(f"v_and_b32 v{vS[3]}, 31, v{vL}\nv_lshlrev_b32 v{vS[3]}, 3, v{vS[3]}\nbuffer_load_dwordx2 {vr(ldr+16,2)}, v{vS[3]}, s[{S_WS}:{S_WS+3}], s{S_T2} offen sc1")
                vm.iss("qld", 1)
            if t == 13:
                vm.wait("qld")
                if self.o.get("lowhooks", True): L.e("s_setprio 0")
                self.colsum_reduce(L, ldr, ldr+20, vS[1], 12, SD_CSQ, 192)
                if self.o.get("lowhooks", True): L.e("s_setprio 1")
                L.e(f"v_and_b32 v{vS[3]}, 31, v{vL}\ns_lshl_b32 s{S_T}, s{S_LW}, 5\nv_add_u32 v{vS[3]}, s{S_T}, v{vS[3]}\nv_lshlrev_b32 v{vS[3]}, 2, v{vS[3]}\nv_add_u32 v{vS[3]}, {SD_MEAN1}, v{vS[3]}")
                L.e(f"ds_write_b32 v{vS[3]}, v{ldr+16}\nds_write_b32 v{vS[3]}, v{ldr+17} offset:512")
                L.e("s_waitcnt lgkmcnt(0)"); L.lq = []
        for t in range(ns-1):
            if t + S <= ns-1:
                if FLQ and t > FLQ: self.lwait(46, t + 2, f"q{t}")
                issue(t+S); L.e(g.adv_slot(S_WR))
            hook(t)
            if t+2 <= ns-1 and ("st", t+2) in vm.q: vm.wait(("st", t+2))
            L.lds_drain()
            if FLQ and FLQ - 1 <= t <= ns-3: self.lfull(t + 3)
            if not FLQ or t < FLQ or t == ns-2:
                L.lds_drain(); self.bar_L_only()
            else: self.lstamp()
        g.bind(C, vL, vt, (8, 9))
        cv = Regs(12, 254); g.alloc_compute(cv)
        g.a = C
        C.e("s_setprio 3")
        a0 = g.acc[0][0]; xr = a0; un = a0 + 16; vS = [a0 + 48 + k for k in range(6)]
        C.e("s_waitcnt lgkmcnt(0)")
        self.stamp(C, 16)
        srd(C, S_XSRD, *self.ptr(A_X), M*D*2)
        srd(C, S_DBG, *self.ptr(A_DBG), 256)
        C.e(f"s_or_b32 s{S_T}, s2, s{S_LW}\ns_cmp_lg_u32 s{S_T}, 0\ns_cbranch_scc1 L_notok")
        C.e(f"s_memrealtime s[88:89]\ns_waitcnt lgkmcnt(0)\ns_or_b32 s88, s88, 1\nv_mov_b32 v{vt[0]}, s88")
        self.lane0(C, f"buffer_store_dword v{vt[0]}, v{self.vZero}, s[{S_DBG}:{S_DBG+3}], 0 offen sc1", "tok")
        C.label("L_notok")
        C.e(f"s_lshl_b32 s{S_T}, s{S_I}, 7\ns_lshl_b32 s{S_T2}, s{S_J}, 3\ns_add_u32 s{S_T}, s{S_T}, s{S_T2}\ns_lshl_b32 s{S_T2}, s{S_LW}, 1\ns_add_u32 s71, s{S_T}, s{S_T2}\ns_lshl_b32 s{S_T}, s71, 11")
        for r in range(2):
            for p in range(2):
                C.e(f"buffer_load_dwordx4 {vr(xr+8*r+4*p,4)}, v{self.vL16}, s[{S_XSRD}:{S_XSRD+3}], s{S_T} offen offset:{r*2048+p*1024}")
        slabpf = self.o.get("slabpf", False)
        if slabpf:
            t0, t1, t2 = vt[0:3]
            mg3, sh3 = magic_div(3, 256)
            srd(C, S_E3, *self.ptr(A_WQKV), D*3*D*2)
            C.e(f"s_mul_i32 s{S_T}, s{S_LW}, 48\nv_min_u32 v{t0}, 47, v{vL}\nv_add_u32 v{t0}, s{S_T}, v{t0}\nv_mul_u32_u24 v{t1}, {mg3}, v{t0}\nv_lshrrev_b32 v{t1}, {sh3}, v{t1}")
            C.e(f"v_mul_u32_u24 v{t2}, 3, v{t1}\nv_sub_u32 v{t0}, v{t0}, v{t2}\nv_lshlrev_b32 v{t0}, 11, v{t0}\nv_mul_u32_u24 v{t1}, 6144, v{t1}\nv_add_u32 v{t0}, v{t0}, v{t1}")
            C.e(f"s_mul_i32 s{S_T}, s{S_I}, {64*6144}\ns_lshl_b32 s{S_T2}, s{S_J}, 7\ns_add_u32 s{S_T}, s{S_T}, s{S_T2}\nbuffer_load_dword v254, v{t0}, s[{S_E3}:{S_E3+3}], s{S_T} offen")
        srd(C, S_WS, *self.ptr(A_WS), WS_BYTES, self.o.get('wsoff', 0))
        g.setup_reads()
        C.e(f"s_lshl_b32 s{S_T}, s2, 2\ns_add_u32 s{S_T}, s{S_T}, s{S_LW}\ns_mul_i32 s{S_T2}, s{S_T}, 43691\ns_lshr_b32 s{S_T2}, s{S_T2}, 19\ns_mul_i32 s{S_T2}, s{S_T2}, 12\ns_sub_u32 s{S_T}, s{S_T}, s{S_T2}\ns_add_u32 s70, s{S_T}, 1" if False else "s_nop 0")
        self.stamp(C, 17)
        C.e(f"s_waitcnt vmcnt({1 if slabpf else 0})")
        self.stamp(C, 18)
        vtok = cv.alloc()
        C.e(f"buffer_load_dword v{vtok}, v{self.vZero}, s[{S_DBG}:{S_DBG+3}], 0 offen sc1")
        for r in range(2):
            for d in range(8):
                C.e(f"v_lshlrev_b32 v{un+16*r+2*d}, 16, v{xr+8*r+d}\nv_and_b32 v{un+16*r+2*d+1}, 0xffff0000, v{xr+8*r+d}")
        def tree(dst, src):
            pass
        for r in range(2): C.e(f"v_add_f32 v{vS[r]}, v{un+16*r}, v{un+16*r+1}\nv_add_f32 v{vS[2+r]}, v{un+16*r+2}, v{un+16*r+3}")
        for k in range(4, 16, 2):
            for r in range(2): C.e(f"v_add_f32 v{vS[r]}, v{vS[r]}, v{un+16*r+k}\nv_add_f32 v{vS[2+r]}, v{vS[2+r]}, v{un+16*r+k+1}")
        for r in range(2): C.e(f"v_add_f32 v{vS[r]}, v{vS[r]}, v{vS[2+r]}")
        def allred2(x0, x1, ta, tb):
            for p in ["quad_perm:[1,0,3,2]", "quad_perm:[2,3,0,1]", "row_half_mirror", "row_mirror"]:
                C.e("s_nop 0")
                for x in (x0, x1): C.e(f"v_add_f32_dpp v{x}, v{x}, v{x} {p} row_mask:0xf bank_mask:0xf")
            for sw in ("v_permlane16_swap_b32", "v_permlane32_swap_b32"):
                C.e(f"v_mov_b32 v{ta}, v{x0}\nv_mov_b32 v{tb}, v{x1}\ns_nop 0\n{sw} v{ta}, v{x0}\n{sw} v{tb}, v{x1}\ns_nop 0\nv_add_f32 v{x0}, v{x0}, v{ta}\nv_add_f32 v{x1}, v{x1}, v{tb}")
        C.e("s_nop 0")
        allred2(vS[0], vS[1], vS[4], vS[5])
        for r in range(2): C.e(f"v_mul_f32 v{vS[r]}, {fhex(1/1024)}, v{vS[r]}")
        for k in range(16):
            for r in range(2): C.e(f"v_sub_f32 v{un+16*r+k}, v{un+16*r+k}, v{vS[r]}")
        for r in range(2): C.e(f"v_mul_f32 v{vS[2+r]}, v{un+16*r}, v{un+16*r}")
        for k in range(1, 16):
            for r in range(2): C.e(f"v_fmac_f32 v{vS[2+r]}, v{un+16*r+k}, v{un+16*r+k}")
        C.e("s_nop 0")
        allred2(vS[2], vS[3], vS[4], vS[5])
        for r in range(2): C.e(f"v_mul_f32 v{vS[2+r]}, {fhex(1/1024)}, v{vS[2+r]}\nv_add_f32 v{vS[2+r]}, {fhex(EPS)}, v{vS[2+r]}")
        for r in range(2): C.e(f"v_rsq_f32 v{vS[2+r]}, v{vS[2+r]}")
        C.e(f"v_mov_b32 v{un}, v{vS[0]}\nv_mov_b32 v{un+2}, v{vS[1]}\nv_mov_b32 v{un+1}, v{vS[2]}\nv_mov_b32 v{un+3}, v{vS[3]}")
        C.e(f"s_lshl_b32 s{S_T}, s71, 3\ns_add_u32 s{S_T}, s{S_T}, {WS_ST1}")
        self.lane0(C, f"buffer_store_dwordx4 {vr(un,4)}, v{self.vZero}, s[{S_WS}:{S_WS+3}], s{S_T} offen sc1", "st1")
        self.stamp(C, 19)
        nextra = 0
        t0, t1 = vt[0:2]
        if self.o.get("sentinel", True) and self.o.get("markat", "o") == "q":
            mk4 = a0 + 60
            for k in range(4): C.e(f"v_mov_b32 v{mk4+k}, -1")
            C.e(f"s_lshl_b32 s{S_T}, s{S_I}, 4\ns_add_u32 s{S_T}, s{S_T}, s{S_J}\ns_lshl_b32 s{S_T}, s{S_T}, 15\ns_lshl_b32 s{S_T2}, s{S_LW}, 13\ns_add_u32 s{S_T}, s{S_T}, s{S_T2}\ns_add_u32 s{S_T}, s{S_T}, {WS_XCH}")
            for n in range(8):
                if n == 4: C.e(f"s_add_u32 s{S_T}, s{S_T}, 4096")
                C.e(f"buffer_store_dwordx4 {vr(mk4,4)}, v{self.vL16}, s[{S_WS}:{S_WS+3}], s{S_T} offen offset:{(n & 3)*1024} sc1"); nextra += 1
        if self.o.get("tlb", True):
            C.e(f"v_lshlrev_b32 v{t0}, 21, v{vL}")
            for arg, size in ((A_WQKV, D*3*D*2), (A_X, M*D*2), (A_WS, 54*MB), (A_WO, D*D*2), (A_W1, D*DFF*2), (A_W2, DFF*D*2), (A_OUT, M*D*2)):
                p = self.ptr(arg)[0]
                C.e(f"v_min_u32 v{t1}, {hex(size - 4)}, v{t0}\nglobal_load_dword v254, v{t1}, s[{p}:{p+1}]"); nextra += 1
        pfo = cv.alloc(); pf1 = cv.alloc()
        C.e(f"s_lshl_b32 s{S_T}, s2, 2\ns_add_u32 s{S_T}, s{S_T}, s{S_LW}")
        C.e(f"s_lshl_b32 s{S_T2}, s{S_T}, 4\nv_and_b32 v{pfo}, 15, v{vL}\nv_add_u32 v{pfo}, s{S_T2}, v{pfo}\nv_lshlrev_b32 v{pfo}, 7, v{pfo}")
        C.e(f"s_mul_i32 s{S_T2}, s{S_T}, 56\nv_min_u32 v{pf1}, 55, v{vL}\nv_add_u32 v{pf1}, s{S_T2}, v{pf1}\nv_lshlrev_b32 v{pf1}, 7, v{pf1}")
        def hookB(a):
            p = self.ptr(A_WO)[0]; a.e(f"global_load_dword v254, v{pfo}, s[{p}:{p+1}]")
            if self.o.get("pf_w1", False):
                p = self.ptr(A_W1)[0]; a.e(f"global_load_dword v254, v{pf1}, s[{p}:{p+1}]")
        C.e(f"s_and_b32 s{S_T}, s2, 56\ns_lshr_b32 s{S_T}, s{S_T}, 3\ns_add_u32 s71, s{S_T}, 3")
        def hookS(a):
            a.e(f"s_cmp_lg_u32 s{S_LW}, 0\ns_cbranch_scc1 L_nosigq")
            self.signal(a, self.off_ij(F_Q), vt[0], vt[1])
            a.label("L_nosigq")
        hk = {} if self.o.get("qsigL", True) else {14 - (3 + c.rotpos): hookS}
        if self.o["pf_weights"]: hk["s71"] = hookB
        def peel_end():
            C.e(f"s_waitcnt vmcnt({nextra})")
            self.poll_test(C, vtok, token=False)
            C.e("s_cbranch_scc1 L_tokready")
            self.poll(C, S_DBG, self.vZero, vtok, "tok", token=False)
            C.label("L_tokready")
            C.e(f"v_readfirstlane_b32 s1, v{vtok}\nv_mov_b32 v{vt[0]}, {SD_TOK}\nds_write_b32 v{vt[0]}, v{vtok}\ns_waitcnt lgkmcnt(0)")
        self.cloop(g, stamps=(1, 2), hooks=hk, peel_first=peel_end, flags=(2 if self.o.get("flagsq", False) else 0), cv=cv)
        self.epi_q(g, cv)

    def bar_L_only(self):
        self.L.e("s_barrier"); self.lstamp()
    def lstamp(self, tag=''):
        if self.o["diag"] and self.o.get("lst") and self.nl < 128:
            self.L.e(f"s_memrealtime s[88:89]\ns_waitcnt lgkmcnt(0)\nv_writelane_b32 v{255 - 2*(self.nl//64)}, s88, {self.nl % 64}"); self.nl += 1; self.L.lq = []
            self.lnames.append(tag)
    def setup_w_only(self, g):
        c, a, em = g.c, g.a, g.em
        l, lw = g.l, g.lw
        cpr = c.TN//8
        mg, sh = magic_div(cpr, c.nWld*256)
        for n in range(c.nWld):
            flat = lw*(c.nWld*64) + l + n*64
            vr_, vp = g.v_tmp2
            em.vemit((flat*mg) >> sh, vr_); em.vr["row"] = vr_; row = V("row")
            em.vemit(flat - row*cpr, vp); em.vr["p"] = vp; p = V("p")
            ch = p ^ g.wswz(row)
            colb = ((ch >> 3) << 11) + ((ch & 7) << 4) if c.qkvseg else ch << 4
            em.vemit(row*c.ldw + colb - (n % 4)*1024, g.vWsrc[n])

    def xgroups(self, a, regs, tmp):
        for sw in ("v_permlane16_swap_b32", "v_permlane32_swap_b32"):
            for k, r in enumerate(regs): a.e(f"v_mov_b32 v{tmp+k}, v{r}")
            a.e("s_nop 1")
            for k, r in enumerate(regs): a.e(f"{sw} v{tmp+k}, v{r}")
            a.e("s_nop 1")
            for k, r in enumerate(regs): a.e(f"v_add_f32 v{r}, v{r}, v{tmp+k}")
    def colsum_loads(self, a, vm, tag, dst, vaddr, vtmp, nlanes, rowbytes, base_code):
        vL = self.vL
        a.e(base_code)
        a.e(f"v_lshrrev_b32 v{vaddr}, 4, v{vL}\nv_mul_u32_u24 v{vaddr}, {16*rowbytes}, v{vaddr}\nv_and_b32 v{vtmp}, 15, v{vL}\nv_cmp_gt_u32 vcc, {nlanes}, v{vtmp}\nv_lshlrev_b32 v{vtmp}, 4, v{vtmp}\nv_add_u32 v{vaddr}, v{vaddr}, v{vtmp}\nv_mov_b32 v{vtmp}, {hex(OOB)}\nv_cndmask_b32 v{vaddr}, v{vtmp}, v{vaddr}, vcc")
        for n in range(4):
            a.e(f"buffer_load_dwordx4 {vr(dst+4*n,4)}, v{vaddr}, s[{S_WS}:{S_WS+3}], s{S_T2} offen sc1\ns_add_u32 s{S_T2}, s{S_T2}, {4*16*rowbytes}")
        vm.iss(tag, 4)
    def colsum_reduce(self, a, src, tmp, vaddr, nlanes, lds_base, wave_bytes):
        vL = self.vL
        for k in range(4):
            a.e(f"v_add_f32 v{src+k}, v{src+k}, v{src+4+k}\nv_add_f32 v{src+8+k}, v{src+8+k}, v{src+12+k}")
        for k in range(4): a.e(f"v_add_f32 v{src+k}, v{src+k}, v{src+8+k}")
        self.xgroups(a, [src+k for k in range(4)], tmp)
        a.e(f"s_mul_i32 s{S_T}, s{S_LW}, {wave_bytes}\ns_add_u32 s{S_T}, s{S_T}, {lds_base}\nv_lshlrev_b32 v{vaddr}, 4, v{vL}\nv_add_u32 v{vaddr}, s{S_T}, v{vaddr}")
        a.e(f"v_cmp_gt_u32 vcc, {nlanes}, v{vL}\ns_and_saveexec_b64 s[{S_EX}:{S_EX+1}], vcc\nds_write_b128 v{vaddr}, {vr(src,4)}\ns_mov_b64 exec, s[{S_EX}:{S_EX+1}]")
    def slab_plan(self, gg, per):
        cc = gg.c; l = gg.l; lw = gg.lw
        def ex(k, ks, j):
            row = gg.wrow(ks, j)
            ch = (lw*per + k)*2 + ((l >> 1) & 1)
            return row*cc.RS + ((ch ^ gg.wswz(row)) << 4) + (l & 1)*8 + cc.XB + cc.rotpos*cc.SB
        keys = [(k, ks, j) for k in range(per) for ks in range(2) for j in range(2)]
        base = []; cls = {}
        for key in keys:
            t = [ex(*key).ev({"l": ll, "lw": w}) for w in range(4) for ll in range(64)]
            for ci, (bk, bt) in enumerate(base):
                ds = {p - q_ for p, q_ in zip(t, bt)}
                if len(ds) == 1 and 0 <= min(ds) < 65536: cls[key] = (ci, ds.pop()); break
            else:
                base.append((key, t)); cls[key] = (len(base)-1, 0)
        for w in range(4):
            for key in keys:
                assert banks.conflicts_b64([ex(*key).ev({"l": ll, "lw": w}) for ll in range(64)]) == 0
        return [ex(*b[0]) for b in base], cls
    def csum_setup(self, gg, per, regs):
        bases, cls = self.slab_plan(gg, per)
        assert len(bases) <= len(regs)
        gg.bind(self.L, self.vL, self.vt, (8, 9))
        for b, r in zip(bases, regs): gg.em.vemit(b, r)
        return cls
    def csum_reads(self, per, cls, regs, wf):
        L = self.L
        for k in range(per):
            for ks in range(2):
                for j in range(2):
                    ci, imm = cls[(k, ks, j)]; d = wf[2*k+ks] + 2*j
                    L.lds_rd(f"ds_read_b64_tr_b16 {vr(d,2)}, v{regs[ci]} offset:{imm}", rng(d, 2))
    def csum_finish(self, vm, per, nt_total, ones, wf, sacc, vL4, colbase_code):
        L = self.L
        for k in range(4): L.e(f"v_mov_b32 v{ones+k}, 0x3f803f80")
        L.e(colbase_code)
        for k in range(per): L.e(f"v_mfma_f32_16x16x32_bf16 {vr(sacc[k],4)}, {vr(ones,4)}, {vr(wf[2*k],4)}, 0")
        for k in range(per): L.e(f"v_mfma_f32_16x16x32_bf16 {vr(sacc[k],4)}, {vr(ones,4)}, {vr(wf[2*k+1],4)}, {vr(sacc[k],4)}")
        L.e(f"v_cmp_gt_u32 vcc, 16, v{self.vL}\ns_nop 7\ns_and_saveexec_b64 s[{S_EX}:{S_EX+1}], vcc")
        for k in range(per):
            if (3*per + k) == nt_total:
                L.e(f"s_cmp_eq_u32 s{S_LW}, 3\ns_cselect_b32 s{S_T2}, {hex(OOB - 4096)}, s{S_T2}")
            L.e(f"buffer_store_dword v{sacc[k]}, v{vL4}, s[{S_WS}:{S_WS+3}], s{S_T2} offen offset:{k*64} sc1"); vm.iss("cst")
        L.e(f"s_mov_b64 exec, s[{S_EX}:{S_EX+1}]")

    def prefetch_first(self, a, cv):
        vL = self.vL; t0, t1, t2 = self.vt[0:3]; d = cv.alloc(4)
        srd(a, S_XSRD, *self.ptr(A_X), M*D*2); srd(a, S_WSRD, *self.ptr(A_WQKV), D*3*D*2)
        a.e(f"s_lshr_b32 s{S_T}, s2, 3\ns_lshl_b32 s{S_T}, s{S_T}, 2\ns_add_u32 s{S_T}, s{S_T}, s{S_LW}")
        a.e(f"s_mul_i32 s{S_T2}, s{S_T}, 96")
        mg, sh = magic_div(12, 12288); mg3, sh3 = magic_div(3, 12)
        a.e(f"s_lshr_b32 s{S_T3}, s{S_J}, 2\ns_lshl_b32 s{S_T3}, s{S_T3}, 9")
        for n in range(2):
            a.e(f"v_add_u32 v{t0}, s{S_T2}, v{vL}\nv_add_u32 v{t0}, {48*n}, v{t0}")
            a.e(f"v_mul_u32_u24 v{t1}, {mg}, v{t0}\nv_lshrrev_b32 v{t1}, {sh}, v{t1}\nv_mul_u32_u24 v{t2}, 12, v{t1}\nv_sub_u32 v{t0}, v{t0}, v{t2}")
            a.e(f"v_mul_u32_u24 v{t2}, {mg3}, v{t0}\nv_lshrrev_b32 v{t2}, {sh3}, v{t2}")
            a.e(f"v_mul_u32_u24 v{t1}, 6144, v{t1}\nv_lshlrev_b32 v{d+2}, 7, v{t2}\nv_add_u32 v{t1}, v{t1}, v{d+2}")
            a.e(f"v_mul_u32_u24 v{t2}, 3, v{t2}\nv_sub_u32 v{t0}, v{t0}, v{t2}\nv_lshlrev_b32 v{t0}, 11, v{t0}\nv_add_u32 v{t1}, v{t1}, v{t0}")
            a.e(f"v_cmp_gt_u32 vcc, 48, v{vL}\nv_mov_b32 v{t0}, 0x7ffffff0\ns_nop 0\nv_cndmask_b32 v{t1}, v{t0}, v{t1}, vcc")
            a.e(f"buffer_load_dword v254, v{t1}, s[{S_WSRD}:{S_WSRD+3}], s{S_T3} offen")
        a.e(f"s_lshl_b32 s{S_T2}, s{S_T}, 7\ns_lshr_b32 s{S_T3}, s{S_I}, 3\ns_lshl_b32 s{S_T3}, s{S_T3}, 21")
        for n in range(2):
            a.e(f"v_add_u32 v{t0}, s{S_T2}, v{vL}\nv_add_u32 v{t0}, {64*n}, v{t0}\nv_and_b32 v{t1}, 1023, v{t0}\nv_lshlrev_b32 v{t1}, 11, v{t1}\nv_lshrrev_b32 v{t0}, 10, v{t0}\nv_lshlrev_b32 v{t0}, 7, v{t0}\nv_add_u32 v{t1}, v{t1}, v{t0}")
            a.e(f"buffer_load_dword v254, v{t1}, s[{S_XSRD}:{S_XSRD+3}], s{S_T3} offen")
    def prefetch_weights(self, a):
        vL = self.vL; t0, t1 = self.vt[0:2]
        a.e(f"s_lshl_b32 s{S_T}, s2, 2\ns_add_u32 s{S_T}, s{S_T}, s{S_LW}")
        for (arg, nbytes, per, d) in ((A_WO, D*D*2, 16, 2), (A_W1, D*DFF*2, 56, 3)) if self.o.get("pf_w1", True) else ((A_WO, D*D*2, 16, 2),):
            srd(a, S_E3, *self.ptr(arg), nbytes)
            a.e(f"s_mul_i32 s{S_T2}, s{S_T}, {per}\nv_add_u32 v{t0}, s{S_T2}, v{vL}\nv_lshlrev_b32 v{t0}, 7, v{t0}\nv_cmp_gt_u32 vcc, {per}, v{vL}\nv_mov_b32 v{t1}, 0x7ffffff0\ns_nop 0\nv_cndmask_b32 v{t0}, v{t1}, v{t0}, vcc")
            a.e(f"buffer_load_dword v254, v{t0}, s[{S_E3}:{S_E3+3}], 0 offen")
    def prefetch_w2(self, a):
        vL = self.vL; t0, t1 = self.vt[0:2]
        a.e(f"s_lshl_b32 s{S_T}, s2, 2\ns_add_u32 s{S_T}, s{S_T}, s{S_LW}")
        srd(a, S_E3, *self.ptr(A_W2), DFF*D*2)
        a.e(f"s_mul_i32 s{S_T2}, s{S_T}, 56\nv_add_u32 v{t0}, s{S_T2}, v{vL}\nv_lshlrev_b32 v{t0}, 7, v{t0}\nv_cmp_gt_u32 vcc, 56, v{vL}\nv_mov_b32 v{t1}, 0x7ffffff0\ns_nop 0\nv_cndmask_b32 v{t0}, v{t1}, v{t0}, vcc")
        a.e(f"buffer_load_dword v254, v{t0}, s[{S_E3}:{S_E3+3}], 0 offen")

    def cloop(self, g, stamps, hooks=None, peel_first=None, ns=None, first=True, sfx="", flags=0, cv=None):
        c, a = g.c, g.a
        NG = c.NSUB//c.G; S = c.S; ns = ns or c.nsteps; nm = c.name + sfx
        if flags:
            vF = cv.alloc(4, 4); vM = cv.alloc(); vP = cv.alloc(); vFA = cv.alloc(); vFR = cv.alloc()
            a.e(f"v_mov_b32 v{vFA}, {SD_FULL}\ns_lshl_b32 s{S_T}, s{S_LW}, 2\ns_add_u32 s{S_T}, s{S_T}, {SD_FREE}\nv_mov_b32 v{vFR}, s{S_T}\nv_mov_b32 v{vP}, 0")
            a.lds_other(f"ds_write_b32 v{vFR}, v{vP}")
        a.e(f"s_mov_b32 s{S_RD}, 0")
        for ins in g.set_read_addrs(): a.e(ins)
        a.lds_drain(); a.e("s_setprio 0\ns_barrier")
        if stamps[0] is not None: self.stamp(a, stamps[0])
        for r in g.reads(0, 0): a.lds_rd(*r)
        st = 0
        for gi in range(NG-1):
            g.group(st, g.reads(st ^ 1, gi+1), [], first=(first and gi == 0)); st ^= 1
        a.e(g.adv_slot(S_RD))
        for ins in g.set_read_addrs(): a.e(ins)
        a.lds_drain(); a.e("s_barrier")
        par = st
        def body(loopctl=False):
            st = par
            for gi in range(NG):
                late = []; extra = []; tail = []; reads = g.reads(st ^ 1, gi)
                if gi == 0 and loopctl and hooks:
                    for cnt in hooks: extra.append(f"s_cmp_eq_u32 s{S_CNT}, {cnt}\ns_cbranch_scc1 L_hk_{nm}_{cnt}\nL_hkb_{nm}_{cnt}:")
                if gi == NG-1:
                    late.append(g.adv_slot(S_RD)); late += g.set_read_addrs()
                    ctl = f"s_sub_u32 s{S_CNT}, s{S_CNT}, 1\ns_cmp_lg_u32 s{S_CNT}, 0"
                    if loopctl and flags:
                        reads = reads + [(f"ds_read_b128 {vr(vF,4)}, v{vFA}", rng(vF, 4))]
                        tail = [f"v_min3_u32 v{vM}, v{vF}, v{vF+1}, v{vF+2}\nv_mov_b32 v{vP}, s{S_TG}",
                                f"v_min_u32 v{vM}, v{vM}, v{vF+3}",
                                (f"ds_write_b32 v{vFR}, v{vP}",),
                                f"v_readfirstlane_b32 s{S_T4}, v{vM}",
                                f"s_nop 0\ns_cmp_ge_u32 s{S_T4}, s{S_TG}\ns_cbranch_scc0 L_slow_{nm}\nL_slowb_{nm}:",
                                f"s_add_u32 s{S_TG}, s{S_TG}, 1\n" + ctl]
                    elif loopctl: late.append(ctl)
                g.group(st, reads, extra, late=late, tail=tail); st ^= 1
            if not (loopctl and flags): a.lds_drain()
        nb = ns - 2
        npeel = flags if flags else (1 if peel_first else 0)
        for p in range(npeel):
            body(False)
            if p == 0 and peel_first: peel_first()
            a.e("s_barrier"); nb -= 1
        if nb > 0 and flags:
            a.e(f"s_mov_b32 s{S_CNT}, {nb}\ns_mov_b32 s{S_TG}, {npeel + 3}")
            a.label(f"L_loop_{nm}")
            lq0 = list(a.lq)
            body(True)
            a.e(f"s_cbranch_scc1 L_loop_{nm}")
            t = self.tail
            t.label(f"L_slow_{nm}")
            t.e(f"s_mov_b32 s{S_T3}, {POLL_MAX}")
            t.label(f"L_slowl_{nm}")
            t.e(f"ds_read_b128 {vr(vF,4)}, v{vFA}\ns_waitcnt lgkmcnt(0)\nv_min3_u32 v{vM}, v{vF}, v{vF+1}, v{vF+2}\nv_min_u32 v{vM}, v{vM}, v{vF+3}\ns_nop 0\nv_readfirstlane_b32 s{S_T4}, v{vM}\ns_nop 2")
            t.e(f"s_cmp_ge_u32 s{S_T4}, s{S_TG}\ns_cbranch_scc1 L_slowb_{nm}\ns_sub_u32 s{S_T3}, s{S_T3}, 1\ns_cmp_lg_u32 s{S_T3}, 0\ns_cbranch_scc1 L_slowl_{nm}\ns_branch L_slowb_{nm}")
        elif nb > 0:
            a.e(f"s_mov_b32 s{S_CNT}, {nb}\ns_branch L_loop_{nm}")
            a.label(f"L_top_{nm}"); a.e("s_barrier"); a.label(f"L_loop_{nm}")
            body(True)
            a.e(f"s_cbranch_scc1 L_top_{nm}\ns_barrier")
        body(False); a.e("s_barrier")
        g.group(par, [], [])
        a.e("s_setprio 3\ns_nop 6")
        if stamps[1] is not None: self.stamp(a, stamps[1])
        for cnt, fn in (hooks or {}).items():
            t = self.tail
            t.label(f"L_hk_{nm}_{cnt}"); fn(t); t.e(f"s_branch L_hkb_{nm}_{cnt}")

    def lflag_init(self):
        L = self.L
        L.e(f"s_lshl_b32 s{S_T}, s{S_LW}, 2\ns_add_u32 s{S_T}, s{S_T}, {SD_FULL}\nv_mov_b32 v45, s{S_T}\nv_mov_b32 v46, {SD_FREE}\nv_mov_b32 v47, 0")
        L.lds_other("ds_write_b32 v45, v47")
    def lfull(self, val):
        L = self.L
        L.e(f"v_mov_b32 v47, {val}"); L.lds_other("ds_write_b32 v45, v47")
    def lwait(self, addr_reg, target, label):
        L = self.L
        L.e(f"s_setprio {self.o.get('lspinprio', 0)}\ns_mov_b32 s{S_T3}, {POLL_MAX}")
        L.label(f"L_lw_{label}")
        L.e(f"ds_read_b128 v[40:43], v{addr_reg}\ns_waitcnt lgkmcnt(0)\nv_min3_u32 v44, v40, v41, v42\nv_min_u32 v44, v44, v43\ns_nop 0\nv_readfirstlane_b32 s{S_T4}, v44\ns_nop 2")
        L.e(f"s_cmp_ge_u32 s{S_T4}, {target}\ns_cbranch_scc1 L_lwd_{label}\ns_sleep {self.o.get('lsleep', 1)}\ns_sub_u32 s{S_T3}, s{S_T3}, 1\ns_cmp_lg_u32 s{S_T3}, 0\ns_cbranch_scc1 L_lw_{label}")
        L.label(f"L_lwd_{label}"); L.lq = []; L.e("s_setprio 1")

    def epi_q(self, g, cv):
        C, L, c = self.C, self.L, g.c
        a = C; vL = self.vL; t0, t1, t2, t3, t4, t5 = self.vt
        em = g.em; l = g.l; wm, wn = g.wm, g.wn
        fr = g.frag0
        mu = fr; rs = fr+4; cs = fr+8; pk = fr+24; st = fr+32
        va = fr+64; vb = fr+65; vo = fr+66; vk = fr+67; sc = fr+68
        gq = l >> 4
        em.vemit((wm*64 + (l & 15))*4 + SD_MEAN1, va)
        for x in range(4):
            a.lds_rd(f"ds_read_b32 v{mu+x}, v{va} offset:{x*64}", [mu+x])
            a.lds_rd(f"ds_read_b32 v{rs+x}, v{va} offset:{512+x*64}", [rs+x])
        em.vemit((wn*32 + gq*4)*4 + SD_CSQ, vb)
        def cs_off(f): return (64*(f//2) + 16*(f % 2))*4
        for n, f in enumerate((2, 3, 0, 1)):
            a.lds_rd(f"ds_read_b128 {vr(cs+4*n,4)}, v{vb} offset:{cs_off(f)}", rng(cs+4*n, 4))
        csr = {2: cs, 3: cs+4, 0: cs+8, 1: cs+12}
        em.vemit(wn*49152 + l*16, vk)
        a.e(f"s_lshl_b32 s{S_T}, s{S_I}, 4\ns_add_u32 s{S_T}, s{S_T}, s{S_J}\ns_lshl_b32 s{S_T}, s{S_T}, 15\ns_lshl_b32 s{S_T2}, s{S_WN}, 14\ns_add_u32 s{S_T}, s{S_T}, s{S_T2}\ns_add_u32 s71, s{S_T}, {WS_KV}")
        def fold_mn(x, f, scale_reg):
            acc = g.acc[x][f]; c0 = csr[f]
            for p in range(2):
                a.e(f"v_pk_fma_f32 {vr(acc+2*p,2)}, {vr(mu+(x & ~1),2)}, {vr(c0+2*p,2)}, {vr(acc+2*p,2)} op_sel:[{x & 1},0,0] op_sel_hi:[{x & 1},1,1] neg_lo:[1,0,0] neg_hi:[1,0,0]")
            for p in range(2):
                a.e(f"v_pk_mul_f32 {vr(acc+2*p,2)}, {vr(scale_reg+(x & ~1),2)}, {vr(acc+2*p,2)} op_sel:[{x & 1},0] op_sel_hi:[{x & 1},1]")
        def pack2(dst, accA, accB):
            a.e(f"v_cvt_pk_bf16_f32 v{dst}, v{accA}, v{accA+1}\nv_cvt_pk_bf16_f32 v{dst+1}, v{accA+2}, v{accA+3}")
            a.e(f"v_cvt_pk_bf16_f32 v{dst+2}, v{accB}, v{accB+1}\nv_cvt_pk_bf16_f32 v{dst+3}, v{accB+2}, v{accB+3}")
        a.need(list(rng(mu, 8)) + list(rng(cs, 8)))
        a.e(f"s_lshl_b32 s{S_T3}, s{S_WM}, 12")
        a.e(f"v_add_u32 v{vo}, s{S_T3}, v{vk}")
        a.e(f"s_add_u32 s{S_T4}, s71, s{S_T3}")
        for x in range(4):
            fold_mn(x, 2, rs); fold_mn(x, 3, rs)
            p = pk + 4*(x & 1)
            pack2(p, g.acc[x][2], g.acc[x][3])
            a.e(f"buffer_store_dwordx4 {vr(p,4)}, v{self.vL16}, s[{S_WS}:{S_WS+3}], s{S_T4} offen offset:{x*1024} sc1")
            a.lds_other(f"ds_write_b128 v{vo}, {vr(p,4)} offset:{AT_K(0) + 2*8192 + x*1024}")
        em.vemit((wn*32 + (l & 15))*4 + SD_CSQ + 128*4, va)
        a.lds_rd(f"ds_read_b32 v{sc}, v{va}", [sc]); a.lds_rd(f"ds_read_b32 v{sc+1}, v{va} offset:64", [sc+1])
        em.vemit((wm*64 + gq*4)*4 + SD_MEAN1, vb)
        for x in range(4):
            a.lds_rd(f"ds_read_b128 {vr(st+4*x,4)}, v{vb} offset:{x*64}", rng(st+4*x, 4))
            a.lds_rd(f"ds_read_b128 {vr(st+16+4*x,4)}, v{vb} offset:{512+x*64}", rng(st+16+4*x, 4))
        a.e(f"s_lshl_b32 s{S_T3}, s{S_WM}, 12\ns_add_u32 s{S_T4}, s71, s{S_T3}\ns_add_u32 s{S_T4}, s{S_T4}, 8192")
        for xi in range(2):
            a.need(list(rng(st+8*xi, 8)) + list(rng(st+16+8*xi, 8)) + [sc, sc+1])
            for dl in range(2):
                for x in (2*xi, 2*xi+1):
                    acc = g.acc[x][4+dl]
                    for p in range(2):
                        a.e(f"v_pk_fma_f32 {vr(acc+2*p,2)}, {vr(st+4*x+2*p,2)}, {vr(sc,2)}, {vr(acc+2*p,2)} op_sel:[0,{dl},0] op_sel_hi:[1,{dl},1] neg_lo:[1,0,0] neg_hi:[1,0,0]")
                    for p in range(2):
                        a.e(f"v_pk_mul_f32 {vr(acc+2*p,2)}, {vr(st+16+4*x+2*p,2)}, {vr(acc+2*p,2)}")
                p = pk + 4*dl
                pack2(p, g.acc[2*xi][4+dl], g.acc[2*xi+1][4+dl])
                a.e(f"buffer_store_dwordx4 {vr(p,4)}, v{self.vL16}, s[{S_WS}:{S_WS+3}], s{S_T4} offen offset:{(xi*2+dl)*1024} sc1")
                a.lds_other(f"ds_write_b128 v{vo}, {vr(p,4)} offset:{AT_V(0) + 2*8192 + (xi*2+dl)*1024}")
        for x in range(4): a.e(f"v_mul_f32 v{rs+x}, {fhex(QSCALE)}, v{rs+x}")
        em.vemit(wn*8192 + wm*4096 + l*16 + AT_Q0, va)
        a.need(rng(cs+8, 8))
        for x in range(4):
            fold_mn(x, 0, rs); fold_mn(x, 1, rs)
            p = pk + 4*(x & 1)
            a.e("s_nop 0")
            pack2(p, g.acc[x][0], g.acc[x][1])
            a.lds_other(f"ds_write_b128 v{va}, {vr(p,4)} offset:{x*1024}")
        a.e("s_waitcnt vmcnt(0)")
        self.signal_last(a, 0, 4, self.off_ji(F_KV), t0, t1, "kv")
        self.stamp(C, 3)
        a.e("s_waitcnt lgkmcnt(0)"); a.lq = []
        self.lsetup(self.g[1], A_WO, D*D*2, WS_O)
        def kvpoll():
            L.e(f"s_sub_i32 s{S_T2}, s{S_I}, 1\ns_max_i32 s{S_T2}, s{S_T2}, 0\ns_sub_i32 s{S_XB0}, s{S_I}, 2\ns_max_i32 s{S_XB0}, s{S_XB0}, 0")
            L.e(f"v_mov_b32 v{t0}, s{S_T2}\nv_mov_b32 v{t1}, s{S_XB0}\nv_and_b32 v52, 1, v{vL}\nv_cmp_eq_u32 vcc, 0, v52\ns_nop 1\nv_cndmask_b32 v{t0}, v{t1}, v{t0}, vcc")
            L.e(f"v_lshlrev_b32 v{t0}, 7, v{t0}\ns_lshl_b32 s{S_T}, s{S_J}, 11\ns_add_u32 s{S_T}, s{S_T}, {F_KV}\nv_add_u32 v53, s{S_T}, v{t0}")
            self.poll(L, S_WS, 53, 52, "kv")
        L.e("s_mov_b32 s0, 1\ns_branch L_attn")
        L.label("L_kvstage")
        self.lstamp("kvpre")
        if self.o.get("kvpoll1", True):
            L.e(f"v_mov_b32 v54, {SD_CNT + 20}\ns_cmp_lg_u32 s{S_LW}, 0\ns_cbranch_scc1 L_kvwait")
            kvpoll()
            L.e("v_mov_b32 v55, 1\nds_write_b32 v54, v55\ns_branch L_kvgo")
            L.label("L_kvwait")
            L.e(f"s_mov_b32 s{S_CNT}, {POLL_MAX*8}")
            L.label("L_kvspin")
            L.e(f"ds_read_b32 v55, v54\ns_waitcnt lgkmcnt(0)\nv_readfirstlane_b32 s{S_T}, v55\ns_nop 2\ns_cmp_lg_u32 s{S_T}, 0\ns_cbranch_scc1 L_kvgo\ns_sleep 1\ns_sub_u32 s{S_CNT}, s{S_CNT}, 1\ns_cmp_lg_u32 s{S_CNT}, 0\ns_cbranch_scc1 L_kvspin")
            L.label("L_kvgo")
        else: kvpoll()
        self.lstamp("kvseen")
        L.e(f"s_lshr_b32 s{S_T}, s{S_LW}, 1\ns_sub_i32 s{S_T2}, s{S_I}, 2\ns_add_i32 s{S_T2}, s{S_T2}, s{S_T}")
        L.e(f"s_lshl_b32 s{S_XB0}, s{S_T2}, 4\ns_add_u32 s{S_XB0}, s{S_XB0}, s{S_J}\ns_lshl_b32 s{S_XB0}, s{S_XB0}, 15\ns_and_b32 s{S_WB0}, s{S_LW}, 1\ns_lshl_b32 s{S_WB0}, s{S_WB0}, 14\ns_add_u32 s{S_XB0}, s{S_XB0}, s{S_WB0}\ns_add_u32 s{S_XB0}, s{S_XB0}, {WS_KV}")
        L.e(f"s_cmp_lt_i32 s{S_T2}, 0\ns_cselect_b32 s{S_XB0}, 0x7ff00000, s{S_XB0}")
        L.e(f"s_and_b32 s{S_WB0}, s{S_LW}, 1\ns_mul_i32 s{S_WB0}, s{S_WB0}, 49152\ns_lshl_b32 s{S_T}, s{S_T}, 13\ns_add_u32 s{S_WB0}, s{S_WB0}, s{S_T}")
        for part in range(2):
            for q4 in range(2):
                L.e(f"s_add_u32 m0, s{S_WB0}, {part*24576 + q4*4096}\ns_add_u32 s{S_T}, s{S_XB0}, {part*8192 + q4*4096}")
                for n in range(4):
                    L.e(f"buffer_load_dwordx4 v{self.vL16}, s[{S_WS}:{S_WS+3}], s{S_T} offen offset:{n*1024} sc1 lds")
        L.e("s_waitcnt vmcnt(8)" if self.o.get("kfirst", True) else "s_waitcnt vmcnt(0)")
        L.e("s_branch L_attn_go")
        C.e("s_mov_b32 s0, 0\ns_branch L_attn"); C.label("L_attn_back_c"); C.e("s_setprio 3")
        L.label("L_attn_back_l"); L.e("s_setprio 1")

    def attention(self):
        a = self.A; vL = self.vL; z = HZ(a)
        a.label("L_attn")
        a.e("s_setprio 3")
        l = V("l")
        em = Emitter(a, {"l": vL}, {"hh": S_T3, "om": S_T4}, self.vt, S_ET)
        hh, om = S("hh"), S("om")
        R = Regs(64, 253)
        QF = R.alloc(8, 4); KF = [R.alloc(8, 4) for _ in range(2)]; SS = [R.alloc(16, 4) for _ in range(3)]
        NM = R.alloc(16, 4); NG = R.alloc(16, 4); OO = R.alloc(16, 4); LL = R.alloc(16, 4)
        VF = [R.alloc(8, 4) for _ in range(2)]; PP = [R.alloc(8, 4) for _ in range(2)]; ONE = R.alloc(4, 4)
        vQ, vK, vV, MX, T0 = [R.alloc() for _ in range(5)]
        a.e(f"s_and_b32 s{S_T3}, s{S_WV}, 1\ns_lshr_b32 s{S_T4}, s{S_WV}, 1")
        a.e(f"s_lshl_b32 s71, s{S_I}, 2\ns_add_u32 s71, s71, s{S_T4}")
        h = l >> 5
        em.vemit(hh*8192 + om*2048 + ((l >> 4) & 1)*1024 + (h*16 + (l & 15))*16 + AT_Q0, vQ)
        em.vemit(hh*49152 + om*2048 + ((l >> 3) & 1)*1024 + (h*16 + (l & 7) + ((l >> 4) & 1)*8)*16, vK)
        for ex in (((l >> 4) & 1)*1024 + (h*16 + (l & 15))*16, ((l >> 3) & 1)*1024 + (h*16 + (l & 7) + ((l >> 4) & 1)*8)*16):
            assert banks.conflicts_b128([ex.ev({"l": x}) for x in range(64)]) == 0
        def rd(dst, addr, off): z.lds_rd(f"ds_read_b128 {vr(dst,4)}, v{addr} offset:{off}", rng(dst, 4), [addr])
        def kread(tt, b): rd(KF[b], vK, tt*2048); rd(KF[b]+4, vK, tt*2048 + 512)
        def vread(tt, b): rd(VF[b], vV, tt*2048); rd(VF[b]+4, vV, tt*2048 + 512)
        em.vemit(hh*49152 + om*2048 + ((l >> 4) & 1)*1024 + (h*16 + (l & 15))*16 + 24576, vV)
        t0_ = self.vt[0]; vPF = R.alloc()
        if self.o["pf_weights"]:
            a.e(f"s_lshl_b32 s{S_T}, s2, 3\ns_add_u32 s{S_T}, s{S_T}, s{S_WV}\ns_mul_i32 s{S_T}, s{S_T}, 28\nv_min_u32 v{vPF}, 27, v{vL}\nv_add_u32 v{vPF}, s{S_T}, v{vPF}\nv_lshlrev_b32 v{vPF}, 7, v{vPF}")
        mreg = [76+2*k for k in range(6)] + [90+2*k for k in range(6)] + [4, 6, 24, 26]
        for r in range(16):
            k0 = 16*((r >> 2) & 1) + 8*(r >> 3) + (r & 3)
            lo = (0xffffffff << k0) & 0xffffffff; hi = (0xffffffff << (k0+4)) & 0xffffffff
            a.e(f"s_mov_b32 s{mreg[r]}, {hex(lo)}\ns_mov_b32 s{mreg[r]+1}, {hex(hi)}")
        for r in range(16): z.emit(f"v_mov_b32 v{NG+r}, 0xf149f2ca", "valu", w=[NG+r])
        z.emit(f"v_mov_b32 v{MX}, 0xf149f2ca", "valu", w=[MX])
        for k in range(4): z.emit(f"v_mov_b32 v{ONE+k}, 0x3f803f80", "valu", w=[ONE+k])
        MF = "v_mfma_f32_32x32x16_bf16"
        def qk(tt, kb, sb, cval, tag):
            b = KF[kb]; s_ = SS[sb]
            z.lneed(list(rng(b, 4)) + list(rng(QF, 4)))
            ctxt = "0" if cval is None else vr(cval, 16); creg = [] if cval is None else list(rng(cval, 16))
            if tt < 8:
                z.other(f"s_cmp_ge_u32 s71, {8-tt}\ns_cbranch_scc0 L_inv_{tag}_{tt}")
            z.emit(f"{MF} {vr(s_,16)}, {vr(b,4)}, {vr(QF,4)}, {ctxt}", "mfma32", r=list(rng(b,4))+list(rng(QF,4)), w=rng(s_,16), c=creg + list(rng(NG,16)) if tt < 8 else creg)
            if tt < 8:
                a.label(f"L_invb_{tag}_{tt}")
                t = self.tail
                t.label(f"L_inv_{tag}_{tt}")
                t.e(f"{MF} {vr(s_,16)}, {vr(b,4)}, {vr(QF,4)}, {vr(NG,16)}\ns_branch L_invb_{tag}_{tt}")
            z.lneed(list(rng(b+4, 4)) + list(rng(QF+4, 4)))
            z.emit(f"{MF} {vr(s_,16)}, {vr(b+4,4)}, {vr(QF+4,4)}, {vr(s_,16)}", "mfma32", r=list(rng(b+4,4))+list(rng(QF+4,4)), w=rng(s_,16), c=rng(s_,16))
        def merge(sa, sb):
            for r in range(16):
                z.emit(f"v_cndmask_b32 v{SS[sa]+r}, v{SS[sa]+r}, v{SS[sb]+r}, s[{mreg[r]}:{mreg[r]+1}]", "valu", r=[SS[sa]+r, SS[sb]+r], w=[SS[sa]+r])
        def vmax(sb):
            for k in range(8): z.emit(f"v_max3_f32 v{MX}, v{MX}, v{SS[sb]+2*k}, v{SS[sb]+2*k+1}", "valu", r=[MX, SS[sb]+2*k, SS[sb]+2*k+1], w=[MX])
        a.e("s_cmp_eq_u32 s0, 1\ns_cbranch_scc1 L_kvstage")
        a.label("L_attn_go")
        a.e("s_barrier")
        self.stamp(a, 4)
        rd(QF, vQ, 0); rd(QF+4, vQ, 512); kread(0, 0); kread(8, 1)
        self.nyoung = 0
        if self.o["pf_weights"] and not self.o.get("pfmid", False):
            for arg in (A_W1, A_W2):
                p = self.ptr(arg)[0]; a.e(f"global_load_dword v254, v{vPF}, s[{p}:{p+1}]"); self.nyoung += 1
        self.stamp(a, 20)
        qk(0, 0, 0, None, "a"); kread(1, 0)
        qk(8, 1, 1, None, "a"); kread(2, 1)
        qk(1, 0, 2, None, "a"); kread(3, 0)
        merge(0, 1); vmax(0)
        sb_of = {1: 2}
        free = [0, 1]
        for tt in range(2, 8):
            sb = free.pop(0); sb_of[tt] = sb
            qk(tt, tt & 1 ^ 1 if False else (tt % 2 == 0 and 1 or 0), sb, None, "a")
            if tt+2 < 8: kread(tt+2, (tt % 2 == 0 and 1 or 0))
            vmax(sb_of[tt-1]); free.append(sb_of[tt-1])
        kread(0, 0)
        vmax(sb_of[7])
        self.stamp(a, 21)
        self.attn_mid(a, z)
        self.stamp(a, 22)
        nyoung = 0
        if self.o["pf_weights"] and self.o.get("pfmid", False):
            for arg in (A_W1, A_W2):
                p = self.ptr(arg)[0]; a.e(f"global_load_dword v254, v{vPF}, s[{p}:{p+1}]"); nyoung += 1
        kread(8, 1); vread(8, 0); vread(0, 1)
        z.emit(f"v_mov_b32 v{T0}, v{MX}", "valu", r=[MX], w=[T0])
        z.emit(f"v_permlane32_swap_b32 v{T0}, v{MX}", "perm", r=[T0, MX], w=[T0, MX])
        z.emit(f"v_max_f32 v{MX}, v{MX}, v{T0}", "valu", r=[MX, T0], w=[MX])
        for r in range(16): z.emit(f"v_sub_f32 v{NM+r}, 0, v{MX}", "valu", r=[MX], w=[NM+r])
        z.other("s_setprio 2")
        def vexp(sb):
            for r in range(16): z.emit(f"v_exp_f32 v{SS[sb]+r}, v{SS[sb]+r}", "trans", r=[SS[sb]+r], w=[SS[sb]+r])
        def cvt(sb, pb):
            for k in range(8): z.emit(f"v_cvt_pk_bf16_f32 v{PP[pb]+k}, v{SS[sb]+2*k}, v{SS[sb]+2*k+1}", "valu", r=[SS[sb]+2*k, SS[sb]+2*k+1], w=[PP[pb]+k])
        first = [True]
        def pv(vb, pb):
            b = VF[vb]; p = PP[pb]
            z.lneed(rng(b, 8))
            f = first[0]; first[0] = False
            z.emit(f"{MF} {vr(OO,16)}, {vr(b,4)}, {vr(p,4)}, {'0' if f else vr(OO,16)}", "mfma32", r=list(rng(b,4))+list(rng(p,4)), w=rng(OO,16), c=[] if f else rng(OO,16))
            z.emit(f"{MF} {vr(LL,16)}, {vr(ONE,4)}, {vr(p,4)}, {'0' if f else vr(LL,16)}", "mfma32", r=list(rng(ONE,4))+list(rng(p,4)), w=rng(LL,16), c=[] if f else rng(LL,16))
            z.emit(f"{MF} {vr(OO,16)}, {vr(b+4,4)}, {vr(p+4,4)}, {vr(OO,16)}", "mfma32", r=list(rng(b+4,4))+list(rng(p+4,4)), w=rng(OO,16), c=rng(OO,16))
            z.emit(f"{MF} {vr(LL,16)}, {vr(ONE,4)}, {vr(p+4,4)}, {vr(LL,16)}", "mfma32", r=list(rng(ONE,4))+list(rng(p+4,4)), w=rng(LL,16), c=rng(LL,16))
        qk(0, 0, 0, NM, "b"); kread(1, 0)
        qk(8, 1, 1, NM, "b"); kread(2, 1)
        qk(1, 0, 2, NM, "b"); kread(3, 0)
        merge(0, 1); vexp(0)
        for r in range(16): z.emit(f"v_cndmask_b32 v{SS[1]+r}, 0, v{SS[0]+r}, s[{mreg[r]}:{mreg[r]+1}]", "valu", r=[SS[0]+r], w=[SS[1]+r])
        for r in range(16): z.emit(f"v_sub_f32 v{SS[0]+r}, v{SS[0]+r}, v{SS[1]+r}", "valu", r=[SS[0]+r, SS[1]+r], w=[SS[0]+r])
        cvt(1, 0); cvt(0, 1)
        pv(0, 0); vread(1, 0)
        pv(1, 1); vread(2, 1)
        sb_of = {1: 2}; free = [0, 1]
        for tt in range(1, 8):
            if tt+1 < 8:
                sb = free.pop(0); sb_of[tt+1] = sb; kb = 1 if (tt+1) % 2 == 0 else 0
                qk(tt+1, kb, sb, NM, "b")
                if tt+3 < 8: kread(tt+3, kb)
            if tt in (3, 6): z.other(f"s_setprio {1 if tt == 3 else 0}")
            cur = sb_of[tt]
            vexp(cur); cvt(cur, tt & 1); free.append(cur)
            vb = 0 if tt % 2 == 1 else 1
            pv(vb, tt & 1)
            if tt+2 < 8: vread(tt+2, vb)
        self.stamp(a, 23)
        srd(a, S_WS, *self.ptr(A_WS), WS_BYTES, self.o.get('wsoff', 0))
        em.vemit((om*2 + ((l >> 4) & 1))*2048 + hh*1024 + ((l & 15) + h*16)*16, vQ)
        a.e(f"s_lshl_b32 s{S_T}, s{S_I}, 4\ns_add_u32 s{S_T}, s{S_T}, s{S_J}\ns_lshl_b32 s{S_T}, s{S_T}, 14\ns_add_u32 s{S_T}, s{S_T}, {WS_O}")
        z.emit(f"v_rcp_f32 v{T0}, v{LL}", "trans", r=[LL], w=[T0])
        for r in range(16): z.emit(f"v_mul_f32 v{OO+r}, v{T0}, v{OO+r}", "valu", r=[T0, OO+r], w=[OO+r])
        for s in range(2):
            for k in range(4): z.emit(f"v_cvt_pk_bf16_f32 v{PP[s]+k}, v{OO+8*s+2*k}, v{OO+8*s+2*k+1}", "valu", r=[OO+8*s+2*k, OO+8*s+2*k+1], w=[PP[s]+k])
            a.e(f"buffer_store_dwordx4 {vr(PP[s],4)}, v{vQ}, s[{S_WS}:{S_WS+3}], s{S_T} offen offset:{s*512} sc1")
        self.stamp(a, 24)
        a.e("s_waitcnt vmcnt(0)")
        self.stamp(a, 25)
        self.signal_last(a, 1, 8, self.off_ij(F_O), vK, vV, "o")
        a.e("s_cmp_eq_u32 s0, 1\ns_cbranch_scc1 L_attn_back_l\ns_branch L_attn_back_c")
    def attn_mid(self, a, z):
        if self.o.get("kfirst", True):
            z.other(f"s_cmp_eq_u32 s0, 1\ns_cbranch_scc0 L_att_nov\ns_waitcnt vmcnt({self.nyoung})\nL_att_nov:")
            a.lds_drain(); z.other("s_barrier")

    def lsetup(self, g, warg, wbytes, xbase, khalf=False):
        L = self.L; c = g.c
        g.bind(L, self.vL, self.vt, (8, 9))
        srd(L, S_WSRD, *self.ptr(warg), wbytes)
        self.setup_w_only(g)
        g.em.vemit(g.lw*4096 + g.l*16, g.vXsrc[0])
        c.woff(L)
        self.xoff_fn(L, c, xbase, khalf)
        L.e(f"s_lshl_b32 s{S_XL}, s{S_LW}, 12")
        L.e(f"s_mul_i32 s{S_WL}, s{S_LW}, {c.nWld*1024}\ns_add_u32 s{S_WL}, s{S_WL}, {c.XB}")
    def lweights(self, g, init=True):
        L = self.L; c = g.c
        if init:
            for ins in g.rot_init(): L.e(ins)
        L.e(f"s_mov_b32 s{S_WR}, 0")
        for s in range(c.S):
            for ins in g.stage_off(s) + g.dma_w(): L.e(ins)
            L.e(f"s_add_u32 s{S_WR}, s{S_WR}, {c.SB}")
    def cpoll(self, flag, label, skip_own=False):
        C = self.C; t0, t1, t2 = self.vt[0:3]
        C.e(f"s_cmp_lg_u32 s{S_LW}, 0\ns_cbranch_scc1 L_nocpoll_{label}")
        self.group_words(C, t2, flag, S_I)
        if skip_own:
            C.e(f"s_xor_b32 s{S_T2}, s{S_J}, 1\ns_lshl_b32 s{S_T2}, s{S_T2}, 7\ns_add_u32 s{S_T2}, s{S_T2}, s{S_T}\nv_and_b32 v{t0}, 15, v{self.vL}\nv_mov_b32 v{t1}, s{S_T2}\nv_cmp_eq_u32 vcc, s{S_J}, v{t0}\ns_nop 1\nv_cndmask_b32 v{t2}, v{t2}, v{t1}, vcc")
        self.poll(C, S_WS, t2, t0, label)
        C.label(f"L_nocpoll_{label}")
        C.e("s_barrier")
    def lphase(self, g, flag, label, hooks=None, npeel=0, after_poll=None, first_hooks=None, ns=None, flags=0):
        L = self.L; c = g.c; vm = VM(L); S = c.S; ns = ns or c.nsteps
        hooks = hooks or {}
        g.bind(L, self.vL, self.vt, (8, 9))
        srd(L, S_XSRD, *self.ptr(A_WS), WS_BYTES, self.o.get('wsoff', 0))
        self.lstamp(label + "pre")
        L.e("s_barrier")
        self.lstamp(label + "seen")
        L.e(f"s_mov_b32 s{S_WR}, 0")
        for s in range(S):
            for ins in g.stage_off(s) + g.dma_x(): L.e(ins)
            vm.iss(("st", s), c.nXld)
            L.e(f"s_add_u32 s{S_WR}, s{S_WR}, {c.SB}")
        L.e(f"s_mov_b32 s{S_WR}, 0")
        if after_poll: after_poll(vm)
        if flags: self.lflag_init()
        vm.wait(("st", 0)); L.lds_drain(); L.e("s_barrier"); self.lstamp(label + "land")
        if first_hooks: first_hooks[0](vm)
        vm.wait(("st", 1)); L.lds_drain(); L.e("s_barrier")
        def issue(t):
            for ins in g.dma_list(t): L.e(ins)
            vm.iss(("st", t), c.nld); L.e(g.adv_slot(S_WR))
        npeel = max(npeel, S-2)
        nb = ns - S
        if self.o.get("lsteps"): npeel = nb
        def end_body(t):
            L.lds_drain()
            if flags and flags - 1 <= t <= ns-3: self.lfull(t + 3)
            if not flags or t < flags or t == ns-2:
                L.lds_drain(); L.e("s_barrier")
            if self.o.get("lsteps"): self.lstamp(label + str(t))
        if flags: npeel = max(npeel, flags + 1)
        for t in range(npeel):
            if flags and t > flags: self.lwait(46, t + 2, f"{label}{t}")
            issue(t+S)
            if t in hooks: hooks[t](vm)
            if ("st", t+2) in vm.q: vm.wait(("st", t+2))
            end_body(t)
        if nb - npeel > 0:
            if getattr(c, "rot", False): L.e(f"s_mov_b32 s{S_N}, {npeel + S - 1}")
            L.e(f"s_mov_b32 s{S_CNT}, {nb - npeel}")
            if flags: L.e(f"s_mov_b32 s{S_TG}, {npeel + 2}")
            L.label(f"L_lloop_{label}")
            early = flags and S >= 4
            if early:
                L.e(f"s_add_u32 s{S_T2}, s{S_TG}, 1\nv_mov_b32 v47, s{S_T2}\ns_waitcnt vmcnt({(S-3)*c.nld})\nds_write_b32 v45, v47")
            if flags: self.lwait(46, f"s{S_TG}", f"{label}_loop")
            for ins in g.dma_list(): L.e(ins)
            L.e(g.adv_slot(S_WR))
            if early:
                L.e(f"s_add_u32 s{S_TG}, s{S_TG}, 1")
            elif flags:
                L.e(f"s_add_u32 s{S_TG}, s{S_TG}, 1\nv_mov_b32 v47, s{S_TG}\ns_waitcnt vmcnt({(S-2)*c.nld})\nds_write_b32 v45, v47")
            else:
                L.e(f"s_waitcnt vmcnt({(S-2)*c.nld})\ns_barrier")
            L.e(f"s_sub_u32 s{S_CNT}, s{S_CNT}, 1\ns_cmp_lg_u32 s{S_CNT}, 0\ns_cbranch_scc1 L_lloop_{label}")
        for t in range(nb, ns-1):
            if t in hooks:
                assert npeel >= nb
                hooks[t](vm)
                if t+2 <= ns-1 and ("st", t+2) in vm.q: vm.wait(("st", t+2))
            elif t+2 <= ns-1: L.e(f"s_waitcnt vmcnt({min(ns-1-(t+2), S-2)*c.nld})")
            end_body(t)

    def phase_o(self, g):
        C, L, c = self.C, self.L, g.c
        vL = self.vL; t0, t1, t2, t3, t4, t5 = self.vt
        self.stamp(C, 5)
        self.lstamp("attnend")
        self.bar()
        self.lstamp("attnbar")
        self.lweights(g)
        if self.o.get("sentinel", True) and self.o.get("markat", "o") == "o":
            for k in range(4): L.e(f"v_mov_b32 v{180+k}, -1")
            L.e(f"s_lshl_b32 s{S_T}, s{S_I}, 4\ns_add_u32 s{S_T}, s{S_T}, s{S_J}\ns_lshl_b32 s{S_T}, s{S_T}, 15\ns_lshl_b32 s{S_T2}, s{S_LW}, 13\ns_add_u32 s{S_T}, s{S_T}, s{S_T2}\ns_add_u32 s{S_T}, s{S_T}, {WS_XCH}")
            for n in range(8):
                if n == 4: L.e(f"s_add_u32 s{S_T}, s{S_T}, 4096")
                L.e(f"buffer_store_dwordx4 v[180:183], v{self.vL16}, s[{S_WS}:{S_WS+3}], s{S_T} offen offset:{(n & 3)*1024} sc1")
        a = C; g.bind(C, vL, self.vt, (8, 9)); cv = Regs(12, 254); g.alloc_compute(cv)
        em = g.em; l, wm, wn = g.l, g.wm, g.wn
        g.setup_reads()
        xr = cv.alloc(16, 4); va = cv.alloc(); pk = cv.alloc(8, 4); sm = cv.alloc(8, 4); tm = cv.alloc(8, 4); m2 = cv.alloc(8, 4)
        srd(a, S_XSRD, *self.ptr(A_X), M*D*2)
        em.vemit((l & 15)*2048 + (l >> 4)*8, va)
        def resid(a):
            a.e(f"s_lshl_b32 s{S_T}, s{S_I}, 1\ns_add_u32 s{S_T}, s{S_T}, s{S_WM}\ns_lshl_b32 s{S_T}, s{S_T}, 17\ns_lshl_b32 s{S_T2}, s{S_J}, 7\ns_add_u32 s{S_T}, s{S_T}, s{S_T2}\ns_lshl_b32 s{S_T2}, s{S_WN}, 6\ns_add_u32 s{S_T}, s{S_T}, s{S_T2}")
            for x in range(4):
                for f in range(2):
                    a.e(f"buffer_load_dwordx2 {vr(xr+4*x+2*f,2)}, v{va}, s[{S_XSRD}:{S_XSRD+3}], s{S_T} offen offset:{f*32}")
                if x < 3: a.e(f"s_add_u32 s{S_T}, s{S_T}, {16*2048}")
        a.e(f"s_cmp_eq_u32 s{S_LW}, 0\ns_cbranch_scc1 L_ores0"); resid(a); a.label("L_ores0")
        def hookO(a):
            a.e(f"s_cmp_lg_u32 s{S_LW}, 0\ns_cbranch_scc1 L_ores1"); resid(a); a.label("L_ores1")
        self.cpoll(F_O, "o", skip_own=True)
        self.lphase(g, F_O, "o")
        g1 = self.g[2]
        self.lsetup(g1, A_W1, D*DFF*2, WS_H)
        g.bind(C, vL, self.vt, (8, 9)); g.a = C
        self.cloop(g, stamps=(6, 7), hooks={c.nsteps - 3: hookO})
        a.e("s_waitcnt vmcnt(0)")
        for x in range(4):
            for f in range(2):
                acc = g.acc[x][f]
                for d in range(2):
                    src = xr + 4*x + 2*f + d
                    a.e(f"v_lshlrev_b32 v{t0}, 16, v{src}\nv_and_b32 v{t1}, 0xffff0000, v{src}")
                    a.e(f"v_add_f32 v{acc+2*d}, v{acc+2*d}, v{t0}\nv_add_f32 v{acc+2*d+1}, v{acc+2*d+1}, v{t1}")
        a.e(f"s_lshl_b32 s{S_T}, s{S_I}, 4\ns_add_u32 s{S_T}, s{S_T}, s{S_J}\ns_lshl_b32 s{S_T}, s{S_T}, 14\ns_lshl_b32 s{S_T2}, s{S_WM}, 13\ns_add_u32 s{S_T}, s{S_T}, s{S_T2}\ns_lshl_b32 s{S_T2}, s{S_WN}, 10\ns_add_u32 s{S_T}, s{S_T}, s{S_T2}\ns_add_u32 s{S_T}, s{S_T}, {WS_H}")
        for x in range(4):
            p = pk + 4*(x & 1); A, B = g.acc[x][0], g.acc[x][1]
            a.e(f"v_cvt_pk_bf16_f32 v{p}, v{A}, v{A+1}\nv_cvt_pk_bf16_f32 v{p+1}, v{A+2}, v{A+3}\nv_cvt_pk_bf16_f32 v{p+2}, v{B}, v{B+1}\nv_cvt_pk_bf16_f32 v{p+3}, v{B+2}, v{B+3}")
            if x == 2: a.e(f"s_add_u32 s{S_T}, s{S_T}, 4096")
            a.e(f"buffer_store_dwordx4 {vr(p,4)}, v{self.vL16}, s[{S_WS}:{S_WS+3}], s{S_T} offen offset:{(x & 1)*2048} sc1")
        self.bar()
        self.lweights(self.g[2])
        a.e("s_waitcnt vmcnt(0)")
        self.signal_last(a, 2, 4, self.off_ij(F_H), t0, t1, "h")
        self.stamp(C, 8)
        def xlane(regs):
            for sw in ("v_permlane16_swap_b32", "v_permlane32_swap_b32"):
                for k, r in enumerate(regs): a.e(f"v_mov_b32 v{tm+k}, v{r}")
                a.e("s_nop 1")
                for k, r in enumerate(regs): a.e(f"{sw} v{tm+k}, v{r}")
                a.e("s_nop 1")
                for k, r in enumerate(regs): a.e(f"v_add_f32 v{r}, v{r}, v{tm+k}")
        for x in range(4):
            A, B = g.acc[x][0], g.acc[x][1]
            a.e(f"v_add_f32 v{sm+2*x}, v{A}, v{A+1}")
            for r in [A+2, A+3, B, B+1, B+2, B+3]: a.e(f"v_add_f32 v{sm+2*x}, v{sm+2*x}, v{r}")
        xlane([sm+2*x for x in range(4)])
        for x in range(4):
            A, B = g.acc[x][0], g.acc[x][1]
            a.e(f"v_mul_f32 v{t0}, {fhex(1/32)}, v{sm+2*x}")
            a.e(f"v_sub_f32 v{t1}, v{A}, v{t0}\nv_mul_f32 v{sm+2*x+1}, v{t1}, v{t1}")
            for r in [A+1, A+2, A+3, B, B+1, B+2, B+3]: a.e(f"v_sub_f32 v{t1}, v{r}, v{t0}\nv_fmac_f32 v{sm+2*x+1}, v{t1}, v{t1}")
        xlane([sm+2*x+1 for x in range(4)])
        a.e(f"s_lshl_b32 s{S_T}, s{S_J}, 1\ns_add_u32 s{S_T}, s{S_T}, s{S_WN}\ns_lshl_b32 s{S_T}, s{S_T}, 11\ns_lshl_b32 s{S_T2}, s{S_I}, 7\ns_add_u32 s{S_T}, s{S_T}, s{S_T2}\ns_lshl_b32 s{S_T2}, s{S_WM}, 6\ns_add_u32 s{S_T}, s{S_T}, s{S_T2}\ns_lshl_b32 s{S_T}, s{S_T}, 3\ns_add_u32 s{S_T}, s{S_T}, {WS_ST2}")
        a.e(f"v_lshlrev_b32 v{t0}, 3, v{vL}\nv_cmp_gt_u32 vcc, 16, v{vL}\ns_and_saveexec_b64 s[{S_EX}:{S_EX+1}], vcc")
        for x in range(4):
            a.e(f"buffer_store_dwordx2 {vr(sm+2*x,2)}, v{t0}, s[{S_WS}:{S_WS+3}], s{S_T} offen offset:{x*128} sc1")
        a.e(f"s_mov_b64 exec, s[{S_EX}:{S_EX+1}]\ns_waitcnt vmcnt(0)")
        self.signal_last(a, 4, 4, self.off_ij(F_S2), t0, t1, "s2")

    def phase_f1(self, g):
        C, L, c = self.C, self.L, g.c
        vL = self.vL; t0, t1, t2, t3, t4, t5 = self.vt
        FL1 = 1 if self.o.get("flags1", False) else 0
        ps = 64; cp = 96; mu, m2 = 112, 113
        def s2a(vm):
            self.group_words(L, 56, F_S2, S_I)
            L.e(f"buffer_load_dword v57, v56, s[{S_WS}:{S_WS+3}], 0 offen sc1"); vm.iss("ps2")
        def s2b(vm):
            vm.wait("ps2")
            self.poll_test(L, 57)
            L.e("s_cbranch_scc1 L_s2ready")
            self.poll(L, S_WS, 56, 57, "s2")
            L.label("L_s2ready")
            L.e(f"v_and_b32 v{t0}, 15, v{vL}\nv_lshlrev_b32 v{t0}, 4, v{t0}\nv_lshrrev_b32 v{t1}, 4, v{vL}\nv_lshlrev_b32 v{t1}, 14, v{t1}\nv_add_u32 v54, v{t0}, v{t1}")
            L.e(f"s_lshl_b32 s{S_T2}, s{S_I}, 7\ns_lshl_b32 s{S_T3}, s{S_LW}, 5\ns_add_u32 s{S_T2}, s{S_T2}, s{S_T3}\ns_lshl_b32 s{S_T2}, s{S_T2}, 3\ns_add_u32 s{S_T2}, s{S_T2}, {WS_ST2}")
            for n in range(8):
                L.e(f"buffer_load_dwordx4 {vr(ps+4*n,4)}, v54, s[{S_WS}:{S_WS+3}], s{S_T2} offen sc1\ns_add_u32 s{S_T2}, s{S_T2}, {4*2048*8}")
            vm.iss("ps", 8)
        mua, m2a = 112, 114
        def h0b(vm):
            vm.wait("ps")
            for r in range(2): L.e(f"v_add_f32 v{mua+r}, v{ps+2*r}, v{ps+4+2*r}")
            for n in range(2, 8):
                for r in range(2): L.e(f"v_add_f32 v{mua+r}, v{mua+r}, v{ps+4*n+2*r}")
            self.xgroups(L, [mua, mua+1], 118)
            for r in range(2): L.e(f"v_mul_f32 v{mua+r}, {fhex(1/1024)}, v{mua+r}\nv_mov_b32 v{m2a+r}, 0")
            L.e(f"v_mov_b32 v116, {fhex(1/32)}\nv_mov_b32 v117, {fhex(32.0)}")
        def h1(vm, part=None):
            for n in (range(8) if part is None else range(4*part, 4*part+4) if part < 2 else ()):
                for r in range(2):
                    tt = t1 if r == 0 else t2
                    L.e(f"v_fma_f32 v{tt}, v{ps+4*n+2*r}, v116, -v{mua+r}")
                for r in range(2):
                    tt = t1 if r == 0 else t2
                    L.e(f"v_mul_f32 v{tt}, v{tt}, v{tt}")
                for r in range(2):
                    tt = t1 if r == 0 else t2
                    L.e(f"v_fma_f32 v{tt}, v{tt}, v117, v{ps+4*n+2*r+1}")
                for r in range(2):
                    tt = t1 if r == 0 else t2
                    L.e(f"v_add_f32 v{m2a+r}, v{m2a+r}, v{tt}")
            if part is not None and part < 2: return
            self.xgroups(L, [m2a, m2a+1], 118)
            for r in range(2): L.e(f"v_mul_f32 v{m2a+r}, {fhex(1/1024)}, v{m2a+r}\nv_add_f32 v{m2a+r}, {fhex(EPS)}, v{m2a+r}")
            for r in range(2): L.e(f"v_rsq_f32 v{m2a+r}, v{m2a+r}")
            L.e(f"v_and_b32 v{t0}, 15, v{vL}\nv_lshlrev_b32 v{t0}, 3, v{t0}\ns_lshl_b32 s{S_T}, s{S_LW}, 7\ns_add_u32 s{S_T}, s{S_T}, {SD_MEAN2}\nv_add_u32 v{t0}, s{S_T}, v{t0}")
            L.e(f"v_cmp_gt_u32 vcc, 16, v{vL}\ns_and_saveexec_b64 s[{S_EX}:{S_EX+1}], vcc\nds_write_b64 v{t0}, {vr(mua,2)}\nds_write_b64 v{t0}, {vr(m2a,2)} offset:512\ns_mov_b64 exec, s[{S_EX}:{S_EX+1}]")
        ones, wf, sacc, r1, vL4 = 120, [124 + 4*k for k in range(8)], [156 + 4*k for k in range(4)], [172, 173, 174, 175], 176
        box = {}
        def pre_cs1():
            L.e(f"v_lshlrev_b32 v{vL4}, 2, v{vL}")
            box["cls"] = self.csum_setup(g, 4, r1)
        cs1_code = f"s_lshl_b32 s{S_T}, s{S_I}, 4\ns_add_u32 s{S_T}, s{S_T}, s{S_J}\ns_mul_i32 s{S_T2}, s{S_T}, 896\ns_lshl_b32 s{S_T}, s{S_LW}, 8\ns_add_u32 s{S_T2}, s{S_T2}, s{S_T}\ns_add_u32 s{S_T2}, s{S_T2}, {WS_CS1}"
        fh = (lambda vm: self.csum_reads(4, box["cls"], r1, wf), lambda vm: self.csum_finish(vm, 4, 14, ones, wf, sacc, vL4, cs1_code))
        def hsig(vm):
            if FL1:
                L.e(f"v_mov_b32 v58, {SD_FULL}"); self.lwait(58, 5, "cs1sig")
            self.signal(L, self.off_ji(F_CS1), 52, 53, only_lw0=True); vm.iss("sig")
        def h2a(vm):
            self.group_words(L, 52, F_CS1, S_J)
            L.e(f"buffer_load_dword v53, v52, s[{S_WS}:{S_WS+3}], 0 offen sc1"); vm.iss("pc")
        def h2(vm):
            vm.wait("pc")
            self.poll_test(L, 53, False)
            L.e("s_cbranch_scc1 L_cs1ready")
            self.poll(L, S_WS, 52, 53, "cs1")
            L.label("L_cs1ready")
            self.colsum_loads(L, vm, "cp", cp, 55, t1, 14, 896, f"s_mul_i32 s{S_T2}, s{S_J}, 896\ns_mul_i32 s{S_T}, s{S_LW}, 224\ns_add_u32 s{S_T2}, s{S_T2}, s{S_T}\ns_add_u32 s{S_T2}, s{S_T2}, {WS_CS1}")
        def h4(vm):
            vm.wait("cp")
            self.colsum_reduce(L, cp, 118, t0, 14, SD_CS1, 224)
        def mark(n):
            def fn(vm):
                if n == 0:
                    for k in range(4): L.e(f"v_mov_b32 v{180+k}, -1")
                    L.e(f"s_lshl_b32 s{S_T}, s{S_I}, 4\ns_add_u32 s{S_T}, s{S_T}, s{S_J}\ns_lshl_b32 s{S_T}, s{S_T}, 15\ns_lshl_b32 s{S_T2}, s{S_LW}, 13\ns_add_u32 s{S_T}, s{S_T}, s{S_T2}\ns_add_u32 s71, s{S_T}, {WS_XCH}")
                L.e(f"s_add_u32 s{S_T}, s71, {n*1024}\nbuffer_store_dwordx4 v[180:183], v{self.vL16}, s[{S_WS}:{S_WS+3}], s{S_T} offen sc1"); vm.iss("mark")
            return fn
        F1HOOKS = {0: fh[1], 2: s2a, 3: lambda vm: (hsig(vm), s2b(vm)), 5: h0b, 6: h1, 8: h2a, 9: h2, 11: h4}; F1PEEL = 12
        if self.o.get("lowhooks", True):
            def low(fn):
                def w(vm):
                    L.e("s_setprio 0"); fn(vm); L.e("s_setprio 1")
                return w
            F1HOOKS = {0: fh[1], 2: s2a, 3: lambda vm: (hsig(vm), s2b(vm)), 5: low(h0b), 6: low(lambda vm: h1(vm, 0)), 7: low(lambda vm: h1(vm, 1)),
                       8: lambda vm: (h2a(vm), low(lambda v: h1(v, 2))(vm)), 9: h2, 11: low(h4)}
        if self.o.get("f1late", True):
            F1HOOKS = {1: fh[1], 4: hsig, 7: s2a, 8: h2a, 9: s2b, 10: h2, 12: h0b,
                       13: lambda vm: (h1(vm, 0), h1(vm, 1), h1(vm, 2)), 14: h4}
            F1PEEL = 13
        if self.o.get("sentinel", True) and self.o.get("markat", "o") == "f1":
            for n in range(8):
                prev = F1HOOKS.get(n); mk_ = mark(n)
                F1HOOKS[n] = (lambda vm, p=prev, m=mk_: (m(vm), p(vm) if p else None))
        a = C; g.bind(C, vL, self.vt, (8, 9)); cv = Regs(12, 254); g.alloc_compute(cv)
        g.setup_reads()
        self.cpoll(F_H, "f1")
        self.lphase(g, F_H, "f1", hooks=F1HOOKS, npeel=F1PEEL, after_poll=lambda vm: pre_cs1(), first_hooks=fh, flags=FL1)
        g2 = self.g[3]
        self.lsetup(g2, A_W2, DFF*D*2, WS_H1, khalf=True)
        own2 = self.o.get("own2", True)
        if own2:
            L.e(f"s_mul_i32 s{S_A}, s{S_J}, 7\ns_add_u32 s{S_A}, s{S_A}, 1\ns_lshr_b32 s{S_A}, s{S_A}, 1\ns_lshr_b32 s{S_T}, s{S_J}, 3\ns_mul_i32 s{S_T}, s{S_T}, 28\ns_sub_u32 s{S_A}, s{S_A}, s{S_T}")
            for ins in g2.rot_init(): L.e(ins)
            vmA = VM(L)
            L.e(f"s_mul_i32 s{S_WOFF}, s{S_A}, {64*2048}\ns_add_u32 s{S_WOFF}, s{S_WOFF}, s{S_WB0}\ns_mov_b32 s{S_WR}, 0")
            for n in range(3):
                for ins in g2.dma_w(): L.e(ins)
                vmA.iss(("w", n), g2.c.nWld)
                L.e(f"s_add_u32 s{S_WOFF}, s{S_WOFF}, {64*2048}\ns_add_u32 s{S_WR}, s{S_WR}, {g2.c.SB}")
            vmA.wait(("w", 0)); L.e("s_barrier")
            vmA.wait(("w", 1)); L.e("s_barrier")
            vmA.wait(("w", 2)); L.e("s_barrier")
            L.e("s_barrier")
        g.bind(C, vL, self.vt, (8, 9)); g.a = C
        em = g.em; l, wm, wn = g.l, g.wm, g.wn
        f1hooks = None
        self.cloop(g, stamps=(9, 10), hooks=f1hooks, flags=FL1, cv=cv)
        fr = g.frag0
        mu = fr; cs = fr+4; pk = fr+32; va = fr+44; vb = va+1; vc = va+2; vo = va+3
        em.vemit((wm*64 + (l & 15))*4 + SD_MEAN2, va)
        for x in range(4): a.lds_rd(f"ds_read_b32 v{mu+x}, v{va} offset:{x*64}", [mu+x])
        em.vemit(wn*512 + (l >> 4)*16 + SD_CS1, vb)
        em.vemit(wn*64 + (l >> 4)*16 + SD_CS1 + 384, vc)
        for f in range(6): a.lds_rd(f"ds_read_b128 {vr(cs+4*f,4)}, v{vb} offset:{f*64}", rng(cs+4*f, 4))
        a.lds_rd(f"ds_read_b128 {vr(cs+24,4)}, v{vc}", rng(cs+24, 4))
        a.e(f"s_mul_i32 s71, s{S_I}, {56*16384}\ns_lshl_b32 s{S_T}, s{S_WM}, 13\ns_add_u32 s71, s71, s{S_T}\ns_add_u32 s71, s71, {WS_H1}\ns_mul_i32 s{S_T4}, s{S_J}, 7")
        def fold(x, f):
            acc = g.acc[x][f]; c0 = cs + 4*f
            for p in range(2):
                a.e(f"v_pk_fma_f32 {vr(acc+2*p,2)}, {vr(mu+(x & ~1),2)}, {vr(c0+2*p,2)}, {vr(acc+2*p,2)} op_sel:[{x & 1},0,0] op_sel_hi:[{x & 1},1,1] neg_lo:[1,0,0] neg_hi:[1,0,0]")
        def kappa(phi_code):
            a.e(phi_code)
            a.e(f"s_lshr_b32 s{S_T2}, s{S_T}, 1\ns_lshl_b32 s{S_T2}, s{S_T2}, 14\ns_and_b32 s{S_T}, s{S_T}, 1\ns_lshl_b32 s{S_T}, s{S_T}, 10\ns_add_u32 s{S_T}, s{S_T}, s{S_T2}\ns_add_u32 s{S_T}, s{S_T}, s71")
        vlw = fr+48
        def lds_own(phi_code):
            if not own2: return
            a.e(phi_code)
            a.e(f"s_and_b32 s{S_T3}, s{S_J}, 1\ns_sub_i32 s{S_T2}, s{S_T2}, s{S_T3}\ns_and_b32 s{S_T3}, s{S_T2}, 1\ns_lshl_b32 s{S_T3}, s{S_T3}, 10\ns_ashr_i32 s{S_T2}, s{S_T2}, 1\ns_and_b32 s{S_T2}, s{S_T2}, 3\ns_lshl_b32 s{S_T2}, s{S_T2}, 15")
            a.e(f"s_add_u32 s{S_T2}, s{S_T2}, s{S_T3}\ns_lshl_b32 s{S_T3}, s{S_WM}, 13\ns_add_u32 s{S_T2}, s{S_T2}, s{S_T3}\nv_add_u32 v{vlw}, s{S_T2}, v{self.vL16}")
        n = 0
        for pr in range(3):
            a.need(list(rng(mu, 4)) + list(rng(cs+8*pr, 8)))
            lds_own(f"s_lshl_b32 s{S_T2}, s{S_WN}, 2\ns_add_u32 s{S_T2}, s{S_T2}, {pr}")
            kappa(f"s_lshl_b32 s{S_T}, s{S_WN}, 2\ns_add_u32 s{S_T}, s{S_T}, s{S_T4}\ns_add_u32 s{S_T}, s{S_T}, {pr}")
            for x in range(4):
                fold(x, 2*pr); fold(x, 2*pr+1)
                A, B = g.acc[x][2*pr], g.acc[x][2*pr+1]; p = pk + 4*(n & 1); n += 1
                a.e(f"v_cvt_pk_bf16_f32 v{p}, v{A}, v{A+1}\nv_cvt_pk_bf16_f32 v{p+1}, v{A+2}, v{A+3}\nv_cvt_pk_bf16_f32 v{p+2}, v{B}, v{B+1}\nv_cvt_pk_bf16_f32 v{p+3}, v{B+2}, v{B+3}")
                for k in range(4): a.e(f"v_pk_max_i16 v{p+k}, v{p+k}, 0")
                if x == 2: a.e(f"s_add_u32 s{S_T}, s{S_T}, 4096")
                a.e(f"buffer_store_dwordx4 {vr(p,4)}, v{self.vL16}, s[{S_WS}:{S_WS+3}], s{S_T} offen offset:{(x & 1)*2048} sc1")
                if own2: a.lds_other(f"ds_write_b128 v{vlw}, {vr(p,4)} offset:{x*2048}")
        a.need(rng(cs+24, 4))
        kappa(f"s_add_u32 s{S_T}, s{S_T4}, 3")
        em.vemit(l*16 + wn*8, vo)
        lds_own(f"s_mov_b32 s{S_T2}, 3")
        if own2: a.e(f"s_lshl_b32 s{S_T3}, s{S_WN}, 3\nv_add_u32 v{vlw}, s{S_T3}, v{vlw}")
        for x in range(4):
            fold(x, 6)
            A = g.acc[x][6]; p = pk + 4*(n & 1); n += 1
            a.e(f"v_cvt_pk_bf16_f32 v{p}, v{A}, v{A+1}\nv_cvt_pk_bf16_f32 v{p+1}, v{A+2}, v{A+3}\nv_pk_max_i16 v{p}, v{p}, 0\nv_pk_max_i16 v{p+1}, v{p+1}, 0")
            if x == 2: a.e(f"s_add_u32 s{S_T}, s{S_T}, 4096")
            a.e(f"buffer_store_dwordx2 {vr(p,2)}, v{vo}, s[{S_WS}:{S_WS+3}], s{S_T} offen offset:{(x & 1)*2048} sc1")
            if own2: a.lds_other(f"ds_write_b64 v{vlw}, {vr(p,2)} offset:{x*2048}")
        if not own2:
            self.bar()
            self.lweights(self.g[3])
            a.e("s_waitcnt vmcnt(0)")
            self.signal_last(a, 3, 4, self.off_ij(F_H1), t0, t1, "h1")
            self.stamp(C, 11)

    def phase_f2(self, g):
        C, L, c = self.C, self.L, g.c
        vL = self.vL; t0, t1, t2, t3, t4, t5 = self.vt
        own2 = self.o.get("own2", True)
        a = C; g.bind(C, vL, self.vt, (8, 9)); cv = Regs(12, 254)
        a.e(f"s_lshr_b32 s3, s{S_J}, 3")
        g.alloc_compute(cv)
        em = g.em; l, wm, wn = g.l, g.wm, g.wn
        hr = cv.alloc(16, 4); pt = cv.alloc(32, 4); rs = cv.alloc(4, 4); pk = cv.alloc(8, 4); va = cv.alloc(); vo = cv.alloc()
        g.setup_reads()
        nsB = c.nsteps
        if own2:
            g.a = C
            def pub():
                a.e("s_setprio 3\ns_waitcnt vmcnt(0)")
                self.signal_last(a, 3, 4, self.off_ij(F_H1), t0, t1, "h1")
                self.stamp(C, 11)
                a.e("s_setprio 0")
            if self.o.get("pubmid", True):
                self.cloop(g, stamps=(None, None), ns=3, first=True, sfx="a", peel_first=pub)
            else:
                self.cloop(g, stamps=(None, None), ns=3, first=True, sfx="a")
                pub()
            nsB = c.nsteps - 3
            self.lweights(g, init=False)
        def hookF2(a):
            a.e(f"s_and_b32 s{S_T}, s{S_J}, 7\ns_lshl_b32 s{S_T}, s{S_T}, 1\ns_add_u32 s{S_T}, s{S_T}, s{S_WN}\ns_lshl_b32 s{S_T2}, s{S_I}, 4\ns_add_u32 s{S_T}, s{S_T}, s{S_T2}\ns_lshl_b32 s{S_T}, s{S_T}, 14")
            a.e(f"s_lshl_b32 s{S_T2}, s{S_WM}, 13\ns_add_u32 s{S_T}, s{S_T}, s{S_T2}\ns_lshl_b32 s{S_T2}, s3, 10\ns_add_u32 s{S_T}, s{S_T}, s{S_T2}\ns_add_u32 s{S_T}, s{S_T}, {WS_H}")
            for x in range(4):
                if x == 2: a.e(f"s_add_u32 s{S_T}, s{S_T}, 4096")
                a.e(f"buffer_load_dwordx4 {vr(hr+4*x,4)}, v{self.vL16}, s[{S_WS}:{S_WS+3}], s{S_T} offen offset:{(x & 1)*2048} sc1")
        if self.o.get("res2out", True):
            a.e(f"s_cmp_eq_u32 s{S_LW}, 0\ns_cbranch_scc1 L_res2a"); hookF2(a); a.label("L_res2a")
        self.cpoll(F_H1, "f2")
        if self.o.get("res2out", True):
            a.e(f"s_cmp_lg_u32 s{S_LW}, 0\ns_cbranch_scc1 L_res2b"); hookF2(a); a.label("L_res2b")
        FL2 = 1 if self.o.get("flags2", False) else 0
        self.lphase(g, F_H1, "f2", ns=nsB, flags=FL2)
        g.bind(C, vL, self.vt, (8, 9)); g.a = C; em = g.em
        self.cloop(g, stamps=(12, 13), hooks=(None if self.o.get("res2out", True) else {nsB - 5: hookF2}), ns=nsB, first=not own2, flags=FL2, cv=cv)
        a.e(f"s_lshl_b32 s{S_T}, s{S_I}, 4\ns_add_u32 s{S_T}, s{S_T}, s{S_J}\ns_lshl_b32 s{S_T}, s{S_T}, 15\ns_lshl_b32 s{S_T2}, s{S_LW}, 13\ns_add_u32 s{S_T}, s{S_T}, s{S_T2}\ns_add_u32 s{S_T}, s{S_T}, {WS_XCH}")
        for x in range(4):
            if x == 2: a.e(f"s_add_u32 s{S_T}, s{S_T}, 4096")
            for f in range(2):
                a.e(f"buffer_store_dwordx4 {vr(g.acc[x][2+f],4)}, v{self.vL16}, s[{S_WS}:{S_WS+3}], s{S_T} offen offset:{((x & 1)*2+f)*1024} sc1")
        em.vemit((wm*64 + (l & 15))*4 + SD_RSTD2, va)
        for x in range(4): a.lds_rd(f"ds_read_b32 v{rs+x}, v{va} offset:{x*64}", [rs+x])
        srd(a, S_OUT, *self.ptr(A_OUT), M*D*2)
        em.vemit((l & 15)*2048 + ((l >> 4) & 1)*32 + (l >> 5)*16, vo)
        prefold = self.o.get("prefold", False)
        if prefold:
            a.e("s_waitcnt vmcnt(8)")
            a.need(rng(rs, 4))
            for x in range(4):
                for f in range(2):
                    acc = g.acc[x][f]
                    for d in range(2):
                        src = hr + 4*x + 2*f + d
                        a.e(f"v_lshlrev_b32 v{t0}, 16, v{src}\nv_and_b32 v{t1}, 0xffff0000, v{src}")
                        a.e(f"v_fma_f32 v{acc+2*d}, v{acc+2*d}, v{rs+x}, v{t0}\nv_fma_f32 v{acc+2*d+1}, v{acc+2*d+1}, v{rs+x}, v{t1}")
        if not self.o.get("sentinel", True):
            a.e("s_waitcnt vmcnt(0)")
            self.signal(a, self.off_ijw(F_P, S_LW), t0, t1)
            a.e(f"s_xor_b32 s{S_T2}, s{S_J}, 8\ns_lshl_b32 s{S_T2}, s{S_T2}, 2\ns_lshl_b32 s{S_T}, s{S_I}, 6\ns_add_u32 s{S_T}, s{S_T}, s{S_T2}\ns_add_u32 s{S_T}, s{S_T}, s{S_LW}\ns_lshl_b32 s{S_T}, s{S_T}, 2\ns_add_u32 s{S_T}, s{S_T}, {F_P}\nv_mov_b32 v{t2}, s{S_T}")
            self.poll(a, S_WS, t2, t3, "p")
        a.e(f"s_xor_b32 s{S_T}, s{S_J}, 8\ns_lshl_b32 s{S_T2}, s{S_I}, 4\ns_add_u32 s{S_T}, s{S_T}, s{S_T2}\ns_lshl_b32 s{S_T}, s{S_T}, 15\ns_lshl_b32 s{S_T2}, s{S_LW}, 13\ns_add_u32 s{S_T}, s{S_T}, s{S_T2}\ns_add_u32 s{S_T3}, s{S_T}, {WS_XCH}\ns_add_u32 s{S_T4}, s{S_T3}, 4096")
        if self.o.get("sentinel", True):
            a.e(f"s_mov_b32 s{S_CNT}, {POLL_MAX}")
            a.label("L_xch")
        for x in range(4):
            for f in range(2):
                a.e(f"buffer_load_dwordx4 {vr(pt+8*x+4*f,4)}, v{self.vL16}, s[{S_WS}:{S_WS+3}], s{S_T3 if x < 2 else S_T4} offen offset:{((x & 1)*2+f)*1024} sc1")
        if self.o.get("sentinel", True):
            a.e("s_waitcnt vmcnt(0)")
            a.e(f"v_max3_u32 v{t0}, v{pt}, v{pt+1}, v{pt+2}")
            for k in range(3, 31, 2): a.e(f"v_max3_u32 v{t0}, v{t0}, v{pt+k}, v{pt+k+1}")
            a.e(f"v_max_u32 v{t0}, v{t0}, v{pt+31}\nv_cmp_ne_u32 vcc, -1, v{t0}\ns_nop 4\ns_cmp_eq_u64 vcc, exec\ns_cbranch_scc1 L_xch_done")
            a.e(f"s_sub_u32 s{S_CNT}, s{S_CNT}, 1\ns_cmp_lg_u32 s{S_CNT}, 0\ns_cbranch_scc1 L_xch")
            a.label("L_xch_done")
        a.e(f"s_lshl_b32 s{S_T}, s{S_I}, 1\ns_add_u32 s{S_T}, s{S_T}, s{S_WM}\ns_lshl_b32 s{S_T}, s{S_T}, 17\ns_and_b32 s{S_T2}, s{S_J}, 7\ns_lshl_b32 s{S_T2}, s{S_T2}, 8\ns_add_u32 s{S_T}, s{S_T}, s{S_T2}")
        a.e(f"s_lshl_b32 s{S_T2}, s{S_WN}, 7\ns_add_u32 s{S_T}, s{S_T}, s{S_T2}\ns_lshl_b32 s{S_T2}, s3, 6\ns_add_u32 s{S_T}, s{S_T}, s{S_T2}")
        a.need(rng(rs, 4))
        for x in range(4):
            if not self.o.get("sentinel", True): a.e(f"s_waitcnt vmcnt({(3-x)*2 + x})")
            p = pk + 4*(x & 1)
            for f in range(2):
                acc = g.acc[x][f]; q_ = pt + 8*x + 4*f
                if prefold:
                    for pp_ in range(2):
                        a.e(f"v_pk_fma_f32 {vr(acc+2*pp_,2)}, {vr(q_+2*pp_,2)}, {vr(rs+(x & ~1),2)}, {vr(acc+2*pp_,2)} op_sel:[0,{x & 1},0] op_sel_hi:[1,{x & 1},1]")
                    for d in range(2): a.e(f"v_cvt_pk_bf16_f32 v{p+2*f+d}, v{acc+2*d}, v{acc+2*d+1}")
                    continue
                for pp_ in range(2):
                    a.e(f"v_pk_add_f32 {vr(acc+2*pp_,2)}, {vr(acc+2*pp_,2)}, {vr(q_+2*pp_,2)}")
                for d in range(2):
                    src = hr + 4*x + 2*f + d
                    a.e(f"v_lshlrev_b32 v{t0}, 16, v{src}\nv_and_b32 v{t1}, 0xffff0000, v{src}")
                    a.e(f"v_fma_f32 v{t0}, v{acc+2*d}, v{rs+x}, v{t0}\nv_fma_f32 v{t1}, v{acc+2*d+1}, v{rs+x}, v{t1}")
                    a.e(f"v_cvt_pk_bf16_f32 v{p+2*f+d}, v{t0}, v{t1}")
            a.e("s_nop 1")
            a.e(f"v_permlane16_swap_b32 v{p}, v{p+2}\nv_permlane16_swap_b32 v{p+1}, v{p+3}")
            a.e(f"buffer_store_dwordx4 {vr(p,4)}, v{vo}, s[{S_OUT}:{S_OUT+3}], s{S_T} offen sc1")
            if x < 3: a.e(f"s_add_u32 s{S_T}, s{S_T}, {16*2048}")
        self.stamp(C, 14)

if __name__ == "__main__":
    import sys
    diag = "--diag" in sys.argv
    args = [x for x in sys.argv[1:] if not x.startswith("--")]
    out = args[0] if args else "mk.s"
    mk = MK(dict(diag=diag))
    body = mk.build()
    hdr = f"""; Single persistent launch: 256 workgroups (one per CU) x 8 waves (4 MFMA waves + 4 loader/helper waves).
; @launch grid=(256,1,1) block=(512,1,1) lds={LDS_TOTAL}
.amdgcn_target "amdgcn-amd-amdhsa--gfx950"
.text
"""
    open(out, "w").write(hdr + body)
    print("wrote", out, len((hdr+body).splitlines()), "lines")
```

```python
from gemm2 import *
from hz import HZ
import common

NAME = "sequential_preLN__sliding_block__dense_activation_relu__prompt_kernel"
L_SPARE = 122880
L_SIDE = 159744
SD_MEAN1, SD_RSTD1, SD_CSQ = L_SIDE, L_SIDE+512, L_SIDE+1024
SD_MEAN2, SD_RSTD2, SD_CS1 = L_SIDE+2048, L_SIDE+2560, L_SIDE+3072
SD_CNT = L_SIDE + 3968
SD_TOK = SD_CNT + 32
SD_FULL, SD_FREE = L_SIDE + 4016, L_SIDE + 4032
S_TG = 77
LDS_TOTAL = 163840
AT_K = lambda hh: hh*49152
AT_V = lambda hh: hh*49152 + 24576
AT_Q0 = 98304
WS_KV = 4*MB
WS_ST1 = 36*MB; WS_CSQ = 36*MB + 64*1024; WS_CS1 = 36*MB + 512*1024; WS_ST2 = 37*MB
WS_XCH = 44*MB
WS_FLAG = 52*MB
FSTR = 32768
F_H, F_H1, F_O, F_S2, F_Q = [WS_FLAG + k*FSTR for k in range(5)]
F_KV, F_CS1 = WS_FLAG + 5*FSTR, WS_FLAG + 6*FSTR
F_P = WS_FLAG + 7*FSTR
OOB = 0x7ffffff0
WS_BYTES = 56*MB
S_WS, S_DBG, S_OUT = S_E0, S_E1, S_E2
POLL_MAX = 400000
QSCALE = (DH ** -0.5) * 1.4426950408889634

class VM:
    def __init__(s, a): s.a = a; s.q = []
    def iss(s, tag, n=1): s.q += [tag]*n
    def count_after(s, tag):
        idx = max(i for i, t in enumerate(s.q) if t == tag)
        return len(s.q) - 1 - idx
    def wait(s, tag, extra=""):
        if tag not in s.q: return
        n = min(63, s.count_after(tag))
        s.a.e(f"s_waitcnt vmcnt({n}) {extra}".strip())
        s.q = s.q[len(s.q)-n:] if n else []
    def drain(s): s.a.e("s_waitcnt vmcnt(0)"); s.q = []

class MK:
    def __init__(self, opts=None):
        self.o = dict(diag=False, pf_first=False, pf_weights=True, stop_after=None, tlb=False, codepf=True)
        self.o.update(opts or {})
        self.C = Asm(); self.L = Asm(); self.A = Asm(); self.tail = Asm()
        self.nbar = 0; self.nl = 0; self.lnames = []
    def bar(self):
        self.C.e("s_barrier"); self.L.e("s_barrier")
    def stamp(self, a, k):
        if self.o["diag"]:
            a.e(f"s_memrealtime s[88:89]\ns_waitcnt lgkmcnt(0)\nv_writelane_b32 v255, s88, {k}")
            a.lq = []
    def ptr(self, o): return (S_PTR+16, S_PTR+17) if o == A_WS else (S_PTR + o//4, S_PTR + o//4 + 1)
    def poll_test(self, a, vtmp, x2=False, token=True):
        if token: a.e(f"v_cmp_eq_u32 vcc, s1, v{vtmp}\ns_nop 4\ns_cmp_eq_u64 vcc, exec")
        else: a.e(f"v_cmp_ne_u32 vcc, 0, v{vtmp}\ns_nop 4\ns_cmp_eq_u64 vcc, exec")
    def poll(self, a, srd_, vaddr, vtmp, label, byte=False, x2=False, token=True):
        a.e(f"s_mov_b32 s{S_CNT}, {POLL_MAX}")
        a.label(f"L_poll_{label}")
        ld = f"buffer_load_dwordx2 {vr(vtmp,2)}" if x2 else f"buffer_load_{'ubyte' if byte else 'dword'} v{vtmp}"
        a.e(f"{ld}, v{vaddr}, s[{srd_}:{srd_+3}], 0 offen sc1\ns_waitcnt vmcnt(0)")
        self.poll_test(a, vtmp, x2, token)
        a.e(f"s_cbranch_scc1 L_polldone_{label}")
        a.e(f"s_sleep {self.o.get('sleep', 4)}\ns_sub_u32 s{S_CNT}, s{S_CNT}, 1\ns_cmp_lg_u32 s{S_CNT}, 0\ns_cbranch_scc1 L_poll_{label}")
        a.label(f"L_polldone_{label}")
    def one_lane_addr(self, a, dst, soff_reg, only_lw0):
        if only_lw0:
            a.e(f"s_cmp_eq_u32 s{S_LW}, 0\ns_cselect_b32 s{soff_reg}, s{soff_reg}, {hex(OOB)}")
        a.e(f"v_mov_b32 v{dst}, {hex(OOB)}\nv_writelane_b32 v{dst}, s{soff_reg}, 0")
    def signal(self, a, soff_code, vt0, vt1, only_lw0=False, srd_=None, byte=False):
        srd_ = S_WS if srd_ is None else srd_
        a.e(soff_code)
        self.one_lane_addr(a, vt1, S_T, only_lw0)
        a.e(f"v_mov_b32 v{vt0}, s1\nbuffer_store_dword v{vt0}, v{vt1}, s[{srd_}:{srd_+3}], 0 offen sc1")
    def off_ijw(self, base, wreg):
        return f"s_lshl_b32 s{S_T}, s{S_I}, 6\ns_lshl_b32 s{S_T2}, s{S_J}, 2\ns_add_u32 s{S_T}, s{S_T}, s{S_T2}\ns_add_u32 s{S_T}, s{S_T}, s{wreg}\ns_lshl_b32 s{S_T}, s{S_T}, 2\ns_add_u32 s{S_T}, s{S_T}, {base}"
    def off_ij(self, base):
        return f"s_lshl_b32 s{S_T}, s{S_I}, 4\ns_add_u32 s{S_T}, s{S_T}, s{S_J}\ns_lshl_b32 s{S_T}, s{S_T}, 7\ns_add_u32 s{S_T}, s{S_T}, {base}"
    def off_ji(self, base):
        return f"s_lshl_b32 s{S_T}, s{S_J}, 4\ns_add_u32 s{S_T}, s{S_T}, s{S_I}\ns_lshl_b32 s{S_T}, s{S_T}, 7\ns_add_u32 s{S_T}, s{S_T}, {base}"
    def signal_last(self, a, k, nwaves, soff_code, vt0, vt1, label):
        a.e(f"v_mov_b32 v{vt0}, {SD_CNT + 4*k}\nv_mov_b32 v{vt1}, 1\ns_mov_b64 exec, 1")
        a.e(f"ds_add_rtn_u32 v{vt0}, v{vt0}, v{vt1}")
        a.e(soff_code)
        a.e(f"s_waitcnt lgkmcnt(0)\nv_readfirstlane_b32 s{S_T2}, v{vt0}\nv_mov_b32 v{vt0}, 0\nv_mov_b32 v{vt1}, s1\ns_nop 1\ns_cmp_eq_u32 s{S_T2}, {nwaves-1}\ns_cbranch_scc0 L_notlast_{label}")
        a.e(f"buffer_store_dword v{vt1}, v{vt0}, s[{S_WS}:{S_WS+3}], s{S_T} offen sc1")
        a.label(f"L_notlast_{label}")
        a.e("s_mov_b64 exec, -1"); a.lq = []
    def group_words(self, a, dst, base, grp_sreg):
        a.e(f"s_lshl_b32 s{S_T}, s{grp_sreg}, 11\ns_add_u32 s{S_T}, s{S_T}, {base}\nv_and_b32 v{dst}, 15, v{self.vL}\nv_lshlrev_b32 v{dst}, 7, v{dst}\nv_add_u32 v{dst}, s{S_T}, v{dst}")
    def row_words(self, a, dst, base, stride_shift, lane_shift):
        a.e(f"s_lshl_b32 s{S_T}, s{S_I}, {stride_shift}\ns_add_u32 s{S_T}, s{S_T}, {base}\nv_lshlrev_b32 v{dst}, {lane_shift}, v{self.vL}\nv_add_u32 v{dst}, s{S_T}, v{dst}")
    def lane0(self, a, body, label):
        a.e(f"v_cmp_eq_u32 vcc, 0, v{self.vL}\ns_and_saveexec_b64 s[{S_EX}:{S_EX+1}], vcc")
        a.e(body)
        a.e(f"s_mov_b64 exec, s[{S_EX}:{S_EX+1}]")
    def only_lw0(self, a, label, fn):
        a.e(f"s_cmp_lg_u32 s{S_LW}, 0\ns_cbranch_scc1 L_skip_{label}")
        fn()
        a.label(f"L_skip_{label}")

    def cfgs(self):
        base = dict(shape=16, loaders=True, split=True, xflag="", xoff0=0, read_frac=0.5, extra_start=0.3, WM=2, WN=2)
        q = Cfg(name="q", TN=192, K=1024, Kx=1024, xsrc="rm", ldx=2048, korder="std", ldw=6144, qkvseg=True, S=3,
                fcol=lambda wn, f: wn*32 + (64*(f//2) + 16*(f % 2)), orient=lambda f: "nm" if f >= 4 else "mn",
                woff=lambda a: a.e(f"s_lshl_b32 s{S_WOFF}, s{S_J}, 7"), **base)
        o = Cfg(name="o", TN=64, K=1024, Kx=1024, xsrc="fn", korder="fn32", ldw=2048, S=self.o.get("So", 6),
                fcol=lambda wn, f: wn*32 + 16*f, orient=lambda f: "mn",
                woff=lambda a: a.e(f"s_lshl_b32 s{S_WOFF}, s{S_J}, 7"), **base)
        f1 = Cfg(name="f1", TN=224, K=1024, Kx=1024, xsrc="fn", korder="fn", ldw=7168, S=3,
                 fcol=lambda wn, f: (wn*128 + 16*f) if f < 6 else (wn*16 + 96), orient=lambda f: "mn",
                 woff=lambda a: a.e(f"s_mul_i32 s{S_WOFF}, s{S_J}, 448"), **base)
        def woff2(a):
            a.e(f"s_and_b32 s{S_T}, s{S_J}, 7\ns_lshl_b32 s{S_WOFF}, s{S_T}, 8\ns_lshr_b32 s{S_T}, s{S_J}, 3\ns_mul_i32 s{S_T}, s{S_T}, {1792*2048}\ns_add_u32 s{S_WOFF}, s{S_WOFF}, s{S_T}")
        f2 = Cfg(name="f2", TN=128, K=1792, Kx=3584, xsrc="fn", korder="fn", ldw=2048, S=4,
                 fcol=lambda wn, f: (wn*64 + S("kh")*32 + 16*f) if f < 2 else (wn*64 + (S("kh") ^ 1)*32 + 16*(f-2)), orient=lambda f: "mn", woff=woff2, **base)
        for c in (o, f1, f2): c.xflag = "sc1"
        q.read_frac = self.o.get("rfq", 0.75); o.read_frac = self.o.get("rfo", 0.5); f1.read_frac = self.o.get("rf1", 0.9); f2.read_frac = self.o.get("rf2", 0.8)
        if self.o.get("own2", True): f2.rot = True; f2.gap = 3
        q.rot = True; f1.rot = True; q.rotpos = self.o.get("qrot", 2); f1.rotpos = 0
        return q, o, f1, f2

    def xoff_fn(self, a, c, wsbase, khalf=False):
        a.e(f"s_mul_i32 s{S_XOFF}, s{S_I}, {(c.Kx//64)*16384}\ns_add_u32 s{S_XOFF}, s{S_XOFF}, {wsbase}")
        if khalf:
            a.e(f"s_lshr_b32 s{S_T}, s{S_J}, 3\ns_mul_i32 s{S_T}, s{S_T}, {28*16384}\ns_add_u32 s{S_XOFF}, s{S_XOFF}, s{S_T}")

    def build(self):
        C, L = self.C, self.L
        E = Asm()
        q, o, f1, f2 = self.cfgs()
        self.vL = 1; vt = [2, 3, 4, 5, 6, 7]; tmp2 = (8, 9); self.vL16 = 10; self.vZero = 11
        self.vt = vt
        gq, go, g1, g2 = [G(c, C, None, self.vL, vt) for c in (q, o, f1, f2)]
        self.g = (gq, go, g1, g2)
        E.e(f"s_cmp_ge_u32 s2, 256\ns_cbranch_scc1 L_end")
        if self.o.get("codepf", True):
            E.e("s_getpc_b64 s[96:97]")
            E.label("L_pc")
            E.e("v_lshlrev_b32 v2, 7, v0\ns_mov_b32 s3, L_end-L_pc\nv_min_u32 v2, s3, v2\nglobal_load_dword v254, v2, s[96:97]")
        E.e(f"s_load_dwordx16 s[{S_PTR}:{S_PTR+15}], s[0:1], 0\ns_load_dwordx2 s[{S_PTR+16}:{S_PTR+17}], s[0:1], 64")
        if self.o["diag"]:
            E.e("v_mov_b32 v255, 0\nv_mov_b32 v253, 0"); self.stamp(E, 0)
        E.e(f"s_and_b32 s{S_T}, s2, 7\ns_lshr_b32 s{S_T2}, s2, 3")
        if self.o.get("xmap", 1):
            E.e(f"s_and_b32 s{S_I}, s{S_T}, 1\ns_lshr_b32 s{S_J}, s{S_T}, 1\ns_lshl_b32 s{S_I}, s{S_I}, 3\ns_lshl_b32 s{S_J}, s{S_J}, 2")
        else:
            E.e(f"s_lshr_b32 s{S_I}, s{S_T}, 2\ns_and_b32 s{S_J}, s{S_T}, 3\ns_lshl_b32 s{S_I}, s{S_I}, 3\ns_lshl_b32 s{S_J}, s{S_J}, 2")
        E.e(f"s_lshr_b32 s{S_T}, s{S_T2}, 2\ns_and_b32 s{S_T2}, s{S_T2}, 3\ns_add_u32 s{S_I}, s{S_I}, s{S_T}\ns_add_u32 s{S_J}, s{S_J}, s{S_T2}")
        E.e(f"v_and_b32 v{self.vL}, 63, v0\nv_lshrrev_b32 v2, 6, v0\ns_nop 0\nv_readfirstlane_b32 s{S_WV}, v2\nv_lshlrev_b32 v{self.vL16}, 4, v{self.vL}\nv_mov_b32 v{self.vZero}, 0\ns_nop 1")
        E.e(f"s_and_b32 s{S_LW}, s{S_WV}, 3\ns_lshr_b32 s{S_WM}, s{S_LW}, 1\ns_and_b32 s{S_WN}, s{S_LW}, 1")
        E.e(f"s_cmp_ge_u32 s{S_WV}, 4\ns_cbranch_scc1 L_loader")
        lv = Regs(12, 64)
        gq.alloc_loader(lv); go.alloc_loader(lv); g1.alloc_loader(lv); g2.alloc_loader(lv)
        self.lv_end = lv.n
        self.phase_q(gq, g1)
        self.attention()
        stop = self.o["stop_after"]
        self.phase_o(go)
        self.phase_f1(g1)
        self.phase_f2(g2)
        if self.o["diag"]:
            self.stamp(C, 15)
            C.e(f"s_cmp_lg_u32 s{S_WV}, 0\ns_cbranch_scc1 L_end")
            C.e(f"s_lshl_b32 s{S_T}, s2, 7\ns_add_u32 s{S_T}, s{S_T}, {common.WS_STAMP}\nv_lshlrev_b32 v2, 2, v{self.vL}")
            C.e(f"v_cmp_gt_u32 vcc, 32, v{self.vL}\ns_and_saveexec_b64 s[{S_EX}:{S_EX+1}], vcc")
            C.e(f"buffer_store_dword v255, v2, s[{S_WS}:{S_WS+3}], s{S_T} offen")
            if self.o.get("dbgout") is not None:
                C.e(f"s_cmp_lg_u32 s2, {self.o['dbgout']}\ns_cbranch_scc1 L_end")
                srd(C, S_DBG, *self.ptr(A_DBG), 256)
                C.e(f"v_readlane_b32 s{S_T}, v255, 0\ns_nop 3\nv_subrev_u32 v255, s{S_T}, v255\nv_cmp_gt_u32 vcc, 16, v{self.vL}\ns_nop 1\ns_and_b64 exec, exec, vcc\nv_cmp_lt_u32 vcc, 0, v{self.vL}\ns_nop 1\ns_and_b64 exec, exec, vcc")
                C.e(f"buffer_store_dword v255, v2, s[{S_DBG}:{S_DBG+3}], 0 offen")
        C.e("s_branch L_end")
        if self.o["diag"]:
            L.e(f"s_cmp_lg_u32 s{S_WV}, 4\ns_cbranch_scc1 L_end")
            L.e(f"s_lshl_b32 s{S_T}, s2, 9\ns_add_u32 s{S_T}, s{S_T}, {common.WS_STAMP + 131072}\nv_lshlrev_b32 v2, 2, v{self.vL}")
            L.e(f"buffer_store_dword v255, v2, s[{S_WS}:{S_WS+3}], s{S_T} offen\nbuffer_store_dword v253, v2, s[{S_WS}:{S_WS+3}], s{S_T} offen offset:256")
        txt = head(NAME) + E.text() + C.text() + "L_loader:\n" + L.text() + "  s_branch L_end\n" + self.A.text() + self.tail.text() + "L_end:\n  s_endpgm\n" + kd(NAME)
        return txt

    def srds_common(self, a):
        a.e("s_waitcnt lgkmcnt(0)")
        srd(a, S_WS, *self.ptr(A_WS), WS_BYTES, self.o.get('wsoff', 0))
        srd(a, S_DBG, *self.ptr(A_DBG), 256)

    def phase_q(self, g, g1):
        C, L, c = self.C, self.L, g.c
        vL, vt = self.vL, self.vt
        g.bind(L, vL, vt, (8, 9)); vm = VM(L)
        em = g.em
        L.e("s_setprio 1")
        g.setup_dma()
        if self.o.get("lpro"): self.lstamp("setup")
        L.e("s_waitcnt lgkmcnt(0)")
        srd(L, S_XSRD, *self.ptr(A_X), M*D*2)
        srd(L, S_WSRD, *self.ptr(A_WQKV), D*3*D*2)
        def issue(t):
            for ins in g.dma_list(t): L.e(ins)
            vm.iss(("st", t), c.nld)
        for ins in g.rot_init(): L.e(ins)
        L.e(f"s_mov_b32 s{S_WR}, 0")
        for s in range(2):
            issue(s); L.e(f"s_add_u32 s{S_WR}, s{S_WR}, {c.SB}")
            if self.o.get("lpro"): self.lstamp("iss")
        srd(L, S_WS, *self.ptr(A_WS), WS_BYTES, self.o.get('wsoff', 0)); srd(L, S_DBG, *self.ptr(A_DBG), 256)
        sv = Regs(64, 250)
        ones = sv.alloc(4, 4); wf = [sv.alloc(4, 4) for _ in range(8)]; sacc = [sv.alloc(4, 4) for _ in range(4)]
        vS = [sv.alloc() for _ in range(8)]; ldr = sv.alloc(32, 4)
        t0, t1, t2 = vt[0:3]
        L.e(f"v_lshlrev_b32 v{t0}, 2, v{vL}\nv_add_u32 v{t0}, {SD_CNT}, v{t0}\nv_cmp_gt_u32 vcc, 8, v{vL}\ns_and_saveexec_b64 s[{S_EX}:{S_EX+1}], vcc")
        L.lds_other(f"ds_write_b32 v{t0}, v{self.vZero}"); L.e(f"s_mov_b64 exec, s[{S_EX}:{S_EX+1}]")
        for k in range(4): L.e(f"v_mov_b32 v{ones+k}, 0x3f803f80")
        vL4 = sv.alloc(); rq = [sv.alloc() for _ in range(4)]
        L.e(f"v_lshlrev_b32 v{vL4}, 2, v{vL}")
        cls_q = self.csum_setup(g, 3, rq)
        csq_code = f"s_lshl_b32 s{S_T}, s{S_I}, 4\ns_add_u32 s{S_T}, s{S_T}, s{S_J}\ns_mul_i32 s{S_T2}, s{S_T}, 768\ns_mul_i32 s{S_T}, s{S_LW}, 192\ns_add_u32 s{S_T2}, s{S_T2}, s{S_T}\ns_add_u32 s{S_T2}, s{S_T2}, {WS_CSQ}"
        FLQ = 2 if self.o.get("flagsq", False) else 0
        if FLQ: self.lflag_init()
        if self.o.get("lpro"): self.lstamp("pre")
        vm.wait(("st", 0))
        if self.o.get("lpro"): self.lstamp("land")
        L.lds_drain(); self.bar_L_only()
        issue(2); L.e(f"s_mov_b32 s{S_WR}, 0")
        RP = c.rotpos
        if RP == 0: self.csum_reads(3, cls_q, rq, wf)
        vm.wait(("st", 1)); L.lds_drain(); self.bar_L_only()
        ns, S = c.nsteps, c.S
        def hook(t):
            if RP > 0 and t == RP - 1: self.csum_reads(3, cls_q, rq, wf)
            if t == RP: self.csum_finish(vm, 3, 12, ones, wf, sacc, vL4, csq_code)
            if t == RP + 3 and self.o.get("qsigL", True):
                if FLQ:
                    L.e(f"v_mov_b32 v{vS[3]}, {SD_FULL}"); self.lwait(vS[3], RP + 5, "qsig")
                self.signal(L, self.off_ij(F_Q), vS[0], vS[1], only_lw0=True); vm.iss("sig")
            if t == 1:
                L.e(f"v_mov_b32 v{vS[2]}, {SD_TOK}\nds_read_b32 v{vS[2]}, v{vS[2]}\ns_waitcnt lgkmcnt(0)\nv_readfirstlane_b32 s1, v{vS[2]}")
            if t == self.o.get("qpoll", 9):
                t0, t1 = vt[0:2]
                L.e(f"v_and_b32 v{t0}, 15, v{vL}\ns_lshl_b32 s{S_T}, s{S_I}, 4\nv_add_u32 v{t1}, s{S_T}, v{t0}\nv_lshlrev_b32 v{t0}, 4, v{t0}\nv_add_u32 v{t0}, s{S_J}, v{t0}")
                L.e(f"v_and_b32 v{vS[7]}, 16, v{vL}\nv_cmp_eq_u32 vcc, 0, v{vS[7]}\ns_nop 1\nv_cndmask_b32 v{vS[7]}, v{t0}, v{t1}, vcc\nv_lshlrev_b32 v{vS[7]}, 7, v{vS[7]}\nv_add_u32 v{vS[7]}, {F_Q}, v{vS[7]}")
                L.e(f"buffer_load_dword v{vS[6]}, v{vS[7]}, s[{S_WS}:{S_WS+3}], 0 offen sc1"); vm.iss("pollq")
            if t == 11:
                vm.wait("pollq")
                self.poll_test(L, vS[6])
                L.e("s_cbranch_scc1 L_qready")
                self.poll(L, S_WS, vS[7], vS[6], "q")
                L.label("L_qready")
                self.colsum_loads(L, vm, "qld", ldr, vS[1], vS[2], 12, 768, f"s_mul_i32 s{S_T2}, s{S_J}, 768\ns_mul_i32 s{S_T}, s{S_LW}, 192\ns_add_u32 s{S_T2}, s{S_T2}, s{S_T}\ns_add_u32 s{S_T2}, s{S_T2}, {WS_CSQ}")
                L.e(f"s_lshl_b32 s{S_T2}, s{S_I}, 7\ns_lshl_b32 s{S_T}, s{S_LW}, 5\ns_add_u32 s{S_T2}, s{S_T2}, s{S_T}\ns_lshl_b32 s{S_T2}, s{S_T2}, 3\ns_add_u32 s{S_T2}, s{S_T2}, {WS_ST1}")
                L.e(f"v_and_b32 v{vS[3]}, 31, v{vL}\nv_lshlrev_b32 v{vS[3]}, 3, v{vS[3]}\nbuffer_load_dwordx2 {vr(ldr+16,2)}, v{vS[3]}, s[{S_WS}:{S_WS+3}], s{S_T2} offen sc1")
                vm.iss("qld", 1)
            if t == 13:
                vm.wait("qld")
                if self.o.get("lowhooks", True): L.e("s_setprio 0")
                self.colsum_reduce(L, ldr, ldr+20, vS[1], 12, SD_CSQ, 192)
                if self.o.get("lowhooks", True): L.e("s_setprio 1")
                L.e(f"v_and_b32 v{vS[3]}, 31, v{vL}\ns_lshl_b32 s{S_T}, s{S_LW}, 5\nv_add_u32 v{vS[3]}, s{S_T}, v{vS[3]}\nv_lshlrev_b32 v{vS[3]}, 2, v{vS[3]}\nv_add_u32 v{vS[3]}, {SD_MEAN1}, v{vS[3]}")
                L.e(f"ds_write_b32 v{vS[3]}, v{ldr+16}\nds_write_b32 v{vS[3]}, v{ldr+17} offset:512")
                L.e("s_waitcnt lgkmcnt(0)"); L.lq = []
        for t in range(ns-1):
            if t + S <= ns-1:
                if FLQ and t > FLQ: self.lwait(46, t + 2, f"q{t}")
                issue(t+S); L.e(g.adv_slot(S_WR))
            hook(t)
            if t+2 <= ns-1 and ("st", t+2) in vm.q: vm.wait(("st", t+2))
            L.lds_drain()
            if FLQ and FLQ - 1 <= t <= ns-3: self.lfull(t + 3)
            if not FLQ or t < FLQ or t == ns-2:
                L.lds_drain(); self.bar_L_only()
            else: self.lstamp()
        g.bind(C, vL, vt, (8, 9))
        cv = Regs(12, 254); g.alloc_compute(cv)
        g.a = C
        C.e("s_setprio 3")
        a0 = g.acc[0][0]; xr = a0; un = a0 + 16; vS = [a0 + 48 + k for k in range(6)]
        C.e("s_waitcnt lgkmcnt(0)")
        self.stamp(C, 16)
        srd(C, S_XSRD, *self.ptr(A_X), M*D*2)
        srd(C, S_DBG, *self.ptr(A_DBG), 256)
        C.e(f"s_or_b32 s{S_T}, s2, s{S_LW}\ns_cmp_lg_u32 s{S_T}, 0\ns_cbranch_scc1 L_notok")
        C.e(f"s_memrealtime s[88:89]\ns_waitcnt lgkmcnt(0)\ns_or_b32 s88, s88, 1\nv_mov_b32 v{vt[0]}, s88")
        self.lane0(C, f"buffer_store_dword v{vt[0]}, v{self.vZero}, s[{S_DBG}:{S_DBG+3}], 0 offen sc1", "tok")
        C.label("L_notok")
        C.e(f"s_lshl_b32 s{S_T}, s{S_I}, 7\ns_lshl_b32 s{S_T2}, s{S_J}, 3\ns_add_u32 s{S_T}, s{S_T}, s{S_T2}\ns_lshl_b32 s{S_T2}, s{S_LW}, 1\ns_add_u32 s71, s{S_T}, s{S_T2}\ns_lshl_b32 s{S_T}, s71, 11")
        for r in range(2):
            for p in range(2):
                C.e(f"buffer_load_dwordx4 {vr(xr+8*r+4*p,4)}, v{self.vL16}, s[{S_XSRD}:{S_XSRD+3}], s{S_T} offen offset:{r*2048+p*1024}")
        slabpf = self.o.get("slabpf", False)
        if slabpf:
            t0, t1, t2 = vt[0:3]
            mg3, sh3 = magic_div(3, 256)
            srd(C, S_E3, *self.ptr(A_WQKV), D*3*D*2)
            C.e(f"s_mul_i32 s{S_T}, s{S_LW}, 48\nv_min_u32 v{t0}, 47, v{vL}\nv_add_u32 v{t0}, s{S_T}, v{t0}\nv_mul_u32_u24 v{t1}, {mg3}, v{t0}\nv_lshrrev_b32 v{t1}, {sh3}, v{t1}")
            C.e(f"v_mul_u32_u24 v{t2}, 3, v{t1}\nv_sub_u32 v{t0}, v{t0}, v{t2}\nv_lshlrev_b32 v{t0}, 11, v{t0}\nv_mul_u32_u24 v{t1}, 6144, v{t1}\nv_add_u32 v{t0}, v{t0}, v{t1}")
            C.e(f"s_mul_i32 s{S_T}, s{S_I}, {64*6144}\ns_lshl_b32 s{S_T2}, s{S_J}, 7\ns_add_u32 s{S_T}, s{S_T}, s{S_T2}\nbuffer_load_dword v254, v{t0}, s[{S_E3}:{S_E3+3}], s{S_T} offen")
        srd(C, S_WS, *self.ptr(A_WS), WS_BYTES, self.o.get('wsoff', 0))
        g.setup_reads()
        C.e(f"s_lshl_b32 s{S_T}, s2, 2\ns_add_u32 s{S_T}, s{S_T}, s{S_LW}\ns_mul_i32 s{S_T2}, s{S_T}, 43691\ns_lshr_b32 s{S_T2}, s{S_T2}, 19\ns_mul_i32 s{S_T2}, s{S_T2}, 12\ns_sub_u32 s{S_T}, s{S_T}, s{S_T2}\ns_add_u32 s70, s{S_T}, 1" if False else "s_nop 0")
        self.stamp(C, 17)
        C.e(f"s_waitcnt vmcnt({1 if slabpf else 0})")
        self.stamp(C, 18)
        vtok = cv.alloc()
        C.e(f"buffer_load_dword v{vtok}, v{self.vZero}, s[{S_DBG}:{S_DBG+3}], 0 offen sc1")
        for r in range(2):
            for d in range(8):
                C.e(f"v_lshlrev_b32 v{un+16*r+2*d}, 16, v{xr+8*r+d}\nv_and_b32 v{un+16*r+2*d+1}, 0xffff0000, v{xr+8*r+d}")
        def tree(dst, src):
            pass
        for r in range(2): C.e(f"v_add_f32 v{vS[r]}, v{un+16*r}, v{un+16*r+1}\nv_add_f32 v{vS[2+r]}, v{un+16*r+2}, v{un+16*r+3}")
        for k in range(4, 16, 2):
            for r in range(2): C.e(f"v_add_f32 v{vS[r]}, v{vS[r]}, v{un+16*r+k}\nv_add_f32 v{vS[2+r]}, v{vS[2+r]}, v{un+16*r+k+1}")
        for r in range(2): C.e(f"v_add_f32 v{vS[r]}, v{vS[r]}, v{vS[2+r]}")
        def allred2(x0, x1, ta, tb):
            for p in ["quad_perm:[1,0,3,2]", "quad_perm:[2,3,0,1]", "row_half_mirror", "row_mirror"]:
                C.e("s_nop 0")
                for x in (x0, x1): C.e(f"v_add_f32_dpp v{x}, v{x}, v{x} {p} row_mask:0xf bank_mask:0xf")
            for sw in ("v_permlane16_swap_b32", "v_permlane32_swap_b32"):
                C.e(f"v_mov_b32 v{ta}, v{x0}\nv_mov_b32 v{tb}, v{x1}\ns_nop 0\n{sw} v{ta}, v{x0}\n{sw} v{tb}, v{x1}\ns_nop 0\nv_add_f32 v{x0}, v{x0}, v{ta}\nv_add_f32 v{x1}, v{x1}, v{tb}")
        C.e("s_nop 0")
        allred2(vS[0], vS[1], vS[4], vS[5])
        for r in range(2): C.e(f"v_mul_f32 v{vS[r]}, {fhex(1/1024)}, v{vS[r]}")
        for k in range(16):
            for r in range(2): C.e(f"v_sub_f32 v{un+16*r+k}, v{un+16*r+k}, v{vS[r]}")
        for r in range(2): C.e(f"v_mul_f32 v{vS[2+r]}, v{un+16*r}, v{un+16*r}")
        for k in range(1, 16):
            for r in range(2): C.e(f"v_fmac_f32 v{vS[2+r]}, v{un+16*r+k}, v{un+16*r+k}")
        C.e("s_nop 0")
        allred2(vS[2], vS[3], vS[4], vS[5])
        for r in range(2): C.e(f"v_mul_f32 v{vS[2+r]}, {fhex(1/1024)}, v{vS[2+r]}\nv_add_f32 v{vS[2+r]}, {fhex(EPS)}, v{vS[2+r]}")
        for r in range(2): C.e(f"v_rsq_f32 v{vS[2+r]}, v{vS[2+r]}")
        C.e(f"v_mov_b32 v{un}, v{vS[0]}\nv_mov_b32 v{un+2}, v{vS[1]}\nv_mov_b32 v{un+1}, v{vS[2]}\nv_mov_b32 v{un+3}, v{vS[3]}")
        C.e(f"s_lshl_b32 s{S_T}, s71, 3\ns_add_u32 s{S_T}, s{S_T}, {WS_ST1}")
        self.lane0(C, f"buffer_store_dwordx4 {vr(un,4)}, v{self.vZero}, s[{S_WS}:{S_WS+3}], s{S_T} offen sc1", "st1")
        self.stamp(C, 19)
        nextra = 0
        t0, t1 = vt[0:2]
        if self.o.get("sentinel", True) and self.o.get("markat", "f1") == "q":
            mk4 = a0 + 60
            for k in range(4): C.e(f"v_mov_b32 v{mk4+k}, -1")
            C.e(f"s_lshl_b32 s{S_T}, s{S_I}, 4\ns_add_u32 s{S_T}, s{S_T}, s{S_J}\ns_lshl_b32 s{S_T}, s{S_T}, 15\ns_lshl_b32 s{S_T2}, s{S_LW}, 13\ns_add_u32 s{S_T}, s{S_T}, s{S_T2}\ns_add_u32 s{S_T}, s{S_T}, {WS_XCH}")
            for n in range(8):
                if n == 4: C.e(f"s_add_u32 s{S_T}, s{S_T}, 4096")
                C.e(f"buffer_store_dwordx4 {vr(mk4,4)}, v{self.vL16}, s[{S_WS}:{S_WS+3}], s{S_T} offen offset:{(n & 3)*1024} sc1"); nextra += 1
        if self.o.get("tlb", True):
            C.e(f"v_lshlrev_b32 v{t0}, 21, v{vL}")
            for arg, size in ((A_WQKV, D*3*D*2), (A_X, M*D*2), (A_WS, 54*MB), (A_WO, D*D*2), (A_W1, D*DFF*2), (A_W2, DFF*D*2), (A_OUT, M*D*2)):
                p = self.ptr(arg)[0]
                C.e(f"v_min_u32 v{t1}, {hex(size - 4)}, v{t0}\nglobal_load_dword v254, v{t1}, s[{p}:{p+1}]"); nextra += 1
        pfo = cv.alloc(); pf1 = cv.alloc()
        C.e(f"s_lshl_b32 s{S_T}, s2, 2\ns_add_u32 s{S_T}, s{S_T}, s{S_LW}")
        C.e(f"s_lshl_b32 s{S_T2}, s{S_T}, 4\nv_and_b32 v{pfo}, 15, v{vL}\nv_add_u32 v{pfo}, s{S_T2}, v{pfo}\nv_lshlrev_b32 v{pfo}, 7, v{pfo}")
        C.e(f"s_mul_i32 s{S_T2}, s{S_T}, 56\nv_min_u32 v{pf1}, 55, v{vL}\nv_add_u32 v{pf1}, s{S_T2}, v{pf1}\nv_lshlrev_b32 v{pf1}, 7, v{pf1}")
        def hookB(a):
            p = self.ptr(A_WO)[0]; a.e(f"global_load_dword v254, v{pfo}, s[{p}:{p+1}]")
            if self.o.get("pf_w1", True):
                p = self.ptr(A_W1)[0]; a.e(f"global_load_dword v254, v{pf1}, s[{p}:{p+1}]")
            if self.o.get("pf_w2q", False):
                p = self.ptr(A_W2)[0]; a.e(f"global_load_dword v254, v{pf1}, s[{p}:{p+1}]")
        C.e(f"s_and_b32 s{S_T}, s2, 56\ns_lshr_b32 s{S_T}, s{S_T}, 3\ns_add_u32 s71, s{S_T}, 3")
        def hookS(a):
            a.e(f"s_cmp_lg_u32 s{S_LW}, 0\ns_cbranch_scc1 L_nosigq")
            self.signal(a, self.off_ij(F_Q), vt[0], vt[1])
            a.label("L_nosigq")
        hk = {} if self.o.get("qsigL", True) else {14 - (3 + c.rotpos): hookS}
        if self.o["pf_weights"]: hk["s71"] = hookB
        def peel_end():
            C.e(f"s_waitcnt vmcnt({nextra})")
            self.poll_test(C, vtok, token=False)
            C.e("s_cbranch_scc1 L_tokready")
            self.poll(C, S_DBG, self.vZero, vtok, "tok", token=False)
            C.label("L_tokready")
            C.e(f"v_readfirstlane_b32 s1, v{vtok}\nv_mov_b32 v{vt[0]}, {SD_TOK}\nds_write_b32 v{vt[0]}, v{vtok}\ns_waitcnt lgkmcnt(0)")
        self.cloop(g, stamps=(1, 2), hooks=hk, peel_first=peel_end, flags=(2 if self.o.get("flagsq", False) else 0), cv=cv)
        self.epi_q(g, cv)

    def bar_L_only(self):
        self.L.e("s_barrier"); self.lstamp()
    def lstamp(self, tag=''):
        if self.o["diag"] and self.o.get("lst") and self.nl < 128:
            self.L.e(f"s_memrealtime s[88:89]\ns_waitcnt lgkmcnt(0)\nv_writelane_b32 v{255 - 2*(self.nl//64)}, s88, {self.nl % 64}"); self.nl += 1; self.L.lq = []
            self.lnames.append(tag)
    def setup_w_only(self, g):
        c, a, em = g.c, g.a, g.em
        l, lw = g.l, g.lw
        cpr = c.TN//8
        mg, sh = magic_div(cpr, c.nWld*256)
        for n in range(c.nWld):
            flat = lw*(c.nWld*64) + l + n*64
            vr_, vp = g.v_tmp2
            em.vemit((flat*mg) >> sh, vr_); em.vr["row"] = vr_; row = V("row")
            em.vemit(flat - row*cpr, vp); em.vr["p"] = vp; p = V("p")
            ch = p ^ g.wswz(row)
            colb = ((ch >> 3) << 11) + ((ch & 7) << 4) if c.qkvseg else ch << 4
            em.vemit(row*c.ldw + colb - (n % 4)*1024, g.vWsrc[n])

    def xgroups(self, a, regs, tmp):
        for sw in ("v_permlane16_swap_b32", "v_permlane32_swap_b32"):
            for k, r in enumerate(regs): a.e(f"v_mov_b32 v{tmp+k}, v{r}")
            a.e("s_nop 1")
            for k, r in enumerate(regs): a.e(f"{sw} v{tmp+k}, v{r}")
            a.e("s_nop 1")
            for k, r in enumerate(regs): a.e(f"v_add_f32 v{r}, v{r}, v{tmp+k}")
    def colsum_loads(self, a, vm, tag, dst, vaddr, vtmp, nlanes, rowbytes, base_code):
        vL = self.vL
        a.e(base_code)
        a.e(f"v_lshrrev_b32 v{vaddr}, 4, v{vL}\nv_mul_u32_u24 v{vaddr}, {16*rowbytes}, v{vaddr}\nv_and_b32 v{vtmp}, 15, v{vL}\nv_cmp_gt_u32 vcc, {nlanes}, v{vtmp}\nv_lshlrev_b32 v{vtmp}, 4, v{vtmp}\nv_add_u32 v{vaddr}, v{vaddr}, v{vtmp}\nv_mov_b32 v{vtmp}, {hex(OOB)}\nv_cndmask_b32 v{vaddr}, v{vtmp}, v{vaddr}, vcc")
        for n in range(4):
            a.e(f"buffer_load_dwordx4 {vr(dst+4*n,4)}, v{vaddr}, s[{S_WS}:{S_WS+3}], s{S_T2} offen sc1\ns_add_u32 s{S_T2}, s{S_T2}, {4*16*rowbytes}")
        vm.iss(tag, 4)
    def colsum_reduce(self, a, src, tmp, vaddr, nlanes, lds_base, wave_bytes):
        vL = self.vL
        for k in range(4):
            a.e(f"v_add_f32 v{src+k}, v{src+k}, v{src+4+k}\nv_add_f32 v{src+8+k}, v{src+8+k}, v{src+12+k}")
        for k in range(4): a.e(f"v_add_f32 v{src+k}, v{src+k}, v{src+8+k}")
        self.xgroups(a, [src+k for k in range(4)], tmp)
        a.e(f"s_mul_i32 s{S_T}, s{S_LW}, {wave_bytes}\ns_add_u32 s{S_T}, s{S_T}, {lds_base}\nv_lshlrev_b32 v{vaddr}, 4, v{vL}\nv_add_u32 v{vaddr}, s{S_T}, v{vaddr}")
        a.e(f"v_cmp_gt_u32 vcc, {nlanes}, v{vL}\ns_and_saveexec_b64 s[{S_EX}:{S_EX+1}], vcc\nds_write_b128 v{vaddr}, {vr(src,4)}\ns_mov_b64 exec, s[{S_EX}:{S_EX+1}]")
    def slab_plan(self, gg, per):
        cc = gg.c; l = gg.l; lw = gg.lw
        def ex(k, ks, j):
            row = gg.wrow(ks, j)
            ch = (lw*per + k)*2 + ((l >> 1) & 1)
            return row*cc.RS + ((ch ^ gg.wswz(row)) << 4) + (l & 1)*8 + cc.XB + cc.rotpos*cc.SB
        keys = [(k, ks, j) for k in range(per) for ks in range(2) for j in range(2)]
        base = []; cls = {}
        for key in keys:
            t = [ex(*key).ev({"l": ll, "lw": w}) for w in range(4) for ll in range(64)]
            for ci, (bk, bt) in enumerate(base):
                ds = {p - q_ for p, q_ in zip(t, bt)}
                if len(ds) == 1 and 0 <= min(ds) < 65536: cls[key] = (ci, ds.pop()); break
            else:
                base.append((key, t)); cls[key] = (len(base)-1, 0)
        for w in range(4):
            for key in keys:
                assert banks.conflicts_b64([ex(*key).ev({"l": ll, "lw": w}) for ll in range(64)]) == 0
        return [ex(*b[0]) for b in base], cls
    def csum_setup(self, gg, per, regs):
        bases, cls = self.slab_plan(gg, per)
        assert len(bases) <= len(regs)
        gg.bind(self.L, self.vL, self.vt, (8, 9))
        for b, r in zip(bases, regs): gg.em.vemit(b, r)
        return cls
    def csum_reads(self, per, cls, regs, wf):
        L = self.L
        for k in range(per):
            for ks in range(2):
                for j in range(2):
                    ci, imm = cls[(k, ks, j)]; d = wf[2*k+ks] + 2*j
                    L.lds_rd(f"ds_read_b64_tr_b16 {vr(d,2)}, v{regs[ci]} offset:{imm}", rng(d, 2))
    def csum_finish(self, vm, per, nt_total, ones, wf, sacc, vL4, colbase_code):
        L = self.L
        for k in range(4): L.e(f"v_mov_b32 v{ones+k}, 0x3f803f80")
        L.e(colbase_code)
        for k in range(per): L.e(f"v_mfma_f32_16x16x32_bf16 {vr(sacc[k],4)}, {vr(ones,4)}, {vr(wf[2*k],4)}, 0")
        for k in range(per): L.e(f"v_mfma_f32_16x16x32_bf16 {vr(sacc[k],4)}, {vr(ones,4)}, {vr(wf[2*k+1],4)}, {vr(sacc[k],4)}")
        L.e(f"v_cmp_gt_u32 vcc, 16, v{self.vL}\ns_nop 7\ns_and_saveexec_b64 s[{S_EX}:{S_EX+1}], vcc")
        for k in range(per):
            if (3*per + k) == nt_total:
                L.e(f"s_cmp_eq_u32 s{S_LW}, 3\ns_cselect_b32 s{S_T2}, {hex(OOB - 4096)}, s{S_T2}")
            L.e(f"buffer_store_dword v{sacc[k]}, v{vL4}, s[{S_WS}:{S_WS+3}], s{S_T2} offen offset:{k*64} sc1"); vm.iss("cst")
        L.e(f"s_mov_b64 exec, s[{S_EX}:{S_EX+1}]")

    def prefetch_first(self, a, cv):
        vL = self.vL; t0, t1, t2 = self.vt[0:3]; d = cv.alloc(4)
        srd(a, S_XSRD, *self.ptr(A_X), M*D*2); srd(a, S_WSRD, *self.ptr(A_WQKV), D*3*D*2)
        a.e(f"s_lshr_b32 s{S_T}, s2, 3\ns_lshl_b32 s{S_T}, s{S_T}, 2\ns_add_u32 s{S_T}, s{S_T}, s{S_LW}")
        a.e(f"s_mul_i32 s{S_T2}, s{S_T}, 96")
        mg, sh = magic_div(12, 12288); mg3, sh3 = magic_div(3, 12)
        a.e(f"s_lshr_b32 s{S_T3}, s{S_J}, 2\ns_lshl_b32 s{S_T3}, s{S_T3}, 9")
        for n in range(2):
            a.e(f"v_add_u32 v{t0}, s{S_T2}, v{vL}\nv_add_u32 v{t0}, {48*n}, v{t0}")
            a.e(f"v_mul_u32_u24 v{t1}, {mg}, v{t0}\nv_lshrrev_b32 v{t1}, {sh}, v{t1}\nv_mul_u32_u24 v{t2}, 12, v{t1}\nv_sub_u32 v{t0}, v{t0}, v{t2}")
            a.e(f"v_mul_u32_u24 v{t2}, {mg3}, v{t0}\nv_lshrrev_b32 v{t2}, {sh3}, v{t2}")
            a.e(f"v_mul_u32_u24 v{t1}, 6144, v{t1}\nv_lshlrev_b32 v{d+2}, 7, v{t2}\nv_add_u32 v{t1}, v{t1}, v{d+2}")
            a.e(f"v_mul_u32_u24 v{t2}, 3, v{t2}\nv_sub_u32 v{t0}, v{t0}, v{t2}\nv_lshlrev_b32 v{t0}, 11, v{t0}\nv_add_u32 v{t1}, v{t1}, v{t0}")
            a.e(f"v_cmp_gt_u32 vcc, 48, v{vL}\nv_mov_b32 v{t0}, 0x7ffffff0\ns_nop 0\nv_cndmask_b32 v{t1}, v{t0}, v{t1}, vcc")
            a.e(f"buffer_load_dword v254, v{t1}, s[{S_WSRD}:{S_WSRD+3}], s{S_T3} offen")
        a.e(f"s_lshl_b32 s{S_T2}, s{S_T}, 7\ns_lshr_b32 s{S_T3}, s{S_I}, 3\ns_lshl_b32 s{S_T3}, s{S_T3}, 21")
        for n in range(2):
            a.e(f"v_add_u32 v{t0}, s{S_T2}, v{vL}\nv_add_u32 v{t0}, {64*n}, v{t0}\nv_and_b32 v{t1}, 1023, v{t0}\nv_lshlrev_b32 v{t1}, 11, v{t1}\nv_lshrrev_b32 v{t0}, 10, v{t0}\nv_lshlrev_b32 v{t0}, 7, v{t0}\nv_add_u32 v{t1}, v{t1}, v{t0}")
            a.e(f"buffer_load_dword v254, v{t1}, s[{S_XSRD}:{S_XSRD+3}], s{S_T3} offen")
    def prefetch_weights(self, a):
        vL = self.vL; t0, t1 = self.vt[0:2]
        a.e(f"s_lshl_b32 s{S_T}, s2, 2\ns_add_u32 s{S_T}, s{S_T}, s{S_LW}")
        for (arg, nbytes, per, d) in ((A_WO, D*D*2, 16, 2), (A_W1, D*DFF*2, 56, 3)) if self.o.get("pf_w1", True) else ((A_WO, D*D*2, 16, 2),):
            srd(a, S_E3, *self.ptr(arg), nbytes)
            a.e(f"s_mul_i32 s{S_T2}, s{S_T}, {per}\nv_add_u32 v{t0}, s{S_T2}, v{vL}\nv_lshlrev_b32 v{t0}, 7, v{t0}\nv_cmp_gt_u32 vcc, {per}, v{vL}\nv_mov_b32 v{t1}, 0x7ffffff0\ns_nop 0\nv_cndmask_b32 v{t0}, v{t1}, v{t0}, vcc")
            a.e(f"buffer_load_dword v254, v{t0}, s[{S_E3}:{S_E3+3}], 0 offen")
    def prefetch_w2(self, a):
        vL = self.vL; t0, t1 = self.vt[0:2]
        a.e(f"s_lshl_b32 s{S_T}, s2, 2\ns_add_u32 s{S_T}, s{S_T}, s{S_LW}")
        srd(a, S_E3, *self.ptr(A_W2), DFF*D*2)
        a.e(f"s_mul_i32 s{S_T2}, s{S_T}, 56\nv_add_u32 v{t0}, s{S_T2}, v{vL}\nv_lshlrev_b32 v{t0}, 7, v{t0}\nv_cmp_gt_u32 vcc, 56, v{vL}\nv_mov_b32 v{t1}, 0x7ffffff0\ns_nop 0\nv_cndmask_b32 v{t0}, v{t1}, v{t0}, vcc")
        a.e(f"buffer_load_dword v254, v{t0}, s[{S_E3}:{S_E3+3}], 0 offen")

    def cloop(self, g, stamps, hooks=None, peel_first=None, ns=None, first=True, sfx="", flags=0, cv=None):
        c, a = g.c, g.a
        NG = c.NSUB//c.G; S = c.S; ns = ns or c.nsteps; nm = c.name + sfx
        if flags:
            vF = cv.alloc(4, 4); vM = cv.alloc(); vP = cv.alloc(); vFA = cv.alloc(); vFR = cv.alloc()
            a.e(f"v_mov_b32 v{vFA}, {SD_FULL}\ns_lshl_b32 s{S_T}, s{S_LW}, 2\ns_add_u32 s{S_T}, s{S_T}, {SD_FREE}\nv_mov_b32 v{vFR}, s{S_T}\nv_mov_b32 v{vP}, 0")
            a.lds_other(f"ds_write_b32 v{vFR}, v{vP}")
        a.e(f"s_mov_b32 s{S_RD}, 0")
        for ins in g.set_read_addrs(): a.e(ins)
        a.lds_drain(); a.e("s_setprio 0\ns_barrier")
        if stamps[0] is not None: self.stamp(a, stamps[0])
        for r in g.reads(0, 0): a.lds_rd(*r)
        st = 0
        for gi in range(NG-1):
            g.group(st, g.reads(st ^ 1, gi+1), [], first=(first and gi == 0)); st ^= 1
        a.e(g.adv_slot(S_RD))
        for ins in g.set_read_addrs(): a.e(ins)
        a.lds_drain(); a.e("s_barrier")
        par = st
        def body(loopctl=False):
            st = par
            for gi in range(NG):
                late = []; extra = []; tail = []; reads = g.reads(st ^ 1, gi)
                if gi == 0 and loopctl and hooks:
                    for cnt in hooks: extra.append(f"s_cmp_eq_u32 s{S_CNT}, {cnt}\ns_cbranch_scc1 L_hk_{nm}_{cnt}\nL_hkb_{nm}_{cnt}:")
                if gi == NG-1:
                    late.append(g.adv_slot(S_RD)); late += g.set_read_addrs()
                    ctl = f"s_sub_u32 s{S_CNT}, s{S_CNT}, 1\ns_cmp_lg_u32 s{S_CNT}, 0"
                    if loopctl and flags:
                        reads = reads + [(f"ds_read_b128 {vr(vF,4)}, v{vFA}", rng(vF, 4))]
                        tail = [f"v_min3_u32 v{vM}, v{vF}, v{vF+1}, v{vF+2}\nv_mov_b32 v{vP}, s{S_TG}",
                                f"v_min_u32 v{vM}, v{vM}, v{vF+3}",
                                (f"ds_write_b32 v{vFR}, v{vP}",),
                                f"v_readfirstlane_b32 s{S_T4}, v{vM}",
                                f"s_nop 0\ns_cmp_ge_u32 s{S_T4}, s{S_TG}\ns_cbranch_scc0 L_slow_{nm}\nL_slowb_{nm}:",
                                f"s_add_u32 s{S_TG}, s{S_TG}, 1\n" + ctl]
                    elif loopctl: late.append(ctl)
                g.group(st, reads, extra, late=late, tail=tail); st ^= 1
            if not (loopctl and flags): a.lds_drain()
        nb = ns - 2
        npeel = flags if flags else (1 if peel_first else 0)
        for p in range(npeel):
            body(False)
            if p == 0 and peel_first: peel_first()
            a.e("s_barrier"); nb -= 1
        if nb > 0 and flags:
            a.e(f"s_mov_b32 s{S_CNT}, {nb}\ns_mov_b32 s{S_TG}, {npeel + 3}")
            a.label(f"L_loop_{nm}")
            lq0 = list(a.lq)
            body(True)
            a.e(f"s_cbranch_scc1 L_loop_{nm}")
            t = self.tail
            t.label(f"L_slow_{nm}")
            t.e(f"s_mov_b32 s{S_T3}, {POLL_MAX}")
            t.label(f"L_slowl_{nm}")
            t.e(f"ds_read_b128 {vr(vF,4)}, v{vFA}\ns_waitcnt lgkmcnt(0)\nv_min3_u32 v{vM}, v{vF}, v{vF+1}, v{vF+2}\nv_min_u32 v{vM}, v{vM}, v{vF+3}\ns_nop 0\nv_readfirstlane_b32 s{S_T4}, v{vM}\ns_nop 2")
            t.e(f"s_cmp_ge_u32 s{S_T4}, s{S_TG}\ns_cbranch_scc1 L_slowb_{nm}\ns_sub_u32 s{S_T3}, s{S_T3}, 1\ns_cmp_lg_u32 s{S_T3}, 0\ns_cbranch_scc1 L_slowl_{nm}\ns_branch L_slowb_{nm}")
        elif nb > 0:
            a.e(f"s_mov_b32 s{S_CNT}, {nb}\ns_branch L_loop_{nm}")
            a.label(f"L_top_{nm}"); a.e("s_barrier"); a.label(f"L_loop_{nm}")
            body(True)
            a.e(f"s_cbranch_scc1 L_top_{nm}\ns_barrier")
        body(False); a.e("s_barrier")
        g.group(par, [], [])
        a.e("s_setprio 3\ns_nop 6")
        if stamps[1] is not None: self.stamp(a, stamps[1])
        for cnt, fn in (hooks or {}).items():
            t = self.tail
            t.label(f"L_hk_{nm}_{cnt}"); fn(t); t.e(f"s_branch L_hkb_{nm}_{cnt}")

    def lflag_init(self):
        L = self.L
        L.e(f"s_lshl_b32 s{S_T}, s{S_LW}, 2\ns_add_u32 s{S_T}, s{S_T}, {SD_FULL}\nv_mov_b32 v45, s{S_T}\nv_mov_b32 v46, {SD_FREE}\nv_mov_b32 v47, 0")
        L.lds_other("ds_write_b32 v45, v47")
    def lfull(self, val):
        L = self.L
        L.e(f"v_mov_b32 v47, {val}"); L.lds_other("ds_write_b32 v45, v47")
    def lwait(self, addr_reg, target, label):
        L = self.L
        L.e(f"s_setprio {self.o.get('lspinprio', 0)}\ns_mov_b32 s{S_T3}, {POLL_MAX}")
        L.label(f"L_lw_{label}")
        L.e(f"ds_read_b128 v[40:43], v{addr_reg}\ns_waitcnt lgkmcnt(0)\nv_min3_u32 v44, v40, v41, v42\nv_min_u32 v44, v44, v43\ns_nop 0\nv_readfirstlane_b32 s{S_T4}, v44\ns_nop 2")
        L.e(f"s_cmp_ge_u32 s{S_T4}, {target}\ns_cbranch_scc1 L_lwd_{label}\ns_sleep {self.o.get('lsleep', 1)}\ns_sub_u32 s{S_T3}, s{S_T3}, 1\ns_cmp_lg_u32 s{S_T3}, 0\ns_cbranch_scc1 L_lw_{label}")
        L.label(f"L_lwd_{label}"); L.lq = []; L.e("s_setprio 1")

    def epi_q(self, g, cv):
        C, L, c = self.C, self.L, g.c
        a = C; vL = self.vL; t0, t1, t2, t3, t4, t5 = self.vt
        em = g.em; l = g.l; wm, wn = g.wm, g.wn
        fr = g.frag0
        mu = fr; rs = fr+4; cs = fr+8; pk = fr+24; st = fr+32
        va = fr+64; vb = fr+65; vo = fr+66; vk = fr+67; sc = fr+68
        gq = l >> 4
        em.vemit((wm*64 + (l & 15))*4 + SD_MEAN1, va)
        for x in range(4):
            a.lds_rd(f"ds_read_b32 v{mu+x}, v{va} offset:{x*64}", [mu+x])
            a.lds_rd(f"ds_read_b32 v{rs+x}, v{va} offset:{512+x*64}", [rs+x])
        em.vemit((wn*32 + gq*4)*4 + SD_CSQ, vb)
        def cs_off(f): return (64*(f//2) + 16*(f % 2))*4
        for n, f in enumerate((2, 3, 0, 1)):
            a.lds_rd(f"ds_read_b128 {vr(cs+4*n,4)}, v{vb} offset:{cs_off(f)}", rng(cs+4*n, 4))
        csr = {2: cs, 3: cs+4, 0: cs+8, 1: cs+12}
        em.vemit(wn*49152 + l*16, vk)
        a.e(f"s_lshl_b32 s{S_T}, s{S_I}, 4\ns_add_u32 s{S_T}, s{S_T}, s{S_J}\ns_lshl_b32 s{S_T}, s{S_T}, 15\ns_lshl_b32 s{S_T2}, s{S_WN}, 14\ns_add_u32 s{S_T}, s{S_T}, s{S_T2}\ns_add_u32 s71, s{S_T}, {WS_KV}")
        def fold_mn(x, f, scale_reg):
            acc = g.acc[x][f]; c0 = csr[f]
            for p in range(2):
                a.e(f"v_pk_fma_f32 {vr(acc+2*p,2)}, {vr(mu+(x & ~1),2)}, {vr(c0+2*p,2)}, {vr(acc+2*p,2)} op_sel:[{x & 1},0,0] op_sel_hi:[{x & 1},1,1] neg_lo:[1,0,0] neg_hi:[1,0,0]")
            for p in range(2):
                a.e(f"v_pk_mul_f32 {vr(acc+2*p,2)}, {vr(scale_reg+(x & ~1),2)}, {vr(acc+2*p,2)} op_sel:[{x & 1},0] op_sel_hi:[{x & 1},1]")
        def pack2(dst, accA, accB):
            a.e(f"v_cvt_pk_bf16_f32 v{dst}, v{accA}, v{accA+1}\nv_cvt_pk_bf16_f32 v{dst+1}, v{accA+2}, v{accA+3}")
            a.e(f"v_cvt_pk_bf16_f32 v{dst+2}, v{accB}, v{accB+1}\nv_cvt_pk_bf16_f32 v{dst+3}, v{accB+2}, v{accB+3}")
        a.need(list(rng(mu, 8)) + list(rng(cs, 8)))
        a.e(f"s_lshl_b32 s{S_T3}, s{S_WM}, 12")
        a.e(f"v_add_u32 v{vo}, s{S_T3}, v{vk}")
        a.e(f"s_add_u32 s{S_T4}, s71, s{S_T3}")
        for x in range(4):
            fold_mn(x, 2, rs); fold_mn(x, 3, rs)
            p = pk + 4*(x & 1)
            pack2(p, g.acc[x][2], g.acc[x][3])
            a.e(f"buffer_store_dwordx4 {vr(p,4)}, v{self.vL16}, s[{S_WS}:{S_WS+3}], s{S_T4} offen offset:{x*1024} sc1")
            a.lds_other(f"ds_write_b128 v{vo}, {vr(p,4)} offset:{AT_K(0) + 2*8192 + x*1024}")
        em.vemit((wn*32 + (l & 15))*4 + SD_CSQ + 128*4, va)
        a.lds_rd(f"ds_read_b32 v{sc}, v{va}", [sc]); a.lds_rd(f"ds_read_b32 v{sc+1}, v{va} offset:64", [sc+1])
        em.vemit((wm*64 + gq*4)*4 + SD_MEAN1, vb)
        for x in range(4):
            a.lds_rd(f"ds_read_b128 {vr(st+4*x,4)}, v{vb} offset:{x*64}", rng(st+4*x, 4))
            a.lds_rd(f"ds_read_b128 {vr(st+16+4*x,4)}, v{vb} offset:{512+x*64}", rng(st+16+4*x, 4))
        a.e(f"s_lshl_b32 s{S_T3}, s{S_WM}, 12\ns_add_u32 s{S_T4}, s71, s{S_T3}\ns_add_u32 s{S_T4}, s{S_T4}, 8192")
        for xi in range(2):
            a.need(list(rng(st+8*xi, 8)) + list(rng(st+16+8*xi, 8)) + [sc, sc+1])
            for dl in range(2):
                for x in (2*xi, 2*xi+1):
                    acc = g.acc[x][4+dl]
                    for p in range(2):
                        a.e(f"v_pk_fma_f32 {vr(acc+2*p,2)}, {vr(st+4*x+2*p,2)}, {vr(sc,2)}, {vr(acc+2*p,2)} op_sel:[0,{dl},0] op_sel_hi:[1,{dl},1] neg_lo:[1,0,0] neg_hi:[1,0,0]")
                    for p in range(2):
                        a.e(f"v_pk_mul_f32 {vr(acc+2*p,2)}, {vr(st+16+4*x+2*p,2)}, {vr(acc+2*p,2)}")
                p = pk + 4*dl
                pack2(p, g.acc[2*xi][4+dl], g.acc[2*xi+1][4+dl])
                a.e(f"buffer_store_dwordx4 {vr(p,4)}, v{self.vL16}, s[{S_WS}:{S_WS+3}], s{S_T4} offen offset:{(xi*2+dl)*1024} sc1")
                a.lds_other(f"ds_write_b128 v{vo}, {vr(p,4)} offset:{AT_V(0) + 2*8192 + (xi*2+dl)*1024}")
        for x in range(4): a.e(f"v_mul_f32 v{rs+x}, {fhex(QSCALE)}, v{rs+x}")
        em.vemit(wn*8192 + wm*4096 + l*16 + AT_Q0, va)
        a.need(rng(cs+8, 8))
        for x in range(4):
            fold_mn(x, 0, rs); fold_mn(x, 1, rs)
            p = pk + 4*(x & 1)
            a.e("s_nop 0")
            pack2(p, g.acc[x][0], g.acc[x][1])
            a.lds_other(f"ds_write_b128 v{va}, {vr(p,4)} offset:{x*1024}")
        a.e("s_waitcnt vmcnt(0)")
        self.signal_last(a, 0, 4, self.off_ji(F_KV), t0, t1, "kv")
        self.stamp(C, 3)
        a.e("s_waitcnt lgkmcnt(0)"); a.lq = []
        self.lsetup(self.g[1], A_WO, D*D*2, WS_O)
        def kvpoll():
            L.e(f"s_sub_i32 s{S_T2}, s{S_I}, 1\ns_max_i32 s{S_T2}, s{S_T2}, 0\ns_sub_i32 s{S_XB0}, s{S_I}, 2\ns_max_i32 s{S_XB0}, s{S_XB0}, 0")
            L.e(f"v_mov_b32 v{t0}, s{S_T2}\nv_mov_b32 v{t1}, s{S_XB0}\nv_and_b32 v52, 1, v{vL}\nv_cmp_eq_u32 vcc, 0, v52\ns_nop 1\nv_cndmask_b32 v{t0}, v{t1}, v{t0}, vcc")
            L.e(f"v_lshlrev_b32 v{t0}, 7, v{t0}\ns_lshl_b32 s{S_T}, s{S_J}, 11\ns_add_u32 s{S_T}, s{S_T}, {F_KV}\nv_add_u32 v53, s{S_T}, v{t0}")
            self.poll(L, S_WS, 53, 52, "kv")
        L.e("s_mov_b32 s0, 1\ns_branch L_attn")
        L.label("L_kvstage")
        self.lstamp("kvpre")
        if self.o.get("kvpoll1", True):
            L.e(f"v_mov_b32 v54, {SD_CNT + 20}\ns_cmp_lg_u32 s{S_LW}, 0\ns_cbranch_scc1 L_kvwait")
            kvpoll()
            L.e("v_mov_b32 v55, 1\nds_write_b32 v54, v55\ns_branch L_kvgo")
            L.label("L_kvwait")
            L.e(f"s_mov_b32 s{S_CNT}, {POLL_MAX*8}")
            L.label("L_kvspin")
            L.e(f"ds_read_b32 v55, v54\ns_waitcnt lgkmcnt(0)\nv_readfirstlane_b32 s{S_T}, v55\ns_nop 2\ns_cmp_lg_u32 s{S_T}, 0\ns_cbranch_scc1 L_kvgo\ns_sleep 1\ns_sub_u32 s{S_CNT}, s{S_CNT}, 1\ns_cmp_lg_u32 s{S_CNT}, 0\ns_cbranch_scc1 L_kvspin")
            L.label("L_kvgo")
        else: kvpoll()
        self.lstamp("kvseen")
        L.e(f"s_lshr_b32 s{S_T}, s{S_LW}, 1\ns_sub_i32 s{S_T2}, s{S_I}, 2\ns_add_i32 s{S_T2}, s{S_T2}, s{S_T}")
        L.e(f"s_lshl_b32 s{S_XB0}, s{S_T2}, 4\ns_add_u32 s{S_XB0}, s{S_XB0}, s{S_J}\ns_lshl_b32 s{S_XB0}, s{S_XB0}, 15\ns_and_b32 s{S_WB0}, s{S_LW}, 1\ns_lshl_b32 s{S_WB0}, s{S_WB0}, 14\ns_add_u32 s{S_XB0}, s{S_XB0}, s{S_WB0}\ns_add_u32 s{S_XB0}, s{S_XB0}, {WS_KV}")
        L.e(f"s_cmp_lt_i32 s{S_T2}, 0\ns_cselect_b32 s{S_XB0}, 0x7ff00000, s{S_XB0}")
        L.e(f"s_and_b32 s{S_WB0}, s{S_LW}, 1\ns_mul_i32 s{S_WB0}, s{S_WB0}, 49152\ns_lshl_b32 s{S_T}, s{S_T}, 13\ns_add_u32 s{S_WB0}, s{S_WB0}, s{S_T}")
        for part in range(2):
            for q4 in range(2):
                L.e(f"s_add_u32 m0, s{S_WB0}, {part*24576 + q4*4096}\ns_add_u32 s{S_T}, s{S_XB0}, {part*8192 + q4*4096}")
                for n in range(4):
                    L.e(f"buffer_load_dwordx4 v{self.vL16}, s[{S_WS}:{S_WS+3}], s{S_T} offen offset:{n*1024} sc1 lds")
        L.e("s_waitcnt vmcnt(8)" if self.o.get("kfirst", True) else "s_waitcnt vmcnt(0)")
        L.e("s_branch L_attn_go")
        C.e("s_mov_b32 s0, 0\ns_branch L_attn"); C.label("L_attn_back_c"); C.e("s_setprio 3")
        L.label("L_attn_back_l"); L.e("s_setprio 1")

    def attention(self):
        a = self.A; vL = self.vL; z = HZ(a)
        a.label("L_attn")
        a.e("s_setprio 3")
        l = V("l")
        em = Emitter(a, {"l": vL}, {"hh": S_T3, "om": S_T4}, self.vt, S_ET)
        hh, om = S("hh"), S("om")
        R = Regs(64, 253)
        QF = R.alloc(8, 4); KF = [R.alloc(8, 4) for _ in range(2)]; SS = [R.alloc(16, 4) for _ in range(3)]
        NM = R.alloc(16, 4); NG = R.alloc(16, 4); OO = R.alloc(16, 4); LL = R.alloc(16, 4)
        VF = [R.alloc(8, 4) for _ in range(2)]; PP = [R.alloc(8, 4) for _ in range(2)]; ONE = R.alloc(4, 4)
        vQ, vK, vV, MX, T0 = [R.alloc() for _ in range(5)]
        a.e(f"s_and_b32 s{S_T3}, s{S_WV}, 1\ns_lshr_b32 s{S_T4}, s{S_WV}, 1")
        a.e(f"s_lshl_b32 s71, s{S_I}, 2\ns_add_u32 s71, s71, s{S_T4}")
        h = l >> 5
        em.vemit(hh*8192 + om*2048 + ((l >> 4) & 1)*1024 + (h*16 + (l & 15))*16 + AT_Q0, vQ)
        em.vemit(hh*49152 + om*2048 + ((l >> 3) & 1)*1024 + (h*16 + (l & 7) + ((l >> 4) & 1)*8)*16, vK)
        for ex in (((l >> 4) & 1)*1024 + (h*16 + (l & 15))*16, ((l >> 3) & 1)*1024 + (h*16 + (l & 7) + ((l >> 4) & 1)*8)*16):
            assert banks.conflicts_b128([ex.ev({"l": x}) for x in range(64)]) == 0
        def rd(dst, addr, off): z.lds_rd(f"ds_read_b128 {vr(dst,4)}, v{addr} offset:{off}", rng(dst, 4), [addr])
        def kread(tt, b): rd(KF[b], vK, tt*2048); rd(KF[b]+4, vK, tt*2048 + 512)
        def vread(tt, b): rd(VF[b], vV, tt*2048); rd(VF[b]+4, vV, tt*2048 + 512)
        em.vemit(hh*49152 + om*2048 + ((l >> 4) & 1)*1024 + (h*16 + (l & 15))*16 + 24576, vV)
        t0_ = self.vt[0]; vPF = R.alloc()
        if self.o["pf_weights"]:
            a.e(f"s_lshl_b32 s{S_T}, s2, 3\ns_add_u32 s{S_T}, s{S_T}, s{S_WV}\ns_mul_i32 s{S_T}, s{S_T}, 28\nv_min_u32 v{vPF}, 27, v{vL}\nv_add_u32 v{vPF}, s{S_T}, v{vPF}\nv_lshlrev_b32 v{vPF}, 7, v{vPF}")
        mreg = [76+2*k for k in range(6)] + [90+2*k for k in range(6)] + [4, 6, 24, 26]
        for r in range(16):
            k0 = 16*((r >> 2) & 1) + 8*(r >> 3) + (r & 3)
            lo = (0xffffffff << k0) & 0xffffffff; hi = (0xffffffff << (k0+4)) & 0xffffffff
            a.e(f"s_mov_b32 s{mreg[r]}, {hex(lo)}\ns_mov_b32 s{mreg[r]+1}, {hex(hi)}")
        for r in range(16): z.emit(f"v_mov_b32 v{NG+r}, 0xf149f2ca", "valu", w=[NG+r])
        z.emit(f"v_mov_b32 v{MX}, 0xf149f2ca", "valu", w=[MX])
        for k in range(4): z.emit(f"v_mov_b32 v{ONE+k}, 0x3f803f80", "valu", w=[ONE+k])
        MF = "v_mfma_f32_32x32x16_bf16"
        def qk(tt, kb, sb, cval, tag):
            b = KF[kb]; s_ = SS[sb]
            z.lneed(list(rng(b, 4)) + list(rng(QF, 4)))
            ctxt = "0" if cval is None else vr(cval, 16); creg = [] if cval is None else list(rng(cval, 16))
            if tt < 8:
                z.other(f"s_cmp_ge_u32 s71, {8-tt}\ns_cbranch_scc0 L_inv_{tag}_{tt}")
            z.emit(f"{MF} {vr(s_,16)}, {vr(b,4)}, {vr(QF,4)}, {ctxt}", "mfma32", r=list(rng(b,4))+list(rng(QF,4)), w=rng(s_,16), c=creg + list(rng(NG,16)) if tt < 8 else creg)
            if tt < 8:
                a.label(f"L_invb_{tag}_{tt}")
                t = self.tail
                t.label(f"L_inv_{tag}_{tt}")
                t.e(f"{MF} {vr(s_,16)}, {vr(b,4)}, {vr(QF,4)}, {vr(NG,16)}\ns_branch L_invb_{tag}_{tt}")
            z.lneed(list(rng(b+4, 4)) + list(rng(QF+4, 4)))
            z.emit(f"{MF} {vr(s_,16)}, {vr(b+4,4)}, {vr(QF+4,4)}, {vr(s_,16)}", "mfma32", r=list(rng(b+4,4))+list(rng(QF+4,4)), w=rng(s_,16), c=rng(s_,16))
        def merge(sa, sb):
            for r in range(16):
                z.emit(f"v_cndmask_b32 v{SS[sa]+r}, v{SS[sa]+r}, v{SS[sb]+r}, s[{mreg[r]}:{mreg[r]+1}]", "valu", r=[SS[sa]+r, SS[sb]+r], w=[SS[sa]+r])
        def vmax(sb):
            for k in range(8): z.emit(f"v_max3_f32 v{MX}, v{MX}, v{SS[sb]+2*k}, v{SS[sb]+2*k+1}", "valu", r=[MX, SS[sb]+2*k, SS[sb]+2*k+1], w=[MX])
        a.e("s_cmp_eq_u32 s0, 1\ns_cbranch_scc1 L_kvstage")
        a.label("L_attn_go")
        a.e("s_barrier")
        self.stamp(a, 4)
        rd(QF, vQ, 0); rd(QF+4, vQ, 512); kread(0, 0); kread(8, 1)
        self.nyoung = 0
        if self.o["pf_weights"] and not self.o.get("pfmid", False):
            for arg in {"w2": (A_W2,), "w1w2": (A_W1, A_W2), "none": ()}[self.o.get("pf_attn", "w2")]:
                p = self.ptr(arg)[0]; a.e(f"global_load_dword v254, v{vPF}, s[{p}:{p+1}]"); self.nyoung += 1
        self.stamp(a, 20)
        qk(0, 0, 0, None, "a"); kread(1, 0)
        qk(8, 1, 1, None, "a"); kread(2, 1)
        qk(1, 0, 2, None, "a"); kread(3, 0)
        merge(0, 1); vmax(0)
        sb_of = {1: 2}
        free = [0, 1]
        for tt in range(2, 8):
            sb = free.pop(0); sb_of[tt] = sb
            qk(tt, tt & 1 ^ 1 if False else (tt % 2 == 0 and 1 or 0), sb, None, "a")
            if tt+2 < 8: kread(tt+2, (tt % 2 == 0 and 1 or 0))
            vmax(sb_of[tt-1]); free.append(sb_of[tt-1])
        kread(0, 0)
        vmax(sb_of[7])
        self.stamp(a, 21)
        self.attn_mid(a, z)
        self.stamp(a, 22)
        nyoung = 0
        if self.o["pf_weights"] and self.o.get("pfmid", False):
            for arg in (A_W1, A_W2):
                p = self.ptr(arg)[0]; a.e(f"global_load_dword v254, v{vPF}, s[{p}:{p+1}]"); nyoung += 1
        kread(8, 1); vread(8, 0); vread(0, 1)
        z.emit(f"v_mov_b32 v{T0}, v{MX}", "valu", r=[MX], w=[T0])
        z.emit(f"v_permlane32_swap_b32 v{T0}, v{MX}", "perm", r=[T0, MX], w=[T0, MX])
        z.emit(f"v_max_f32 v{MX}, v{MX}, v{T0}", "valu", r=[MX, T0], w=[MX])
        for r in range(16): z.emit(f"v_sub_f32 v{NM+r}, 0, v{MX}", "valu", r=[MX], w=[NM+r])
        z.other("s_setprio 2")
        def vexp(sb):
            for r in range(16): z.emit(f"v_exp_f32 v{SS[sb]+r}, v{SS[sb]+r}", "trans", r=[SS[sb]+r], w=[SS[sb]+r])
        def cvt(sb, pb):
            for k in range(8): z.emit(f"v_cvt_pk_bf16_f32 v{PP[pb]+k}, v{SS[sb]+2*k}, v{SS[sb]+2*k+1}", "valu", r=[SS[sb]+2*k, SS[sb]+2*k+1], w=[PP[pb]+k])
        first = [True]
        def pv(vb, pb):
            b = VF[vb]; p = PP[pb]
            z.lneed(rng(b, 8))
            f = first[0]; first[0] = False
            z.emit(f"{MF} {vr(OO,16)}, {vr(b,4)}, {vr(p,4)}, {'0' if f else vr(OO,16)}", "mfma32", r=list(rng(b,4))+list(rng(p,4)), w=rng(OO,16), c=[] if f else rng(OO,16))
            z.emit(f"{MF} {vr(LL,16)}, {vr(ONE,4)}, {vr(p,4)}, {'0' if f else vr(LL,16)}", "mfma32", r=list(rng(ONE,4))+list(rng(p,4)), w=rng(LL,16), c=[] if f else rng(LL,16))
            z.emit(f"{MF} {vr(OO,16)}, {vr(b+4,4)}, {vr(p+4,4)}, {vr(OO,16)}", "mfma32", r=list(rng(b+4,4))+list(rng(p+4,4)), w=rng(OO,16), c=rng(OO,16))
            z.emit(f"{MF} {vr(LL,16)}, {vr(ONE,4)}, {vr(p+4,4)}, {vr(LL,16)}", "mfma32", r=list(rng(ONE,4))+list(rng(p+4,4)), w=rng(LL,16), c=rng(LL,16))
        qk(0, 0, 0, NM, "b"); kread(1, 0)
        qk(8, 1, 1, NM, "b"); kread(2, 1)
        qk(1, 0, 2, NM, "b"); kread(3, 0)
        merge(0, 1); vexp(0)
        for r in range(16): z.emit(f"v_cndmask_b32 v{SS[1]+r}, 0, v{SS[0]+r}, s[{mreg[r]}:{mreg[r]+1}]", "valu", r=[SS[0]+r], w=[SS[1]+r])
        for r in range(16): z.emit(f"v_sub_f32 v{SS[0]+r}, v{SS[0]+r}, v{SS[1]+r}", "valu", r=[SS[0]+r, SS[1]+r], w=[SS[0]+r])
        cvt(1, 0); cvt(0, 1)
        pv(0, 0); vread(1, 0)
        pv(1, 1); vread(2, 1)
        sb_of = {1: 2}; free = [0, 1]
        for tt in range(1, 8):
            if tt+1 < 8:
                sb = free.pop(0); sb_of[tt+1] = sb; kb = 1 if (tt+1) % 2 == 0 else 0
                qk(tt+1, kb, sb, NM, "b")
                if tt+3 < 8: kread(tt+3, kb)
            if tt in (3, 6): z.other(f"s_setprio {1 if tt == 3 else 0}")
            cur = sb_of[tt]
            vexp(cur); cvt(cur, tt & 1); free.append(cur)
            vb = 0 if tt % 2 == 1 else 1
            pv(vb, tt & 1)
            if tt+2 < 8: vread(tt+2, vb)
        self.stamp(a, 23)
        srd(a, S_WS, *self.ptr(A_WS), WS_BYTES, self.o.get('wsoff', 0))
        em.vemit((om*2 + ((l >> 4) & 1))*2048 + hh*1024 + ((l & 15) + h*16)*16, vQ)
        a.e(f"s_lshl_b32 s{S_T}, s{S_I}, 4\ns_add_u32 s{S_T}, s{S_T}, s{S_J}\ns_lshl_b32 s{S_T}, s{S_T}, 14\ns_add_u32 s{S_T}, s{S_T}, {WS_O}")
        z.emit(f"v_rcp_f32 v{T0}, v{LL}", "trans", r=[LL], w=[T0])
        for r in range(16): z.emit(f"v_mul_f32 v{OO+r}, v{T0}, v{OO+r}", "valu", r=[T0, OO+r], w=[OO+r])
        for s in range(2):
            for k in range(4): z.emit(f"v_cvt_pk_bf16_f32 v{PP[s]+k}, v{OO+8*s+2*k}, v{OO+8*s+2*k+1}", "valu", r=[OO+8*s+2*k, OO+8*s+2*k+1], w=[PP[s]+k])
            a.e(f"buffer_store_dwordx4 {vr(PP[s],4)}, v{vQ}, s[{S_WS}:{S_WS+3}], s{S_T} offen offset:{s*512} sc1")
        self.stamp(a, 24)
        a.e("s_waitcnt vmcnt(0)")
        self.stamp(a, 25)
        self.signal_last(a, 1, 8, self.off_ij(F_O), vK, vV, "o")
        a.e("s_cmp_eq_u32 s0, 1\ns_cbranch_scc1 L_attn_back_l\ns_branch L_attn_back_c")
    def attn_mid(self, a, z):
        if self.o.get("kfirst", True):
            z.other(f"s_cmp_eq_u32 s0, 1\ns_cbranch_scc0 L_att_nov\ns_waitcnt vmcnt({self.nyoung})\nL_att_nov:")
            a.lds_drain(); z.other("s_barrier")

    def lsetup(self, g, warg, wbytes, xbase, khalf=False):
        L = self.L; c = g.c
        g.bind(L, self.vL, self.vt, (8, 9))
        srd(L, S_WSRD, *self.ptr(warg), wbytes)
        self.setup_w_only(g)
        g.em.vemit(g.lw*4096 + g.l*16, g.vXsrc[0])
        c.woff(L)
        self.xoff_fn(L, c, xbase, khalf)
        L.e(f"s_lshl_b32 s{S_XL}, s{S_LW}, 12")
        L.e(f"s_mul_i32 s{S_WL}, s{S_LW}, {c.nWld*1024}\ns_add_u32 s{S_WL}, s{S_WL}, {c.XB}")
    def lweights(self, g, init=True):
        L = self.L; c = g.c
        if init:
            for ins in g.rot_init(): L.e(ins)
        L.e(f"s_mov_b32 s{S_WR}, 0")
        for s in range(c.S):
            for ins in g.stage_off(s) + g.dma_w(): L.e(ins)
            L.e(f"s_add_u32 s{S_WR}, s{S_WR}, {c.SB}")
    def cpoll(self, flag, label, skip_own=False):
        C = self.C; t0, t1, t2 = self.vt[0:3]
        C.e(f"s_cmp_lg_u32 s{S_LW}, 0\ns_cbranch_scc1 L_nocpoll_{label}")
        self.group_words(C, t2, flag, S_I)
        if skip_own:
            C.e(f"s_xor_b32 s{S_T2}, s{S_J}, 1\ns_lshl_b32 s{S_T2}, s{S_T2}, 7\ns_add_u32 s{S_T2}, s{S_T2}, s{S_T}\nv_and_b32 v{t0}, 15, v{self.vL}\nv_mov_b32 v{t1}, s{S_T2}\nv_cmp_eq_u32 vcc, s{S_J}, v{t0}\ns_nop 1\nv_cndmask_b32 v{t2}, v{t2}, v{t1}, vcc")
        self.poll(C, S_WS, t2, t0, label)
        C.label(f"L_nocpoll_{label}")
        C.e("s_barrier")
    def lphase(self, g, flag, label, hooks=None, npeel=0, after_poll=None, first_hooks=None, ns=None, flags=0):
        L = self.L; c = g.c; vm = VM(L); S = c.S; ns = ns or c.nsteps
        hooks = hooks or {}
        g.bind(L, self.vL, self.vt, (8, 9))
        srd(L, S_XSRD, *self.ptr(A_WS), WS_BYTES, self.o.get('wsoff', 0))
        self.lstamp(label + "pre")
        L.e("s_barrier")
        self.lstamp(label + "seen")
        L.e(f"s_mov_b32 s{S_WR}, 0")
        for s in range(S):
            for ins in g.stage_off(s) + g.dma_x(): L.e(ins)
            vm.iss(("st", s), c.nXld)
            L.e(f"s_add_u32 s{S_WR}, s{S_WR}, {c.SB}")
        L.e(f"s_mov_b32 s{S_WR}, 0")
        if after_poll: after_poll(vm)
        if flags: self.lflag_init()
        vm.wait(("st", 0)); L.lds_drain(); L.e("s_barrier"); self.lstamp(label + "land")
        if first_hooks: first_hooks[0](vm)
        vm.wait(("st", 1)); L.lds_drain(); L.e("s_barrier")
        def issue(t):
            for ins in g.dma_list(t): L.e(ins)
            vm.iss(("st", t), c.nld); L.e(g.adv_slot(S_WR))
        npeel = max(npeel, S-2)
        nb = ns - S
        if self.o.get("lsteps"): npeel = nb
        def end_body(t):
            L.lds_drain()
            if flags and flags - 1 <= t <= ns-3: self.lfull(t + 3)
            if not flags or t < flags or t == ns-2:
                L.lds_drain(); L.e("s_barrier")
            if self.o.get("lsteps"): self.lstamp(label + str(t))
        if flags: npeel = max(npeel, flags + 1)
        for t in range(npeel):
            if flags and t > flags: self.lwait(46, t + 2, f"{label}{t}")
            issue(t+S)
            if t in hooks: hooks[t](vm)
            if ("st", t+2) in vm.q: vm.wait(("st", t+2))
            end_body(t)
        if nb - npeel > 0:
            if getattr(c, "rot", False): L.e(f"s_mov_b32 s{S_N}, {npeel + S - 1}")
            L.e(f"s_mov_b32 s{S_CNT}, {nb - npeel}")
            if flags: L.e(f"s_mov_b32 s{S_TG}, {npeel + 2}")
            L.label(f"L_lloop_{label}")
            early = flags and S >= 4
            if early:
                L.e(f"s_add_u32 s{S_T2}, s{S_TG}, 1\nv_mov_b32 v47, s{S_T2}\ns_waitcnt vmcnt({(S-3)*c.nld})\nds_write_b32 v45, v47")
            if flags: self.lwait(46, f"s{S_TG}", f"{label}_loop")
            for ins in g.dma_list(): L.e(ins)
            L.e(g.adv_slot(S_WR))
            if early:
                L.e(f"s_add_u32 s{S_TG}, s{S_TG}, 1")
            elif flags:
                L.e(f"s_add_u32 s{S_TG}, s{S_TG}, 1\nv_mov_b32 v47, s{S_TG}\ns_waitcnt vmcnt({(S-2)*c.nld})\nds_write_b32 v45, v47")
            else:
                L.e(f"s_waitcnt vmcnt({(S-2)*c.nld})\ns_barrier")
            L.e(f"s_sub_u32 s{S_CNT}, s{S_CNT}, 1\ns_cmp_lg_u32 s{S_CNT}, 0\ns_cbranch_scc1 L_lloop_{label}")
        for t in range(nb, ns-1):
            if t in hooks:
                assert npeel >= nb
                hooks[t](vm)
                if t+2 <= ns-1 and ("st", t+2) in vm.q: vm.wait(("st", t+2))
            elif t+2 <= ns-1: L.e(f"s_waitcnt vmcnt({min(ns-1-(t+2), S-2)*c.nld})")
            end_body(t)

    def phase_o(self, g):
        C, L, c = self.C, self.L, g.c
        vL = self.vL; t0, t1, t2, t3, t4, t5 = self.vt
        self.stamp(C, 5)
        self.lstamp("attnend")
        self.bar()
        self.lstamp("attnbar")
        self.lweights(g)
        if self.o.get("sentinel", True) and self.o.get("markat", "f1") == "o":
            for k in range(4): L.e(f"v_mov_b32 v{180+k}, -1")
            L.e(f"s_lshl_b32 s{S_T}, s{S_I}, 4\ns_add_u32 s{S_T}, s{S_T}, s{S_J}\ns_lshl_b32 s{S_T}, s{S_T}, 15\ns_lshl_b32 s{S_T2}, s{S_LW}, 13\ns_add_u32 s{S_T}, s{S_T}, s{S_T2}\ns_add_u32 s{S_T}, s{S_T}, {WS_XCH}")
            for n in range(8):
                if n == 4: L.e(f"s_add_u32 s{S_T}, s{S_T}, 4096")
                L.e(f"buffer_store_dwordx4 v[180:183], v{self.vL16}, s[{S_WS}:{S_WS+3}], s{S_T} offen offset:{(n & 3)*1024} sc1")
        a = C; g.bind(C, vL, self.vt, (8, 9)); cv = Regs(12, 254); g.alloc_compute(cv)
        em = g.em; l, wm, wn = g.l, g.wm, g.wn
        g.setup_reads()
        xr = cv.alloc(16, 4); va = cv.alloc(); pk = cv.alloc(8, 4); sm = cv.alloc(8, 4); tm = cv.alloc(8, 4); m2 = cv.alloc(8, 4)
        srd(a, S_XSRD, *self.ptr(A_X), M*D*2)
        em.vemit((l & 15)*2048 + (l >> 4)*8, va)
        def resid(a):
            a.e(f"s_lshl_b32 s{S_T}, s{S_I}, 1\ns_add_u32 s{S_T}, s{S_T}, s{S_WM}\ns_lshl_b32 s{S_T}, s{S_T}, 17\ns_lshl_b32 s{S_T2}, s{S_J}, 7\ns_add_u32 s{S_T}, s{S_T}, s{S_T2}\ns_lshl_b32 s{S_T2}, s{S_WN}, 6\ns_add_u32 s{S_T}, s{S_T}, s{S_T2}")
            for x in range(4):
                for f in range(2):
                    a.e(f"buffer_load_dwordx2 {vr(xr+4*x+2*f,2)}, v{va}, s[{S_XSRD}:{S_XSRD+3}], s{S_T} offen offset:{f*32}")
                if x < 3: a.e(f"s_add_u32 s{S_T}, s{S_T}, {16*2048}")
        a.e(f"s_cmp_eq_u32 s{S_LW}, 0\ns_cbranch_scc1 L_ores0"); resid(a); a.label("L_ores0")
        def hookO(a):
            a.e(f"s_cmp_lg_u32 s{S_LW}, 0\ns_cbranch_scc1 L_ores1"); resid(a); a.label("L_ores1")
        self.cpoll(F_O, "o", skip_own=True)
        self.lphase(g, F_O, "o")
        g1 = self.g[2]
        self.lsetup(g1, A_W1, D*DFF*2, WS_H)
        g.bind(C, vL, self.vt, (8, 9)); g.a = C
        self.cloop(g, stamps=(6, 7), hooks={c.nsteps - 3: hookO})
        a.e("s_waitcnt vmcnt(0)")
        for x in range(4):
            for f in range(2):
                acc = g.acc[x][f]
                for d in range(2):
                    src = xr + 4*x + 2*f + d
                    a.e(f"v_lshlrev_b32 v{t0}, 16, v{src}\nv_and_b32 v{t1}, 0xffff0000, v{src}")
                    a.e(f"v_add_f32 v{acc+2*d}, v{acc+2*d}, v{t0}\nv_add_f32 v{acc+2*d+1}, v{acc+2*d+1}, v{t1}")
        a.e(f"s_lshl_b32 s{S_T}, s{S_I}, 4\ns_add_u32 s{S_T}, s{S_T}, s{S_J}\ns_lshl_b32 s{S_T}, s{S_T}, 14\ns_lshl_b32 s{S_T2}, s{S_WM}, 13\ns_add_u32 s{S_T}, s{S_T}, s{S_T2}\ns_lshl_b32 s{S_T2}, s{S_WN}, 10\ns_add_u32 s{S_T}, s{S_T}, s{S_T2}\ns_add_u32 s{S_T}, s{S_T}, {WS_H}")
        for x in range(4):
            p = pk + 4*(x & 1); A, B = g.acc[x][0], g.acc[x][1]
            a.e(f"v_cvt_pk_bf16_f32 v{p}, v{A}, v{A+1}\nv_cvt_pk_bf16_f32 v{p+1}, v{A+2}, v{A+3}\nv_cvt_pk_bf16_f32 v{p+2}, v{B}, v{B+1}\nv_cvt_pk_bf16_f32 v{p+3}, v{B+2}, v{B+3}")
            if x == 2: a.e(f"s_add_u32 s{S_T}, s{S_T}, 4096")
            a.e(f"buffer_store_dwordx4 {vr(p,4)}, v{self.vL16}, s[{S_WS}:{S_WS+3}], s{S_T} offen offset:{(x & 1)*2048} sc1")
        self.bar()
        self.lweights(self.g[2])
        a.e("s_waitcnt vmcnt(0)")
        self.signal_last(a, 2, 4, self.off_ij(F_H), t0, t1, "h")
        self.stamp(C, 8)
        def xlane(regs):
            for sw in ("v_permlane16_swap_b32", "v_permlane32_swap_b32"):
                for k, r in enumerate(regs): a.e(f"v_mov_b32 v{tm+k}, v{r}")
                a.e("s_nop 1")
                for k, r in enumerate(regs): a.e(f"{sw} v{tm+k}, v{r}")
                a.e("s_nop 1")
                for k, r in enumerate(regs): a.e(f"v_add_f32 v{r}, v{r}, v{tm+k}")
        for x in range(4):
            A, B = g.acc[x][0], g.acc[x][1]
            a.e(f"v_add_f32 v{sm+2*x}, v{A}, v{A+1}")
            for r in [A+2, A+3, B, B+1, B+2, B+3]: a.e(f"v_add_f32 v{sm+2*x}, v{sm+2*x}, v{r}")
        xlane([sm+2*x for x in range(4)])
        for x in range(4):
            A, B = g.acc[x][0], g.acc[x][1]
            a.e(f"v_mul_f32 v{t0}, {fhex(1/32)}, v{sm+2*x}")
            a.e(f"v_sub_f32 v{t1}, v{A}, v{t0}\nv_mul_f32 v{sm+2*x+1}, v{t1}, v{t1}")
            for r in [A+1, A+2, A+3, B, B+1, B+2, B+3]: a.e(f"v_sub_f32 v{t1}, v{r}, v{t0}\nv_fmac_f32 v{sm+2*x+1}, v{t1}, v{t1}")
        xlane([sm+2*x+1 for x in range(4)])
        a.e(f"s_lshl_b32 s{S_T}, s{S_J}, 1\ns_add_u32 s{S_T}, s{S_T}, s{S_WN}\ns_lshl_b32 s{S_T}, s{S_T}, 11\ns_lshl_b32 s{S_T2}, s{S_I}, 7\ns_add_u32 s{S_T}, s{S_T}, s{S_T2}\ns_lshl_b32 s{S_T2}, s{S_WM}, 6\ns_add_u32 s{S_T}, s{S_T}, s{S_T2}\ns_lshl_b32 s{S_T}, s{S_T}, 3\ns_add_u32 s{S_T}, s{S_T}, {WS_ST2}")
        a.e(f"v_lshlrev_b32 v{t0}, 3, v{vL}\nv_cmp_gt_u32 vcc, 16, v{vL}\ns_and_saveexec_b64 s[{S_EX}:{S_EX+1}], vcc")
        for x in range(4):
            a.e(f"buffer_store_dwordx2 {vr(sm+2*x,2)}, v{t0}, s[{S_WS}:{S_WS+3}], s{S_T} offen offset:{x*128} sc1")
        a.e(f"s_mov_b64 exec, s[{S_EX}:{S_EX+1}]\ns_waitcnt vmcnt(0)")
        self.signal_last(a, 4, 4, self.off_ij(F_S2), t0, t1, "s2")

    def phase_f1(self, g):
        C, L, c = self.C, self.L, g.c
        vL = self.vL; t0, t1, t2, t3, t4, t5 = self.vt
        FL1 = 1 if self.o.get("flags1", False) else 0
        ps = 64; cp = 96; mu, m2 = 112, 113
        def s2a(vm):
            self.group_words(L, 56, F_S2, S_I)
            L.e(f"buffer_load_dword v57, v56, s[{S_WS}:{S_WS+3}], 0 offen sc1"); vm.iss("ps2")
        def s2b(vm):
            vm.wait("ps2")
            self.poll_test(L, 57)
            L.e("s_cbranch_scc1 L_s2ready")
            self.poll(L, S_WS, 56, 57, "s2")
            L.label("L_s2ready")
            L.e(f"v_and_b32 v{t0}, 15, v{vL}\nv_lshlrev_b32 v{t0}, 4, v{t0}\nv_lshrrev_b32 v{t1}, 4, v{vL}\nv_lshlrev_b32 v{t1}, 14, v{t1}\nv_add_u32 v54, v{t0}, v{t1}")
            L.e(f"s_lshl_b32 s{S_T2}, s{S_I}, 7\ns_lshl_b32 s{S_T3}, s{S_LW}, 5\ns_add_u32 s{S_T2}, s{S_T2}, s{S_T3}\ns_lshl_b32 s{S_T2}, s{S_T2}, 3\ns_add_u32 s{S_T2}, s{S_T2}, {WS_ST2}")
            for n in range(8):
                L.e(f"buffer_load_dwordx4 {vr(ps+4*n,4)}, v54, s[{S_WS}:{S_WS+3}], s{S_T2} offen sc1\ns_add_u32 s{S_T2}, s{S_T2}, {4*2048*8}")
            vm.iss("ps", 8)
        mua, m2a = 112, 114
        def h0b(vm):
            vm.wait("ps")
            for r in range(2): L.e(f"v_add_f32 v{mua+r}, v{ps+2*r}, v{ps+4+2*r}")
            for n in range(2, 8):
                for r in range(2): L.e(f"v_add_f32 v{mua+r}, v{mua+r}, v{ps+4*n+2*r}")
            self.xgroups(L, [mua, mua+1], 118)
            for r in range(2): L.e(f"v_mul_f32 v{mua+r}, {fhex(1/1024)}, v{mua+r}\nv_mov_b32 v{m2a+r}, 0")
            L.e(f"v_mov_b32 v116, {fhex(1/32)}\nv_mov_b32 v117, {fhex(32.0)}")
        def h1(vm, part=None):
            for n in (range(8) if part is None else range(4*part, 4*part+4) if part < 2 else ()):
                for r in range(2):
                    tt = t1 if r == 0 else t2
                    L.e(f"v_fma_f32 v{tt}, v{ps+4*n+2*r}, v116, -v{mua+r}")
                for r in range(2):
                    tt = t1 if r == 0 else t2
                    L.e(f"v_mul_f32 v{tt}, v{tt}, v{tt}")
                for r in range(2):
                    tt = t1 if r == 0 else t2
                    L.e(f"v_fma_f32 v{tt}, v{tt}, v117, v{ps+4*n+2*r+1}")
                for r in range(2):
                    tt = t1 if r == 0 else t2
                    L.e(f"v_add_f32 v{m2a+r}, v{m2a+r}, v{tt}")
            if part is not None and part < 2: return
            self.xgroups(L, [m2a, m2a+1], 118)
            for r in range(2): L.e(f"v_mul_f32 v{m2a+r}, {fhex(1/1024)}, v{m2a+r}\nv_add_f32 v{m2a+r}, {fhex(EPS)}, v{m2a+r}")
            for r in range(2): L.e(f"v_rsq_f32 v{m2a+r}, v{m2a+r}")
            L.e(f"v_and_b32 v{t0}, 15, v{vL}\nv_lshlrev_b32 v{t0}, 3, v{t0}\ns_lshl_b32 s{S_T}, s{S_LW}, 7\ns_add_u32 s{S_T}, s{S_T}, {SD_MEAN2}\nv_add_u32 v{t0}, s{S_T}, v{t0}")
            L.e(f"v_cmp_gt_u32 vcc, 16, v{vL}\ns_and_saveexec_b64 s[{S_EX}:{S_EX+1}], vcc\nds_write_b64 v{t0}, {vr(mua,2)}\nds_write_b64 v{t0}, {vr(m2a,2)} offset:512\ns_mov_b64 exec, s[{S_EX}:{S_EX+1}]")
        ones, wf, sacc, r1, vL4 = 120, [124 + 4*k for k in range(8)], [156 + 4*k for k in range(4)], [172, 173, 174, 175], 176
        box = {}
        def pre_cs1():
            L.e(f"v_lshlrev_b32 v{vL4}, 2, v{vL}")
            box["cls"] = self.csum_setup(g, 4, r1)
        cs1_code = f"s_lshl_b32 s{S_T}, s{S_I}, 4\ns_add_u32 s{S_T}, s{S_T}, s{S_J}\ns_mul_i32 s{S_T2}, s{S_T}, 896\ns_lshl_b32 s{S_T}, s{S_LW}, 8\ns_add_u32 s{S_T2}, s{S_T2}, s{S_T}\ns_add_u32 s{S_T2}, s{S_T2}, {WS_CS1}"
        fh = (lambda vm: self.csum_reads(4, box["cls"], r1, wf), lambda vm: self.csum_finish(vm, 4, 14, ones, wf, sacc, vL4, cs1_code))
        def hsig(vm):
            if FL1:
                L.e(f"v_mov_b32 v58, {SD_FULL}"); self.lwait(58, 5, "cs1sig")
            self.signal(L, self.off_ji(F_CS1), 52, 53, only_lw0=True); vm.iss("sig")
        def h2a(vm):
            self.group_words(L, 52, F_CS1, S_J)
            L.e(f"buffer_load_dword v53, v52, s[{S_WS}:{S_WS+3}], 0 offen sc1"); vm.iss("pc")
        def h2(vm):
            vm.wait("pc")
            self.poll_test(L, 53, False)
            L.e("s_cbranch_scc1 L_cs1ready")
            self.poll(L, S_WS, 52, 53, "cs1")
            L.label("L_cs1ready")
            self.colsum_loads(L, vm, "cp", cp, 55, t1, 14, 896, f"s_mul_i32 s{S_T2}, s{S_J}, 896\ns_mul_i32 s{S_T}, s{S_LW}, 224\ns_add_u32 s{S_T2}, s{S_T2}, s{S_T}\ns_add_u32 s{S_T2}, s{S_T2}, {WS_CS1}")
        def h4(vm):
            vm.wait("cp")
            self.colsum_reduce(L, cp, 118, t0, 14, SD_CS1, 224)
        def mark(n):
            def fn(vm):
                if n == 0:
                    for k in range(4): L.e(f"v_mov_b32 v{180+k}, -1")
                    L.e(f"s_lshl_b32 s{S_T}, s{S_I}, 4\ns_add_u32 s{S_T}, s{S_T}, s{S_J}\ns_lshl_b32 s{S_T}, s{S_T}, 15\ns_lshl_b32 s{S_T2}, s{S_LW}, 13\ns_add_u32 s{S_T}, s{S_T}, s{S_T2}\ns_add_u32 s71, s{S_T}, {WS_XCH}")
                L.e(f"s_add_u32 s{S_T}, s71, {n*1024}\nbuffer_store_dwordx4 v[180:183], v{self.vL16}, s[{S_WS}:{S_WS+3}], s{S_T} offen sc1"); vm.iss("mark")
            return fn
        F1HOOKS = {0: fh[1], 2: s2a, 3: lambda vm: (hsig(vm), s2b(vm)), 5: h0b, 6: h1, 8: h2a, 9: h2, 11: h4}; F1PEEL = 12
        if self.o.get("lowhooks", True):
            def low(fn):
                def w(vm):
                    L.e("s_setprio 0"); fn(vm); L.e("s_setprio 1")
                return w
            F1HOOKS = {0: fh[1], 2: s2a, 3: lambda vm: (hsig(vm), s2b(vm)), 5: low(h0b), 6: low(lambda vm: h1(vm, 0)), 7: low(lambda vm: h1(vm, 1)),
                       8: lambda vm: (h2a(vm), low(lambda v: h1(v, 2))(vm)), 9: h2, 11: low(h4)}
        if self.o.get("f1late", True):
            F1HOOKS = {1: fh[1], 4: hsig, 7: s2a, 8: h2a, 9: s2b, 10: h2, 12: h0b,
                       13: lambda vm: (h1(vm, 0), h1(vm, 1), h1(vm, 2)), 14: h4}
            F1PEEL = 13
        if self.o.get("sentinel", True) and self.o.get("markat", "f1") == "f1":
            for n in range(8):
                prev = F1HOOKS.get(n); mk_ = mark(n)
                F1HOOKS[n] = (lambda vm, p=prev, m=mk_: (m(vm), p(vm) if p else None))
        a = C; g.bind(C, vL, self.vt, (8, 9)); cv = Regs(12, 254); g.alloc_compute(cv)
        g.setup_reads()
        self.cpoll(F_H, "f1")
        self.lphase(g, F_H, "f1", hooks=F1HOOKS, npeel=F1PEEL, after_poll=lambda vm: pre_cs1(), first_hooks=fh, flags=FL1)
        g2 = self.g[3]
        self.lsetup(g2, A_W2, DFF*D*2, WS_H1, khalf=True)
        own2 = self.o.get("own2", True)
        if own2:
            L.e(f"s_mul_i32 s{S_A}, s{S_J}, 7\ns_add_u32 s{S_A}, s{S_A}, 1\ns_lshr_b32 s{S_A}, s{S_A}, 1\ns_lshr_b32 s{S_T}, s{S_J}, 3\ns_mul_i32 s{S_T}, s{S_T}, 28\ns_sub_u32 s{S_A}, s{S_A}, s{S_T}")
            for ins in g2.rot_init(): L.e(ins)
            vmA = VM(L)
            L.e(f"s_mul_i32 s{S_WOFF}, s{S_A}, {64*2048}\ns_add_u32 s{S_WOFF}, s{S_WOFF}, s{S_WB0}\ns_mov_b32 s{S_WR}, 0")
            for n in range(3):
                for ins in g2.dma_w(): L.e(ins)
                vmA.iss(("w", n), g2.c.nWld)
                L.e(f"s_add_u32 s{S_WOFF}, s{S_WOFF}, {64*2048}\ns_add_u32 s{S_WR}, s{S_WR}, {g2.c.SB}")
            vmA.wait(("w", 0)); L.e("s_barrier")
            vmA.wait(("w", 1)); L.e("s_barrier")
            vmA.wait(("w", 2)); L.e("s_barrier")
            L.e("s_barrier")
        g.bind(C, vL, self.vt, (8, 9)); g.a = C
        em = g.em; l, wm, wn = g.l, g.wm, g.wn
        f1hooks = None
        self.cloop(g, stamps=(9, 10), hooks=f1hooks, flags=FL1, cv=cv)
        fr = g.frag0
        mu = fr; cs = fr+4; pk = fr+32; va = fr+44; vb = va+1; vc = va+2; vo = va+3
        em.vemit((wm*64 + (l & 15))*4 + SD_MEAN2, va)
        for x in range(4): a.lds_rd(f"ds_read_b32 v{mu+x}, v{va} offset:{x*64}", [mu+x])
        em.vemit(wn*512 + (l >> 4)*16 + SD_CS1, vb)
        em.vemit(wn*64 + (l >> 4)*16 + SD_CS1 + 384, vc)
        for f in range(6): a.lds_rd(f"ds_read_b128 {vr(cs+4*f,4)}, v{vb} offset:{f*64}", rng(cs+4*f, 4))
        a.lds_rd(f"ds_read_b128 {vr(cs+24,4)}, v{vc}", rng(cs+24, 4))
        a.e(f"s_mul_i32 s71, s{S_I}, {56*16384}\ns_lshl_b32 s{S_T}, s{S_WM}, 13\ns_add_u32 s71, s71, s{S_T}\ns_add_u32 s71, s71, {WS_H1}\ns_mul_i32 s{S_T4}, s{S_J}, 7")
        def fold(x, f):
            acc = g.acc[x][f]; c0 = cs + 4*f
            for p in range(2):
                a.e(f"v_pk_fma_f32 {vr(acc+2*p,2)}, {vr(mu+(x & ~1),2)}, {vr(c0+2*p,2)}, {vr(acc+2*p,2)} op_sel:[{x & 1},0,0] op_sel_hi:[{x & 1},1,1] neg_lo:[1,0,0] neg_hi:[1,0,0]")
        def kappa(phi_code):
            a.e(phi_code)
            a.e(f"s_lshr_b32 s{S_T2}, s{S_T}, 1\ns_lshl_b32 s{S_T2}, s{S_T2}, 14\ns_and_b32 s{S_T}, s{S_T}, 1\ns_lshl_b32 s{S_T}, s{S_T}, 10\ns_add_u32 s{S_T}, s{S_T}, s{S_T2}\ns_add_u32 s{S_T}, s{S_T}, s71")
        vlw = fr+48
        def lds_own(phi_code):
            if not own2: return
            a.e(phi_code)
            a.e(f"s_and_b32 s{S_T3}, s{S_J}, 1\ns_sub_i32 s{S_T2}, s{S_T2}, s{S_T3}\ns_and_b32 s{S_T3}, s{S_T2}, 1\ns_lshl_b32 s{S_T3}, s{S_T3}, 10\ns_ashr_i32 s{S_T2}, s{S_T2}, 1\ns_and_b32 s{S_T2}, s{S_T2}, 3\ns_lshl_b32 s{S_T2}, s{S_T2}, 15")
            a.e(f"s_add_u32 s{S_T2}, s{S_T2}, s{S_T3}\ns_lshl_b32 s{S_T3}, s{S_WM}, 13\ns_add_u32 s{S_T2}, s{S_T2}, s{S_T3}\nv_add_u32 v{vlw}, s{S_T2}, v{self.vL16}")
        n = 0
        for pr in range(3):
            a.need(list(rng(mu, 4)) + list(rng(cs+8*pr, 8)))
            lds_own(f"s_lshl_b32 s{S_T2}, s{S_WN}, 2\ns_add_u32 s{S_T2}, s{S_T2}, {pr}")
            kappa(f"s_lshl_b32 s{S_T}, s{S_WN}, 2\ns_add_u32 s{S_T}, s{S_T}, s{S_T4}\ns_add_u32 s{S_T}, s{S_T}, {pr}")
            for x in range(4):
                fold(x, 2*pr); fold(x, 2*pr+1)
                A, B = g.acc[x][2*pr], g.acc[x][2*pr+1]; p = pk + 4*(n & 1); n += 1
                a.e(f"v_cvt_pk_bf16_f32 v{p}, v{A}, v{A+1}\nv_cvt_pk_bf16_f32 v{p+1}, v{A+2}, v{A+3}\nv_cvt_pk_bf16_f32 v{p+2}, v{B}, v{B+1}\nv_cvt_pk_bf16_f32 v{p+3}, v{B+2}, v{B+3}")
                for k in range(4): a.e(f"v_pk_max_i16 v{p+k}, v{p+k}, 0")
                if x == 2: a.e(f"s_add_u32 s{S_T}, s{S_T}, 4096")
                a.e(f"buffer_store_dwordx4 {vr(p,4)}, v{self.vL16}, s[{S_WS}:{S_WS+3}], s{S_T} offen offset:{(x & 1)*2048} sc1")
                if own2: a.lds_other(f"ds_write_b128 v{vlw}, {vr(p,4)} offset:{x*2048}")
        a.need(rng(cs+24, 4))
        kappa(f"s_add_u32 s{S_T}, s{S_T4}, 3")
        em.vemit(l*16 + wn*8, vo)
        lds_own(f"s_mov_b32 s{S_T2}, 3")
        if own2: a.e(f"s_lshl_b32 s{S_T3}, s{S_WN}, 3\nv_add_u32 v{vlw}, s{S_T3}, v{vlw}")
        for x in range(4):
            fold(x, 6)
            A = g.acc[x][6]; p = pk + 4*(n & 1); n += 1
            a.e(f"v_cvt_pk_bf16_f32 v{p}, v{A}, v{A+1}\nv_cvt_pk_bf16_f32 v{p+1}, v{A+2}, v{A+3}\nv_pk_max_i16 v{p}, v{p}, 0\nv_pk_max_i16 v{p+1}, v{p+1}, 0")
            if x == 2: a.e(f"s_add_u32 s{S_T}, s{S_T}, 4096")
            a.e(f"buffer_store_dwordx2 {vr(p,2)}, v{vo}, s[{S_WS}:{S_WS+3}], s{S_T} offen offset:{(x & 1)*2048} sc1")
            if own2: a.lds_other(f"ds_write_b64 v{vlw}, {vr(p,2)} offset:{x*2048}")
        if not own2:
            self.bar()
            self.lweights(self.g[3])
            a.e("s_waitcnt vmcnt(0)")
            self.signal_last(a, 3, 4, self.off_ij(F_H1), t0, t1, "h1")
            self.stamp(C, 11)

    def phase_f2(self, g):
        C, L, c = self.C, self.L, g.c
        vL = self.vL; t0, t1, t2, t3, t4, t5 = self.vt
        own2 = self.o.get("own2", True)
        a = C; g.bind(C, vL, self.vt, (8, 9)); cv = Regs(12, 254)
        a.e(f"s_lshr_b32 s3, s{S_J}, 3")
        g.alloc_compute(cv)
        em = g.em; l, wm, wn = g.l, g.wm, g.wn
        hr = cv.alloc(16, 4); pt = cv.alloc(32, 4); rs = cv.alloc(4, 4); pk = cv.alloc(8, 4); va = cv.alloc(); vo = cv.alloc()
        g.setup_reads()
        nsB = c.nsteps
        if own2:
            g.a = C
            def pub():
                a.e("s_setprio 3\ns_waitcnt vmcnt(0)")
                self.signal_last(a, 3, 4, self.off_ij(F_H1), t0, t1, "h1")
                self.stamp(C, 11)
                a.e("s_setprio 0")
            if self.o.get("pubmid", True):
                self.cloop(g, stamps=(None, None), ns=3, first=True, sfx="a", peel_first=pub)
            else:
                self.cloop(g, stamps=(None, None), ns=3, first=True, sfx="a")
                pub()
            nsB = c.nsteps - 3
            self.lweights(g, init=False)
        def hookF2(a):
            a.e(f"s_and_b32 s{S_T}, s{S_J}, 7\ns_lshl_b32 s{S_T}, s{S_T}, 1\ns_add_u32 s{S_T}, s{S_T}, s{S_WN}\ns_lshl_b32 s{S_T2}, s{S_I}, 4\ns_add_u32 s{S_T}, s{S_T}, s{S_T2}\ns_lshl_b32 s{S_T}, s{S_T}, 14")
            a.e(f"s_lshl_b32 s{S_T2}, s{S_WM}, 13\ns_add_u32 s{S_T}, s{S_T}, s{S_T2}\ns_lshl_b32 s{S_T2}, s3, 10\ns_add_u32 s{S_T}, s{S_T}, s{S_T2}\ns_add_u32 s{S_T}, s{S_T}, {WS_H}")
            for x in range(4):
                if x == 2: a.e(f"s_add_u32 s{S_T}, s{S_T}, 4096")
                a.e(f"buffer_load_dwordx4 {vr(hr+4*x,4)}, v{self.vL16}, s[{S_WS}:{S_WS+3}], s{S_T} offen offset:{(x & 1)*2048} sc1")
        if self.o.get("res2out", True):
            a.e(f"s_cmp_eq_u32 s{S_LW}, 0\ns_cbranch_scc1 L_res2a"); hookF2(a); a.label("L_res2a")
        self.cpoll(F_H1, "f2")
        if self.o.get("res2out", True):
            a.e(f"s_cmp_lg_u32 s{S_LW}, 0\ns_cbranch_scc1 L_res2b"); hookF2(a); a.label("L_res2b")
        FL2 = 1 if self.o.get("flags2", False) else 0
        self.lphase(g, F_H1, "f2", ns=nsB, flags=FL2)
        g.bind(C, vL, self.vt, (8, 9)); g.a = C; em = g.em
        self.cloop(g, stamps=(12, 13), hooks=(None if self.o.get("res2out", True) else {nsB - 5: hookF2}), ns=nsB, first=not own2, flags=FL2, cv=cv)
        a.e(f"s_lshl_b32 s{S_T}, s{S_I}, 4\ns_add_u32 s{S_T}, s{S_T}, s{S_J}\ns_lshl_b32 s{S_T}, s{S_T}, 15\ns_lshl_b32 s{S_T2}, s{S_LW}, 13\ns_add_u32 s{S_T}, s{S_T}, s{S_T2}\ns_add_u32 s{S_T}, s{S_T}, {WS_XCH}")
        for x in range(4):
            if x == 2: a.e(f"s_add_u32 s{S_T}, s{S_T}, 4096")
            for f in range(2):
                a.e(f"buffer_store_dwordx4 {vr(g.acc[x][2+f],4)}, v{self.vL16}, s[{S_WS}:{S_WS+3}], s{S_T} offen offset:{((x & 1)*2+f)*1024} sc1")
        em.vemit((wm*64 + (l & 15))*4 + SD_RSTD2, va)
        for x in range(4): a.lds_rd(f"ds_read_b32 v{rs+x}, v{va} offset:{x*64}", [rs+x])
        srd(a, S_OUT, *self.ptr(A_OUT), M*D*2)
        em.vemit((l & 15)*2048 + ((l >> 4) & 1)*32 + (l >> 5)*16, vo)
        prefold = self.o.get("prefold", False)
        if prefold:
            a.e("s_waitcnt vmcnt(8)")
            a.need(rng(rs, 4))
            for x in range(4):
                for f in range(2):
                    acc = g.acc[x][f]
                    for d in range(2):
                        src = hr + 4*x + 2*f + d
                        a.e(f"v_lshlrev_b32 v{t0}, 16, v{src}\nv_and_b32 v{t1}, 0xffff0000, v{src}")
                        a.e(f"v_fma_f32 v{acc+2*d}, v{acc+2*d}, v{rs+x}, v{t0}\nv_fma_f32 v{acc+2*d+1}, v{acc+2*d+1}, v{rs+x}, v{t1}")
        if not self.o.get("sentinel", True):
            a.e("s_waitcnt vmcnt(0)")
            self.signal(a, self.off_ijw(F_P, S_LW), t0, t1)
            a.e(f"s_xor_b32 s{S_T2}, s{S_J}, 8\ns_lshl_b32 s{S_T2}, s{S_T2}, 2\ns_lshl_b32 s{S_T}, s{S_I}, 6\ns_add_u32 s{S_T}, s{S_T}, s{S_T2}\ns_add_u32 s{S_T}, s{S_T}, s{S_LW}\ns_lshl_b32 s{S_T}, s{S_T}, 2\ns_add_u32 s{S_T}, s{S_T}, {F_P}\nv_mov_b32 v{t2}, s{S_T}")
            self.poll(a, S_WS, t2, t3, "p")
        a.e(f"s_xor_b32 s{S_T}, s{S_J}, 8\ns_lshl_b32 s{S_T2}, s{S_I}, 4\ns_add_u32 s{S_T}, s{S_T}, s{S_T2}\ns_lshl_b32 s{S_T}, s{S_T}, 15\ns_lshl_b32 s{S_T2}, s{S_LW}, 13\ns_add_u32 s{S_T}, s{S_T}, s{S_T2}\ns_add_u32 s{S_T3}, s{S_T}, {WS_XCH}\ns_add_u32 s{S_T4}, s{S_T3}, 4096")
        if self.o.get("sentinel", True):
            a.e(f"s_mov_b32 s{S_CNT}, {POLL_MAX}")
            a.label("L_xch")
        for x in range(4):
            for f in range(2):
                a.e(f"buffer_load_dwordx4 {vr(pt+8*x+4*f,4)}, v{self.vL16}, s[{S_WS}:{S_WS+3}], s{S_T3 if x < 2 else S_T4} offen offset:{((x & 1)*2+f)*1024} sc1")
        if self.o.get("sentinel", True):
            a.e("s_waitcnt vmcnt(0)")
            a.e(f"v_max3_u32 v{t0}, v{pt}, v{pt+1}, v{pt+2}")
            for k in range(3, 31, 2): a.e(f"v_max3_u32 v{t0}, v{t0}, v{pt+k}, v{pt+k+1}")
            a.e(f"v_max_u32 v{t0}, v{t0}, v{pt+31}\nv_cmp_ne_u32 vcc, -1, v{t0}\ns_nop 4\ns_cmp_eq_u64 vcc, exec\ns_cbranch_scc1 L_xch_done")
            a.e(f"s_sub_u32 s{S_CNT}, s{S_CNT}, 1\ns_cmp_lg_u32 s{S_CNT}, 0\ns_cbranch_scc1 L_xch")
            a.label("L_xch_done")
        a.e(f"s_lshl_b32 s{S_T}, s{S_I}, 1\ns_add_u32 s{S_T}, s{S_T}, s{S_WM}\ns_lshl_b32 s{S_T}, s{S_T}, 17\ns_and_b32 s{S_T2}, s{S_J}, 7\ns_lshl_b32 s{S_T2}, s{S_T2}, 8\ns_add_u32 s{S_T}, s{S_T}, s{S_T2}")
        a.e(f"s_lshl_b32 s{S_T2}, s{S_WN}, 7\ns_add_u32 s{S_T}, s{S_T}, s{S_T2}\ns_lshl_b32 s{S_T2}, s3, 6\ns_add_u32 s{S_T}, s{S_T}, s{S_T2}")
        a.need(rng(rs, 4))
        for x in range(4):
            if not self.o.get("sentinel", True): a.e(f"s_waitcnt vmcnt({(3-x)*2 + x})")
            p = pk + 4*(x & 1)
            for f in range(2):
                acc = g.acc[x][f]; q_ = pt + 8*x + 4*f
                if prefold:
                    for pp_ in range(2):
                        a.e(f"v_pk_fma_f32 {vr(acc+2*pp_,2)}, {vr(q_+2*pp_,2)}, {vr(rs+(x & ~1),2)}, {vr(acc+2*pp_,2)} op_sel:[0,{x & 1},0] op_sel_hi:[1,{x & 1},1]")
                    for d in range(2): a.e(f"v_cvt_pk_bf16_f32 v{p+2*f+d}, v{acc+2*d}, v{acc+2*d+1}")
                    continue
                for pp_ in range(2):
                    a.e(f"v_pk_add_f32 {vr(acc+2*pp_,2)}, {vr(acc+2*pp_,2)}, {vr(q_+2*pp_,2)}")
                for d in range(2):
                    src = hr + 4*x + 2*f + d
                    a.e(f"v_lshlrev_b32 v{t0}, 16, v{src}\nv_and_b32 v{t1}, 0xffff0000, v{src}")
                    a.e(f"v_fma_f32 v{t0}, v{acc+2*d}, v{rs+x}, v{t0}\nv_fma_f32 v{t1}, v{acc+2*d+1}, v{rs+x}, v{t1}")
                    a.e(f"v_cvt_pk_bf16_f32 v{p+2*f+d}, v{t0}, v{t1}")
            a.e("s_nop 1")
            a.e(f"v_permlane16_swap_b32 v{p}, v{p+2}\nv_permlane16_swap_b32 v{p+1}, v{p+3}")
            a.e(f"buffer_store_dwordx4 {vr(p,4)}, v{vo}, s[{S_OUT}:{S_OUT+3}], s{S_T} offen sc1")
            if x < 3: a.e(f"s_add_u32 s{S_T}, s{S_T}, {16*2048}")
        self.stamp(C, 14)

if __name__ == "__main__":
    import sys
    diag = "--diag" in sys.argv
    args = [x for x in sys.argv[1:] if not x.startswith("--")]
    out = args[0] if args else "mk.s"
    mk = MK(dict(diag=diag))
    body = mk.build()
    hdr = f"""; Single persistent launch: 256 workgroups (one per CU) x 8 waves (4 MFMA waves + 4 loader/helper waves).
; @launch grid=(256,1,1) block=(512,1,1) lds={LDS_TOTAL}
.amdgcn_target "amdgcn-amd-amdhsa--gfx950"
.text
"""
    open(out, "w").write(hdr + body)
    print("wrote", out, len((hdr+body).splitlines()), "lines")
```

```python
from common import *
from expr import *
import banks, math

def magic_div(d, maxv):
    for sh in (16, 17, 18, 20):
        m = (1 << sh)//d + 1
        if m*maxv < (1 << 32) and m < (1 << 24) and all(((c*m) >> sh) == c//d for c in range(maxv)): return m, sh
    raise RuntimeError

S_XSRD, S_WSRD = 4, 8
S_E0, S_E1, S_E2, S_E3 = 12, 16, 20, 24
S_I, S_J, S_WV, S_T = 28, 29, 30, 31
S_XOFF, S_WOFF, S_RD, S_WR, S_CNT, S_XL, S_WL = 32, 33, 34, 35, 36, 37, 38
S_T2, S_T3, S_T4 = 39, 40, 41
S_WM, S_WN = 42, 43
S_PTR = 44
S_EX = 62
S_ET = [64, 65, 66, 67, 68, 69]
S_LW = 70
S_XB0, S_WB0, S_N, S_K, S_A = 72, 73, 74, 75, 76

class Cfg:
    def __init__(self, **kw):
        self.S = 3; self.G = 1; self.BK = 64; self.TM = 128; self.shape = 32
        self.no_mfma = False; self.no_dma = False; self.loaders = False; self.qkvseg = False
        self.__dict__.update(kw)

class G:
    def __init__(self, c, a, v, vLane, vt):
        self.c = c; self.a = a; self.v = v; self.vLane = vLane; self.vt = vt
        c.T = c.shape; c.KS = 16 if c.shape == 32 else 32
        c.NSUB = c.BK//c.KS
        c.nX = c.TM//c.T//c.WM; c.nW = c.TN//c.T//c.WN
        c.AR = 16 if c.shape == 32 else 4
        c.RS = c.TN*2
        c.XB = c.TM*c.BK*2; c.WB = c.BK*c.RS; c.SB = c.XB + c.WB
        c.nXld = c.XB//1024//4; c.nWld = c.WB//1024//4
        assert c.nWld*4096 == c.WB and c.nXld == 4
        c.nld = c.nXld + c.nWld
        c.nsteps = c.K//c.BK
        self.l = V("l"); self.wm = S("wm"); self.wn = S("wn"); self.lw = S("lw")
        self.em = Emitter(a, {"l": vLane}, {"wm": S_WM, "wn": S_WN, "lw": S_LW, "i": S_I, "j": S_J, "kh": 3}, vt, S_ET)
        self.check_banks(); self.plan_reads()
        if not getattr(c, "split", False): self.alloc()
    def wswz(self, row):
        c = self.c; m = c.RS % 256
        if c.shape == 32:
            if m == 128: return ((row >> 1) & 1) << 2
            if m in (64, 192): return C(0)
            return (row & 3) << 2
        if c.korder in ("fn", "fn32"):
            if m == 128: return ((row >> 1) & 3) << 1
            if m in (64, 192): return ((row >> 2) & 1) << 1
            return (row & 7) << 1
        if m == 128: return (((row >> 1) & 1) | (((row >> 3) & 1) << 1)) << 1
        if m in (64, 192): return ((row >> 3) & 1) << 1
        return ((row & 3) | (((row >> 3) & 1) << 2)) << 1
    def wrow(self, ks, j):
        c = self.c; l = self.l
        r = (l >> 2) & 3
        if c.shape == 32:
            h = l >> 5
            return (h*4 + (16*ks + 8*j) if c.korder == "fn" else h*8 + (16*ks + 4*j)) + r
        g = l >> 4
        if c.korder == "fn": return g*4 + (32*ks + 16*j) + r
        if c.korder == "fn32": return (g >> 1)*16 + (g & 1)*4 + (32*ks + 8*j) + r
        return g*8 + (32*ks + 4*j) + r
    def waddr(self, f, ks, j):
        c = self.c; l = self.l
        row = self.wrow(ks, j)
        col = c.fcol(self.wn, f)
        ch = col >> 3
        if c.shape == 32: ch = ch + ((l >> 4) & 1)*2
        ch = ch + ((l >> 1) & 1)
        return row*c.RS + ((ch ^ self.wswz(row)) << 4) + (l & 1)*8 + c.XB
    def xaddr(self, x, ks):
        c = self.c; l = self.l; wm = self.wm
        mt = wm*c.nX + x
        if c.xsrc == "fn":
            return (mt*(4 if c.shape == 32 else 2) + ks)*1024 + l*16
        if c.shape == 32: row = mt*32 + (l & 31); ch = (l >> 5) + 2*ks
        else: row = mt*16 + (l & 15); ch = (l >> 4) + 4*ks
        return row*128 + ((ch ^ ((row >> 1) & 7)) << 4)
    def _tab(self, e):
        c = self.c
        return [e.ev({"l": l, "wm": wm, "wn": wn, "kh": kh}) for kh in range(2) for wm in range(c.WM) for wn in range(c.WN) for l in range(64)]
    def check_banks(self):
        c = self.c
        for x in range(c.nX):
            for ks in range(c.NSUB):
                t = self._tab(self.xaddr(x, ks))
                for w in range(len(t)//64): assert banks.conflicts_b128(t[64*w:64*w+64]) == 0, "X conflict"
        for f in range(c.nW):
            for ks in range(c.NSUB):
                for j in range(2):
                    t = self._tab(self.waddr(f, ks, j))
                    for w in range(len(t)//64): assert banks.conflicts_b64(t[64*w:64*w+64]) == 0, ("W conflict", f, ks, j)
    def plan_reads(self):
        c = self.c
        def plan(keys, fn):
            base = []; cls = {}
            for k in keys:
                t = self._tab(fn(*k)); found = False
                for ci, (bk, bt) in enumerate(base):
                    ds = {p - q for p, q in zip(t, bt)}
                    if len(ds) == 1 and 0 <= min(ds) < 65536: cls[k] = (ci, ds.pop()); found = True; break
                if not found: base.append((k, t)); cls[k] = (len(base)-1, 0)
            return [b[0] for b in base], cls
        self.xbase, self.xcls = plan([(x, ks) for ks in range(c.NSUB) for x in range(c.nX)], self.xaddr)
        self.wbase, self.wcls = plan([(f, ks, j) for ks in range(c.NSUB) for f in range(c.nW) for j in range(2)], self.waddr)
    def alloc(self):
        self.alloc_loader(self.v); self.alloc_compute(self.v)
    def alloc_loader(self, v):
        c = self.c
        self.vXsrc = [v.alloc() for _ in range(4 if c.xsrc == "rm" else 1)]
        self.vWsrc = [v.alloc() for _ in range(c.nWld)]
    def bind(self, a, vLane, vt, tmp2=None):
        self.a = a; self.vLane = vLane; self.vt = vt
        self.em = Emitter(a, {"l": vLane}, {"wm": S_WM, "wn": S_WN, "lw": S_LW, "i": S_I, "j": S_J, "kh": 3}, vt, S_ET)
        if tmp2: self.v_tmp2 = tmp2
    def alloc_compute(self, v):
        c = self.c
        self.vXl = [v.alloc() for _ in self.xbase]; self.vXa = [v.alloc() for _ in self.xbase]
        self.vWl = [v.alloc() for _ in self.wbase]; self.vWa = [v.alloc() for _ in self.wbase]
        self.fX = [[[v.alloc(4, 4) for x in range(c.nX)] for g in range(c.G)] for s in range(2)]
        self.fW = [[[v.alloc(4, 4) for f in range(c.nW)] for g in range(c.G)] for s in range(2)]
        self.frag0 = self.fX[0][0][0]; self.frag_end = v.n
        self.acc = [[v.alloc(c.AR, 4) for f in range(c.nW)] for x in range(c.nX)]
    def setup_dma(self):
        c, a, em = self.c, self.a, self.em
        l, lw = self.l, self.lw
        if c.xsrc == "fn":
            em.vemit(lw*4096 + l*16, self.vXsrc[0])
            a.e(f"s_mul_i32 s{S_XOFF}, s{S_I}, {(c.Kx//64)*16384}")
            if c.xoff0: a.e(f"s_add_u32 s{S_XOFF}, s{S_XOFF}, {c.xoff0}") if isinstance(c.xoff0, int) else c.xoff0(a)
        else:
            x0, x1 = self.vXsrc[0], self.vXsrc[1]
            em.vemit((lw*32 + (l >> 3))*c.ldx + (((l & 7) ^ (l >> 4)) << 4), x0)
            a.e(f"v_xor_b32 v{x1}, 64, v{x0}")
            a.e(f"v_add_u32 v{self.vXsrc[2]}, {16*c.ldx - 2048}, v{x0}\nv_add_u32 v{self.vXsrc[3]}, {24*c.ldx - 3072}, v{x1}\nv_add_u32 v{x1}, {8*c.ldx - 1024}, v{x1}")
            a.e(f"s_mul_i32 s{S_XOFF}, s{S_I}, {128*c.ldx}")
        self.w_addresses()
        c.woff(a)
        a.e(f"s_lshl_b32 s{S_XL}, s{S_LW}, 12")
        a.e(f"s_mul_i32 s{S_WL}, s{S_LW}, {c.nWld*1024}\ns_add_u32 s{S_WL}, s{S_WL}, {c.XB}")
    def w_addresses(self):
        c, a, em = self.c, self.a, self.em
        l, lw = self.l, self.lw
        cpr = c.TN//8
        mg, sh = magic_div(cpr, c.nWld*256)
        vr_, vp = self.v_tmp2
        em.vr["row"] = vr_; em.vr["p"] = vp; row = V("row"); p = V("p")
        for n in range(c.nWld):
            em.vemit(lw*(c.nWld*64) + n*64 + l, vp)
            em.vemit((p*mg) >> sh, vr_)
            em.vemit(p - row*cpr, vp)
            sw = self.wswz(row)
            if not sw.isc() or sw.args[0] != 0: em.vemit(p ^ sw, vp)
            colb = ((p >> 3) << 11) + ((p & 7) << 4) if c.qkvseg else p << 4
            em.vemit(row*c.ldw + colb - (n % 4)*1024, self.vWsrc[n])
    def setup_reads(self):
        em = self.em
        for k, r in zip(self.xbase, self.vXl): em.vemit(self.xaddr(*k), r)
        for k, r in zip(self.wbase, self.vWl): em.vemit(self.waddr(*k), r)
    def dma_x(self):
        c = self.c; out = []
        if c.no_dma: return []
        out.append(f"s_add_u32 m0, s{S_WR}, s{S_XL}")
        for n in range(4):
            src = self.vXsrc[n] if c.xsrc == "rm" else self.vXsrc[0]
            out.append(("s_nop 0\n" if n == 0 else "") + f"buffer_load_dwordx4 v{src}, s[{S_XSRD}:{S_XSRD+3}], s{S_XOFF} offen offset:{n*1024} {c.xflag} lds")
        if not getattr(c, "rot", False): out.append(f"s_add_u32 s{S_XOFF}, s{S_XOFF}, {16384 if c.xsrc == 'fn' else c.BK*2}")
        return out
    def dma_w(self):
        c = self.c; out = []
        if c.no_dma: return []
        for n in range(c.nWld):
            if n % 4 == 0:
                out.append(f"s_add_u32 s{S_T}, s{S_WR}, s{S_WL}\ns_add_u32 m0, s{S_T}, {n*1024}")
            out.append(("s_nop 0\n" if n % 4 == 0 else "") + f"buffer_load_dwordx4 v{self.vWsrc[n]}, s[{S_WSRD}:{S_WSRD+3}], s{S_WOFF} offen offset:{(n % 4)*1024} lds")
        if not getattr(c, "rot", False): out.append(f"s_add_u32 s{S_WOFF}, s{S_WOFF}, {c.BK*c.ldw}")
        return out
    def rot_init(self):
        return [f"s_mov_b32 s{S_XB0}, s{S_XOFF}\ns_mov_b32 s{S_WB0}, s{S_WOFF}"] if getattr(self.c, "rot", False) else []
    def stage_off(self, n=None):
        c = self.c
        if not getattr(c, "rot", False): return []
        rp = getattr(c, "rotpos", 0)
        xd = 16384 if c.xsrc == "fn" else c.BK*2; wd = c.BK*c.ldw
        if getattr(c, "gap", 0):
            if n is not None: k = f"s_mov_b32 s{S_K}, {n}\ns_cmp_ge_u32 s{S_K}, s{S_A}\ns_cselect_b32 s{S_XOFF}, {c.gap}, 0\ns_add_u32 s{S_K}, s{S_K}, s{S_XOFF}"
            else: k = f"s_add_u32 s{S_N}, s{S_N}, 1\ns_cmp_ge_u32 s{S_N}, s{S_A}\ns_cselect_b32 s{S_XOFF}, {c.gap}, 0\ns_add_u32 s{S_K}, s{S_N}, s{S_XOFF}"
            return [k + f"\ns_mul_i32 s{S_XOFF}, s{S_K}, {xd}\ns_add_u32 s{S_XOFF}, s{S_XOFF}, s{S_XB0}\ns_mul_i32 s{S_WOFF}, s{S_K}, {wd}\ns_add_u32 s{S_WOFF}, s{S_WOFF}, s{S_WB0}"]
        if n == rp: k = f"s_mov_b32 s{S_K}, s{S_I}"
        elif n is not None:
            m = n if n < rp else n-1
            k = f"s_mov_b32 s{S_K}, {m}\ns_cmp_ge_u32 s{S_K}, s{S_I}\ns_addc_u32 s{S_K}, s{S_K}, 0"
        else: k = f"s_cmp_ge_u32 s{S_N}, s{S_I}\ns_addc_u32 s{S_K}, s{S_N}, 0\ns_add_u32 s{S_N}, s{S_N}, 1"
        return [k + f"\ns_mul_i32 s{S_XOFF}, s{S_K}, {xd}\ns_add_u32 s{S_XOFF}, s{S_XOFF}, s{S_XB0}\ns_mul_i32 s{S_WOFF}, s{S_K}, {wd}\ns_add_u32 s{S_WOFF}, s{S_WOFF}, s{S_WB0}"]
    def dma_list(self, n=None): return self.stage_off(n) + self.dma_x() + self.dma_w()
    def reads(self, set_, grp):
        c = self.c; out = []
        for g in range(c.G):
            ks = grp*c.G + g
            def xr(x):
                d = self.fX[set_][g][x]; ci, imm = self.xcls[(x, ks)]
                return (f"ds_read_b128 {vr(d,4)}, v{self.vXa[ci]} offset:{imm}", rng(d,4))
            def wr(f):
                d = self.fW[set_][g][f]; o = []
                for j in range(2):
                    ci, imm = self.wcls[(f, ks, j)]
                    o.append((f"ds_read_b64_tr_b16 {vr(d+2*j,2)}, v{self.vWa[ci]} offset:{imm}", rng(d+2*j,2)))
                return o
            order = self.mfma_order()
            seen = set()
            for (x, f) in order:
                if ("x", x) not in seen: seen.add(("x", x)); out.append(xr(x))
                if ("f", f) not in seen: seen.add(("f", f)); out += wr(f)
        return out
    def mfma_order(self):
        c = self.c
        o = []
        mode = getattr(c, "order", "fx")
        if mode == "fx":
            for f in range(c.nW):
                xs = range(c.nX) if f % 2 == 0 else reversed(range(c.nX))
                o += [(x, f) for x in xs]
        else:
            for x in range(c.nX):
                fs = range(c.nW) if x % 2 == 0 else reversed(range(c.nW))
                o += [(x, f) for f in fs]
        return o
    def mfmas(self, set_, first=False):
        c = self.c; out = []
        op = "v_mfma_f32_32x32x16_bf16" if c.shape == 32 else "v_mfma_f32_16x16x32_bf16"
        for g in range(c.G):
            for (x, f) in self.mfma_order():
                X = self.fX[set_][g][x]; W = self.fW[set_][g][f]; acc = self.acc[x][f]
                A, B = (W, X) if c.orient(f) == "mn" else (X, W)
                srcc = "0" if (first and g == 0) else vr(acc, c.AR)
                out.append((f"{op} {vr(acc,c.AR)}, {vr(A,4)}, {vr(B,4)}, {srcc}", list(rng(X,4)) + list(rng(W,4))))
        return out
    def group(self, set_, reads, extra, first=False, late=(), tail=()):
        a = self.a; c = self.c
        ms = self.mfmas(set_, first); n = len(ms)
        reads = list(reads); extra = list(extra); late = list(late); tail = list(tail)
        nearly = max(1, int(n*c.read_frac))
        nr = len(reads); ne = len(extra); nl = len(late); nt = len(tail)
        done_r = 0; done_e = 0; done_l = 0; done_t = 0; drained = False
        startn = int(c.extra_start*n); span = max(1, n - 1 - startn)
        i0 = max(nearly + 1, n - 1 - max(nt, int(0.3*n))) if nt else n
        def flush_scc():
            nonlocal done_e, done_l
            while done_e < ne: a.e(extra[done_e]); done_e += 1
            while done_l < nl - (0 if nt else 1) and nt: a.e(late[done_l]); done_l += 1
        for i, (ins, regs) in enumerate(ms):
            a.need(regs)
            if not c.no_mfma: a.e(ins)
            want = min(nr, -(-nr*(i+1)//nearly))
            while done_r < want: a.lds_rd(*reads[done_r]); done_r += 1
            if i >= startn:
                wante = min(ne, -(-ne*(i+1-startn)//span))
                while done_e < wante: a.e(extra[done_e]); done_e += 1
            if done_r == nr and i >= nearly and i < n-1 and done_l < nl:
                left = (min(i0, n-1) if nt else n - 1) - i
                cnt = -(-(nl - done_l)//max(left, 1))
                for _ in range(min(cnt, nl - done_l)):
                    if "s_cmp_lg" in late[done_l]:
                        while done_e < ne: a.e(extra[done_e]); done_e += 1
                    a.e(late[done_l]); done_l += 1
            if nt and i >= i0 and i < n-1:
                if not drained:
                    assert done_r == nr
                    a.lds_drain(); drained = True
                left = n - 1 - i
                cnt = -(-(nt - done_t)//left)
                for _ in range(cnt):
                    op = tail[done_t]
                    if "s_cmp_lg" in op: flush_scc()
                    if isinstance(op, tuple): a.lds_other(op[0])
                    else: a.e(op)
                    done_t += 1
        while done_r < nr: a.lds_rd(*reads[done_r]); done_r += 1
        while done_e < ne: a.e(extra[done_e]); done_e += 1
        while done_l < nl: a.e(late[done_l]); done_l += 1
        assert done_t == nt, (done_t, nt)
        assert done_e == ne
    def set_read_addrs(self):
        return [f"v_add_u32 v{r}, s{S_RD}, v{l}" for l, r in zip(self.vXl + self.vWl, self.vXa + self.vWa)]
    def adv_slot(self, s):
        c = self.c
        return f"s_add_u32 s{s}, s{s}, {c.SB}\ns_cmp_eq_u32 s{s}, {c.S*c.SB}\ns_cselect_b32 s{s}, 0, s{s}"

    def compute_loop(self, pre_issue=None, post_issue=None):
        c, a = self.c, self.a
        NG = c.NSUB//c.G; S = c.S; ns = c.nsteps
        own = not c.loaders
        nld = c.nld if (own and not c.no_dma) else 0
        if pre_issue: pre_issue()
        if own:
            a.e(f"s_mov_b32 s{S_WR}, 0")
            for s in range(S):
                for ins in self.dma_list(): a.e(ins)
                a.e(f"s_add_u32 s{S_WR}, s{S_WR}, {c.SB}")
        if post_issue: post_issue(S*nld)
        a.e(f"s_mov_b32 s{S_RD}, 0\ns_mov_b32 s{S_WR}, 0")
        for ins in self.set_read_addrs(): a.e(ins)
        a.lds_drain(f"vmcnt({(S-1)*nld})" if own else "")
        a.e("s_barrier")
        stamp(a, 1); stamp(a, 6, cyc=True)
        for r in self.reads(0, 0): a.lds_rd(*r)
        st = 0
        for g in range(NG-1):
            self.group(st, self.reads(st ^ 1, g+1), [], first=(g == 0)); st ^= 1
        def boundary(vm):
            a.lds_drain(f"vmcnt({vm})" if (vm is not None and own) else "")
            a.e("s_barrier")
        a.e(self.adv_slot(S_RD))
        for ins in self.set_read_addrs(): a.e(ins)
        boundary((S-2)*nld)
        par = st
        def body(t_issue, vm, loopctl=False):
            st = par
            dma = self.dma_list() if (t_issue and own) else []
            chunks = [dma[len(dma)*i//NG: len(dma)*(i+1)//NG] for i in range(NG)]
            for g in range(NG):
                extra = list(chunks[g]); late = []
                if g == NG-1:
                    late.append((f"s_mov_b32 s{S_WR}, s{S_RD}\n" if own else "") + self.adv_slot(S_RD))
                    late += self.set_read_addrs()
                    if loopctl: late.append(f"s_sub_u32 s{S_CNT}, s{S_CNT}, 1\ns_cmp_lg_u32 s{S_CNT}, 0")
                self.group(st, self.reads(st ^ 1, g), extra, late=late); st ^= 1
            a.lds_drain(f"vmcnt({vm})" if (vm is not None and own) else "")
        assert NG % 2 == 0
        nb = ns - S
        if nb > 0:
            a.e(f"s_mov_b32 s{S_CNT}, {nb}\ns_branch L_loop_{c.name}")
            a.label(f"L_top_{c.name}")
            a.e("s_barrier")
            a.label(f"L_loop_{c.name}")
            body(True, (S-2)*nld, loopctl=True)
            a.e(f"s_cbranch_scc1 L_top_{c.name}\ns_barrier")
        for t in range(max(nb, 0), ns-1):
            rem = max(0, (ns-1) - (t+2))
            body(False, min(rem, S-2)*nld if t+2 <= ns-1 else None)
            a.e("s_barrier")
        self.group(par, [], [])
        a.e("s_nop 15")
        stamp(a, 2); stamp(a, 7, cyc=True)

    def loader_loop(self):
        c, a = self.c, self.a
        S = c.S; ns = c.nsteps; nld = 0 if c.no_dma else c.nld
        a.e(f"s_mov_b32 s{S_WR}, 0")
        for s in range(S):
            for ins in self.dma_list(): a.e(ins)
            a.e(f"s_add_u32 s{S_WR}, s{S_WR}, {c.SB}")
        a.e(f"s_mov_b32 s{S_WR}, 0")
        a.e(f"s_waitcnt vmcnt({(S-1)*nld})\ns_barrier")
        a.e(f"s_waitcnt vmcnt({(S-2)*nld})\ns_barrier")
        nb = ns - S
        if nb > 0:
            a.e(f"s_mov_b32 s{S_CNT}, {nb}")
            a.label(f"L_lloop_{c.name}")
            for ins in self.dma_list(): a.e(ins)
            a.e(self.adv_slot(S_WR))
            a.e(f"s_waitcnt vmcnt({(S-2)*nld})\ns_barrier")
            a.e(f"s_sub_u32 s{S_CNT}, s{S_CNT}, 1\ns_cmp_lg_u32 s{S_CNT}, 0\ns_cbranch_scc1 L_lloop_{c.name}")
        for t in range(max(nb, 0), ns-1):
            rem = max(0, (ns-1) - (t+2))
            if t+2 <= ns-1: a.e(f"s_waitcnt vmcnt({min(rem, S-2)*nld})")
            a.e("s_barrier")
```

```python
from gemm2 import *
from hz import HZ
import common

NAME = "sequential_preLN__sliding_block__dense_activation_relu__prompt_kernel"
L_SPARE = 122880
L_SIDE = 159744
SD_MEAN1, SD_RSTD1, SD_CSQ = L_SIDE, L_SIDE+512, L_SIDE+1024
SD_MEAN2, SD_RSTD2, SD_CS1 = L_SIDE+2048, L_SIDE+2560, L_SIDE+3072
SD_CNT = L_SIDE + 3968
SD_TOK = SD_CNT + 32
SD_FULL, SD_FREE = L_SIDE + 4016, L_SIDE + 4032
S_TG = 77
LDS_TOTAL = 163840
AT_K = lambda hh: hh*49152
AT_V = lambda hh: hh*49152 + 24576
AT_Q0 = 98304
WS_KV = 4*MB
WS_ST1 = 36*MB; WS_CSQ = 36*MB + 64*1024; WS_CS1 = 36*MB + 512*1024; WS_ST2 = 37*MB
WS_XCH = 44*MB
WS_FLAG = 52*MB
FSTR = 32768
F_H, F_H1, F_O, F_S2, F_Q = [WS_FLAG + k*FSTR for k in range(5)]
F_KV, F_CS1 = WS_FLAG + 5*FSTR, WS_FLAG + 6*FSTR
F_P = WS_FLAG + 7*FSTR
OOB = 0x7ffffff0
WS_BYTES = 56*MB
S_WS, S_DBG, S_OUT = S_E0, S_E1, S_E2
POLL_MAX = 400000
QSCALE = (DH ** -0.5) * 1.4426950408889634

class VM:
    def __init__(s, a): s.a = a; s.q = []
    def iss(s, tag, n=1): s.q += [tag]*n
    def count_after(s, tag):
        idx = max(i for i, t in enumerate(s.q) if t == tag)
        return len(s.q) - 1 - idx
    def wait(s, tag, extra=""):
        if tag not in s.q: return
        n = min(63, s.count_after(tag))
        s.a.e(f"s_waitcnt vmcnt({n}) {extra}".strip())
        s.q = s.q[len(s.q)-n:] if n else []
    def drain(s): s.a.e("s_waitcnt vmcnt(0)"); s.q = []

class MK:
    def __init__(self, opts=None):
        self.o = dict(diag=False, pf_first=False, pf_weights=True, stop_after=None, tlb=False, codepf=True)
        self.o.update(opts or {})
        self.C = Asm(); self.L = Asm(); self.A = Asm(); self.tail = Asm()
        self.nbar = 0; self.nl = 0; self.lnames = []
    def bar(self):
        self.C.e("s_barrier"); self.L.e("s_barrier")
    def stamp(self, a, k):
        if self.o["diag"]:
            a.e(f"s_memrealtime s[88:89]\ns_waitcnt lgkmcnt(0)\nv_writelane_b32 v255, s88, {k}")
            a.lq = []
    def ptr(self, o): return (S_PTR+16, S_PTR+17) if o == A_WS else (S_PTR + o//4, S_PTR + o//4 + 1)
    def poll_test(self, a, vtmp, x2=False, token=True):
        if token: a.e(f"v_cmp_eq_u32 vcc, s1, v{vtmp}\ns_nop 4\ns_cmp_eq_u64 vcc, exec")
        else: a.e(f"v_cmp_ne_u32 vcc, 0, v{vtmp}\ns_nop 4\ns_cmp_eq_u64 vcc, exec")
    def poll(self, a, srd_, vaddr, vtmp, label, byte=False, x2=False, token=True):
        a.e(f"s_mov_b32 s{S_CNT}, {POLL_MAX}")
        a.label(f"L_poll_{label}")
        ld = f"buffer_load_dwordx2 {vr(vtmp,2)}" if x2 else f"buffer_load_{'ubyte' if byte else 'dword'} v{vtmp}"
        a.e(f"{ld}, v{vaddr}, s[{srd_}:{srd_+3}], 0 offen sc1\ns_waitcnt vmcnt(0)")
        self.poll_test(a, vtmp, x2, token)
        a.e(f"s_cbranch_scc1 L_polldone_{label}")
        a.e(f"s_sleep {self.o.get('sleep', 4)}\ns_sub_u32 s{S_CNT}, s{S_CNT}, 1\ns_cmp_lg_u32 s{S_CNT}, 0\ns_cbranch_scc1 L_poll_{label}")
        a.label(f"L_polldone_{label}")
    def one_lane_addr(self, a, dst, soff_reg, only_lw0):
        if only_lw0:
            a.e(f"s_cmp_eq_u32 s{S_LW}, 0\ns_cselect_b32 s{soff_reg}, s{soff_reg}, {hex(OOB)}")
        a.e(f"v_mov_b32 v{dst}, {hex(OOB)}\nv_writelane_b32 v{dst}, s{soff_reg}, 0")
    def signal(self, a, soff_code, vt0, vt1, only_lw0=False, srd_=None, byte=False):
        srd_ = S_WS if srd_ is None else srd_
        a.e(soff_code)
        self.one_lane_addr(a, vt1, S_T, only_lw0)
        a.e(f"v_mov_b32 v{vt0}, s1\nbuffer_store_dword v{vt0}, v{vt1}, s[{srd_}:{srd_+3}], 0 offen sc1")
    def off_ijw(self, base, wreg):
        return f"s_lshl_b32 s{S_T}, s{S_I}, 6\ns_lshl_b32 s{S_T2}, s{S_J}, 2\ns_add_u32 s{S_T}, s{S_T}, s{S_T2}\ns_add_u32 s{S_T}, s{S_T}, s{wreg}\ns_lshl_b32 s{S_T}, s{S_T}, 2\ns_add_u32 s{S_T}, s{S_T}, {base}"
    def off_ij(self, base):
        return f"s_lshl_b32 s{S_T}, s{S_I}, 4\ns_add_u32 s{S_T}, s{S_T}, s{S_J}\ns_lshl_b32 s{S_T}, s{S_T}, 7\ns_add_u32 s{S_T}, s{S_T}, {base}"
    def off_ji(self, base):
        return f"s_lshl_b32 s{S_T}, s{S_J}, 4\ns_add_u32 s{S_T}, s{S_T}, s{S_I}\ns_lshl_b32 s{S_T}, s{S_T}, 7\ns_add_u32 s{S_T}, s{S_T}, {base}"
    def signal_last(self, a, k, nwaves, soff_code, vt0, vt1, label):
        a.e(f"v_mov_b32 v{vt0}, {SD_CNT + 4*k}\nv_mov_b32 v{vt1}, 1\ns_mov_b64 exec, 1")
        a.e(f"ds_add_rtn_u32 v{vt0}, v{vt0}, v{vt1}")
        a.e(soff_code)
        a.e(f"s_waitcnt lgkmcnt(0)\nv_readfirstlane_b32 s{S_T2}, v{vt0}\nv_mov_b32 v{vt0}, 0\nv_mov_b32 v{vt1}, s1\ns_nop 1\ns_cmp_eq_u32 s{S_T2}, {nwaves-1}\ns_cbranch_scc0 L_notlast_{label}")
        a.e(f"buffer_store_dword v{vt1}, v{vt0}, s[{S_WS}:{S_WS+3}], s{S_T} offen sc1")
        a.label(f"L_notlast_{label}")
        a.e("s_mov_b64 exec, -1"); a.lq = []
    def group_words(self, a, dst, base, grp_sreg):
        a.e(f"s_lshl_b32 s{S_T}, s{grp_sreg}, 11\ns_add_u32 s{S_T}, s{S_T}, {base}\nv_and_b32 v{dst}, 15, v{self.vL}\nv_lshlrev_b32 v{dst}, 7, v{dst}\nv_add_u32 v{dst}, s{S_T}, v{dst}")
    def row_words(self, a, dst, base, stride_shift, lane_shift):
        a.e(f"s_lshl_b32 s{S_T}, s{S_I}, {stride_shift}\ns_add_u32 s{S_T}, s{S_T}, {base}\nv_lshlrev_b32 v{dst}, {lane_shift}, v{self.vL}\nv_add_u32 v{dst}, s{S_T}, v{dst}")
    def lane0(self, a, body, label):
        a.e(f"v_cmp_eq_u32 vcc, 0, v{self.vL}\ns_and_saveexec_b64 s[{S_EX}:{S_EX+1}], vcc")
        a.e(body)
        a.e(f"s_mov_b64 exec, s[{S_EX}:{S_EX+1}]")
    def only_lw0(self, a, label, fn):
        a.e(f"s_cmp_lg_u32 s{S_LW}, 0\ns_cbranch_scc1 L_skip_{label}")
        fn()
        a.label(f"L_skip_{label}")

    def cfgs(self):
        base = dict(shape=16, loaders=True, split=True, xflag="", xoff0=0, read_frac=0.5, extra_start=0.3, WM=2, WN=2)
        q = Cfg(name="q", TN=192, K=1024, Kx=1024, xsrc="rm", ldx=2048, korder="std", ldw=6144, qkvseg=True, S=3,
                fcol=lambda wn, f: wn*32 + (64*(f//2) + 16*(f % 2)), orient=lambda f: "nm" if f >= 4 else "mn",
                woff=lambda a: a.e(f"s_lshl_b32 s{S_WOFF}, s{S_J}, 7"), **base)
        o = Cfg(name="o", TN=64, K=1024, Kx=1024, xsrc="fn", korder="fn32", ldw=2048, S=self.o.get("So", 6),
                fcol=lambda wn, f: wn*32 + 16*f, orient=lambda f: "mn",
                woff=lambda a: a.e(f"s_lshl_b32 s{S_WOFF}, s{S_J}, 7"), **base)
        f1 = Cfg(name="f1", TN=224, K=1024, Kx=1024, xsrc="fn", korder="fn", ldw=7168, S=3,
                 fcol=lambda wn, f: (wn*128 + 16*f) if f < 6 else (wn*16 + 96), orient=lambda f: "mn",
                 woff=lambda a: a.e(f"s_mul_i32 s{S_WOFF}, s{S_J}, 448"), **base)
        def woff2(a):
            a.e(f"s_and_b32 s{S_T}, s{S_J}, 7\ns_lshl_b32 s{S_WOFF}, s{S_T}, 8\ns_lshr_b32 s{S_T}, s{S_J}, 3\ns_mul_i32 s{S_T}, s{S_T}, {1792*2048}\ns_add_u32 s{S_WOFF}, s{S_WOFF}, s{S_T}")
        f2 = Cfg(name="f2", TN=128, K=1792, Kx=3584, xsrc="fn", korder="fn", ldw=2048, S=4,
                 fcol=lambda wn, f: (wn*64 + S("kh")*32 + 16*f) if f < 2 else (wn*64 + (S("kh") ^ 1)*32 + 16*(f-2)), orient=lambda f: "mn", woff=woff2, **base)
        for c in (o, f1, f2): c.xflag = "sc1"
        q.read_frac = self.o.get("rfq", 0.75); o.read_frac = self.o.get("rfo", 0.5); f1.read_frac = self.o.get("rf1", 0.9); f2.read_frac = self.o.get("rf2", 0.8)
        if self.o.get("own2", True): f2.rot = True; f2.gap = 3
        q.rot = True; f1.rot = True; q.rotpos = self.o.get("qrot", 2); f1.rotpos = 0
        return q, o, f1, f2

    def xoff_fn(self, a, c, wsbase, khalf=False):
        a.e(f"s_mul_i32 s{S_XOFF}, s{S_I}, {(c.Kx//64)*16384}\ns_add_u32 s{S_XOFF}, s{S_XOFF}, {wsbase}")
        if khalf:
            a.e(f"s_lshr_b32 s{S_T}, s{S_J}, 3\ns_mul_i32 s{S_T}, s{S_T}, {28*16384}\ns_add_u32 s{S_XOFF}, s{S_XOFF}, s{S_T}")

    def build(self):
        C, L = self.C, self.L
        E = Asm()
        q, o, f1, f2 = self.cfgs()
        self.vL = 1; vt = [2, 3, 4, 5, 6, 7]; tmp2 = (8, 9); self.vL16 = 10; self.vZero = 11
        self.vt = vt
        gq, go, g1, g2 = [G(c, C, None, self.vL, vt) for c in (q, o, f1, f2)]
        self.g = (gq, go, g1, g2)
        E.e(f"s_cmp_ge_u32 s2, 256\ns_cbranch_scc1 L_end")
        if self.o.get("codepf", True):
            E.e("s_getpc_b64 s[96:97]")
            E.label("L_pc")
            E.e("v_lshlrev_b32 v2, 7, v0\ns_mov_b32 s3, L_end-L_pc\nv_min_u32 v2, s3, v2\nglobal_load_dword v254, v2, s[96:97]")
        E.e(f"s_load_dwordx16 s[{S_PTR}:{S_PTR+15}], s[0:1], 0\ns_load_dwordx2 s[{S_PTR+16}:{S_PTR+17}], s[0:1], 64")
        if self.o["diag"]:
            E.e("v_mov_b32 v255, 0\nv_mov_b32 v253, 0"); self.stamp(E, 0)
        E.e(f"s_and_b32 s{S_T}, s2, 7\ns_lshr_b32 s{S_T2}, s2, 3")
        if self.o.get("xmap", 1):
            E.e(f"s_and_b32 s{S_I}, s{S_T}, 1\ns_lshr_b32 s{S_J}, s{S_T}, 1\ns_lshl_b32 s{S_I}, s{S_I}, 3\ns_lshl_b32 s{S_J}, s{S_J}, 2")
        else:
            E.e(f"s_lshr_b32 s{S_I}, s{S_T}, 2\ns_and_b32 s{S_J}, s{S_T}, 3\ns_lshl_b32 s{S_I}, s{S_I}, 3\ns_lshl_b32 s{S_J}, s{S_J}, 2")
        E.e(f"s_lshr_b32 s{S_T}, s{S_T2}, 2\ns_and_b32 s{S_T2}, s{S_T2}, 3\ns_add_u32 s{S_I}, s{S_I}, s{S_T}\ns_add_u32 s{S_J}, s{S_J}, s{S_T2}")
        E.e(f"v_and_b32 v{self.vL}, 63, v0\nv_lshrrev_b32 v2, 6, v0\ns_nop 0\nv_readfirstlane_b32 s{S_WV}, v2\nv_lshlrev_b32 v{self.vL16}, 4, v{self.vL}\nv_mov_b32 v{self.vZero}, 0\ns_nop 1")
        E.e(f"s_and_b32 s{S_LW}, s{S_WV}, 3\ns_lshr_b32 s{S_WM}, s{S_LW}, 1\ns_and_b32 s{S_WN}, s{S_LW}, 1")
        E.e(f"s_cmp_ge_u32 s{S_WV}, 4\ns_cbranch_scc1 L_loader")
        lv = Regs(12, 64)
        gq.alloc_loader(lv); go.alloc_loader(lv); g1.alloc_loader(lv); g2.alloc_loader(lv)
        self.lv_end = lv.n
        self.phase_q(gq, g1)
        self.attention()
        stop = self.o["stop_after"]
        self.phase_o(go)
        self.phase_f1(g1)
        self.phase_f2(g2)
        if self.o["diag"]:
            self.stamp(C, 15)
            C.e(f"s_cmp_lg_u32 s{S_WV}, 0\ns_cbranch_scc1 L_end")
            C.e(f"s_lshl_b32 s{S_T}, s2, 7\ns_add_u32 s{S_T}, s{S_T}, {common.WS_STAMP}\nv_lshlrev_b32 v2, 2, v{self.vL}")
            C.e(f"v_cmp_gt_u32 vcc, 32, v{self.vL}\ns_and_saveexec_b64 s[{S_EX}:{S_EX+1}], vcc")
            C.e(f"buffer_store_dword v255, v2, s[{S_WS}:{S_WS+3}], s{S_T} offen")
            if self.o.get("dbgout") is not None:
                C.e(f"s_cmp_lg_u32 s2, {self.o['dbgout']}\ns_cbranch_scc1 L_end")
                srd(C, S_DBG, *self.ptr(A_DBG), 256)
                C.e(f"v_readlane_b32 s{S_T}, v255, 0\ns_nop 3\nv_subrev_u32 v255, s{S_T}, v255\nv_cmp_gt_u32 vcc, 16, v{self.vL}\ns_nop 1\ns_and_b64 exec, exec, vcc\nv_cmp_lt_u32 vcc, 0, v{self.vL}\ns_nop 1\ns_and_b64 exec, exec, vcc")
                C.e(f"buffer_store_dword v255, v2, s[{S_DBG}:{S_DBG+3}], 0 offen")
        C.e("s_branch L_end")
        if self.o["diag"]:
            L.e(f"s_cmp_lg_u32 s{S_WV}, 4\ns_cbranch_scc1 L_end")
            L.e(f"s_lshl_b32 s{S_T}, s2, 9\ns_add_u32 s{S_T}, s{S_T}, {common.WS_STAMP + 131072}\nv_lshlrev_b32 v2, 2, v{self.vL}")
            L.e(f"buffer_store_dword v255, v2, s[{S_WS}:{S_WS+3}], s{S_T} offen\nbuffer_store_dword v253, v2, s[{S_WS}:{S_WS+3}], s{S_T} offen offset:256")
        txt = head(NAME) + E.text() + C.text() + "L_loader:\n" + L.text() + "  s_branch L_end\n" + self.A.text() + self.tail.text() + "L_end:\n  s_endpgm\n" + kd(NAME)
        return txt

    def srds_common(self, a):
        a.e("s_waitcnt lgkmcnt(0)")
        srd(a, S_WS, *self.ptr(A_WS), WS_BYTES, self.o.get('wsoff', 0))
        srd(a, S_DBG, *self.ptr(A_DBG), 256)

    def phase_q(self, g, g1):
        C, L, c = self.C, self.L, g.c
        vL, vt = self.vL, self.vt
        g.bind(L, vL, vt, (8, 9)); vm = VM(L)
        em = g.em
        L.e(f"s_setprio {3 if self.o.get('lfirst', True) else 1}")
        g.setup_dma()
        if self.o.get("lpro"): self.lstamp("setup")
        L.e("s_waitcnt lgkmcnt(0)")
        srd(L, S_XSRD, *self.ptr(A_X), M*D*2)
        srd(L, S_WSRD, *self.ptr(A_WQKV), D*3*D*2)
        def issue(t):
            for ins in g.dma_list(t): L.e(ins)
            vm.iss(("st", t), c.nld)
        for ins in g.rot_init(): L.e(ins)
        L.e(f"s_mov_b32 s{S_WR}, 0")
        for s in range(2):
            issue(s); L.e(f"s_add_u32 s{S_WR}, s{S_WR}, {c.SB}")
            if s == 0: L.e("s_setprio 1")
            if self.o.get("lpro"): self.lstamp("iss")
        srd(L, S_WS, *self.ptr(A_WS), WS_BYTES, self.o.get('wsoff', 0)); srd(L, S_DBG, *self.ptr(A_DBG), 256)
        sv = Regs(64, 250)
        ones = sv.alloc(4, 4); wf = [sv.alloc(4, 4) for _ in range(8)]; sacc = [sv.alloc(4, 4) for _ in range(4)]
        vS = [sv.alloc() for _ in range(8)]; ldr = sv.alloc(32, 4)
        t0, t1, t2 = vt[0:3]
        L.e(f"v_lshlrev_b32 v{t0}, 2, v{vL}\nv_add_u32 v{t0}, {SD_CNT}, v{t0}\nv_cmp_gt_u32 vcc, 8, v{vL}\ns_and_saveexec_b64 s[{S_EX}:{S_EX+1}], vcc")
        L.lds_other(f"ds_write_b32 v{t0}, v{self.vZero}"); L.e(f"s_mov_b64 exec, s[{S_EX}:{S_EX+1}]")
        for k in range(4): L.e(f"v_mov_b32 v{ones+k}, 0x3f803f80")
        vL4 = sv.alloc(); rq = [sv.alloc() for _ in range(4)]
        late_cs = c.rotpos > 0 and self.o.get("latecs", True)
        if not late_cs:
            L.e(f"v_lshlrev_b32 v{vL4}, 2, v{vL}")
            cls_q = self.csum_setup(g, 3, rq)
        csq_code = f"s_lshl_b32 s{S_T}, s{S_I}, 4\ns_add_u32 s{S_T}, s{S_T}, s{S_J}\ns_mul_i32 s{S_T2}, s{S_T}, 768\ns_mul_i32 s{S_T}, s{S_LW}, 192\ns_add_u32 s{S_T2}, s{S_T2}, s{S_T}\ns_add_u32 s{S_T2}, s{S_T2}, {WS_CSQ}"
        FLQ = 2 if self.o.get("flagsq", False) else 0
        if FLQ: self.lflag_init()
        if self.o.get("lpro"): self.lstamp("pre")
        vm.wait(("st", 0))
        if self.o.get("lpro"): self.lstamp("land")
        L.lds_drain(); self.bar_L_only()
        issue(2); L.e(f"s_mov_b32 s{S_WR}, 0")
        if late_cs:
            L.e(f"v_lshlrev_b32 v{vL4}, 2, v{vL}")
            cls_q = self.csum_setup(g, 3, rq)
        RP = c.rotpos
        if RP == 0: self.csum_reads(3, cls_q, rq, wf)
        vm.wait(("st", 1)); L.lds_drain(); self.bar_L_only()
        ns, S = c.nsteps, c.S
        def hook(t):
            if RP > 0 and t == RP - 1: self.csum_reads(3, cls_q, rq, wf)
            if t == RP: self.csum_finish(vm, 3, 12, ones, wf, sacc, vL4, csq_code)
            if t == RP + 3 and self.o.get("qsigL", True):
                if FLQ:
                    L.e(f"v_mov_b32 v{vS[3]}, {SD_FULL}"); self.lwait(vS[3], RP + 5, "qsig")
                self.signal(L, self.off_ij(F_Q), vS[0], vS[1], only_lw0=True); vm.iss("sig")
            if t == 1:
                L.e(f"v_mov_b32 v{vS[2]}, {SD_TOK}\nds_read_b32 v{vS[2]}, v{vS[2]}\ns_waitcnt lgkmcnt(0)\nv_readfirstlane_b32 s1, v{vS[2]}")
            if t == self.o.get("qpoll", 9):
                t0, t1 = vt[0:2]
                L.e(f"v_and_b32 v{t0}, 15, v{vL}\ns_lshl_b32 s{S_T}, s{S_I}, 4\nv_add_u32 v{t1}, s{S_T}, v{t0}\nv_lshlrev_b32 v{t0}, 4, v{t0}\nv_add_u32 v{t0}, s{S_J}, v{t0}")
                L.e(f"v_and_b32 v{vS[7]}, 16, v{vL}\nv_cmp_eq_u32 vcc, 0, v{vS[7]}\ns_nop 1\nv_cndmask_b32 v{vS[7]}, v{t0}, v{t1}, vcc\nv_lshlrev_b32 v{vS[7]}, 7, v{vS[7]}\nv_add_u32 v{vS[7]}, {F_Q}, v{vS[7]}")
                L.e(f"buffer_load_dword v{vS[6]}, v{vS[7]}, s[{S_WS}:{S_WS+3}], 0 offen sc1"); vm.iss("pollq")
            if t == 11:
                vm.wait("pollq")
                self.poll_test(L, vS[6])
                L.e("s_cbranch_scc1 L_qready")
                self.poll(L, S_WS, vS[7], vS[6], "q")
                L.label("L_qready")
                self.colsum_loads(L, vm, "qld", ldr, vS[1], vS[2], 12, 768, f"s_mul_i32 s{S_T2}, s{S_J}, 768\ns_mul_i32 s{S_T}, s{S_LW}, 192\ns_add_u32 s{S_T2}, s{S_T2}, s{S_T}\ns_add_u32 s{S_T2}, s{S_T2}, {WS_CSQ}")
                L.e(f"s_lshl_b32 s{S_T2}, s{S_I}, 7\ns_lshl_b32 s{S_T}, s{S_LW}, 5\ns_add_u32 s{S_T2}, s{S_T2}, s{S_T}\ns_lshl_b32 s{S_T2}, s{S_T2}, 3\ns_add_u32 s{S_T2}, s{S_T2}, {WS_ST1}")
                L.e(f"v_and_b32 v{vS[3]}, 31, v{vL}\nv_lshlrev_b32 v{vS[3]}, 3, v{vS[3]}\nbuffer_load_dwordx2 {vr(ldr+16,2)}, v{vS[3]}, s[{S_WS}:{S_WS+3}], s{S_T2} offen sc1")
                vm.iss("qld", 1)
            if t == 13:
                vm.wait("qld")
                if self.o.get("lowhooks", True): L.e("s_setprio 0")
                self.colsum_reduce(L, ldr, ldr+20, vS[1], 12, SD_CSQ, 192)
                if self.o.get("lowhooks", True): L.e("s_setprio 1")
                L.e(f"v_and_b32 v{vS[3]}, 31, v{vL}\ns_lshl_b32 s{S_T}, s{S_LW}, 5\nv_add_u32 v{vS[3]}, s{S_T}, v{vS[3]}\nv_lshlrev_b32 v{vS[3]}, 2, v{vS[3]}\nv_add_u32 v{vS[3]}, {SD_MEAN1}, v{vS[3]}")
                L.e(f"ds_write_b32 v{vS[3]}, v{ldr+16}\nds_write_b32 v{vS[3]}, v{ldr+17} offset:512")
                L.e("s_waitcnt lgkmcnt(0)"); L.lq = []
        for t in range(ns-1):
            if t + S <= ns-1:
                if FLQ and t > FLQ: self.lwait(46, t + 2, f"q{t}")
                issue(t+S); L.e(g.adv_slot(S_WR))
            hook(t)
            if t+2 <= ns-1 and ("st", t+2) in vm.q: vm.wait(("st", t+2))
            L.lds_drain()
            if FLQ and FLQ - 1 <= t <= ns-3: self.lfull(t + 3)
            if not FLQ or t < FLQ or t == ns-2:
                L.lds_drain(); self.bar_L_only()
            else: self.lstamp()
        g.bind(C, vL, vt, (8, 9))
        cv = Regs(12, 254); g.alloc_compute(cv)
        g.a = C
        C.e("s_setprio 2")
        a0 = g.acc[0][0]; xr = a0; un = a0 + 16; vS = [a0 + 48 + k for k in range(6)]
        C.e("s_waitcnt lgkmcnt(0)")
        self.stamp(C, 16)
        srd(C, S_XSRD, *self.ptr(A_X), M*D*2)
        srd(C, S_DBG, *self.ptr(A_DBG), 256)
        C.e(f"s_or_b32 s{S_T}, s2, s{S_LW}\ns_cmp_lg_u32 s{S_T}, 0\ns_cbranch_scc1 L_notok")
        C.e(f"s_memrealtime s[88:89]\ns_waitcnt lgkmcnt(0)\ns_or_b32 s88, s88, 1\nv_mov_b32 v{vt[0]}, s88")
        self.lane0(C, f"buffer_store_dword v{vt[0]}, v{self.vZero}, s[{S_DBG}:{S_DBG+3}], 0 offen sc1", "tok")
        C.label("L_notok")
        C.e(f"s_lshl_b32 s{S_T}, s{S_I}, 7\ns_lshl_b32 s{S_T2}, s{S_J}, 3\ns_add_u32 s{S_T}, s{S_T}, s{S_T2}\ns_lshl_b32 s{S_T2}, s{S_LW}, 1\ns_add_u32 s71, s{S_T}, s{S_T2}\ns_lshl_b32 s{S_T}, s71, 11")
        for r in range(2):
            for p in range(2):
                C.e(f"buffer_load_dwordx4 {vr(xr+8*r+4*p,4)}, v{self.vL16}, s[{S_XSRD}:{S_XSRD+3}], s{S_T} offen offset:{r*2048+p*1024}")
        tlb2 = self.o.get("tlb2", False)
        if tlb2:
            t0, t1 = vt[0:2]
            C.e(f"s_cmp_lg_u32 s{S_LW}, 3\ns_cbranch_scc1 L_notlb\nv_lshlrev_b32 v{t0}, 21, v{vL}")
            for arg, size in ((A_WS, 54*MB), (A_WQKV, D*3*D*2), (A_WO, D*D*2), (A_W1, D*DFF*2), (A_W2, DFF*D*2), (A_OUT, M*D*2)):
                p = self.ptr(arg)[0]
                C.e(f"v_min_u32 v{t1}, {hex(size - 4)}, v{t0}\nglobal_load_dword v254, v{t1}, s[{p}:{p+1}]")
            C.label("L_notlb")
        slabpf = self.o.get("slabpf", False)
        if slabpf:
            t0, t1, t2 = vt[0:3]
            mg3, sh3 = magic_div(3, 256)
            srd(C, S_E3, *self.ptr(A_WQKV), D*3*D*2)
            C.e(f"s_mul_i32 s{S_T}, s{S_LW}, 48\nv_min_u32 v{t0}, 47, v{vL}\nv_add_u32 v{t0}, s{S_T}, v{t0}\nv_mul_u32_u24 v{t1}, {mg3}, v{t0}\nv_lshrrev_b32 v{t1}, {sh3}, v{t1}")
            C.e(f"v_mul_u32_u24 v{t2}, 3, v{t1}\nv_sub_u32 v{t0}, v{t0}, v{t2}\nv_lshlrev_b32 v{t0}, 11, v{t0}\nv_mul_u32_u24 v{t1}, 6144, v{t1}\nv_add_u32 v{t0}, v{t0}, v{t1}")
            C.e(f"s_mul_i32 s{S_T}, s{S_I}, {64*6144}\ns_lshl_b32 s{S_T2}, s{S_J}, 7\ns_add_u32 s{S_T}, s{S_T}, s{S_T2}\nbuffer_load_dword v254, v{t0}, s[{S_E3}:{S_E3+3}], s{S_T} offen")
        srd(C, S_WS, *self.ptr(A_WS), WS_BYTES, self.o.get('wsoff', 0))
        g.setup_reads()
        C.e(f"s_lshl_b32 s{S_T}, s2, 2\ns_add_u32 s{S_T}, s{S_T}, s{S_LW}\ns_mul_i32 s{S_T2}, s{S_T}, 43691\ns_lshr_b32 s{S_T2}, s{S_T2}, 19\ns_mul_i32 s{S_T2}, s{S_T2}, 12\ns_sub_u32 s{S_T}, s{S_T}, s{S_T2}\ns_add_u32 s70, s{S_T}, 1" if False else "s_nop 0")
        self.stamp(C, 17)
        if tlb2:
            C.e(f"s_cmp_lg_u32 s{S_LW}, 3\ns_cbranch_scc1 L_tw0\ns_waitcnt vmcnt(6)\ns_branch L_tw1\nL_tw0:\ns_waitcnt vmcnt(0)\nL_tw1:")
        else: C.e(f"s_waitcnt vmcnt({1 if slabpf else 0})")
        self.stamp(C, 18)
        vtok = cv.alloc()
        C.e(f"buffer_load_dword v{vtok}, v{self.vZero}, s[{S_DBG}:{S_DBG+3}], 0 offen sc1")
        for r in range(2):
            for d in range(8):
                C.e(f"v_lshlrev_b32 v{un+16*r+2*d}, 16, v{xr+8*r+d}\nv_and_b32 v{un+16*r+2*d+1}, 0xffff0000, v{xr+8*r+d}")
        def tree(dst, src):
            pass
        for r in range(2): C.e(f"v_add_f32 v{vS[r]}, v{un+16*r}, v{un+16*r+1}\nv_add_f32 v{vS[2+r]}, v{un+16*r+2}, v{un+16*r+3}")
        for k in range(4, 16, 2):
            for r in range(2): C.e(f"v_add_f32 v{vS[r]}, v{vS[r]}, v{un+16*r+k}\nv_add_f32 v{vS[2+r]}, v{vS[2+r]}, v{un+16*r+k+1}")
        for r in range(2): C.e(f"v_add_f32 v{vS[r]}, v{vS[r]}, v{vS[2+r]}")
        def allred2(x0, x1, ta, tb):
            for p in ["quad_perm:[1,0,3,2]", "quad_perm:[2,3,0,1]", "row_half_mirror", "row_mirror"]:
                C.e("s_nop 0")
                for x in (x0, x1): C.e(f"v_add_f32_dpp v{x}, v{x}, v{x} {p} row_mask:0xf bank_mask:0xf")
            for sw in ("v_permlane16_swap_b32", "v_permlane32_swap_b32"):
                C.e(f"v_mov_b32 v{ta}, v{x0}\nv_mov_b32 v{tb}, v{x1}\ns_nop 0\n{sw} v{ta}, v{x0}\n{sw} v{tb}, v{x1}\ns_nop 0\nv_add_f32 v{x0}, v{x0}, v{ta}\nv_add_f32 v{x1}, v{x1}, v{tb}")
        C.e("s_nop 0")
        allred2(vS[0], vS[1], vS[4], vS[5])
        for r in range(2): C.e(f"v_mul_f32 v{vS[r]}, {fhex(1/1024)}, v{vS[r]}")
        for k in range(16):
            for r in range(2): C.e(f"v_sub_f32 v{un+16*r+k}, v{un+16*r+k}, v{vS[r]}")
        for r in range(2): C.e(f"v_mul_f32 v{vS[2+r]}, v{un+16*r}, v{un+16*r}")
        for k in range(1, 16):
            for r in range(2): C.e(f"v_fmac_f32 v{vS[2+r]}, v{un+16*r+k}, v{un+16*r+k}")
        C.e("s_nop 0")
        allred2(vS[2], vS[3], vS[4], vS[5])
        for r in range(2): C.e(f"v_mul_f32 v{vS[2+r]}, {fhex(1/1024)}, v{vS[2+r]}\nv_add_f32 v{vS[2+r]}, {fhex(EPS)}, v{vS[2+r]}")
        for r in range(2): C.e(f"v_rsq_f32 v{vS[2+r]}, v{vS[2+r]}")
        C.e(f"v_mov_b32 v{un}, v{vS[0]}\nv_mov_b32 v{un+2}, v{vS[1]}\nv_mov_b32 v{un+1}, v{vS[2]}\nv_mov_b32 v{un+3}, v{vS[3]}")
        C.e(f"s_lshl_b32 s{S_T}, s71, 3\ns_add_u32 s{S_T}, s{S_T}, {WS_ST1}")
        self.lane0(C, f"buffer_store_dwordx4 {vr(un,4)}, v{self.vZero}, s[{S_WS}:{S_WS+3}], s{S_T} offen sc1", "st1")
        self.stamp(C, 19)
        nextra = 0
        t0, t1 = vt[0:2]
        if self.o.get("sentinel", True) and self.o.get("markat", "o") == "q":
            mk4 = a0 + 60
            for k in range(4): C.e(f"v_mov_b32 v{mk4+k}, -1")
            C.e(f"s_lshl_b32 s{S_T}, s{S_I}, 4\ns_add_u32 s{S_T}, s{S_T}, s{S_J}\ns_lshl_b32 s{S_T}, s{S_T}, 15\ns_lshl_b32 s{S_T2}, s{S_LW}, 13\ns_add_u32 s{S_T}, s{S_T}, s{S_T2}\ns_add_u32 s{S_T}, s{S_T}, {WS_XCH}")
            for n in range(8):
                if n == 4: C.e(f"s_add_u32 s{S_T}, s{S_T}, 4096")
                C.e(f"buffer_store_dwordx4 {vr(mk4,4)}, v{self.vL16}, s[{S_WS}:{S_WS+3}], s{S_T} offen offset:{(n & 3)*1024} sc1"); nextra += 1
        if self.o.get("tlb", True):
            C.e(f"v_lshlrev_b32 v{t0}, 21, v{vL}")
            for arg, size in ((A_WQKV, D*3*D*2), (A_X, M*D*2), (A_WS, 54*MB), (A_WO, D*D*2), (A_W1, D*DFF*2), (A_W2, DFF*D*2), (A_OUT, M*D*2)):
                p = self.ptr(arg)[0]
                C.e(f"v_min_u32 v{t1}, {hex(size - 4)}, v{t0}\nglobal_load_dword v254, v{t1}, s[{p}:{p+1}]"); nextra += 1
        pfo = cv.alloc(); pf1 = cv.alloc()
        C.e(f"s_lshl_b32 s{S_T}, s2, 2\ns_add_u32 s{S_T}, s{S_T}, s{S_LW}")
        C.e(f"s_lshl_b32 s{S_T2}, s{S_T}, 4\nv_and_b32 v{pfo}, 15, v{vL}\nv_add_u32 v{pfo}, s{S_T2}, v{pfo}\nv_lshlrev_b32 v{pfo}, 7, v{pfo}")
        C.e(f"s_mul_i32 s{S_T2}, s{S_T}, 56\nv_min_u32 v{pf1}, 55, v{vL}\nv_add_u32 v{pf1}, s{S_T2}, v{pf1}\nv_lshlrev_b32 v{pf1}, 7, v{pf1}")
        def hookB(a):
            p = self.ptr(A_WO)[0]; a.e(f"global_load_dword v254, v{pfo}, s[{p}:{p+1}]")
            if self.o.get("pf_w1", False):
                p = self.ptr(A_W1)[0]; a.e(f"global_load_dword v254, v{pf1}, s[{p}:{p+1}]")
            if self.o.get("pf_w2q", False):
                p = self.ptr(A_W2)[0]; a.e(f"global_load_dword v254, v{pf1}, s[{p}:{p+1}]")
        C.e(f"s_and_b32 s{S_T}, s2, 56\ns_lshr_b32 s{S_T}, s{S_T}, 3\ns_add_u32 s71, s{S_T}, 3")
        def hookS(a):
            a.e(f"s_cmp_lg_u32 s{S_LW}, 0\ns_cbranch_scc1 L_nosigq")
            self.signal(a, self.off_ij(F_Q), vt[0], vt[1])
            a.label("L_nosigq")
        hk = {} if self.o.get("qsigL", True) else {14 - (3 + c.rotpos): hookS}
        if self.o["pf_weights"]: hk["s71"] = hookB
        def peel_end():
            C.e(f"s_waitcnt vmcnt({nextra})")
            self.poll_test(C, vtok, token=False)
            C.e("s_cbranch_scc1 L_tokready")
            self.poll(C, S_DBG, self.vZero, vtok, "tok", token=False)
            C.label("L_tokready")
            C.e(f"v_readfirstlane_b32 s1, v{vtok}\nv_mov_b32 v{vt[0]}, {SD_TOK}\nds_write_b32 v{vt[0]}, v{vtok}\ns_waitcnt lgkmcnt(0)")
        self.cloop(g, stamps=(1, 2), hooks=hk, peel_first=peel_end, flags=(2 if self.o.get("flagsq", False) else 0), cv=cv)
        self.epi_q(g, cv)

    def bar_L_only(self):
        self.L.e("s_barrier"); self.lstamp()
    def lstamp(self, tag=''):
        if self.o["diag"] and self.o.get("lst") and self.nl < 128:
            self.L.e(f"s_memrealtime s[88:89]\ns_waitcnt lgkmcnt(0)\nv_writelane_b32 v{255 - 2*(self.nl//64)}, s88, {self.nl % 64}"); self.nl += 1; self.L.lq = []
            self.lnames.append(tag)
    def setup_w_only(self, g):
        g.w_addresses()

    def xgroups(self, a, regs, tmp):
        for sw in ("v_permlane16_swap_b32", "v_permlane32_swap_b32"):
            for k, r in enumerate(regs): a.e(f"v_mov_b32 v{tmp+k}, v{r}")
            a.e("s_nop 1")
            for k, r in enumerate(regs): a.e(f"{sw} v{tmp+k}, v{r}")
            a.e("s_nop 1")
            for k, r in enumerate(regs): a.e(f"v_add_f32 v{r}, v{r}, v{tmp+k}")
    def colsum_loads(self, a, vm, tag, dst, vaddr, vtmp, nlanes, rowbytes, base_code):
        vL = self.vL
        a.e(base_code)
        a.e(f"v_lshrrev_b32 v{vaddr}, 4, v{vL}\nv_mul_u32_u24 v{vaddr}, {16*rowbytes}, v{vaddr}\nv_and_b32 v{vtmp}, 15, v{vL}\nv_cmp_gt_u32 vcc, {nlanes}, v{vtmp}\nv_lshlrev_b32 v{vtmp}, 4, v{vtmp}\nv_add_u32 v{vaddr}, v{vaddr}, v{vtmp}\nv_mov_b32 v{vtmp}, {hex(OOB)}\nv_cndmask_b32 v{vaddr}, v{vtmp}, v{vaddr}, vcc")
        for n in range(4):
            a.e(f"buffer_load_dwordx4 {vr(dst+4*n,4)}, v{vaddr}, s[{S_WS}:{S_WS+3}], s{S_T2} offen sc1\ns_add_u32 s{S_T2}, s{S_T2}, {4*16*rowbytes}")
        vm.iss(tag, 4)
    def colsum_reduce(self, a, src, tmp, vaddr, nlanes, lds_base, wave_bytes):
        vL = self.vL
        for k in range(4):
            a.e(f"v_add_f32 v{src+k}, v{src+k}, v{src+4+k}\nv_add_f32 v{src+8+k}, v{src+8+k}, v{src+12+k}")
        for k in range(4): a.e(f"v_add_f32 v{src+k}, v{src+k}, v{src+8+k}")
        self.xgroups(a, [src+k for k in range(4)], tmp)
        a.e(f"s_mul_i32 s{S_T}, s{S_LW}, {wave_bytes}\ns_add_u32 s{S_T}, s{S_T}, {lds_base}\nv_lshlrev_b32 v{vaddr}, 4, v{vL}\nv_add_u32 v{vaddr}, s{S_T}, v{vaddr}")
        a.e(f"v_cmp_gt_u32 vcc, {nlanes}, v{vL}\ns_and_saveexec_b64 s[{S_EX}:{S_EX+1}], vcc\nds_write_b128 v{vaddr}, {vr(src,4)}\ns_mov_b64 exec, s[{S_EX}:{S_EX+1}]")
    def slab_plan(self, gg, per):
        cc = gg.c; l = gg.l; lw = gg.lw
        def ex(k, ks, j):
            row = gg.wrow(ks, j)
            ch = (lw*per + k)*2 + ((l >> 1) & 1)
            return row*cc.RS + ((ch ^ gg.wswz(row)) << 4) + (l & 1)*8 + cc.XB + cc.rotpos*cc.SB
        keys = [(k, ks, j) for k in range(per) for ks in range(2) for j in range(2)]
        base = []; cls = {}
        for key in keys:
            t = [ex(*key).ev({"l": ll, "lw": w}) for w in range(4) for ll in range(64)]
            for ci, (bk, bt) in enumerate(base):
                ds = {p - q_ for p, q_ in zip(t, bt)}
                if len(ds) == 1 and 0 <= min(ds) < 65536: cls[key] = (ci, ds.pop()); break
            else:
                base.append((key, t)); cls[key] = (len(base)-1, 0)
        for w in range(4):
            for key in keys:
                assert banks.conflicts_b64([ex(*key).ev({"l": ll, "lw": w}) for ll in range(64)]) == 0
        return [ex(*b[0]) for b in base], cls
    def csum_setup(self, gg, per, regs):
        bases, cls = self.slab_plan(gg, per)
        assert len(bases) <= len(regs)
        gg.bind(self.L, self.vL, self.vt, (8, 9))
        for b, r in zip(bases, regs): gg.em.vemit(b, r)
        return cls
    def csum_reads(self, per, cls, regs, wf):
        L = self.L
        for k in range(per):
            for ks in range(2):
                for j in range(2):
                    ci, imm = cls[(k, ks, j)]; d = wf[2*k+ks] + 2*j
                    L.lds_rd(f"ds_read_b64_tr_b16 {vr(d,2)}, v{regs[ci]} offset:{imm}", rng(d, 2))
    def csum_finish(self, vm, per, nt_total, ones, wf, sacc, vL4, colbase_code):
        L = self.L
        for k in range(4): L.e(f"v_mov_b32 v{ones+k}, 0x3f803f80")
        L.e(colbase_code)
        for k in range(per): L.e(f"v_mfma_f32_16x16x32_bf16 {vr(sacc[k],4)}, {vr(ones,4)}, {vr(wf[2*k],4)}, 0")
        for k in range(per): L.e(f"v_mfma_f32_16x16x32_bf16 {vr(sacc[k],4)}, {vr(ones,4)}, {vr(wf[2*k+1],4)}, {vr(sacc[k],4)}")
        L.e(f"v_cmp_gt_u32 vcc, 16, v{self.vL}\ns_nop 7\ns_and_saveexec_b64 s[{S_EX}:{S_EX+1}], vcc")
        for k in range(per):
            if (3*per + k) == nt_total:
                L.e(f"s_cmp_eq_u32 s{S_LW}, 3\ns_cselect_b32 s{S_T2}, {hex(OOB - 4096)}, s{S_T2}")
            L.e(f"buffer_store_dword v{sacc[k]}, v{vL4}, s[{S_WS}:{S_WS+3}], s{S_T2} offen offset:{k*64} sc1"); vm.iss("cst")
        L.e(f"s_mov_b64 exec, s[{S_EX}:{S_EX+1}]")

    def prefetch_first(self, a, cv):
        vL = self.vL; t0, t1, t2 = self.vt[0:3]; d = cv.alloc(4)
        srd(a, S_XSRD, *self.ptr(A_X), M*D*2); srd(a, S_WSRD, *self.ptr(A_WQKV), D*3*D*2)
        a.e(f"s_lshr_b32 s{S_T}, s2, 3\ns_lshl_b32 s{S_T}, s{S_T}, 2\ns_add_u32 s{S_T}, s{S_T}, s{S_LW}")
        a.e(f"s_mul_i32 s{S_T2}, s{S_T}, 96")
        mg, sh = magic_div(12, 12288); mg3, sh3 = magic_div(3, 12)
        a.e(f"s_lshr_b32 s{S_T3}, s{S_J}, 2\ns_lshl_b32 s{S_T3}, s{S_T3}, 9")
        for n in range(2):
            a.e(f"v_add_u32 v{t0}, s{S_T2}, v{vL}\nv_add_u32 v{t0}, {48*n}, v{t0}")
            a.e(f"v_mul_u32_u24 v{t1}, {mg}, v{t0}\nv_lshrrev_b32 v{t1}, {sh}, v{t1}\nv_mul_u32_u24 v{t2}, 12, v{t1}\nv_sub_u32 v{t0}, v{t0}, v{t2}")
            a.e(f"v_mul_u32_u24 v{t2}, {mg3}, v{t0}\nv_lshrrev_b32 v{t2}, {sh3}, v{t2}")
            a.e(f"v_mul_u32_u24 v{t1}, 6144, v{t1}\nv_lshlrev_b32 v{d+2}, 7, v{t2}\nv_add_u32 v{t1}, v{t1}, v{d+2}")
            a.e(f"v_mul_u32_u24 v{t2}, 3, v{t2}\nv_sub_u32 v{t0}, v{t0}, v{t2}\nv_lshlrev_b32 v{t0}, 11, v{t0}\nv_add_u32 v{t1}, v{t1}, v{t0}")
            a.e(f"v_cmp_gt_u32 vcc, 48, v{vL}\nv_mov_b32 v{t0}, 0x7ffffff0\ns_nop 0\nv_cndmask_b32 v{t1}, v{t0}, v{t1}, vcc")
            a.e(f"buffer_load_dword v254, v{t1}, s[{S_WSRD}:{S_WSRD+3}], s{S_T3} offen")
        a.e(f"s_lshl_b32 s{S_T2}, s{S_T}, 7\ns_lshr_b32 s{S_T3}, s{S_I}, 3\ns_lshl_b32 s{S_T3}, s{S_T3}, 21")
        for n in range(2):
            a.e(f"v_add_u32 v{t0}, s{S_T2}, v{vL}\nv_add_u32 v{t0}, {64*n}, v{t0}\nv_and_b32 v{t1}, 1023, v{t0}\nv_lshlrev_b32 v{t1}, 11, v{t1}\nv_lshrrev_b32 v{t0}, 10, v{t0}\nv_lshlrev_b32 v{t0}, 7, v{t0}\nv_add_u32 v{t1}, v{t1}, v{t0}")
            a.e(f"buffer_load_dword v254, v{t1}, s[{S_XSRD}:{S_XSRD+3}], s{S_T3} offen")
    def prefetch_weights(self, a):
        vL = self.vL; t0, t1 = self.vt[0:2]
        a.e(f"s_lshl_b32 s{S_T}, s2, 2\ns_add_u32 s{S_T}, s{S_T}, s{S_LW}")
        for (arg, nbytes, per, d) in ((A_WO, D*D*2, 16, 2), (A_W1, D*DFF*2, 56, 3)) if self.o.get("pf_w1", False) else ((A_WO, D*D*2, 16, 2),):
            srd(a, S_E3, *self.ptr(arg), nbytes)
            a.e(f"s_mul_i32 s{S_T2}, s{S_T}, {per}\nv_add_u32 v{t0}, s{S_T2}, v{vL}\nv_lshlrev_b32 v{t0}, 7, v{t0}\nv_cmp_gt_u32 vcc, {per}, v{vL}\nv_mov_b32 v{t1}, 0x7ffffff0\ns_nop 0\nv_cndmask_b32 v{t0}, v{t1}, v{t0}, vcc")
            a.e(f"buffer_load_dword v254, v{t0}, s[{S_E3}:{S_E3+3}], 0 offen")
    def prefetch_w2(self, a):
        vL = self.vL; t0, t1 = self.vt[0:2]
        a.e(f"s_lshl_b32 s{S_T}, s2, 2\ns_add_u32 s{S_T}, s{S_T}, s{S_LW}")
        srd(a, S_E3, *self.ptr(A_W2), DFF*D*2)
        a.e(f"s_mul_i32 s{S_T2}, s{S_T}, 56\nv_add_u32 v{t0}, s{S_T2}, v{vL}\nv_lshlrev_b32 v{t0}, 7, v{t0}\nv_cmp_gt_u32 vcc, 56, v{vL}\nv_mov_b32 v{t1}, 0x7ffffff0\ns_nop 0\nv_cndmask_b32 v{t0}, v{t1}, v{t0}, vcc")
        a.e(f"buffer_load_dword v254, v{t0}, s[{S_E3}:{S_E3+3}], 0 offen")

    def cloop(self, g, stamps, hooks=None, peel_first=None, ns=None, first=True, sfx="", flags=0, cv=None):
        c, a = g.c, g.a
        NG = c.NSUB//c.G; S = c.S; ns = ns or c.nsteps; nm = c.name + sfx
        if flags:
            vF = cv.alloc(4, 4); vM = cv.alloc(); vP = cv.alloc(); vFA = cv.alloc(); vFR = cv.alloc()
            a.e(f"v_mov_b32 v{vFA}, {SD_FULL}\ns_lshl_b32 s{S_T}, s{S_LW}, 2\ns_add_u32 s{S_T}, s{S_T}, {SD_FREE}\nv_mov_b32 v{vFR}, s{S_T}\nv_mov_b32 v{vP}, 0")
            a.lds_other(f"ds_write_b32 v{vFR}, v{vP}")
        a.e(f"s_mov_b32 s{S_RD}, 0")
        for ins in g.set_read_addrs(): a.e(ins)
        a.lds_drain(); a.e("s_setprio 0\ns_barrier")
        if stamps[0] is not None: self.stamp(a, stamps[0])
        for r in g.reads(0, 0): a.lds_rd(*r)
        st = 0
        for gi in range(NG-1):
            g.group(st, g.reads(st ^ 1, gi+1), [], first=(first and gi == 0)); st ^= 1
        a.e(g.adv_slot(S_RD))
        for ins in g.set_read_addrs(): a.e(ins)
        a.lds_drain(); a.e("s_barrier")
        par = st
        def body(loopctl=False):
            st = par
            for gi in range(NG):
                late = []; extra = []; tail = []; reads = g.reads(st ^ 1, gi)
                if gi == 0 and loopctl and hooks:
                    for cnt in hooks: extra.append(f"s_cmp_eq_u32 s{S_CNT}, {cnt}\ns_cbranch_scc1 L_hk_{nm}_{cnt}\nL_hkb_{nm}_{cnt}:")
                if gi == NG-1:
                    late.append(g.adv_slot(S_RD)); late += g.set_read_addrs()
                    ctl = f"s_sub_u32 s{S_CNT}, s{S_CNT}, 1\ns_cmp_lg_u32 s{S_CNT}, 0"
                    if loopctl and flags:
                        reads = reads + [(f"ds_read_b128 {vr(vF,4)}, v{vFA}", rng(vF, 4))]
                        tail = [f"v_min3_u32 v{vM}, v{vF}, v{vF+1}, v{vF+2}\nv_mov_b32 v{vP}, s{S_TG}",
                                f"v_min_u32 v{vM}, v{vM}, v{vF+3}",
                                (f"ds_write_b32 v{vFR}, v{vP}",),
                                f"v_readfirstlane_b32 s{S_T4}, v{vM}",
                                f"s_nop 0\ns_cmp_ge_u32 s{S_T4}, s{S_TG}\ns_cbranch_scc0 L_slow_{nm}\nL_slowb_{nm}:",
                                f"s_add_u32 s{S_TG}, s{S_TG}, 1\n" + ctl]
                    elif loopctl: late.append(ctl)
                g.group(st, reads, extra, late=late, tail=tail); st ^= 1
            if not (loopctl and flags): a.lds_drain()
        nb = ns - 2
        npeel = flags if flags else (1 if peel_first else 0)
        for p in range(npeel):
            body(False)
            if p == 0 and peel_first: peel_first()
            a.e("s_barrier"); nb -= 1
        if nb > 0 and flags:
            a.e(f"s_mov_b32 s{S_CNT}, {nb}\ns_mov_b32 s{S_TG}, {npeel + 3}")
            a.label(f"L_loop_{nm}")
            lq0 = list(a.lq)
            body(True)
            a.e(f"s_cbranch_scc1 L_loop_{nm}")
            t = self.tail
            t.label(f"L_slow_{nm}")
            t.e(f"s_mov_b32 s{S_T3}, {POLL_MAX}")
            t.label(f"L_slowl_{nm}")
            t.e(f"ds_read_b128 {vr(vF,4)}, v{vFA}\ns_waitcnt lgkmcnt(0)\nv_min3_u32 v{vM}, v{vF}, v{vF+1}, v{vF+2}\nv_min_u32 v{vM}, v{vM}, v{vF+3}\ns_nop 0\nv_readfirstlane_b32 s{S_T4}, v{vM}\ns_nop 2")
            t.e(f"s_cmp_ge_u32 s{S_T4}, s{S_TG}\ns_cbranch_scc1 L_slowb_{nm}\ns_sub_u32 s{S_T3}, s{S_T3}, 1\ns_cmp_lg_u32 s{S_T3}, 0\ns_cbranch_scc1 L_slowl_{nm}\ns_branch L_slowb_{nm}")
        elif nb > 0:
            a.e(f"s_mov_b32 s{S_CNT}, {nb}\ns_branch L_loop_{nm}")
            a.label(f"L_top_{nm}"); a.e("s_barrier"); a.label(f"L_loop_{nm}")
            body(True)
            a.e(f"s_cbranch_scc1 L_top_{nm}\ns_barrier")
        body(False); a.e("s_barrier")
        g.group(par, [], [])
        a.e("s_setprio 3\ns_nop 6")
        if stamps[1] is not None: self.stamp(a, stamps[1])
        for cnt, fn in (hooks or {}).items():
            t = self.tail
            t.label(f"L_hk_{nm}_{cnt}"); fn(t); t.e(f"s_branch L_hkb_{nm}_{cnt}")

    def lflag_init(self):
        L = self.L
        L.e(f"s_lshl_b32 s{S_T}, s{S_LW}, 2\ns_add_u32 s{S_T}, s{S_T}, {SD_FULL}\nv_mov_b32 v45, s{S_T}\nv_mov_b32 v46, {SD_FREE}\nv_mov_b32 v47, 0")
        L.lds_other("ds_write_b32 v45, v47")
    def lfull(self, val):
        L = self.L
        L.e(f"v_mov_b32 v47, {val}"); L.lds_other("ds_write_b32 v45, v47")
    def lwait(self, addr_reg, target, label):
        L = self.L
        L.e(f"s_setprio {self.o.get('lspinprio', 0)}\ns_mov_b32 s{S_T3}, {POLL_MAX}")
        L.label(f"L_lw_{label}")
        L.e(f"ds_read_b128 v[40:43], v{addr_reg}\ns_waitcnt lgkmcnt(0)\nv_min3_u32 v44, v40, v41, v42\nv_min_u32 v44, v44, v43\ns_nop 0\nv_readfirstlane_b32 s{S_T4}, v44\ns_nop 2")
        L.e(f"s_cmp_ge_u32 s{S_T4}, {target}\ns_cbranch_scc1 L_lwd_{label}\ns_sleep {self.o.get('lsleep', 1)}\ns_sub_u32 s{S_T3}, s{S_T3}, 1\ns_cmp_lg_u32 s{S_T3}, 0\ns_cbranch_scc1 L_lw_{label}")
        L.label(f"L_lwd_{label}"); L.lq = []; L.e("s_setprio 1")

    def epi_q(self, g, cv):
        C, L, c = self.C, self.L, g.c
        a = C; vL = self.vL; t0, t1, t2, t3, t4, t5 = self.vt
        em = g.em; l = g.l; wm, wn = g.wm, g.wn
        fr = g.frag0
        mu = fr; rs = fr+4; cs = fr+8; pk = fr+24; st = fr+32
        va = fr+64; vb = fr+65; vo = fr+66; vk = fr+67; sc = fr+68
        gq = l >> 4
        em.vemit((wm*64 + (l & 15))*4 + SD_MEAN1, va)
        for x in range(4):
            a.lds_rd(f"ds_read_b32 v{mu+x}, v{va} offset:{x*64}", [mu+x])
            a.lds_rd(f"ds_read_b32 v{rs+x}, v{va} offset:{512+x*64}", [rs+x])
        em.vemit((wn*32 + gq*4)*4 + SD_CSQ, vb)
        def cs_off(f): return (64*(f//2) + 16*(f % 2))*4
        for n, f in enumerate((2, 3, 0, 1)):
            a.lds_rd(f"ds_read_b128 {vr(cs+4*n,4)}, v{vb} offset:{cs_off(f)}", rng(cs+4*n, 4))
        csr = {2: cs, 3: cs+4, 0: cs+8, 1: cs+12}
        em.vemit(wn*49152 + l*16, vk)
        a.e(f"s_lshl_b32 s{S_T}, s{S_I}, 4\ns_add_u32 s{S_T}, s{S_T}, s{S_J}\ns_lshl_b32 s{S_T}, s{S_T}, 15\ns_lshl_b32 s{S_T2}, s{S_WN}, 14\ns_add_u32 s{S_T}, s{S_T}, s{S_T2}\ns_add_u32 s71, s{S_T}, {WS_KV}")
        def fold_mn(x, f, scale_reg):
            acc = g.acc[x][f]; c0 = csr[f]
            for p in range(2):
                a.e(f"v_pk_fma_f32 {vr(acc+2*p,2)}, {vr(mu+(x & ~1),2)}, {vr(c0+2*p,2)}, {vr(acc+2*p,2)} op_sel:[{x & 1},0,0] op_sel_hi:[{x & 1},1,1] neg_lo:[1,0,0] neg_hi:[1,0,0]")
            for p in range(2):
                a.e(f"v_pk_mul_f32 {vr(acc+2*p,2)}, {vr(scale_reg+(x & ~1),2)}, {vr(acc+2*p,2)} op_sel:[{x & 1},0] op_sel_hi:[{x & 1},1]")
        def pack2(dst, accA, accB):
            a.e(f"v_cvt_pk_bf16_f32 v{dst}, v{accA}, v{accA+1}\nv_cvt_pk_bf16_f32 v{dst+1}, v{accA+2}, v{accA+3}")
            a.e(f"v_cvt_pk_bf16_f32 v{dst+2}, v{accB}, v{accB+1}\nv_cvt_pk_bf16_f32 v{dst+3}, v{accB+2}, v{accB+3}")
        a.need(list(rng(mu, 8)) + list(rng(cs, 8)))
        a.e(f"s_lshl_b32 s{S_T3}, s{S_WM}, 12")
        a.e(f"v_add_u32 v{vo}, s{S_T3}, v{vk}")
        a.e(f"s_add_u32 s{S_T4}, s71, s{S_T3}")
        for x in range(4):
            fold_mn(x, 2, rs); fold_mn(x, 3, rs)
            p = pk + 4*(x & 1)
            pack2(p, g.acc[x][2], g.acc[x][3])
            a.e(f"buffer_store_dwordx4 {vr(p,4)}, v{self.vL16}, s[{S_WS}:{S_WS+3}], s{S_T4} offen offset:{x*1024} sc1")
            a.lds_other(f"ds_write_b128 v{vo}, {vr(p,4)} offset:{AT_K(0) + 2*8192 + x*1024}")
        em.vemit((wn*32 + (l & 15))*4 + SD_CSQ + 128*4, va)
        a.lds_rd(f"ds_read_b32 v{sc}, v{va}", [sc]); a.lds_rd(f"ds_read_b32 v{sc+1}, v{va} offset:64", [sc+1])
        em.vemit((wm*64 + gq*4)*4 + SD_MEAN1, vb)
        for x in range(4):
            a.lds_rd(f"ds_read_b128 {vr(st+4*x,4)}, v{vb} offset:{x*64}", rng(st+4*x, 4))
            a.lds_rd(f"ds_read_b128 {vr(st+16+4*x,4)}, v{vb} offset:{512+x*64}", rng(st+16+4*x, 4))
        a.e(f"s_lshl_b32 s{S_T3}, s{S_WM}, 12\ns_add_u32 s{S_T4}, s71, s{S_T3}\ns_add_u32 s{S_T4}, s{S_T4}, 8192")
        for xi in range(2):
            a.need(list(rng(st+8*xi, 8)) + list(rng(st+16+8*xi, 8)) + [sc, sc+1])
            for dl in range(2):
                for x in (2*xi, 2*xi+1):
                    acc = g.acc[x][4+dl]
                    for p in range(2):
                        a.e(f"v_pk_fma_f32 {vr(acc+2*p,2)}, {vr(st+4*x+2*p,2)}, {vr(sc,2)}, {vr(acc+2*p,2)} op_sel:[0,{dl},0] op_sel_hi:[1,{dl},1] neg_lo:[1,0,0] neg_hi:[1,0,0]")
                    for p in range(2):
                        a.e(f"v_pk_mul_f32 {vr(acc+2*p,2)}, {vr(st+16+4*x+2*p,2)}, {vr(acc+2*p,2)}")
                p = pk + 4*dl
                pack2(p, g.acc[2*xi][4+dl], g.acc[2*xi+1][4+dl])
                a.e(f"buffer_store_dwordx4 {vr(p,4)}, v{self.vL16}, s[{S_WS}:{S_WS+3}], s{S_T4} offen offset:{(xi*2+dl)*1024} sc1")
                a.lds_other(f"ds_write_b128 v{vo}, {vr(p,4)} offset:{AT_V(0) + 2*8192 + (xi*2+dl)*1024}")
        for x in range(4): a.e(f"v_mul_f32 v{rs+x}, {fhex(QSCALE)}, v{rs+x}")
        em.vemit(wn*8192 + wm*4096 + l*16 + AT_Q0, va)
        a.need(rng(cs+8, 8))
        for x in range(4):
            fold_mn(x, 0, rs); fold_mn(x, 1, rs)
            p = pk + 4*(x & 1)
            a.e("s_nop 0")
            pack2(p, g.acc[x][0], g.acc[x][1])
            a.lds_other(f"ds_write_b128 v{va}, {vr(p,4)} offset:{x*1024}")
        a.e("s_waitcnt vmcnt(0)")
        self.signal_last(a, 0, 4, self.off_ji(F_KV), t0, t1, "kv")
        self.stamp(C, 3)
        a.e("s_waitcnt lgkmcnt(0)"); a.lq = []
        self.lsetup(self.g[1], A_WO, D*D*2, WS_O)
        def kvpoll():
            L.e(f"s_sub_i32 s{S_T2}, s{S_I}, 1\ns_max_i32 s{S_T2}, s{S_T2}, 0\ns_sub_i32 s{S_XB0}, s{S_I}, 2\ns_max_i32 s{S_XB0}, s{S_XB0}, 0")
            L.e(f"v_mov_b32 v{t0}, s{S_T2}\nv_mov_b32 v{t1}, s{S_XB0}\nv_and_b32 v52, 1, v{vL}\nv_cmp_eq_u32 vcc, 0, v52\ns_nop 1\nv_cndmask_b32 v{t0}, v{t1}, v{t0}, vcc")
            L.e(f"v_lshlrev_b32 v{t0}, 7, v{t0}\ns_lshl_b32 s{S_T}, s{S_J}, 11\ns_add_u32 s{S_T}, s{S_T}, {F_KV}\nv_add_u32 v53, s{S_T}, v{t0}")
            self.poll(L, S_WS, 53, 52, "kv")
        L.e("s_mov_b32 s0, 1\ns_branch L_attn")
        L.label("L_kvstage")
        self.lstamp("kvpre")
        if self.o.get("kvpoll1", True):
            L.e(f"v_mov_b32 v54, {SD_CNT + 20}\ns_cmp_lg_u32 s{S_LW}, 0\ns_cbranch_scc1 L_kvwait")
            kvpoll()
            L.e("v_mov_b32 v55, 1\nds_write_b32 v54, v55\ns_branch L_kvgo")
            L.label("L_kvwait")
            L.e(f"s_mov_b32 s{S_CNT}, {POLL_MAX*8}")
            L.label("L_kvspin")
            L.e(f"ds_read_b32 v55, v54\ns_waitcnt lgkmcnt(0)\nv_readfirstlane_b32 s{S_T}, v55\ns_nop 2\ns_cmp_lg_u32 s{S_T}, 0\ns_cbranch_scc1 L_kvgo\ns_sleep 1\ns_sub_u32 s{S_CNT}, s{S_CNT}, 1\ns_cmp_lg_u32 s{S_CNT}, 0\ns_cbranch_scc1 L_kvspin")
            L.label("L_kvgo")
        else: kvpoll()
        self.lstamp("kvseen")
        L.e(f"s_lshr_b32 s{S_T}, s{S_LW}, 1\ns_sub_i32 s{S_T2}, s{S_I}, 2\ns_add_i32 s{S_T2}, s{S_T2}, s{S_T}")
        L.e(f"s_lshl_b32 s{S_XB0}, s{S_T2}, 4\ns_add_u32 s{S_XB0}, s{S_XB0}, s{S_J}\ns_lshl_b32 s{S_XB0}, s{S_XB0}, 15\ns_and_b32 s{S_WB0}, s{S_LW}, 1\ns_lshl_b32 s{S_WB0}, s{S_WB0}, 14\ns_add_u32 s{S_XB0}, s{S_XB0}, s{S_WB0}\ns_add_u32 s{S_XB0}, s{S_XB0}, {WS_KV}")
        L.e(f"s_cmp_lt_i32 s{S_T2}, 0\ns_cselect_b32 s{S_XB0}, 0x7ff00000, s{S_XB0}")
        L.e(f"s_and_b32 s{S_WB0}, s{S_LW}, 1\ns_mul_i32 s{S_WB0}, s{S_WB0}, 49152\ns_lshl_b32 s{S_T}, s{S_T}, 13\ns_add_u32 s{S_WB0}, s{S_WB0}, s{S_T}")
        for part in range(2):
            for q4 in range(2):
                L.e(f"s_add_u32 m0, s{S_WB0}, {part*24576 + q4*4096}\ns_add_u32 s{S_T}, s{S_XB0}, {part*8192 + q4*4096}")
                for n in range(4):
                    L.e(f"buffer_load_dwordx4 v{self.vL16}, s[{S_WS}:{S_WS+3}], s{S_T} offen offset:{n*1024} sc1 lds")
        L.e("s_waitcnt vmcnt(8)" if self.o.get("kfirst", True) else "s_waitcnt vmcnt(0)")
        L.e("s_branch L_attn_go")
        C.e("s_mov_b32 s0, 0\ns_branch L_attn"); C.label("L_attn_back_c"); C.e("s_setprio 3")
        L.label("L_attn_back_l"); L.e("s_setprio 1")

    def attention(self):
        a = self.A; vL = self.vL; z = HZ(a)
        a.label("L_attn")
        a.e("s_setprio 3")
        l = V("l")
        em = Emitter(a, {"l": vL}, {"hh": S_T3, "om": S_T4}, self.vt, S_ET)
        hh, om = S("hh"), S("om")
        R = Regs(64, 253)
        QF = R.alloc(8, 4); KF = [R.alloc(8, 4) for _ in range(2)]; SS = [R.alloc(16, 4) for _ in range(3)]
        NM = R.alloc(16, 4); NG = R.alloc(16, 4); OO = R.alloc(16, 4); LL = R.alloc(16, 4)
        VF = [R.alloc(8, 4) for _ in range(2)]; PP = [R.alloc(8, 4) for _ in range(2)]; ONE = R.alloc(4, 4)
        vQ, vK, vV, MX, T0 = [R.alloc() for _ in range(5)]
        a.e(f"s_and_b32 s{S_T3}, s{S_WV}, 1\ns_lshr_b32 s{S_T4}, s{S_WV}, 1")
        a.e(f"s_lshl_b32 s71, s{S_I}, 2\ns_add_u32 s71, s71, s{S_T4}")
        h = l >> 5
        em.vemit(hh*8192 + om*2048 + ((l >> 4) & 1)*1024 + (h*16 + (l & 15))*16 + AT_Q0, vQ)
        em.vemit(hh*49152 + om*2048 + ((l >> 3) & 1)*1024 + (h*16 + (l & 7) + ((l >> 4) & 1)*8)*16, vK)
        for ex in (((l >> 4) & 1)*1024 + (h*16 + (l & 15))*16, ((l >> 3) & 1)*1024 + (h*16 + (l & 7) + ((l >> 4) & 1)*8)*16):
            assert banks.conflicts_b128([ex.ev({"l": x}) for x in range(64)]) == 0
        def rd(dst, addr, off): z.lds_rd(f"ds_read_b128 {vr(dst,4)}, v{addr} offset:{off}", rng(dst, 4), [addr])
        def kread(tt, b): rd(KF[b], vK, tt*2048); rd(KF[b]+4, vK, tt*2048 + 512)
        def vread(tt, b): rd(VF[b], vV, tt*2048); rd(VF[b]+4, vV, tt*2048 + 512)
        em.vemit(hh*49152 + om*2048 + ((l >> 4) & 1)*1024 + (h*16 + (l & 15))*16 + 24576, vV)
        t0_ = self.vt[0]; vPF = R.alloc()
        if self.o["pf_weights"]:
            a.e(f"s_lshl_b32 s{S_T}, s2, 3\ns_add_u32 s{S_T}, s{S_T}, s{S_WV}\ns_mul_i32 s{S_T}, s{S_T}, 28\nv_min_u32 v{vPF}, 27, v{vL}\nv_add_u32 v{vPF}, s{S_T}, v{vPF}\nv_lshlrev_b32 v{vPF}, 7, v{vPF}")
        mreg = [76+2*k for k in range(6)] + [90+2*k for k in range(6)] + [4, 6, 24, 26]
        for r in range(16):
            k0 = 16*((r >> 2) & 1) + 8*(r >> 3) + (r & 3)
            lo = (0xffffffff << k0) & 0xffffffff; hi = (0xffffffff << (k0+4)) & 0xffffffff
            a.e(f"s_mov_b32 s{mreg[r]}, {hex(lo)}\ns_mov_b32 s{mreg[r]+1}, {hex(hi)}")
        for r in range(16): z.emit(f"v_mov_b32 v{NG+r}, 0xf149f2ca", "valu", w=[NG+r])
        z.emit(f"v_mov_b32 v{MX}, 0xf149f2ca", "valu", w=[MX])
        for k in range(4): z.emit(f"v_mov_b32 v{ONE+k}, 0x3f803f80", "valu", w=[ONE+k])
        MF = "v_mfma_f32_32x32x16_bf16"
        def qk(tt, kb, sb, cval, tag):
            b = KF[kb]; s_ = SS[sb]
            z.lneed(list(rng(b, 4)) + list(rng(QF, 4)))
            ctxt = "0" if cval is None else vr(cval, 16); creg = [] if cval is None else list(rng(cval, 16))
            if tt < 8:
                z.other(f"s_cmp_ge_u32 s71, {8-tt}\ns_cbranch_scc0 L_inv_{tag}_{tt}")
            z.emit(f"{MF} {vr(s_,16)}, {vr(b,4)}, {vr(QF,4)}, {ctxt}", "mfma32", r=list(rng(b,4))+list(rng(QF,4)), w=rng(s_,16), c=creg + list(rng(NG,16)) if tt < 8 else creg)
            if tt < 8:
                a.label(f"L_invb_{tag}_{tt}")
                t = self.tail
                t.label(f"L_inv_{tag}_{tt}")
                t.e(f"{MF} {vr(s_,16)}, {vr(b,4)}, {vr(QF,4)}, {vr(NG,16)}\ns_branch L_invb_{tag}_{tt}")
            z.lneed(list(rng(b+4, 4)) + list(rng(QF+4, 4)))
            z.emit(f"{MF} {vr(s_,16)}, {vr(b+4,4)}, {vr(QF+4,4)}, {vr(s_,16)}", "mfma32", r=list(rng(b+4,4))+list(rng(QF+4,4)), w=rng(s_,16), c=rng(s_,16))
        def merge(sa, sb):
            for r in range(16):
                z.emit(f"v_cndmask_b32 v{SS[sa]+r}, v{SS[sa]+r}, v{SS[sb]+r}, s[{mreg[r]}:{mreg[r]+1}]", "valu", r=[SS[sa]+r, SS[sb]+r], w=[SS[sa]+r])
        def vmax(sb):
            for k in range(8): z.emit(f"v_max3_f32 v{MX}, v{MX}, v{SS[sb]+2*k}, v{SS[sb]+2*k+1}", "valu", r=[MX, SS[sb]+2*k, SS[sb]+2*k+1], w=[MX])
        a.e("s_cmp_eq_u32 s0, 1\ns_cbranch_scc1 L_kvstage")
        a.label("L_attn_go")
        a.e("s_barrier")
        self.stamp(a, 4)
        rd(QF, vQ, 0); rd(QF+4, vQ, 512); kread(0, 0); kread(8, 1)
        self.nyoung = 0
        if self.o["pf_weights"] and not self.o.get("pfmid", False):
            for arg in {"w2": (A_W2,), "w1w2": (A_W1, A_W2), "none": ()}[self.o.get("pf_attn", "w1w2")]:
                p = self.ptr(arg)[0]; a.e(f"global_load_dword v254, v{vPF}, s[{p}:{p+1}]"); self.nyoung += 1
        self.stamp(a, 20)
        qk(0, 0, 0, None, "a"); kread(1, 0)
        qk(8, 1, 1, None, "a"); kread(2, 1)
        qk(1, 0, 2, None, "a"); kread(3, 0)
        merge(0, 1); vmax(0)
        sb_of = {1: 2}
        free = [0, 1]
        for tt in range(2, 8):
            sb = free.pop(0); sb_of[tt] = sb
            qk(tt, tt & 1 ^ 1 if False else (tt % 2 == 0 and 1 or 0), sb, None, "a")
            if tt+2 < 8: kread(tt+2, (tt % 2 == 0 and 1 or 0))
            vmax(sb_of[tt-1]); free.append(sb_of[tt-1])
        kread(0, 0)
        vmax(sb_of[7])
        self.stamp(a, 21)
        self.attn_mid(a, z)
        self.stamp(a, 22)
        nyoung = 0
        if self.o["pf_weights"] and self.o.get("pfmid", False):
            for arg in (A_W1, A_W2):
                p = self.ptr(arg)[0]; a.e(f"global_load_dword v254, v{vPF}, s[{p}:{p+1}]"); nyoung += 1
        kread(8, 1); vread(8, 0); vread(0, 1)
        z.emit(f"v_mov_b32 v{T0}, v{MX}", "valu", r=[MX], w=[T0])
        z.emit(f"v_permlane32_swap_b32 v{T0}, v{MX}", "perm", r=[T0, MX], w=[T0, MX])
        z.emit(f"v_max_f32 v{MX}, v{MX}, v{T0}", "valu", r=[MX, T0], w=[MX])
        for r in range(16): z.emit(f"v_sub_f32 v{NM+r}, 0, v{MX}", "valu", r=[MX], w=[NM+r])
        z.other("s_setprio 2")
        def vexp(sb):
            for r in range(16): z.emit(f"v_exp_f32 v{SS[sb]+r}, v{SS[sb]+r}", "trans", r=[SS[sb]+r], w=[SS[sb]+r])
        def cvt(sb, pb):
            for k in range(8): z.emit(f"v_cvt_pk_bf16_f32 v{PP[pb]+k}, v{SS[sb]+2*k}, v{SS[sb]+2*k+1}", "valu", r=[SS[sb]+2*k, SS[sb]+2*k+1], w=[PP[pb]+k])
        first = [True]
        def pv(vb, pb):
            b = VF[vb]; p = PP[pb]
            z.lneed(rng(b, 8))
            f = first[0]; first[0] = False
            z.emit(f"{MF} {vr(OO,16)}, {vr(b,4)}, {vr(p,4)}, {'0' if f else vr(OO,16)}", "mfma32", r=list(rng(b,4))+list(rng(p,4)), w=rng(OO,16), c=[] if f else rng(OO,16))
            z.emit(f"{MF} {vr(LL,16)}, {vr(ONE,4)}, {vr(p,4)}, {'0' if f else vr(LL,16)}", "mfma32", r=list(rng(ONE,4))+list(rng(p,4)), w=rng(LL,16), c=[] if f else rng(LL,16))
            z.emit(f"{MF} {vr(OO,16)}, {vr(b+4,4)}, {vr(p+4,4)}, {vr(OO,16)}", "mfma32", r=list(rng(b+4,4))+list(rng(p+4,4)), w=rng(OO,16), c=rng(OO,16))
            z.emit(f"{MF} {vr(LL,16)}, {vr(ONE,4)}, {vr(p+4,4)}, {vr(LL,16)}", "mfma32", r=list(rng(ONE,4))+list(rng(p+4,4)), w=rng(LL,16), c=rng(LL,16))
        qk(0, 0, 0, NM, "b"); kread(1, 0)
        qk(8, 1, 1, NM, "b"); kread(2, 1)
        qk(1, 0, 2, NM, "b"); kread(3, 0)
        merge(0, 1); vexp(0)
        for r in range(16): z.emit(f"v_cndmask_b32 v{SS[1]+r}, 0, v{SS[0]+r}, s[{mreg[r]}:{mreg[r]+1}]", "valu", r=[SS[0]+r], w=[SS[1]+r])
        for r in range(16): z.emit(f"v_sub_f32 v{SS[0]+r}, v{SS[0]+r}, v{SS[1]+r}", "valu", r=[SS[0]+r, SS[1]+r], w=[SS[0]+r])
        cvt(1, 0); cvt(0, 1)
        pv(0, 0); vread(1, 0)
        pv(1, 1); vread(2, 1)
        sb_of = {1: 2}; free = [0, 1]
        for tt in range(1, 8):
            if tt+1 < 8:
                sb = free.pop(0); sb_of[tt+1] = sb; kb = 1 if (tt+1) % 2 == 0 else 0
                qk(tt+1, kb, sb, NM, "b")
                if tt+3 < 8: kread(tt+3, kb)
            if tt in (3, 6): z.other(f"s_setprio {1 if tt == 3 else 0}")
            cur = sb_of[tt]
            vexp(cur); cvt(cur, tt & 1); free.append(cur)
            vb = 0 if tt % 2 == 1 else 1
            pv(vb, tt & 1)
            if tt+2 < 8: vread(tt+2, vb)
        self.stamp(a, 23)
        srd(a, S_WS, *self.ptr(A_WS), WS_BYTES, self.o.get('wsoff', 0))
        em.vemit((om*2 + ((l >> 4) & 1))*2048 + hh*1024 + ((l & 15) + h*16)*16, vQ)
        a.e(f"s_lshl_b32 s{S_T}, s{S_I}, 4\ns_add_u32 s{S_T}, s{S_T}, s{S_J}\ns_lshl_b32 s{S_T}, s{S_T}, 14\ns_add_u32 s{S_T}, s{S_T}, {WS_O}")
        z.emit(f"v_rcp_f32 v{T0}, v{LL}", "trans", r=[LL], w=[T0])
        for r in range(16): z.emit(f"v_mul_f32 v{OO+r}, v{T0}, v{OO+r}", "valu", r=[T0, OO+r], w=[OO+r])
        for s in range(2):
            for k in range(4): z.emit(f"v_cvt_pk_bf16_f32 v{PP[s]+k}, v{OO+8*s+2*k}, v{OO+8*s+2*k+1}", "valu", r=[OO+8*s+2*k, OO+8*s+2*k+1], w=[PP[s]+k])
            a.e(f"buffer_store_dwordx4 {vr(PP[s],4)}, v{vQ}, s[{S_WS}:{S_WS+3}], s{S_T} offen offset:{s*512} sc1")
        self.stamp(a, 24)
        a.e("s_waitcnt vmcnt(0)")
        self.stamp(a, 25)
        self.signal_last(a, 1, 8, self.off_ij(F_O), vK, vV, "o")
        a.e("s_cmp_eq_u32 s0, 1\ns_cbranch_scc1 L_attn_back_l\ns_branch L_attn_back_c")
    def attn_mid(self, a, z):
        if self.o.get("kfirst", True):
            z.other(f"s_cmp_eq_u32 s0, 1\ns_cbranch_scc0 L_att_nov\ns_waitcnt vmcnt({self.nyoung})\nL_att_nov:")
            a.lds_drain(); z.other("s_barrier")

    def lsetup(self, g, warg, wbytes, xbase, khalf=False):
        L = self.L; c = g.c
        g.bind(L, self.vL, self.vt, (8, 9))
        srd(L, S_WSRD, *self.ptr(warg), wbytes)
        self.setup_w_only(g)
        g.em.vemit(g.lw*4096 + g.l*16, g.vXsrc[0])
        c.woff(L)
        self.xoff_fn(L, c, xbase, khalf)
        L.e(f"s_lshl_b32 s{S_XL}, s{S_LW}, 12")
        L.e(f"s_mul_i32 s{S_WL}, s{S_LW}, {c.nWld*1024}\ns_add_u32 s{S_WL}, s{S_WL}, {c.XB}")
    def lweights(self, g, init=True):
        L = self.L; c = g.c
        if init:
            for ins in g.rot_init(): L.e(ins)
        L.e(f"s_mov_b32 s{S_WR}, 0")
        for s in range(c.S):
            for ins in g.stage_off(s) + g.dma_w(): L.e(ins)
            L.e(f"s_add_u32 s{S_WR}, s{S_WR}, {c.SB}")
    def cpoll(self, flag, label, skip_own=False):
        C = self.C; t0, t1, t2 = self.vt[0:3]
        C.e(f"s_cmp_lg_u32 s{S_LW}, 0\ns_cbranch_scc1 L_nocpoll_{label}")
        self.group_words(C, t2, flag, S_I)
        if skip_own:
            C.e(f"s_xor_b32 s{S_T2}, s{S_J}, 1\ns_lshl_b32 s{S_T2}, s{S_T2}, 7\ns_add_u32 s{S_T2}, s{S_T2}, s{S_T}\nv_and_b32 v{t0}, 15, v{self.vL}\nv_mov_b32 v{t1}, s{S_T2}\nv_cmp_eq_u32 vcc, s{S_J}, v{t0}\ns_nop 1\nv_cndmask_b32 v{t2}, v{t2}, v{t1}, vcc")
        self.poll(C, S_WS, t2, t0, label)
        C.label(f"L_nocpoll_{label}")
        C.e("s_barrier")
    def lphase(self, g, flag, label, hooks=None, npeel=0, after_poll=None, first_hooks=None, ns=None, flags=0):
        L = self.L; c = g.c; vm = VM(L); S = c.S; ns = ns or c.nsteps
        hooks = hooks or {}
        g.bind(L, self.vL, self.vt, (8, 9))
        srd(L, S_XSRD, *self.ptr(A_WS), WS_BYTES, self.o.get('wsoff', 0))
        self.lstamp(label + "pre")
        L.e("s_barrier")
        self.lstamp(label + "seen")
        L.e(f"s_mov_b32 s{S_WR}, 0")
        for s in range(S):
            for ins in g.stage_off(s) + g.dma_x(): L.e(ins)
            vm.iss(("st", s), c.nXld)
            L.e(f"s_add_u32 s{S_WR}, s{S_WR}, {c.SB}")
        L.e(f"s_mov_b32 s{S_WR}, 0")
        if after_poll: after_poll(vm)
        if flags: self.lflag_init()
        vm.wait(("st", 0)); L.lds_drain(); L.e("s_barrier"); self.lstamp(label + "land")
        if first_hooks: first_hooks[0](vm)
        vm.wait(("st", 1)); L.lds_drain(); L.e("s_barrier")
        def issue(t):
            for ins in g.dma_list(t): L.e(ins)
            vm.iss(("st", t), c.nld); L.e(g.adv_slot(S_WR))
        npeel = max(npeel, S-2)
        nb = ns - S
        if self.o.get("lsteps"): npeel = nb
        def end_body(t):
            L.lds_drain()
            if flags and flags - 1 <= t <= ns-3: self.lfull(t + 3)
            if not flags or t < flags or t == ns-2:
                L.lds_drain(); L.e("s_barrier")
            if self.o.get("lsteps"): self.lstamp(label + str(t))
        if flags: npeel = max(npeel, flags + 1)
        for t in range(npeel):
            if flags and t > flags: self.lwait(46, t + 2, f"{label}{t}")
            issue(t+S)
            if t in hooks: hooks[t](vm)
            if ("st", t+2) in vm.q: vm.wait(("st", t+2))
            end_body(t)
        if nb - npeel > 0:
            if getattr(c, "rot", False): L.e(f"s_mov_b32 s{S_N}, {npeel + S - 1}")
            L.e(f"s_mov_b32 s{S_CNT}, {nb - npeel}")
            if flags: L.e(f"s_mov_b32 s{S_TG}, {npeel + 2}")
            L.label(f"L_lloop_{label}")
            early = flags and S >= 4
            if early:
                L.e(f"s_add_u32 s{S_T2}, s{S_TG}, 1\nv_mov_b32 v47, s{S_T2}\ns_waitcnt vmcnt({(S-3)*c.nld})\nds_write_b32 v45, v47")
            if flags: self.lwait(46, f"s{S_TG}", f"{label}_loop")
            for ins in g.dma_list(): L.e(ins)
            L.e(g.adv_slot(S_WR))
            if early:
                L.e(f"s_add_u32 s{S_TG}, s{S_TG}, 1")
            elif flags:
                L.e(f"s_add_u32 s{S_TG}, s{S_TG}, 1\nv_mov_b32 v47, s{S_TG}\ns_waitcnt vmcnt({(S-2)*c.nld})\nds_write_b32 v45, v47")
            else:
                L.e(f"s_waitcnt vmcnt({(S-2)*c.nld})\ns_barrier")
            L.e(f"s_sub_u32 s{S_CNT}, s{S_CNT}, 1\ns_cmp_lg_u32 s{S_CNT}, 0\ns_cbranch_scc1 L_lloop_{label}")
        for t in range(nb, ns-1):
            if t in hooks:
                assert npeel >= nb
                hooks[t](vm)
                if t+2 <= ns-1 and ("st", t+2) in vm.q: vm.wait(("st", t+2))
            elif t+2 <= ns-1: L.e(f"s_waitcnt vmcnt({min(ns-1-(t+2), S-2)*c.nld})")
            end_body(t)

    def phase_o(self, g):
        C, L, c = self.C, self.L, g.c
        vL = self.vL; t0, t1, t2, t3, t4, t5 = self.vt
        self.stamp(C, 5)
        self.lstamp("attnend")
        self.bar()
        self.lstamp("attnbar")
        self.lweights(g)
        if self.o.get("sentinel", True) and self.o.get("markat", "o") == "o":
            for k in range(4): L.e(f"v_mov_b32 v{180+k}, -1")
            L.e(f"s_lshl_b32 s{S_T}, s{S_I}, 4\ns_add_u32 s{S_T}, s{S_T}, s{S_J}\ns_lshl_b32 s{S_T}, s{S_T}, 15\ns_lshl_b32 s{S_T2}, s{S_LW}, 13\ns_add_u32 s{S_T}, s{S_T}, s{S_T2}\ns_add_u32 s{S_T}, s{S_T}, {WS_XCH}")
            for n in range(8):
                if n == 4: L.e(f"s_add_u32 s{S_T}, s{S_T}, 4096")
                L.e(f"buffer_store_dwordx4 v[180:183], v{self.vL16}, s[{S_WS}:{S_WS+3}], s{S_T} offen offset:{(n & 3)*1024} sc1")
        a = C; g.bind(C, vL, self.vt, (8, 9)); cv = Regs(12, 254); g.alloc_compute(cv)
        em = g.em; l, wm, wn = g.l, g.wm, g.wn
        g.setup_reads()
        xr = cv.alloc(16, 4); va = cv.alloc(); pk = cv.alloc(8, 4); sm = cv.alloc(8, 4); tm = cv.alloc(8, 4); m2 = cv.alloc(8, 4)
        srd(a, S_XSRD, *self.ptr(A_X), M*D*2)
        em.vemit((l & 15)*2048 + (l >> 4)*8, va)
        def resid(a):
            a.e(f"s_lshl_b32 s{S_T}, s{S_I}, 1\ns_add_u32 s{S_T}, s{S_T}, s{S_WM}\ns_lshl_b32 s{S_T}, s{S_T}, 17\ns_lshl_b32 s{S_T2}, s{S_J}, 7\ns_add_u32 s{S_T}, s{S_T}, s{S_T2}\ns_lshl_b32 s{S_T2}, s{S_WN}, 6\ns_add_u32 s{S_T}, s{S_T}, s{S_T2}")
            for x in range(4):
                for f in range(2):
                    a.e(f"buffer_load_dwordx2 {vr(xr+4*x+2*f,2)}, v{va}, s[{S_XSRD}:{S_XSRD+3}], s{S_T} offen offset:{f*32}")
                if x < 3: a.e(f"s_add_u32 s{S_T}, s{S_T}, {16*2048}")
        a.e(f"s_cmp_eq_u32 s{S_LW}, 0\ns_cbranch_scc1 L_ores0"); resid(a); a.label("L_ores0")
        def hookO(a):
            a.e(f"s_cmp_lg_u32 s{S_LW}, 0\ns_cbranch_scc1 L_ores1"); resid(a); a.label("L_ores1")
        self.cpoll(F_O, "o", skip_own=True)
        self.lphase(g, F_O, "o")
        g1 = self.g[2]
        self.lsetup(g1, A_W1, D*DFF*2, WS_H)
        g.bind(C, vL, self.vt, (8, 9)); g.a = C
        self.cloop(g, stamps=(6, 7), hooks={c.nsteps - 3: hookO})
        a.e("s_waitcnt vmcnt(0)")
        for x in range(4):
            for f in range(2):
                acc = g.acc[x][f]
                for d in range(2):
                    src = xr + 4*x + 2*f + d
                    a.e(f"v_lshlrev_b32 v{t0}, 16, v{src}\nv_and_b32 v{t1}, 0xffff0000, v{src}")
                    a.e(f"v_add_f32 v{acc+2*d}, v{acc+2*d}, v{t0}\nv_add_f32 v{acc+2*d+1}, v{acc+2*d+1}, v{t1}")
        a.e(f"s_lshl_b32 s{S_T}, s{S_I}, 4\ns_add_u32 s{S_T}, s{S_T}, s{S_J}\ns_lshl_b32 s{S_T}, s{S_T}, 14\ns_lshl_b32 s{S_T2}, s{S_WM}, 13\ns_add_u32 s{S_T}, s{S_T}, s{S_T2}\ns_lshl_b32 s{S_T2}, s{S_WN}, 10\ns_add_u32 s{S_T}, s{S_T}, s{S_T2}\ns_add_u32 s{S_T}, s{S_T}, {WS_H}")
        for x in range(4):
            p = pk + 4*(x & 1); A, B = g.acc[x][0], g.acc[x][1]
            a.e(f"v_cvt_pk_bf16_f32 v{p}, v{A}, v{A+1}\nv_cvt_pk_bf16_f32 v{p+1}, v{A+2}, v{A+3}\nv_cvt_pk_bf16_f32 v{p+2}, v{B}, v{B+1}\nv_cvt_pk_bf16_f32 v{p+3}, v{B+2}, v{B+3}")
            if x == 2: a.e(f"s_add_u32 s{S_T}, s{S_T}, 4096")
            a.e(f"buffer_store_dwordx4 {vr(p,4)}, v{self.vL16}, s[{S_WS}:{S_WS+3}], s{S_T} offen offset:{(x & 1)*2048} sc1")
        self.bar()
        self.lweights(self.g[2])
        a.e("s_waitcnt vmcnt(0)")
        self.signal_last(a, 2, 4, self.off_ij(F_H), t0, t1, "h")
        self.stamp(C, 8)
        def xlane(regs):
            for sw in ("v_permlane16_swap_b32", "v_permlane32_swap_b32"):
                for k, r in enumerate(regs): a.e(f"v_mov_b32 v{tm+k}, v{r}")
                a.e("s_nop 1")
                for k, r in enumerate(regs): a.e(f"{sw} v{tm+k}, v{r}")
                a.e("s_nop 1")
                for k, r in enumerate(regs): a.e(f"v_add_f32 v{r}, v{r}, v{tm+k}")
        for x in range(4):
            A, B = g.acc[x][0], g.acc[x][1]
            a.e(f"v_add_f32 v{sm+2*x}, v{A}, v{A+1}")
            for r in [A+2, A+3, B, B+1, B+2, B+3]: a.e(f"v_add_f32 v{sm+2*x}, v{sm+2*x}, v{r}")
        xlane([sm+2*x for x in range(4)])
        for x in range(4):
            A, B = g.acc[x][0], g.acc[x][1]
            a.e(f"v_mul_f32 v{t0}, {fhex(1/32)}, v{sm+2*x}")
            a.e(f"v_sub_f32 v{t1}, v{A}, v{t0}\nv_mul_f32 v{sm+2*x+1}, v{t1}, v{t1}")
            for r in [A+1, A+2, A+3, B, B+1, B+2, B+3]: a.e(f"v_sub_f32 v{t1}, v{r}, v{t0}\nv_fmac_f32 v{sm+2*x+1}, v{t1}, v{t1}")
        xlane([sm+2*x+1 for x in range(4)])
        a.e(f"s_lshl_b32 s{S_T}, s{S_J}, 1\ns_add_u32 s{S_T}, s{S_T}, s{S_WN}\ns_lshl_b32 s{S_T}, s{S_T}, 11\ns_lshl_b32 s{S_T2}, s{S_I}, 7\ns_add_u32 s{S_T}, s{S_T}, s{S_T2}\ns_lshl_b32 s{S_T2}, s{S_WM}, 6\ns_add_u32 s{S_T}, s{S_T}, s{S_T2}\ns_lshl_b32 s{S_T}, s{S_T}, 3\ns_add_u32 s{S_T}, s{S_T}, {WS_ST2}")
        a.e(f"v_lshlrev_b32 v{t0}, 3, v{vL}\nv_cmp_gt_u32 vcc, 16, v{vL}\ns_and_saveexec_b64 s[{S_EX}:{S_EX+1}], vcc")
        for x in range(4):
            a.e(f"buffer_store_dwordx2 {vr(sm+2*x,2)}, v{t0}, s[{S_WS}:{S_WS+3}], s{S_T} offen offset:{x*128} sc1")
        a.e(f"s_mov_b64 exec, s[{S_EX}:{S_EX+1}]\ns_waitcnt vmcnt(0)")
        self.signal_last(a, 4, 4, self.off_ij(F_S2), t0, t1, "s2")

    def phase_f1(self, g):
        C, L, c = self.C, self.L, g.c
        vL = self.vL; t0, t1, t2, t3, t4, t5 = self.vt
        FL1 = 1 if self.o.get("flags1", False) else 0
        ps = 64; cp = 96; mu, m2 = 112, 113
        def s2a(vm):
            self.group_words(L, 56, F_S2, S_I)
            L.e(f"buffer_load_dword v57, v56, s[{S_WS}:{S_WS+3}], 0 offen sc1"); vm.iss("ps2")
        def s2b(vm):
            vm.wait("ps2")
            self.poll_test(L, 57)
            L.e("s_cbranch_scc1 L_s2ready")
            self.poll(L, S_WS, 56, 57, "s2")
            L.label("L_s2ready")
            L.e(f"v_and_b32 v{t0}, 15, v{vL}\nv_lshlrev_b32 v{t0}, 4, v{t0}\nv_lshrrev_b32 v{t1}, 4, v{vL}\nv_lshlrev_b32 v{t1}, 14, v{t1}\nv_add_u32 v54, v{t0}, v{t1}")
            L.e(f"s_lshl_b32 s{S_T2}, s{S_I}, 7\ns_lshl_b32 s{S_T3}, s{S_LW}, 5\ns_add_u32 s{S_T2}, s{S_T2}, s{S_T3}\ns_lshl_b32 s{S_T2}, s{S_T2}, 3\ns_add_u32 s{S_T2}, s{S_T2}, {WS_ST2}")
            for n in range(8):
                L.e(f"buffer_load_dwordx4 {vr(ps+4*n,4)}, v54, s[{S_WS}:{S_WS+3}], s{S_T2} offen sc1\ns_add_u32 s{S_T2}, s{S_T2}, {4*2048*8}")
            vm.iss("ps", 8)
        mua, m2a = 112, 114
        def h0b(vm):
            vm.wait("ps")
            for r in range(2): L.e(f"v_add_f32 v{mua+r}, v{ps+2*r}, v{ps+4+2*r}")
            for n in range(2, 8):
                for r in range(2): L.e(f"v_add_f32 v{mua+r}, v{mua+r}, v{ps+4*n+2*r}")
            self.xgroups(L, [mua, mua+1], 118)
            for r in range(2): L.e(f"v_mul_f32 v{mua+r}, {fhex(1/1024)}, v{mua+r}\nv_mov_b32 v{m2a+r}, 0")
            L.e(f"v_mov_b32 v116, {fhex(1/32)}\nv_mov_b32 v117, {fhex(32.0)}")
        def h1(vm, part=None):
            for n in (range(8) if part is None else range(4*part, 4*part+4) if part < 2 else ()):
                for r in range(2):
                    tt = t1 if r == 0 else t2
                    L.e(f"v_fma_f32 v{tt}, v{ps+4*n+2*r}, v116, -v{mua+r}")
                for r in range(2):
                    tt = t1 if r == 0 else t2
                    L.e(f"v_mul_f32 v{tt}, v{tt}, v{tt}")
                for r in range(2):
                    tt = t1 if r == 0 else t2
                    L.e(f"v_fma_f32 v{tt}, v{tt}, v117, v{ps+4*n+2*r+1}")
                for r in range(2):
                    tt = t1 if r == 0 else t2
                    L.e(f"v_add_f32 v{m2a+r}, v{m2a+r}, v{tt}")
            if part is not None and part < 2: return
            self.xgroups(L, [m2a, m2a+1], 118)
            for r in range(2): L.e(f"v_mul_f32 v{m2a+r}, {fhex(1/1024)}, v{m2a+r}\nv_add_f32 v{m2a+r}, {fhex(EPS)}, v{m2a+r}")
            for r in range(2): L.e(f"v_rsq_f32 v{m2a+r}, v{m2a+r}")
            L.e(f"v_and_b32 v{t0}, 15, v{vL}\nv_lshlrev_b32 v{t0}, 3, v{t0}\ns_lshl_b32 s{S_T}, s{S_LW}, 7\ns_add_u32 s{S_T}, s{S_T}, {SD_MEAN2}\nv_add_u32 v{t0}, s{S_T}, v{t0}")
            L.e(f"v_cmp_gt_u32 vcc, 16, v{vL}\ns_and_saveexec_b64 s[{S_EX}:{S_EX+1}], vcc\nds_write_b64 v{t0}, {vr(mua,2)}\nds_write_b64 v{t0}, {vr(m2a,2)} offset:512\ns_mov_b64 exec, s[{S_EX}:{S_EX+1}]")
        ones, wf, sacc, r1, vL4 = 120, [124 + 4*k for k in range(8)], [156 + 4*k for k in range(4)], [172, 173, 174, 175], 176
        box = {}
        def pre_cs1():
            L.e(f"v_lshlrev_b32 v{vL4}, 2, v{vL}")
            box["cls"] = self.csum_setup(g, 4, r1)
        cs1_code = f"s_lshl_b32 s{S_T}, s{S_I}, 4\ns_add_u32 s{S_T}, s{S_T}, s{S_J}\ns_mul_i32 s{S_T2}, s{S_T}, 896\ns_lshl_b32 s{S_T}, s{S_LW}, 8\ns_add_u32 s{S_T2}, s{S_T2}, s{S_T}\ns_add_u32 s{S_T2}, s{S_T2}, {WS_CS1}"
        fh = (lambda vm: self.csum_reads(4, box["cls"], r1, wf), lambda vm: self.csum_finish(vm, 4, 14, ones, wf, sacc, vL4, cs1_code))
        def hsig(vm):
            if FL1:
                L.e(f"v_mov_b32 v58, {SD_FULL}"); self.lwait(58, 5, "cs1sig")
            self.signal(L, self.off_ji(F_CS1), 52, 53, only_lw0=True); vm.iss("sig")
        def h2a(vm):
            self.group_words(L, 52, F_CS1, S_J)
            L.e(f"buffer_load_dword v53, v52, s[{S_WS}:{S_WS+3}], 0 offen sc1"); vm.iss("pc")
        def h2(vm):
            vm.wait("pc")
            self.poll_test(L, 53, False)
            L.e("s_cbranch_scc1 L_cs1ready")
            self.poll(L, S_WS, 52, 53, "cs1")
            L.label("L_cs1ready")
            self.colsum_loads(L, vm, "cp", cp, 55, t1, 14, 896, f"s_mul_i32 s{S_T2}, s{S_J}, 896\ns_mul_i32 s{S_T}, s{S_LW}, 224\ns_add_u32 s{S_T2}, s{S_T2}, s{S_T}\ns_add_u32 s{S_T2}, s{S_T2}, {WS_CS1}")
        def h4(vm):
            vm.wait("cp")
            self.colsum_reduce(L, cp, 118, t0, 14, SD_CS1, 224)
        def mark(n):
            def fn(vm):
                if n == 0:
                    for k in range(4): L.e(f"v_mov_b32 v{180+k}, -1")
                    L.e(f"s_lshl_b32 s{S_T}, s{S_I}, 4\ns_add_u32 s{S_T}, s{S_T}, s{S_J}\ns_lshl_b32 s{S_T}, s{S_T}, 15\ns_lshl_b32 s{S_T2}, s{S_LW}, 13\ns_add_u32 s{S_T}, s{S_T}, s{S_T2}\ns_add_u32 s71, s{S_T}, {WS_XCH}")
                L.e(f"s_add_u32 s{S_T}, s71, {n*1024}\nbuffer_store_dwordx4 v[180:183], v{self.vL16}, s[{S_WS}:{S_WS+3}], s{S_T} offen sc1"); vm.iss("mark")
            return fn
        F1HOOKS = {0: fh[1], 2: s2a, 3: lambda vm: (hsig(vm), s2b(vm)), 5: h0b, 6: h1, 8: h2a, 9: h2, 11: h4}; F1PEEL = 12
        if self.o.get("lowhooks", True):
            def low(fn):
                def w(vm):
                    L.e("s_setprio 0"); fn(vm); L.e("s_setprio 1")
                return w
            F1HOOKS = {0: fh[1], 2: s2a, 3: lambda vm: (hsig(vm), s2b(vm)), 5: low(h0b), 6: low(lambda vm: h1(vm, 0)), 7: low(lambda vm: h1(vm, 1)),
                       8: lambda vm: (h2a(vm), low(lambda v: h1(v, 2))(vm)), 9: h2, 11: low(h4)}
        if self.o.get("f1late", True):
            F1HOOKS = {1: fh[1], 4: hsig, 7: s2a, 8: h2a, 9: s2b, 10: h2, 12: h0b,
                       13: lambda vm: (h1(vm, 0), h1(vm, 1), h1(vm, 2)), 14: h4}
            F1PEEL = 13
        if self.o.get("sentinel", True) and self.o.get("markat", "o") == "f1":
            for n in range(8):
                prev = F1HOOKS.get(n); mk_ = mark(n)
                F1HOOKS[n] = (lambda vm, p=prev, m=mk_: (m(vm), p(vm) if p else None))
        a = C; g.bind(C, vL, self.vt, (8, 9)); cv = Regs(12, 254); g.alloc_compute(cv)
        g.setup_reads()
        self.cpoll(F_H, "f1")
        self.lphase(g, F_H, "f1", hooks=F1HOOKS, npeel=F1PEEL, after_poll=lambda vm: pre_cs1(), first_hooks=fh, flags=FL1)
        g2 = self.g[3]
        self.lsetup(g2, A_W2, DFF*D*2, WS_H1, khalf=True)
        own2 = self.o.get("own2", True)
        if own2:
            L.e(f"s_mul_i32 s{S_A}, s{S_J}, 7\ns_add_u32 s{S_A}, s{S_A}, 1\ns_lshr_b32 s{S_A}, s{S_A}, 1\ns_lshr_b32 s{S_T}, s{S_J}, 3\ns_mul_i32 s{S_T}, s{S_T}, 28\ns_sub_u32 s{S_A}, s{S_A}, s{S_T}")
            for ins in g2.rot_init(): L.e(ins)
            vmA = VM(L)
            L.e(f"s_mul_i32 s{S_WOFF}, s{S_A}, {64*2048}\ns_add_u32 s{S_WOFF}, s{S_WOFF}, s{S_WB0}\ns_mov_b32 s{S_WR}, 0")
            for n in range(3):
                for ins in g2.dma_w(): L.e(ins)
                vmA.iss(("w", n), g2.c.nWld)
                L.e(f"s_add_u32 s{S_WOFF}, s{S_WOFF}, {64*2048}\ns_add_u32 s{S_WR}, s{S_WR}, {g2.c.SB}")
            vmA.wait(("w", 0)); L.e("s_barrier")
            vmA.wait(("w", 1)); L.e("s_barrier")
            vmA.wait(("w", 2)); L.e("s_barrier")
            L.e("s_barrier")
        g.bind(C, vL, self.vt, (8, 9)); g.a = C
        em = g.em; l, wm, wn = g.l, g.wm, g.wn
        f1hooks = None
        self.cloop(g, stamps=(9, 10), hooks=f1hooks, flags=FL1, cv=cv)
        fr = g.frag0
        mu = fr; cs = fr+4; pk = fr+32; va = fr+44; vb = va+1; vc = va+2; vo = va+3
        em.vemit((wm*64 + (l & 15))*4 + SD_MEAN2, va)
        for x in range(4): a.lds_rd(f"ds_read_b32 v{mu+x}, v{va} offset:{x*64}", [mu+x])
        em.vemit(wn*512 + (l >> 4)*16 + SD_CS1, vb)
        em.vemit(wn*64 + (l >> 4)*16 + SD_CS1 + 384, vc)
        for f in range(6): a.lds_rd(f"ds_read_b128 {vr(cs+4*f,4)}, v{vb} offset:{f*64}", rng(cs+4*f, 4))
        a.lds_rd(f"ds_read_b128 {vr(cs+24,4)}, v{vc}", rng(cs+24, 4))
        a.e(f"s_mul_i32 s71, s{S_I}, {56*16384}\ns_lshl_b32 s{S_T}, s{S_WM}, 13\ns_add_u32 s71, s71, s{S_T}\ns_add_u32 s71, s71, {WS_H1}\ns_mul_i32 s{S_T4}, s{S_J}, 7")
        def fold(x, f):
            acc = g.acc[x][f]; c0 = cs + 4*f
            for p in range(2):
                a.e(f"v_pk_fma_f32 {vr(acc+2*p,2)}, {vr(mu+(x & ~1),2)}, {vr(c0+2*p,2)}, {vr(acc+2*p,2)} op_sel:[{x & 1},0,0] op_sel_hi:[{x & 1},1,1] neg_lo:[1,0,0] neg_hi:[1,0,0]")
        def kappa(phi_code):
            a.e(phi_code)
            a.e(f"s_lshr_b32 s{S_T2}, s{S_T}, 1\ns_lshl_b32 s{S_T2}, s{S_T2}, 14\ns_and_b32 s{S_T}, s{S_T}, 1\ns_lshl_b32 s{S_T}, s{S_T}, 10\ns_add_u32 s{S_T}, s{S_T}, s{S_T2}\ns_add_u32 s{S_T}, s{S_T}, s71")
        vlw = fr+48
        def lds_own(phi_code):
            if not own2: return
            a.e(phi_code)
            a.e(f"s_and_b32 s{S_T3}, s{S_J}, 1\ns_sub_i32 s{S_T2}, s{S_T2}, s{S_T3}\ns_and_b32 s{S_T3}, s{S_T2}, 1\ns_lshl_b32 s{S_T3}, s{S_T3}, 10\ns_ashr_i32 s{S_T2}, s{S_T2}, 1\ns_and_b32 s{S_T2}, s{S_T2}, 3\ns_lshl_b32 s{S_T2}, s{S_T2}, 15")
            a.e(f"s_add_u32 s{S_T2}, s{S_T2}, s{S_T3}\ns_lshl_b32 s{S_T3}, s{S_WM}, 13\ns_add_u32 s{S_T2}, s{S_T2}, s{S_T3}\nv_add_u32 v{vlw}, s{S_T2}, v{self.vL16}")
        n = 0
        for pr in range(3):
            a.need(list(rng(mu, 4)) + list(rng(cs+8*pr, 8)))
            lds_own(f"s_lshl_b32 s{S_T2}, s{S_WN}, 2\ns_add_u32 s{S_T2}, s{S_T2}, {pr}")
            kappa(f"s_lshl_b32 s{S_T}, s{S_WN}, 2\ns_add_u32 s{S_T}, s{S_T}, s{S_T4}\ns_add_u32 s{S_T}, s{S_T}, {pr}")
            for x in range(4):
                fold(x, 2*pr); fold(x, 2*pr+1)
                A, B = g.acc[x][2*pr], g.acc[x][2*pr+1]; p = pk + 4*(n & 1); n += 1
                a.e(f"v_cvt_pk_bf16_f32 v{p}, v{A}, v{A+1}\nv_cvt_pk_bf16_f32 v{p+1}, v{A+2}, v{A+3}\nv_cvt_pk_bf16_f32 v{p+2}, v{B}, v{B+1}\nv_cvt_pk_bf16_f32 v{p+3}, v{B+2}, v{B+3}")
                for k in range(4): a.e(f"v_pk_max_i16 v{p+k}, v{p+k}, 0")
                if x == 2: a.e(f"s_add_u32 s{S_T}, s{S_T}, 4096")
                a.e(f"buffer_store_dwordx4 {vr(p,4)}, v{self.vL16}, s[{S_WS}:{S_WS+3}], s{S_T} offen offset:{(x & 1)*2048} sc1")
                if own2: a.lds_other(f"ds_write_b128 v{vlw}, {vr(p,4)} offset:{x*2048}")
        a.need(rng(cs+24, 4))
        kappa(f"s_add_u32 s{S_T}, s{S_T4}, 3")
        em.vemit(l*16 + wn*8, vo)
        lds_own(f"s_mov_b32 s{S_T2}, 3")
        if own2: a.e(f"s_lshl_b32 s{S_T3}, s{S_WN}, 3\nv_add_u32 v{vlw}, s{S_T3}, v{vlw}")
        for x in range(4):
            fold(x, 6)
            A = g.acc[x][6]; p = pk + 4*(n & 1); n += 1
            a.e(f"v_cvt_pk_bf16_f32 v{p}, v{A}, v{A+1}\nv_cvt_pk_bf16_f32 v{p+1}, v{A+2}, v{A+3}\nv_pk_max_i16 v{p}, v{p}, 0\nv_pk_max_i16 v{p+1}, v{p+1}, 0")
            if x == 2: a.e(f"s_add_u32 s{S_T}, s{S_T}, 4096")
            a.e(f"buffer_store_dwordx2 {vr(p,2)}, v{vo}, s[{S_WS}:{S_WS+3}], s{S_T} offen offset:{(x & 1)*2048} sc1")
            if own2: a.lds_other(f"ds_write_b64 v{vlw}, {vr(p,2)} offset:{x*2048}")
        if not own2:
            self.bar()
            self.lweights(self.g[3])
            a.e("s_waitcnt vmcnt(0)")
            self.signal_last(a, 3, 4, self.off_ij(F_H1), t0, t1, "h1")
            self.stamp(C, 11)

    def phase_f2(self, g):
        C, L, c = self.C, self.L, g.c
        vL = self.vL; t0, t1, t2, t3, t4, t5 = self.vt
        own2 = self.o.get("own2", True)
        a = C; g.bind(C, vL, self.vt, (8, 9)); cv = Regs(12, 254)
        a.e(f"s_lshr_b32 s3, s{S_J}, 3")
        g.alloc_compute(cv)
        em = g.em; l, wm, wn = g.l, g.wm, g.wn
        hr = cv.alloc(16, 4); pt = cv.alloc(32, 4); rs = cv.alloc(4, 4); pk = cv.alloc(8, 4); va = cv.alloc(); vo = cv.alloc()
        g.setup_reads()
        nsB = c.nsteps
        if own2:
            g.a = C
            def pub():
                a.e("s_setprio 3\ns_waitcnt vmcnt(0)")
                self.signal_last(a, 3, 4, self.off_ij(F_H1), t0, t1, "h1")
                self.stamp(C, 11)
                a.e("s_setprio 0")
            if self.o.get("pubmid", True):
                self.cloop(g, stamps=(None, None), ns=3, first=True, sfx="a", peel_first=pub)
            else:
                self.cloop(g, stamps=(None, None), ns=3, first=True, sfx="a")
                pub()
            nsB = c.nsteps - 3
            self.lweights(g, init=False)
        def hookF2(a):
            a.e(f"s_and_b32 s{S_T}, s{S_J}, 7\ns_lshl_b32 s{S_T}, s{S_T}, 1\ns_add_u32 s{S_T}, s{S_T}, s{S_WN}\ns_lshl_b32 s{S_T2}, s{S_I}, 4\ns_add_u32 s{S_T}, s{S_T}, s{S_T2}\ns_lshl_b32 s{S_T}, s{S_T}, 14")
            a.e(f"s_lshl_b32 s{S_T2}, s{S_WM}, 13\ns_add_u32 s{S_T}, s{S_T}, s{S_T2}\ns_lshl_b32 s{S_T2}, s3, 10\ns_add_u32 s{S_T}, s{S_T}, s{S_T2}\ns_add_u32 s{S_T}, s{S_T}, {WS_H}")
            for x in range(4):
                if x == 2: a.e(f"s_add_u32 s{S_T}, s{S_T}, 4096")
                a.e(f"buffer_load_dwordx4 {vr(hr+4*x,4)}, v{self.vL16}, s[{S_WS}:{S_WS+3}], s{S_T} offen offset:{(x & 1)*2048} sc1")
        if self.o.get("res2out", True):
            a.e(f"s_cmp_eq_u32 s{S_LW}, 0\ns_cbranch_scc1 L_res2a"); hookF2(a); a.label("L_res2a")
        self.cpoll(F_H1, "f2")
        if self.o.get("res2out", True):
            a.e(f"s_cmp_lg_u32 s{S_LW}, 0\ns_cbranch_scc1 L_res2b"); hookF2(a); a.label("L_res2b")
        FL2 = 1 if self.o.get("flags2", False) else 0
        self.lphase(g, F_H1, "f2", ns=nsB, flags=FL2)
        g.bind(C, vL, self.vt, (8, 9)); g.a = C; em = g.em
        self.cloop(g, stamps=(12, 13), hooks=(None if self.o.get("res2out", True) else {nsB - 5: hookF2}), ns=nsB, first=not own2, flags=FL2, cv=cv)
        a.e(f"s_lshl_b32 s{S_T}, s{S_I}, 4\ns_add_u32 s{S_T}, s{S_T}, s{S_J}\ns_lshl_b32 s{S_T}, s{S_T}, 15\ns_lshl_b32 s{S_T2}, s{S_LW}, 13\ns_add_u32 s{S_T}, s{S_T}, s{S_T2}\ns_add_u32 s{S_T}, s{S_T}, {WS_XCH}")
        for x in range(4):
            if x == 2: a.e(f"s_add_u32 s{S_T}, s{S_T}, 4096")
            for f in range(2):
                a.e(f"buffer_store_dwordx4 {vr(g.acc[x][2+f],4)}, v{self.vL16}, s[{S_WS}:{S_WS+3}], s{S_T} offen offset:{((x & 1)*2+f)*1024} sc1")
        em.vemit((wm*64 + (l & 15))*4 + SD_RSTD2, va)
        for x in range(4): a.lds_rd(f"ds_read_b32 v{rs+x}, v{va} offset:{x*64}", [rs+x])
        srd(a, S_OUT, *self.ptr(A_OUT), M*D*2)
        em.vemit((l & 15)*2048 + ((l >> 4) & 1)*32 + (l >> 5)*16, vo)
        prefold = self.o.get("prefold", False)
        if prefold:
            a.e("s_waitcnt vmcnt(8)")
            a.need(rng(rs, 4))
            for x in range(4):
                for f in range(2):
                    acc = g.acc[x][f]
                    for d in range(2):
                        src = hr + 4*x + 2*f + d
                        a.e(f"v_lshlrev_b32 v{t0}, 16, v{src}\nv_and_b32 v{t1}, 0xffff0000, v{src}")
                        a.e(f"v_fma_f32 v{acc+2*d}, v{acc+2*d}, v{rs+x}, v{t0}\nv_fma_f32 v{acc+2*d+1}, v{acc+2*d+1}, v{rs+x}, v{t1}")
        if not self.o.get("sentinel", True):
            a.e("s_waitcnt vmcnt(0)")
            self.signal(a, self.off_ijw(F_P, S_LW), t0, t1)
            a.e(f"s_xor_b32 s{S_T2}, s{S_J}, 8\ns_lshl_b32 s{S_T2}, s{S_T2}, 2\ns_lshl_b32 s{S_T}, s{S_I}, 6\ns_add_u32 s{S_T}, s{S_T}, s{S_T2}\ns_add_u32 s{S_T}, s{S_T}, s{S_LW}\ns_lshl_b32 s{S_T}, s{S_T}, 2\ns_add_u32 s{S_T}, s{S_T}, {F_P}\nv_mov_b32 v{t2}, s{S_T}")
            self.poll(a, S_WS, t2, t3, "p")
        a.e(f"s_xor_b32 s{S_T}, s{S_J}, 8\ns_lshl_b32 s{S_T2}, s{S_I}, 4\ns_add_u32 s{S_T}, s{S_T}, s{S_T2}\ns_lshl_b32 s{S_T}, s{S_T}, 15\ns_lshl_b32 s{S_T2}, s{S_LW}, 13\ns_add_u32 s{S_T}, s{S_T}, s{S_T2}\ns_add_u32 s{S_T3}, s{S_T}, {WS_XCH}\ns_add_u32 s{S_T4}, s{S_T3}, 4096")
        if self.o.get("sentinel", True):
            a.e(f"s_mov_b32 s{S_CNT}, {POLL_MAX}")
            a.label("L_xch")
        for x in range(4):
            for f in range(2):
                a.e(f"buffer_load_dwordx4 {vr(pt+8*x+4*f,4)}, v{self.vL16}, s[{S_WS}:{S_WS+3}], s{S_T3 if x < 2 else S_T4} offen offset:{((x & 1)*2+f)*1024} sc1")
        if self.o.get("sentinel", True):
            a.e("s_waitcnt vmcnt(0)")
            a.e(f"v_max3_u32 v{t0}, v{pt}, v{pt+1}, v{pt+2}")
            for k in range(3, 31, 2): a.e(f"v_max3_u32 v{t0}, v{t0}, v{pt+k}, v{pt+k+1}")
            a.e(f"v_max_u32 v{t0}, v{t0}, v{pt+31}\nv_cmp_ne_u32 vcc, -1, v{t0}\ns_nop 4\ns_cmp_eq_u64 vcc, exec\ns_cbranch_scc1 L_xch_done")
            a.e(f"s_sub_u32 s{S_CNT}, s{S_CNT}, 1\ns_cmp_lg_u32 s{S_CNT}, 0\ns_cbranch_scc1 L_xch")
            a.label("L_xch_done")
        a.e(f"s_lshl_b32 s{S_T}, s{S_I}, 1\ns_add_u32 s{S_T}, s{S_T}, s{S_WM}\ns_lshl_b32 s{S_T}, s{S_T}, 17\ns_and_b32 s{S_T2}, s{S_J}, 7\ns_lshl_b32 s{S_T2}, s{S_T2}, 8\ns_add_u32 s{S_T}, s{S_T}, s{S_T2}")
        a.e(f"s_lshl_b32 s{S_T2}, s{S_WN}, 7\ns_add_u32 s{S_T}, s{S_T}, s{S_T2}\ns_lshl_b32 s{S_T2}, s3, 6\ns_add_u32 s{S_T}, s{S_T}, s{S_T2}")
        a.need(rng(rs, 4))
        for x in range(4):
            if not self.o.get("sentinel", True): a.e(f"s_waitcnt vmcnt({(3-x)*2 + x})")
            p = pk + 4*(x & 1)
            for f in range(2):
                acc = g.acc[x][f]; q_ = pt + 8*x + 4*f
                if prefold:
                    for pp_ in range(2):
                        a.e(f"v_pk_fma_f32 {vr(acc+2*pp_,2)}, {vr(q_+2*pp_,2)}, {vr(rs+(x & ~1),2)}, {vr(acc+2*pp_,2)} op_sel:[0,{x & 1},0] op_sel_hi:[1,{x & 1},1]")
                    for d in range(2): a.e(f"v_cvt_pk_bf16_f32 v{p+2*f+d}, v{acc+2*d}, v{acc+2*d+1}")
                    continue
                for pp_ in range(2):
                    a.e(f"v_pk_add_f32 {vr(acc+2*pp_,2)}, {vr(acc+2*pp_,2)}, {vr(q_+2*pp_,2)}")
                for d in range(2):
                    src = hr + 4*x + 2*f + d
                    a.e(f"v_lshlrev_b32 v{t0}, 16, v{src}\nv_and_b32 v{t1}, 0xffff0000, v{src}")
                    a.e(f"v_fma_f32 v{t0}, v{acc+2*d}, v{rs+x}, v{t0}\nv_fma_f32 v{t1}, v{acc+2*d+1}, v{rs+x}, v{t1}")
                    a.e(f"v_cvt_pk_bf16_f32 v{p+2*f+d}, v{t0}, v{t1}")
            a.e("s_nop 1")
            a.e(f"v_permlane16_swap_b32 v{p}, v{p+2}\nv_permlane16_swap_b32 v{p+1}, v{p+3}")
            a.e(f"buffer_store_dwordx4 {vr(p,4)}, v{vo}, s[{S_OUT}:{S_OUT+3}], s{S_T} offen sc1")
            if x < 3: a.e(f"s_add_u32 s{S_T}, s{S_T}, {16*2048}")
        self.stamp(C, 14)

if __name__ == "__main__":
    import sys
    diag = "--diag" in sys.argv
    args = [x for x in sys.argv[1:] if not x.startswith("--")]
    out = args[0] if args else "mk.s"
    mk = MK(dict(diag=diag))
    body = mk.build()
    hdr = f"""; Single persistent launch: 256 workgroups (one per CU) x 8 waves (4 MFMA waves + 4 loader/helper waves).
; @launch grid=(256,1,1) block=(512,1,1) lds={LDS_TOTAL}
.amdgcn_target "amdgcn-amd-amdhsa--gfx950"
.text
"""
    open(out, "w").write(hdr + body)
    print("wrote", out, len((hdr+body).splitlines()), "lines")
```

```python
from common import *
from expr import *
import banks, math

def magic_div(d, maxv):
    for sh in (16, 17, 18, 20):
        m = (1 << sh)//d + 1
        if m*maxv < (1 << 32) and m < (1 << 24) and all(((c*m) >> sh) == c//d for c in range(maxv)): return m, sh
    raise RuntimeError

S_XSRD, S_WSRD = 4, 8
S_E0, S_E1, S_E2, S_E3 = 12, 16, 20, 24
S_I, S_J, S_WV, S_T = 28, 29, 30, 31
S_XOFF, S_WOFF, S_RD, S_WR, S_CNT, S_XL, S_WL = 32, 33, 34, 35, 36, 37, 38
S_T2, S_T3, S_T4 = 39, 40, 41
S_WM, S_WN = 42, 43
S_PTR = 44
S_EX = 62
S_ET = [64, 65, 66, 67, 68, 69]
S_LW = 70
S_XB0, S_WB0, S_N, S_K, S_A = 72, 73, 74, 75, 76

class Cfg:
    def __init__(self, **kw):
        self.S = 3; self.G = 1; self.BK = 64; self.TM = 128; self.shape = 32
        self.no_mfma = False; self.no_dma = False; self.loaders = False; self.qkvseg = False
        self.__dict__.update(kw)

class G:
    def __init__(self, c, a, v, vLane, vt):
        self.c = c; self.a = a; self.v = v; self.vLane = vLane; self.vt = vt
        c.T = c.shape; c.KS = 16 if c.shape == 32 else 32
        c.NSUB = c.BK//c.KS
        c.nX = c.TM//c.T//c.WM; c.nW = c.TN//c.T//c.WN
        c.AR = 16 if c.shape == 32 else 4
        c.RS = c.TN*2
        c.XB = c.TM*c.BK*2; c.WB = c.BK*c.RS; c.SB = c.XB + c.WB
        c.nXld = c.XB//1024//4; c.nWld = c.WB//1024//4
        assert c.nWld*4096 == c.WB and c.nXld == 4
        c.nld = c.nXld + c.nWld
        c.nsteps = c.K//c.BK
        self.l = V("l"); self.wm = S("wm"); self.wn = S("wn"); self.lw = S("lw")
        self.em = Emitter(a, {"l": vLane}, {"wm": S_WM, "wn": S_WN, "lw": S_LW, "i": S_I, "j": S_J, "kh": 3}, vt, S_ET)
        self.check_banks(); self.plan_reads()
        if not getattr(c, "split", False): self.alloc()
    def wswz(self, row):
        c = self.c; m = c.RS % 256
        if c.shape == 32:
            if m == 128: return ((row >> 1) & 1) << 2
            if m in (64, 192): return C(0)
            return (row & 3) << 2
        if c.korder in ("fn", "fn32"):
            if m == 128: return ((row >> 1) & 3) << 1
            if m in (64, 192): return ((row >> 2) & 1) << 1
            return (row & 7) << 1
        if m == 128: return (((row >> 1) & 1) | (((row >> 3) & 1) << 1)) << 1
        if m in (64, 192): return ((row >> 3) & 1) << 1
        return ((row & 3) | (((row >> 3) & 1) << 2)) << 1
    def wrow(self, ks, j):
        c = self.c; l = self.l
        r = (l >> 2) & 3
        if c.shape == 32:
            h = l >> 5
            return (h*4 + (16*ks + 8*j) if c.korder == "fn" else h*8 + (16*ks + 4*j)) + r
        g = l >> 4
        if c.korder == "fn": return g*4 + (32*ks + 16*j) + r
        if c.korder == "fn32": return (g >> 1)*16 + (g & 1)*4 + (32*ks + 8*j) + r
        return g*8 + (32*ks + 4*j) + r
    def waddr(self, f, ks, j):
        c = self.c; l = self.l
        row = self.wrow(ks, j)
        col = c.fcol(self.wn, f)
        ch = col >> 3
        if c.shape == 32: ch = ch + ((l >> 4) & 1)*2
        ch = ch + ((l >> 1) & 1)
        return row*c.RS + ((ch ^ self.wswz(row)) << 4) + (l & 1)*8 + c.XB
    def xaddr(self, x, ks):
        c = self.c; l = self.l; wm = self.wm
        mt = wm*c.nX + x
        if c.xsrc == "fn":
            return (mt*(4 if c.shape == 32 else 2) + ks)*1024 + l*16
        if c.shape == 32: row = mt*32 + (l & 31); ch = (l >> 5) + 2*ks
        else: row = mt*16 + (l & 15); ch = (l >> 4) + 4*ks
        return row*128 + ((ch ^ ((row >> 1) & 7)) << 4)
    def _tab(self, e):
        c = self.c
        return [e.ev({"l": l, "wm": wm, "wn": wn, "kh": kh}) for kh in range(2) for wm in range(c.WM) for wn in range(c.WN) for l in range(64)]
    def check_banks(self):
        c = self.c
        for x in range(c.nX):
            for ks in range(c.NSUB):
                t = self._tab(self.xaddr(x, ks))
                for w in range(len(t)//64): assert banks.conflicts_b128(t[64*w:64*w+64]) == 0, "X conflict"
        for f in range(c.nW):
            for ks in range(c.NSUB):
                for j in range(2):
                    t = self._tab(self.waddr(f, ks, j))
                    for w in range(len(t)//64): assert banks.conflicts_b64(t[64*w:64*w+64]) == 0, ("W conflict", f, ks, j)
    def plan_reads(self):
        c = self.c
        def plan(keys, fn):
            base = []; cls = {}
            for k in keys:
                t = self._tab(fn(*k)); found = False
                for ci, (bk, bt) in enumerate(base):
                    ds = {p - q for p, q in zip(t, bt)}
                    if len(ds) == 1 and 0 <= min(ds) < 65536: cls[k] = (ci, ds.pop()); found = True; break
                if not found: base.append((k, t)); cls[k] = (len(base)-1, 0)
            return [b[0] for b in base], cls
        self.xbase, self.xcls = plan([(x, ks) for ks in range(c.NSUB) for x in range(c.nX)], self.xaddr)
        self.wbase, self.wcls = plan([(f, ks, j) for ks in range(c.NSUB) for f in range(c.nW) for j in range(2)], self.waddr)
    def alloc(self):
        self.alloc_loader(self.v); self.alloc_compute(self.v)
    def alloc_loader(self, v):
        c = self.c
        self.vXsrc = [v.alloc() for _ in range(4 if c.xsrc == "rm" else 1)]
        self.vWsrc = [v.alloc() for _ in range(c.nWld)]
    def bind(self, a, vLane, vt, tmp2=None):
        self.a = a; self.vLane = vLane; self.vt = vt
        self.em = Emitter(a, {"l": vLane}, {"wm": S_WM, "wn": S_WN, "lw": S_LW, "i": S_I, "j": S_J, "kh": 3}, vt, S_ET)
        if tmp2: self.v_tmp2 = tmp2
    def alloc_compute(self, v):
        c = self.c
        self.vXl = [v.alloc() for _ in self.xbase]; self.vXa = [v.alloc() for _ in self.xbase]
        self.vWl = [v.alloc() for _ in self.wbase]; self.vWa = [v.alloc() for _ in self.wbase]
        self.fX = [[[v.alloc(4, 4) for x in range(c.nX)] for g in range(c.G)] for s in range(2)]
        self.fW = [[[v.alloc(4, 4) for f in range(c.nW)] for g in range(c.G)] for s in range(2)]
        self.frag0 = self.fX[0][0][0]; self.frag_end = v.n
        self.acc = [[v.alloc(c.AR, 4) for f in range(c.nW)] for x in range(c.nX)]
    def setup_dma(self):
        c, a, em = self.c, self.a, self.em
        l, lw = self.l, self.lw
        if c.xsrc == "fn":
            em.vemit(lw*4096 + l*16, self.vXsrc[0])
            a.e(f"s_mul_i32 s{S_XOFF}, s{S_I}, {(c.Kx//64)*16384}")
            if c.xoff0: a.e(f"s_add_u32 s{S_XOFF}, s{S_XOFF}, {c.xoff0}") if isinstance(c.xoff0, int) else c.xoff0(a)
        else:
            x0, x1 = self.vXsrc[0], self.vXsrc[1]
            em.vemit((lw*32 + (l >> 3))*c.ldx + (((l & 7) ^ (l >> 4)) << 4), x0)
            a.e(f"v_xor_b32 v{x1}, 64, v{x0}")
            a.e(f"v_add_u32 v{self.vXsrc[2]}, {16*c.ldx - 2048}, v{x0}\nv_add_u32 v{self.vXsrc[3]}, {24*c.ldx - 3072}, v{x1}\nv_add_u32 v{x1}, {8*c.ldx - 1024}, v{x1}")
            a.e(f"s_mul_i32 s{S_XOFF}, s{S_I}, {128*c.ldx}")
        self.w_addresses()
        c.woff(a)
        a.e(f"s_lshl_b32 s{S_XL}, s{S_LW}, 12")
        a.e(f"s_mul_i32 s{S_WL}, s{S_LW}, {c.nWld*1024}\ns_add_u32 s{S_WL}, s{S_WL}, {c.XB}")
    def w_addresses(self):
        c, a, em = self.c, self.a, self.em
        l, lw = self.l, self.lw
        cpr = c.TN//8
        mg, sh = magic_div(cpr, c.nWld*256)
        vr_, vp = self.v_tmp2
        em.vr["row"] = vr_; em.vr["p"] = vp; row = V("row"); p = V("p")
        for n in range(c.nWld):
            em.vemit(lw*(c.nWld*64) + n*64 + l, vp)
            em.vemit((p*mg) >> sh, vr_)
            em.vemit(p - row*cpr, vp)
            sw = self.wswz(row)
            if not sw.isc() or sw.args[0] != 0: em.vemit(p ^ sw, vp)
            colb = ((p >> 3) << 11) + ((p & 7) << 4) if c.qkvseg else p << 4
            em.vemit(row*c.ldw + colb - (n % 4)*1024, self.vWsrc[n])
    def setup_reads(self):
        em = self.em
        for k, r in zip(self.xbase, self.vXl): em.vemit(self.xaddr(*k), r)
        for k, r in zip(self.wbase, self.vWl): em.vemit(self.waddr(*k), r)
    def dma_x(self):
        c = self.c; out = []
        if c.no_dma: return []
        out.append(f"s_add_u32 m0, s{S_WR}, s{S_XL}")
        for n in range(4):
            src = self.vXsrc[n] if c.xsrc == "rm" else self.vXsrc[0]
            out.append(("s_nop 0\n" if n == 0 else "") + f"buffer_load_dwordx4 v{src}, s[{S_XSRD}:{S_XSRD+3}], s{S_XOFF} offen offset:{n*1024} {c.xflag} lds")
        if not getattr(c, "rot", False): out.append(f"s_add_u32 s{S_XOFF}, s{S_XOFF}, {16384 if c.xsrc == 'fn' else c.BK*2}")
        return out
    def dma_w(self):
        c = self.c; out = []
        if c.no_dma: return []
        for n in range(c.nWld):
            if n % 4 == 0:
                out.append(f"s_add_u32 s{S_T}, s{S_WR}, s{S_WL}\ns_add_u32 m0, s{S_T}, {n*1024}")
            out.append(("s_nop 0\n" if n % 4 == 0 else "") + f"buffer_load_dwordx4 v{self.vWsrc[n]}, s[{S_WSRD}:{S_WSRD+3}], s{S_WOFF} offen offset:{(n % 4)*1024} lds")
        if not getattr(c, "rot", False): out.append(f"s_add_u32 s{S_WOFF}, s{S_WOFF}, {c.BK*c.ldw}")
        return out
    def rot_init(self):
        return [f"s_mov_b32 s{S_XB0}, s{S_XOFF}\ns_mov_b32 s{S_WB0}, s{S_WOFF}"] if getattr(self.c, "rot", False) else []
    def stage_off(self, n=None):
        c = self.c
        if not getattr(c, "rot", False): return []
        rp = getattr(c, "rotpos", 0)
        xd = 16384 if c.xsrc == "fn" else c.BK*2; wd = c.BK*c.ldw
        if getattr(c, "own1", False):
            assert n is not None
            if n == 0: k = f"s_mov_b32 s{S_K}, 0\ns_cmp_ge_u32 s{S_K}, s78\ns_addc_u32 s{S_K}, s{S_K}, 0\ns_cmp_eq_u32 s80, 1\ns_cselect_b32 s{S_K}, s{S_K}, s{S_I}"
            else: k = f"s_add_u32 s{S_K}, s80, {n-1}\ns_cmp_ge_u32 s{S_K}, s78\ns_addc_u32 s{S_K}, s{S_K}, 0\ns_cmp_ge_u32 s{S_K}, s79\ns_addc_u32 s{S_K}, s{S_K}, 0"
            return [k + f"\ns_mul_i32 s{S_XOFF}, s{S_K}, {xd}\ns_add_u32 s{S_XOFF}, s{S_XOFF}, s{S_XB0}\ns_mul_i32 s{S_WOFF}, s{S_K}, {wd}\ns_add_u32 s{S_WOFF}, s{S_WOFF}, s{S_WB0}"]
        if getattr(c, "gap", 0):
            if n is not None: k = f"s_mov_b32 s{S_K}, {n}\ns_cmp_ge_u32 s{S_K}, s{S_A}\ns_cselect_b32 s{S_XOFF}, {c.gap}, 0\ns_add_u32 s{S_K}, s{S_K}, s{S_XOFF}"
            else: k = f"s_add_u32 s{S_N}, s{S_N}, 1\ns_cmp_ge_u32 s{S_N}, s{S_A}\ns_cselect_b32 s{S_XOFF}, {c.gap}, 0\ns_add_u32 s{S_K}, s{S_N}, s{S_XOFF}"
            return [k + f"\ns_mul_i32 s{S_XOFF}, s{S_K}, {xd}\ns_add_u32 s{S_XOFF}, s{S_XOFF}, s{S_XB0}\ns_mul_i32 s{S_WOFF}, s{S_K}, {wd}\ns_add_u32 s{S_WOFF}, s{S_WOFF}, s{S_WB0}"]
        if n == rp: k = f"s_mov_b32 s{S_K}, s{S_I}"
        elif n is not None:
            m = n if n < rp else n-1
            k = f"s_mov_b32 s{S_K}, {m}\ns_cmp_ge_u32 s{S_K}, s{S_I}\ns_addc_u32 s{S_K}, s{S_K}, 0"
        else: k = f"s_cmp_ge_u32 s{S_N}, s{S_I}\ns_addc_u32 s{S_K}, s{S_N}, 0\ns_add_u32 s{S_N}, s{S_N}, 1"
        return [k + f"\ns_mul_i32 s{S_XOFF}, s{S_K}, {xd}\ns_add_u32 s{S_XOFF}, s{S_XOFF}, s{S_XB0}\ns_mul_i32 s{S_WOFF}, s{S_K}, {wd}\ns_add_u32 s{S_WOFF}, s{S_WOFF}, s{S_WB0}"]
    def dma_list(self, n=None): return self.stage_off(n) + self.dma_x() + self.dma_w()
    def reads(self, set_, grp):
        c = self.c; out = []
        for g in range(c.G):
            ks = grp*c.G + g
            def xr(x):
                d = self.fX[set_][g][x]; ci, imm = self.xcls[(x, ks)]
                return (f"ds_read_b128 {vr(d,4)}, v{self.vXa[ci]} offset:{imm}", rng(d,4))
            def wr(f):
                d = self.fW[set_][g][f]; o = []
                for j in range(2):
                    ci, imm = self.wcls[(f, ks, j)]
                    o.append((f"ds_read_b64_tr_b16 {vr(d+2*j,2)}, v{self.vWa[ci]} offset:{imm}", rng(d+2*j,2)))
                return o
            order = self.mfma_order()
            seen = set()
            for (x, f) in order:
                if ("x", x) not in seen: seen.add(("x", x)); out.append(xr(x))
                if ("f", f) not in seen: seen.add(("f", f)); out += wr(f)
        return out
    def mfma_order(self):
        c = self.c
        o = []
        mode = getattr(c, "order", "fx")
        if mode == "fx":
            for f in range(c.nW):
                xs = range(c.nX) if f % 2 == 0 else reversed(range(c.nX))
                o += [(x, f) for x in xs]
        else:
            for x in range(c.nX):
                fs = range(c.nW) if x % 2 == 0 else reversed(range(c.nW))
                o += [(x, f) for f in fs]
        return o
    def mfmas(self, set_, first=False):
        c = self.c; out = []
        op = "v_mfma_f32_32x32x16_bf16" if c.shape == 32 else "v_mfma_f32_16x16x32_bf16"
        for g in range(c.G):
            for (x, f) in self.mfma_order():
                X = self.fX[set_][g][x]; W = self.fW[set_][g][f]; acc = self.acc[x][f]
                A, B = (W, X) if c.orient(f) == "mn" else (X, W)
                srcc = "0" if (first and g == 0) else vr(acc, c.AR)
                out.append((f"{op} {vr(acc,c.AR)}, {vr(A,4)}, {vr(B,4)}, {srcc}", list(rng(X,4)) + list(rng(W,4))))
        return out
    def group(self, set_, reads, extra, first=False, late=(), tail=()):
        a = self.a; c = self.c
        ms = self.mfmas(set_, first); n = len(ms)
        reads = list(reads); extra = list(extra); late = list(late); tail = list(tail)
        nearly = max(1, int(n*c.read_frac))
        nr = len(reads); ne = len(extra); nl = len(late); nt = len(tail)
        done_r = 0; done_e = 0; done_l = 0; done_t = 0; drained = False
        startn = int(c.extra_start*n); span = max(1, n - 1 - startn)
        i0 = max(nearly + 1, n - 1 - max(nt, int(0.3*n))) if nt else n
        def flush_scc():
            nonlocal done_e, done_l
            while done_e < ne: a.e(extra[done_e]); done_e += 1
            while done_l < nl - (0 if nt else 1) and nt: a.e(late[done_l]); done_l += 1
        for i, (ins, regs) in enumerate(ms):
            a.need(regs)
            if not c.no_mfma: a.e(ins)
            want = min(nr, -(-nr*(i+1)//nearly))
            while done_r < want: a.lds_rd(*reads[done_r]); done_r += 1
            if i >= startn:
                wante = min(ne, -(-ne*(i+1-startn)//span))
                while done_e < wante: a.e(extra[done_e]); done_e += 1
            if done_r == nr and i >= nearly and i < n-1 and done_l < nl:
                left = (min(i0, n-1) if nt else n - 1) - i
                cnt = -(-(nl - done_l)//max(left, 1))
                for _ in range(min(cnt, nl - done_l)):
                    if "s_cmp_lg" in late[done_l]:
                        while done_e < ne: a.e(extra[done_e]); done_e += 1
                    a.e(late[done_l]); done_l += 1
            if nt and i >= i0 and i < n-1:
                if not drained:
                    assert done_r == nr
                    a.lds_drain(); drained = True
                left = n - 1 - i
                cnt = -(-(nt - done_t)//left)
                for _ in range(cnt):
                    op = tail[done_t]
                    if "s_cmp_lg" in op: flush_scc()
                    if isinstance(op, tuple): a.lds_other(op[0])
                    else: a.e(op)
                    done_t += 1
        while done_r < nr: a.lds_rd(*reads[done_r]); done_r += 1
        while done_e < ne: a.e(extra[done_e]); done_e += 1
        while done_l < nl: a.e(late[done_l]); done_l += 1
        assert done_t == nt, (done_t, nt)
        assert done_e == ne
    def set_read_addrs(self):
        return [f"v_add_u32 v{r}, s{S_RD}, v{l}" for l, r in zip(self.vXl + self.vWl, self.vXa + self.vWa)]
    def adv_slot(self, s):
        c = self.c
        return f"s_add_u32 s{s}, s{s}, {c.SB}\ns_cmp_eq_u32 s{s}, {c.S*c.SB}\ns_cselect_b32 s{s}, 0, s{s}"

    def compute_loop(self, pre_issue=None, post_issue=None):
        c, a = self.c, self.a
        NG = c.NSUB//c.G; S = c.S; ns = c.nsteps
        own = not c.loaders
        nld = c.nld if (own and not c.no_dma) else 0
        if pre_issue: pre_issue()
        if own:
            a.e(f"s_mov_b32 s{S_WR}, 0")
            for s in range(S):
                for ins in self.dma_list(): a.e(ins)
                a.e(f"s_add_u32 s{S_WR}, s{S_WR}, {c.SB}")
        if post_issue: post_issue(S*nld)
        a.e(f"s_mov_b32 s{S_RD}, 0\ns_mov_b32 s{S_WR}, 0")
        for ins in self.set_read_addrs(): a.e(ins)
        a.lds_drain(f"vmcnt({(S-1)*nld})" if own else "")
        a.e("s_barrier")
        stamp(a, 1); stamp(a, 6, cyc=True)
        for r in self.reads(0, 0): a.lds_rd(*r)
        st = 0
        for g in range(NG-1):
            self.group(st, self.reads(st ^ 1, g+1), [], first=(g == 0)); st ^= 1
        def boundary(vm):
            a.lds_drain(f"vmcnt({vm})" if (vm is not None and own) else "")
            a.e("s_barrier")
        a.e(self.adv_slot(S_RD))
        for ins in self.set_read_addrs(): a.e(ins)
        boundary((S-2)*nld)
        par = st
        def body(t_issue, vm, loopctl=False):
            st = par
            dma = self.dma_list() if (t_issue and own) else []
            chunks = [dma[len(dma)*i//NG: len(dma)*(i+1)//NG] for i in range(NG)]
            for g in range(NG):
                extra = list(chunks[g]); late = []
                if g == NG-1:
                    late.append((f"s_mov_b32 s{S_WR}, s{S_RD}\n" if own else "") + self.adv_slot(S_RD))
                    late += self.set_read_addrs()
                    if loopctl: late.append(f"s_sub_u32 s{S_CNT}, s{S_CNT}, 1\ns_cmp_lg_u32 s{S_CNT}, 0")
                self.group(st, self.reads(st ^ 1, g), extra, late=late); st ^= 1
            a.lds_drain(f"vmcnt({vm})" if (vm is not None and own) else "")
        assert NG % 2 == 0
        nb = ns - S
        if nb > 0:
            a.e(f"s_mov_b32 s{S_CNT}, {nb}\ns_branch L_loop_{c.name}")
            a.label(f"L_top_{c.name}")
            a.e("s_barrier")
            a.label(f"L_loop_{c.name}")
            body(True, (S-2)*nld, loopctl=True)
            a.e(f"s_cbranch_scc1 L_top_{c.name}\ns_barrier")
        for t in range(max(nb, 0), ns-1):
            rem = max(0, (ns-1) - (t+2))
            body(False, min(rem, S-2)*nld if t+2 <= ns-1 else None)
            a.e("s_barrier")
        self.group(par, [], [])
        a.e("s_nop 15")
        stamp(a, 2); stamp(a, 7, cyc=True)

    def loader_loop(self):
        c, a = self.c, self.a
        S = c.S; ns = c.nsteps; nld = 0 if c.no_dma else c.nld
        a.e(f"s_mov_b32 s{S_WR}, 0")
        for s in range(S):
            for ins in self.dma_list(): a.e(ins)
            a.e(f"s_add_u32 s{S_WR}, s{S_WR}, {c.SB}")
        a.e(f"s_mov_b32 s{S_WR}, 0")
        a.e(f"s_waitcnt vmcnt({(S-1)*nld})\ns_barrier")
        a.e(f"s_waitcnt vmcnt({(S-2)*nld})\ns_barrier")
        nb = ns - S
        if nb > 0:
            a.e(f"s_mov_b32 s{S_CNT}, {nb}")
            a.label(f"L_lloop_{c.name}")
            for ins in self.dma_list(): a.e(ins)
            a.e(self.adv_slot(S_WR))
            a.e(f"s_waitcnt vmcnt({(S-2)*nld})\ns_barrier")
            a.e(f"s_sub_u32 s{S_CNT}, s{S_CNT}, 1\ns_cmp_lg_u32 s{S_CNT}, 0\ns_cbranch_scc1 L_lloop_{c.name}")
        for t in range(max(nb, 0), ns-1):
            rem = max(0, (ns-1) - (t+2))
            if t+2 <= ns-1: a.e(f"s_waitcnt vmcnt({min(rem, S-2)*nld})")
            a.e("s_barrier")
```

```python
from gemm2 import *
from hz import HZ
import common

NAME = "sequential_preLN__sliding_block__dense_activation_relu__prompt_kernel"
L_SPARE = 122880
L_SIDE = 159744
SD_MEAN1, SD_RSTD1, SD_CSQ = L_SIDE, L_SIDE+512, L_SIDE+1024
SD_MEAN2, SD_RSTD2, SD_CS1 = L_SIDE+2048, L_SIDE+2560, L_SIDE+3072
SD_CNT = L_SIDE + 3968
SD_TOK = SD_CNT + 32
SD_FULL, SD_FREE = L_SIDE + 4016, L_SIDE + 4032
S_TG = 77
LDS_TOTAL = 163840
AT_K = lambda hh: hh*49152
AT_V = lambda hh: hh*49152 + 24576
AT_Q0 = 98304
WS_KV = 4*MB
WS_ST1 = 36*MB; WS_CSQ = 36*MB + 64*1024; WS_CS1 = 36*MB + 512*1024; WS_ST2 = 37*MB
WS_XCH = 44*MB
WS_FLAG = 52*MB
FSTR = 32768
F_H, F_H1, F_O, F_S2, F_Q = [WS_FLAG + k*FSTR for k in range(5)]
F_KV, F_CS1 = WS_FLAG + 5*FSTR, WS_FLAG + 6*FSTR
F_P = WS_FLAG + 7*FSTR
OOB = 0x7ffffff0
WS_BYTES = 56*MB
S_WS, S_DBG, S_OUT = S_E0, S_E1, S_E2
POLL_MAX = 400000
QSCALE = (DH ** -0.5) * 1.4426950408889634

class VM:
    def __init__(s, a): s.a = a; s.q = []
    def iss(s, tag, n=1): s.q += [tag]*n
    def count_after(s, tag):
        idx = max(i for i, t in enumerate(s.q) if t == tag)
        return len(s.q) - 1 - idx
    def wait(s, tag, extra=""):
        if tag not in s.q: return
        n = min(63, s.count_after(tag))
        s.a.e(f"s_waitcnt vmcnt({n}) {extra}".strip())
        s.q = s.q[len(s.q)-n:] if n else []
    def drain(s): s.a.e("s_waitcnt vmcnt(0)"); s.q = []

class MK:
    def __init__(self, opts=None):
        self.o = dict(diag=False, pf_first=False, pf_weights=True, stop_after=None, tlb=False, codepf=True)
        self.o.update(opts or {})
        self.C = Asm(); self.L = Asm(); self.A = Asm(); self.tail = Asm()
        self.nbar = 0; self.nl = 0; self.lnames = []
    def bar(self):
        self.C.e("s_barrier"); self.L.e("s_barrier")
    def stamp(self, a, k):
        if self.o["diag"]:
            a.e(f"s_memrealtime s[88:89]\ns_waitcnt lgkmcnt(0)\nv_writelane_b32 v255, s88, {k}")
            a.lq = []
    def ptr(self, o): return (S_PTR+16, S_PTR+17) if o == A_WS else (S_PTR + o//4, S_PTR + o//4 + 1)
    def poll_test(self, a, vtmp, x2=False, token=True):
        if token: a.e(f"v_cmp_eq_u32 vcc, s1, v{vtmp}\ns_nop 4\ns_cmp_eq_u64 vcc, exec")
        else: a.e(f"v_cmp_ne_u32 vcc, 0, v{vtmp}\ns_nop 4\ns_cmp_eq_u64 vcc, exec")
    def poll(self, a, srd_, vaddr, vtmp, label, byte=False, x2=False, token=True):
        a.e(f"s_mov_b32 s{S_CNT}, {POLL_MAX}")
        a.label(f"L_poll_{label}")
        ld = f"buffer_load_dwordx2 {vr(vtmp,2)}" if x2 else f"buffer_load_{'ubyte' if byte else 'dword'} v{vtmp}"
        a.e(f"{ld}, v{vaddr}, s[{srd_}:{srd_+3}], 0 offen sc1\ns_waitcnt vmcnt(0)")
        self.poll_test(a, vtmp, x2, token)
        a.e(f"s_cbranch_scc1 L_polldone_{label}")
        a.e(f"s_sleep {self.o.get('sleep', 4)}\ns_sub_u32 s{S_CNT}, s{S_CNT}, 1\ns_cmp_lg_u32 s{S_CNT}, 0\ns_cbranch_scc1 L_poll_{label}")
        a.label(f"L_polldone_{label}")
    def one_lane_addr(self, a, dst, soff_reg, only_lw0):
        if only_lw0:
            a.e(f"s_cmp_eq_u32 s{S_LW}, 0\ns_cselect_b32 s{soff_reg}, s{soff_reg}, {hex(OOB)}")
        a.e(f"v_mov_b32 v{dst}, {hex(OOB)}\nv_writelane_b32 v{dst}, s{soff_reg}, 0")
    def signal(self, a, soff_code, vt0, vt1, only_lw0=False, srd_=None, byte=False):
        srd_ = S_WS if srd_ is None else srd_
        a.e(soff_code)
        self.one_lane_addr(a, vt1, S_T, only_lw0)
        a.e(f"v_mov_b32 v{vt0}, s1\nbuffer_store_dword v{vt0}, v{vt1}, s[{srd_}:{srd_+3}], 0 offen sc1")
    def off_ijw(self, base, wreg):
        return f"s_lshl_b32 s{S_T}, s{S_I}, 6\ns_lshl_b32 s{S_T2}, s{S_J}, 2\ns_add_u32 s{S_T}, s{S_T}, s{S_T2}\ns_add_u32 s{S_T}, s{S_T}, s{wreg}\ns_lshl_b32 s{S_T}, s{S_T}, 2\ns_add_u32 s{S_T}, s{S_T}, {base}"
    def off_ij(self, base):
        return f"s_lshl_b32 s{S_T}, s{S_I}, 4\ns_add_u32 s{S_T}, s{S_T}, s{S_J}\ns_lshl_b32 s{S_T}, s{S_T}, 7\ns_add_u32 s{S_T}, s{S_T}, {base}"
    def off_ji(self, base):
        return f"s_lshl_b32 s{S_T}, s{S_J}, 4\ns_add_u32 s{S_T}, s{S_T}, s{S_I}\ns_lshl_b32 s{S_T}, s{S_T}, 7\ns_add_u32 s{S_T}, s{S_T}, {base}"
    def signal_last(self, a, k, nwaves, soff_code, vt0, vt1, label):
        a.e(f"v_mov_b32 v{vt0}, {SD_CNT + 4*k}\nv_mov_b32 v{vt1}, 1\ns_mov_b64 exec, 1")
        a.e(f"ds_add_rtn_u32 v{vt0}, v{vt0}, v{vt1}")
        a.e(soff_code)
        a.e(f"s_waitcnt lgkmcnt(0)\nv_readfirstlane_b32 s{S_T2}, v{vt0}\nv_mov_b32 v{vt0}, 0\nv_mov_b32 v{vt1}, s1\ns_nop 1\ns_cmp_eq_u32 s{S_T2}, {nwaves-1}\ns_cbranch_scc0 L_notlast_{label}")
        a.e(f"buffer_store_dword v{vt1}, v{vt0}, s[{S_WS}:{S_WS+3}], s{S_T} offen sc1")
        a.label(f"L_notlast_{label}")
        a.e("s_mov_b64 exec, -1"); a.lq = []
    def group_words(self, a, dst, base, grp_sreg):
        a.e(f"s_lshl_b32 s{S_T}, s{grp_sreg}, 11\ns_add_u32 s{S_T}, s{S_T}, {base}\nv_and_b32 v{dst}, 15, v{self.vL}\nv_lshlrev_b32 v{dst}, 7, v{dst}\nv_add_u32 v{dst}, s{S_T}, v{dst}")
    def row_words(self, a, dst, base, stride_shift, lane_shift):
        a.e(f"s_lshl_b32 s{S_T}, s{S_I}, {stride_shift}\ns_add_u32 s{S_T}, s{S_T}, {base}\nv_lshlrev_b32 v{dst}, {lane_shift}, v{self.vL}\nv_add_u32 v{dst}, s{S_T}, v{dst}")
    def lane0(self, a, body, label):
        a.e(f"v_cmp_eq_u32 vcc, 0, v{self.vL}\ns_and_saveexec_b64 s[{S_EX}:{S_EX+1}], vcc")
        a.e(body)
        a.e(f"s_mov_b64 exec, s[{S_EX}:{S_EX+1}]")
    def only_lw0(self, a, label, fn):
        a.e(f"s_cmp_lg_u32 s{S_LW}, 0\ns_cbranch_scc1 L_skip_{label}")
        fn()
        a.label(f"L_skip_{label}")

    def cfgs(self):
        base = dict(shape=16, loaders=True, split=True, xflag="", xoff0=0, read_frac=0.5, extra_start=0.3, WM=2, WN=2)
        q = Cfg(name="q", TN=192, K=1024, Kx=1024, xsrc="rm", ldx=2048, korder="std", ldw=6144, qkvseg=True, S=3,
                fcol=lambda wn, f: wn*32 + (64*(f//2) + 16*(f % 2)), orient=lambda f: "nm" if f >= 4 else "mn",
                woff=lambda a: a.e(f"s_lshl_b32 s{S_WOFF}, s{S_J}, 7"), **base)
        o = Cfg(name="o", TN=64, K=1024, Kx=1024, xsrc="fn", korder="fn32", ldw=2048, S=self.o.get("So", 6),
                fcol=lambda wn, f: wn*32 + 16*f, orient=lambda f: "mn",
                woff=lambda a: a.e(f"s_lshl_b32 s{S_WOFF}, s{S_J}, 7"), **base)
        f1 = Cfg(name="f1", TN=224, K=1024, Kx=1024, xsrc="fn", korder="fn", ldw=7168, S=3,
                 fcol=lambda wn, f: (wn*128 + 16*f) if f < 6 else (wn*16 + 96), orient=lambda f: "mn",
                 woff=lambda a: a.e(f"s_mul_i32 s{S_WOFF}, s{S_J}, 448"), **base)
        def woff2(a):
            a.e(f"s_and_b32 s{S_T}, s{S_J}, 7\ns_lshl_b32 s{S_WOFF}, s{S_T}, 8\ns_lshr_b32 s{S_T}, s{S_J}, 3\ns_mul_i32 s{S_T}, s{S_T}, {1792*2048}\ns_add_u32 s{S_WOFF}, s{S_WOFF}, s{S_T}")
        f2 = Cfg(name="f2", TN=128, K=1792, Kx=3584, xsrc="fn", korder="fn", ldw=2048, S=4,
                 fcol=lambda wn, f: (wn*64 + S("kh")*32 + 16*f) if f < 2 else (wn*64 + (S("kh") ^ 1)*32 + 16*(f-2)), orient=lambda f: "mn", woff=woff2, **base)
        for c in (o, f1, f2): c.xflag = "sc1"
        q.read_frac = self.o.get("rfq", 0.75); o.read_frac = self.o.get("rfo", 0.5); f1.read_frac = self.o.get("rf1", 0.9); f2.read_frac = self.o.get("rf2", 0.8)
        if self.o.get("own2", True): f2.rot = True; f2.gap = 3
        if self.o.get("own1", True): f1.own1 = True
        q.rot = True; f1.rot = True; q.rotpos = self.o.get("qrot", 2); f1.rotpos = 0
        return q, o, f1, f2

    def xoff_fn(self, a, c, wsbase, khalf=False):
        a.e(f"s_mul_i32 s{S_XOFF}, s{S_I}, {(c.Kx//64)*16384}\ns_add_u32 s{S_XOFF}, s{S_XOFF}, {wsbase}")
        if khalf:
            a.e(f"s_lshr_b32 s{S_T}, s{S_J}, 3\ns_mul_i32 s{S_T}, s{S_T}, {28*16384}\ns_add_u32 s{S_XOFF}, s{S_XOFF}, s{S_T}")

    def build(self):
        C, L = self.C, self.L
        E = Asm()
        q, o, f1, f2 = self.cfgs()
        self.vL = 1; vt = [2, 3, 4, 5, 6, 7]; tmp2 = (8, 9); self.vL16 = 10; self.vZero = 11
        self.vt = vt
        gq, go, g1, g2 = [G(c, C, None, self.vL, vt) for c in (q, o, f1, f2)]
        self.g = (gq, go, g1, g2)
        E.e(f"s_cmp_ge_u32 s2, 256\ns_cbranch_scc1 L_end")
        if self.o.get("codepf", True):
            E.e("s_getpc_b64 s[96:97]")
            E.label("L_pc")
            E.e("v_lshlrev_b32 v2, 7, v0\ns_mov_b32 s3, L_end-L_pc\nv_min_u32 v2, s3, v2\nglobal_load_dword v254, v2, s[96:97]")
        E.e(f"s_load_dwordx16 s[{S_PTR}:{S_PTR+15}], s[0:1], 0\ns_load_dwordx2 s[{S_PTR+16}:{S_PTR+17}], s[0:1], 64")
        if self.o["diag"]:
            E.e("v_mov_b32 v255, 0\nv_mov_b32 v253, 0"); self.stamp(E, 0)
        E.e(f"s_and_b32 s{S_T}, s2, 7\ns_lshr_b32 s{S_T2}, s2, 3")
        if self.o.get("xmap", 1):
            E.e(f"s_and_b32 s{S_I}, s{S_T}, 1\ns_lshr_b32 s{S_J}, s{S_T}, 1\ns_lshl_b32 s{S_I}, s{S_I}, 3\ns_lshl_b32 s{S_J}, s{S_J}, 2")
        else:
            E.e(f"s_lshr_b32 s{S_I}, s{S_T}, 2\ns_and_b32 s{S_J}, s{S_T}, 3\ns_lshl_b32 s{S_I}, s{S_I}, 3\ns_lshl_b32 s{S_J}, s{S_J}, 2")
        E.e(f"s_lshr_b32 s{S_T}, s{S_T2}, 2\ns_and_b32 s{S_T2}, s{S_T2}, 3\ns_add_u32 s{S_I}, s{S_I}, s{S_T}\ns_add_u32 s{S_J}, s{S_J}, s{S_T2}")
        E.e(f"v_and_b32 v{self.vL}, 63, v0\nv_lshrrev_b32 v2, 6, v0\ns_nop 0\nv_readfirstlane_b32 s{S_WV}, v2\nv_lshlrev_b32 v{self.vL16}, 4, v{self.vL}\nv_mov_b32 v{self.vZero}, 0\ns_nop 1")
        E.e(f"s_and_b32 s{S_LW}, s{S_WV}, 3\ns_lshr_b32 s{S_WM}, s{S_LW}, 1\ns_and_b32 s{S_WN}, s{S_LW}, 1")
        E.e(f"s_cmp_ge_u32 s{S_WV}, 4\ns_cbranch_scc1 L_loader")
        lv = Regs(12, 64)
        gq.alloc_loader(lv); go.alloc_loader(lv); g1.alloc_loader(lv); g2.alloc_loader(lv)
        self.lv_end = lv.n
        self.phase_q(gq, g1)
        self.attention()
        stop = self.o["stop_after"]
        self.phase_o(go)
        self.phase_f1(g1)
        self.phase_f2(g2)
        if self.o["diag"]:
            self.stamp(C, 15)
            C.e(f"s_cmp_lg_u32 s{S_WV}, 0\ns_cbranch_scc1 L_end")
            C.e(f"s_lshl_b32 s{S_T}, s2, 7\ns_add_u32 s{S_T}, s{S_T}, {common.WS_STAMP}\nv_lshlrev_b32 v2, 2, v{self.vL}")
            C.e(f"v_cmp_gt_u32 vcc, 32, v{self.vL}\ns_and_saveexec_b64 s[{S_EX}:{S_EX+1}], vcc")
            C.e(f"buffer_store_dword v255, v2, s[{S_WS}:{S_WS+3}], s{S_T} offen")
            if self.o.get("dbgout") is not None:
                C.e(f"s_cmp_lg_u32 s2, {self.o['dbgout']}\ns_cbranch_scc1 L_end")
                srd(C, S_DBG, *self.ptr(A_DBG), 256)
                C.e(f"v_readlane_b32 s{S_T}, v255, 0\ns_nop 3\nv_subrev_u32 v255, s{S_T}, v255\nv_cmp_gt_u32 vcc, 16, v{self.vL}\ns_nop 1\ns_and_b64 exec, exec, vcc\nv_cmp_lt_u32 vcc, 0, v{self.vL}\ns_nop 1\ns_and_b64 exec, exec, vcc")
                C.e(f"buffer_store_dword v255, v2, s[{S_DBG}:{S_DBG+3}], 0 offen")
        C.e("s_branch L_end")
        if self.o["diag"]:
            L.e(f"s_cmp_lg_u32 s{S_WV}, 4\ns_cbranch_scc1 L_end")
            L.e(f"s_lshl_b32 s{S_T}, s2, 9\ns_add_u32 s{S_T}, s{S_T}, {common.WS_STAMP + 131072}\nv_lshlrev_b32 v2, 2, v{self.vL}")
            L.e(f"buffer_store_dword v255, v2, s[{S_WS}:{S_WS+3}], s{S_T} offen\nbuffer_store_dword v253, v2, s[{S_WS}:{S_WS+3}], s{S_T} offen offset:256")
        txt = head(NAME) + E.text() + C.text() + "L_loader:\n" + L.text() + "  s_branch L_end\n" + self.A.text() + self.tail.text() + "L_end:\n  s_endpgm\n" + kd(NAME)
        return txt

    def srds_common(self, a):
        a.e("s_waitcnt lgkmcnt(0)")
        srd(a, S_WS, *self.ptr(A_WS), WS_BYTES, self.o.get('wsoff', 0))
        srd(a, S_DBG, *self.ptr(A_DBG), 256)

    def phase_q(self, g, g1):
        C, L, c = self.C, self.L, g.c
        vL, vt = self.vL, self.vt
        g.bind(L, vL, vt, (8, 9)); vm = VM(L)
        em = g.em
        L.e(f"s_setprio {3 if self.o.get('lfirst', True) else 1}")
        g.setup_dma()
        if self.o.get("lpro"): self.lstamp("setup")
        L.e("s_waitcnt lgkmcnt(0)")
        srd(L, S_XSRD, *self.ptr(A_X), M*D*2)
        srd(L, S_WSRD, *self.ptr(A_WQKV), D*3*D*2)
        def issue(t):
            for ins in g.dma_list(t): L.e(ins)
            vm.iss(("st", t), c.nld)
        for ins in g.rot_init(): L.e(ins)
        L.e(f"s_mov_b32 s{S_WR}, 0")
        for s in range(2):
            issue(s); L.e(f"s_add_u32 s{S_WR}, s{S_WR}, {c.SB}")
            if s == 0: L.e("s_setprio 1")
            if self.o.get("lpro"): self.lstamp("iss")
        srd(L, S_WS, *self.ptr(A_WS), WS_BYTES, self.o.get('wsoff', 0)); srd(L, S_DBG, *self.ptr(A_DBG), 256)
        sv = Regs(64, 250)
        ones = sv.alloc(4, 4); wf = [sv.alloc(4, 4) for _ in range(8)]; sacc = [sv.alloc(4, 4) for _ in range(4)]
        vS = [sv.alloc() for _ in range(8)]; ldr = sv.alloc(32, 4)
        t0, t1, t2 = vt[0:3]
        L.e(f"v_lshlrev_b32 v{t0}, 2, v{vL}\nv_add_u32 v{t0}, {SD_CNT}, v{t0}\nv_cmp_gt_u32 vcc, 8, v{vL}\ns_and_saveexec_b64 s[{S_EX}:{S_EX+1}], vcc")
        L.lds_other(f"ds_write_b32 v{t0}, v{self.vZero}"); L.e(f"s_mov_b64 exec, s[{S_EX}:{S_EX+1}]")
        for k in range(4): L.e(f"v_mov_b32 v{ones+k}, 0x3f803f80")
        vL4 = sv.alloc(); rq = [sv.alloc() for _ in range(4)]
        late_cs = c.rotpos > 0 and self.o.get("latecs", True)
        if not late_cs:
            L.e(f"v_lshlrev_b32 v{vL4}, 2, v{vL}")
            cls_q = self.csum_setup(g, 3, rq)
        csq_code = f"s_lshl_b32 s{S_T}, s{S_I}, 4\ns_add_u32 s{S_T}, s{S_T}, s{S_J}\ns_mul_i32 s{S_T2}, s{S_T}, 768\ns_mul_i32 s{S_T}, s{S_LW}, 192\ns_add_u32 s{S_T2}, s{S_T2}, s{S_T}\ns_add_u32 s{S_T2}, s{S_T2}, {WS_CSQ}"
        FLQ = 2 if self.o.get("flagsq", False) else 0
        if FLQ: self.lflag_init()
        if self.o.get("lpro"): self.lstamp("pre")
        vm.wait(("st", 0))
        if self.o.get("lpro"): self.lstamp("land")
        L.lds_drain(); self.bar_L_only()
        issue(2); L.e(f"s_mov_b32 s{S_WR}, 0")
        if late_cs:
            L.e(f"v_lshlrev_b32 v{vL4}, 2, v{vL}")
            cls_q = self.csum_setup(g, 3, rq)
        RP = c.rotpos
        if RP == 0: self.csum_reads(3, cls_q, rq, wf)
        vm.wait(("st", 1)); L.lds_drain(); self.bar_L_only()
        ns, S = c.nsteps, c.S
        def hook(t):
            if RP > 0 and t == RP - 1: self.csum_reads(3, cls_q, rq, wf)
            if t == RP: self.csum_finish(vm, 3, 12, ones, wf, sacc, vL4, csq_code)
            if t == RP + 3 and self.o.get("qsigL", True):
                if FLQ:
                    L.e(f"v_mov_b32 v{vS[3]}, {SD_FULL}"); self.lwait(vS[3], RP + 5, "qsig")
                self.signal(L, self.off_ij(F_Q), vS[0], vS[1], only_lw0=True); vm.iss("sig")
            if self.o.get("tokL", True):
                if t == 0:
                    L.e(f"buffer_load_dword v{vS[4]}, v{self.vZero}, s[{S_DBG}:{S_DBG+3}], 0 offen sc1"); vm.iss("tok")
                if t == 2:
                    vm.wait("tok")
                    self.poll_test(L, vS[4], token=False)
                    L.e("s_cbranch_scc1 L_tokready")
                    self.poll(L, S_DBG, self.vZero, vS[4], "tok", token=False)
                    L.label("L_tokready")
                    L.e(f"v_readfirstlane_b32 s1, v{vS[4]}\nv_mov_b32 v{vS[5]}, {SD_TOK}\nds_write_b32 v{vS[5]}, v{vS[4]}")
            elif t == 1:
                L.e(f"v_mov_b32 v{vS[2]}, {SD_TOK}\nds_read_b32 v{vS[2]}, v{vS[2]}\ns_waitcnt lgkmcnt(0)\nv_readfirstlane_b32 s1, v{vS[2]}")
            if t == self.o.get("qpoll", 9):
                t0, t1 = vt[0:2]
                L.e(f"v_and_b32 v{t0}, 15, v{vL}\ns_lshl_b32 s{S_T}, s{S_I}, 4\nv_add_u32 v{t1}, s{S_T}, v{t0}\nv_lshlrev_b32 v{t0}, 4, v{t0}\nv_add_u32 v{t0}, s{S_J}, v{t0}")
                L.e(f"v_and_b32 v{vS[7]}, 16, v{vL}\nv_cmp_eq_u32 vcc, 0, v{vS[7]}\ns_nop 1\nv_cndmask_b32 v{vS[7]}, v{t0}, v{t1}, vcc\nv_lshlrev_b32 v{vS[7]}, 7, v{vS[7]}\nv_add_u32 v{vS[7]}, {F_Q}, v{vS[7]}")
                L.e(f"buffer_load_dword v{vS[6]}, v{vS[7]}, s[{S_WS}:{S_WS+3}], 0 offen sc1"); vm.iss("pollq")
            if t == 11:
                vm.wait("pollq")
                self.poll_test(L, vS[6])
                L.e("s_cbranch_scc1 L_qready")
                self.poll(L, S_WS, vS[7], vS[6], "q")
                L.label("L_qready")
                self.colsum_loads(L, vm, "qld", ldr, vS[1], vS[2], 12, 768, f"s_mul_i32 s{S_T2}, s{S_J}, 768\ns_mul_i32 s{S_T}, s{S_LW}, 192\ns_add_u32 s{S_T2}, s{S_T2}, s{S_T}\ns_add_u32 s{S_T2}, s{S_T2}, {WS_CSQ}")
                L.e(f"s_lshl_b32 s{S_T2}, s{S_I}, 7\ns_lshl_b32 s{S_T}, s{S_LW}, 5\ns_add_u32 s{S_T2}, s{S_T2}, s{S_T}\ns_lshl_b32 s{S_T2}, s{S_T2}, 3\ns_add_u32 s{S_T2}, s{S_T2}, {WS_ST1}")
                L.e(f"v_and_b32 v{vS[3]}, 31, v{vL}\nv_lshlrev_b32 v{vS[3]}, 3, v{vS[3]}\nbuffer_load_dwordx2 {vr(ldr+16,2)}, v{vS[3]}, s[{S_WS}:{S_WS+3}], s{S_T2} offen sc1")
                vm.iss("qld", 1)
            if t == 13:
                vm.wait("qld")
                if self.o.get("lowhooks", True): L.e("s_setprio 0")
                self.colsum_reduce(L, ldr, ldr+20, vS[1], 12, SD_CSQ, 192)
                if self.o.get("lowhooks", True): L.e("s_setprio 1")
                L.e(f"v_and_b32 v{vS[3]}, 31, v{vL}\ns_lshl_b32 s{S_T}, s{S_LW}, 5\nv_add_u32 v{vS[3]}, s{S_T}, v{vS[3]}\nv_lshlrev_b32 v{vS[3]}, 2, v{vS[3]}\nv_add_u32 v{vS[3]}, {SD_MEAN1}, v{vS[3]}")
                L.e(f"ds_write_b32 v{vS[3]}, v{ldr+16}\nds_write_b32 v{vS[3]}, v{ldr+17} offset:512")
                L.e("s_waitcnt lgkmcnt(0)"); L.lq = []
        for t in range(ns-1):
            if t + S <= ns-1:
                if FLQ and t > FLQ: self.lwait(46, t + 2, f"q{t}")
                issue(t+S); L.e(g.adv_slot(S_WR))
            hook(t)
            if t+2 <= ns-1 and ("st", t+2) in vm.q: vm.wait(("st", t+2))
            L.lds_drain()
            if FLQ and FLQ - 1 <= t <= ns-3: self.lfull(t + 3)
            if not FLQ or t < FLQ or t == ns-2:
                L.lds_drain(); self.bar_L_only()
            else: self.lstamp()
        g.bind(C, vL, vt, (8, 9))
        cv = Regs(12, 254); g.alloc_compute(cv)
        g.a = C
        C.e("s_setprio 2")
        a0 = g.acc[0][0]; xr = a0; un = a0 + 16; vS = [a0 + 48 + k for k in range(6)]
        C.e("s_waitcnt lgkmcnt(0)")
        self.stamp(C, 16)
        srd(C, S_XSRD, *self.ptr(A_X), M*D*2)
        srd(C, S_DBG, *self.ptr(A_DBG), 256)
        C.e(f"s_or_b32 s{S_T}, s2, s{S_LW}\ns_cmp_lg_u32 s{S_T}, 0\ns_cbranch_scc1 L_notok")
        C.e(f"s_memrealtime s[88:89]\ns_waitcnt lgkmcnt(0)\ns_or_b32 s88, s88, 1\nv_mov_b32 v{vt[0]}, s88")
        self.lane0(C, f"buffer_store_dword v{vt[0]}, v{self.vZero}, s[{S_DBG}:{S_DBG+3}], 0 offen sc1", "tok")
        C.label("L_notok")
        C.e(f"s_lshl_b32 s{S_T}, s{S_I}, 7\ns_lshl_b32 s{S_T2}, s{S_J}, 3\ns_add_u32 s{S_T}, s{S_T}, s{S_T2}\ns_lshl_b32 s{S_T2}, s{S_LW}, 1\ns_add_u32 s71, s{S_T}, s{S_T2}\ns_lshl_b32 s{S_T}, s71, 11")
        for r in range(2):
            for p in range(2):
                C.e(f"buffer_load_dwordx4 {vr(xr+8*r+4*p,4)}, v{self.vL16}, s[{S_XSRD}:{S_XSRD+3}], s{S_T} offen offset:{r*2048+p*1024}")
        tlb2 = self.o.get("tlb2", False)
        if tlb2:
            t0, t1 = vt[0:2]
            C.e(f"s_cmp_lg_u32 s{S_LW}, 3\ns_cbranch_scc1 L_notlb\nv_lshlrev_b32 v{t0}, 21, v{vL}")
            for arg, size in ((A_WS, 54*MB), (A_WQKV, D*3*D*2), (A_WO, D*D*2), (A_W1, D*DFF*2), (A_W2, DFF*D*2), (A_OUT, M*D*2)):
                p = self.ptr(arg)[0]
                C.e(f"v_min_u32 v{t1}, {hex(size - 4)}, v{t0}\nglobal_load_dword v254, v{t1}, s[{p}:{p+1}]")
            C.label("L_notlb")
        slabpf = self.o.get("slabpf", False)
        if slabpf:
            t0, t1, t2 = vt[0:3]
            mg3, sh3 = magic_div(3, 256)
            srd(C, S_E3, *self.ptr(A_WQKV), D*3*D*2)
            C.e(f"s_mul_i32 s{S_T}, s{S_LW}, 48\nv_min_u32 v{t0}, 47, v{vL}\nv_add_u32 v{t0}, s{S_T}, v{t0}\nv_mul_u32_u24 v{t1}, {mg3}, v{t0}\nv_lshrrev_b32 v{t1}, {sh3}, v{t1}")
            C.e(f"v_mul_u32_u24 v{t2}, 3, v{t1}\nv_sub_u32 v{t0}, v{t0}, v{t2}\nv_lshlrev_b32 v{t0}, 11, v{t0}\nv_mul_u32_u24 v{t1}, 6144, v{t1}\nv_add_u32 v{t0}, v{t0}, v{t1}")
            C.e(f"s_mul_i32 s{S_T}, s{S_I}, {64*6144}\ns_lshl_b32 s{S_T2}, s{S_J}, 7\ns_add_u32 s{S_T}, s{S_T}, s{S_T2}\nbuffer_load_dword v254, v{t0}, s[{S_E3}:{S_E3+3}], s{S_T} offen")
        srd(C, S_WS, *self.ptr(A_WS), WS_BYTES, self.o.get('wsoff', 0))
        g.setup_reads()
        C.e(f"s_lshl_b32 s{S_T}, s2, 2\ns_add_u32 s{S_T}, s{S_T}, s{S_LW}\ns_mul_i32 s{S_T2}, s{S_T}, 43691\ns_lshr_b32 s{S_T2}, s{S_T2}, 19\ns_mul_i32 s{S_T2}, s{S_T2}, 12\ns_sub_u32 s{S_T}, s{S_T}, s{S_T2}\ns_add_u32 s70, s{S_T}, 1" if False else "s_nop 0")
        self.stamp(C, 17)
        if tlb2:
            C.e(f"s_cmp_lg_u32 s{S_LW}, 3\ns_cbranch_scc1 L_tw0\ns_waitcnt vmcnt(6)\ns_branch L_tw1\nL_tw0:\ns_waitcnt vmcnt(0)\nL_tw1:")
        else: C.e(f"s_waitcnt vmcnt({1 if slabpf else 0})")
        self.stamp(C, 18)
        vtok = cv.alloc()
        if not self.o.get("tokL", True):
            C.e(f"buffer_load_dword v{vtok}, v{self.vZero}, s[{S_DBG}:{S_DBG+3}], 0 offen sc1")
        for r in range(2):
            for d in range(8):
                C.e(f"v_lshlrev_b32 v{un+16*r+2*d}, 16, v{xr+8*r+d}\nv_and_b32 v{un+16*r+2*d+1}, 0xffff0000, v{xr+8*r+d}")
        def tree(dst, src):
            pass
        for r in range(2): C.e(f"v_add_f32 v{vS[r]}, v{un+16*r}, v{un+16*r+1}\nv_add_f32 v{vS[2+r]}, v{un+16*r+2}, v{un+16*r+3}")
        for k in range(4, 16, 2):
            for r in range(2): C.e(f"v_add_f32 v{vS[r]}, v{vS[r]}, v{un+16*r+k}\nv_add_f32 v{vS[2+r]}, v{vS[2+r]}, v{un+16*r+k+1}")
        for r in range(2): C.e(f"v_add_f32 v{vS[r]}, v{vS[r]}, v{vS[2+r]}")
        def allred2(x0, x1, ta, tb):
            for p in ["quad_perm:[1,0,3,2]", "quad_perm:[2,3,0,1]", "row_half_mirror", "row_mirror"]:
                C.e("s_nop 0")
                for x in (x0, x1): C.e(f"v_add_f32_dpp v{x}, v{x}, v{x} {p} row_mask:0xf bank_mask:0xf")
            for sw in ("v_permlane16_swap_b32", "v_permlane32_swap_b32"):
                C.e(f"v_mov_b32 v{ta}, v{x0}\nv_mov_b32 v{tb}, v{x1}\ns_nop 0\n{sw} v{ta}, v{x0}\n{sw} v{tb}, v{x1}\ns_nop 0\nv_add_f32 v{x0}, v{x0}, v{ta}\nv_add_f32 v{x1}, v{x1}, v{tb}")
        C.e("s_nop 0")
        allred2(vS[0], vS[1], vS[4], vS[5])
        for r in range(2): C.e(f"v_mul_f32 v{vS[r]}, {fhex(1/1024)}, v{vS[r]}")
        for k in range(16):
            for r in range(2): C.e(f"v_sub_f32 v{un+16*r+k}, v{un+16*r+k}, v{vS[r]}")
        for r in range(2): C.e(f"v_mul_f32 v{vS[2+r]}, v{un+16*r}, v{un+16*r}")
        for k in range(1, 16):
            for r in range(2): C.e(f"v_fmac_f32 v{vS[2+r]}, v{un+16*r+k}, v{un+16*r+k}")
        C.e("s_nop 0")
        allred2(vS[2], vS[3], vS[4], vS[5])
        for r in range(2): C.e(f"v_mul_f32 v{vS[2+r]}, {fhex(1/1024)}, v{vS[2+r]}\nv_add_f32 v{vS[2+r]}, {fhex(EPS)}, v{vS[2+r]}")
        for r in range(2): C.e(f"v_rsq_f32 v{vS[2+r]}, v{vS[2+r]}")
        C.e(f"v_mov_b32 v{un}, v{vS[0]}\nv_mov_b32 v{un+2}, v{vS[1]}\nv_mov_b32 v{un+1}, v{vS[2]}\nv_mov_b32 v{un+3}, v{vS[3]}")
        C.e(f"s_lshl_b32 s{S_T}, s71, 3\ns_add_u32 s{S_T}, s{S_T}, {WS_ST1}")
        self.lane0(C, f"buffer_store_dwordx4 {vr(un,4)}, v{self.vZero}, s[{S_WS}:{S_WS+3}], s{S_T} offen sc1", "st1")
        self.stamp(C, 19)
        nextra = 0
        t0, t1 = vt[0:2]
        if self.o.get("sentinel", True) and self.o.get("markat", "o") == "q":
            mk4 = a0 + 60
            for k in range(4): C.e(f"v_mov_b32 v{mk4+k}, -1")
            C.e(f"s_lshl_b32 s{S_T}, s{S_I}, 4\ns_add_u32 s{S_T}, s{S_T}, s{S_J}\ns_lshl_b32 s{S_T}, s{S_T}, 15\ns_lshl_b32 s{S_T2}, s{S_LW}, 13\ns_add_u32 s{S_T}, s{S_T}, s{S_T2}\ns_add_u32 s{S_T}, s{S_T}, {WS_XCH}")
            for n in range(8):
                if n == 4: C.e(f"s_add_u32 s{S_T}, s{S_T}, 4096")
                C.e(f"buffer_store_dwordx4 {vr(mk4,4)}, v{self.vL16}, s[{S_WS}:{S_WS+3}], s{S_T} offen offset:{(n & 3)*1024} sc1"); nextra += 1
        if self.o.get("tlb", True):
            C.e(f"v_lshlrev_b32 v{t0}, 21, v{vL}")
            for arg, size in ((A_WQKV, D*3*D*2), (A_X, M*D*2), (A_WS, 54*MB), (A_WO, D*D*2), (A_W1, D*DFF*2), (A_W2, DFF*D*2), (A_OUT, M*D*2)):
                p = self.ptr(arg)[0]
                C.e(f"v_min_u32 v{t1}, {hex(size - 4)}, v{t0}\nglobal_load_dword v254, v{t1}, s[{p}:{p+1}]"); nextra += 1
        pfo = cv.alloc(); pf1 = cv.alloc()
        C.e(f"s_lshl_b32 s{S_T}, s2, 2\ns_add_u32 s{S_T}, s{S_T}, s{S_LW}")
        C.e(f"s_lshl_b32 s{S_T2}, s{S_T}, 4\nv_and_b32 v{pfo}, 15, v{vL}\nv_add_u32 v{pfo}, s{S_T2}, v{pfo}\nv_lshlrev_b32 v{pfo}, 7, v{pfo}")
        C.e(f"s_mul_i32 s{S_T2}, s{S_T}, 56\nv_min_u32 v{pf1}, 55, v{vL}\nv_add_u32 v{pf1}, s{S_T2}, v{pf1}\nv_lshlrev_b32 v{pf1}, 7, v{pf1}")
        def hookB(a):
            p = self.ptr(A_WO)[0]; a.e(f"global_load_dword v254, v{pfo}, s[{p}:{p+1}]")
            if self.o.get("pf_w1", False):
                p = self.ptr(A_W1)[0]; a.e(f"global_load_dword v254, v{pf1}, s[{p}:{p+1}]")
            if self.o.get("pf_w2q", False):
                p = self.ptr(A_W2)[0]; a.e(f"global_load_dword v254, v{pf1}, s[{p}:{p+1}]")
        C.e(f"s_and_b32 s{S_T}, s2, 56\ns_lshr_b32 s{S_T}, s{S_T}, 3\ns_add_u32 s71, s{S_T}, 3")
        def hookS(a):
            a.e(f"s_cmp_lg_u32 s{S_LW}, 0\ns_cbranch_scc1 L_nosigq")
            self.signal(a, self.off_ij(F_Q), vt[0], vt[1])
            a.label("L_nosigq")
        hk = {} if self.o.get("qsigL", True) else {14 - (3 + c.rotpos): hookS}
        if self.o["pf_weights"]: hk["s71"] = hookB
        def peel_end():
            C.e(f"s_waitcnt vmcnt({nextra})")
            if self.o.get("tokL", True): return
            self.poll_test(C, vtok, token=False)
            C.e("s_cbranch_scc1 L_tokready")
            self.poll(C, S_DBG, self.vZero, vtok, "tok", token=False)
            C.label("L_tokready")
            C.e(f"v_readfirstlane_b32 s1, v{vtok}\nv_mov_b32 v{vt[0]}, {SD_TOK}\nds_write_b32 v{vt[0]}, v{vtok}\ns_waitcnt lgkmcnt(0)")
        self.cloop(g, stamps=(1, 2), hooks=hk, peel_first=peel_end, flags=(2 if self.o.get("flagsq", False) else 0), cv=cv)
        self.epi_q(g, cv)

    def bar_L_only(self):
        self.L.e("s_barrier"); self.lstamp()
    def lstamp(self, tag=''):
        if self.o["diag"] and self.o.get("lst") and self.nl < 128:
            self.L.e(f"s_memrealtime s[88:89]\ns_waitcnt lgkmcnt(0)\nv_writelane_b32 v{255 - 2*(self.nl//64)}, s88, {self.nl % 64}"); self.nl += 1; self.L.lq = []
            self.lnames.append(tag)
    def setup_w_only(self, g):
        g.w_addresses()

    def xgroups(self, a, regs, tmp):
        for sw in ("v_permlane16_swap_b32", "v_permlane32_swap_b32"):
            for k, r in enumerate(regs): a.e(f"v_mov_b32 v{tmp+k}, v{r}")
            a.e("s_nop 1")
            for k, r in enumerate(regs): a.e(f"{sw} v{tmp+k}, v{r}")
            a.e("s_nop 1")
            for k, r in enumerate(regs): a.e(f"v_add_f32 v{r}, v{r}, v{tmp+k}")
    def colsum_loads(self, a, vm, tag, dst, vaddr, vtmp, nlanes, rowbytes, base_code):
        vL = self.vL
        a.e(base_code)
        a.e(f"v_lshrrev_b32 v{vaddr}, 4, v{vL}\nv_mul_u32_u24 v{vaddr}, {16*rowbytes}, v{vaddr}\nv_and_b32 v{vtmp}, 15, v{vL}\nv_cmp_gt_u32 vcc, {nlanes}, v{vtmp}\nv_lshlrev_b32 v{vtmp}, 4, v{vtmp}\nv_add_u32 v{vaddr}, v{vaddr}, v{vtmp}\nv_mov_b32 v{vtmp}, {hex(OOB)}\nv_cndmask_b32 v{vaddr}, v{vtmp}, v{vaddr}, vcc")
        for n in range(4):
            a.e(f"buffer_load_dwordx4 {vr(dst+4*n,4)}, v{vaddr}, s[{S_WS}:{S_WS+3}], s{S_T2} offen sc1\ns_add_u32 s{S_T2}, s{S_T2}, {4*16*rowbytes}")
        vm.iss(tag, 4)
    def colsum_reduce(self, a, src, tmp, vaddr, nlanes, lds_base, wave_bytes):
        vL = self.vL
        for k in range(4):
            a.e(f"v_add_f32 v{src+k}, v{src+k}, v{src+4+k}\nv_add_f32 v{src+8+k}, v{src+8+k}, v{src+12+k}")
        for k in range(4): a.e(f"v_add_f32 v{src+k}, v{src+k}, v{src+8+k}")
        self.xgroups(a, [src+k for k in range(4)], tmp)
        a.e(f"s_mul_i32 s{S_T}, s{S_LW}, {wave_bytes}\ns_add_u32 s{S_T}, s{S_T}, {lds_base}\nv_lshlrev_b32 v{vaddr}, 4, v{vL}\nv_add_u32 v{vaddr}, s{S_T}, v{vaddr}")
        a.e(f"v_cmp_gt_u32 vcc, {nlanes}, v{vL}\ns_and_saveexec_b64 s[{S_EX}:{S_EX+1}], vcc\nds_write_b128 v{vaddr}, {vr(src,4)}\ns_mov_b64 exec, s[{S_EX}:{S_EX+1}]")
    def slab_plan(self, gg, per):
        cc = gg.c; l = gg.l; lw = gg.lw
        def ex(k, ks, j):
            row = gg.wrow(ks, j)
            ch = (lw*per + k)*2 + ((l >> 1) & 1)
            return row*cc.RS + ((ch ^ gg.wswz(row)) << 4) + (l & 1)*8 + cc.XB + cc.rotpos*cc.SB
        keys = [(k, ks, j) for k in range(per) for ks in range(2) for j in range(2)]
        base = []; cls = {}
        for key in keys:
            t = [ex(*key).ev({"l": ll, "lw": w}) for w in range(4) for ll in range(64)]
            for ci, (bk, bt) in enumerate(base):
                ds = {p - q_ for p, q_ in zip(t, bt)}
                if len(ds) == 1 and 0 <= min(ds) < 65536: cls[key] = (ci, ds.pop()); break
            else:
                base.append((key, t)); cls[key] = (len(base)-1, 0)
        for w in range(4):
            for key in keys:
                assert banks.conflicts_b64([ex(*key).ev({"l": ll, "lw": w}) for ll in range(64)]) == 0
        return [ex(*b[0]) for b in base], cls
    def csum_setup(self, gg, per, regs):
        bases, cls = self.slab_plan(gg, per)
        assert len(bases) <= len(regs)
        gg.bind(self.L, self.vL, self.vt, (8, 9))
        if self.o.get("cscse", True) and len(bases) == per:
            cc = gg.c; l = gg.l; lw = gg.lw; em = gg.em
            row = gg.wrow(0, 0); v8, v9 = 8, 9
            em.vemit(row*cc.RS + (l & 1)*8 + cc.XB + cc.rotpos*cc.SB, v8); em.vr["cm"] = v8
            em.vemit(gg.wswz(row), v9); em.vr["sw"] = v9
            exprs = [V("cm") + (((lw*per + k)*2 + ((l >> 1) & 1) ^ V("sw")) << 4) for k in range(per)]
            ok = all(e.ev({"l": ll, "lw": w, "cm": (row*cc.RS + (l & 1)*8 + cc.XB + cc.rotpos*cc.SB).ev({"l": ll}), "sw": gg.wswz(row).ev({"l": ll})}) == b.ev({"l": ll, "lw": w})
                     for e, b in zip(exprs, bases) for w in range(4) for ll in range(64))
            assert ok
            for e, r in zip(exprs, regs): em.vemit(e, r)
            return cls
        for b, r in zip(bases, regs): gg.em.vemit(b, r)
        return cls
    def csum_reads(self, per, cls, regs, wf):
        L = self.L
        for k in range(per):
            for ks in range(2):
                for j in range(2):
                    ci, imm = cls[(k, ks, j)]; d = wf[2*k+ks] + 2*j
                    L.lds_rd(f"ds_read_b64_tr_b16 {vr(d,2)}, v{regs[ci]} offset:{imm}", rng(d, 2))
    def csum_finish(self, vm, per, nt_total, ones, wf, sacc, vL4, colbase_code):
        L = self.L
        for k in range(4): L.e(f"v_mov_b32 v{ones+k}, 0x3f803f80")
        L.e(colbase_code)
        for k in range(per): L.e(f"v_mfma_f32_16x16x32_bf16 {vr(sacc[k],4)}, {vr(ones,4)}, {vr(wf[2*k],4)}, 0")
        for k in range(per): L.e(f"v_mfma_f32_16x16x32_bf16 {vr(sacc[k],4)}, {vr(ones,4)}, {vr(wf[2*k+1],4)}, {vr(sacc[k],4)}")
        L.e(f"v_cmp_gt_u32 vcc, 16, v{self.vL}\ns_nop 7\ns_and_saveexec_b64 s[{S_EX}:{S_EX+1}], vcc")
        for k in range(per):
            if (3*per + k) == nt_total:
                L.e(f"s_cmp_eq_u32 s{S_LW}, 3\ns_cselect_b32 s{S_T2}, {hex(OOB - 4096)}, s{S_T2}")
            L.e(f"buffer_store_dword v{sacc[k]}, v{vL4}, s[{S_WS}:{S_WS+3}], s{S_T2} offen offset:{k*64} sc1"); vm.iss("cst")
        L.e(f"s_mov_b64 exec, s[{S_EX}:{S_EX+1}]")

    def prefetch_first(self, a, cv):
        vL = self.vL; t0, t1, t2 = self.vt[0:3]; d = cv.alloc(4)
        srd(a, S_XSRD, *self.ptr(A_X), M*D*2); srd(a, S_WSRD, *self.ptr(A_WQKV), D*3*D*2)
        a.e(f"s_lshr_b32 s{S_T}, s2, 3\ns_lshl_b32 s{S_T}, s{S_T}, 2\ns_add_u32 s{S_T}, s{S_T}, s{S_LW}")
        a.e(f"s_mul_i32 s{S_T2}, s{S_T}, 96")
        mg, sh = magic_div(12, 12288); mg3, sh3 = magic_div(3, 12)
        a.e(f"s_lshr_b32 s{S_T3}, s{S_J}, 2\ns_lshl_b32 s{S_T3}, s{S_T3}, 9")
        for n in range(2):
            a.e(f"v_add_u32 v{t0}, s{S_T2}, v{vL}\nv_add_u32 v{t0}, {48*n}, v{t0}")
            a.e(f"v_mul_u32_u24 v{t1}, {mg}, v{t0}\nv_lshrrev_b32 v{t1}, {sh}, v{t1}\nv_mul_u32_u24 v{t2}, 12, v{t1}\nv_sub_u32 v{t0}, v{t0}, v{t2}")
            a.e(f"v_mul_u32_u24 v{t2}, {mg3}, v{t0}\nv_lshrrev_b32 v{t2}, {sh3}, v{t2}")
            a.e(f"v_mul_u32_u24 v{t1}, 6144, v{t1}\nv_lshlrev_b32 v{d+2}, 7, v{t2}\nv_add_u32 v{t1}, v{t1}, v{d+2}")
            a.e(f"v_mul_u32_u24 v{t2}, 3, v{t2}\nv_sub_u32 v{t0}, v{t0}, v{t2}\nv_lshlrev_b32 v{t0}, 11, v{t0}\nv_add_u32 v{t1}, v{t1}, v{t0}")
            a.e(f"v_cmp_gt_u32 vcc, 48, v{vL}\nv_mov_b32 v{t0}, 0x7ffffff0\ns_nop 0\nv_cndmask_b32 v{t1}, v{t0}, v{t1}, vcc")
            a.e(f"buffer_load_dword v254, v{t1}, s[{S_WSRD}:{S_WSRD+3}], s{S_T3} offen")
        a.e(f"s_lshl_b32 s{S_T2}, s{S_T}, 7\ns_lshr_b32 s{S_T3}, s{S_I}, 3\ns_lshl_b32 s{S_T3}, s{S_T3}, 21")
        for n in range(2):
            a.e(f"v_add_u32 v{t0}, s{S_T2}, v{vL}\nv_add_u32 v{t0}, {64*n}, v{t0}\nv_and_b32 v{t1}, 1023, v{t0}\nv_lshlrev_b32 v{t1}, 11, v{t1}\nv_lshrrev_b32 v{t0}, 10, v{t0}\nv_lshlrev_b32 v{t0}, 7, v{t0}\nv_add_u32 v{t1}, v{t1}, v{t0}")
            a.e(f"buffer_load_dword v254, v{t1}, s[{S_XSRD}:{S_XSRD+3}], s{S_T3} offen")
    def prefetch_weights(self, a):
        vL = self.vL; t0, t1 = self.vt[0:2]
        a.e(f"s_lshl_b32 s{S_T}, s2, 2\ns_add_u32 s{S_T}, s{S_T}, s{S_LW}")
        for (arg, nbytes, per, d) in ((A_WO, D*D*2, 16, 2), (A_W1, D*DFF*2, 56, 3)) if self.o.get("pf_w1", False) else ((A_WO, D*D*2, 16, 2),):
            srd(a, S_E3, *self.ptr(arg), nbytes)
            a.e(f"s_mul_i32 s{S_T2}, s{S_T}, {per}\nv_add_u32 v{t0}, s{S_T2}, v{vL}\nv_lshlrev_b32 v{t0}, 7, v{t0}\nv_cmp_gt_u32 vcc, {per}, v{vL}\nv_mov_b32 v{t1}, 0x7ffffff0\ns_nop 0\nv_cndmask_b32 v{t0}, v{t1}, v{t0}, vcc")
            a.e(f"buffer_load_dword v254, v{t0}, s[{S_E3}:{S_E3+3}], 0 offen")
    def prefetch_w2(self, a):
        vL = self.vL; t0, t1 = self.vt[0:2]
        a.e(f"s_lshl_b32 s{S_T}, s2, 2\ns_add_u32 s{S_T}, s{S_T}, s{S_LW}")
        srd(a, S_E3, *self.ptr(A_W2), DFF*D*2)
        a.e(f"s_mul_i32 s{S_T2}, s{S_T}, 56\nv_add_u32 v{t0}, s{S_T2}, v{vL}\nv_lshlrev_b32 v{t0}, 7, v{t0}\nv_cmp_gt_u32 vcc, 56, v{vL}\nv_mov_b32 v{t1}, 0x7ffffff0\ns_nop 0\nv_cndmask_b32 v{t0}, v{t1}, v{t0}, vcc")
        a.e(f"buffer_load_dword v254, v{t0}, s[{S_E3}:{S_E3+3}], 0 offen")

    def cloop(self, g, stamps, hooks=None, peel_first=None, ns=None, first=True, sfx="", flags=0, cv=None):
        c, a = g.c, g.a
        NG = c.NSUB//c.G; S = c.S; ns = ns or c.nsteps; nm = c.name + sfx
        if flags:
            vF = cv.alloc(4, 4); vM = cv.alloc(); vP = cv.alloc(); vFA = cv.alloc(); vFR = cv.alloc()
            a.e(f"v_mov_b32 v{vFA}, {SD_FULL}\ns_lshl_b32 s{S_T}, s{S_LW}, 2\ns_add_u32 s{S_T}, s{S_T}, {SD_FREE}\nv_mov_b32 v{vFR}, s{S_T}\nv_mov_b32 v{vP}, 0")
            a.lds_other(f"ds_write_b32 v{vFR}, v{vP}")
        a.e(f"s_mov_b32 s{S_RD}, 0")
        for ins in g.set_read_addrs(): a.e(ins)
        a.lds_drain(); a.e("s_setprio 0\ns_barrier")
        if stamps[0] is not None: self.stamp(a, stamps[0])
        for r in g.reads(0, 0): a.lds_rd(*r)
        st = 0
        for gi in range(NG-1):
            g.group(st, g.reads(st ^ 1, gi+1), [], first=(first and gi == 0)); st ^= 1
        a.e(g.adv_slot(S_RD))
        for ins in g.set_read_addrs(): a.e(ins)
        a.lds_drain(); a.e("s_barrier")
        par = st
        def body(loopctl=False):
            st = par
            for gi in range(NG):
                late = []; extra = []; tail = []; reads = g.reads(st ^ 1, gi)
                if gi == 0 and loopctl and hooks:
                    for cnt in hooks: extra.append(f"s_cmp_eq_u32 s{S_CNT}, {cnt}\ns_cbranch_scc1 L_hk_{nm}_{cnt}\nL_hkb_{nm}_{cnt}:")
                if gi == NG-1:
                    late.append(g.adv_slot(S_RD)); late += g.set_read_addrs()
                    ctl = f"s_sub_u32 s{S_CNT}, s{S_CNT}, 1\ns_cmp_lg_u32 s{S_CNT}, 0"
                    if loopctl and flags:
                        reads = reads + [(f"ds_read_b128 {vr(vF,4)}, v{vFA}", rng(vF, 4))]
                        tail = [f"v_min3_u32 v{vM}, v{vF}, v{vF+1}, v{vF+2}\nv_mov_b32 v{vP}, s{S_TG}",
                                f"v_min_u32 v{vM}, v{vM}, v{vF+3}",
                                (f"ds_write_b32 v{vFR}, v{vP}",),
                                f"v_readfirstlane_b32 s{S_T4}, v{vM}",
                                f"s_nop 0\ns_cmp_ge_u32 s{S_T4}, s{S_TG}\ns_cbranch_scc0 L_slow_{nm}\nL_slowb_{nm}:",
                                f"s_add_u32 s{S_TG}, s{S_TG}, 1\n" + ctl]
                    elif loopctl: late.append(ctl)
                g.group(st, reads, extra, late=late, tail=tail); st ^= 1
            if not (loopctl and flags): a.lds_drain()
        nb = ns - 2
        npeel = flags if flags else (1 if peel_first else 0)
        for p in range(npeel):
            body(False)
            if p == 0 and peel_first: peel_first()
            a.e("s_barrier"); nb -= 1
        if nb > 0 and flags:
            a.e(f"s_mov_b32 s{S_CNT}, {nb}\ns_mov_b32 s{S_TG}, {npeel + 3}")
            a.label(f"L_loop_{nm}")
            lq0 = list(a.lq)
            body(True)
            a.e(f"s_cbranch_scc1 L_loop_{nm}")
            t = self.tail
            t.label(f"L_slow_{nm}")
            t.e(f"s_mov_b32 s{S_T3}, {POLL_MAX}")
            t.label(f"L_slowl_{nm}")
            t.e(f"ds_read_b128 {vr(vF,4)}, v{vFA}\ns_waitcnt lgkmcnt(0)\nv_min3_u32 v{vM}, v{vF}, v{vF+1}, v{vF+2}\nv_min_u32 v{vM}, v{vM}, v{vF+3}\ns_nop 0\nv_readfirstlane_b32 s{S_T4}, v{vM}\ns_nop 2")
            t.e(f"s_cmp_ge_u32 s{S_T4}, s{S_TG}\ns_cbranch_scc1 L_slowb_{nm}\ns_sub_u32 s{S_T3}, s{S_T3}, 1\ns_cmp_lg_u32 s{S_T3}, 0\ns_cbranch_scc1 L_slowl_{nm}\ns_branch L_slowb_{nm}")
        elif nb > 0:
            a.e(f"s_mov_b32 s{S_CNT}, {nb}\ns_branch L_loop_{nm}")
            a.label(f"L_top_{nm}"); a.e("s_barrier"); a.label(f"L_loop_{nm}")
            body(True)
            a.e(f"s_cbranch_scc1 L_top_{nm}\ns_barrier")
        body(False); a.e("s_barrier")
        g.group(par, [], [])
        a.e("s_setprio 3\ns_nop 6")
        if stamps[1] is not None: self.stamp(a, stamps[1])
        for cnt, fn in (hooks or {}).items():
            t = self.tail
            t.label(f"L_hk_{nm}_{cnt}"); fn(t); t.e(f"s_branch L_hkb_{nm}_{cnt}")

    def lflag_init(self):
        L = self.L
        L.e(f"s_lshl_b32 s{S_T}, s{S_LW}, 2\ns_add_u32 s{S_T}, s{S_T}, {SD_FULL}\nv_mov_b32 v45, s{S_T}\nv_mov_b32 v46, {SD_FREE}\nv_mov_b32 v47, 0")
        L.lds_other("ds_write_b32 v45, v47")
    def lfull(self, val):
        L = self.L
        L.e(f"v_mov_b32 v47, {val}"); L.lds_other("ds_write_b32 v45, v47")
    def lwait(self, addr_reg, target, label):
        L = self.L
        L.e(f"s_setprio {self.o.get('lspinprio', 0)}\ns_mov_b32 s{S_T3}, {POLL_MAX}")
        L.label(f"L_lw_{label}")
        L.e(f"ds_read_b128 v[40:43], v{addr_reg}\ns_waitcnt lgkmcnt(0)\nv_min3_u32 v44, v40, v41, v42\nv_min_u32 v44, v44, v43\ns_nop 0\nv_readfirstlane_b32 s{S_T4}, v44\ns_nop 2")
        L.e(f"s_cmp_ge_u32 s{S_T4}, {target}\ns_cbranch_scc1 L_lwd_{label}\ns_sleep {self.o.get('lsleep', 1)}\ns_sub_u32 s{S_T3}, s{S_T3}, 1\ns_cmp_lg_u32 s{S_T3}, 0\ns_cbranch_scc1 L_lw_{label}")
        L.label(f"L_lwd_{label}"); L.lq = []; L.e("s_setprio 1")

    def epi_q(self, g, cv):
        C, L, c = self.C, self.L, g.c
        a = C; vL = self.vL; t0, t1, t2, t3, t4, t5 = self.vt
        em = g.em; l = g.l; wm, wn = g.wm, g.wn
        fr = g.frag0
        mu = fr; rs = fr+4; cs = fr+8; pk = fr+24; st = fr+32
        va = fr+64; vb = fr+65; vo = fr+66; vk = fr+67; sc = fr+68
        gq = l >> 4
        if self.o.get("tokL", True):
            a.e(f"v_mov_b32 v{vo}, {SD_TOK}"); a.lds_rd(f"ds_read_b32 v{vo}, v{vo}", [vo])
        em.vemit((wm*64 + (l & 15))*4 + SD_MEAN1, va)
        for x in range(4):
            a.lds_rd(f"ds_read_b32 v{mu+x}, v{va} offset:{x*64}", [mu+x])
            a.lds_rd(f"ds_read_b32 v{rs+x}, v{va} offset:{512+x*64}", [rs+x])
        em.vemit((wn*32 + gq*4)*4 + SD_CSQ, vb)
        def cs_off(f): return (64*(f//2) + 16*(f % 2))*4
        for n, f in enumerate((2, 3, 0, 1)):
            a.lds_rd(f"ds_read_b128 {vr(cs+4*n,4)}, v{vb} offset:{cs_off(f)}", rng(cs+4*n, 4))
        csr = {2: cs, 3: cs+4, 0: cs+8, 1: cs+12}
        em.vemit(wn*49152 + l*16, vk)
        a.e(f"s_lshl_b32 s{S_T}, s{S_I}, 4\ns_add_u32 s{S_T}, s{S_T}, s{S_J}\ns_lshl_b32 s{S_T}, s{S_T}, 15\ns_lshl_b32 s{S_T2}, s{S_WN}, 14\ns_add_u32 s{S_T}, s{S_T}, s{S_T2}\ns_add_u32 s71, s{S_T}, {WS_KV}")
        def fold_mn(x, f, scale_reg):
            acc = g.acc[x][f]; c0 = csr[f]
            for p in range(2):
                a.e(f"v_pk_fma_f32 {vr(acc+2*p,2)}, {vr(mu+(x & ~1),2)}, {vr(c0+2*p,2)}, {vr(acc+2*p,2)} op_sel:[{x & 1},0,0] op_sel_hi:[{x & 1},1,1] neg_lo:[1,0,0] neg_hi:[1,0,0]")
            for p in range(2):
                a.e(f"v_pk_mul_f32 {vr(acc+2*p,2)}, {vr(scale_reg+(x & ~1),2)}, {vr(acc+2*p,2)} op_sel:[{x & 1},0] op_sel_hi:[{x & 1},1]")
        def pack2(dst, accA, accB):
            a.e(f"v_cvt_pk_bf16_f32 v{dst}, v{accA}, v{accA+1}\nv_cvt_pk_bf16_f32 v{dst+1}, v{accA+2}, v{accA+3}")
            a.e(f"v_cvt_pk_bf16_f32 v{dst+2}, v{accB}, v{accB+1}\nv_cvt_pk_bf16_f32 v{dst+3}, v{accB+2}, v{accB+3}")
        a.need(list(rng(mu, 8)) + list(rng(cs, 8)) + [vo])
        if self.o.get("tokL", True): a.e(f"v_readfirstlane_b32 s1, v{vo}")
        a.e(f"s_lshl_b32 s{S_T3}, s{S_WM}, 12")
        a.e(f"v_add_u32 v{vo}, s{S_T3}, v{vk}")
        a.e(f"s_add_u32 s{S_T4}, s71, s{S_T3}")
        for x in range(4):
            fold_mn(x, 2, rs); fold_mn(x, 3, rs)
            p = pk + 4*(x & 1)
            pack2(p, g.acc[x][2], g.acc[x][3])
            a.e(f"buffer_store_dwordx4 {vr(p,4)}, v{self.vL16}, s[{S_WS}:{S_WS+3}], s{S_T4} offen offset:{x*1024} sc1")
            a.lds_other(f"ds_write_b128 v{vo}, {vr(p,4)} offset:{AT_K(0) + 2*8192 + x*1024}")
        em.vemit((wn*32 + (l & 15))*4 + SD_CSQ + 128*4, va)
        a.lds_rd(f"ds_read_b32 v{sc}, v{va}", [sc]); a.lds_rd(f"ds_read_b32 v{sc+1}, v{va} offset:64", [sc+1])
        em.vemit((wm*64 + gq*4)*4 + SD_MEAN1, vb)
        for x in range(4):
            a.lds_rd(f"ds_read_b128 {vr(st+4*x,4)}, v{vb} offset:{x*64}", rng(st+4*x, 4))
            a.lds_rd(f"ds_read_b128 {vr(st+16+4*x,4)}, v{vb} offset:{512+x*64}", rng(st+16+4*x, 4))
        a.e(f"s_lshl_b32 s{S_T3}, s{S_WM}, 12\ns_add_u32 s{S_T4}, s71, s{S_T3}\ns_add_u32 s{S_T4}, s{S_T4}, 8192")
        for xi in range(2):
            a.need(list(rng(st+8*xi, 8)) + list(rng(st+16+8*xi, 8)) + [sc, sc+1])
            for dl in range(2):
                for x in (2*xi, 2*xi+1):
                    acc = g.acc[x][4+dl]
                    for p in range(2):
                        a.e(f"v_pk_fma_f32 {vr(acc+2*p,2)}, {vr(st+4*x+2*p,2)}, {vr(sc,2)}, {vr(acc+2*p,2)} op_sel:[0,{dl},0] op_sel_hi:[1,{dl},1] neg_lo:[1,0,0] neg_hi:[1,0,0]")
                    for p in range(2):
                        a.e(f"v_pk_mul_f32 {vr(acc+2*p,2)}, {vr(st+16+4*x+2*p,2)}, {vr(acc+2*p,2)}")
                p = pk + 4*dl
                pack2(p, g.acc[2*xi][4+dl], g.acc[2*xi+1][4+dl])
                a.e(f"buffer_store_dwordx4 {vr(p,4)}, v{self.vL16}, s[{S_WS}:{S_WS+3}], s{S_T4} offen offset:{(xi*2+dl)*1024} sc1")
                a.lds_other(f"ds_write_b128 v{vo}, {vr(p,4)} offset:{AT_V(0) + 2*8192 + (xi*2+dl)*1024}")
        for x in range(4): a.e(f"v_mul_f32 v{rs+x}, {fhex(QSCALE)}, v{rs+x}")
        em.vemit(wn*8192 + wm*4096 + l*16 + AT_Q0, va)
        a.need(rng(cs+8, 8))
        for x in range(4):
            fold_mn(x, 0, rs); fold_mn(x, 1, rs)
            p = pk + 4*(x & 1)
            a.e("s_nop 0")
            pack2(p, g.acc[x][0], g.acc[x][1])
            a.lds_other(f"ds_write_b128 v{va}, {vr(p,4)} offset:{x*1024}")
        a.e("s_waitcnt vmcnt(0)")
        self.signal_last(a, 0, 4, self.off_ji(F_KV), t0, t1, "kv")
        self.stamp(C, 3)
        a.e("s_waitcnt lgkmcnt(0)"); a.lq = []
        self.lsetup(self.g[1], A_WO, D*D*2, WS_O)
        def kvpoll():
            L.e(f"s_sub_i32 s{S_T2}, s{S_I}, 1\ns_max_i32 s{S_T2}, s{S_T2}, 0\ns_sub_i32 s{S_XB0}, s{S_I}, 2\ns_max_i32 s{S_XB0}, s{S_XB0}, 0")
            L.e(f"v_mov_b32 v{t0}, s{S_T2}\nv_mov_b32 v{t1}, s{S_XB0}\nv_and_b32 v52, 1, v{vL}\nv_cmp_eq_u32 vcc, 0, v52\ns_nop 1\nv_cndmask_b32 v{t0}, v{t1}, v{t0}, vcc")
            L.e(f"v_lshlrev_b32 v{t0}, 7, v{t0}\ns_lshl_b32 s{S_T}, s{S_J}, 11\ns_add_u32 s{S_T}, s{S_T}, {F_KV}\nv_add_u32 v53, s{S_T}, v{t0}")
            self.poll(L, S_WS, 53, 52, "kv")
        L.e("s_mov_b32 s0, 1\ns_branch L_attn")
        L.label("L_kvstage")
        self.lstamp("kvpre")
        if self.o.get("kvpoll1", True):
            L.e(f"v_mov_b32 v54, {SD_CNT + 20}\ns_cmp_lg_u32 s{S_LW}, 0\ns_cbranch_scc1 L_kvwait")
            kvpoll()
            L.e("v_mov_b32 v55, 1\nds_write_b32 v54, v55\ns_branch L_kvgo")
            L.label("L_kvwait")
            L.e(f"s_mov_b32 s{S_CNT}, {POLL_MAX*8}")
            L.label("L_kvspin")
            L.e(f"ds_read_b32 v55, v54\ns_waitcnt lgkmcnt(0)\nv_readfirstlane_b32 s{S_T}, v55\ns_nop 2\ns_cmp_lg_u32 s{S_T}, 0\ns_cbranch_scc1 L_kvgo\ns_sleep 1\ns_sub_u32 s{S_CNT}, s{S_CNT}, 1\ns_cmp_lg_u32 s{S_CNT}, 0\ns_cbranch_scc1 L_kvspin")
            L.label("L_kvgo")
        else: kvpoll()
        self.lstamp("kvseen")
        L.e(f"s_lshr_b32 s{S_T}, s{S_LW}, 1\ns_sub_i32 s{S_T2}, s{S_I}, 2\ns_add_i32 s{S_T2}, s{S_T2}, s{S_T}")
        L.e(f"s_lshl_b32 s{S_XB0}, s{S_T2}, 4\ns_add_u32 s{S_XB0}, s{S_XB0}, s{S_J}\ns_lshl_b32 s{S_XB0}, s{S_XB0}, 15\ns_and_b32 s{S_WB0}, s{S_LW}, 1\ns_lshl_b32 s{S_WB0}, s{S_WB0}, 14\ns_add_u32 s{S_XB0}, s{S_XB0}, s{S_WB0}\ns_add_u32 s{S_XB0}, s{S_XB0}, {WS_KV}")
        L.e(f"s_cmp_lt_i32 s{S_T2}, 0\ns_cselect_b32 s{S_XB0}, 0x7ff00000, s{S_XB0}")
        L.e(f"s_and_b32 s{S_WB0}, s{S_LW}, 1\ns_mul_i32 s{S_WB0}, s{S_WB0}, 49152\ns_lshl_b32 s{S_T}, s{S_T}, 13\ns_add_u32 s{S_WB0}, s{S_WB0}, s{S_T}")
        for part in range(2):
            for q4 in range(2):
                L.e(f"s_add_u32 m0, s{S_WB0}, {part*24576 + q4*4096}\ns_add_u32 s{S_T}, s{S_XB0}, {part*8192 + q4*4096}")
                for n in range(4):
                    L.e(f"buffer_load_dwordx4 v{self.vL16}, s[{S_WS}:{S_WS+3}], s{S_T} offen offset:{n*1024} sc1 lds")
        L.e("s_waitcnt vmcnt(8)" if self.o.get("kfirst", True) else "s_waitcnt vmcnt(0)")
        L.e("s_branch L_attn_go")
        C.e("s_mov_b32 s0, 0\ns_branch L_attn"); C.label("L_attn_back_c"); C.e("s_setprio 3")
        L.label("L_attn_back_l"); L.e("s_setprio 1")

    def attention(self):
        a = self.A; vL = self.vL; z = HZ(a)
        a.label("L_attn")
        a.e("s_setprio 3")
        l = V("l")
        em = Emitter(a, {"l": vL}, {"hh": S_T3, "om": S_T4}, self.vt, S_ET)
        hh, om = S("hh"), S("om")
        R = Regs(64, 253)
        QF = R.alloc(8, 4); KF = [R.alloc(8, 4) for _ in range(2)]; SS = [R.alloc(16, 4) for _ in range(3)]
        NM = R.alloc(16, 4); NG = R.alloc(16, 4); OO = R.alloc(16, 4); LL = R.alloc(16, 4)
        VF = [R.alloc(8, 4) for _ in range(2)]; PP = [R.alloc(8, 4) for _ in range(2)]; ONE = R.alloc(4, 4)
        vQ, vK, vV, MX, T0 = [R.alloc() for _ in range(5)]
        a.e(f"s_and_b32 s{S_T3}, s{S_WV}, 1\ns_lshr_b32 s{S_T4}, s{S_WV}, 1")
        a.e(f"s_lshl_b32 s71, s{S_I}, 2\ns_add_u32 s71, s71, s{S_T4}")
        h = l >> 5
        em.vemit(hh*8192 + om*2048 + ((l >> 4) & 1)*1024 + (h*16 + (l & 15))*16 + AT_Q0, vQ)
        em.vemit(hh*49152 + om*2048 + ((l >> 3) & 1)*1024 + (h*16 + (l & 7) + ((l >> 4) & 1)*8)*16, vK)
        for ex in (((l >> 4) & 1)*1024 + (h*16 + (l & 15))*16, ((l >> 3) & 1)*1024 + (h*16 + (l & 7) + ((l >> 4) & 1)*8)*16):
            assert banks.conflicts_b128([ex.ev({"l": x}) for x in range(64)]) == 0
        def rd(dst, addr, off): z.lds_rd(f"ds_read_b128 {vr(dst,4)}, v{addr} offset:{off}", rng(dst, 4), [addr])
        def kread(tt, b): rd(KF[b], vK, tt*2048); rd(KF[b]+4, vK, tt*2048 + 512)
        def vread(tt, b): rd(VF[b], vV, tt*2048); rd(VF[b]+4, vV, tt*2048 + 512)
        em.vemit(hh*49152 + om*2048 + ((l >> 4) & 1)*1024 + (h*16 + (l & 15))*16 + 24576, vV)
        t0_ = self.vt[0]; vPF = R.alloc()
        if self.o["pf_weights"]:
            a.e(f"s_lshl_b32 s{S_T}, s2, 3\ns_add_u32 s{S_T}, s{S_T}, s{S_WV}\ns_mul_i32 s{S_T}, s{S_T}, 28\nv_min_u32 v{vPF}, 27, v{vL}\nv_add_u32 v{vPF}, s{S_T}, v{vPF}\nv_lshlrev_b32 v{vPF}, 7, v{vPF}")
        mreg = [76+2*k for k in range(6)] + [90+2*k for k in range(6)] + [4, 6, 24, 26]
        for r in range(16):
            k0 = 16*((r >> 2) & 1) + 8*(r >> 3) + (r & 3)
            lo = (0xffffffff << k0) & 0xffffffff; hi = (0xffffffff << (k0+4)) & 0xffffffff
            a.e(f"s_mov_b32 s{mreg[r]}, {hex(lo)}\ns_mov_b32 s{mreg[r]+1}, {hex(hi)}")
        for r in range(16): z.emit(f"v_mov_b32 v{NG+r}, 0xf149f2ca", "valu", w=[NG+r])
        z.emit(f"v_mov_b32 v{MX}, 0xf149f2ca", "valu", w=[MX])
        for k in range(4): z.emit(f"v_mov_b32 v{ONE+k}, 0x3f803f80", "valu", w=[ONE+k])
        MF = "v_mfma_f32_32x32x16_bf16"
        def qk(tt, kb, sb, cval, tag):
            b = KF[kb]; s_ = SS[sb]
            z.lneed(list(rng(b, 4)) + list(rng(QF, 4)))
            ctxt = "0" if cval is None else vr(cval, 16); creg = [] if cval is None else list(rng(cval, 16))
            if tt < 8:
                z.other(f"s_cmp_ge_u32 s71, {8-tt}\ns_cbranch_scc0 L_inv_{tag}_{tt}")
            z.emit(f"{MF} {vr(s_,16)}, {vr(b,4)}, {vr(QF,4)}, {ctxt}", "mfma32", r=list(rng(b,4))+list(rng(QF,4)), w=rng(s_,16), c=creg + list(rng(NG,16)) if tt < 8 else creg)
            if tt < 8:
                a.label(f"L_invb_{tag}_{tt}")
                t = self.tail
                t.label(f"L_inv_{tag}_{tt}")
                t.e(f"{MF} {vr(s_,16)}, {vr(b,4)}, {vr(QF,4)}, {vr(NG,16)}\ns_branch L_invb_{tag}_{tt}")
            z.lneed(list(rng(b+4, 4)) + list(rng(QF+4, 4)))
            z.emit(f"{MF} {vr(s_,16)}, {vr(b+4,4)}, {vr(QF+4,4)}, {vr(s_,16)}", "mfma32", r=list(rng(b+4,4))+list(rng(QF+4,4)), w=rng(s_,16), c=rng(s_,16))
        def merge(sa, sb):
            for r in range(16):
                z.emit(f"v_cndmask_b32 v{SS[sa]+r}, v{SS[sa]+r}, v{SS[sb]+r}, s[{mreg[r]}:{mreg[r]+1}]", "valu", r=[SS[sa]+r, SS[sb]+r], w=[SS[sa]+r])
        def vmax(sb):
            for k in range(8): z.emit(f"v_max3_f32 v{MX}, v{MX}, v{SS[sb]+2*k}, v{SS[sb]+2*k+1}", "valu", r=[MX, SS[sb]+2*k, SS[sb]+2*k+1], w=[MX])
        a.e("s_cmp_eq_u32 s0, 1\ns_cbranch_scc1 L_kvstage")
        a.label("L_attn_go")
        a.e("s_barrier")
        self.stamp(a, 4)
        rd(QF, vQ, 0); rd(QF+4, vQ, 512); kread(0, 0); kread(8, 1)
        self.nyoung = 0
        if self.o["pf_weights"] and not self.o.get("pfmid", False):
            for arg in {"w2": (A_W2,), "w1w2": (A_W1, A_W2), "none": ()}[self.o.get("pf_attn", "w1w2")]:
                p = self.ptr(arg)[0]; a.e(f"global_load_dword v254, v{vPF}, s[{p}:{p+1}]"); self.nyoung += 1
        self.stamp(a, 20)
        qk(0, 0, 0, None, "a"); kread(1, 0)
        qk(8, 1, 1, None, "a"); kread(2, 1)
        qk(1, 0, 2, None, "a"); kread(3, 0)
        merge(0, 1); vmax(0)
        sb_of = {1: 2}
        free = [0, 1]
        for tt in range(2, 8):
            sb = free.pop(0); sb_of[tt] = sb
            qk(tt, tt & 1 ^ 1 if False else (tt % 2 == 0 and 1 or 0), sb, None, "a")
            if tt+2 < 8: kread(tt+2, (tt % 2 == 0 and 1 or 0))
            vmax(sb_of[tt-1]); free.append(sb_of[tt-1])
        kread(0, 0)
        vmax(sb_of[7])
        self.stamp(a, 21)
        self.attn_mid(a, z)
        self.stamp(a, 22)
        nyoung = 0
        if self.o["pf_weights"] and self.o.get("pfmid", False):
            for arg in (A_W1, A_W2):
                p = self.ptr(arg)[0]; a.e(f"global_load_dword v254, v{vPF}, s[{p}:{p+1}]"); nyoung += 1
        kread(8, 1); vread(8, 0); vread(0, 1)
        z.emit(f"v_mov_b32 v{T0}, v{MX}", "valu", r=[MX], w=[T0])
        z.emit(f"v_permlane32_swap_b32 v{T0}, v{MX}", "perm", r=[T0, MX], w=[T0, MX])
        z.emit(f"v_max_f32 v{MX}, v{MX}, v{T0}", "valu", r=[MX, T0], w=[MX])
        for r in range(16): z.emit(f"v_sub_f32 v{NM+r}, 0, v{MX}", "valu", r=[MX], w=[NM+r])
        z.other("s_setprio 2")
        def vexp(sb):
            for r in range(16): z.emit(f"v_exp_f32 v{SS[sb]+r}, v{SS[sb]+r}", "trans", r=[SS[sb]+r], w=[SS[sb]+r])
        def cvt(sb, pb):
            for k in range(8): z.emit(f"v_cvt_pk_bf16_f32 v{PP[pb]+k}, v{SS[sb]+2*k}, v{SS[sb]+2*k+1}", "valu", r=[SS[sb]+2*k, SS[sb]+2*k+1], w=[PP[pb]+k])
        first = [True]
        def pv(vb, pb):
            b = VF[vb]; p = PP[pb]
            z.lneed(rng(b, 8))
            f = first[0]; first[0] = False
            z.emit(f"{MF} {vr(OO,16)}, {vr(b,4)}, {vr(p,4)}, {'0' if f else vr(OO,16)}", "mfma32", r=list(rng(b,4))+list(rng(p,4)), w=rng(OO,16), c=[] if f else rng(OO,16))
            z.emit(f"{MF} {vr(LL,16)}, {vr(ONE,4)}, {vr(p,4)}, {'0' if f else vr(LL,16)}", "mfma32", r=list(rng(ONE,4))+list(rng(p,4)), w=rng(LL,16), c=[] if f else rng(LL,16))
            z.emit(f"{MF} {vr(OO,16)}, {vr(b+4,4)}, {vr(p+4,4)}, {vr(OO,16)}", "mfma32", r=list(rng(b+4,4))+list(rng(p+4,4)), w=rng(OO,16), c=rng(OO,16))
            z.emit(f"{MF} {vr(LL,16)}, {vr(ONE,4)}, {vr(p+4,4)}, {vr(LL,16)}", "mfma32", r=list(rng(ONE,4))+list(rng(p+4,4)), w=rng(LL,16), c=rng(LL,16))
        qk(0, 0, 0, NM, "b"); kread(1, 0)
        qk(8, 1, 1, NM, "b"); kread(2, 1)
        qk(1, 0, 2, NM, "b"); kread(3, 0)
        merge(0, 1); vexp(0)
        for r in range(16): z.emit(f"v_cndmask_b32 v{SS[1]+r}, 0, v{SS[0]+r}, s[{mreg[r]}:{mreg[r]+1}]", "valu", r=[SS[0]+r], w=[SS[1]+r])
        for r in range(16): z.emit(f"v_sub_f32 v{SS[0]+r}, v{SS[0]+r}, v{SS[1]+r}", "valu", r=[SS[0]+r, SS[1]+r], w=[SS[0]+r])
        cvt(1, 0); cvt(0, 1)
        pv(0, 0); vread(1, 0)
        pv(1, 1); vread(2, 1)
        sb_of = {1: 2}; free = [0, 1]
        for tt in range(1, 8):
            if tt+1 < 8:
                sb = free.pop(0); sb_of[tt+1] = sb; kb = 1 if (tt+1) % 2 == 0 else 0
                qk(tt+1, kb, sb, NM, "b")
                if tt+3 < 8: kread(tt+3, kb)
            if tt in (3, 6): z.other(f"s_setprio {1 if tt == 3 else 0}")
            cur = sb_of[tt]
            vexp(cur); cvt(cur, tt & 1); free.append(cur)
            vb = 0 if tt % 2 == 1 else 1
            pv(vb, tt & 1)
            if tt+2 < 8: vread(tt+2, vb)
        self.stamp(a, 23)
        srd(a, S_WS, *self.ptr(A_WS), WS_BYTES, self.o.get('wsoff', 0))
        em.vemit((om*2 + ((l >> 4) & 1))*2048 + hh*1024 + ((l & 15) + h*16)*16, vQ)
        a.e(f"s_lshl_b32 s{S_T}, s{S_I}, 4\ns_add_u32 s{S_T}, s{S_T}, s{S_J}\ns_lshl_b32 s{S_T}, s{S_T}, 14\ns_add_u32 s{S_T}, s{S_T}, {WS_O}")
        z.emit(f"v_rcp_f32 v{T0}, v{LL}", "trans", r=[LL], w=[T0])
        for r in range(16): z.emit(f"v_mul_f32 v{OO+r}, v{T0}, v{OO+r}", "valu", r=[T0, OO+r], w=[OO+r])
        for s in range(2):
            for k in range(4): z.emit(f"v_cvt_pk_bf16_f32 v{PP[s]+k}, v{OO+8*s+2*k}, v{OO+8*s+2*k+1}", "valu", r=[OO+8*s+2*k, OO+8*s+2*k+1], w=[PP[s]+k])
            a.e(f"buffer_store_dwordx4 {vr(PP[s],4)}, v{vQ}, s[{S_WS}:{S_WS+3}], s{S_T} offen offset:{s*512} sc1")
        self.stamp(a, 24)
        a.e("s_waitcnt vmcnt(0)")
        self.stamp(a, 25)
        self.signal_last(a, 1, 8, self.off_ij(F_O), vK, vV, "o")
        a.e("s_cmp_eq_u32 s0, 1\ns_cbranch_scc1 L_attn_back_l\ns_branch L_attn_back_c")
    def attn_mid(self, a, z):
        if self.o.get("kfirst", True):
            z.other(f"s_cmp_eq_u32 s0, 1\ns_cbranch_scc0 L_att_nov\ns_waitcnt vmcnt({self.nyoung})\nL_att_nov:")
            a.lds_drain(); z.other("s_barrier")

    def lsetup(self, g, warg, wbytes, xbase, khalf=False):
        L = self.L; c = g.c
        g.bind(L, self.vL, self.vt, (8, 9))
        srd(L, S_WSRD, *self.ptr(warg), wbytes)
        self.setup_w_only(g)
        g.em.vemit(g.lw*4096 + g.l*16, g.vXsrc[0])
        c.woff(L)
        self.xoff_fn(L, c, xbase, khalf)
        L.e(f"s_lshl_b32 s{S_XL}, s{S_LW}, 12")
        L.e(f"s_mul_i32 s{S_WL}, s{S_LW}, {c.nWld*1024}\ns_add_u32 s{S_WL}, s{S_WL}, {c.XB}")
    def lweights(self, g, init=True):
        L = self.L; c = g.c
        if init:
            for ins in g.rot_init(): L.e(ins)
        L.e(f"s_mov_b32 s{S_WR}, 0")
        for s in range(c.S):
            for ins in g.stage_off(s) + g.dma_w(): L.e(ins)
            L.e(f"s_add_u32 s{S_WR}, s{S_WR}, {c.SB}")
    def cpoll(self, flag, label, skip_own=False):
        C = self.C; t0, t1, t2 = self.vt[0:3]
        C.e(f"s_cmp_lg_u32 s{S_LW}, 0\ns_cbranch_scc1 L_nocpoll_{label}")
        self.group_words(C, t2, flag, S_I)
        if skip_own:
            C.e(f"s_xor_b32 s{S_T2}, s{S_J}, 1\ns_lshl_b32 s{S_T2}, s{S_T2}, 7\ns_add_u32 s{S_T2}, s{S_T2}, s{S_T}\nv_and_b32 v{t0}, 15, v{self.vL}\nv_mov_b32 v{t1}, s{S_T2}\nv_cmp_eq_u32 vcc, s{S_J}, v{t0}\ns_nop 1\nv_cndmask_b32 v{t2}, v{t2}, v{t1}, vcc")
        self.poll(C, S_WS, t2, t0, label)
        C.label(f"L_nocpoll_{label}")
        C.e("s_barrier")
    def lphase(self, g, flag, label, hooks=None, npeel=0, after_poll=None, first_hooks=None, ns=None, flags=0):
        L = self.L; c = g.c; vm = VM(L); S = c.S; ns = ns or c.nsteps
        hooks = hooks or {}
        g.bind(L, self.vL, self.vt, (8, 9))
        srd(L, S_XSRD, *self.ptr(A_WS), WS_BYTES, self.o.get('wsoff', 0))
        self.lstamp(label + "pre")
        L.e("s_barrier")
        self.lstamp(label + "seen")
        L.e(f"s_mov_b32 s{S_WR}, 0")
        for s in range(S):
            for ins in g.stage_off(s) + g.dma_x(): L.e(ins)
            vm.iss(("st", s), c.nXld)
            L.e(f"s_add_u32 s{S_WR}, s{S_WR}, {c.SB}")
        L.e(f"s_mov_b32 s{S_WR}, 0")
        if after_poll: after_poll(vm)
        if flags: self.lflag_init()
        vm.wait(("st", 0)); L.lds_drain(); L.e("s_barrier"); self.lstamp(label + "land")
        if first_hooks: first_hooks[0](vm)
        vm.wait(("st", 1)); L.lds_drain(); L.e("s_barrier")
        def issue(t):
            for ins in g.dma_list(t): L.e(ins)
            vm.iss(("st", t), c.nld); L.e(g.adv_slot(S_WR))
        npeel = max(npeel, S-2)
        nb = ns - S
        if self.o.get("lsteps"): npeel = nb
        def end_body(t):
            L.lds_drain()
            if flags and flags - 1 <= t <= ns-3: self.lfull(t + 3)
            if not flags or t < flags or t == ns-2:
                L.lds_drain(); L.e("s_barrier")
            if self.o.get("lsteps"): self.lstamp(label + str(t))
        if flags: npeel = max(npeel, flags + 1)
        for t in range(npeel):
            if flags and t > flags: self.lwait(46, t + 2, f"{label}{t}")
            issue(t+S)
            if t in hooks: hooks[t](vm)
            if ("st", t+2) in vm.q: vm.wait(("st", t+2))
            end_body(t)
        if nb - npeel > 0:
            if getattr(c, "rot", False): L.e(f"s_mov_b32 s{S_N}, {npeel + S - 1}")
            L.e(f"s_mov_b32 s{S_CNT}, {nb - npeel}")
            if flags: L.e(f"s_mov_b32 s{S_TG}, {npeel + 2}")
            L.label(f"L_lloop_{label}")
            early = flags and S >= 4
            if early:
                L.e(f"s_add_u32 s{S_T2}, s{S_TG}, 1\nv_mov_b32 v47, s{S_T2}\ns_waitcnt vmcnt({(S-3)*c.nld})\nds_write_b32 v45, v47")
            if flags: self.lwait(46, f"s{S_TG}", f"{label}_loop")
            for ins in g.dma_list(): L.e(ins)
            L.e(g.adv_slot(S_WR))
            if early:
                L.e(f"s_add_u32 s{S_TG}, s{S_TG}, 1")
            elif flags:
                L.e(f"s_add_u32 s{S_TG}, s{S_TG}, 1\nv_mov_b32 v47, s{S_TG}\ns_waitcnt vmcnt({(S-2)*c.nld})\nds_write_b32 v45, v47")
            else:
                L.e(f"s_waitcnt vmcnt({(S-2)*c.nld})\ns_barrier")
            L.e(f"s_sub_u32 s{S_CNT}, s{S_CNT}, 1\ns_cmp_lg_u32 s{S_CNT}, 0\ns_cbranch_scc1 L_lloop_{label}")
        for t in range(nb, ns-1):
            if t in hooks:
                assert npeel >= nb
                hooks[t](vm)
                if t+2 <= ns-1 and ("st", t+2) in vm.q: vm.wait(("st", t+2))
            elif t+2 <= ns-1: L.e(f"s_waitcnt vmcnt({min(ns-1-(t+2), S-2)*c.nld})")
            end_body(t)

    def phase_o(self, g):
        C, L, c = self.C, self.L, g.c
        vL = self.vL; t0, t1, t2, t3, t4, t5 = self.vt
        self.stamp(C, 5)
        self.lstamp("attnend")
        self.bar()
        self.lstamp("attnbar")
        self.lweights(g)
        if self.o.get("sentinel", True) and self.o.get("markat", "o") == "o":
            for k in range(4): L.e(f"v_mov_b32 v{180+k}, -1")
            L.e(f"s_lshl_b32 s{S_T}, s{S_I}, 4\ns_add_u32 s{S_T}, s{S_T}, s{S_J}\ns_lshl_b32 s{S_T}, s{S_T}, 15\ns_lshl_b32 s{S_T2}, s{S_LW}, 13\ns_add_u32 s{S_T}, s{S_T}, s{S_T2}\ns_add_u32 s{S_T}, s{S_T}, {WS_XCH}")
            for n in range(8):
                if n == 4: L.e(f"s_add_u32 s{S_T}, s{S_T}, 4096")
                L.e(f"buffer_store_dwordx4 v[180:183], v{self.vL16}, s[{S_WS}:{S_WS+3}], s{S_T} offen offset:{(n & 3)*1024} sc1")
        own1 = self.o.get("own1", True)
        a = C; g.bind(C, vL, self.vt, (8, 9)); cv = Regs(12, 254); g.alloc_compute(cv)
        em = g.em; l, wm, wn = g.l, g.wm, g.wn
        g.setup_reads()
        xr = cv.alloc(16, 4); va = cv.alloc(); pk = cv.alloc(8, 4); sm = cv.alloc(8, 4); tm = cv.alloc(8, 4); m2 = cv.alloc(8, 4)
        srd(a, S_XSRD, *self.ptr(A_X), M*D*2)
        em.vemit((l & 15)*2048 + (l >> 4)*8, va)
        def resid(a):
            a.e(f"s_lshl_b32 s{S_T}, s{S_I}, 1\ns_add_u32 s{S_T}, s{S_T}, s{S_WM}\ns_lshl_b32 s{S_T}, s{S_T}, 17\ns_lshl_b32 s{S_T2}, s{S_J}, 7\ns_add_u32 s{S_T}, s{S_T}, s{S_T2}\ns_lshl_b32 s{S_T2}, s{S_WN}, 6\ns_add_u32 s{S_T}, s{S_T}, s{S_T2}")
            for x in range(4):
                for f in range(2):
                    a.e(f"buffer_load_dwordx2 {vr(xr+4*x+2*f,2)}, v{va}, s[{S_XSRD}:{S_XSRD+3}], s{S_T} offen offset:{f*32}")
                if x < 3: a.e(f"s_add_u32 s{S_T}, s{S_T}, {16*2048}")
        a.e(f"s_cmp_eq_u32 s{S_LW}, 0\ns_cbranch_scc1 L_ores0"); resid(a); a.label("L_ores0")
        def hookO(a):
            a.e(f"s_cmp_lg_u32 s{S_LW}, 0\ns_cbranch_scc1 L_ores1"); resid(a); a.label("L_ores1")
        self.cpoll(F_O, "o", skip_own=True)
        self.lphase(g, F_O, "o")
        g1 = self.g[2]
        self.lsetup(g1, A_W1, D*DFF*2, WS_H)
        g.bind(C, vL, self.vt, (8, 9)); g.a = C
        self.cloop(g, stamps=(6, 7), hooks={c.nsteps - 3: hookO})
        a.e("s_waitcnt vmcnt(0)")
        for x in range(4):
            for f in range(2):
                acc = g.acc[x][f]
                for d in range(2):
                    src = xr + 4*x + 2*f + d
                    a.e(f"v_lshlrev_b32 v{t0}, 16, v{src}\nv_and_b32 v{t1}, 0xffff0000, v{src}")
                    a.e(f"v_add_f32 v{acc+2*d}, v{acc+2*d}, v{t0}\nv_add_f32 v{acc+2*d+1}, v{acc+2*d+1}, v{t1}")
        a.e(f"s_lshl_b32 s{S_T}, s{S_I}, 4\ns_add_u32 s{S_T}, s{S_T}, s{S_J}\ns_lshl_b32 s{S_T}, s{S_T}, 14\ns_lshl_b32 s{S_T2}, s{S_WM}, 13\ns_add_u32 s{S_T}, s{S_T}, s{S_T2}\ns_lshl_b32 s{S_T2}, s{S_WN}, 10\ns_add_u32 s{S_T}, s{S_T}, s{S_T2}\ns_add_u32 s{S_T}, s{S_T}, {WS_H}")
        for x in range(4):
            p = pk + 4*(x & 1); A, B = g.acc[x][0], g.acc[x][1]
            a.e(f"v_cvt_pk_bf16_f32 v{p}, v{A}, v{A+1}\nv_cvt_pk_bf16_f32 v{p+1}, v{A+2}, v{A+3}\nv_cvt_pk_bf16_f32 v{p+2}, v{B}, v{B+1}\nv_cvt_pk_bf16_f32 v{p+3}, v{B+2}, v{B+3}")
            if x == 2: a.e(f"s_add_u32 s{S_T}, s{S_T}, 4096")
            a.e(f"buffer_store_dwordx4 {vr(p,4)}, v{self.vL16}, s[{S_WS}:{S_WS+3}], s{S_T} offen offset:{(x & 1)*2048} sc1")
            if own1:
                if x == 0: em.vemit(wm*8192 + wn*1024 + l*16 + 2*g1.c.SB, va)
                a.lds_other(f"ds_write_b128 v{va}, {vr(p,4)} offset:{x*2048}")
        self.bar()
        if own1:
            L.e(f"s_min_u32 s78, s{S_I}, s{S_J}\ns_max_u32 s79, s{S_I}, s{S_J}\ns_cmp_eq_u32 s{S_I}, s{S_J}\ns_cselect_b32 s80, 1, 0\ns_cselect_b32 s79, 99, s79")
            for ins in g1.rot_init(): L.e(ins)
            self.vmP = VM(L)
            L.e(f"s_mul_i32 s{S_WOFF}, s{S_J}, {64*g1.c.ldw}\ns_add_u32 s{S_WOFF}, s{S_WOFF}, s{S_WB0}\ns_mov_b32 s{S_WR}, {2*g1.c.SB}")
            for ins in g1.dma_w(): L.e(ins)
            self.vmP.iss("wpre", g1.c.nWld)
            L.e(f"s_mov_b32 s{S_WR}, 0")
            for n in range(2):
                for ins in g1.stage_off(n) + g1.dma_w(): L.e(ins)
                self.vmP.iss("wmain", g1.c.nWld)
                L.e(f"s_add_u32 s{S_WR}, s{S_WR}, {g1.c.SB}")
        else: self.lweights(self.g[2])
        a.e("s_waitcnt vmcnt(0)")
        self.signal_last(a, 2, 4, self.off_ij(F_H), t0, t1, "h")
        self.stamp(C, 8)
        def xlane(regs):
            for sw in ("v_permlane16_swap_b32", "v_permlane32_swap_b32"):
                for k, r in enumerate(regs): a.e(f"v_mov_b32 v{tm+k}, v{r}")
                a.e("s_nop 1")
                for k, r in enumerate(regs): a.e(f"{sw} v{tm+k}, v{r}")
                a.e("s_nop 1")
                for k, r in enumerate(regs): a.e(f"v_add_f32 v{r}, v{r}, v{tm+k}")
        for x in range(4):
            A, B = g.acc[x][0], g.acc[x][1]
            a.e(f"v_add_f32 v{sm+2*x}, v{A}, v{A+1}")
            for r in [A+2, A+3, B, B+1, B+2, B+3]: a.e(f"v_add_f32 v{sm+2*x}, v{sm+2*x}, v{r}")
        xlane([sm+2*x for x in range(4)])
        for x in range(4):
            A, B = g.acc[x][0], g.acc[x][1]
            a.e(f"v_mul_f32 v{t0}, {fhex(1/32)}, v{sm+2*x}")
            a.e(f"v_sub_f32 v{t1}, v{A}, v{t0}\nv_mul_f32 v{sm+2*x+1}, v{t1}, v{t1}")
            for r in [A+1, A+2, A+3, B, B+1, B+2, B+3]: a.e(f"v_sub_f32 v{t1}, v{r}, v{t0}\nv_fmac_f32 v{sm+2*x+1}, v{t1}, v{t1}")
        xlane([sm+2*x+1 for x in range(4)])
        a.e(f"s_lshl_b32 s{S_T}, s{S_J}, 1\ns_add_u32 s{S_T}, s{S_T}, s{S_WN}\ns_lshl_b32 s{S_T}, s{S_T}, 11\ns_lshl_b32 s{S_T2}, s{S_I}, 7\ns_add_u32 s{S_T}, s{S_T}, s{S_T2}\ns_lshl_b32 s{S_T2}, s{S_WM}, 6\ns_add_u32 s{S_T}, s{S_T}, s{S_T2}\ns_lshl_b32 s{S_T}, s{S_T}, 3\ns_add_u32 s{S_T}, s{S_T}, {WS_ST2}")
        a.e(f"v_lshlrev_b32 v{t0}, 3, v{vL}\nv_cmp_gt_u32 vcc, 16, v{vL}\ns_and_saveexec_b64 s[{S_EX}:{S_EX+1}], vcc")
        for x in range(4):
            a.e(f"buffer_store_dwordx2 {vr(sm+2*x,2)}, v{t0}, s[{S_WS}:{S_WS+3}], s{S_T} offen offset:{x*128} sc1")
        a.e(f"s_mov_b64 exec, s[{S_EX}:{S_EX+1}]")
        if not own1:
            a.e("s_waitcnt vmcnt(0)")
            self.signal_last(a, 4, 4, self.off_ij(F_S2), t0, t1, "s2")

    def phase_f1(self, g):
        C, L, c = self.C, self.L, g.c
        vL = self.vL; t0, t1, t2, t3, t4, t5 = self.vt
        FL1 = 1 if self.o.get("flags1", False) else 0
        ps = 64; cp = 96; mu, m2 = 112, 113
        def s2a(vm):
            self.group_words(L, 56, F_S2, S_I)
            L.e(f"buffer_load_dword v57, v56, s[{S_WS}:{S_WS+3}], 0 offen sc1"); vm.iss("ps2")
        def s2b(vm):
            vm.wait("ps2")
            self.poll_test(L, 57)
            L.e("s_cbranch_scc1 L_s2ready")
            self.poll(L, S_WS, 56, 57, "s2")
            L.label("L_s2ready")
            L.e(f"v_and_b32 v{t0}, 15, v{vL}\nv_lshlrev_b32 v{t0}, 4, v{t0}\nv_lshrrev_b32 v{t1}, 4, v{vL}\nv_lshlrev_b32 v{t1}, 14, v{t1}\nv_add_u32 v54, v{t0}, v{t1}")
            L.e(f"s_lshl_b32 s{S_T2}, s{S_I}, 7\ns_lshl_b32 s{S_T3}, s{S_LW}, 5\ns_add_u32 s{S_T2}, s{S_T2}, s{S_T3}\ns_lshl_b32 s{S_T2}, s{S_T2}, 3\ns_add_u32 s{S_T2}, s{S_T2}, {WS_ST2}")
            for n in range(8):
                L.e(f"buffer_load_dwordx4 {vr(ps+4*n,4)}, v54, s[{S_WS}:{S_WS+3}], s{S_T2} offen sc1\ns_add_u32 s{S_T2}, s{S_T2}, {4*2048*8}")
            vm.iss("ps", 8)
        mua, m2a = 112, 114
        def h0b(vm):
            vm.wait("ps")
            for r in range(2): L.e(f"v_add_f32 v{mua+r}, v{ps+2*r}, v{ps+4+2*r}")
            for n in range(2, 8):
                for r in range(2): L.e(f"v_add_f32 v{mua+r}, v{mua+r}, v{ps+4*n+2*r}")
            self.xgroups(L, [mua, mua+1], 118)
            for r in range(2): L.e(f"v_mul_f32 v{mua+r}, {fhex(1/1024)}, v{mua+r}\nv_mov_b32 v{m2a+r}, 0")
            L.e(f"v_mov_b32 v116, {fhex(1/32)}\nv_mov_b32 v117, {fhex(32.0)}")
        def h1(vm, part=None):
            for n in (range(8) if part is None else range(4*part, 4*part+4) if part < 2 else ()):
                for r in range(2):
                    tt = t1 if r == 0 else t2
                    L.e(f"v_fma_f32 v{tt}, v{ps+4*n+2*r}, v116, -v{mua+r}")
                for r in range(2):
                    tt = t1 if r == 0 else t2
                    L.e(f"v_mul_f32 v{tt}, v{tt}, v{tt}")
                for r in range(2):
                    tt = t1 if r == 0 else t2
                    L.e(f"v_fma_f32 v{tt}, v{tt}, v117, v{ps+4*n+2*r+1}")
                for r in range(2):
                    tt = t1 if r == 0 else t2
                    L.e(f"v_add_f32 v{m2a+r}, v{m2a+r}, v{tt}")
            if part is not None and part < 2: return
            self.xgroups(L, [m2a, m2a+1], 118)
            for r in range(2): L.e(f"v_mul_f32 v{m2a+r}, {fhex(1/1024)}, v{m2a+r}\nv_add_f32 v{m2a+r}, {fhex(EPS)}, v{m2a+r}")
            for r in range(2): L.e(f"v_rsq_f32 v{m2a+r}, v{m2a+r}")
            L.e(f"v_and_b32 v{t0}, 15, v{vL}\nv_lshlrev_b32 v{t0}, 3, v{t0}\ns_lshl_b32 s{S_T}, s{S_LW}, 7\ns_add_u32 s{S_T}, s{S_T}, {SD_MEAN2}\nv_add_u32 v{t0}, s{S_T}, v{t0}")
            L.e(f"v_cmp_gt_u32 vcc, 16, v{vL}\ns_and_saveexec_b64 s[{S_EX}:{S_EX+1}], vcc\nds_write_b64 v{t0}, {vr(mua,2)}\nds_write_b64 v{t0}, {vr(m2a,2)} offset:512\ns_mov_b64 exec, s[{S_EX}:{S_EX+1}]")
        ones, wf, sacc, r1, vL4 = 120, [124 + 4*k for k in range(8)], [156 + 4*k for k in range(4)], [172, 173, 174, 175], 176
        box = {}
        def pre_cs1():
            L.e(f"v_lshlrev_b32 v{vL4}, 2, v{vL}")
            box["cls"] = self.csum_setup(g, 4, r1)
        cs1_code = f"s_lshl_b32 s{S_T}, s{S_I}, 4\ns_add_u32 s{S_T}, s{S_T}, s{S_J}\ns_mul_i32 s{S_T2}, s{S_T}, 896\ns_lshl_b32 s{S_T}, s{S_LW}, 8\ns_add_u32 s{S_T2}, s{S_T2}, s{S_T}\ns_add_u32 s{S_T2}, s{S_T2}, {WS_CS1}"
        fh = (lambda vm: self.csum_reads(4, box["cls"], r1, wf), lambda vm: self.csum_finish(vm, 4, 14, ones, wf, sacc, vL4, cs1_code))
        def hsig(vm):
            if FL1:
                L.e(f"v_mov_b32 v58, {SD_FULL}"); self.lwait(58, 5, "cs1sig")
            self.signal(L, self.off_ji(F_CS1), 52, 53, only_lw0=True); vm.iss("sig")
        def h2a(vm):
            self.group_words(L, 52, F_CS1, S_J)
            L.e(f"buffer_load_dword v53, v52, s[{S_WS}:{S_WS+3}], 0 offen sc1"); vm.iss("pc")
        def h2(vm):
            vm.wait("pc")
            self.poll_test(L, 53, False)
            L.e("s_cbranch_scc1 L_cs1ready")
            self.poll(L, S_WS, 52, 53, "cs1")
            L.label("L_cs1ready")
            self.colsum_loads(L, vm, "cp", cp, 55, t1, 14, 896, f"s_mul_i32 s{S_T2}, s{S_J}, 896\ns_mul_i32 s{S_T}, s{S_LW}, 224\ns_add_u32 s{S_T2}, s{S_T2}, s{S_T}\ns_add_u32 s{S_T2}, s{S_T2}, {WS_CS1}")
        def h4(vm):
            vm.wait("cp")
            self.colsum_reduce(L, cp, 118, t0, 14, SD_CS1, 224)
        def mark(n):
            def fn(vm):
                if n == 0:
                    for k in range(4): L.e(f"v_mov_b32 v{180+k}, -1")
                    L.e(f"s_lshl_b32 s{S_T}, s{S_I}, 4\ns_add_u32 s{S_T}, s{S_T}, s{S_J}\ns_lshl_b32 s{S_T}, s{S_T}, 15\ns_lshl_b32 s{S_T2}, s{S_LW}, 13\ns_add_u32 s{S_T}, s{S_T}, s{S_T2}\ns_add_u32 s71, s{S_T}, {WS_XCH}")
                L.e(f"s_add_u32 s{S_T}, s71, {n*1024}\nbuffer_store_dwordx4 v[180:183], v{self.vL16}, s[{S_WS}:{S_WS+3}], s{S_T} offen sc1"); vm.iss("mark")
            return fn
        F1HOOKS = {0: fh[1], 2: s2a, 3: lambda vm: (hsig(vm), s2b(vm)), 5: h0b, 6: h1, 8: h2a, 9: h2, 11: h4}; F1PEEL = 12
        if self.o.get("lowhooks", True):
            def low(fn):
                def w(vm):
                    L.e("s_setprio 0"); fn(vm); L.e("s_setprio 1")
                return w
            F1HOOKS = {0: fh[1], 2: s2a, 3: lambda vm: (hsig(vm), s2b(vm)), 5: low(h0b), 6: low(lambda vm: h1(vm, 0)), 7: low(lambda vm: h1(vm, 1)),
                       8: lambda vm: (h2a(vm), low(lambda v: h1(v, 2))(vm)), 9: h2, 11: low(h4)}
        if self.o.get("f1late", True):
            F1HOOKS = {1: fh[1], 4: hsig, 7: s2a, 8: h2a, 9: s2b, 10: h2, 12: h0b,
                       13: lambda vm: (h1(vm, 0), h1(vm, 1), h1(vm, 2)), 14: h4}
            F1PEEL = 13
        if self.o.get("sentinel", True) and self.o.get("markat", "o") == "f1":
            for n in range(8):
                prev = F1HOOKS.get(n); mk_ = mark(n)
                F1HOOKS[n] = (lambda vm, p=prev, m=mk_: (m(vm), p(vm) if p else None))
        own1 = self.o.get("own1", True)
        a = C; g.bind(C, vL, self.vt, (8, 9)); cv = Regs(12, 254); g.alloc_compute(cv)
        g.setup_reads()
        nsM = c.nsteps
        if own1:
            nsM = c.nsteps - 1
            assert self.o.get("f1late", True) and not FL1
            F1HOOKS = {1: fh[1], 4: hsig, 6: s2a, 7: h2a, 8: s2b, 9: h2, 11: h0b, 12: lambda vm: (h1(vm, 0), h1(vm, 1), h1(vm, 2)), 13: h4}
            F1PEEL = nsM - c.S
            g.a = C
            a.e(f"s_mov_b32 s{S_RD}, {2*c.SB}")
            for ins in g.set_read_addrs(): a.e(ins)
            a.lds_drain(); a.e("s_setprio 0\ns_barrier")
            for r in g.reads(0, 0): a.lds_rd(*r)
            g.group(0, g.reads(1, 1), [], first=True)
            a.lds_drain(); a.e("s_barrier")
            g.group(1, [], [])
            a.e("s_setprio 3\ns_waitcnt vmcnt(0)")
            self.signal_last(a, 4, 4, self.off_ij(F_S2), t0, t1, "s2")
            g.bind(L, vL, self.vt, (8, 9))
            pre_cs1()
            self.vmP.wait("wpre"); L.e("s_barrier")
            L.e(f"s_cmp_eq_u32 s80, 1\ns_cbranch_scc0 L_csn_pre")
            for r in r1: L.e(f"v_add_u32 v{r}, {2*c.SB}, v{r}")
            self.csum_reads(4, box["cls"], r1, wf)
            L.label("L_csn_pre")
            L.lds_drain(); L.e("s_barrier")
            L.e(f"s_mov_b32 s{S_WR}, {2*c.SB}")
            for ins in g.stage_off(2) + g.dma_w(): L.e(ins)
            def cs_main(vm):
                L.e(f"s_cmp_eq_u32 s80, 1\ns_cbranch_scc1 L_csn_main"); self.csum_reads(4, box["cls"], r1, wf); L.label("L_csn_main")
            fh = (cs_main, fh[1])
            g.bind(C, vL, self.vt, (8, 9))
        self.cpoll(F_H, "f1")
        self.lphase(g, F_H, "f1", hooks=F1HOOKS, npeel=F1PEEL, after_poll=(None if own1 else (lambda vm: pre_cs1())), first_hooks=fh, flags=FL1, ns=nsM)
        g2 = self.g[3]
        self.lsetup(g2, A_W2, DFF*D*2, WS_H1, khalf=True)
        own2 = self.o.get("own2", True)
        if own2:
            L.e(f"s_mul_i32 s{S_A}, s{S_J}, 7\ns_add_u32 s{S_A}, s{S_A}, 1\ns_lshr_b32 s{S_A}, s{S_A}, 1\ns_lshr_b32 s{S_T}, s{S_J}, 3\ns_mul_i32 s{S_T}, s{S_T}, 28\ns_sub_u32 s{S_A}, s{S_A}, s{S_T}")
            for ins in g2.rot_init(): L.e(ins)
            vmA = VM(L)
            L.e(f"s_mul_i32 s{S_WOFF}, s{S_A}, {64*2048}\ns_add_u32 s{S_WOFF}, s{S_WOFF}, s{S_WB0}\ns_mov_b32 s{S_WR}, 0")
            for n in range(3):
                for ins in g2.dma_w(): L.e(ins)
                vmA.iss(("w", n), g2.c.nWld)
                L.e(f"s_add_u32 s{S_WOFF}, s{S_WOFF}, {64*2048}\ns_add_u32 s{S_WR}, s{S_WR}, {g2.c.SB}")
            vmA.wait(("w", 0)); L.e("s_barrier")
            vmA.wait(("w", 1)); L.e("s_barrier")
            vmA.wait(("w", 2)); L.e("s_barrier")
            L.e("s_barrier")
        g.bind(C, vL, self.vt, (8, 9)); g.a = C
        em = g.em; l, wm, wn = g.l, g.wm, g.wn
        f1hooks = None
        self.cloop(g, stamps=(9, 10), hooks=f1hooks, flags=FL1, cv=cv, ns=nsM, first=not own1)
        fr = g.frag0
        mu = fr; cs = fr+4; pk = fr+32; va = fr+44; vb = va+1; vc = va+2; vo = va+3
        em.vemit((wm*64 + (l & 15))*4 + SD_MEAN2, va)
        for x in range(4): a.lds_rd(f"ds_read_b32 v{mu+x}, v{va} offset:{x*64}", [mu+x])
        em.vemit(wn*512 + (l >> 4)*16 + SD_CS1, vb)
        em.vemit(wn*64 + (l >> 4)*16 + SD_CS1 + 384, vc)
        for f in range(6): a.lds_rd(f"ds_read_b128 {vr(cs+4*f,4)}, v{vb} offset:{f*64}", rng(cs+4*f, 4))
        a.lds_rd(f"ds_read_b128 {vr(cs+24,4)}, v{vc}", rng(cs+24, 4))
        a.e(f"s_mul_i32 s71, s{S_I}, {56*16384}\ns_lshl_b32 s{S_T}, s{S_WM}, 13\ns_add_u32 s71, s71, s{S_T}\ns_add_u32 s71, s71, {WS_H1}\ns_mul_i32 s{S_T4}, s{S_J}, 7")
        def fold(x, f):
            acc = g.acc[x][f]; c0 = cs + 4*f
            for p in range(2):
                a.e(f"v_pk_fma_f32 {vr(acc+2*p,2)}, {vr(mu+(x & ~1),2)}, {vr(c0+2*p,2)}, {vr(acc+2*p,2)} op_sel:[{x & 1},0,0] op_sel_hi:[{x & 1},1,1] neg_lo:[1,0,0] neg_hi:[1,0,0]")
        def kappa(phi_code):
            a.e(phi_code)
            a.e(f"s_lshr_b32 s{S_T2}, s{S_T}, 1\ns_lshl_b32 s{S_T2}, s{S_T2}, 14\ns_and_b32 s{S_T}, s{S_T}, 1\ns_lshl_b32 s{S_T}, s{S_T}, 10\ns_add_u32 s{S_T}, s{S_T}, s{S_T2}\ns_add_u32 s{S_T}, s{S_T}, s71")
        vlw = fr+48
        def lds_own(phi_code):
            if not own2: return
            a.e(phi_code)
            a.e(f"s_and_b32 s{S_T3}, s{S_J}, 1\ns_sub_i32 s{S_T2}, s{S_T2}, s{S_T3}\ns_and_b32 s{S_T3}, s{S_T2}, 1\ns_lshl_b32 s{S_T3}, s{S_T3}, 10\ns_ashr_i32 s{S_T2}, s{S_T2}, 1\ns_and_b32 s{S_T2}, s{S_T2}, 3\ns_lshl_b32 s{S_T2}, s{S_T2}, 15")
            a.e(f"s_add_u32 s{S_T2}, s{S_T2}, s{S_T3}\ns_lshl_b32 s{S_T3}, s{S_WM}, 13\ns_add_u32 s{S_T2}, s{S_T2}, s{S_T3}\nv_add_u32 v{vlw}, s{S_T2}, v{self.vL16}")
        n = 0
        for pr in range(3):
            a.need(list(rng(mu, 4)) + list(rng(cs+8*pr, 8)))
            lds_own(f"s_lshl_b32 s{S_T2}, s{S_WN}, 2\ns_add_u32 s{S_T2}, s{S_T2}, {pr}")
            kappa(f"s_lshl_b32 s{S_T}, s{S_WN}, 2\ns_add_u32 s{S_T}, s{S_T}, s{S_T4}\ns_add_u32 s{S_T}, s{S_T}, {pr}")
            for x in range(4):
                fold(x, 2*pr); fold(x, 2*pr+1)
                A, B = g.acc[x][2*pr], g.acc[x][2*pr+1]; p = pk + 4*(n & 1); n += 1
                a.e(f"v_cvt_pk_bf16_f32 v{p}, v{A}, v{A+1}\nv_cvt_pk_bf16_f32 v{p+1}, v{A+2}, v{A+3}\nv_cvt_pk_bf16_f32 v{p+2}, v{B}, v{B+1}\nv_cvt_pk_bf16_f32 v{p+3}, v{B+2}, v{B+3}")
                for k in range(4): a.e(f"v_pk_max_i16 v{p+k}, v{p+k}, 0")
                if x == 2: a.e(f"s_add_u32 s{S_T}, s{S_T}, 4096")
                a.e(f"buffer_store_dwordx4 {vr(p,4)}, v{self.vL16}, s[{S_WS}:{S_WS+3}], s{S_T} offen offset:{(x & 1)*2048} sc1")
                if own2: a.lds_other(f"ds_write_b128 v{vlw}, {vr(p,4)} offset:{x*2048}")
        a.need(rng(cs+24, 4))
        kappa(f"s_add_u32 s{S_T}, s{S_T4}, 3")
        em.vemit(l*16 + wn*8, vo)
        lds_own(f"s_mov_b32 s{S_T2}, 3")
        if own2: a.e(f"s_lshl_b32 s{S_T3}, s{S_WN}, 3\nv_add_u32 v{vlw}, s{S_T3}, v{vlw}")
        for x in range(4):
            fold(x, 6)
            A = g.acc[x][6]; p = pk + 4*(n & 1); n += 1
            a.e(f"v_cvt_pk_bf16_f32 v{p}, v{A}, v{A+1}\nv_cvt_pk_bf16_f32 v{p+1}, v{A+2}, v{A+3}\nv_pk_max_i16 v{p}, v{p}, 0\nv_pk_max_i16 v{p+1}, v{p+1}, 0")
            if x == 2: a.e(f"s_add_u32 s{S_T}, s{S_T}, 4096")
            a.e(f"buffer_store_dwordx2 {vr(p,2)}, v{vo}, s[{S_WS}:{S_WS+3}], s{S_T} offen offset:{(x & 1)*2048} sc1")
            if own2: a.lds_other(f"ds_write_b64 v{vlw}, {vr(p,2)} offset:{x*2048}")
        if not own2:
            self.bar()
            self.lweights(self.g[3])
            a.e("s_waitcnt vmcnt(0)")
            self.signal_last(a, 3, 4, self.off_ij(F_H1), t0, t1, "h1")
            self.stamp(C, 11)

    def phase_f2(self, g):
        C, L, c = self.C, self.L, g.c
        vL = self.vL; t0, t1, t2, t3, t4, t5 = self.vt
        own2 = self.o.get("own2", True)
        a = C; g.bind(C, vL, self.vt, (8, 9)); cv = Regs(12, 254)
        a.e(f"s_lshr_b32 s3, s{S_J}, 3")
        g.alloc_compute(cv)
        em = g.em; l, wm, wn = g.l, g.wm, g.wn
        hr = cv.alloc(16, 4); pt = cv.alloc(32, 4); rs = cv.alloc(4, 4); pk = cv.alloc(8, 4); va = cv.alloc(); vo = cv.alloc()
        g.setup_reads()
        nsB = c.nsteps
        if own2:
            g.a = C
            def pub():
                a.e("s_setprio 3\ns_waitcnt vmcnt(0)")
                self.signal_last(a, 3, 4, self.off_ij(F_H1), t0, t1, "h1")
                self.stamp(C, 11)
                a.e("s_setprio 0")
            if self.o.get("pubmid", True):
                self.cloop(g, stamps=(None, None), ns=3, first=True, sfx="a", peel_first=pub)
            else:
                self.cloop(g, stamps=(None, None), ns=3, first=True, sfx="a")
                pub()
            nsB = c.nsteps - 3
            self.lweights(g, init=False)
        def hookF2(a):
            a.e(f"s_and_b32 s{S_T}, s{S_J}, 7\ns_lshl_b32 s{S_T}, s{S_T}, 1\ns_add_u32 s{S_T}, s{S_T}, s{S_WN}\ns_lshl_b32 s{S_T2}, s{S_I}, 4\ns_add_u32 s{S_T}, s{S_T}, s{S_T2}\ns_lshl_b32 s{S_T}, s{S_T}, 14")
            a.e(f"s_lshl_b32 s{S_T2}, s{S_WM}, 13\ns_add_u32 s{S_T}, s{S_T}, s{S_T2}\ns_lshl_b32 s{S_T2}, s3, 10\ns_add_u32 s{S_T}, s{S_T}, s{S_T2}\ns_add_u32 s{S_T}, s{S_T}, {WS_H}")
            for x in range(4):
                if x == 2: a.e(f"s_add_u32 s{S_T}, s{S_T}, 4096")
                a.e(f"buffer_load_dwordx4 {vr(hr+4*x,4)}, v{self.vL16}, s[{S_WS}:{S_WS+3}], s{S_T} offen offset:{(x & 1)*2048} sc1")
        if self.o.get("res2out", True):
            a.e(f"s_cmp_eq_u32 s{S_LW}, 0\ns_cbranch_scc1 L_res2a"); hookF2(a); a.label("L_res2a")
        self.cpoll(F_H1, "f2")
        if self.o.get("res2out", True):
            a.e(f"s_cmp_lg_u32 s{S_LW}, 0\ns_cbranch_scc1 L_res2b"); hookF2(a); a.label("L_res2b")
        FL2 = 1 if self.o.get("flags2", False) else 0
        self.lphase(g, F_H1, "f2", ns=nsB, flags=FL2)
        g.bind(C, vL, self.vt, (8, 9)); g.a = C; em = g.em
        self.cloop(g, stamps=(12, 13), hooks=(None if self.o.get("res2out", True) else {nsB - 5: hookF2}), ns=nsB, first=not own2, flags=FL2, cv=cv)
        a.e(f"s_lshl_b32 s{S_T}, s{S_I}, 4\ns_add_u32 s{S_T}, s{S_T}, s{S_J}\ns_lshl_b32 s{S_T}, s{S_T}, 15\ns_lshl_b32 s{S_T2}, s{S_LW}, 13\ns_add_u32 s{S_T}, s{S_T}, s{S_T2}\ns_add_u32 s{S_T}, s{S_T}, {WS_XCH}")
        for x in range(4):
            if x == 2: a.e(f"s_add_u32 s{S_T}, s{S_T}, 4096")
            for f in range(2):
                a.e(f"buffer_store_dwordx4 {vr(g.acc[x][2+f],4)}, v{self.vL16}, s[{S_WS}:{S_WS+3}], s{S_T} offen offset:{((x & 1)*2+f)*1024} sc1")
        em.vemit((wm*64 + (l & 15))*4 + SD_RSTD2, va)
        for x in range(4): a.lds_rd(f"ds_read_b32 v{rs+x}, v{va} offset:{x*64}", [rs+x])
        srd(a, S_OUT, *self.ptr(A_OUT), M*D*2)
        em.vemit((l & 15)*2048 + ((l >> 4) & 1)*32 + (l >> 5)*16, vo)
        prefold = self.o.get("prefold", False)
        if prefold:
            a.e("s_waitcnt vmcnt(8)")
            a.need(rng(rs, 4))
            for x in range(4):
                for f in range(2):
                    acc = g.acc[x][f]
                    for d in range(2):
                        src = hr + 4*x + 2*f + d
                        a.e(f"v_lshlrev_b32 v{t0}, 16, v{src}\nv_and_b32 v{t1}, 0xffff0000, v{src}")
                        a.e(f"v_fma_f32 v{acc+2*d}, v{acc+2*d}, v{rs+x}, v{t0}\nv_fma_f32 v{acc+2*d+1}, v{acc+2*d+1}, v{rs+x}, v{t1}")
        if not self.o.get("sentinel", True):
            a.e("s_waitcnt vmcnt(0)")
            self.signal(a, self.off_ijw(F_P, S_LW), t0, t1)
            a.e(f"s_xor_b32 s{S_T2}, s{S_J}, 8\ns_lshl_b32 s{S_T2}, s{S_T2}, 2\ns_lshl_b32 s{S_T}, s{S_I}, 6\ns_add_u32 s{S_T}, s{S_T}, s{S_T2}\ns_add_u32 s{S_T}, s{S_T}, s{S_LW}\ns_lshl_b32 s{S_T}, s{S_T}, 2\ns_add_u32 s{S_T}, s{S_T}, {F_P}\nv_mov_b32 v{t2}, s{S_T}")
            self.poll(a, S_WS, t2, t3, "p")
        a.e(f"s_xor_b32 s{S_T}, s{S_J}, 8\ns_lshl_b32 s{S_T2}, s{S_I}, 4\ns_add_u32 s{S_T}, s{S_T}, s{S_T2}\ns_lshl_b32 s{S_T}, s{S_T}, 15\ns_lshl_b32 s{S_T2}, s{S_LW}, 13\ns_add_u32 s{S_T}, s{S_T}, s{S_T2}\ns_add_u32 s{S_T3}, s{S_T}, {WS_XCH}\ns_add_u32 s{S_T4}, s{S_T3}, 4096")
        if self.o.get("sentinel", True):
            a.e(f"s_mov_b32 s{S_CNT}, {POLL_MAX}")
            a.label("L_xch")
        for x in range(4):
            for f in range(2):
                a.e(f"buffer_load_dwordx4 {vr(pt+8*x+4*f,4)}, v{self.vL16}, s[{S_WS}:{S_WS+3}], s{S_T3 if x < 2 else S_T4} offen offset:{((x & 1)*2+f)*1024} sc1")
        if self.o.get("sentinel", True):
            a.e("s_waitcnt vmcnt(0)")
            a.e(f"v_max3_u32 v{t0}, v{pt}, v{pt+1}, v{pt+2}")
            for k in range(3, 31, 2): a.e(f"v_max3_u32 v{t0}, v{t0}, v{pt+k}, v{pt+k+1}")
            a.e(f"v_max_u32 v{t0}, v{t0}, v{pt+31}\nv_cmp_ne_u32 vcc, -1, v{t0}\ns_nop 4\ns_cmp_eq_u64 vcc, exec\ns_cbranch_scc1 L_xch_done")
            a.e(f"s_sub_u32 s{S_CNT}, s{S_CNT}, 1\ns_cmp_lg_u32 s{S_CNT}, 0\ns_cbranch_scc1 L_xch")
            a.label("L_xch_done")
        a.e(f"s_lshl_b32 s{S_T}, s{S_I}, 1\ns_add_u32 s{S_T}, s{S_T}, s{S_WM}\ns_lshl_b32 s{S_T}, s{S_T}, 17\ns_and_b32 s{S_T2}, s{S_J}, 7\ns_lshl_b32 s{S_T2}, s{S_T2}, 8\ns_add_u32 s{S_T}, s{S_T}, s{S_T2}")
        a.e(f"s_lshl_b32 s{S_T2}, s{S_WN}, 7\ns_add_u32 s{S_T}, s{S_T}, s{S_T2}\ns_lshl_b32 s{S_T2}, s3, 6\ns_add_u32 s{S_T}, s{S_T}, s{S_T2}")
        a.need(rng(rs, 4))
        for x in range(4):
            if not self.o.get("sentinel", True): a.e(f"s_waitcnt vmcnt({(3-x)*2 + x})")
            p = pk + 4*(x & 1)
            for f in range(2):
                acc = g.acc[x][f]; q_ = pt + 8*x + 4*f
                if prefold:
                    for pp_ in range(2):
                        a.e(f"v_pk_fma_f32 {vr(acc+2*pp_,2)}, {vr(q_+2*pp_,2)}, {vr(rs+(x & ~1),2)}, {vr(acc+2*pp_,2)} op_sel:[0,{x & 1},0] op_sel_hi:[1,{x & 1},1]")
                    for d in range(2): a.e(f"v_cvt_pk_bf16_f32 v{p+2*f+d}, v{acc+2*d}, v{acc+2*d+1}")
                    continue
                for pp_ in range(2):
                    a.e(f"v_pk_add_f32 {vr(acc+2*pp_,2)}, {vr(acc+2*pp_,2)}, {vr(q_+2*pp_,2)}")
                for d in range(2):
                    src = hr + 4*x + 2*f + d
                    a.e(f"v_lshlrev_b32 v{t0}, 16, v{src}\nv_and_b32 v{t1}, 0xffff0000, v{src}")
                    a.e(f"v_fma_f32 v{t0}, v{acc+2*d}, v{rs+x}, v{t0}\nv_fma_f32 v{t1}, v{acc+2*d+1}, v{rs+x}, v{t1}")
                    a.e(f"v_cvt_pk_bf16_f32 v{p+2*f+d}, v{t0}, v{t1}")
            a.e("s_nop 1")
            a.e(f"v_permlane16_swap_b32 v{p}, v{p+2}\nv_permlane16_swap_b32 v{p+1}, v{p+3}")
            a.e(f"buffer_store_dwordx4 {vr(p,4)}, v{vo}, s[{S_OUT}:{S_OUT+3}], s{S_T} offen sc1")
            if x < 3: a.e(f"s_add_u32 s{S_T}, s{S_T}, {16*2048}")
        self.stamp(C, 14)

if __name__ == "__main__":
    import sys
    diag = "--diag" in sys.argv
    args = [x for x in sys.argv[1:] if not x.startswith("--")]
    out = args[0] if args else "mk.s"
    mk = MK(dict(diag=diag))
    body = mk.build()
    hdr = f"""; Single persistent launch: 256 workgroups (one per CU) x 8 waves (4 MFMA waves + 4 loader/helper waves).
; @launch grid=(256,1,1) block=(512,1,1) lds={LDS_TOTAL}
.amdgcn_target "amdgcn-amd-amdhsa--gfx950"
.text
"""
    open(out, "w").write(hdr + body)
    print("wrote", out, len((hdr+body).splitlines()), "lines")
```

```python
from common import *
from expr import *
import banks, math

def magic_div(d, maxv):
    for sh in (16, 17, 18, 20):
        m = (1 << sh)//d + 1
        if m*maxv < (1 << 32) and m < (1 << 24) and all(((c*m) >> sh) == c//d for c in range(maxv)): return m, sh
    raise RuntimeError

S_XSRD, S_WSRD = 4, 8
S_E0, S_E1, S_E2, S_E3 = 12, 16, 20, 24
S_I, S_J, S_WV, S_T = 28, 29, 30, 31
S_XOFF, S_WOFF, S_RD, S_WR, S_CNT, S_XL, S_WL = 32, 33, 34, 35, 36, 37, 38
S_T2, S_T3, S_T4 = 39, 40, 41
S_WM, S_WN = 42, 43
S_PTR = 44
S_EX = 62
S_ET = [64, 65, 66, 67, 68, 69]
S_LW = 70
S_XB0, S_WB0, S_N, S_K, S_A = 72, 73, 74, 75, 76

class Cfg:
    def __init__(self, **kw):
        self.S = 3; self.G = 1; self.BK = 64; self.TM = 128; self.shape = 32
        self.no_mfma = False; self.no_dma = False; self.loaders = False; self.qkvseg = False
        self.__dict__.update(kw)

class G:
    def __init__(self, c, a, v, vLane, vt):
        self.c = c; self.a = a; self.v = v; self.vLane = vLane; self.vt = vt
        c.T = c.shape; c.KS = 16 if c.shape == 32 else 32
        c.NSUB = c.BK//c.KS
        c.nX = c.TM//c.T//c.WM; c.nW = c.TN//c.T//c.WN
        c.AR = 16 if c.shape == 32 else 4
        c.RS = c.TN*2
        c.XB = c.TM*c.BK*2; c.WB = c.BK*c.RS; c.SB = c.XB + c.WB
        c.nXld = c.XB//1024//4; c.nWld = c.WB//1024//4
        assert c.nWld*4096 == c.WB and c.nXld == 4
        c.nld = c.nXld + c.nWld
        c.nsteps = c.K//c.BK
        self.l = V("l"); self.wm = S("wm"); self.wn = S("wn"); self.lw = S("lw")
        self.em = Emitter(a, {"l": vLane}, {"wm": S_WM, "wn": S_WN, "lw": S_LW, "i": S_I, "j": S_J, "kh": 3}, vt, S_ET)
        self.check_banks(); self.plan_reads()
        if not getattr(c, "split", False): self.alloc()
    def wswz(self, row):
        c = self.c; m = c.RS % 256
        if c.shape == 32:
            if m == 128: return ((row >> 1) & 1) << 2
            if m in (64, 192): return C(0)
            return (row & 3) << 2
        if c.korder in ("fn", "fn32"):
            if m == 128: return ((row >> 1) & 3) << 1
            if m in (64, 192): return ((row >> 2) & 1) << 1
            return (row & 7) << 1
        if m == 128: return (((row >> 1) & 1) | (((row >> 3) & 1) << 1)) << 1
        if m in (64, 192): return ((row >> 3) & 1) << 1
        return ((row & 3) | (((row >> 3) & 1) << 2)) << 1
    def wrow(self, ks, j):
        c = self.c; l = self.l
        r = (l >> 2) & 3
        if c.shape == 32:
            h = l >> 5
            return (h*4 + (16*ks + 8*j) if c.korder == "fn" else h*8 + (16*ks + 4*j)) + r
        g = l >> 4
        if c.korder == "fn": return g*4 + (32*ks + 16*j) + r
        if c.korder == "fn32": return (g >> 1)*16 + (g & 1)*4 + (32*ks + 8*j) + r
        return g*8 + (32*ks + 4*j) + r
    def waddr(self, f, ks, j):
        c = self.c; l = self.l
        row = self.wrow(ks, j)
        col = c.fcol(self.wn, f)
        ch = col >> 3
        if c.shape == 32: ch = ch + ((l >> 4) & 1)*2
        ch = ch + ((l >> 1) & 1)
        return row*c.RS + ((ch ^ self.wswz(row)) << 4) + (l & 1)*8 + c.XB
    def xaddr(self, x, ks):
        c = self.c; l = self.l; wm = self.wm
        mt = wm*c.nX + x
        if c.xsrc == "fn":
            return (mt*(4 if c.shape == 32 else 2) + ks)*1024 + l*16
        if c.shape == 32: row = mt*32 + (l & 31); ch = (l >> 5) + 2*ks
        else: row = mt*16 + (l & 15); ch = (l >> 4) + 4*ks
        return row*128 + ((ch ^ ((row >> 1) & 7)) << 4)
    def _tab(self, e):
        c = self.c
        return [e.ev({"l": l, "wm": wm, "wn": wn, "kh": kh}) for kh in range(2) for wm in range(c.WM) for wn in range(c.WN) for l in range(64)]
    def check_banks(self):
        c = self.c
        for x in range(c.nX):
            for ks in range(c.NSUB):
                t = self._tab(self.xaddr(x, ks))
                for w in range(len(t)//64): assert banks.conflicts_b128(t[64*w:64*w+64]) == 0, "X conflict"
        for f in range(c.nW):
            for ks in range(c.NSUB):
                for j in range(2):
                    t = self._tab(self.waddr(f, ks, j))
                    for w in range(len(t)//64): assert banks.conflicts_b64(t[64*w:64*w+64]) == 0, ("W conflict", f, ks, j)
    def plan_reads(self):
        c = self.c
        def plan(keys, fn):
            base = []; cls = {}
            for k in keys:
                t = self._tab(fn(*k)); found = False
                for ci, (bk, bt) in enumerate(base):
                    ds = {p - q for p, q in zip(t, bt)}
                    if len(ds) == 1 and 0 <= min(ds) < 65536: cls[k] = (ci, ds.pop()); found = True; break
                if not found: base.append((k, t)); cls[k] = (len(base)-1, 0)
            return [b[0] for b in base], cls
        self.xbase, self.xcls = plan([(x, ks) for ks in range(c.NSUB) for x in range(c.nX)], self.xaddr)
        self.wbase, self.wcls = plan([(f, ks, j) for ks in range(c.NSUB) for f in range(c.nW) for j in range(2)], self.waddr)
    def alloc(self):
        self.alloc_loader(self.v); self.alloc_compute(self.v)
    def alloc_loader(self, v):
        c = self.c
        self.vXsrc = [v.alloc() for _ in range(4 if c.xsrc == "rm" else 1)]
        self.vWsrc = [v.alloc() for _ in range(c.nWld)]
    def bind(self, a, vLane, vt, tmp2=None):
        self.a = a; self.vLane = vLane; self.vt = vt
        self.em = Emitter(a, {"l": vLane}, {"wm": S_WM, "wn": S_WN, "lw": S_LW, "i": S_I, "j": S_J, "kh": 3}, vt, S_ET)
        if tmp2: self.v_tmp2 = tmp2
    def alloc_compute(self, v):
        c = self.c
        self.vXl = [v.alloc() for _ in self.xbase]; self.vXa = [v.alloc() for _ in self.xbase]
        self.vWl = [v.alloc() for _ in self.wbase]; self.vWa = [v.alloc() for _ in self.wbase]
        self.fX = [[[v.alloc(4, 4) for x in range(c.nX)] for g in range(c.G)] for s in range(2)]
        self.fW = [[[v.alloc(4, 4) for f in range(c.nW)] for g in range(c.G)] for s in range(2)]
        self.frag0 = self.fX[0][0][0]; self.frag_end = v.n
        self.acc = [[v.alloc(c.AR, 4) for f in range(c.nW)] for x in range(c.nX)]
    def setup_dma(self):
        c, a, em = self.c, self.a, self.em
        l, lw = self.l, self.lw
        if c.xsrc == "fn":
            em.vemit(lw*4096 + l*16, self.vXsrc[0])
            a.e(f"s_mul_i32 s{S_XOFF}, s{S_I}, {(c.Kx//64)*16384}")
            if c.xoff0: a.e(f"s_add_u32 s{S_XOFF}, s{S_XOFF}, {c.xoff0}") if isinstance(c.xoff0, int) else c.xoff0(a)
        else:
            x0, x1 = self.vXsrc[0], self.vXsrc[1]
            em.vemit((lw*32 + (l >> 3))*c.ldx + (((l & 7) ^ (l >> 4)) << 4), x0)
            a.e(f"v_xor_b32 v{x1}, 64, v{x0}")
            a.e(f"v_add_u32 v{self.vXsrc[2]}, {16*c.ldx - 2048}, v{x0}\nv_add_u32 v{self.vXsrc[3]}, {24*c.ldx - 3072}, v{x1}\nv_add_u32 v{x1}, {8*c.ldx - 1024}, v{x1}")
            a.e(f"s_mul_i32 s{S_XOFF}, s{S_I}, {128*c.ldx}")
        self.w_addresses()
        c.woff(a)
        a.e(f"s_lshl_b32 s{S_XL}, s{S_LW}, 12")
        a.e(f"s_mul_i32 s{S_WL}, s{S_LW}, {c.nWld*1024}\ns_add_u32 s{S_WL}, s{S_WL}, {c.XB}")
    def w_addresses(self):
        c, a, em = self.c, self.a, self.em
        l, lw = self.l, self.lw
        cpr = c.TN//8
        mg, sh = magic_div(cpr, c.nWld*256)
        vr_, vp = self.v_tmp2
        em.vr["row"] = vr_; em.vr["p"] = vp; row = V("row"); p = V("p")
        for n in range(c.nWld):
            em.vemit(lw*(c.nWld*64) + n*64 + l, vp)
            em.vemit((p*mg) >> sh, vr_)
            em.vemit(p - row*cpr, vp)
            sw = self.wswz(row)
            if not sw.isc() or sw.args[0] != 0: em.vemit(p ^ sw, vp)
            colb = ((p >> 3) << 11) + ((p & 7) << 4) if c.qkvseg else p << 4
            em.vemit(row*c.ldw + colb - (n % 4)*1024, self.vWsrc[n])
    def setup_reads(self):
        em = self.em
        for k, r in zip(self.xbase, self.vXl): em.vemit(self.xaddr(*k), r)
        for k, r in zip(self.wbase, self.vWl): em.vemit(self.waddr(*k), r)
    def dma_x(self):
        c = self.c; out = []
        if c.no_dma: return []
        out.append(f"s_add_u32 m0, s{S_WR}, s{S_XL}")
        for n in range(4):
            src = self.vXsrc[n] if c.xsrc == "rm" else self.vXsrc[0]
            out.append(("s_nop 0\n" if n == 0 else "") + f"buffer_load_dwordx4 v{src}, s[{S_XSRD}:{S_XSRD+3}], s{S_XOFF} offen offset:{n*1024} {c.xflag} lds")
        if not getattr(c, "rot", False): out.append(f"s_add_u32 s{S_XOFF}, s{S_XOFF}, {16384 if c.xsrc == 'fn' else c.BK*2}")
        return out
    def dma_w(self):
        c = self.c; out = []
        if c.no_dma: return []
        for n in range(c.nWld):
            if n % 4 == 0:
                out.append(f"s_add_u32 s{S_T}, s{S_WR}, s{S_WL}\ns_add_u32 m0, s{S_T}, {n*1024}")
            out.append(("s_nop 0\n" if n % 4 == 0 else "") + f"buffer_load_dwordx4 v{self.vWsrc[n]}, s[{S_WSRD}:{S_WSRD+3}], s{S_WOFF} offen offset:{(n % 4)*1024} lds")
        if not getattr(c, "rot", False): out.append(f"s_add_u32 s{S_WOFF}, s{S_WOFF}, {c.BK*c.ldw}")
        return out
    def rot_init(self):
        return [f"s_mov_b32 s{S_XB0}, s{S_XOFF}\ns_mov_b32 s{S_WB0}, s{S_WOFF}"] if getattr(self.c, "rot", False) else []
    def stage_off(self, n=None):
        c = self.c
        if not getattr(c, "rot", False): return []
        rp = getattr(c, "rotpos", 0)
        xd = 16384 if c.xsrc == "fn" else c.BK*2; wd = c.BK*c.ldw
        if getattr(c, "own1", False):
            assert n is not None
            if n == 0: k = f"s_mov_b32 s{S_K}, 0\ns_cmp_ge_u32 s{S_K}, s78\ns_addc_u32 s{S_K}, s{S_K}, 0\ns_cmp_eq_u32 s80, 1\ns_cselect_b32 s{S_K}, s{S_K}, s{S_I}"
            else: k = f"s_add_u32 s{S_K}, s80, {n-1}\ns_cmp_ge_u32 s{S_K}, s78\ns_addc_u32 s{S_K}, s{S_K}, 0\ns_cmp_ge_u32 s{S_K}, s79\ns_addc_u32 s{S_K}, s{S_K}, 0"
            return [k + f"\ns_mul_i32 s{S_XOFF}, s{S_K}, {xd}\ns_add_u32 s{S_XOFF}, s{S_XOFF}, s{S_XB0}\ns_mul_i32 s{S_WOFF}, s{S_K}, {wd}\ns_add_u32 s{S_WOFF}, s{S_WOFF}, s{S_WB0}"]
        if getattr(c, "gap", 0):
            if n is not None: k = f"s_mov_b32 s{S_K}, {n}\ns_cmp_ge_u32 s{S_K}, s{S_A}\ns_cselect_b32 s{S_XOFF}, {c.gap}, 0\ns_add_u32 s{S_K}, s{S_K}, s{S_XOFF}"
            else: k = f"s_add_u32 s{S_N}, s{S_N}, 1\ns_cmp_ge_u32 s{S_N}, s{S_A}\ns_cselect_b32 s{S_XOFF}, {c.gap}, 0\ns_add_u32 s{S_K}, s{S_N}, s{S_XOFF}"
            return [k + f"\ns_mul_i32 s{S_XOFF}, s{S_K}, {xd}\ns_add_u32 s{S_XOFF}, s{S_XOFF}, s{S_XB0}\ns_mul_i32 s{S_WOFF}, s{S_K}, {wd}\ns_add_u32 s{S_WOFF}, s{S_WOFF}, s{S_WB0}"]
        if n == rp: k = f"s_mov_b32 s{S_K}, s{S_I}"
        elif n is not None:
            m = n if n < rp else n-1
            k = f"s_mov_b32 s{S_K}, {m}\ns_cmp_ge_u32 s{S_K}, s{S_I}\ns_addc_u32 s{S_K}, s{S_K}, 0"
        else: k = f"s_cmp_ge_u32 s{S_N}, s{S_I}\ns_addc_u32 s{S_K}, s{S_N}, 0\ns_add_u32 s{S_N}, s{S_N}, 1"
        return [k + f"\ns_mul_i32 s{S_XOFF}, s{S_K}, {xd}\ns_add_u32 s{S_XOFF}, s{S_XOFF}, s{S_XB0}\ns_mul_i32 s{S_WOFF}, s{S_K}, {wd}\ns_add_u32 s{S_WOFF}, s{S_WOFF}, s{S_WB0}"]
    def dma_list(self, n=None): return self.stage_off(n) + self.dma_x() + self.dma_w()
    def reads(self, set_, grp):
        c = self.c; out = []
        for g in range(c.G):
            ks = grp*c.G + g
            def xr(x):
                d = self.fX[set_][g][x]; ci, imm = self.xcls[(x, ks)]
                return (f"ds_read_b128 {vr(d,4)}, v{self.vXa[ci]} offset:{imm}", rng(d,4))
            def wr(f):
                d = self.fW[set_][g][f]; o = []
                for j in range(2):
                    ci, imm = self.wcls[(f, ks, j)]
                    o.append((f"ds_read_b64_tr_b16 {vr(d+2*j,2)}, v{self.vWa[ci]} offset:{imm}", rng(d+2*j,2)))
                return o
            order = self.mfma_order()
            seen = set()
            for (x, f) in order:
                if ("x", x) not in seen: seen.add(("x", x)); out.append(xr(x))
                if ("f", f) not in seen: seen.add(("f", f)); out += wr(f)
        return out
    def mfma_order(self):
        c = self.c
        o = []
        mode = getattr(c, "order", "fx")
        if mode == "fx":
            for f in range(c.nW):
                xs = range(c.nX) if f % 2 == 0 else reversed(range(c.nX))
                o += [(x, f) for x in xs]
        else:
            for x in range(c.nX):
                fs = range(c.nW) if x % 2 == 0 else reversed(range(c.nW))
                o += [(x, f) for f in fs]
        return o
    def mfmas(self, set_, first=False):
        c = self.c; out = []
        op = "v_mfma_f32_32x32x16_bf16" if c.shape == 32 else "v_mfma_f32_16x16x32_bf16"
        for g in range(c.G):
            for (x, f) in self.mfma_order():
                X = self.fX[set_][g][x]; W = self.fW[set_][g][f]; acc = self.acc[x][f]
                A, B = (W, X) if c.orient(f) == "mn" else (X, W)
                srcc = "0" if (first and g == 0) else vr(acc, c.AR)
                out.append((f"{op} {vr(acc,c.AR)}, {vr(A,4)}, {vr(B,4)}, {srcc}", list(rng(X,4)) + list(rng(W,4))))
        return out
    def group(self, set_, reads, extra, first=False, late=(), tail=(), seq=()):
        a = self.a; c = self.c
        ms = self.mfmas(set_, first); n = len(ms)
        reads = list(reads); extra = list(extra); late = list(late); tail = list(tail)
        nearly = max(1, int(n*c.read_frac))
        nr = len(reads); ne = len(extra); nl = len(late); nt = len(tail)
        done_r = 0; done_e = 0; done_l = 0; done_t = 0; drained = False
        startn = int(c.extra_start*n); span = max(1, n - 1 - startn)
        i0 = max(nearly + 1, n - 1 - max(nt, int(0.3*n))) if nt else n
        def flush_scc():
            nonlocal done_e, done_l
            while done_e < ne: a.e(extra[done_e]); done_e += 1
            while done_l < nl - (0 if nt else 1) and nt: a.e(late[done_l]); done_l += 1
        seq = list(seq); nq = len(seq); done_q = 0
        for i, (ins, regs) in enumerate(ms):
            a.need(regs)
            if not c.no_mfma: a.e(ins)
            while done_q < min(nq, -(-nq*(i+1)//max(1, n-2))):
                it = seq[done_q]; done_q += 1
                if isinstance(it, tuple): a.lds_rd(*it)
                else: a.e(it)
            want = min(nr, -(-nr*(i+1)//nearly))
            while done_r < want: a.lds_rd(*reads[done_r]); done_r += 1
            if i >= startn:
                wante = min(ne, -(-ne*(i+1-startn)//span))
                while done_e < wante: a.e(extra[done_e]); done_e += 1
            if done_r == nr and i >= nearly and i < n-1 and done_l < nl:
                left = (min(i0, n-1) if nt else n - 1) - i
                cnt = -(-(nl - done_l)//max(left, 1))
                for _ in range(min(cnt, nl - done_l)):
                    if "s_cmp_lg" in late[done_l]:
                        while done_e < ne: a.e(extra[done_e]); done_e += 1
                    a.e(late[done_l]); done_l += 1
            if nt and i >= i0 and i < n-1:
                if not drained:
                    assert done_r == nr
                    a.lds_drain(); drained = True
                left = n - 1 - i
                cnt = -(-(nt - done_t)//left)
                for _ in range(cnt):
                    op = tail[done_t]
                    if "s_cmp_lg" in op: flush_scc()
                    if isinstance(op, tuple): a.lds_other(op[0])
                    else: a.e(op)
                    done_t += 1
        while done_r < nr: a.lds_rd(*reads[done_r]); done_r += 1
        while done_e < ne: a.e(extra[done_e]); done_e += 1
        while done_l < nl: a.e(late[done_l]); done_l += 1
        assert done_t == nt and done_q == nq, (done_t, nt, done_q, nq)
        assert done_e == ne
    def set_read_addrs(self):
        return [f"v_add_u32 v{r}, s{S_RD}, v{l}" for l, r in zip(self.vXl + self.vWl, self.vXa + self.vWa)]
    def adv_slot(self, s):
        c = self.c
        return f"s_add_u32 s{s}, s{s}, {c.SB}\ns_cmp_eq_u32 s{s}, {c.S*c.SB}\ns_cselect_b32 s{s}, 0, s{s}"

    def compute_loop(self, pre_issue=None, post_issue=None):
        c, a = self.c, self.a
        NG = c.NSUB//c.G; S = c.S; ns = c.nsteps
        own = not c.loaders
        nld = c.nld if (own and not c.no_dma) else 0
        if pre_issue: pre_issue()
        if own:
            a.e(f"s_mov_b32 s{S_WR}, 0")
            for s in range(S):
                for ins in self.dma_list(): a.e(ins)
                a.e(f"s_add_u32 s{S_WR}, s{S_WR}, {c.SB}")
        if post_issue: post_issue(S*nld)
        a.e(f"s_mov_b32 s{S_RD}, 0\ns_mov_b32 s{S_WR}, 0")
        for ins in self.set_read_addrs(): a.e(ins)
        a.lds_drain(f"vmcnt({(S-1)*nld})" if own else "")
        a.e("s_barrier")
        stamp(a, 1); stamp(a, 6, cyc=True)
        for r in self.reads(0, 0): a.lds_rd(*r)
        st = 0
        for g in range(NG-1):
            self.group(st, self.reads(st ^ 1, g+1), [], first=(g == 0)); st ^= 1
        def boundary(vm):
            a.lds_drain(f"vmcnt({vm})" if (vm is not None and own) else "")
            a.e("s_barrier")
        a.e(self.adv_slot(S_RD))
        for ins in self.set_read_addrs(): a.e(ins)
        boundary((S-2)*nld)
        par = st
        def body(t_issue, vm, loopctl=False):
            st = par
            dma = self.dma_list() if (t_issue and own) else []
            chunks = [dma[len(dma)*i//NG: len(dma)*(i+1)//NG] for i in range(NG)]
            for g in range(NG):
                extra = list(chunks[g]); late = []
                if g == NG-1:
                    late.append((f"s_mov_b32 s{S_WR}, s{S_RD}\n" if own else "") + self.adv_slot(S_RD))
                    late += self.set_read_addrs()
                    if loopctl: late.append(f"s_sub_u32 s{S_CNT}, s{S_CNT}, 1\ns_cmp_lg_u32 s{S_CNT}, 0")
                self.group(st, self.reads(st ^ 1, g), extra, late=late); st ^= 1
            a.lds_drain(f"vmcnt({vm})" if (vm is not None and own) else "")
        assert NG % 2 == 0
        nb = ns - S
        if nb > 0:
            a.e(f"s_mov_b32 s{S_CNT}, {nb}\ns_branch L_loop_{c.name}")
            a.label(f"L_top_{c.name}")
            a.e("s_barrier")
            a.label(f"L_loop_{c.name}")
            body(True, (S-2)*nld, loopctl=True)
            a.e(f"s_cbranch_scc1 L_top_{c.name}\ns_barrier")
        for t in range(max(nb, 0), ns-1):
            rem = max(0, (ns-1) - (t+2))
            body(False, min(rem, S-2)*nld if t+2 <= ns-1 else None)
            a.e("s_barrier")
        self.group(par, [], [])
        a.e("s_nop 15")
        stamp(a, 2); stamp(a, 7, cyc=True)

    def loader_loop(self):
        c, a = self.c, self.a
        S = c.S; ns = c.nsteps; nld = 0 if c.no_dma else c.nld
        a.e(f"s_mov_b32 s{S_WR}, 0")
        for s in range(S):
            for ins in self.dma_list(): a.e(ins)
            a.e(f"s_add_u32 s{S_WR}, s{S_WR}, {c.SB}")
        a.e(f"s_mov_b32 s{S_WR}, 0")
        a.e(f"s_waitcnt vmcnt({(S-1)*nld})\ns_barrier")
        a.e(f"s_waitcnt vmcnt({(S-2)*nld})\ns_barrier")
        nb = ns - S
        if nb > 0:
            a.e(f"s_mov_b32 s{S_CNT}, {nb}")
            a.label(f"L_lloop_{c.name}")
            for ins in self.dma_list(): a.e(ins)
            a.e(self.adv_slot(S_WR))
            a.e(f"s_waitcnt vmcnt({(S-2)*nld})\ns_barrier")
            a.e(f"s_sub_u32 s{S_CNT}, s{S_CNT}, 1\ns_cmp_lg_u32 s{S_CNT}, 0\ns_cbranch_scc1 L_lloop_{c.name}")
        for t in range(max(nb, 0), ns-1):
            rem = max(0, (ns-1) - (t+2))
            if t+2 <= ns-1: a.e(f"s_waitcnt vmcnt({min(rem, S-2)*nld})")
            a.e("s_barrier")
```

```python
from gemm2 import *
from hz import HZ
import common

NAME = "sequential_preLN__sliding_block__dense_activation_relu__prompt_kernel"
L_SPARE = 122880
L_SIDE = 159744
SD_MEAN1, SD_RSTD1, SD_CSQ = L_SIDE, L_SIDE+512, L_SIDE+1024
SD_MEAN2, SD_RSTD2, SD_CS1 = L_SIDE+2048, L_SIDE+2560, L_SIDE+3072
SD_CNT = L_SIDE + 3968
SD_TOK = SD_CNT + 32
SD_FULL, SD_FREE = L_SIDE + 4016, L_SIDE + 4032
S_TG = 77
LDS_TOTAL = 163840
AT_K = lambda hh: hh*49152
AT_V = lambda hh: hh*49152 + 24576
AT_Q0 = 98304
WS_KV = 4*MB
WS_ST1 = 36*MB; WS_CSQ = 36*MB + 64*1024; WS_CS1 = 36*MB + 512*1024; WS_ST2 = 37*MB
WS_XCH = 44*MB
WS_FLAG = 52*MB
FSTR = 32768
F_H, F_H1, F_O, F_S2, F_Q = [WS_FLAG + k*FSTR for k in range(5)]
F_KV, F_CS1 = WS_FLAG + 5*FSTR, WS_FLAG + 6*FSTR
F_P = WS_FLAG + 7*FSTR
OOB = 0x7ffffff0
WS_BYTES = 56*MB
S_WS, S_DBG, S_OUT = S_E0, S_E1, S_E2
POLL_MAX = 400000
QSCALE = (DH ** -0.5) * 1.4426950408889634

class VM:
    def __init__(s, a): s.a = a; s.q = []
    def iss(s, tag, n=1): s.q += [tag]*n
    def count_after(s, tag):
        idx = max(i for i, t in enumerate(s.q) if t == tag)
        return len(s.q) - 1 - idx
    def wait(s, tag, extra=""):
        if tag not in s.q: return
        n = min(63, s.count_after(tag))
        s.a.e(f"s_waitcnt vmcnt({n}) {extra}".strip())
        s.q = s.q[len(s.q)-n:] if n else []
    def drain(s): s.a.e("s_waitcnt vmcnt(0)"); s.q = []

class MK:
    def __init__(self, opts=None):
        self.o = dict(diag=False, pf_first=False, pf_weights=True, stop_after=None, tlb=False, codepf=True)
        self.o.update(opts or {})
        self.C = Asm(); self.L = Asm(); self.A = Asm(); self.tail = Asm()
        self.nbar = 0; self.nl = 0; self.lnames = []
    def bar(self):
        self.C.e("s_barrier"); self.L.e("s_barrier")
    def stamp(self, a, k):
        if self.o["diag"]:
            a.e(f"s_memrealtime s[88:89]\ns_waitcnt lgkmcnt(0)\nv_writelane_b32 v255, s88, {k}")
            a.lq = []
    def ptr(self, o): return (S_PTR+16, S_PTR+17) if o == A_WS else (S_PTR + o//4, S_PTR + o//4 + 1)
    def poll_test(self, a, vtmp, x2=False, token=True):
        if token: a.e(f"v_cmp_eq_u32 vcc, s1, v{vtmp}\ns_nop 4\ns_cmp_eq_u64 vcc, exec")
        else: a.e(f"v_cmp_ne_u32 vcc, 0, v{vtmp}\ns_nop 4\ns_cmp_eq_u64 vcc, exec")
    def poll(self, a, srd_, vaddr, vtmp, label, byte=False, x2=False, token=True):
        a.e(f"s_mov_b32 s{S_CNT}, {POLL_MAX}")
        a.label(f"L_poll_{label}")
        ld = f"buffer_load_dwordx2 {vr(vtmp,2)}" if x2 else f"buffer_load_{'ubyte' if byte else 'dword'} v{vtmp}"
        a.e(f"{ld}, v{vaddr}, s[{srd_}:{srd_+3}], 0 offen sc1\ns_waitcnt vmcnt(0)")
        self.poll_test(a, vtmp, x2, token)
        a.e(f"s_cbranch_scc1 L_polldone_{label}")
        a.e(f"s_sleep {self.o.get('sleep', 4)}\ns_sub_u32 s{S_CNT}, s{S_CNT}, 1\ns_cmp_lg_u32 s{S_CNT}, 0\ns_cbranch_scc1 L_poll_{label}")
        a.label(f"L_polldone_{label}")
    def one_lane_addr(self, a, dst, soff_reg, only_lw0):
        if only_lw0:
            a.e(f"s_cmp_eq_u32 s{S_LW}, 0\ns_cselect_b32 s{soff_reg}, s{soff_reg}, {hex(OOB)}")
        a.e(f"v_mov_b32 v{dst}, {hex(OOB)}\nv_writelane_b32 v{dst}, s{soff_reg}, 0")
    def signal(self, a, soff_code, vt0, vt1, only_lw0=False, srd_=None, byte=False):
        srd_ = S_WS if srd_ is None else srd_
        a.e(soff_code)
        self.one_lane_addr(a, vt1, S_T, only_lw0)
        a.e(f"v_mov_b32 v{vt0}, s1\nbuffer_store_dword v{vt0}, v{vt1}, s[{srd_}:{srd_+3}], 0 offen sc1")
    def off_ijw(self, base, wreg):
        return f"s_lshl_b32 s{S_T}, s{S_I}, 6\ns_lshl_b32 s{S_T2}, s{S_J}, 2\ns_add_u32 s{S_T}, s{S_T}, s{S_T2}\ns_add_u32 s{S_T}, s{S_T}, s{wreg}\ns_lshl_b32 s{S_T}, s{S_T}, 2\ns_add_u32 s{S_T}, s{S_T}, {base}"
    def off_ij(self, base):
        return f"s_lshl_b32 s{S_T}, s{S_I}, 4\ns_add_u32 s{S_T}, s{S_T}, s{S_J}\ns_lshl_b32 s{S_T}, s{S_T}, 7\ns_add_u32 s{S_T}, s{S_T}, {base}"
    def off_ji(self, base):
        return f"s_lshl_b32 s{S_T}, s{S_J}, 4\ns_add_u32 s{S_T}, s{S_T}, s{S_I}\ns_lshl_b32 s{S_T}, s{S_T}, 7\ns_add_u32 s{S_T}, s{S_T}, {base}"
    def signal_last(self, a, k, nwaves, soff_code, vt0, vt1, label):
        a.e(f"v_mov_b32 v{vt0}, {SD_CNT + 4*k}\nv_mov_b32 v{vt1}, 1\ns_mov_b64 exec, 1")
        a.e(f"ds_add_rtn_u32 v{vt0}, v{vt0}, v{vt1}")
        a.e(soff_code)
        a.e(f"s_waitcnt lgkmcnt(0)\nv_readfirstlane_b32 s{S_T2}, v{vt0}\nv_mov_b32 v{vt0}, 0\nv_mov_b32 v{vt1}, s1\ns_nop 1\ns_cmp_eq_u32 s{S_T2}, {nwaves-1}\ns_cbranch_scc0 L_notlast_{label}")
        a.e(f"buffer_store_dword v{vt1}, v{vt0}, s[{S_WS}:{S_WS+3}], s{S_T} offen sc1")
        a.label(f"L_notlast_{label}")
        a.e("s_mov_b64 exec, -1"); a.lq = []
    def group_words(self, a, dst, base, grp_sreg):
        a.e(f"s_lshl_b32 s{S_T}, s{grp_sreg}, 11\ns_add_u32 s{S_T}, s{S_T}, {base}\nv_and_b32 v{dst}, 15, v{self.vL}\nv_lshlrev_b32 v{dst}, 7, v{dst}\nv_add_u32 v{dst}, s{S_T}, v{dst}")
    def row_words(self, a, dst, base, stride_shift, lane_shift):
        a.e(f"s_lshl_b32 s{S_T}, s{S_I}, {stride_shift}\ns_add_u32 s{S_T}, s{S_T}, {base}\nv_lshlrev_b32 v{dst}, {lane_shift}, v{self.vL}\nv_add_u32 v{dst}, s{S_T}, v{dst}")
    def lane0(self, a, body, label):
        a.e(f"v_cmp_eq_u32 vcc, 0, v{self.vL}\ns_and_saveexec_b64 s[{S_EX}:{S_EX+1}], vcc")
        a.e(body)
        a.e(f"s_mov_b64 exec, s[{S_EX}:{S_EX+1}]")
    def only_lw0(self, a, label, fn):
        a.e(f"s_cmp_lg_u32 s{S_LW}, 0\ns_cbranch_scc1 L_skip_{label}")
        fn()
        a.label(f"L_skip_{label}")

    def cfgs(self):
        base = dict(shape=16, loaders=True, split=True, xflag="", xoff0=0, read_frac=0.5, extra_start=0.3, WM=2, WN=2)
        q = Cfg(name="q", TN=192, K=1024, Kx=1024, xsrc="rm", ldx=2048, korder="std", ldw=6144, qkvseg=True, S=3,
                fcol=lambda wn, f: wn*32 + (64*(f//2) + 16*(f % 2)), orient=lambda f: "nm" if f >= 4 else "mn",
                woff=lambda a: a.e(f"s_lshl_b32 s{S_WOFF}, s{S_J}, 7"), **base)
        o = Cfg(name="o", TN=64, K=1024, Kx=1024, xsrc="fn", korder="fn32", ldw=2048, S=self.o.get("So", 6),
                fcol=lambda wn, f: wn*32 + 16*f, orient=lambda f: "mn",
                woff=lambda a: a.e(f"s_lshl_b32 s{S_WOFF}, s{S_J}, 7"), **base)
        f1 = Cfg(name="f1", TN=224, K=1024, Kx=1024, xsrc="fn", korder="fn", ldw=7168, S=3,
                 fcol=lambda wn, f: (wn*128 + 16*f) if f < 6 else (wn*16 + 96), orient=lambda f: "mn",
                 woff=lambda a: a.e(f"s_mul_i32 s{S_WOFF}, s{S_J}, 448"), **base)
        def woff2(a):
            a.e(f"s_and_b32 s{S_T}, s{S_J}, 7\ns_lshl_b32 s{S_WOFF}, s{S_T}, 8\ns_lshr_b32 s{S_T}, s{S_J}, 3\ns_mul_i32 s{S_T}, s{S_T}, {1792*2048}\ns_add_u32 s{S_WOFF}, s{S_WOFF}, s{S_T}")
        f2 = Cfg(name="f2", TN=128, K=1792, Kx=3584, xsrc="fn", korder="fn", ldw=2048, S=4,
                 fcol=lambda wn, f: (wn*64 + S("kh")*32 + 16*f) if f < 2 else (wn*64 + (S("kh") ^ 1)*32 + 16*(f-2)), orient=lambda f: "mn", woff=woff2, **base)
        for c in (o, f1, f2): c.xflag = "sc1"
        q.read_frac = self.o.get("rfq", 0.75); o.read_frac = self.o.get("rfo", 0.5); f1.read_frac = self.o.get("rf1", 0.9); f2.read_frac = self.o.get("rf2", 0.8)
        if self.o.get("own2", True): f2.rot = True; f2.gap = 3
        if self.o.get("own1", True): f1.own1 = True
        q.rot = True; f1.rot = True; q.rotpos = self.o.get("qrot", 2); f1.rotpos = 0
        return q, o, f1, f2

    def xoff_fn(self, a, c, wsbase, khalf=False):
        a.e(f"s_mul_i32 s{S_XOFF}, s{S_I}, {(c.Kx//64)*16384}\ns_add_u32 s{S_XOFF}, s{S_XOFF}, {wsbase}")
        if khalf:
            a.e(f"s_lshr_b32 s{S_T}, s{S_J}, 3\ns_mul_i32 s{S_T}, s{S_T}, {28*16384}\ns_add_u32 s{S_XOFF}, s{S_XOFF}, s{S_T}")

    def build(self):
        C, L = self.C, self.L
        E = Asm()
        q, o, f1, f2 = self.cfgs()
        self.vL = 1; vt = [2, 3, 4, 5, 6, 7]; tmp2 = (8, 9); self.vL16 = 10; self.vZero = 11
        self.vt = vt
        gq, go, g1, g2 = [G(c, C, None, self.vL, vt) for c in (q, o, f1, f2)]
        self.g = (gq, go, g1, g2)
        E.e(f"s_cmp_ge_u32 s2, 256\ns_cbranch_scc1 L_end")
        if self.o.get("codepf", True):
            E.e("s_getpc_b64 s[96:97]")
            E.label("L_pc")
            E.e("v_lshlrev_b32 v2, 7, v0\ns_mov_b32 s3, L_end-L_pc\nv_min_u32 v2, s3, v2\nglobal_load_dword v254, v2, s[96:97]")
        E.e(f"s_load_dwordx16 s[{S_PTR}:{S_PTR+15}], s[0:1], 0\ns_load_dwordx2 s[{S_PTR+16}:{S_PTR+17}], s[0:1], 64")
        if self.o["diag"]:
            E.e("v_mov_b32 v255, 0\nv_mov_b32 v253, 0"); self.stamp(E, 0)
        E.e(f"s_and_b32 s{S_T}, s2, 7\ns_lshr_b32 s{S_T2}, s2, 3")
        if self.o.get("xmap", 1):
            E.e(f"s_and_b32 s{S_I}, s{S_T}, 1\ns_lshr_b32 s{S_J}, s{S_T}, 1\ns_lshl_b32 s{S_I}, s{S_I}, 3\ns_lshl_b32 s{S_J}, s{S_J}, 2")
        else:
            E.e(f"s_lshr_b32 s{S_I}, s{S_T}, 2\ns_and_b32 s{S_J}, s{S_T}, 3\ns_lshl_b32 s{S_I}, s{S_I}, 3\ns_lshl_b32 s{S_J}, s{S_J}, 2")
        E.e(f"s_lshr_b32 s{S_T}, s{S_T2}, 2\ns_and_b32 s{S_T2}, s{S_T2}, 3\ns_add_u32 s{S_I}, s{S_I}, s{S_T}\ns_add_u32 s{S_J}, s{S_J}, s{S_T2}")
        E.e(f"v_and_b32 v{self.vL}, 63, v0\nv_lshrrev_b32 v2, 6, v0\ns_nop 0\nv_readfirstlane_b32 s{S_WV}, v2\nv_lshlrev_b32 v{self.vL16}, 4, v{self.vL}\nv_mov_b32 v{self.vZero}, 0\ns_nop 1")
        E.e(f"s_and_b32 s{S_LW}, s{S_WV}, 3\ns_lshr_b32 s{S_WM}, s{S_LW}, 1\ns_and_b32 s{S_WN}, s{S_LW}, 1")
        E.e(f"s_cmp_ge_u32 s{S_WV}, 4\ns_cbranch_scc1 L_loader")
        lv = Regs(12, 64)
        gq.alloc_loader(lv); go.alloc_loader(lv); g1.alloc_loader(lv); g2.alloc_loader(lv)
        self.lv_end = lv.n
        self.phase_q(gq, g1)
        self.attention()
        stop = self.o["stop_after"]
        self.phase_o(go)
        self.phase_f1(g1)
        self.phase_f2(g2)
        if self.o["diag"]:
            self.stamp(C, 15)
            C.e(f"s_cmp_lg_u32 s{S_WV}, 0\ns_cbranch_scc1 L_end")
            C.e(f"s_lshl_b32 s{S_T}, s2, 7\ns_add_u32 s{S_T}, s{S_T}, {common.WS_STAMP}\nv_lshlrev_b32 v2, 2, v{self.vL}")
            C.e(f"v_cmp_gt_u32 vcc, 32, v{self.vL}\ns_and_saveexec_b64 s[{S_EX}:{S_EX+1}], vcc")
            C.e(f"buffer_store_dword v255, v2, s[{S_WS}:{S_WS+3}], s{S_T} offen")
            if self.o.get("dbgout") is not None:
                C.e(f"s_cmp_lg_u32 s2, {self.o['dbgout']}\ns_cbranch_scc1 L_end")
                srd(C, S_DBG, *self.ptr(A_DBG), 256)
                C.e(f"v_readlane_b32 s{S_T}, v255, 0\ns_nop 3\nv_subrev_u32 v255, s{S_T}, v255\nv_cmp_gt_u32 vcc, 16, v{self.vL}\ns_nop 1\ns_and_b64 exec, exec, vcc\nv_cmp_lt_u32 vcc, 0, v{self.vL}\ns_nop 1\ns_and_b64 exec, exec, vcc")
                C.e(f"buffer_store_dword v255, v2, s[{S_DBG}:{S_DBG+3}], 0 offen")
        C.e("s_branch L_end")
        if self.o["diag"]:
            L.e(f"s_cmp_lg_u32 s{S_WV}, 4\ns_cbranch_scc1 L_end")
            L.e(f"s_lshl_b32 s{S_T}, s2, 9\ns_add_u32 s{S_T}, s{S_T}, {common.WS_STAMP + 131072}\nv_lshlrev_b32 v2, 2, v{self.vL}")
            L.e(f"buffer_store_dword v255, v2, s[{S_WS}:{S_WS+3}], s{S_T} offen\nbuffer_store_dword v253, v2, s[{S_WS}:{S_WS+3}], s{S_T} offen offset:256")
        txt = head(NAME) + E.text() + C.text() + "L_loader:\n" + L.text() + "  s_branch L_end\n" + self.A.text() + self.tail.text() + "L_end:\n  s_endpgm\n" + kd(NAME)
        return txt

    def srds_common(self, a):
        a.e("s_waitcnt lgkmcnt(0)")
        srd(a, S_WS, *self.ptr(A_WS), WS_BYTES, self.o.get('wsoff', 0))
        srd(a, S_DBG, *self.ptr(A_DBG), 256)

    def phase_q(self, g, g1):
        C, L, c = self.C, self.L, g.c
        vL, vt = self.vL, self.vt
        g.bind(L, vL, vt, (8, 9)); vm = VM(L)
        em = g.em
        L.e(f"s_setprio {3 if self.o.get('lfirst', True) else 1}")
        g.setup_dma()
        if self.o.get("lpro"): self.lstamp("setup")
        L.e("s_waitcnt lgkmcnt(0)")
        srd(L, S_XSRD, *self.ptr(A_X), M*D*2)
        srd(L, S_WSRD, *self.ptr(A_WQKV), D*3*D*2)
        def issue(t):
            for ins in g.dma_list(t): L.e(ins)
            vm.iss(("st", t), c.nld)
        for ins in g.rot_init(): L.e(ins)
        L.e(f"s_mov_b32 s{S_WR}, 0")
        for s in range(2):
            issue(s); L.e(f"s_add_u32 s{S_WR}, s{S_WR}, {c.SB}")
            if s == 0: L.e(f"s_setprio {self.o.get('lprio', 1)}")
            if self.o.get("lpro"): self.lstamp("iss")
        srd(L, S_WS, *self.ptr(A_WS), WS_BYTES, self.o.get('wsoff', 0)); srd(L, S_DBG, *self.ptr(A_DBG), 256)
        sv = Regs(64, 250)
        ones = sv.alloc(4, 4); wf = [sv.alloc(4, 4) for _ in range(8)]; sacc = [sv.alloc(4, 4) for _ in range(4)]
        vS = [sv.alloc() for _ in range(8)]; ldr = sv.alloc(32, 4)
        t0, t1, t2 = vt[0:3]
        L.e(f"v_lshlrev_b32 v{t0}, 2, v{vL}\nv_add_u32 v{t0}, {SD_CNT}, v{t0}\nv_cmp_gt_u32 vcc, 8, v{vL}\ns_and_saveexec_b64 s[{S_EX}:{S_EX+1}], vcc")
        L.lds_other(f"ds_write_b32 v{t0}, v{self.vZero}"); L.e(f"s_mov_b64 exec, s[{S_EX}:{S_EX+1}]")
        for k in range(4): L.e(f"v_mov_b32 v{ones+k}, 0x3f803f80")
        vL4 = sv.alloc(); rq = [sv.alloc() for _ in range(4)]
        late_cs = c.rotpos > 0 and self.o.get("latecs", True)
        if not late_cs:
            L.e(f"v_lshlrev_b32 v{vL4}, 2, v{vL}")
            cls_q = self.csum_setup(g, 3, rq)
        csq_code = f"s_lshl_b32 s{S_T}, s{S_I}, 4\ns_add_u32 s{S_T}, s{S_T}, s{S_J}\ns_mul_i32 s{S_T2}, s{S_T}, 768\ns_mul_i32 s{S_T}, s{S_LW}, 192\ns_add_u32 s{S_T2}, s{S_T2}, s{S_T}\ns_add_u32 s{S_T2}, s{S_T2}, {WS_CSQ}"
        FLQ = 2 if self.o.get("flagsq", False) else 0
        if FLQ: self.lflag_init()
        if self.o.get("lpro"): self.lstamp("pre")
        vm.wait(("st", 0))
        if self.o.get("lpro"): self.lstamp("land")
        L.lds_drain(); self.bar_L_only()
        issue(2); L.e(f"s_mov_b32 s{S_WR}, 0")
        if late_cs:
            L.e(f"v_lshlrev_b32 v{vL4}, 2, v{vL}")
            cls_q = self.csum_setup(g, 3, rq)
        RP = c.rotpos
        if RP == 0: self.csum_reads(3, cls_q, rq, wf)
        vm.wait(("st", 1)); L.lds_drain(); self.bar_L_only()
        ns, S = c.nsteps, c.S
        def hook(t):
            if RP > 0 and t == RP - 1: self.csum_reads(3, cls_q, rq, wf)
            if t == RP: self.csum_finish(vm, 3, 12, ones, wf, sacc, vL4, csq_code)
            if t == RP + 3 and self.o.get("qsigL", True):
                if FLQ:
                    L.e(f"v_mov_b32 v{vS[3]}, {SD_FULL}"); self.lwait(vS[3], RP + 5, "qsig")
                self.signal(L, self.off_ij(F_Q), vS[0], vS[1], only_lw0=True); vm.iss("sig")
            if self.o.get("tokL", True):
                if t == 0:
                    L.e(f"buffer_load_dword v{vS[4]}, v{self.vZero}, s[{S_DBG}:{S_DBG+3}], 0 offen sc1"); vm.iss("tok")
                if t == 2:
                    vm.wait("tok")
                    self.poll_test(L, vS[4], token=False)
                    L.e("s_cbranch_scc1 L_tokready")
                    self.poll(L, S_DBG, self.vZero, vS[4], "tok", token=False)
                    L.label("L_tokready")
                    L.e(f"v_readfirstlane_b32 s1, v{vS[4]}\nv_mov_b32 v{vS[5]}, {SD_TOK}\nds_write_b32 v{vS[5]}, v{vS[4]}")
            elif t == 1:
                L.e(f"v_mov_b32 v{vS[2]}, {SD_TOK}\nds_read_b32 v{vS[2]}, v{vS[2]}\ns_waitcnt lgkmcnt(0)\nv_readfirstlane_b32 s1, v{vS[2]}")
            if t == self.o.get("qpoll", 9):
                t0, t1 = vt[0:2]
                L.e(f"v_and_b32 v{t0}, 15, v{vL}\ns_lshl_b32 s{S_T}, s{S_I}, 4\nv_add_u32 v{t1}, s{S_T}, v{t0}\nv_lshlrev_b32 v{t0}, 4, v{t0}\nv_add_u32 v{t0}, s{S_J}, v{t0}")
                L.e(f"v_and_b32 v{vS[7]}, 16, v{vL}\nv_cmp_eq_u32 vcc, 0, v{vS[7]}\ns_nop 1\nv_cndmask_b32 v{vS[7]}, v{t0}, v{t1}, vcc\nv_lshlrev_b32 v{vS[7]}, 7, v{vS[7]}\nv_add_u32 v{vS[7]}, {F_Q}, v{vS[7]}")
                L.e(f"buffer_load_dword v{vS[6]}, v{vS[7]}, s[{S_WS}:{S_WS+3}], 0 offen sc1"); vm.iss("pollq")
            if t == 11:
                vm.wait("pollq")
                self.poll_test(L, vS[6])
                L.e("s_cbranch_scc1 L_qready")
                self.poll(L, S_WS, vS[7], vS[6], "q")
                L.label("L_qready")
                self.colsum_loads(L, vm, "qld", ldr, vS[1], vS[2], 12, 768, f"s_mul_i32 s{S_T2}, s{S_J}, 768\ns_mul_i32 s{S_T}, s{S_LW}, 192\ns_add_u32 s{S_T2}, s{S_T2}, s{S_T}\ns_add_u32 s{S_T2}, s{S_T2}, {WS_CSQ}")
                L.e(f"s_lshl_b32 s{S_T2}, s{S_I}, 7\ns_lshl_b32 s{S_T}, s{S_LW}, 5\ns_add_u32 s{S_T2}, s{S_T2}, s{S_T}\ns_lshl_b32 s{S_T2}, s{S_T2}, 3\ns_add_u32 s{S_T2}, s{S_T2}, {WS_ST1}")
                L.e(f"v_and_b32 v{vS[3]}, 31, v{vL}\nv_lshlrev_b32 v{vS[3]}, 3, v{vS[3]}\nbuffer_load_dwordx2 {vr(ldr+16,2)}, v{vS[3]}, s[{S_WS}:{S_WS+3}], s{S_T2} offen sc1")
                vm.iss("qld", 1)
            if t == 13:
                vm.wait("qld")
                if self.o.get("lowhooks", True): L.e("s_setprio 0")
                self.colsum_reduce(L, ldr, ldr+20, vS[1], 12, SD_CSQ, 192)
                if self.o.get("lowhooks", True): L.e(f"s_setprio {self.o.get('lprio', 1)}")
                L.e(f"v_and_b32 v{vS[3]}, 31, v{vL}\ns_lshl_b32 s{S_T}, s{S_LW}, 5\nv_add_u32 v{vS[3]}, s{S_T}, v{vS[3]}\nv_lshlrev_b32 v{vS[3]}, 2, v{vS[3]}\nv_add_u32 v{vS[3]}, {SD_MEAN1}, v{vS[3]}")
                L.e(f"ds_write_b32 v{vS[3]}, v{ldr+16}\nds_write_b32 v{vS[3]}, v{ldr+17} offset:512")
                L.e("s_waitcnt lgkmcnt(0)"); L.lq = []
        for t in range(ns-1):
            if t + S <= ns-1:
                if FLQ and t > FLQ: self.lwait(46, t + 2, f"q{t}")
                issue(t+S); L.e(g.adv_slot(S_WR))
            hook(t)
            if t+2 <= ns-1 and ("st", t+2) in vm.q: vm.wait(("st", t+2))
            L.lds_drain()
            if FLQ and FLQ - 1 <= t <= ns-3: self.lfull(t + 3)
            if not FLQ or t < FLQ or t == ns-2:
                L.lds_drain(); self.bar_L_only()
            else: self.lstamp()
        g.bind(C, vL, vt, (8, 9))
        cv = Regs(12, 254); g.alloc_compute(cv)
        g.a = C
        C.e("s_setprio 2")
        a0 = g.acc[0][0]; xr = a0; un = a0 + 16; vS = [a0 + 48 + k for k in range(6)]
        C.e("s_waitcnt lgkmcnt(0)")
        self.stamp(C, 16)
        srd(C, S_XSRD, *self.ptr(A_X), M*D*2)
        srd(C, S_DBG, *self.ptr(A_DBG), 256)
        C.e(f"s_or_b32 s{S_T}, s2, s{S_LW}\ns_cmp_lg_u32 s{S_T}, 0\ns_cbranch_scc1 L_notok")
        C.e(f"s_memrealtime s[88:89]\ns_waitcnt lgkmcnt(0)\ns_or_b32 s88, s88, 1\nv_mov_b32 v{vt[0]}, s88")
        self.lane0(C, f"buffer_store_dword v{vt[0]}, v{self.vZero}, s[{S_DBG}:{S_DBG+3}], 0 offen sc1", "tok")
        C.label("L_notok")
        C.e(f"s_lshl_b32 s{S_T}, s{S_I}, 7\ns_lshl_b32 s{S_T2}, s{S_J}, 3\ns_add_u32 s{S_T}, s{S_T}, s{S_T2}\ns_lshl_b32 s{S_T2}, s{S_LW}, 1\ns_add_u32 s71, s{S_T}, s{S_T2}\ns_lshl_b32 s{S_T}, s71, 11")
        for r in range(2):
            for p in range(2):
                C.e(f"buffer_load_dwordx4 {vr(xr+8*r+4*p,4)}, v{self.vL16}, s[{S_XSRD}:{S_XSRD+3}], s{S_T} offen offset:{r*2048+p*1024}")
        tlb2 = self.o.get("tlb2", False)
        if tlb2:
            t0, t1 = vt[0:2]
            C.e(f"s_cmp_lg_u32 s{S_LW}, 3\ns_cbranch_scc1 L_notlb\nv_lshlrev_b32 v{t0}, 21, v{vL}")
            for arg, size in ((A_WS, 54*MB), (A_WQKV, D*3*D*2), (A_WO, D*D*2), (A_W1, D*DFF*2), (A_W2, DFF*D*2), (A_OUT, M*D*2)):
                p = self.ptr(arg)[0]
                C.e(f"v_min_u32 v{t1}, {hex(size - 4)}, v{t0}\nglobal_load_dword v254, v{t1}, s[{p}:{p+1}]")
            C.label("L_notlb")
        slabpf = self.o.get("slabpf", False)
        if slabpf:
            t0, t1, t2 = vt[0:3]
            mg3, sh3 = magic_div(3, 256)
            srd(C, S_E3, *self.ptr(A_WQKV), D*3*D*2)
            C.e(f"s_mul_i32 s{S_T}, s{S_LW}, 48\nv_min_u32 v{t0}, 47, v{vL}\nv_add_u32 v{t0}, s{S_T}, v{t0}\nv_mul_u32_u24 v{t1}, {mg3}, v{t0}\nv_lshrrev_b32 v{t1}, {sh3}, v{t1}")
            C.e(f"v_mul_u32_u24 v{t2}, 3, v{t1}\nv_sub_u32 v{t0}, v{t0}, v{t2}\nv_lshlrev_b32 v{t0}, 11, v{t0}\nv_mul_u32_u24 v{t1}, 6144, v{t1}\nv_add_u32 v{t0}, v{t0}, v{t1}")
            C.e(f"s_mul_i32 s{S_T}, s{S_I}, {64*6144}\ns_lshl_b32 s{S_T2}, s{S_J}, 7\ns_add_u32 s{S_T}, s{S_T}, s{S_T2}\nbuffer_load_dword v254, v{t0}, s[{S_E3}:{S_E3+3}], s{S_T} offen")
        srd(C, S_WS, *self.ptr(A_WS), WS_BYTES, self.o.get('wsoff', 0))
        g.setup_reads()
        C.e(f"s_lshl_b32 s{S_T}, s2, 2\ns_add_u32 s{S_T}, s{S_T}, s{S_LW}\ns_mul_i32 s{S_T2}, s{S_T}, 43691\ns_lshr_b32 s{S_T2}, s{S_T2}, 19\ns_mul_i32 s{S_T2}, s{S_T2}, 12\ns_sub_u32 s{S_T}, s{S_T}, s{S_T2}\ns_add_u32 s70, s{S_T}, 1" if False else "s_nop 0")
        self.stamp(C, 17)
        if tlb2:
            C.e(f"s_cmp_lg_u32 s{S_LW}, 3\ns_cbranch_scc1 L_tw0\ns_waitcnt vmcnt(6)\ns_branch L_tw1\nL_tw0:\ns_waitcnt vmcnt(0)\nL_tw1:")
        else: C.e(f"s_waitcnt vmcnt({1 if slabpf else 0})")
        self.stamp(C, 18)
        vtok = cv.alloc()
        if not self.o.get("tokL", True):
            C.e(f"buffer_load_dword v{vtok}, v{self.vZero}, s[{S_DBG}:{S_DBG+3}], 0 offen sc1")
        for r in range(2):
            for d in range(8):
                C.e(f"v_lshlrev_b32 v{un+16*r+2*d}, 16, v{xr+8*r+d}\nv_and_b32 v{un+16*r+2*d+1}, 0xffff0000, v{xr+8*r+d}")
        def tree(dst, src):
            pass
        for r in range(2): C.e(f"v_add_f32 v{vS[r]}, v{un+16*r}, v{un+16*r+1}\nv_add_f32 v{vS[2+r]}, v{un+16*r+2}, v{un+16*r+3}")
        for k in range(4, 16, 2):
            for r in range(2): C.e(f"v_add_f32 v{vS[r]}, v{vS[r]}, v{un+16*r+k}\nv_add_f32 v{vS[2+r]}, v{vS[2+r]}, v{un+16*r+k+1}")
        for r in range(2): C.e(f"v_add_f32 v{vS[r]}, v{vS[r]}, v{vS[2+r]}")
        def allred2(x0, x1, ta, tb):
            for p in ["quad_perm:[1,0,3,2]", "quad_perm:[2,3,0,1]", "row_half_mirror", "row_mirror"]:
                C.e("s_nop 0")
                for x in (x0, x1): C.e(f"v_add_f32_dpp v{x}, v{x}, v{x} {p} row_mask:0xf bank_mask:0xf")
            for sw in ("v_permlane16_swap_b32", "v_permlane32_swap_b32"):
                C.e(f"v_mov_b32 v{ta}, v{x0}\nv_mov_b32 v{tb}, v{x1}\ns_nop 0\n{sw} v{ta}, v{x0}\n{sw} v{tb}, v{x1}\ns_nop 0\nv_add_f32 v{x0}, v{x0}, v{ta}\nv_add_f32 v{x1}, v{x1}, v{tb}")
        C.e("s_nop 0")
        allred2(vS[0], vS[1], vS[4], vS[5])
        for r in range(2): C.e(f"v_mul_f32 v{vS[r]}, {fhex(1/1024)}, v{vS[r]}")
        for k in range(16):
            for r in range(2): C.e(f"v_sub_f32 v{un+16*r+k}, v{un+16*r+k}, v{vS[r]}")
        for r in range(2): C.e(f"v_mul_f32 v{vS[2+r]}, v{un+16*r}, v{un+16*r}")
        for k in range(1, 16):
            for r in range(2): C.e(f"v_fmac_f32 v{vS[2+r]}, v{un+16*r+k}, v{un+16*r+k}")
        C.e("s_nop 0")
        allred2(vS[2], vS[3], vS[4], vS[5])
        for r in range(2): C.e(f"v_mul_f32 v{vS[2+r]}, {fhex(1/1024)}, v{vS[2+r]}\nv_add_f32 v{vS[2+r]}, {fhex(EPS)}, v{vS[2+r]}")
        for r in range(2): C.e(f"v_rsq_f32 v{vS[2+r]}, v{vS[2+r]}")
        C.e(f"v_mov_b32 v{un}, v{vS[0]}\nv_mov_b32 v{un+2}, v{vS[1]}\nv_mov_b32 v{un+1}, v{vS[2]}\nv_mov_b32 v{un+3}, v{vS[3]}")
        C.e(f"s_lshl_b32 s{S_T}, s71, 3\ns_add_u32 s{S_T}, s{S_T}, {WS_ST1}")
        self.lane0(C, f"buffer_store_dwordx4 {vr(un,4)}, v{self.vZero}, s[{S_WS}:{S_WS+3}], s{S_T} offen sc1", "st1")
        self.stamp(C, 19)
        nextra = 0
        t0, t1 = vt[0:2]
        if self.o.get("slabpf2", False):
            t2 = vt[2]
            mg3, sh3 = magic_div(3, 256)
            srd(C, S_E3, *self.ptr(A_WQKV), D*3*D*2)
            C.e(f"s_mul_i32 s{S_T}, s{S_LW}, 48\nv_min_u32 v{t0}, 47, v{vL}\nv_add_u32 v{t0}, s{S_T}, v{t0}\nv_mul_u32_u24 v{t1}, {mg3}, v{t0}\nv_lshrrev_b32 v{t1}, {sh3}, v{t1}")
            C.e(f"v_mul_u32_u24 v{t2}, 3, v{t1}\nv_sub_u32 v{t0}, v{t0}, v{t2}\nv_lshlrev_b32 v{t0}, 11, v{t0}\nv_mul_u32_u24 v{t1}, 6144, v{t1}\nv_add_u32 v{t0}, v{t0}, v{t1}")
            C.e(f"s_mul_i32 s{S_T}, s{S_I}, {64*6144}\ns_lshl_b32 s{S_T2}, s{S_J}, 7\ns_add_u32 s{S_T}, s{S_T}, s{S_T2}\nbuffer_load_dword v254, v{t0}, s[{S_E3}:{S_E3+3}], s{S_T} offen"); nextra += 1
        if self.o.get("sentinel", True) and self.o.get("markat", "o") == "q":
            mk4 = a0 + 60
            for k in range(4): C.e(f"v_mov_b32 v{mk4+k}, -1")
            C.e(f"s_lshl_b32 s{S_T}, s{S_I}, 4\ns_add_u32 s{S_T}, s{S_T}, s{S_J}\ns_lshl_b32 s{S_T}, s{S_T}, 15\ns_lshl_b32 s{S_T2}, s{S_LW}, 13\ns_add_u32 s{S_T}, s{S_T}, s{S_T2}\ns_add_u32 s{S_T}, s{S_T}, {WS_XCH}")
            for n in range(8):
                if n == 4: C.e(f"s_add_u32 s{S_T}, s{S_T}, 4096")
                C.e(f"buffer_store_dwordx4 {vr(mk4,4)}, v{self.vL16}, s[{S_WS}:{S_WS+3}], s{S_T} offen offset:{(n & 3)*1024} sc1"); nextra += 1
        if self.o.get("tlb", True):
            C.e(f"v_lshlrev_b32 v{t0}, 21, v{vL}")
            for arg, size in ((A_WQKV, D*3*D*2), (A_X, M*D*2), (A_WS, 54*MB), (A_WO, D*D*2), (A_W1, D*DFF*2), (A_W2, DFF*D*2), (A_OUT, M*D*2)):
                p = self.ptr(arg)[0]
                C.e(f"v_min_u32 v{t1}, {hex(size - 4)}, v{t0}\nglobal_load_dword v254, v{t1}, s[{p}:{p+1}]"); nextra += 1
        pfo = cv.alloc(); pf1 = cv.alloc()
        C.e(f"s_lshl_b32 s{S_T}, s2, 2\ns_add_u32 s{S_T}, s{S_T}, s{S_LW}")
        C.e(f"s_lshl_b32 s{S_T2}, s{S_T}, 4\nv_and_b32 v{pfo}, 15, v{vL}\nv_add_u32 v{pfo}, s{S_T2}, v{pfo}\nv_lshlrev_b32 v{pfo}, 7, v{pfo}")
        C.e(f"s_mul_i32 s{S_T2}, s{S_T}, 56\nv_min_u32 v{pf1}, 55, v{vL}\nv_add_u32 v{pf1}, s{S_T2}, v{pf1}\nv_lshlrev_b32 v{pf1}, 7, v{pf1}")
        def hookB(a):
            p = self.ptr(A_WO)[0]; a.e(f"global_load_dword v254, v{pfo}, s[{p}:{p+1}]")
            if self.o.get("pf_w1", False):
                p = self.ptr(A_W1)[0]; a.e(f"global_load_dword v254, v{pf1}, s[{p}:{p+1}]")
            if self.o.get("pf_w2q", False):
                p = self.ptr(A_W2)[0]; a.e(f"global_load_dword v254, v{pf1}, s[{p}:{p+1}]")
        C.e(f"s_and_b32 s{S_T}, s2, 56\ns_lshr_b32 s{S_T}, s{S_T}, 3\ns_add_u32 s71, s{S_T}, 3")
        def hookS(a):
            a.e(f"s_cmp_lg_u32 s{S_LW}, 0\ns_cbranch_scc1 L_nosigq")
            self.signal(a, self.off_ij(F_Q), vt[0], vt[1])
            a.label("L_nosigq")
        hk = {} if self.o.get("qsigL", True) else {14 - (3 + c.rotpos): hookS}
        if self.o["pf_weights"]: hk["s71"] = hookB
        def peel_end():
            C.e(f"s_waitcnt vmcnt({nextra})")
            if self.o.get("tokL", True): return
            self.poll_test(C, vtok, token=False)
            C.e("s_cbranch_scc1 L_tokready")
            self.poll(C, S_DBG, self.vZero, vtok, "tok", token=False)
            C.label("L_tokready")
            C.e(f"v_readfirstlane_b32 s1, v{vtok}\nv_mov_b32 v{vt[0]}, {SD_TOK}\nds_write_b32 v{vt[0]}, v{vtok}\ns_waitcnt lgkmcnt(0)")
        self.cloop(g, stamps=(1, 2), hooks=hk, peel_first=peel_end, final_seq=(self.capture(g, lambda a_, em_: self.epi_q_prep(g, a_, em_)) if self.o.get("epre", True) else ()), flags=(2 if self.o.get("flagsq", False) else 0), cv=cv)
        self.epi_q(g, cv)

    def bar_L_only(self):
        self.L.e("s_barrier"); self.lstamp()
    def lstamp(self, tag=''):
        if self.o["diag"] and self.o.get("lst") and self.nl < 128:
            self.L.e(f"s_memrealtime s[88:89]\ns_waitcnt lgkmcnt(0)\nv_writelane_b32 v{255 - 2*(self.nl//64)}, s88, {self.nl % 64}"); self.nl += 1; self.L.lq = []
            self.lnames.append(tag)
    def setup_w_only(self, g):
        g.w_addresses()

    def xgroups(self, a, regs, tmp):
        for sw in ("v_permlane16_swap_b32", "v_permlane32_swap_b32"):
            for k, r in enumerate(regs): a.e(f"v_mov_b32 v{tmp+k}, v{r}")
            a.e("s_nop 1")
            for k, r in enumerate(regs): a.e(f"{sw} v{tmp+k}, v{r}")
            a.e("s_nop 1")
            for k, r in enumerate(regs): a.e(f"v_add_f32 v{r}, v{r}, v{tmp+k}")
    def colsum_loads(self, a, vm, tag, dst, vaddr, vtmp, nlanes, rowbytes, base_code):
        vL = self.vL
        a.e(base_code)
        a.e(f"v_lshrrev_b32 v{vaddr}, 4, v{vL}\nv_mul_u32_u24 v{vaddr}, {16*rowbytes}, v{vaddr}\nv_and_b32 v{vtmp}, 15, v{vL}\nv_cmp_gt_u32 vcc, {nlanes}, v{vtmp}\nv_lshlrev_b32 v{vtmp}, 4, v{vtmp}\nv_add_u32 v{vaddr}, v{vaddr}, v{vtmp}\nv_mov_b32 v{vtmp}, {hex(OOB)}\nv_cndmask_b32 v{vaddr}, v{vtmp}, v{vaddr}, vcc")
        for n in range(4):
            a.e(f"buffer_load_dwordx4 {vr(dst+4*n,4)}, v{vaddr}, s[{S_WS}:{S_WS+3}], s{S_T2} offen sc1\ns_add_u32 s{S_T2}, s{S_T2}, {4*16*rowbytes}")
        vm.iss(tag, 4)
    def colsum_reduce(self, a, src, tmp, vaddr, nlanes, lds_base, wave_bytes):
        vL = self.vL
        for k in range(4):
            a.e(f"v_add_f32 v{src+k}, v{src+k}, v{src+4+k}\nv_add_f32 v{src+8+k}, v{src+8+k}, v{src+12+k}")
        for k in range(4): a.e(f"v_add_f32 v{src+k}, v{src+k}, v{src+8+k}")
        self.xgroups(a, [src+k for k in range(4)], tmp)
        a.e(f"s_mul_i32 s{S_T}, s{S_LW}, {wave_bytes}\ns_add_u32 s{S_T}, s{S_T}, {lds_base}\nv_lshlrev_b32 v{vaddr}, 4, v{vL}\nv_add_u32 v{vaddr}, s{S_T}, v{vaddr}")
        a.e(f"v_cmp_gt_u32 vcc, {nlanes}, v{vL}\ns_and_saveexec_b64 s[{S_EX}:{S_EX+1}], vcc\nds_write_b128 v{vaddr}, {vr(src,4)}\ns_mov_b64 exec, s[{S_EX}:{S_EX+1}]")
    def slab_plan(self, gg, per):
        cc = gg.c; l = gg.l; lw = gg.lw
        def ex(k, ks, j):
            row = gg.wrow(ks, j)
            ch = (lw*per + k)*2 + ((l >> 1) & 1)
            return row*cc.RS + ((ch ^ gg.wswz(row)) << 4) + (l & 1)*8 + cc.XB + cc.rotpos*cc.SB
        keys = [(k, ks, j) for k in range(per) for ks in range(2) for j in range(2)]
        base = []; cls = {}
        for key in keys:
            t = [ex(*key).ev({"l": ll, "lw": w}) for w in range(4) for ll in range(64)]
            for ci, (bk, bt) in enumerate(base):
                ds = {p - q_ for p, q_ in zip(t, bt)}
                if len(ds) == 1 and 0 <= min(ds) < 65536: cls[key] = (ci, ds.pop()); break
            else:
                base.append((key, t)); cls[key] = (len(base)-1, 0)
        for w in range(4):
            for key in keys:
                assert banks.conflicts_b64([ex(*key).ev({"l": ll, "lw": w}) for ll in range(64)]) == 0
        return [ex(*b[0]) for b in base], cls
    def csum_setup(self, gg, per, regs):
        bases, cls = self.slab_plan(gg, per)
        assert len(bases) <= len(regs)
        gg.bind(self.L, self.vL, self.vt, (8, 9))
        if self.o.get("cscse", True) and len(bases) == per:
            cc = gg.c; l = gg.l; lw = gg.lw; em = gg.em
            row = gg.wrow(0, 0); v8, v9 = 8, 9
            em.vemit(row*cc.RS + (l & 1)*8 + cc.XB + cc.rotpos*cc.SB, v8); em.vr["cm"] = v8
            em.vemit(gg.wswz(row), v9); em.vr["sw"] = v9
            exprs = [V("cm") + (((lw*per + k)*2 + ((l >> 1) & 1) ^ V("sw")) << 4) for k in range(per)]
            ok = all(e.ev({"l": ll, "lw": w, "cm": (row*cc.RS + (l & 1)*8 + cc.XB + cc.rotpos*cc.SB).ev({"l": ll}), "sw": gg.wswz(row).ev({"l": ll})}) == b.ev({"l": ll, "lw": w})
                     for e, b in zip(exprs, bases) for w in range(4) for ll in range(64))
            assert ok
            for e, r in zip(exprs, regs): em.vemit(e, r)
            return cls
        for b, r in zip(bases, regs): gg.em.vemit(b, r)
        return cls
    def csum_reads(self, per, cls, regs, wf):
        L = self.L
        for k in range(per):
            for ks in range(2):
                for j in range(2):
                    ci, imm = cls[(k, ks, j)]; d = wf[2*k+ks] + 2*j
                    L.lds_rd(f"ds_read_b64_tr_b16 {vr(d,2)}, v{regs[ci]} offset:{imm}", rng(d, 2))
    def csum_finish(self, vm, per, nt_total, ones, wf, sacc, vL4, colbase_code):
        L = self.L
        for k in range(4): L.e(f"v_mov_b32 v{ones+k}, 0x3f803f80")
        L.e(colbase_code)
        for k in range(per): L.e(f"v_mfma_f32_16x16x32_bf16 {vr(sacc[k],4)}, {vr(ones,4)}, {vr(wf[2*k],4)}, 0")
        for k in range(per): L.e(f"v_mfma_f32_16x16x32_bf16 {vr(sacc[k],4)}, {vr(ones,4)}, {vr(wf[2*k+1],4)}, {vr(sacc[k],4)}")
        L.e(f"v_cmp_gt_u32 vcc, 16, v{self.vL}\ns_nop 7\ns_and_saveexec_b64 s[{S_EX}:{S_EX+1}], vcc")
        for k in range(per):
            if (3*per + k) == nt_total:
                L.e(f"s_cmp_eq_u32 s{S_LW}, 3\ns_cselect_b32 s{S_T2}, {hex(OOB - 4096)}, s{S_T2}")
            L.e(f"buffer_store_dword v{sacc[k]}, v{vL4}, s[{S_WS}:{S_WS+3}], s{S_T2} offen offset:{k*64} sc1"); vm.iss("cst")
        L.e(f"s_mov_b64 exec, s[{S_EX}:{S_EX+1}]")

    def prefetch_first(self, a, cv):
        vL = self.vL; t0, t1, t2 = self.vt[0:3]; d = cv.alloc(4)
        srd(a, S_XSRD, *self.ptr(A_X), M*D*2); srd(a, S_WSRD, *self.ptr(A_WQKV), D*3*D*2)
        a.e(f"s_lshr_b32 s{S_T}, s2, 3\ns_lshl_b32 s{S_T}, s{S_T}, 2\ns_add_u32 s{S_T}, s{S_T}, s{S_LW}")
        a.e(f"s_mul_i32 s{S_T2}, s{S_T}, 96")
        mg, sh = magic_div(12, 12288); mg3, sh3 = magic_div(3, 12)
        a.e(f"s_lshr_b32 s{S_T3}, s{S_J}, 2\ns_lshl_b32 s{S_T3}, s{S_T3}, 9")
        for n in range(2):
            a.e(f"v_add_u32 v{t0}, s{S_T2}, v{vL}\nv_add_u32 v{t0}, {48*n}, v{t0}")
            a.e(f"v_mul_u32_u24 v{t1}, {mg}, v{t0}\nv_lshrrev_b32 v{t1}, {sh}, v{t1}\nv_mul_u32_u24 v{t2}, 12, v{t1}\nv_sub_u32 v{t0}, v{t0}, v{t2}")
            a.e(f"v_mul_u32_u24 v{t2}, {mg3}, v{t0}\nv_lshrrev_b32 v{t2}, {sh3}, v{t2}")
            a.e(f"v_mul_u32_u24 v{t1}, 6144, v{t1}\nv_lshlrev_b32 v{d+2}, 7, v{t2}\nv_add_u32 v{t1}, v{t1}, v{d+2}")
            a.e(f"v_mul_u32_u24 v{t2}, 3, v{t2}\nv_sub_u32 v{t0}, v{t0}, v{t2}\nv_lshlrev_b32 v{t0}, 11, v{t0}\nv_add_u32 v{t1}, v{t1}, v{t0}")
            a.e(f"v_cmp_gt_u32 vcc, 48, v{vL}\nv_mov_b32 v{t0}, 0x7ffffff0\ns_nop 0\nv_cndmask_b32 v{t1}, v{t0}, v{t1}, vcc")
            a.e(f"buffer_load_dword v254, v{t1}, s[{S_WSRD}:{S_WSRD+3}], s{S_T3} offen")
        a.e(f"s_lshl_b32 s{S_T2}, s{S_T}, 7\ns_lshr_b32 s{S_T3}, s{S_I}, 3\ns_lshl_b32 s{S_T3}, s{S_T3}, 21")
        for n in range(2):
            a.e(f"v_add_u32 v{t0}, s{S_T2}, v{vL}\nv_add_u32 v{t0}, {64*n}, v{t0}\nv_and_b32 v{t1}, 1023, v{t0}\nv_lshlrev_b32 v{t1}, 11, v{t1}\nv_lshrrev_b32 v{t0}, 10, v{t0}\nv_lshlrev_b32 v{t0}, 7, v{t0}\nv_add_u32 v{t1}, v{t1}, v{t0}")
            a.e(f"buffer_load_dword v254, v{t1}, s[{S_XSRD}:{S_XSRD+3}], s{S_T3} offen")
    def prefetch_weights(self, a):
        vL = self.vL; t0, t1 = self.vt[0:2]
        a.e(f"s_lshl_b32 s{S_T}, s2, 2\ns_add_u32 s{S_T}, s{S_T}, s{S_LW}")
        for (arg, nbytes, per, d) in ((A_WO, D*D*2, 16, 2), (A_W1, D*DFF*2, 56, 3)) if self.o.get("pf_w1", False) else ((A_WO, D*D*2, 16, 2),):
            srd(a, S_E3, *self.ptr(arg), nbytes)
            a.e(f"s_mul_i32 s{S_T2}, s{S_T}, {per}\nv_add_u32 v{t0}, s{S_T2}, v{vL}\nv_lshlrev_b32 v{t0}, 7, v{t0}\nv_cmp_gt_u32 vcc, {per}, v{vL}\nv_mov_b32 v{t1}, 0x7ffffff0\ns_nop 0\nv_cndmask_b32 v{t0}, v{t1}, v{t0}, vcc")
            a.e(f"buffer_load_dword v254, v{t0}, s[{S_E3}:{S_E3+3}], 0 offen")
    def prefetch_w2(self, a):
        vL = self.vL; t0, t1 = self.vt[0:2]
        a.e(f"s_lshl_b32 s{S_T}, s2, 2\ns_add_u32 s{S_T}, s{S_T}, s{S_LW}")
        srd(a, S_E3, *self.ptr(A_W2), DFF*D*2)
        a.e(f"s_mul_i32 s{S_T2}, s{S_T}, 56\nv_add_u32 v{t0}, s{S_T2}, v{vL}\nv_lshlrev_b32 v{t0}, 7, v{t0}\nv_cmp_gt_u32 vcc, 56, v{vL}\nv_mov_b32 v{t1}, 0x7ffffff0\ns_nop 0\nv_cndmask_b32 v{t0}, v{t1}, v{t0}, vcc")
        a.e(f"buffer_load_dword v254, v{t0}, s[{S_E3}:{S_E3+3}], 0 offen")

    def cloop(self, g, stamps, hooks=None, peel_first=None, ns=None, first=True, sfx="", flags=0, cv=None, final_seq=()):
        c, a = g.c, g.a
        NG = c.NSUB//c.G; S = c.S; ns = ns or c.nsteps; nm = c.name + sfx
        if flags:
            vF = cv.alloc(4, 4); vM = cv.alloc(); vP = cv.alloc(); vFA = cv.alloc(); vFR = cv.alloc()
            a.e(f"v_mov_b32 v{vFA}, {SD_FULL}\ns_lshl_b32 s{S_T}, s{S_LW}, 2\ns_add_u32 s{S_T}, s{S_T}, {SD_FREE}\nv_mov_b32 v{vFR}, s{S_T}\nv_mov_b32 v{vP}, 0")
            a.lds_other(f"ds_write_b32 v{vFR}, v{vP}")
        a.e(f"s_mov_b32 s{S_RD}, 0")
        for ins in g.set_read_addrs(): a.e(ins)
        a.lds_drain(); a.e("s_setprio 0\ns_barrier")
        if stamps[0] is not None: self.stamp(a, stamps[0])
        for r in g.reads(0, 0): a.lds_rd(*r)
        st = 0
        for gi in range(NG-1):
            g.group(st, g.reads(st ^ 1, gi+1), [], first=(first and gi == 0)); st ^= 1
        a.e(g.adv_slot(S_RD))
        for ins in g.set_read_addrs(): a.e(ins)
        a.lds_drain(); a.e("s_barrier")
        par = st
        def body(loopctl=False):
            st = par
            for gi in range(NG):
                late = []; extra = []; tail = []; reads = g.reads(st ^ 1, gi)
                if gi == 0 and loopctl and hooks:
                    for cnt in hooks: extra.append(f"s_cmp_eq_u32 s{S_CNT}, {cnt}\ns_cbranch_scc1 L_hk_{nm}_{cnt}\nL_hkb_{nm}_{cnt}:")
                if gi == NG-1:
                    late.append(g.adv_slot(S_RD)); late += g.set_read_addrs()
                    ctl = f"s_sub_u32 s{S_CNT}, s{S_CNT}, 1\ns_cmp_lg_u32 s{S_CNT}, 0"
                    if loopctl and flags:
                        reads = reads + [(f"ds_read_b128 {vr(vF,4)}, v{vFA}", rng(vF, 4))]
                        tail = [f"v_min3_u32 v{vM}, v{vF}, v{vF+1}, v{vF+2}\nv_mov_b32 v{vP}, s{S_TG}",
                                f"v_min_u32 v{vM}, v{vM}, v{vF+3}",
                                (f"ds_write_b32 v{vFR}, v{vP}",),
                                f"v_readfirstlane_b32 s{S_T4}, v{vM}",
                                f"s_nop 0\ns_cmp_ge_u32 s{S_T4}, s{S_TG}\ns_cbranch_scc0 L_slow_{nm}\nL_slowb_{nm}:",
                                f"s_add_u32 s{S_TG}, s{S_TG}, 1\n" + ctl]
                    elif loopctl: late.append(ctl)
                g.group(st, reads, extra, late=late, tail=tail); st ^= 1
            if not (loopctl and flags): a.lds_drain()
        nb = ns - 2
        npeel = flags if flags else (1 if peel_first else 0)
        for p in range(npeel):
            body(False)
            if p == 0 and peel_first: peel_first()
            a.e("s_barrier"); nb -= 1
        if nb > 0 and flags:
            a.e(f"s_mov_b32 s{S_CNT}, {nb}\ns_mov_b32 s{S_TG}, {npeel + 3}")
            a.label(f"L_loop_{nm}")
            lq0 = list(a.lq)
            body(True)
            a.e(f"s_cbranch_scc1 L_loop_{nm}")
            t = self.tail
            t.label(f"L_slow_{nm}")
            t.e(f"s_mov_b32 s{S_T3}, {POLL_MAX}")
            t.label(f"L_slowl_{nm}")
            t.e(f"ds_read_b128 {vr(vF,4)}, v{vFA}\ns_waitcnt lgkmcnt(0)\nv_min3_u32 v{vM}, v{vF}, v{vF+1}, v{vF+2}\nv_min_u32 v{vM}, v{vM}, v{vF+3}\ns_nop 0\nv_readfirstlane_b32 s{S_T4}, v{vM}\ns_nop 2")
            t.e(f"s_cmp_ge_u32 s{S_T4}, s{S_TG}\ns_cbranch_scc1 L_slowb_{nm}\ns_sub_u32 s{S_T3}, s{S_T3}, 1\ns_cmp_lg_u32 s{S_T3}, 0\ns_cbranch_scc1 L_slowl_{nm}\ns_branch L_slowb_{nm}")
        elif nb > 0:
            a.e(f"s_mov_b32 s{S_CNT}, {nb}\ns_branch L_loop_{nm}")
            a.label(f"L_top_{nm}"); a.e("s_barrier"); a.label(f"L_loop_{nm}")
            body(True)
            a.e(f"s_cbranch_scc1 L_top_{nm}\ns_barrier")
        body(False); a.e("s_barrier")
        g.group(par, [], [], seq=final_seq)
        a.e("s_setprio 3\ns_nop 6")
        if stamps[1] is not None: self.stamp(a, stamps[1])
        for cnt, fn in (hooks or {}).items():
            t = self.tail
            t.label(f"L_hk_{nm}_{cnt}"); fn(t); t.e(f"s_branch L_hkb_{nm}_{cnt}")

    def capture(self, g, fn):
        items = []
        class Cap:
            def e(s_, t):
                for line in t.split("\n"):
                    if line.strip(): items.append(line.strip())
            def lds_rd(s_, ins, regs): items.append((ins, list(regs)))
        cap = Cap()
        em = Emitter(cap, {"l": self.vL}, {"wm": S_WM, "wn": S_WN, "lw": S_LW, "i": S_I, "j": S_J, "kh": 3}, self.vt, S_ET)
        fn(cap, em)
        return items
    def lflag_init(self):
        L = self.L
        L.e(f"s_lshl_b32 s{S_T}, s{S_LW}, 2\ns_add_u32 s{S_T}, s{S_T}, {SD_FULL}\nv_mov_b32 v45, s{S_T}\nv_mov_b32 v46, {SD_FREE}\nv_mov_b32 v47, 0")
        L.lds_other("ds_write_b32 v45, v47")
    def lfull(self, val):
        L = self.L
        L.e(f"v_mov_b32 v47, {val}"); L.lds_other("ds_write_b32 v45, v47")
    def lwait(self, addr_reg, target, label):
        L = self.L
        L.e(f"s_setprio {self.o.get('lspinprio', 0)}\ns_mov_b32 s{S_T3}, {POLL_MAX}")
        L.label(f"L_lw_{label}")
        L.e(f"ds_read_b128 v[40:43], v{addr_reg}\ns_waitcnt lgkmcnt(0)\nv_min3_u32 v44, v40, v41, v42\nv_min_u32 v44, v44, v43\ns_nop 0\nv_readfirstlane_b32 s{S_T4}, v44\ns_nop 2")
        L.e(f"s_cmp_ge_u32 s{S_T4}, {target}\ns_cbranch_scc1 L_lwd_{label}\ns_sleep {self.o.get('lsleep', 1)}\ns_sub_u32 s{S_T3}, s{S_T3}, 1\ns_cmp_lg_u32 s{S_T3}, 0\ns_cbranch_scc1 L_lw_{label}")
        L.label(f"L_lwd_{label}"); L.lq = []; L.e(f"s_setprio {self.o.get('lprio', 1)}")

    def epi_q_regs(self, g):
        fr = g.frag0
        return dict(mu=fr, rs=fr+4, va=fr+8, vb=fr+9, vo=fr+10, vk=fr+11, sc=fr+12, pk=fr+16, cs=fr+32, st=fr+48)
    def epi_q_prep(self, g, a, em):
        R = self.epi_q_regs(g); l = g.l; wm, wn = g.wm, g.wn
        mu, rs, cs, va, vb, vo, vk = [R[k] for k in ("mu", "rs", "cs", "va", "vb", "vo", "vk")]
        if self.o.get("tokL", True):
            a.e(f"v_mov_b32 v{vo}, {SD_TOK}"); a.lds_rd(f"ds_read_b32 v{vo}, v{vo}", [vo])
        em.vemit((wm*64 + (l & 15))*4 + SD_MEAN1, va)
        for x in range(4):
            a.lds_rd(f"ds_read_b32 v{mu+x}, v{va} offset:{x*64}", [mu+x])
            a.lds_rd(f"ds_read_b32 v{rs+x}, v{va} offset:{512+x*64}", [rs+x])
        em.vemit((wn*32 + (l >> 4)*4)*4 + SD_CSQ, vb)
        for n, f in enumerate((2, 3, 0, 1)):
            a.lds_rd(f"ds_read_b128 {vr(cs+4*n,4)}, v{vb} offset:{(64*(f//2) + 16*(f % 2))*4}", rng(cs+4*n, 4))
        em.vemit(wn*49152 + l*16, vk)
        a.e(f"s_lshl_b32 s{S_T}, s{S_I}, 4\ns_add_u32 s{S_T}, s{S_T}, s{S_J}\ns_lshl_b32 s{S_T}, s{S_T}, 15\ns_lshl_b32 s{S_T2}, s{S_WN}, 14\ns_add_u32 s{S_T}, s{S_T}, s{S_T2}\ns_add_u32 s71, s{S_T}, {WS_KV}")
    def epi_q(self, g, cv):
        C, L, c = self.C, self.L, g.c
        a = C; vL = self.vL; t0, t1, t2, t3, t4, t5 = self.vt
        em = g.em; l = g.l; wm, wn = g.wm, g.wn
        R = self.epi_q_regs(g)
        mu, rs, cs, pk, st, va, vb, vo, vk, sc = [R[k] for k in ("mu", "rs", "cs", "pk", "st", "va", "vb", "vo", "vk", "sc")]
        gq = l >> 4
        if not self.o.get("epre", True): self.epi_q_prep(g, a, em)
        csr = {2: cs, 3: cs+4, 0: cs+8, 1: cs+12}
        def fold_mn(x, f, scale_reg):
            acc = g.acc[x][f]; c0 = csr[f]
            for p in range(2):
                a.e(f"v_pk_fma_f32 {vr(acc+2*p,2)}, {vr(mu+(x & ~1),2)}, {vr(c0+2*p,2)}, {vr(acc+2*p,2)} op_sel:[{x & 1},0,0] op_sel_hi:[{x & 1},1,1] neg_lo:[1,0,0] neg_hi:[1,0,0]")
            for p in range(2):
                a.e(f"v_pk_mul_f32 {vr(acc+2*p,2)}, {vr(scale_reg+(x & ~1),2)}, {vr(acc+2*p,2)} op_sel:[{x & 1},0] op_sel_hi:[{x & 1},1]")
        def pack2(dst, accA, accB):
            a.e(f"v_cvt_pk_bf16_f32 v{dst}, v{accA}, v{accA+1}\nv_cvt_pk_bf16_f32 v{dst+1}, v{accA+2}, v{accA+3}")
            a.e(f"v_cvt_pk_bf16_f32 v{dst+2}, v{accB}, v{accB+1}\nv_cvt_pk_bf16_f32 v{dst+3}, v{accB+2}, v{accB+3}")
        a.need(list(rng(mu, 8)) + list(rng(cs, 8)) + [vo])
        if self.o.get("tokL", True): a.e(f"v_readfirstlane_b32 s1, v{vo}")
        a.e(f"s_lshl_b32 s{S_T3}, s{S_WM}, 12")
        a.e(f"v_add_u32 v{vo}, s{S_T3}, v{vk}")
        a.e(f"s_add_u32 s{S_T4}, s71, s{S_T3}")
        for x in range(4):
            fold_mn(x, 2, rs); fold_mn(x, 3, rs)
            p = pk + 4*(x & 1)
            pack2(p, g.acc[x][2], g.acc[x][3])
            a.e(f"buffer_store_dwordx4 {vr(p,4)}, v{self.vL16}, s[{S_WS}:{S_WS+3}], s{S_T4} offen offset:{x*1024} sc1")
            a.lds_other(f"ds_write_b128 v{vo}, {vr(p,4)} offset:{AT_K(0) + 2*8192 + x*1024}")
        em.vemit((wn*32 + (l & 15))*4 + SD_CSQ + 128*4, va)
        a.lds_rd(f"ds_read_b32 v{sc}, v{va}", [sc]); a.lds_rd(f"ds_read_b32 v{sc+1}, v{va} offset:64", [sc+1])
        em.vemit((wm*64 + gq*4)*4 + SD_MEAN1, vb)
        for x in range(4):
            a.lds_rd(f"ds_read_b128 {vr(st+4*x,4)}, v{vb} offset:{x*64}", rng(st+4*x, 4))
            a.lds_rd(f"ds_read_b128 {vr(st+16+4*x,4)}, v{vb} offset:{512+x*64}", rng(st+16+4*x, 4))
        a.e(f"s_lshl_b32 s{S_T3}, s{S_WM}, 12\ns_add_u32 s{S_T4}, s71, s{S_T3}\ns_add_u32 s{S_T4}, s{S_T4}, 8192")
        for xi in range(2):
            a.need(list(rng(st+8*xi, 8)) + list(rng(st+16+8*xi, 8)) + [sc, sc+1])
            for dl in range(2):
                for x in (2*xi, 2*xi+1):
                    acc = g.acc[x][4+dl]
                    for p in range(2):
                        a.e(f"v_pk_fma_f32 {vr(acc+2*p,2)}, {vr(st+4*x+2*p,2)}, {vr(sc,2)}, {vr(acc+2*p,2)} op_sel:[0,{dl},0] op_sel_hi:[1,{dl},1] neg_lo:[1,0,0] neg_hi:[1,0,0]")
                    for p in range(2):
                        a.e(f"v_pk_mul_f32 {vr(acc+2*p,2)}, {vr(st+16+4*x+2*p,2)}, {vr(acc+2*p,2)}")
                p = pk + 4*dl
                pack2(p, g.acc[2*xi][4+dl], g.acc[2*xi+1][4+dl])
                a.e(f"buffer_store_dwordx4 {vr(p,4)}, v{self.vL16}, s[{S_WS}:{S_WS+3}], s{S_T4} offen offset:{(xi*2+dl)*1024} sc1")
                a.lds_other(f"ds_write_b128 v{vo}, {vr(p,4)} offset:{AT_V(0) + 2*8192 + (xi*2+dl)*1024}")
        for x in range(4): a.e(f"v_mul_f32 v{rs+x}, {fhex(QSCALE)}, v{rs+x}")
        em.vemit(wn*8192 + wm*4096 + l*16 + AT_Q0, va)
        a.need(rng(cs+8, 8))
        for x in range(4):
            fold_mn(x, 0, rs); fold_mn(x, 1, rs)
            p = pk + 4*(x & 1)
            a.e("s_nop 0")
            pack2(p, g.acc[x][0], g.acc[x][1])
            a.lds_other(f"ds_write_b128 v{va}, {vr(p,4)} offset:{x*1024}")
        a.e("s_waitcnt vmcnt(0)")
        self.signal_last(a, 0, 4, self.off_ji(F_KV), t0, t1, "kv")
        self.stamp(C, 3)
        a.e("s_waitcnt lgkmcnt(0)"); a.lq = []
        self.lsetup(self.g[1], A_WO, D*D*2, WS_O)
        def kvpoll():
            L.e(f"s_sub_i32 s{S_T2}, s{S_I}, 1\ns_max_i32 s{S_T2}, s{S_T2}, 0\ns_sub_i32 s{S_XB0}, s{S_I}, 2\ns_max_i32 s{S_XB0}, s{S_XB0}, 0")
            L.e(f"v_mov_b32 v{t0}, s{S_T2}\nv_mov_b32 v{t1}, s{S_XB0}\nv_and_b32 v52, 1, v{vL}\nv_cmp_eq_u32 vcc, 0, v52\ns_nop 1\nv_cndmask_b32 v{t0}, v{t1}, v{t0}, vcc")
            L.e(f"v_lshlrev_b32 v{t0}, 7, v{t0}\ns_lshl_b32 s{S_T}, s{S_J}, 11\ns_add_u32 s{S_T}, s{S_T}, {F_KV}\nv_add_u32 v53, s{S_T}, v{t0}")
            self.poll(L, S_WS, 53, 52, "kv")
        L.e("s_mov_b32 s0, 1\ns_branch L_attn")
        L.label("L_kvstage")
        self.lstamp("kvpre")
        if self.o.get("kvpoll1", True):
            L.e(f"v_mov_b32 v54, {SD_CNT + 20}\ns_cmp_lg_u32 s{S_LW}, 0\ns_cbranch_scc1 L_kvwait")
            kvpoll()
            L.e("v_mov_b32 v55, 1\nds_write_b32 v54, v55\ns_branch L_kvgo")
            L.label("L_kvwait")
            L.e(f"s_mov_b32 s{S_CNT}, {POLL_MAX*8}")
            L.label("L_kvspin")
            L.e(f"ds_read_b32 v55, v54\ns_waitcnt lgkmcnt(0)\nv_readfirstlane_b32 s{S_T}, v55\ns_nop 2\ns_cmp_lg_u32 s{S_T}, 0\ns_cbranch_scc1 L_kvgo\ns_sleep 1\ns_sub_u32 s{S_CNT}, s{S_CNT}, 1\ns_cmp_lg_u32 s{S_CNT}, 0\ns_cbranch_scc1 L_kvspin")
            L.label("L_kvgo")
        else: kvpoll()
        self.lstamp("kvseen")
        L.e(f"s_lshr_b32 s{S_T}, s{S_LW}, 1\ns_sub_i32 s{S_T2}, s{S_I}, 2\ns_add_i32 s{S_T2}, s{S_T2}, s{S_T}")
        L.e(f"s_lshl_b32 s{S_XB0}, s{S_T2}, 4\ns_add_u32 s{S_XB0}, s{S_XB0}, s{S_J}\ns_lshl_b32 s{S_XB0}, s{S_XB0}, 15\ns_and_b32 s{S_WB0}, s{S_LW}, 1\ns_lshl_b32 s{S_WB0}, s{S_WB0}, 14\ns_add_u32 s{S_XB0}, s{S_XB0}, s{S_WB0}\ns_add_u32 s{S_XB0}, s{S_XB0}, {WS_KV}")
        L.e(f"s_cmp_lt_i32 s{S_T2}, 0\ns_cselect_b32 s{S_XB0}, 0x7ff00000, s{S_XB0}")
        L.e(f"s_and_b32 s{S_WB0}, s{S_LW}, 1\ns_mul_i32 s{S_WB0}, s{S_WB0}, 49152\ns_lshl_b32 s{S_T}, s{S_T}, 13\ns_add_u32 s{S_WB0}, s{S_WB0}, s{S_T}")
        for part in range(2):
            for q4 in range(2):
                L.e(f"s_add_u32 m0, s{S_WB0}, {part*24576 + q4*4096}\ns_add_u32 s{S_T}, s{S_XB0}, {part*8192 + q4*4096}")
                for n in range(4):
                    L.e(f"buffer_load_dwordx4 v{self.vL16}, s[{S_WS}:{S_WS+3}], s{S_T} offen offset:{n*1024} sc1 lds")
        L.e("s_waitcnt vmcnt(8)" if self.o.get("kfirst", True) else "s_waitcnt vmcnt(0)")
        L.e("s_branch L_attn_go")
        C.e("s_mov_b32 s0, 0\ns_branch L_attn"); C.label("L_attn_back_c"); C.e("s_setprio 3")
        L.label("L_attn_back_l"); L.e(f"s_setprio {self.o.get('lprio', 1)}")

    def attention(self):
        a = self.A; vL = self.vL; z = HZ(a)
        a.label("L_attn")
        ap = self.o.get("attprio", 1)
        a.e("s_setprio 3" if ap == 1 else "s_setprio 0")
        l = V("l")
        em = Emitter(a, {"l": vL}, {"hh": S_T3, "om": S_T4}, self.vt, S_ET)
        hh, om = S("hh"), S("om")
        R = Regs(64, 253)
        QF = R.alloc(8, 4); KF = [R.alloc(8, 4) for _ in range(2)]; SS = [R.alloc(16, 4) for _ in range(3)]
        NM = R.alloc(16, 4); NG = R.alloc(16, 4); OO = R.alloc(16, 4); LL = R.alloc(16, 4)
        VF = [R.alloc(8, 4) for _ in range(2)]; PP = [R.alloc(8, 4) for _ in range(2)]; ONE = R.alloc(4, 4)
        vQ, vK, vV, MX, T0 = [R.alloc() for _ in range(5)]
        a.e(f"s_and_b32 s{S_T3}, s{S_WV}, 1\ns_lshr_b32 s{S_T4}, s{S_WV}, 1")
        a.e(f"s_lshl_b32 s71, s{S_I}, 2\ns_add_u32 s71, s71, s{S_T4}")
        h = l >> 5
        em.vemit(hh*8192 + om*2048 + ((l >> 4) & 1)*1024 + (h*16 + (l & 15))*16 + AT_Q0, vQ)
        em.vemit(hh*49152 + om*2048 + ((l >> 3) & 1)*1024 + (h*16 + (l & 7) + ((l >> 4) & 1)*8)*16, vK)
        for ex in (((l >> 4) & 1)*1024 + (h*16 + (l & 15))*16, ((l >> 3) & 1)*1024 + (h*16 + (l & 7) + ((l >> 4) & 1)*8)*16):
            assert banks.conflicts_b128([ex.ev({"l": x}) for x in range(64)]) == 0
        def rd(dst, addr, off): z.lds_rd(f"ds_read_b128 {vr(dst,4)}, v{addr} offset:{off}", rng(dst, 4), [addr])
        def kread(tt, b): rd(KF[b], vK, tt*2048); rd(KF[b]+4, vK, tt*2048 + 512)
        def vread(tt, b): rd(VF[b], vV, tt*2048); rd(VF[b]+4, vV, tt*2048 + 512)
        em.vemit(hh*49152 + om*2048 + ((l >> 4) & 1)*1024 + (h*16 + (l & 15))*16 + 24576, vV)
        t0_ = self.vt[0]; vPF = R.alloc()
        if self.o["pf_weights"]:
            a.e(f"s_lshl_b32 s{S_T}, s2, 3\ns_add_u32 s{S_T}, s{S_T}, s{S_WV}\ns_mul_i32 s{S_T}, s{S_T}, 28\nv_min_u32 v{vPF}, 27, v{vL}\nv_add_u32 v{vPF}, s{S_T}, v{vPF}\nv_lshlrev_b32 v{vPF}, 7, v{vPF}")
        mreg = [76+2*k for k in range(6)] + [90+2*k for k in range(6)] + [4, 6, 24, 26]
        for r in range(16):
            k0 = 16*((r >> 2) & 1) + 8*(r >> 3) + (r & 3)
            lo = (0xffffffff << k0) & 0xffffffff; hi = (0xffffffff << (k0+4)) & 0xffffffff
            a.e(f"s_mov_b32 s{mreg[r]}, {hex(lo)}\ns_mov_b32 s{mreg[r]+1}, {hex(hi)}")
        for r in range(16): z.emit(f"v_mov_b32 v{NG+r}, 0xf149f2ca", "valu", w=[NG+r])
        z.emit(f"v_mov_b32 v{MX}, 0xf149f2ca", "valu", w=[MX])
        for k in range(4): z.emit(f"v_mov_b32 v{ONE+k}, 0x3f803f80", "valu", w=[ONE+k])
        MF = "v_mfma_f32_32x32x16_bf16"
        def qk(tt, kb, sb, cval, tag):
            b = KF[kb]; s_ = SS[sb]
            z.lneed(list(rng(b, 4)) + list(rng(QF, 4)))
            ctxt = "0" if cval is None else vr(cval, 16); creg = [] if cval is None else list(rng(cval, 16))
            if tt < 8:
                z.other(f"s_cmp_ge_u32 s71, {8-tt}\ns_cbranch_scc0 L_inv_{tag}_{tt}")
            z.emit(f"{MF} {vr(s_,16)}, {vr(b,4)}, {vr(QF,4)}, {ctxt}", "mfma32", r=list(rng(b,4))+list(rng(QF,4)), w=rng(s_,16), c=creg + list(rng(NG,16)) if tt < 8 else creg)
            if tt < 8:
                a.label(f"L_invb_{tag}_{tt}")
                t = self.tail
                t.label(f"L_inv_{tag}_{tt}")
                t.e(f"{MF} {vr(s_,16)}, {vr(b,4)}, {vr(QF,4)}, {vr(NG,16)}\ns_branch L_invb_{tag}_{tt}")
            z.lneed(list(rng(b+4, 4)) + list(rng(QF+4, 4)))
            z.emit(f"{MF} {vr(s_,16)}, {vr(b+4,4)}, {vr(QF+4,4)}, {vr(s_,16)}", "mfma32", r=list(rng(b+4,4))+list(rng(QF+4,4)), w=rng(s_,16), c=rng(s_,16))
        def merge(sa, sb):
            for r in range(16):
                z.emit(f"v_cndmask_b32 v{SS[sa]+r}, v{SS[sa]+r}, v{SS[sb]+r}, s[{mreg[r]}:{mreg[r]+1}]", "valu", r=[SS[sa]+r, SS[sb]+r], w=[SS[sa]+r])
        def vmax(sb):
            for k in range(8): z.emit(f"v_max3_f32 v{MX}, v{MX}, v{SS[sb]+2*k}, v{SS[sb]+2*k+1}", "valu", r=[MX, SS[sb]+2*k, SS[sb]+2*k+1], w=[MX])
        a.e("s_cmp_eq_u32 s0, 1\ns_cbranch_scc1 L_kvstage")
        a.label("L_attn_go")
        a.e("s_barrier")
        self.stamp(a, 4)
        rd(QF, vQ, 0); rd(QF+4, vQ, 512); kread(0, 0); kread(8, 1)
        self.nyoung = 0
        if self.o["pf_weights"] and not self.o.get("pfmid", False):
            for arg in {"w2": (A_W2,), "w1w2": (A_W1, A_W2), "none": ()}[self.o.get("pf_attn", "w1w2")]:
                p = self.ptr(arg)[0]; a.e(f"global_load_dword v254, v{vPF}, s[{p}:{p+1}]"); self.nyoung += 1
        self.stamp(a, 20)
        qk(0, 0, 0, None, "a"); kread(1, 0)
        qk(8, 1, 1, None, "a"); kread(2, 1)
        qk(1, 0, 2, None, "a"); kread(3, 0)
        merge(0, 1); vmax(0)
        sb_of = {1: 2}
        free = [0, 1]
        for tt in range(2, 8):
            sb = free.pop(0); sb_of[tt] = sb
            qk(tt, tt & 1 ^ 1 if False else (tt % 2 == 0 and 1 or 0), sb, None, "a")
            if tt+2 < 8: kread(tt+2, (tt % 2 == 0 and 1 or 0))
            vmax(sb_of[tt-1]); free.append(sb_of[tt-1])
        kread(0, 0)
        vmax(sb_of[7])
        self.stamp(a, 21)
        self.attn_mid(a, z)
        self.stamp(a, 22)
        nyoung = 0
        if self.o["pf_weights"] and self.o.get("pfmid", False):
            for arg in (A_W1, A_W2):
                p = self.ptr(arg)[0]; a.e(f"global_load_dword v254, v{vPF}, s[{p}:{p+1}]"); nyoung += 1
        kread(8, 1); vread(8, 0); vread(0, 1)
        z.emit(f"v_mov_b32 v{T0}, v{MX}", "valu", r=[MX], w=[T0])
        z.emit(f"v_permlane32_swap_b32 v{T0}, v{MX}", "perm", r=[T0, MX], w=[T0, MX])
        z.emit(f"v_max_f32 v{MX}, v{MX}, v{T0}", "valu", r=[MX, T0], w=[MX])
        for r in range(16): z.emit(f"v_sub_f32 v{NM+r}, 0, v{MX}", "valu", r=[MX], w=[NM+r])
        if ap == 1: z.other("s_setprio 2")
        def vexp(sb):
            for r in range(16): z.emit(f"v_exp_f32 v{SS[sb]+r}, v{SS[sb]+r}", "trans", r=[SS[sb]+r], w=[SS[sb]+r])
        def cvt(sb, pb):
            for k in range(8): z.emit(f"v_cvt_pk_bf16_f32 v{PP[pb]+k}, v{SS[sb]+2*k}, v{SS[sb]+2*k+1}", "valu", r=[SS[sb]+2*k, SS[sb]+2*k+1], w=[PP[pb]+k])
        first = [True]
        def pv(vb, pb):
            b = VF[vb]; p = PP[pb]
            z.lneed(rng(b, 8))
            f = first[0]; first[0] = False
            z.emit(f"{MF} {vr(OO,16)}, {vr(b,4)}, {vr(p,4)}, {'0' if f else vr(OO,16)}", "mfma32", r=list(rng(b,4))+list(rng(p,4)), w=rng(OO,16), c=[] if f else rng(OO,16))
            z.emit(f"{MF} {vr(LL,16)}, {vr(ONE,4)}, {vr(p,4)}, {'0' if f else vr(LL,16)}", "mfma32", r=list(rng(ONE,4))+list(rng(p,4)), w=rng(LL,16), c=[] if f else rng(LL,16))
            z.emit(f"{MF} {vr(OO,16)}, {vr(b+4,4)}, {vr(p+4,4)}, {vr(OO,16)}", "mfma32", r=list(rng(b+4,4))+list(rng(p+4,4)), w=rng(OO,16), c=rng(OO,16))
            z.emit(f"{MF} {vr(LL,16)}, {vr(ONE,4)}, {vr(p+4,4)}, {vr(LL,16)}", "mfma32", r=list(rng(ONE,4))+list(rng(p+4,4)), w=rng(LL,16), c=rng(LL,16))
        qk(0, 0, 0, NM, "b"); kread(1, 0)
        qk(8, 1, 1, NM, "b"); kread(2, 1)
        qk(1, 0, 2, NM, "b"); kread(3, 0)
        merge(0, 1); vexp(0)
        for r in range(16): z.emit(f"v_cndmask_b32 v{SS[1]+r}, 0, v{SS[0]+r}, s[{mreg[r]}:{mreg[r]+1}]", "valu", r=[SS[0]+r], w=[SS[1]+r])
        for r in range(16): z.emit(f"v_sub_f32 v{SS[0]+r}, v{SS[0]+r}, v{SS[1]+r}", "valu", r=[SS[0]+r, SS[1]+r], w=[SS[0]+r])
        cvt(1, 0); cvt(0, 1)
        pv(0, 0); vread(1, 0)
        pv(1, 1); vread(2, 1)
        sb_of = {1: 2}; free = [0, 1]
        for tt in range(1, 8):
            if tt+1 < 8:
                sb = free.pop(0); sb_of[tt+1] = sb; kb = 1 if (tt+1) % 2 == 0 else 0
                qk(tt+1, kb, sb, NM, "b")
                if tt+3 < 8: kread(tt+3, kb)
            if ap == 1 and tt in (3, 6): z.other(f"s_setprio {1 if tt == 3 else 0}")
            if ap == 2 and tt in (2, 4, 6):
                z.other(f"s_cmp_eq_u32 s0, {(tt >> 1) & 1}\ns_cselect_b32 s{S_T}, 1, 0\ns_cmp_eq_u32 s{S_T}, 1\ns_cbranch_scc1 L_ap{tt}\ns_setprio 0\ns_branch L_apd{tt}\nL_ap{tt}:\ns_setprio 1\nL_apd{tt}:")
            cur = sb_of[tt]
            vexp(cur); cvt(cur, tt & 1); free.append(cur)
            vb = 0 if tt % 2 == 1 else 1
            pv(vb, tt & 1)
            if tt+2 < 8: vread(tt+2, vb)
        self.stamp(a, 23)
        srd(a, S_WS, *self.ptr(A_WS), WS_BYTES, self.o.get('wsoff', 0))
        em.vemit((om*2 + ((l >> 4) & 1))*2048 + hh*1024 + ((l & 15) + h*16)*16, vQ)
        a.e(f"s_lshl_b32 s{S_T}, s{S_I}, 4\ns_add_u32 s{S_T}, s{S_T}, s{S_J}\ns_lshl_b32 s{S_T}, s{S_T}, 14\ns_add_u32 s{S_T}, s{S_T}, {WS_O}")
        z.emit(f"v_rcp_f32 v{T0}, v{LL}", "trans", r=[LL], w=[T0])
        for r in range(16): z.emit(f"v_mul_f32 v{OO+r}, v{T0}, v{OO+r}", "valu", r=[T0, OO+r], w=[OO+r])
        for s in range(2):
            for k in range(4): z.emit(f"v_cvt_pk_bf16_f32 v{PP[s]+k}, v{OO+8*s+2*k}, v{OO+8*s+2*k+1}", "valu", r=[OO+8*s+2*k, OO+8*s+2*k+1], w=[PP[s]+k])
            a.e(f"buffer_store_dwordx4 {vr(PP[s],4)}, v{vQ}, s[{S_WS}:{S_WS+3}], s{S_T} offen offset:{s*512} sc1")
        self.stamp(a, 24)
        a.e("s_waitcnt vmcnt(0)")
        self.stamp(a, 25)
        self.signal_last(a, 1, 8, self.off_ij(F_O), vK, vV, "o")
        a.e("s_cmp_eq_u32 s0, 1\ns_cbranch_scc1 L_attn_back_l\ns_branch L_attn_back_c")
    def attn_mid(self, a, z):
        if self.o.get("kfirst", True):
            z.other(f"s_cmp_eq_u32 s0, 1\ns_cbranch_scc0 L_att_nov\ns_waitcnt vmcnt({self.nyoung})\nL_att_nov:")
            a.lds_drain(); z.other("s_barrier")

    def lsetup(self, g, warg, wbytes, xbase, khalf=False):
        L = self.L; c = g.c
        g.bind(L, self.vL, self.vt, (8, 9))
        srd(L, S_WSRD, *self.ptr(warg), wbytes)
        self.setup_w_only(g)
        g.em.vemit(g.lw*4096 + g.l*16, g.vXsrc[0])
        c.woff(L)
        self.xoff_fn(L, c, xbase, khalf)
        L.e(f"s_lshl_b32 s{S_XL}, s{S_LW}, 12")
        L.e(f"s_mul_i32 s{S_WL}, s{S_LW}, {c.nWld*1024}\ns_add_u32 s{S_WL}, s{S_WL}, {c.XB}")
    def lweights(self, g, init=True):
        L = self.L; c = g.c
        if init:
            for ins in g.rot_init(): L.e(ins)
        L.e(f"s_mov_b32 s{S_WR}, 0")
        for s in range(c.S):
            for ins in g.stage_off(s) + g.dma_w(): L.e(ins)
            L.e(f"s_add_u32 s{S_WR}, s{S_WR}, {c.SB}")
    def cpoll(self, flag, label, skip_own=False):
        C = self.C; t0, t1, t2 = self.vt[0:3]
        C.e(f"s_cmp_lg_u32 s{S_LW}, 0\ns_cbranch_scc1 L_nocpoll_{label}")
        self.group_words(C, t2, flag, S_I)
        if skip_own:
            C.e(f"s_xor_b32 s{S_T2}, s{S_J}, 1\ns_lshl_b32 s{S_T2}, s{S_T2}, 7\ns_add_u32 s{S_T2}, s{S_T2}, s{S_T}\nv_and_b32 v{t0}, 15, v{self.vL}\nv_mov_b32 v{t1}, s{S_T2}\nv_cmp_eq_u32 vcc, s{S_J}, v{t0}\ns_nop 1\nv_cndmask_b32 v{t2}, v{t2}, v{t1}, vcc")
        self.poll(C, S_WS, t2, t0, label)
        C.label(f"L_nocpoll_{label}")
        C.e("s_barrier")
    def lphase(self, g, flag, label, hooks=None, npeel=0, after_poll=None, first_hooks=None, ns=None, flags=0):
        L = self.L; c = g.c; vm = VM(L); S = c.S; ns = ns or c.nsteps
        hooks = hooks or {}
        g.bind(L, self.vL, self.vt, (8, 9))
        srd(L, S_XSRD, *self.ptr(A_WS), WS_BYTES, self.o.get('wsoff', 0))
        self.lstamp(label + "pre")
        L.e("s_barrier")
        self.lstamp(label + "seen")
        L.e(f"s_mov_b32 s{S_WR}, 0")
        for s in range(S):
            for ins in g.stage_off(s) + g.dma_x(): L.e(ins)
            vm.iss(("st", s), c.nXld)
            L.e(f"s_add_u32 s{S_WR}, s{S_WR}, {c.SB}")
        L.e(f"s_mov_b32 s{S_WR}, 0")
        if after_poll: after_poll(vm)
        if flags: self.lflag_init()
        vm.wait(("st", 0)); L.lds_drain(); L.e("s_barrier"); self.lstamp(label + "land")
        if first_hooks: first_hooks[0](vm)
        vm.wait(("st", 1)); L.lds_drain(); L.e("s_barrier")
        def issue(t):
            for ins in g.dma_list(t): L.e(ins)
            vm.iss(("st", t), c.nld); L.e(g.adv_slot(S_WR))
        npeel = max(npeel, S-2)
        nb = ns - S
        if self.o.get("lsteps"): npeel = nb
        def end_body(t):
            L.lds_drain()
            if flags and flags - 1 <= t <= ns-3: self.lfull(t + 3)
            if not flags or t < flags or t == ns-2:
                L.lds_drain(); L.e("s_barrier")
            if self.o.get("lsteps"): self.lstamp(label + str(t))
        if flags: npeel = max(npeel, flags + 1)
        for t in range(npeel):
            if flags and t > flags: self.lwait(46, t + 2, f"{label}{t}")
            issue(t+S)
            if t in hooks: hooks[t](vm)
            if ("st", t+2) in vm.q: vm.wait(("st", t+2))
            end_body(t)
        if nb - npeel > 0:
            if getattr(c, "rot", False): L.e(f"s_mov_b32 s{S_N}, {npeel + S - 1}")
            L.e(f"s_mov_b32 s{S_CNT}, {nb - npeel}")
            if flags: L.e(f"s_mov_b32 s{S_TG}, {npeel + 2}")
            L.label(f"L_lloop_{label}")
            early = flags and S >= 4
            if early:
                L.e(f"s_add_u32 s{S_T2}, s{S_TG}, 1\nv_mov_b32 v47, s{S_T2}\ns_waitcnt vmcnt({(S-3)*c.nld})\nds_write_b32 v45, v47")
            if flags: self.lwait(46, f"s{S_TG}", f"{label}_loop")
            for ins in g.dma_list(): L.e(ins)
            L.e(g.adv_slot(S_WR))
            if early:
                L.e(f"s_add_u32 s{S_TG}, s{S_TG}, 1")
            elif flags:
                L.e(f"s_add_u32 s{S_TG}, s{S_TG}, 1\nv_mov_b32 v47, s{S_TG}\ns_waitcnt vmcnt({(S-2)*c.nld})\nds_write_b32 v45, v47")
            else:
                L.e(f"s_waitcnt vmcnt({(S-2)*c.nld})\ns_barrier")
            L.e(f"s_sub_u32 s{S_CNT}, s{S_CNT}, 1\ns_cmp_lg_u32 s{S_CNT}, 0\ns_cbranch_scc1 L_lloop_{label}")
        for t in range(nb, ns-1):
            if t in hooks:
                assert npeel >= nb
                hooks[t](vm)
                if t+2 <= ns-1 and ("st", t+2) in vm.q: vm.wait(("st", t+2))
            elif t+2 <= ns-1: L.e(f"s_waitcnt vmcnt({min(ns-1-(t+2), S-2)*c.nld})")
            end_body(t)

    def phase_o(self, g):
        C, L, c = self.C, self.L, g.c
        vL = self.vL; t0, t1, t2, t3, t4, t5 = self.vt
        self.stamp(C, 5)
        self.lstamp("attnend")
        self.bar()
        self.lstamp("attnbar")
        self.lweights(g)
        if self.o.get("sentinel", True) and self.o.get("markat", "o") == "o":
            for k in range(4): L.e(f"v_mov_b32 v{180+k}, -1")
            L.e(f"s_lshl_b32 s{S_T}, s{S_I}, 4\ns_add_u32 s{S_T}, s{S_T}, s{S_J}\ns_lshl_b32 s{S_T}, s{S_T}, 15\ns_lshl_b32 s{S_T2}, s{S_LW}, 13\ns_add_u32 s{S_T}, s{S_T}, s{S_T2}\ns_add_u32 s{S_T}, s{S_T}, {WS_XCH}")
            for n in range(8):
                if n == 4: L.e(f"s_add_u32 s{S_T}, s{S_T}, 4096")
                L.e(f"buffer_store_dwordx4 v[180:183], v{self.vL16}, s[{S_WS}:{S_WS+3}], s{S_T} offen offset:{(n & 3)*1024} sc1")
        own1 = self.o.get("own1", True)
        a = C; g.bind(C, vL, self.vt, (8, 9)); cv = Regs(12, 254); g.alloc_compute(cv)
        em = g.em; l, wm, wn = g.l, g.wm, g.wn
        g.setup_reads()
        xr = cv.alloc(16, 4); va = cv.alloc(); pk = cv.alloc(8, 4); sm = cv.alloc(8, 4); tm = cv.alloc(8, 4); m2 = cv.alloc(8, 4)
        srd(a, S_XSRD, *self.ptr(A_X), M*D*2)
        em.vemit((l & 15)*2048 + (l >> 4)*8, va)
        def resid(a):
            a.e(f"s_lshl_b32 s{S_T}, s{S_I}, 1\ns_add_u32 s{S_T}, s{S_T}, s{S_WM}\ns_lshl_b32 s{S_T}, s{S_T}, 17\ns_lshl_b32 s{S_T2}, s{S_J}, 7\ns_add_u32 s{S_T}, s{S_T}, s{S_T2}\ns_lshl_b32 s{S_T2}, s{S_WN}, 6\ns_add_u32 s{S_T}, s{S_T}, s{S_T2}")
            for x in range(4):
                for f in range(2):
                    a.e(f"buffer_load_dwordx2 {vr(xr+4*x+2*f,2)}, v{va}, s[{S_XSRD}:{S_XSRD+3}], s{S_T} offen offset:{f*32}")
                if x < 3: a.e(f"s_add_u32 s{S_T}, s{S_T}, {16*2048}")
        a.e(f"s_cmp_eq_u32 s{S_LW}, 0\ns_cbranch_scc1 L_ores0"); resid(a); a.label("L_ores0")
        def hookO(a):
            a.e(f"s_cmp_lg_u32 s{S_LW}, 0\ns_cbranch_scc1 L_ores1"); resid(a); a.label("L_ores1")
        self.cpoll(F_O, "o", skip_own=True)
        self.lphase(g, F_O, "o")
        g1 = self.g[2]
        self.lsetup(g1, A_W1, D*DFF*2, WS_H)
        g.bind(C, vL, self.vt, (8, 9)); g.a = C
        self.cloop(g, stamps=(6, 7), hooks={c.nsteps - 3: hookO})
        a.e("s_waitcnt vmcnt(0)")
        for x in range(4):
            for f in range(2):
                acc = g.acc[x][f]
                for d in range(2):
                    src = xr + 4*x + 2*f + d
                    a.e(f"v_lshlrev_b32 v{t0}, 16, v{src}\nv_and_b32 v{t1}, 0xffff0000, v{src}")
                    a.e(f"v_add_f32 v{acc+2*d}, v{acc+2*d}, v{t0}\nv_add_f32 v{acc+2*d+1}, v{acc+2*d+1}, v{t1}")
        a.e(f"s_lshl_b32 s{S_T}, s{S_I}, 4\ns_add_u32 s{S_T}, s{S_T}, s{S_J}\ns_lshl_b32 s{S_T}, s{S_T}, 14\ns_lshl_b32 s{S_T2}, s{S_WM}, 13\ns_add_u32 s{S_T}, s{S_T}, s{S_T2}\ns_lshl_b32 s{S_T2}, s{S_WN}, 10\ns_add_u32 s{S_T}, s{S_T}, s{S_T2}\ns_add_u32 s{S_T}, s{S_T}, {WS_H}")
        for x in range(4):
            p = pk + 4*(x & 1); A, B = g.acc[x][0], g.acc[x][1]
            a.e(f"v_cvt_pk_bf16_f32 v{p}, v{A}, v{A+1}\nv_cvt_pk_bf16_f32 v{p+1}, v{A+2}, v{A+3}\nv_cvt_pk_bf16_f32 v{p+2}, v{B}, v{B+1}\nv_cvt_pk_bf16_f32 v{p+3}, v{B+2}, v{B+3}")
            if x == 2: a.e(f"s_add_u32 s{S_T}, s{S_T}, 4096")
            a.e(f"buffer_store_dwordx4 {vr(p,4)}, v{self.vL16}, s[{S_WS}:{S_WS+3}], s{S_T} offen offset:{(x & 1)*2048} sc1")
            if own1:
                if x == 0: em.vemit(wm*8192 + wn*1024 + l*16 + 2*g1.c.SB, va)
                a.lds_other(f"ds_write_b128 v{va}, {vr(p,4)} offset:{x*2048}")
        self.bar()
        if own1:
            L.e(f"s_min_u32 s78, s{S_I}, s{S_J}\ns_max_u32 s79, s{S_I}, s{S_J}\ns_cmp_eq_u32 s{S_I}, s{S_J}\ns_cselect_b32 s80, 1, 0\ns_cselect_b32 s79, 99, s79")
            for ins in g1.rot_init(): L.e(ins)
            self.vmP = VM(L)
            L.e(f"s_mul_i32 s{S_WOFF}, s{S_J}, {64*g1.c.ldw}\ns_add_u32 s{S_WOFF}, s{S_WOFF}, s{S_WB0}\ns_mov_b32 s{S_WR}, {2*g1.c.SB}")
            for ins in g1.dma_w(): L.e(ins)
            self.vmP.iss("wpre", g1.c.nWld)
            L.e(f"s_mov_b32 s{S_WR}, 0")
            for n in range(2):
                for ins in g1.stage_off(n) + g1.dma_w(): L.e(ins)
                self.vmP.iss("wmain", g1.c.nWld)
                L.e(f"s_add_u32 s{S_WR}, s{S_WR}, {g1.c.SB}")
        else: self.lweights(self.g[2])
        a.e("s_waitcnt vmcnt(0)")
        self.signal_last(a, 2, 4, self.off_ij(F_H), t0, t1, "h")
        self.stamp(C, 8)
        def xlane(regs):
            for sw in ("v_permlane16_swap_b32", "v_permlane32_swap_b32"):
                for k, r in enumerate(regs): a.e(f"v_mov_b32 v{tm+k}, v{r}")
                a.e("s_nop 1")
                for k, r in enumerate(regs): a.e(f"{sw} v{tm+k}, v{r}")
                a.e("s_nop 1")
                for k, r in enumerate(regs): a.e(f"v_add_f32 v{r}, v{r}, v{tm+k}")
        for x in range(4):
            A, B = g.acc[x][0], g.acc[x][1]
            a.e(f"v_add_f32 v{sm+2*x}, v{A}, v{A+1}")
            for r in [A+2, A+3, B, B+1, B+2, B+3]: a.e(f"v_add_f32 v{sm+2*x}, v{sm+2*x}, v{r}")
        xlane([sm+2*x for x in range(4)])
        for x in range(4):
            A, B = g.acc[x][0], g.acc[x][1]
            a.e(f"v_mul_f32 v{t0}, {fhex(1/32)}, v{sm+2*x}")
            a.e(f"v_sub_f32 v{t1}, v{A}, v{t0}\nv_mul_f32 v{sm+2*x+1}, v{t1}, v{t1}")
            for r in [A+1, A+2, A+3, B, B+1, B+2, B+3]: a.e(f"v_sub_f32 v{t1}, v{r}, v{t0}\nv_fmac_f32 v{sm+2*x+1}, v{t1}, v{t1}")
        xlane([sm+2*x+1 for x in range(4)])
        a.e(f"s_lshl_b32 s{S_T}, s{S_J}, 1\ns_add_u32 s{S_T}, s{S_T}, s{S_WN}\ns_lshl_b32 s{S_T}, s{S_T}, 11\ns_lshl_b32 s{S_T2}, s{S_I}, 7\ns_add_u32 s{S_T}, s{S_T}, s{S_T2}\ns_lshl_b32 s{S_T2}, s{S_WM}, 6\ns_add_u32 s{S_T}, s{S_T}, s{S_T2}\ns_lshl_b32 s{S_T}, s{S_T}, 3\ns_add_u32 s{S_T}, s{S_T}, {WS_ST2}")
        a.e(f"v_lshlrev_b32 v{t0}, 3, v{vL}\nv_cmp_gt_u32 vcc, 16, v{vL}\ns_and_saveexec_b64 s[{S_EX}:{S_EX+1}], vcc")
        for x in range(4):
            a.e(f"buffer_store_dwordx2 {vr(sm+2*x,2)}, v{t0}, s[{S_WS}:{S_WS+3}], s{S_T} offen offset:{x*128} sc1")
        a.e(f"s_mov_b64 exec, s[{S_EX}:{S_EX+1}]")
        if not own1:
            a.e("s_waitcnt vmcnt(0)")
            self.signal_last(a, 4, 4, self.off_ij(F_S2), t0, t1, "s2")

    def phase_f1(self, g):
        C, L, c = self.C, self.L, g.c
        vL = self.vL; t0, t1, t2, t3, t4, t5 = self.vt
        FL1 = 1 if self.o.get("flags1", False) else 0
        ps = 64; cp = 96; mu, m2 = 112, 113
        def s2a(vm):
            self.group_words(L, 56, F_S2, S_I)
            L.e(f"buffer_load_dword v57, v56, s[{S_WS}:{S_WS+3}], 0 offen sc1"); vm.iss("ps2")
        def s2b(vm):
            vm.wait("ps2")
            self.poll_test(L, 57)
            L.e("s_cbranch_scc1 L_s2ready")
            self.poll(L, S_WS, 56, 57, "s2")
            L.label("L_s2ready")
            L.e(f"v_and_b32 v{t0}, 15, v{vL}\nv_lshlrev_b32 v{t0}, 4, v{t0}\nv_lshrrev_b32 v{t1}, 4, v{vL}\nv_lshlrev_b32 v{t1}, 14, v{t1}\nv_add_u32 v54, v{t0}, v{t1}")
            L.e(f"s_lshl_b32 s{S_T2}, s{S_I}, 7\ns_lshl_b32 s{S_T3}, s{S_LW}, 5\ns_add_u32 s{S_T2}, s{S_T2}, s{S_T3}\ns_lshl_b32 s{S_T2}, s{S_T2}, 3\ns_add_u32 s{S_T2}, s{S_T2}, {WS_ST2}")
            for n in range(8):
                L.e(f"buffer_load_dwordx4 {vr(ps+4*n,4)}, v54, s[{S_WS}:{S_WS+3}], s{S_T2} offen sc1\ns_add_u32 s{S_T2}, s{S_T2}, {4*2048*8}")
            vm.iss("ps", 8)
        mua, m2a = 112, 114
        def h0b(vm):
            vm.wait("ps")
            for r in range(2): L.e(f"v_add_f32 v{mua+r}, v{ps+2*r}, v{ps+4+2*r}")
            for n in range(2, 8):
                for r in range(2): L.e(f"v_add_f32 v{mua+r}, v{mua+r}, v{ps+4*n+2*r}")
            self.xgroups(L, [mua, mua+1], 118)
            for r in range(2): L.e(f"v_mul_f32 v{mua+r}, {fhex(1/1024)}, v{mua+r}\nv_mov_b32 v{m2a+r}, 0")
            L.e(f"v_mov_b32 v116, {fhex(1/32)}\nv_mov_b32 v117, {fhex(32.0)}")
        def h1(vm, part=None):
            for n in (range(8) if part is None else range(4*part, 4*part+4) if part < 2 else ()):
                for r in range(2):
                    tt = t1 if r == 0 else t2
                    L.e(f"v_fma_f32 v{tt}, v{ps+4*n+2*r}, v116, -v{mua+r}")
                for r in range(2):
                    tt = t1 if r == 0 else t2
                    L.e(f"v_mul_f32 v{tt}, v{tt}, v{tt}")
                for r in range(2):
                    tt = t1 if r == 0 else t2
                    L.e(f"v_fma_f32 v{tt}, v{tt}, v117, v{ps+4*n+2*r+1}")
                for r in range(2):
                    tt = t1 if r == 0 else t2
                    L.e(f"v_add_f32 v{m2a+r}, v{m2a+r}, v{tt}")
            if part is not None and part < 2: return
            self.xgroups(L, [m2a, m2a+1], 118)
            for r in range(2): L.e(f"v_mul_f32 v{m2a+r}, {fhex(1/1024)}, v{m2a+r}\nv_add_f32 v{m2a+r}, {fhex(EPS)}, v{m2a+r}")
            for r in range(2): L.e(f"v_rsq_f32 v{m2a+r}, v{m2a+r}")
            L.e(f"v_and_b32 v{t0}, 15, v{vL}\nv_lshlrev_b32 v{t0}, 3, v{t0}\ns_lshl_b32 s{S_T}, s{S_LW}, 7\ns_add_u32 s{S_T}, s{S_T}, {SD_MEAN2}\nv_add_u32 v{t0}, s{S_T}, v{t0}")
            L.e(f"v_cmp_gt_u32 vcc, 16, v{vL}\ns_and_saveexec_b64 s[{S_EX}:{S_EX+1}], vcc\nds_write_b64 v{t0}, {vr(mua,2)}\nds_write_b64 v{t0}, {vr(m2a,2)} offset:512\ns_mov_b64 exec, s[{S_EX}:{S_EX+1}]")
        ones, wf, sacc, r1, vL4 = 120, [124 + 4*k for k in range(8)], [156 + 4*k for k in range(4)], [172, 173, 174, 175], 176
        box = {}
        def pre_cs1():
            L.e(f"v_lshlrev_b32 v{vL4}, 2, v{vL}")
            box["cls"] = self.csum_setup(g, 4, r1)
        cs1_code = f"s_lshl_b32 s{S_T}, s{S_I}, 4\ns_add_u32 s{S_T}, s{S_T}, s{S_J}\ns_mul_i32 s{S_T2}, s{S_T}, 896\ns_lshl_b32 s{S_T}, s{S_LW}, 8\ns_add_u32 s{S_T2}, s{S_T2}, s{S_T}\ns_add_u32 s{S_T2}, s{S_T2}, {WS_CS1}"
        fh = (lambda vm: self.csum_reads(4, box["cls"], r1, wf), lambda vm: self.csum_finish(vm, 4, 14, ones, wf, sacc, vL4, cs1_code))
        def hsig(vm):
            if FL1:
                L.e(f"v_mov_b32 v58, {SD_FULL}"); self.lwait(58, 5, "cs1sig")
            self.signal(L, self.off_ji(F_CS1), 52, 53, only_lw0=True); vm.iss("sig")
        def h2a(vm):
            self.group_words(L, 52, F_CS1, S_J)
            L.e(f"buffer_load_dword v53, v52, s[{S_WS}:{S_WS+3}], 0 offen sc1"); vm.iss("pc")
        def h2(vm):
            vm.wait("pc")
            self.poll_test(L, 53, False)
            L.e("s_cbranch_scc1 L_cs1ready")
            self.poll(L, S_WS, 52, 53, "cs1")
            L.label("L_cs1ready")
            self.colsum_loads(L, vm, "cp", cp, 55, t1, 14, 896, f"s_mul_i32 s{S_T2}, s{S_J}, 896\ns_mul_i32 s{S_T}, s{S_LW}, 224\ns_add_u32 s{S_T2}, s{S_T2}, s{S_T}\ns_add_u32 s{S_T2}, s{S_T2}, {WS_CS1}")
        def h4(vm):
            vm.wait("cp")
            self.colsum_reduce(L, cp, 118, t0, 14, SD_CS1, 224)
        def mark(n):
            def fn(vm):
                if n == 0:
                    for k in range(4): L.e(f"v_mov_b32 v{180+k}, -1")
                    L.e(f"s_lshl_b32 s{S_T}, s{S_I}, 4\ns_add_u32 s{S_T}, s{S_T}, s{S_J}\ns_lshl_b32 s{S_T}, s{S_T}, 15\ns_lshl_b32 s{S_T2}, s{S_LW}, 13\ns_add_u32 s{S_T}, s{S_T}, s{S_T2}\ns_add_u32 s71, s{S_T}, {WS_XCH}")
                L.e(f"s_add_u32 s{S_T}, s71, {n*1024}\nbuffer_store_dwordx4 v[180:183], v{self.vL16}, s[{S_WS}:{S_WS+3}], s{S_T} offen sc1"); vm.iss("mark")
            return fn
        F1HOOKS = {0: fh[1], 2: s2a, 3: lambda vm: (hsig(vm), s2b(vm)), 5: h0b, 6: h1, 8: h2a, 9: h2, 11: h4}; F1PEEL = 12
        if self.o.get("lowhooks", True):
            def low(fn):
                def w(vm):
                    L.e("s_setprio 0"); fn(vm); L.e(f"s_setprio {self.o.get('lprio', 1)}")
                return w
            F1HOOKS = {0: fh[1], 2: s2a, 3: lambda vm: (hsig(vm), s2b(vm)), 5: low(h0b), 6: low(lambda vm: h1(vm, 0)), 7: low(lambda vm: h1(vm, 1)),
                       8: lambda vm: (h2a(vm), low(lambda v: h1(v, 2))(vm)), 9: h2, 11: low(h4)}
        if self.o.get("f1late", True):
            F1HOOKS = {1: fh[1], 4: hsig, 7: s2a, 8: h2a, 9: s2b, 10: h2, 12: h0b,
                       13: lambda vm: (h1(vm, 0), h1(vm, 1), h1(vm, 2)), 14: h4}
            F1PEEL = 13
        if self.o.get("sentinel", True) and self.o.get("markat", "o") == "f1":
            for n in range(8):
                prev = F1HOOKS.get(n); mk_ = mark(n)
                F1HOOKS[n] = (lambda vm, p=prev, m=mk_: (m(vm), p(vm) if p else None))
        own1 = self.o.get("own1", True)
        a = C; g.bind(C, vL, self.vt, (8, 9)); cv = Regs(12, 254); g.alloc_compute(cv)
        g.setup_reads()
        nsM = c.nsteps
        if own1:
            nsM = c.nsteps - 1
            assert self.o.get("f1late", True) and not FL1
            F1HOOKS = {1: fh[1], 4: hsig, 6: s2a, 7: h2a, 8: s2b, 9: h2, 11: h0b, 12: lambda vm: (h1(vm, 0), h1(vm, 1), h1(vm, 2)), 13: h4}
            F1PEEL = nsM - c.S
            g.a = C
            a.e(f"s_mov_b32 s{S_RD}, {2*c.SB}")
            for ins in g.set_read_addrs(): a.e(ins)
            a.lds_drain(); a.e("s_setprio 0\ns_barrier")
            for r in g.reads(0, 0): a.lds_rd(*r)
            g.group(0, g.reads(1, 1), [], first=True)
            a.lds_drain(); a.e("s_barrier")
            g.group(1, [], [])
            a.e("s_setprio 3\ns_waitcnt vmcnt(0)")
            self.signal_last(a, 4, 4, self.off_ij(F_S2), t0, t1, "s2")
            g.bind(L, vL, self.vt, (8, 9))
            pre_cs1()
            self.vmP.wait("wpre"); L.e("s_barrier")
            L.e(f"s_cmp_eq_u32 s80, 1\ns_cbranch_scc0 L_csn_pre")
            for r in r1: L.e(f"v_add_u32 v{r}, {2*c.SB}, v{r}")
            self.csum_reads(4, box["cls"], r1, wf)
            L.label("L_csn_pre")
            L.lds_drain(); L.e("s_barrier")
            L.e(f"s_mov_b32 s{S_WR}, {2*c.SB}")
            for ins in g.stage_off(2) + g.dma_w(): L.e(ins)
            def cs_main(vm):
                L.e(f"s_cmp_eq_u32 s80, 1\ns_cbranch_scc1 L_csn_main"); self.csum_reads(4, box["cls"], r1, wf); L.label("L_csn_main")
            fh = (cs_main, fh[1])
            g.bind(C, vL, self.vt, (8, 9))
        self.cpoll(F_H, "f1")
        self.lphase(g, F_H, "f1", hooks=F1HOOKS, npeel=F1PEEL, after_poll=(None if own1 else (lambda vm: pre_cs1())), first_hooks=fh, flags=FL1, ns=nsM)
        g2 = self.g[3]
        self.lsetup(g2, A_W2, DFF*D*2, WS_H1, khalf=True)
        own2 = self.o.get("own2", True)
        if own2:
            L.e(f"s_mul_i32 s{S_A}, s{S_J}, 7\ns_add_u32 s{S_A}, s{S_A}, 1\ns_lshr_b32 s{S_A}, s{S_A}, 1\ns_lshr_b32 s{S_T}, s{S_J}, 3\ns_mul_i32 s{S_T}, s{S_T}, 28\ns_sub_u32 s{S_A}, s{S_A}, s{S_T}")
            for ins in g2.rot_init(): L.e(ins)
            vmA = VM(L)
            L.e(f"s_mul_i32 s{S_WOFF}, s{S_A}, {64*2048}\ns_add_u32 s{S_WOFF}, s{S_WOFF}, s{S_WB0}\ns_mov_b32 s{S_WR}, 0")
            for n in range(3):
                for ins in g2.dma_w(): L.e(ins)
                vmA.iss(("w", n), g2.c.nWld)
                L.e(f"s_add_u32 s{S_WOFF}, s{S_WOFF}, {64*2048}\ns_add_u32 s{S_WR}, s{S_WR}, {g2.c.SB}")
            vmA.wait(("w", 0)); L.e("s_barrier")
            vmA.wait(("w", 1)); L.e("s_barrier")
            vmA.wait(("w", 2)); L.e("s_barrier")
            L.e("s_barrier")
        g.bind(C, vL, self.vt, (8, 9)); g.a = C
        em = g.em; l, wm, wn = g.l, g.wm, g.wn
        f1hooks = None
        fr = g.frag0
        mu = fr; va = fr+4; vb = va+1; vc = va+2; pk = fr+16; vo = fr+24; cs = fr+32
        def f1prep(a_, em_):
            l_ = g.l
            em_.vemit((g.wm*64 + (l_ & 15))*4 + SD_MEAN2, va)
            for x in range(4): a_.lds_rd(f"ds_read_b32 v{mu+x}, v{va} offset:{x*64}", [mu+x])
            em_.vemit(g.wn*512 + (l_ >> 4)*16 + SD_CS1, vb)
            em_.vemit(g.wn*64 + (l_ >> 4)*16 + SD_CS1 + 384, vc)
            for f in range(6): a_.lds_rd(f"ds_read_b128 {vr(cs+4*f,4)}, v{vb} offset:{f*64}", rng(cs+4*f, 4))
            a_.lds_rd(f"ds_read_b128 {vr(cs+24,4)}, v{vc}", rng(cs+24, 4))
            a_.e(f"s_mul_i32 s71, s{S_I}, {56*16384}\ns_lshl_b32 s{S_T}, s{S_WM}, 13\ns_add_u32 s71, s71, s{S_T}\ns_add_u32 s71, s71, {WS_H1}\ns_mul_i32 s{S_T4}, s{S_J}, 7")
        epre = self.o.get("epre", True)
        self.cloop(g, stamps=(9, 10), hooks=f1hooks, flags=FL1, cv=cv, ns=nsM, first=not own1, final_seq=(self.capture(g, f1prep) if epre else ()))
        if not epre: f1prep(a, em)
        def fold(x, f):
            acc = g.acc[x][f]; c0 = cs + 4*f
            for p in range(2):
                a.e(f"v_pk_fma_f32 {vr(acc+2*p,2)}, {vr(mu+(x & ~1),2)}, {vr(c0+2*p,2)}, {vr(acc+2*p,2)} op_sel:[{x & 1},0,0] op_sel_hi:[{x & 1},1,1] neg_lo:[1,0,0] neg_hi:[1,0,0]")
        def kappa(phi_code):
            a.e(phi_code)
            a.e(f"s_lshr_b32 s{S_T2}, s{S_T}, 1\ns_lshl_b32 s{S_T2}, s{S_T2}, 14\ns_and_b32 s{S_T}, s{S_T}, 1\ns_lshl_b32 s{S_T}, s{S_T}, 10\ns_add_u32 s{S_T}, s{S_T}, s{S_T2}\ns_add_u32 s{S_T}, s{S_T}, s71")
        vlw = fr+25
        def lds_own(phi_code):
            if not own2: return
            a.e(phi_code)
            a.e(f"s_and_b32 s{S_T3}, s{S_J}, 1\ns_sub_i32 s{S_T2}, s{S_T2}, s{S_T3}\ns_and_b32 s{S_T3}, s{S_T2}, 1\ns_lshl_b32 s{S_T3}, s{S_T3}, 10\ns_ashr_i32 s{S_T2}, s{S_T2}, 1\ns_and_b32 s{S_T2}, s{S_T2}, 3\ns_lshl_b32 s{S_T2}, s{S_T2}, 15")
            a.e(f"s_add_u32 s{S_T2}, s{S_T2}, s{S_T3}\ns_lshl_b32 s{S_T3}, s{S_WM}, 13\ns_add_u32 s{S_T2}, s{S_T2}, s{S_T3}\nv_add_u32 v{vlw}, s{S_T2}, v{self.vL16}")
        n = 0
        for pr in range(3):
            a.need(list(rng(mu, 4)) + list(rng(cs+8*pr, 8)))
            lds_own(f"s_lshl_b32 s{S_T2}, s{S_WN}, 2\ns_add_u32 s{S_T2}, s{S_T2}, {pr}")
            kappa(f"s_lshl_b32 s{S_T}, s{S_WN}, 2\ns_add_u32 s{S_T}, s{S_T}, s{S_T4}\ns_add_u32 s{S_T}, s{S_T}, {pr}")
            for x in range(4):
                fold(x, 2*pr); fold(x, 2*pr+1)
                A, B = g.acc[x][2*pr], g.acc[x][2*pr+1]; p = pk + 4*(n & 1); n += 1
                a.e(f"v_cvt_pk_bf16_f32 v{p}, v{A}, v{A+1}\nv_cvt_pk_bf16_f32 v{p+1}, v{A+2}, v{A+3}\nv_cvt_pk_bf16_f32 v{p+2}, v{B}, v{B+1}\nv_cvt_pk_bf16_f32 v{p+3}, v{B+2}, v{B+3}")
                for k in range(4): a.e(f"v_pk_max_i16 v{p+k}, v{p+k}, 0")
                if x == 2: a.e(f"s_add_u32 s{S_T}, s{S_T}, 4096")
                a.e(f"buffer_store_dwordx4 {vr(p,4)}, v{self.vL16}, s[{S_WS}:{S_WS+3}], s{S_T} offen offset:{(x & 1)*2048} sc1")
                if own2: a.lds_other(f"ds_write_b128 v{vlw}, {vr(p,4)} offset:{x*2048}")
        a.need(rng(cs+24, 4))
        kappa(f"s_add_u32 s{S_T}, s{S_T4}, 3")
        em.vemit(l*16 + wn*8, vo)
        lds_own(f"s_mov_b32 s{S_T2}, 3")
        if own2: a.e(f"s_lshl_b32 s{S_T3}, s{S_WN}, 3\nv_add_u32 v{vlw}, s{S_T3}, v{vlw}")
        for x in range(4):
            fold(x, 6)
            A = g.acc[x][6]; p = pk + 4*(n & 1); n += 1
            a.e(f"v_cvt_pk_bf16_f32 v{p}, v{A}, v{A+1}\nv_cvt_pk_bf16_f32 v{p+1}, v{A+2}, v{A+3}\nv_pk_max_i16 v{p}, v{p}, 0\nv_pk_max_i16 v{p+1}, v{p+1}, 0")
            if x == 2: a.e(f"s_add_u32 s{S_T}, s{S_T}, 4096")
            a.e(f"buffer_store_dwordx2 {vr(p,2)}, v{vo}, s[{S_WS}:{S_WS+3}], s{S_T} offen offset:{(x & 1)*2048} sc1")
            if own2: a.lds_other(f"ds_write_b64 v{vlw}, {vr(p,2)} offset:{x*2048}")
        if not own2:
            self.bar()
            self.lweights(self.g[3])
            a.e("s_waitcnt vmcnt(0)")
            self.signal_last(a, 3, 4, self.off_ij(F_H1), t0, t1, "h1")
            self.stamp(C, 11)

    def phase_f2(self, g):
        C, L, c = self.C, self.L, g.c
        vL = self.vL; t0, t1, t2, t3, t4, t5 = self.vt
        own2 = self.o.get("own2", True)
        a = C; g.bind(C, vL, self.vt, (8, 9)); cv = Regs(12, 254)
        a.e(f"s_lshr_b32 s3, s{S_J}, 3")
        g.alloc_compute(cv)
        em = g.em; l, wm, wn = g.l, g.wm, g.wn
        hr = cv.alloc(16, 4); pt = cv.alloc(32, 4); rs = cv.alloc(4, 4); pk = cv.alloc(8, 4); va = cv.alloc(); vo = cv.alloc()
        g.setup_reads()
        nsB = c.nsteps
        if own2:
            g.a = C
            def pub():
                a.e("s_setprio 3\ns_waitcnt vmcnt(0)")
                self.signal_last(a, 3, 4, self.off_ij(F_H1), t0, t1, "h1")
                self.stamp(C, 11)
                a.e("s_setprio 0")
            if self.o.get("pubmid", True):
                self.cloop(g, stamps=(None, None), ns=3, first=True, sfx="a", peel_first=pub)
            else:
                self.cloop(g, stamps=(None, None), ns=3, first=True, sfx="a")
                pub()
            nsB = c.nsteps - 3
            self.lweights(g, init=False)
        def hookF2(a):
            a.e(f"s_and_b32 s{S_T}, s{S_J}, 7\ns_lshl_b32 s{S_T}, s{S_T}, 1\ns_add_u32 s{S_T}, s{S_T}, s{S_WN}\ns_lshl_b32 s{S_T2}, s{S_I}, 4\ns_add_u32 s{S_T}, s{S_T}, s{S_T2}\ns_lshl_b32 s{S_T}, s{S_T}, 14")
            a.e(f"s_lshl_b32 s{S_T2}, s{S_WM}, 13\ns_add_u32 s{S_T}, s{S_T}, s{S_T2}\ns_lshl_b32 s{S_T2}, s3, 10\ns_add_u32 s{S_T}, s{S_T}, s{S_T2}\ns_add_u32 s{S_T}, s{S_T}, {WS_H}")
            for x in range(4):
                if x == 2: a.e(f"s_add_u32 s{S_T}, s{S_T}, 4096")
                a.e(f"buffer_load_dwordx4 {vr(hr+4*x,4)}, v{self.vL16}, s[{S_WS}:{S_WS+3}], s{S_T} offen offset:{(x & 1)*2048} sc1")
        if self.o.get("res2out", True):
            a.e(f"s_cmp_eq_u32 s{S_LW}, 0\ns_cbranch_scc1 L_res2a"); hookF2(a); a.label("L_res2a")
        self.cpoll(F_H1, "f2")
        if self.o.get("res2out", True):
            a.e(f"s_cmp_lg_u32 s{S_LW}, 0\ns_cbranch_scc1 L_res2b"); hookF2(a); a.label("L_res2b")
        FL2 = 1 if self.o.get("flags2", False) else 0
        self.lphase(g, F_H1, "f2", ns=nsB, flags=FL2)
        g.bind(C, vL, self.vt, (8, 9)); g.a = C; em = g.em
        self.cloop(g, stamps=(12, 13), hooks=(None if self.o.get("res2out", True) else {nsB - 5: hookF2}), ns=nsB, first=not own2, flags=FL2, cv=cv)
        a.e(f"s_lshl_b32 s{S_T}, s{S_I}, 4\ns_add_u32 s{S_T}, s{S_T}, s{S_J}\ns_lshl_b32 s{S_T}, s{S_T}, 15\ns_lshl_b32 s{S_T2}, s{S_LW}, 13\ns_add_u32 s{S_T}, s{S_T}, s{S_T2}\ns_add_u32 s{S_T}, s{S_T}, {WS_XCH}")
        for x in range(4):
            if x == 2: a.e(f"s_add_u32 s{S_T}, s{S_T}, 4096")
            for f in range(2):
                a.e(f"buffer_store_dwordx4 {vr(g.acc[x][2+f],4)}, v{self.vL16}, s[{S_WS}:{S_WS+3}], s{S_T} offen offset:{((x & 1)*2+f)*1024} sc1")
        em.vemit((wm*64 + (l & 15))*4 + SD_RSTD2, va)
        for x in range(4): a.lds_rd(f"ds_read_b32 v{rs+x}, v{va} offset:{x*64}", [rs+x])
        srd(a, S_OUT, *self.ptr(A_OUT), M*D*2)
        em.vemit((l & 15)*2048 + ((l >> 4) & 1)*32 + (l >> 5)*16, vo)
        prefold = self.o.get("prefold", False)
        if prefold:
            a.e("s_waitcnt vmcnt(8)")
            a.need(rng(rs, 4))
            for x in range(4):
                for f in range(2):
                    acc = g.acc[x][f]
                    for d in range(2):
                        src = hr + 4*x + 2*f + d
                        a.e(f"v_lshlrev_b32 v{t0}, 16, v{src}\nv_and_b32 v{t1}, 0xffff0000, v{src}")
                        a.e(f"v_fma_f32 v{acc+2*d}, v{acc+2*d}, v{rs+x}, v{t0}\nv_fma_f32 v{acc+2*d+1}, v{acc+2*d+1}, v{rs+x}, v{t1}")
        if not self.o.get("sentinel", True):
            a.e("s_waitcnt vmcnt(0)")
            self.signal(a, self.off_ijw(F_P, S_LW), t0, t1)
            a.e(f"s_xor_b32 s{S_T2}, s{S_J}, 8\ns_lshl_b32 s{S_T2}, s{S_T2}, 2\ns_lshl_b32 s{S_T}, s{S_I}, 6\ns_add_u32 s{S_T}, s{S_T}, s{S_T2}\ns_add_u32 s{S_T}, s{S_T}, s{S_LW}\ns_lshl_b32 s{S_T}, s{S_T}, 2\ns_add_u32 s{S_T}, s{S_T}, {F_P}\nv_mov_b32 v{t2}, s{S_T}")
            self.poll(a, S_WS, t2, t3, "p")
        a.e(f"s_xor_b32 s{S_T}, s{S_J}, 8\ns_lshl_b32 s{S_T2}, s{S_I}, 4\ns_add_u32 s{S_T}, s{S_T}, s{S_T2}\ns_lshl_b32 s{S_T}, s{S_T}, 15\ns_lshl_b32 s{S_T2}, s{S_LW}, 13\ns_add_u32 s{S_T}, s{S_T}, s{S_T2}\ns_add_u32 s{S_T3}, s{S_T}, {WS_XCH}\ns_add_u32 s{S_T4}, s{S_T3}, 4096")
        if self.o.get("sentinel", True):
            a.e(f"s_mov_b32 s{S_CNT}, {POLL_MAX}")
            a.label("L_xch")
        for x in range(4):
            for f in range(2):
                a.e(f"buffer_load_dwordx4 {vr(pt+8*x+4*f,4)}, v{self.vL16}, s[{S_WS}:{S_WS+3}], s{S_T3 if x < 2 else S_T4} offen offset:{((x & 1)*2+f)*1024} sc1")
        if self.o.get("sentinel", True):
            a.e("s_waitcnt vmcnt(0)")
            a.e(f"v_max3_u32 v{t0}, v{pt}, v{pt+1}, v{pt+2}")
            for k in range(3, 31, 2): a.e(f"v_max3_u32 v{t0}, v{t0}, v{pt+k}, v{pt+k+1}")
            a.e(f"v_max_u32 v{t0}, v{t0}, v{pt+31}\nv_cmp_ne_u32 vcc, -1, v{t0}\ns_nop 4\ns_cmp_eq_u64 vcc, exec\ns_cbranch_scc1 L_xch_done")
            a.e(f"s_sub_u32 s{S_CNT}, s{S_CNT}, 1\ns_cmp_lg_u32 s{S_CNT}, 0\ns_cbranch_scc1 L_xch")
            a.label("L_xch_done")
        a.e(f"s_lshl_b32 s{S_T}, s{S_I}, 1\ns_add_u32 s{S_T}, s{S_T}, s{S_WM}\ns_lshl_b32 s{S_T}, s{S_T}, 17\ns_and_b32 s{S_T2}, s{S_J}, 7\ns_lshl_b32 s{S_T2}, s{S_T2}, 8\ns_add_u32 s{S_T}, s{S_T}, s{S_T2}")
        a.e(f"s_lshl_b32 s{S_T2}, s{S_WN}, 7\ns_add_u32 s{S_T}, s{S_T}, s{S_T2}\ns_lshl_b32 s{S_T2}, s3, 6\ns_add_u32 s{S_T}, s{S_T}, s{S_T2}")
        a.need(rng(rs, 4))
        for x in range(4):
            if not self.o.get("sentinel", True): a.e(f"s_waitcnt vmcnt({(3-x)*2 + x})")
            p = pk + 4*(x & 1)
            for f in range(2):
                acc = g.acc[x][f]; q_ = pt + 8*x + 4*f
                if prefold:
                    for pp_ in range(2):
                        a.e(f"v_pk_fma_f32 {vr(acc+2*pp_,2)}, {vr(q_+2*pp_,2)}, {vr(rs+(x & ~1),2)}, {vr(acc+2*pp_,2)} op_sel:[0,{x & 1},0] op_sel_hi:[1,{x & 1},1]")
                    for d in range(2): a.e(f"v_cvt_pk_bf16_f32 v{p+2*f+d}, v{acc+2*d}, v{acc+2*d+1}")
                    continue
                for pp_ in range(2):
                    a.e(f"v_pk_add_f32 {vr(acc+2*pp_,2)}, {vr(acc+2*pp_,2)}, {vr(q_+2*pp_,2)}")
                for d in range(2):
                    src = hr + 4*x + 2*f + d
                    a.e(f"v_lshlrev_b32 v{t0}, 16, v{src}\nv_and_b32 v{t1}, 0xffff0000, v{src}")
                    a.e(f"v_fma_f32 v{t0}, v{acc+2*d}, v{rs+x}, v{t0}\nv_fma_f32 v{t1}, v{acc+2*d+1}, v{rs+x}, v{t1}")
                    a.e(f"v_cvt_pk_bf16_f32 v{p+2*f+d}, v{t0}, v{t1}")
            a.e("s_nop 1")
            a.e(f"v_permlane16_swap_b32 v{p}, v{p+2}\nv_permlane16_swap_b32 v{p+1}, v{p+3}")
            a.e(f"buffer_store_dwordx4 {vr(p,4)}, v{vo}, s[{S_OUT}:{S_OUT+3}], s{S_T} offen sc1")
            if x < 3: a.e(f"s_add_u32 s{S_T}, s{S_T}, {16*2048}")
        self.stamp(C, 14)

if __name__ == "__main__":
    import sys
    diag = "--diag" in sys.argv
    args = [x for x in sys.argv[1:] if not x.startswith("--")]
    out = args[0] if args else "mk.s"
    mk = MK(dict(diag=diag))
    body = mk.build()
    hdr = f"""; Single persistent launch: 256 workgroups (one per CU) x 8 waves (4 MFMA waves + 4 loader/helper waves).
; @launch grid=(256,1,1) block=(512,1,1) lds={LDS_TOTAL}
.amdgcn_target "amdgcn-amd-amdhsa--gfx950"
.text
"""
    open(out, "w").write(hdr + body)
    print("wrote", out, len((hdr+body).splitlines()), "lines")
```
